```python
import torch

def _softmax(x, axis=-1):
    return torch.softmax(x, dim=axis)
def _gelu(x):
    return torch.nn.functional.gelu(x, approximate="tanh")
def _silu(x):
    return torch.nn.functional.silu(x)
def _sigmoid(x):
    return torch.sigmoid(x)
def _layernorm(x, axis=-1, eps=1e-5):
    m = x.mean(dim=axis, keepdim=True)
    v = x.var(dim=axis, keepdim=True, unbiased=False)
    return (x - m) / torch.sqrt(v + eps)
def _scatter_add(tgt, idx, src, axis=0):
    return tgt.clone().index_add_(axis, idx, src)
def _segment_sum(src, seg, n):
    out = torch.zeros((n,) + src.shape[1:], dtype=src.dtype)
    return out.index_add_(0, seg, src)
def _pad(x, pw):
    flat = tuple(v for pair in reversed(pw) for v in pair)
    return torch.nn.functional.pad(x, flat)

kernel_name = 'recurrent_scan__gqa_block_cached__glu_gated_reglu__decode'

def setup_inputs():

    _w = (lambda a: (lambda t: t.to(torch.bfloat16) if t.is_floating_point() else t)(torch.as_tensor(a)))
    def _A_setup():
        B, Sq, D = 4, 1, 640
        Hq, Hkv, Sk, Dh = 32, 32, 4096, 192
        assert Hq % Hkv == 0, (Hq, Hkv)
        return {
            "x": _w((lambda *s: torch.randn(*s, dtype=torch.bfloat16) * 0.05)(B, Sq, D)),
            "k_cache": _w((lambda *s: torch.randn(*s, dtype=torch.bfloat16) * 3.2)(B, Hkv, Sk, Dh)),
            "v_cache": _w((lambda *s: torch.randn(*s, dtype=torch.bfloat16) * 3.2)(B, Hkv, Sk, Dh)),
            "wq": _w((lambda *s: torch.randn(*s, dtype=torch.bfloat16) * 3.2)(D, Hq * Dh) * (D ** -0.5)),
            "wo": _w((lambda *s: torch.randn(*s, dtype=torch.bfloat16) * 3.2)(Hq * Dh, D) * ((Hq * Dh) ** -0.5)),
        }
    _A_in = _A_setup()

    def _B_setup():
        B, S, D, F = 4, 1, 640, 1536
        return {
            "x": _w((lambda *s: torch.randn(*s, dtype=torch.bfloat16) * 0.05)(B, S, D)),
            "W_gate": _w((lambda *s: torch.randn(*s, dtype=torch.bfloat16) * 0.4)(D, F) * (2.0 / D) ** 0.5),
            "W_up": _w((lambda *s: torch.randn(*s, dtype=torch.bfloat16) * 0.4)(D, F) * (2.0 / D) ** 0.5),
            "W_down": _w((lambda *s: torch.randn(*s, dtype=torch.bfloat16) * 0.4)(F, D) * (1.0 / F) ** 0.5),
        }
    _B_in = _B_setup()

    return {
        "A_x": _A_in["x"],
        "A_k_cache": _A_in["k_cache"],
        "A_v_cache": _A_in["v_cache"],
        "A_wq": _A_in["wq"],
        "A_wo": _A_in["wo"],
        "B_x": _B_in["x"],
        "B_W_gate": _B_in["W_gate"],
        "B_W_up": _B_in["W_up"],
        "B_W_down": _B_in["W_down"],
    }

def reference(A_x, A_k_cache, A_v_cache, A_wq, A_wo, B_x, B_W_gate, B_W_up, B_W_down):
    def _A_ref(x, k_cache, v_cache, wq, wo):
        B, Sq, D = x.shape
        Hq, Dh = 32, 192
        Hkv = k_cache.shape[1]
        rep = Hq // Hkv
        q = (lambda x, *d: x.permute(*d))((x @ wq).reshape(B, Sq, Hq, Dh), 0, 2, 1, 3)
        k = (lambda x, n, axis: torch.repeat_interleave(x, n, dim=axis))(k_cache, rep, axis=1)
        v = (lambda x, n, axis: torch.repeat_interleave(x, n, dim=axis))(v_cache, rep, axis=1)
        scores = torch.einsum("bhqd,bhkd->bhqk", q, k) * (Dh ** -0.5)
        p = _softmax(scores, axis=-1)
        o = torch.einsum("bhqk,bhkd->bhqd", p, v)
        return (lambda x, *d: x.permute(*d))(o, 0, 2, 1, 3).reshape(B, Sq, Hq * Dh) @ wo

    def _B_ref(x, W_gate, W_up, W_down):
        gate = torch.einsum("bsd,df->bsf", x, W_gate)
        up = torch.einsum("bsd,df->bsf", x, W_up)
        gate = gate * (lambda x, dt: x.to(dt))(gate > 0, gate.dtype)
        h = gate * up
        return torch.einsum("bsf,fd->bsd", h, W_down)

    x = A_x
    xn = _layernorm(x, axis=-1)
    s = _A_ref(xn, A_k_cache, A_v_cache, A_wq, A_wo)
    g = _silu(_B_ref(xn, B_W_gate, B_W_up, B_W_down))
    return x + s * g
```

```python
import sys, os, struct
NAME = 'recurrent_scan__gqa_block_cached__glu_gated_reglu__decode'

HEADER = '''; Kernarg layout (96 bytes, ptrs only, base s[0:1]):
'''

def f2u(x): return struct.unpack('<I', struct.pack('<f', x))[0]

def gen(fn, stamps=False, pace=16, up=4, mapping='x', kvil=False, twostage=False, spin=1<<15, knt='nt', vnt='nt', w1nt='nt', w2nt='nt', sleep=0):
    L = []
    def A(s):
        for ln in s.strip('\n').split('\n'):
            L.append(ln.strip())
    RING = 36864; SLOT = 12288
    MISC = 4*RING
    XN = MISC; OBF = MISC
    RED = MISC + 1536
    OCB = RED + 8192
    QL = RED + 12288
    HL = QL + 384
    LDS = 163840
    P1 = 0x1000; OP = 0x100000; YP = 0x200000; BP = 0x300000; WSZ = 0x400000
    TAGC = 0x9E3779B9
    sX, sK, sV, sWQ, sWO, sWG, sWU, sWD, sOUT, sDBG, sWS = 4, 6, 8, 10, 12, 16, 18, 20, 22, 24, 26
    rK, rV, rW1, rW2, rWS = 28, 32, 36, 40, 44
    sWAVE, sH, sJ, sB, sHALF = 48, 49, 50, 51, 52
    sBETA, sPI, sHASW1, sRS = 53, 54, 55, 56
    sSLA, sSLB, sSLC = 57, 58, 59
    sOFF, sT, sCNT = 60, 61, 62
    sSC, sL2E = 63, 64
    sT0, sT1, sT2, sT3 = 65, 66, 67, 68
    sU2, sR, sCB, sRB, sSLC2 = 69, 70, 71, 72, 73
    sP = 74
    sST = 76
    def srd(r): return f's[{r}:{r+3}]'
    def sp(r): return f's[{r}:{r+1}]'
    vLANE, vL16, vTAG, vKA0, vVA0, vA, vM, vML, vLS, vAL = 1, 2, 3, 4, 5, 6, 7, 8, 9, 10
    vT = 12
    vS = 28
    vP = 36
    vQ = 40
    vF = 64
    vO = 112
    vW = 160
    NV = 208
    def v(r, n=1): return f'v{r}' if n == 1 else f'v[{r}:{r+n-1}]'
    nstamp = [0]
    def stamp(i):
        if stamps:
            A(f's_memrealtime {sp(sST+2*i)}\ns_waitcnt lgkmcnt(0)')
    def write_stamps(rec_base, lbl):
        if not stamps: return
        A(f's_lshl_b32 s{sT0}, s2, 6\ns_add_u32 s{sT0}, s{sT0}, {0x20000000 + rec_base*64}')
        A(f's_add_u32 s{sP}, s{sWS}, s{sT0}\ns_addc_u32 s{sP+1}, s{sWS+1}, 0')
        A(f's_mov_b64 exec, 1\nv_mov_b32 {v(vA)}, 0')
        for i in range(4):
            for k in range(4): A(f'v_mov_b32 {v(vT+k)}, s{sST+4*i+k}')
            A(f'global_store_dwordx4 {v(vA)}, {v(vT,4)}, {sp(sP)} offset:{16*i}\ns_nop 1')
    def xsum(r, t, op='v_add_f32', full=True):
        if full:
            for mode in ['quad_perm:[1,0,3,2]', 'quad_perm:[2,3,0,1]', 'row_half_mirror', 'row_mirror']:
                A(f's_nop 1\n{op}_dpp {v(r)}, {v(r)}, {v(r)} {mode} row_mask:0xf bank_mask:0xf')
        for sw in ['v_permlane16_swap_b32', 'v_permlane32_swap_b32']:
            A(f'v_mov_b32 {v(t)}, {v(r)}\ns_nop 1\n{sw} {v(r)}, {v(t)}\n{op} {v(r)}, {v(r)}, {v(t)}')
    def rnd(r, t):
        A(f'v_cvt_pk_bf16_f32 {v(t)}, {v(r)}, {v(r)}\nv_lshlrev_b32 {v(r)}, 16, {v(t)}')
    def rnd2(r0, r1, t):
        A(f'v_cvt_pk_bf16_f32 {v(t)}, {v(r0)}, {v(r1)}\nv_lshlrev_b32 {v(r0)}, 16, {v(t)}\nv_and_b32 {v(r1)}, 0xffff0000, {v(t)}')
    def dma_tile(rsrc, soff, sslot, paced=None, lo=0, hi=12):
        for i in range(lo, hi):
            if i == lo or i % 4 == 0:
                A(f's_add_u32 m0, s{sslot}, {4096*(i//4)}\ns_add_u32 s{sT0}, s{soff}, {4096*(i//4)}')
            if paced: A(f's_waitcnt vmcnt({paced-1})')
            A(f'buffer_load_dwordx4 {v(vL16)}, {srd(rsrc)}, s{sT0} offen offset:{1024*(i%4)} {knt if rsrc == rK else vnt} lds')
    def poll(lbl, loads, tagregs, code):
        A(f's_mov_b32 s{sCNT}, {spin}\n{lbl}:')
        for x in loads: A(x)
        A('s_waitcnt vmcnt(0)')
        A(f'v_xor_b32 {v(vT)}, {v(tagregs[0])}, {v(vTAG)}')
        for r in tagregs[1:]:
            A(f'v_xor_b32 {v(vT+1)}, {v(r)}, {v(vTAG)}\nv_or_b32 {v(vT)}, {v(vT)}, {v(vT+1)}')
        A(f'v_cmp_ne_u32 vcc, 0, {v(vT)}\ns_cbranch_vccz {lbl}_ok')
        if sleep: A(f's_sleep {sleep}')
        A(f's_sub_u32 s{sCNT}, s{sCNT}, 1\ns_cmp_lg_u32 s{sCNT}, 0\ns_cbranch_scc1 {lbl}')
        A(f'v_mov_b32 {v(vT)}, 0\nv_mov_b32 {v(vT+1)}, {code}\nglobal_store_dword {v(vT)}, {v(vT+1)}, {sp(sDBG)}')
        A(f'{lbl}_ok:')
    def wsload(dst, voff, soff): return f'buffer_load_dwordx4 {v(dst,4)}, {v(voff)}, {srd(rWS)}, s{soff} offen sc1'
    def put3_bf16(r0, t, va):
        A(f'v_cvt_pk_bf16_f32 {v(t)}, {v(r0)}, {v(r0+1)}\nv_cvt_pk_bf16_f32 {v(t+1)}, {v(r0+2)}, {v(r0+2)}')
        A(f'ds_write_b16 {v(va)}, {v(t)}\nds_write_b16_d16_hi {v(va)}, {v(t)} offset:2\nds_write_b16 {v(va)}, {v(t+1)} offset:4')
    def fdiv(q, n, d, r, e):
        A(f'v_mul_f32 {v(q)}, {v(n)}, {v(r)}\nv_fma_f32 {v(e)}, -{v(q)}, {v(d)}, {v(n)}\nv_fma_f32 {v(q)}, {v(e)}, {v(r)}, {v(q)}')
    def trread_mfma(ntile, va, off2, acc, first, frag, aop):
        def rd(t):
            A(f'ds_read_b64_tr_b16 {v(frag+4*t,2)}, {v(va)} offset:{32*t}')
            A(f'ds_read_b64_tr_b16 {v(frag+4*t+2,2)}, {v(va)} offset:{32*t+off2}')
        pre = min(4, ntile)
        for t in range(pre): rd(t)
        for t in range(ntile):
            if t + pre < ntile: rd(t + pre)
            left = min(ntile - 1, t + pre) - t
            A(f's_waitcnt lgkmcnt({2*left})')
            c = '0' if first else v(acc+4*t, 4)
            A(f'v_mfma_f32_16x16x32_bf16 {v(acc+4*t,4)}, {v(aop,4)}, {v(frag+4*t,4)}, {c}')

    A(HEADER)
    A(f'; @launch grid=(256,1,1) block=(320,1,1) lds={LDS}')
    A('.amdgcn_target "amdgcn-amd-amdhsa--gfx950"\n.text')
    A(f'.globl {NAME}_kernel\n.p2align 8\n.type {NAME}_kernel,@function\n{NAME}_kernel:')
    A('s_cmp_ge_u32 s2, 256\ns_cbranch_scc1 L_end')
    A('s_load_dwordx16 s[4:19], s[0:1], 0\ns_load_dwordx8 s[20:27], s[0:1], 64')
    if stamps:
        A(f's_memrealtime {sp(sST)}')
        for i in range(2, 16): A(f's_mov_b32 s{sST+i}, 0')
    A(f'v_lshrrev_b32 {v(vT)}, 6, v0\nv_and_b32 {v(vLANE)}, 63, v0')
    A(f'v_readfirstlane_b32 s{sWAVE}, {v(vT)}')
    A(f'v_lshlrev_b32 {v(vL16)}, 4, {v(vLANE)}')
    if mapping == 'x':
        A(f's_and_b32 s{sT0}, s2, 7\ns_lshr_b32 s{sT1}, s2, 3\ns_and_b32 s{sJ}, s{sT1}, 7\ns_lshr_b32 s{sT1}, s{sT1}, 3')
        A(f's_lshl_b32 s{sH}, s{sT0}, 2\ns_add_u32 s{sH}, s{sH}, s{sT1}')
    else:
        A(f's_and_b32 s{sJ}, s2, 7\ns_lshr_b32 s{sH}, s2, 3')
    A(f's_lshr_b32 s{sB}, s{sJ}, 1\ns_and_b32 s{sHALF}, s{sJ}, 1')
    A(f's_mul_i32 s{sU2}, s{sH}, 3\ns_add_u32 s{sU2}, s{sU2}, s{sJ}')
    A(f's_mov_b32 s{sSC}, {f2u(192**-0.5):#x}\ns_mov_b32 s{sL2E}, {f2u(1.4426950408889634):#x}')
    A('s_waitcnt lgkmcnt(0)')
    A(f's_mov_b32 s{rWS}, s{sWS}\ns_mov_b32 s{rWS+1}, s{sWS+1}\ns_mov_b32 s{rWS+2}, {WSZ}\ns_mov_b32 s{rWS+3}, 0x20000')
    A(f's_cmp_eq_u32 s{sWAVE}, 4\ns_cbranch_scc1 L_helper')

    A(f's_mul_i32 s{sT0}, s{sWAVE}, 1280\nv_lshlrev_b32 {v(vA)}, 2, {v(vLANE)}\nv_add_u32 {v(vA)}, s{sT0}, {v(vA)}')
    for k in range(5): A(f'global_load_dword {v(vF+k)}, {v(vA)}, {sp(sX)} offset:{256*k}')
    A(f'v_mov_b32 {v(vT)}, 0\nglobal_load_dword {v(vTAG)}, {v(vT)}, {sp(sWS)} sc1')
    A(f's_cmp_ge_u32 s{sJ}, 3\ns_cbranch_scc0 L_w1mlp')
    A(f's_mov_b32 s{sBETA}, s{sH}\ns_sub_u32 s{sPI}, s{sJ}, 3\ns_mov_b32 s{sRS}, 12288\ns_mov_b32 s{sHASW1}, 1')
    A(f's_mul_i32 s{sT1}, s{sH}, 384\ns_add_u32 s{rW1}, s{sWQ}, s{sT1}\ns_addc_u32 s{rW1+1}, s{sWQ+1}, 0')
    A('s_branch L_w1done\nL_w1mlp:')
    A(f's_mul_i32 s{sT1}, s{sU2}, 52429\ns_lshr_b32 s{sT1}, s{sT1}, 18')
    A(f's_mul_i32 s{sT2}, s{sT1}, 5\ns_sub_u32 s{sPI}, s{sU2}, s{sT2}\ns_add_u32 s{sBETA}, s{sT1}, 32\ns_mov_b32 s{sRS}, 3072')
    A(f's_cmp_lt_u32 s{sU2}, 80\ns_cselect_b32 s{sHASW1}, 1, 0')
    A(f's_cmp_lt_u32 s{sT1}, 8\ns_cselect_b32 s{rW1}, s{sWG}, s{sWU}\ns_cselect_b32 s{rW1+1}, s{sWG+1}, s{sWU+1}')
    A(f's_and_b32 s{sT1}, s{sT1}, 7\ns_mul_i32 s{sT1}, s{sT1}, 384\ns_add_u32 s{rW1}, s{rW1}, s{sT1}\ns_addc_u32 s{rW1+1}, s{rW1+1}, 0')
    A('L_w1done:')
    A(f's_lshl_b32 s{sT1}, s{sPI}, 2\ns_add_u32 s{sT1}, s{sT1}, s{sWAVE}\ns_lshl_b32 s{sT1}, s{sT1}, 5\ns_mul_i32 s{sT1}, s{sT1}, s{sRS}')
    A(f's_add_u32 s{rW1}, s{rW1}, s{sT1}\ns_addc_u32 s{rW1+1}, s{rW1+1}, 0')
    A(f's_mul_i32 s{sT1}, s{sRS}, 31\ns_add_u32 s{sT1}, s{sT1}, 384\ns_mul_i32 s{rW1+2}, s{sT1}, s{sHASW1}\ns_mov_b32 s{rW1+3}, 0x20000')
    for p in range(3):
        A(f'v_add_u32 {v(vT)}, {64*p}, {v(vLANE)}\nv_mul_u32_u24 {v(vT+1)}, 2731, {v(vT)}\nv_lshrrev_b32 {v(vT+1)}, 16, {v(vT+1)}')
        A(f'v_mul_u32_u24 {v(vT+2)}, 24, {v(vT+1)}\nv_sub_u32 {v(vT)}, {v(vT)}, {v(vT+2)}\nv_lshlrev_b32 {v(vT)}, 4, {v(vT)}')
        A(f'v_mad_u32_u24 {v(vS+p)}, {v(vT+1)}, s{sRS}, {v(vT)}')
    A(f's_mul_i32 s{sSLA}, s{sWAVE}, {RING}\ns_add_u32 s{sSLB}, s{sSLA}, {SLOT}\ns_add_u32 s{sSLC}, s{sSLA}, {2*SLOT}')
    A(f's_lshl_b32 s{sT2}, s{sRS}, 3\ns_mov_b32 s{sT1}, 0')
    for i in range(12):
        if i and i % 3 == 0: A(f's_add_u32 s{sT1}, s{sT1}, s{sT2}')
        A(f's_add_u32 m0, s{sSLC}, {1024*i}\ns_nop 0')
        A(f'buffer_load_dwordx4 {v(vS+i%3)}, {srd(rW1)}, s{sT1} offen {w1nt} lds')
    A(f's_lshl_b32 s{sT1}, s{sB}, 5\ns_add_u32 s{sT1}, s{sT1}, s{sH}\ns_mul_i32 s{sT1}, s{sT1}, 1572864')
    if kvil:
        TSTEP = 8*SLOT; NREC = 1572864
        A(f's_lshl_b32 s{sOFF}, s{sHALF}, 2\ns_add_u32 s{sOFF}, s{sOFF}, s{sWAVE}\ns_mul_i32 s{sOFF}, s{sOFF}, {SLOT}')
    else:
        TSTEP = 4*SLOT; NREC = 786432
        A(f's_mul_i32 s{sT2}, s{sHALF}, 786432\ns_add_u32 s{sT1}, s{sT1}, s{sT2}')
        A(f's_mul_i32 s{sOFF}, s{sWAVE}, {SLOT}')
    A(f's_add_u32 s{rK}, s{sK}, s{sT1}\ns_addc_u32 s{rK+1}, s{sK+1}, 0\ns_mov_b32 s{rK+2}, {NREC}\ns_mov_b32 s{rK+3}, 0x20000')
    A(f's_add_u32 s{rV}, s{sV}, s{sT1}\ns_addc_u32 s{rV+1}, s{sV+1}, 0\ns_mov_b32 s{rV+2}, {NREC}\ns_mov_b32 s{rV+3}, 0x20000')
    dma_tile(rK, sOFF, sSLA, None, 0, up)
    A(f's_mul_i32 s{sT1}, s{sH}, {192*1280}\ns_lshl_b32 s{sT2}, s{sJ}, 8\ns_add_u32 s{sT1}, s{sT1}, s{sT2}\ns_lshl_b32 s{sT2}, s{sWAVE}, 6\ns_add_u32 s{sT1}, s{sT1}, s{sT2}')
    A(f's_add_u32 s{rW2}, s{sWO}, s{sT1}\ns_addc_u32 s{rW2+1}, s{sWO+1}, 0')
    A(f's_cmp_lt_u32 s{sJ}, 5\ns_cselect_b32 s{rW2+2}, {191*1280+64}, 0\ns_mov_b32 s{rW2+3}, 0x20000')
    A(f'v_and_b32 {v(vT)}, 15, {v(vLANE)}\nv_mul_u32_u24 {v(vT)}, 384, {v(vT)}\nv_lshrrev_b32 {v(vT+1)}, 4, {v(vLANE)}\nv_lshl_add_u32 {v(vKA0)}, {v(vT+1)}, 4, {v(vT)}')
    A(f'v_lshrrev_b32 {v(vT)}, 2, {v(vLANE)}\nv_mul_u32_u24 {v(vT)}, 384, {v(vT)}\nv_and_b32 {v(vT+1)}, 3, {v(vLANE)}\nv_lshl_add_u32 {v(vVA0)}, {v(vT+1)}, 3, {v(vT)}')
    A(f's_waitcnt vmcnt({1+12+up})')
    X = vF + 8
    for k in range(5):
        A(f'v_lshlrev_b32 {v(X+2*k)}, 16, {v(vF+k)}\nv_and_b32 {v(X+2*k+1)}, 0xffff0000, {v(vF+k)}')
    a = vT
    A(f'v_add_f32 {v(a)}, {v(X)}, {v(X+1)}')
    for k in range(2, 10): A(f'v_add_f32 {v(a)}, {v(a)}, {v(X+k)}')
    xsum(a, a+1)
    A(f'v_mul_f32 {v(a)}, {f2u(1/640):#x}, {v(a)}')
    b_ = vT+2
    A(f'v_sub_f32 {v(a+1)}, {v(X)}, {v(a)}\nv_mul_f32 {v(b_)}, {v(a+1)}, {v(a+1)}')
    for k in range(1, 10): A(f'v_sub_f32 {v(a+1)}, {v(X+k)}, {v(a)}\nv_fmac_f32 {v(b_)}, {v(a+1)}, {v(a+1)}')
    xsum(b_, a+1)
    A(f'v_mul_f32 {v(b_)}, {f2u(1/640):#x}, {v(b_)}')
    rnd2(a, b_, a+1)
    A(f'v_add_f32 {v(b_)}, {f2u(1e-5):#x}, {v(b_)}')
    rnd(b_, a+1)
    c_ = vT+3
    A(f'v_sqrt_f32 {v(c_)}, {v(b_)}\ns_nop 0\nv_rcp_f32 {v(c_+1)}, {v(c_)}\nv_fma_f32 {v(a+1)}, -{v(c_)}, {v(c_)}, {v(b_)}')
    A(f'v_mul_f32 {v(c_+1)}, 0.5, {v(c_+1)}\nv_fma_f32 {v(c_)}, {v(a+1)}, {v(c_+1)}, {v(c_)}')
    rnd(c_, a+1)
    A(f'v_rcp_f32 {v(c_+1)}, {v(c_)}')
    A(f'v_mov_b32 {v(vT+6)}, {v(X)}\nv_mov_b32 {v(vT+7)}, {v(X+1)}')
    for k in range(1, 5):
        A(f's_cmp_eq_u32 s{sPI}, {k}\ns_cselect_b64 vcc, -1, 0\nv_cndmask_b32 {v(vT+6)}, {v(vT+6)}, {v(X+2*k)}, vcc\nv_cndmask_b32 {v(vT+7)}, {v(vT+7)}, {v(X+2*k+1)}, vcc')
    A(f'v_sub_f32 {v(vT+6)}, {v(vT+6)}, {v(a)}\nv_sub_f32 {v(vT+7)}, {v(vT+7)}, {v(a)}')
    rnd2(vT+6, vT+7, a+1)
    fdiv(vT+8, vT+6, c_, c_+1, a+1)
    fdiv(vT+9, vT+7, c_, c_+1, a+1)
    A(f'v_cvt_pk_bf16_f32 {v(vT+8)}, {v(vT+8)}, {v(vT+9)}')
    A(f's_lshl_b32 s{sT1}, s{sWAVE}, 8\ns_add_u32 s{sT1}, s{sT1}, {XN}\nv_lshlrev_b32 {v(vA)}, 2, {v(vLANE)}\nv_add_u32 {v(vA)}, s{sT1}, {v(vA)}')
    A(f'ds_write_b32 {v(vA)}, {v(vT+8)}')
    A(f'v_bfe_u32 {v(vT)}, {v(vLANE)}, 2, 2\nv_lshlrev_b32 {v(vT)}, 8, {v(vT)}\nv_lshrrev_b32 {v(vT+1)}, 4, {v(vLANE)}\nv_lshl_add_u32 {v(vT)}, {v(vT+1)}, 3, {v(vT)}')
    A(f's_lshl_b32 s{sT1}, s{sWAVE}, 6\ns_add_u32 s{sT1}, s{sT1}, {XN}\nv_add_u32 {v(vA)}, s{sT1}, {v(vT)}')
    A('s_waitcnt lgkmcnt(0)\ns_barrier')
    stamp(1)
    A(f'ds_read2_b64 {v(vP,4)}, {v(vA)} offset0:0 offset1:4')
    dma_tile(rK, sOFF, sSLA, pace, up, 12)
    A(f'v_add_u32 {v(vA)}, s{sSLC}, {v(vVA0)}')
    A('s_waitcnt vmcnt(12) lgkmcnt(0)')
    trread_mfma(12, vA, 6144, vO, True, vF, vP)
    A(f's_mul_i32 s{sT1}, s{sWAVE}, 3072\ns_add_u32 s{sT1}, s{sT1}, {RED}')
    A(f'v_lshrrev_b32 {v(vT)}, 4, {v(vLANE)}\nv_mul_u32_u24 {v(vT)}, 768, {v(vT)}\nv_and_b32 {v(vT+1)}, 15, {v(vLANE)}\nv_lshl_add_u32 {v(vT)}, {v(vT+1)}, 2, {v(vT)}\nv_add_u32 {v(vA)}, s{sT1}, {v(vT)}')
    A('s_nop 2')
    for t in range(12): A(f'ds_write_b32 {v(vA)}, {v(vO+4*t)} offset:{64*t}')
    A(f's_mul_i32 s{sT1}, s{sWAVE}, 768\ns_add_u32 s{sT1}, s{sT1}, {RED}\nv_mul_u32_u24 {v(vA)}, 12, {v(vLANE)}\nv_add_u32 {v(vA)}, s{sT1}, {v(vA)}')
    A('s_waitcnt lgkmcnt(0)\ns_barrier')
    for w in range(4):
        for k in range(3): A(f'ds_read_b32 {v(vF+4*w+k)}, {v(vA)} offset:{3072*w+4*k}')
    A(f'v_lshrrev_b32 {v(vT)}, 2, {v(vLANE)}\nv_mul_u32_u24 {v(vT)}, 1280, {v(vT)}\nv_and_b32 {v(vT+1)}, 3, {v(vLANE)}\nv_lshl_add_u32 {v(vS)}, {v(vT+1)}, 4, {v(vT)}')
    A(f's_mul_i32 s{sT1}, s{sBETA}, 5\ns_add_u32 s{sT1}, s{sT1}, s{sPI}\ns_lshl_b32 s{sT1}, s{sT1}, 2\ns_add_u32 s{sT1}, s{sT1}, s{sWAVE}\ns_lshl_b32 s{sT1}, s{sT1}, 10\ns_add_u32 s{sT1}, s{sT1}, {P1}')
    A(f'v_add_u32 {v(vTAG)}, {TAGC:#x}, {v(vTAG)}')
    A('s_waitcnt lgkmcnt(0)')
    for k in range(3):
        A(f'v_add_f32 {v(vF+k)}, {v(vF+k)}, {v(vF+4+k)}\nv_add_f32 {v(vF+8+k)}, {v(vF+8+k)}, {v(vF+12+k)}')
    for k in range(3): A(f'v_add_f32 {v(vF+k)}, {v(vF+k)}, {v(vF+8+k)}')
    A(f'v_mov_b32 {v(vF+3)}, {v(vTAG)}')
    A(f's_cmp_eq_u32 s{sHASW1}, 0\ns_cbranch_scc1 L_nopub1')
    A(f'buffer_store_dwordx4 {v(vF,4)}, {v(vL16)}, {srd(rWS)}, s{sT1} offen sc1')
    A('L_nopub1:')
    stamp(2)
    A(f's_mov_b32 s{sT1}, 0')
    for i in range(12):
        A(f's_add_u32 m0, s{sSLC}, {1024*i}\ns_waitcnt vmcnt({pace-1})')
        A(f'buffer_load_dwordx4 {v(vS)}, {srd(rW2)}, s{sT1} offen {w2nt} lds')
        if i < 11: A(f's_add_u32 s{sT1}, s{sT1}, 20480')
    dma_tile(rV, sOFF, sSLB, pace)
    A(f'v_lshrrev_b32 {v(vT)}, 2, {v(vLANE)}\nv_lshlrev_b32 {v(vT)}, 6, {v(vT)}\nv_and_b32 {v(vT+1)}, 3, {v(vLANE)}\nv_lshl_add_u32 {v(vT)}, {v(vT+1)}, 3, {v(vT)}\nv_add_u32 {v(vA)}, s{sSLC}, {v(vT)}')
    A('s_waitcnt vmcnt(12)')
    for s in range(6):
        for t in range(2):
            f = vW + 24*t + 4*s
            A(f'ds_read_b64_tr_b16 {v(f,2)}, {v(vA)} offset:{2048*s+32*t}\nds_read_b64_tr_b16 {v(f+2,2)}, {v(vA)} offset:{2048*s+32*t+1024}')
        if s % 2 == 1: A('s_waitcnt lgkmcnt(4)' if s < 5 else 's_waitcnt lgkmcnt(0)')
    A(f's_add_u32 s{sOFF}, s{sOFF}, {TSTEP}')
    dma_tile(rK, sOFF, sSLC, pace)
    for t in range(12):
        for r in range(4): A(f'v_mov_b32 {v(vO+4*t+r)}, 0')
    A(f'v_mov_b32 {v(vM)}, {f2u(-1e30):#x}\nv_mov_b32 {v(vML)}, {f2u(-1e30):#x}\nv_mov_b32 {v(vLS)}, 0')
    A(f'v_lshrrev_b32 {v(vA)}, 4, {v(vLANE)}\nv_lshlrev_b32 {v(vA)}, 4, {v(vA)}\nv_add_u32 {v(vA)}, {QL}, {v(vA)}')
    A('s_barrier')
    stamp(3)
    for s in range(6): A(f'ds_read_b128 {v(vQ+4*s,4)}, {v(vA)} offset:{64*s}')
    A(f's_mov_b32 s{sT}, 16\ns_waitcnt lgkmcnt(0)')
    A('.p2align 6\nL_loop:')
    A(f'v_add_u32 {v(vA)}, s{sSLA}, {v(vKA0)}')
    A('s_waitcnt vmcnt(24)')
    for kt in range(2):
        for s in range(6): A(f'ds_read_b128 {v(vF+24*kt+4*s,4)}, {v(vA)} offset:{6144*kt+64*s}')
    for kt in range(2):
        for s in range(6):
            i = 6*kt + s
            A(f's_waitcnt lgkmcnt({11-i})')
            c = '0' if s == 0 else v(vS+4*kt, 4)
            A(f'v_mfma_f32_16x16x32_bf16 {v(vS+4*kt,4)}, {v(vF+4*i,4)}, {v(vQ+4*s,4)}, {c}')
    dma_tile(rV, sOFF, sSLA)
    for k in range(4): rnd2(vS+2*k, vS+2*k+1, vT+k)
    for k in range(8): A(f'v_mul_f32 {v(vS+k)}, s{sSC}, {v(vS+k)}')
    for k in range(4): rnd2(vS+2*k, vS+2*k+1, vT+k)
    A(f'v_max3_f32 {v(vT)}, {v(vS)}, {v(vS+1)}, {v(vS+2)}\nv_max3_f32 {v(vT+1)}, {v(vS+3)}, {v(vS+4)}, {v(vS+5)}')
    A(f'v_max3_f32 {v(vM)}, {v(vS+6)}, {v(vS+7)}, {v(vM)}\nv_max3_f32 {v(vM)}, {v(vM)}, {v(vT)}, {v(vT+1)}')
    xsum(vM, vT, 'v_max_f32', full=False)
    A(f'v_mul_f32 {v(vT)}, s{sL2E}, {v(vM)}\nv_sub_f32 {v(vAL)}, {v(vML)}, {v(vT)}\nv_mov_b32 {v(vML)}, {v(vT)}\nv_exp_f32 {v(vAL)}, {v(vAL)}')
    for k in range(8): A(f'v_fma_f32 {v(vS+k)}, {v(vS+k)}, s{sL2E}, -{v(vML)}')
    for k in range(8): A(f'v_exp_f32 {v(vS+k)}, {v(vS+k)}')
    for t in range(12): A(f'v_mul_f32 {v(vO+4*t)}, {v(vAL)}, {v(vO+4*t)}')
    for k in range(4): A(f'v_cvt_pk_bf16_f32 {v(vP+k)}, {v(vS+2*k)}, {v(vS+2*k+1)}')
    for k in range(4): A(f'v_add_f32 {v(vT+k)}, {v(vS+2*k)}, {v(vS+2*k+1)}')
    A(f'v_add_f32 {v(vT)}, {v(vT)}, {v(vT+1)}\nv_add_f32 {v(vT+2)}, {v(vT+2)}, {v(vT+3)}\nv_add_f32 {v(vT)}, {v(vT)}, {v(vT+2)}')
    A(f'v_fma_f32 {v(vLS)}, {v(vLS)}, {v(vAL)}, {v(vT)}')
    A(f'v_add_u32 {v(vA)}, s{sSLB}, {v(vVA0)}')
    A(f's_add_u32 s{sOFF}, s{sOFF}, {TSTEP}')
    A('s_waitcnt vmcnt(24)')
    trread_mfma(12, vA, 6144, vO, False, vF, vP)
    dma_tile(rK, sOFF, sSLB)
    A(f's_mov_b32 s{sT1}, s{sSLA}\ns_mov_b32 s{sSLA}, s{sSLC}\ns_mov_b32 s{sSLC}, s{sSLB}\ns_mov_b32 s{sSLB}, s{sT1}')
    A(f's_sub_u32 s{sT}, s{sT}, 1\ns_cmp_lg_u32 s{sT}, 0\ns_cbranch_scc1 L_loop')
    stamp(4)
    xsum(vLS, vT, full=False)
    A(f's_lshl_b32 s{sT1}, s{sWAVE}, 10\ns_add_u32 s{sT1}, s{sT1}, {OCB}\nv_lshlrev_b32 {v(vA)}, 2, {v(vLANE)}\nv_add_u32 {v(vA)}, s{sT1}, {v(vA)}')
    A('s_mov_b64 exec, 0xffff')
    for t in range(12): A(f'ds_write_b32 {v(vA)}, {v(vO+4*t)} offset:{64*t}')
    A(f's_mov_b64 exec, 1\nds_write2_b32 {v(vA)}, {v(vML)}, {v(vLS)} offset0:192 offset1:193\ns_mov_b64 exec, -1')
    A('s_waitcnt lgkmcnt(0)\ns_barrier')
    A(f's_cmp_ge_u32 s{sJ}, 5\ns_cbranch_scc1 L_sdone')
    A(f's_lshl_b32 s{sT1}, s{sH}, 3\ns_lshl_b32 s{sT2}, s{sWAVE}, 1\ns_add_u32 s{sT1}, s{sT1}, s{sT2}\ns_lshl_b32 s{sT1}, s{sT1}, 11\ns_add_u32 s{sT1}, s{sT1}, {OP}\ns_add_u32 s{sT2}, s{sT1}, 2048')
    A(f'v_mov_b32 {v(vA)}, 1024')
    if twostage:
        poll('L_pml', [wsload(vF+8, vA, sT1), wsload(vF+12, vA, sT2)], [vF+11, vF+15], 3)
        poll('L_po', [wsload(vF, vL16, sT1), wsload(vF+4, vL16, sT2)], [vF+3, vF+7], 4)
    else:
        poll('L_po', [wsload(vF, vL16, sT1), wsload(vF+4, vL16, sT2), wsload(vF+8, vA, sT1), wsload(vF+12, vA, sT2)], [vF+3, vF+7, vF+11, vF+15], 4)
    stamp(5)
    m0_, l0_, m1_, l1_ = vF+8, vF+9, vF+12, vF+13
    A(f'v_max_f32 {v(vT)}, {v(m0_)}, {v(m1_)}\nv_sub_f32 {v(m0_)}, {v(m0_)}, {v(vT)}\nv_sub_f32 {v(m1_)}, {v(m1_)}, {v(vT)}\nv_exp_f32 {v(m0_)}, {v(m0_)}\nv_exp_f32 {v(m1_)}, {v(m1_)}')
    A(f's_mul_i32 s{sT1}, s{sWAVE}, 384\ns_add_u32 s{sT1}, s{sT1}, {OBF}')
    A(f'v_mul_f32 {v(l0_)}, {v(l0_)}, {v(m0_)}\nv_fmac_f32 {v(l0_)}, {v(l1_)}, {v(m1_)}\nv_rcp_f32 {v(l1_)}, {v(l0_)}')
    for k in range(3): A(f'v_mul_f32 {v(vF+k)}, {v(vF+k)}, {v(m0_)}\nv_fmac_f32 {v(vF+k)}, {v(vF+4+k)}, {v(m1_)}')
    A(f'v_mul_u32_u24 {v(vA)}, 6, {v(vLANE)}\nv_add_u32 {v(vA)}, s{sT1}, {v(vA)}')
    for k in range(3): fdiv(vF+4+k, vF+k, l0_, l1_, vT)
    put3_bf16(vF+4, vT, vA)
    A(f'v_bfe_u32 {v(vT+2)}, {v(vLANE)}, 2, 2\nv_mul_u32_u24 {v(vT+2)}, 384, {v(vT+2)}\nv_lshrrev_b32 {v(vT+3)}, 4, {v(vLANE)}\nv_lshl_add_u32 {v(vT+2)}, {v(vT+3)}, 3, {v(vT+2)}\nv_add_u32 {v(vA)}, {OBF}, {v(vT+2)}')
    A(f's_lshl_b32 s{sT1}, s{sJ}, 2\ns_add_u32 s{sT1}, s{sT1}, s{sWAVE}\ns_lshl_b32 s{sT1}, s{sT1}, 5\ns_add_u32 s{sT1}, s{sT1}, s{sH}\ns_lshl_b32 s{sT1}, s{sT1}, 10\ns_add_u32 s{sT1}, s{sT1}, {YP}')
    A('s_waitcnt lgkmcnt(0)\ns_barrier')
    for s in range(6): A(f'ds_read2_b64 {v(vF+4*s,4)}, {v(vA)} offset0:{8*s} offset1:{8*s+4}')
    for s in range(6):
        A(f's_waitcnt lgkmcnt({5-s})')
        for t in range(2):
            c = '0' if s == 0 else v(vS+4*t, 4)
            A(f'v_mfma_f32_16x16x32_bf16 {v(vS+4*t,4)}, {v(vF+4*s,4)}, {v(vW+24*t+4*s,4)}, {c}')
    A(f'v_mov_b32 {v(vT+2)}, {v(vTAG)}\nv_mov_b32 {v(vT+3)}, {v(vTAG)}\ns_nop 5')
    A(f'v_mov_b32 {v(vT)}, {v(vS)}\nv_mov_b32 {v(vT+1)}, {v(vS+4)}')
    A(f'buffer_store_dwordx4 {v(vT,4)}, {v(vL16)}, {srd(rWS)}, s{sT1} offen sc1')
    A('L_sdone:')
    stamp(6)
    if stamps:
        A(f's_cmp_lg_u32 s{sWAVE}, 0\ns_cbranch_scc1 L_end\ns_waitcnt vmcnt(0)')
        stamp(7)
        write_stamps(0, 's')
    A('s_endpgm')

    A('L_helper:')
    A(f'v_mov_b32 {v(vT)}, 0\nglobal_load_dword {v(vTAG)}, {v(vT)}, {sp(sWS)} sc1')
    A(f's_mul_i32 s{sT0}, s{sH}, {5*4096}\ns_lshl_b32 s{sT1}, s{sB}, 10\ns_add_u32 s{sT0}, s{sT0}, s{sT1}\ns_add_u32 s{rK}, s{sT0}, {P1}')
    for p in range(1, 5): A(f's_add_u32 s{rK+p}, s{rK}, {4096*p}')
    A(f's_sub_u32 s{sU2}, s{sU2}, 5')
    A(f'v_mov_b32 {v(vS+1)}, 0\nv_mov_b32 {v(vS+6)}, 0')
    A(f'v_mul_u32_u24 {v(vA)}, 6, {v(vLANE)}\nv_add_u32 {v(vA)}, {QL}, {v(vA)}')
    A(f's_waitcnt vmcnt(0)\nv_add_u32 {v(vTAG)}, {TAGC:#x}, {v(vTAG)}')
    A('s_barrier\ns_barrier')
    stamp(1)
    poll('L_pq', [wsload(vF+4*p, vL16, rK+p) for p in range(5)], [vF+4*p+3 for p in range(5)], 1)
    for k in range(3):
        for p in range(1, 5): A(f'v_add_f32 {v(vF+k)}, {v(vF+k)}, {v(vF+4*p+k)}')
    put3_bf16(vF, vT, vA)
    A('s_waitcnt lgkmcnt(0)\ns_barrier')
    stamp(2)
    A(f's_cmp_ge_u32 s{sJ}, 5\ns_cselect_b32 s{sHASW1}, 1, 0\ns_cmp_lt_u32 s{sU2}, 80\ns_cselect_b32 s{sHASW1}, s{sHASW1}, 0')
    A(f's_cmp_eq_u32 s{sHASW1}, 0\ns_cbranch_scc1 L_hb4')
    A(f's_mul_i32 s{sR}, s{sU2}, 52429\ns_lshr_b32 s{sR}, s{sR}, 18\ns_mul_i32 s{sT0}, s{sR}, 5\ns_sub_u32 s{sCB}, s{sU2}, s{sT0}')
    A(f's_mul_i32 s{sRB}, s{sU2}, 52429\ns_lshr_b32 s{sRB}, s{sRB}, 20\ns_mul_i32 s{sT0}, s{sRB}, 20\ns_sub_u32 s{sSLC2}, s{sU2}, s{sT0}')
    A(f's_mul_i32 s{sT0}, s{sR}, {96*1280}\ns_lshl_b32 s{sT1}, s{sCB}, 8\ns_add_u32 s{sT0}, s{sT0}, s{sT1}')
    A(f's_add_u32 s{rW2}, s{sWD}, s{sT0}\ns_addc_u32 s{rW2+1}, s{sWD+1}, 0\ns_mov_b32 s{rW2+2}, {95*1280+256}\ns_mov_b32 s{rW2+3}, 0x20000')
    vWD, vG4 = vS, vS+1
    A(f'v_lshrrev_b32 {v(vT)}, 4, {v(vLANE)}\nv_and_b32 {v(vT+1)}, 15, {v(vLANE)}\nv_lshlrev_b32 {v(vT+1)}, 4, {v(vT+1)}')
    A(f'v_mul_u32_u24 {v(vWD)}, 1280, {v(vT)}\nv_add_u32 {v(vWD)}, {v(vWD)}, {v(vT+1)}\nv_lshl_add_u32 {v(vG4)}, {v(vT)}, 10, {v(vT+1)}')
    def wd_dma(s):
        for i in range(8):
            A(f's_mov_b32 m0, {RED+1024*i}\ns_mov_b32 s{sT0}, {(32*s+4*i)*1280}')
            A(f'buffer_load_dwordx4 {v(vWD)}, {srd(rW2)}, s{sT0} offen {w2nt} lds')
    wd_dma(0)
    A(f'v_lshrrev_b32 {v(vT)}, 5, {v(vLANE)}\nv_mul_u32_u24 {v(vT)}, {8*5*4096}, {v(vT)}\nv_and_b32 {v(vT+1)}, 31, {v(vLANE)}\nv_lshl_add_u32 {v(vA)}, {v(vT+1)}, 4, {v(vT)}')
    A(f's_lshr_b32 s{sT0}, s{sR}, 1\ns_add_u32 s{sT0}, s{sT0}, 32\ns_mul_i32 s{sT0}, s{sT0}, {5*4096}\ns_and_b32 s{sT1}, s{sR}, 1\ns_lshl_b32 s{sT1}, s{sT1}, 9\ns_add_u32 s{sT0}, s{sT0}, s{sT1}\ns_add_u32 s{rK}, s{sT0}, {P1}')
    for p in range(1, 5): A(f's_add_u32 s{rK+p}, s{rK}, {4096*p}')
    G = vF
    poll('L_pg', [wsload(G+20*b+4*p, vA, rK+p) + f' offset:{1024*b}' if False else
                  f'buffer_load_dwordx4 {v(G+20*b+4*p,4)}, {v(vA)}, {srd(rWS)}, s{rK+p} offen offset:{1024*b} sc1' for b in range(4) for p in range(5)],
         [G+20*b+4*p+3 for b in range(4) for p in range(5)], 2)
    A(f'v_and_b32 {v(vA)}, 31, {v(vLANE)}\nv_mul_u32_u24 {v(vA)}, 6, {v(vA)}\nv_add_u32 {v(vA)}, {HL}, {v(vA)}')
    for b in range(4):
        g0 = G + 20*b
        for k in range(3):
            for p in range(1, 5): A(f'v_add_f32 {v(g0+k)}, {v(g0+k)}, {v(g0+4*p+k)}')
        rnd2(g0, g0+1, vT); rnd(g0+2, vT)
        for k in range(3): A(f'v_mov_b32 {v(g0+4+k)}, {v(g0+k)}')
        A('s_nop 1')
        for k in range(3): A(f'v_permlane32_swap_b32 {v(g0+k)}, {v(g0+4+k)}')
        for k in range(3):
            A(f'v_cmp_lt_f32 vcc, 0, {v(g0+k)}\ns_nop 1\nv_cndmask_b32 {v(vT)}, 0, 1.0, vcc\nv_mul_f32 {v(g0+k)}, {v(g0+k)}, {v(vT)}\nv_mul_f32 {v(g0+k)}, {v(g0+k)}, {v(g0+4+k)}')
        put3_bf16(g0, vT, vA)
        if b < 3: A(f'v_add_u32 {v(vA)}, 192, {v(vA)}')
    A(f'v_bfe_u32 {v(vT+2)}, {v(vLANE)}, 2, 2\nv_mul_u32_u24 {v(vT+2)}, 192, {v(vT+2)}\nv_lshrrev_b32 {v(vT+3)}, 4, {v(vLANE)}\nv_lshl_add_u32 {v(vT+2)}, {v(vT+3)}, 3, {v(vT+2)}\nv_add_u32 {v(vA)}, {HL}, {v(vT+2)}')
    A('s_waitcnt lgkmcnt(0)')
    for s in range(3): A(f'ds_read2_b64 {v(vQ+4*s,4)}, {v(vA)} offset0:{8*s} offset1:{8*s+4}')
    A(f'v_lshrrev_b32 {v(vT)}, 2, {v(vLANE)}\nv_lshlrev_b32 {v(vT)}, 8, {v(vT)}\nv_and_b32 {v(vT+1)}, 3, {v(vLANE)}\nv_lshl_add_u32 {v(vT)}, {v(vT+1)}, 3, {v(vT)}\nv_add_u32 {v(vA)}, {RED}, {v(vT)}')
    for s in range(3):
        A('s_waitcnt vmcnt(0) lgkmcnt(0)')
        trread_mfma(8, vA, 4096, vO, s == 0, vF, vQ+4*s)
        if s < 2: wd_dma(s+1)
    A(f's_lshl_b32 s{sT0}, s{sCB}, 6\ns_add_u32 s{sT0}, s{sT0}, s{sR}\ns_lshl_b32 s{sT0}, s{sT0}, 10\ns_add_u32 s{sT0}, s{sT0}, {BP}')
    A('s_nop 4')
    for ww in range(4):
        t0 = vF + 4*ww
        A(f'v_mov_b32 {v(t0)}, {v(vO+8*ww)}\nv_mov_b32 {v(t0+1)}, {v(vO+8*ww+4)}\nv_mov_b32 {v(t0+2)}, {v(vTAG)}\nv_mov_b32 {v(t0+3)}, {v(vTAG)}')
        A(f'buffer_store_dwordx4 {v(t0,4)}, {v(vL16)}, {srd(rWS)}, s{sT0} offen sc1')
        if ww < 3: A(f's_add_u32 s{sT0}, s{sT0}, 16384')
    stamp(3)
    vG0, vG1, vX0, vX1, vXO = vS+2, vS+3, vS+4, vS+5, vS+6
    A(f's_mul_i32 s{sT0}, s{sRB}, 1280\ns_lshl_b32 s{sT1}, s{sSLC2}, 6\ns_add_u32 s{sT0}, s{sT0}, s{sT1}')
    A(f'v_and_b32 {v(vXO)}, 15, {v(vLANE)}\nv_lshlrev_b32 {v(vXO)}, 1, {v(vXO)}\nv_add_u32 {v(vXO)}, s{sT0}, {v(vXO)}')
    A(f'global_load_ushort {v(vX0)}, {v(vXO)}, {sp(sX)}\nglobal_load_ushort {v(vX1)}, {v(vXO)}, {sp(sX)} offset:32')
    A(f's_lshl_b32 s{sT0}, s{sSLC2}, 14\ns_lshl_b32 s{sT1}, s{sRB}, 8\ns_add_u32 s{sT0}, s{sT0}, s{sT1}\ns_add_u32 s{rK}, s{sT0}, {BP}')
    for p in range(1, 4): A(f's_add_u32 s{rK+p}, s{rK}, {4096*p}')
    G = vF + 16
    poll('L_pb', [wsload(G+4*p, vG4, rK+p) for p in range(4)], [G+4*p+3 for p in range(4)], 5)
    for k in range(2):
        A(f'v_add_f32 {v(G+k)}, {v(G+k)}, {v(G+4+k)}\nv_add_f32 {v(G+8+k)}, {v(G+8+k)}, {v(G+12+k)}\nv_add_f32 {v(G+k)}, {v(G+k)}, {v(G+8+k)}')
        xsum(G+k, vT, full=False)
    rnd2(G, G+1, vT)
    for k in range(2):
        A(f'v_mul_f32 {v(vT)}, s{sL2E}, {v(G+k)}\nv_max_f32 {v(vT)}, {f2u(-126.0):#x}, {v(vT)}\nv_exp_f32 {v(vT)}, -{v(vT)}\ns_nop 0\nv_add_f32 {v(vT)}, 1.0, {v(vT)}\nv_rcp_f32 {v(vT+1)}, {v(vT)}\ns_nop 0')
        fdiv(vG0+k, G+k, vT, vT+1, vT+2)
    rnd2(vG0, vG1, vT)
    A(f'v_lshlrev_b32 {v(vX0)}, 16, {v(vX0)}\nv_lshlrev_b32 {v(vX1)}, 16, {v(vX1)}')
    A(f's_lshl_b32 s{sT0}, s{sSLC2}, 15\ns_lshl_b32 s{sT1}, s{sRB}, 8\ns_add_u32 s{sT0}, s{sT0}, s{sT1}\ns_add_u32 s{rK}, s{sT0}, {YP}')
    for p in range(1, 8): A(f's_add_u32 s{rK+p}, s{rK}, {4096*p}')
    stamp(4)
    A('L_hb4:')
    A(f'v_mul_u32_u24 {v(vA)}, 12, {v(vLANE)}\nv_add_u32 {v(vA)}, {OCB}, {v(vA)}\nv_mov_b32 {v(vAL)}, {OCB+768}')
    A(f's_lshl_b32 s{sT1}, s{sH}, 3\ns_add_u32 s{sT1}, s{sT1}, s{sJ}\ns_lshl_b32 s{sT1}, s{sT1}, 11\ns_add_u32 s{sT1}, s{sT1}, {OP}')
    A('s_barrier')
    stamp(5)
    Gm = vQ
    for w in range(4): A(f'ds_read_b64 {v(Gm+2*w,2)}, {v(vAL)} offset:{1024*w}')
    for w in range(4):
        A(f'ds_read2_b32 {v(vF+4*w,2)}, {v(vA)} offset0:0 offset1:1\nds_read_b32 {v(vF+4*w+2)}, {v(vA)} offset:8')
        if w < 3: A(f'v_add_u32 {v(vA)}, 1024, {v(vA)}')
    A('s_waitcnt lgkmcnt(8)')
    r0 = vP
    ml = vT + 4
    A(f'v_max3_f32 {v(ml)}, {v(Gm)}, {v(Gm+2)}, {v(Gm+4)}\nv_max_f32 {v(ml)}, {v(ml)}, {v(Gm+6)}')
    for w in range(4): A(f'v_sub_f32 {v(Gm+2*w)}, {v(Gm+2*w)}, {v(ml)}')
    for w in range(4): A(f'v_exp_f32 {v(Gm+2*w)}, {v(Gm+2*w)}')
    A(f'v_mov_b32 {v(r0+3)}, {v(vTAG)}\nv_mov_b32 {v(ml+3)}, {v(vTAG)}\nv_mov_b32 {v(ml+2)}, {v(vTAG)}')
    A(f'v_mul_f32 {v(ml+1)}, {v(Gm)}, {v(Gm+1)}')
    for w in range(1, 4): A(f'v_fmac_f32 {v(ml+1)}, {v(Gm+2*w)}, {v(Gm+2*w+1)}')
    A('s_waitcnt lgkmcnt(0)')
    for k in range(3): A(f'v_mul_f32 {v(r0+k)}, {v(Gm)}, {v(vF+k)}')
    for w in range(1, 4):
        for k in range(3): A(f'v_fmac_f32 {v(r0+k)}, {v(Gm+2*w)}, {v(vF+4*w+k)}')
    A(f'buffer_store_dwordx4 {v(r0,4)}, {v(vL16)}, {srd(rWS)}, s{sT1} offen sc1')
    A(f's_mov_b64 exec, 1\nbuffer_store_dwordx4 {v(ml,4)}, {v(vL16)}, {srd(rWS)}, s{sT1} offen offset:1024 sc1\ns_mov_b64 exec, -1')
    A(f's_cmp_eq_u32 s{sHASW1}, 0\ns_cbranch_scc1 L_hdone')
    G = vF + 16
    if twostage:
        pass
    poll('L_py', [wsload(G+4*p, vG4, rK+p) for p in range(8)], [G+4*p+3 for p in range(8)], 6)
    stamp(6)
    for k in range(2):
        for p in range(4): A(f'v_add_f32 {v(G+8*p+k)}, {v(G+8*p+k)}, {v(G+8*p+4+k)}')
        A(f'v_add_f32 {v(G+k)}, {v(G+k)}, {v(G+8+k)}\nv_add_f32 {v(G+16+k)}, {v(G+16+k)}, {v(G+24+k)}\nv_add_f32 {v(G+k)}, {v(G+k)}, {v(G+16+k)}')
    for k in range(2): xsum(G+k, vT+k, full=False)
    rnd2(G, G+1, vT)
    A(f'v_mul_f32 {v(G)}, {v(G)}, {v(vG0)}\nv_mul_f32 {v(G+1)}, {v(G+1)}, {v(vG1)}')
    rnd2(G, G+1, vT)
    A(f'v_add_f32 {v(G)}, {v(G)}, {v(vX0)}\nv_add_f32 {v(G+1)}, {v(G+1)}, {v(vX1)}\nv_cvt_pk_bf16_f32 {v(G)}, {v(G)}, {v(G+1)}')
    A(f's_mov_b64 exec, 0xffff\nglobal_store_short {v(vXO)}, {v(G)}, {sp(sOUT)}\nglobal_store_short_d16_hi {v(vXO)}, {v(G)}, {sp(sOUT)} offset:32')
    A(f's_cmp_lg_u32 s{sU2}, 0\ns_cbranch_scc1 L_hdone')
    A(f's_mov_b64 exec, 1\nv_mov_b32 {v(vT)}, 0\nglobal_store_dword {v(vT)}, {v(vTAG)}, {sp(sWS)} sc1')
    A('L_hdone:')
    if stamps:
        A('s_waitcnt vmcnt(0)')
        stamp(7)
        write_stamps(256, 'h')
    A('L_end:\ns_endpgm')
    A(f'''.section .rodata,"a"
.p2align 6
.amdhsa_kernel {NAME}_kernel
  .amdhsa_next_free_vgpr {NV}
  .amdhsa_next_free_sgpr 96
  .amdhsa_accum_offset {NV}
  .amdhsa_group_segment_fixed_size 0
  .amdhsa_kernarg_size 96
  .amdhsa_user_sgpr_count 2
  .amdhsa_user_sgpr_kernarg_segment_ptr 1
  .amdhsa_system_sgpr_workgroup_id_x 1
  .amdhsa_float_denorm_mode_32 3
.end_amdhsa_kernel''')
    open(fn, 'w').write('\n'.join(L) + '\n')

if __name__ == '__main__':
    fn = sys.argv[1]
    kw = {}
    for a in sys.argv[2:]:
        k, val = a.split('=')
        try: val = int(val)
        except ValueError: val = val.replace('+', ' ').replace('def', '')
        kw[k] = val
    gen(fn, **kw)
```

```python
import sys, os, struct
NAME = 'recurrent_scan__gqa_block_cached__glu_gated_reglu__decode'

HEADER = '''; Kernarg layout (96 bytes, ptrs only, base s[0:1]):
'''

def f2u(x): return struct.unpack('<I', struct.pack('<f', x))[0]

def gen(fn, stamps=False, pace=8, up=4, mapping='x', kvil=False, twostage=False, spin=1<<15, knt='nt', vnt='nt', w1nt='nt', w2nt='nt', sleep=0, fixdur=0, D=6, nomem=0, now=0, nopoll=0, nocomp=0, pre=2, force=-1, cap=400, thr=100, noex=0, sync=1, skipx=1, hsl=2, gat=27, stfl='sc1', slfl='sc1'):
    L = []
    def A(s):
        for ln in s.strip('\n').split('\n'):
            L.append(ln.strip())
    SLOT = 9216; RING = 2*SLOT; WT = 12288
    WREG = 4*RING
    MISC = WREG + 4*WT
    XN = MISC; OBF = MISC
    RED = MISC + 1536
    OCB = RED + 8192
    QL = RED + 12288
    HL = QL + 384
    FLG = HL + 768
    STG = FLG + 64
    LDS = 147456
    assert STG + 6144 <= LDS
    P1 = 0x1000; OP = 0x100000; YP = 0x200000; BP = 0x300000; VOTE = 0x3F0000; SCO = 0x400000; WSZ = 0x600000
    TAGC = 0x9E3779B9
    sX, sK, sV, sWQ, sWO, sWG, sWU, sWD, sOUT, sDBG, sWS = 4, 6, 8, 10, 12, 16, 18, 20, 22, 24, 26
    rK, rV, rW1, rW2, rWS = 28, 32, 36, 40, 44
    sWAVE, sH, sJ, sB, sHALF = 48, 49, 50, 51, 52
    sBETA, sPI, sHASW1, sRS = 53, 54, 55, 56
    sSLA, sSLB, sSLC = 57, 58, 59
    sOFF, sT, sCNT = 60, 61, 62
    sSC, sL2E = 63, 64
    sT0, sT1, sT2, sT3 = 65, 66, 67, 68
    sU2, sR, sCB, sRB, sSLC2 = 69, 70, 71, 72, 73
    sN0, sN1, sFLV, sFL = 70, 71, 72, 73
    sU, sPUB, sNEG, sVB = 14, 15, 34, 32
    sRHO = 3
    sXD, sXS = 92, 93
    sKLO = 94
    sP = 74
    sST = 76
    def srd(r): return f's[{r}:{r+3}]'
    def sp(r): return f's[{r}:{r+1}]'
    vLANE, vL16, vTAG, vKA0, vVA0, vA, vM, vML, vLS, vAL = 1, 2, 3, 4, 5, 6, 7, 8, 9, 10
    vT = 12
    vS = 28
    vP = 36
    vQ = 40
    vF = 64
    vO = 112
    vW = 160
    vR = 208
    vKA1, vVA1, vA2, vM2B, vM2X, vM3, vSK, vSV, vFA, vONE = range(212, 222)
    NV = 224
    def v(r, n=1): return f'v{r}' if n == 1 else f'v[{r}:{r+n-1}]'
    nstamp = [0]
    def stamp(i):
        if stamps:
            A(f's_memrealtime {sp(sST+2*i)}\ns_waitcnt lgkmcnt(0)')
    def write_stamps(rec_base, lbl):
        if not stamps: return
        A(f's_lshl_b32 s{sT0}, s2, 6\ns_add_u32 s{sT0}, s{sT0}, {0x20000000 + rec_base*64}')
        A(f's_add_u32 s{sP}, s{sWS}, s{sT0}\ns_addc_u32 s{sP+1}, s{sWS+1}, 0')
        A(f's_mov_b64 exec, 1\nv_mov_b32 {v(vA)}, 0')
        for i in range(4):
            for k in range(4): A(f'v_mov_b32 {v(vT+k)}, s{sST+4*i+k}')
            A(f'global_store_dwordx4 {v(vA)}, {v(vT,4)}, {sp(sP)} offset:{16*i}\ns_nop 1')
    def xsum(r, t, op='v_add_f32', full=True):
        if full:
            for mode in ['quad_perm:[1,0,3,2]', 'quad_perm:[2,3,0,1]', 'row_half_mirror', 'row_mirror']:
                A(f's_nop 1\n{op}_dpp {v(r)}, {v(r)}, {v(r)} {mode} row_mask:0xf bank_mask:0xf')
        for sw in ['v_permlane16_swap_b32', 'v_permlane32_swap_b32']:
            A(f'v_mov_b32 {v(t)}, {v(r)}\ns_nop 1\n{sw} {v(r)}, {v(t)}\n{op} {v(r)}, {v(r)}, {v(t)}')
    def rnd(r, t):
        A(f'v_cvt_pk_bf16_f32 {v(t)}, {v(r)}, {v(r)}\nv_lshlrev_b32 {v(r)}, 16, {v(t)}')
    def rnd2(r0, r1, t):
        A(f'v_cvt_pk_bf16_f32 {v(t)}, {v(r0)}, {v(r1)}\nv_lshlrev_b32 {v(r0)}, 16, {v(t)}\nv_and_b32 {v(r1)}, 0xffff0000, {v(t)}')
    def dma_tile(soff, sslot, paced=None, lo=0, hi=9, fl='nt'):
        for i in range(lo, hi):
            if i == lo or i % 4 == 0:
                A(f's_add_u32 m0, s{sslot}, {4096*(i//4)}\ns_add_u32 s{sT0}, s{soff}, {4096*(i//4)}')
            if paced: A(f's_waitcnt vmcnt({paced-1})')
            A(f'buffer_load_dwordx4 {v(vL16)}, {srd(rK)}, s{sT0} offen offset:{1024*(i%4)} {fl} lds')
    def block_params(default, sn):
        if default == 1: A(f's_mov_b32 s{sT1}, s{sHALF}')
        else: A(f's_lshl_b32 s{sT1}, s{sU}, 14\ns_add_u32 s{sT1}, s{sT1}, s{sKLO}\ns_lshr_b32 s{sT1}, s{sT1}, 21\ns_xor_b32 s{sT1}, s{sT1}, s{sFL}\ns_and_b32 s{sT1}, s{sT1}, 1')
        if default == 2: A(f's_cmp_lt_u32 s{sT}, 26\ns_cselect_b32 s{sT1}, s{sHALF}, s{sT1}')
        A(f's_lshl_b32 s{sT2}, s{sU}, 1\ns_add_u32 s{sT1}, s{sT1}, s{sT2}\ns_lshl_b32 s{sT1}, s{sT1}, 6\ns_add_u32 s{sT2}, s{sT1}, 65\ns_add_u32 s{sT1}, s{sT1}, 1')
        A(f's_mul_i32 s{sT1}, s{sT1}, 43691\ns_mul_i32 s{sT2}, s{sT2}, 43691\ns_lshr_b32 s{sT1}, s{sT1}, 17\ns_lshr_b32 s{sT2}, s{sT2}, 17')
        A(f's_mul_i32 s{sOFF}, s{sT1}, 384\ns_sub_u32 s{sT1}, s{sT2}, s{sT1}\ns_mul_i32 s{sT2}, s{sT2}, 384\ns_min_u32 s{rK+2}, s{sT2}, {0 if nomem else 1572864}')
        if default == 2: A(f's_cmp_ge_u32 s{sT}, 46\ns_cselect_b32 s{rK+2}, 0, s{rK+2}\ns_add_u32 s{sU}, s{sU}, 4')
        else: A(f's_cmp_eq_u32 s{sT1}, 22\ns_cselect_b32 s{sn}, -1, 0\ns_add_u32 s{sU}, s{sU}, 4')
    def poll(lbl, loads, tagregs, code):
        A(f's_mov_b32 s{sCNT}, {spin}\n{lbl}:')
        for x in loads: A(x)
        A('s_waitcnt vmcnt(0)')
        A(f'v_xor_b32 {v(vT)}, {v(tagregs[0])}, {v(vTAG)}')
        for r in tagregs[1:]:
            A(f'v_xor_b32 {v(vT+1)}, {v(r)}, {v(vTAG)}\nv_or_b32 {v(vT)}, {v(vT)}, {v(vT+1)}')
        if nopoll and lbl != 'L_pq': A(f's_branch {lbl}_ok')
        A(f'v_cmp_ne_u32 vcc, 0, {v(vT)}\ns_cbranch_vccz {lbl}_ok')
        if sleep: A(f's_sleep {sleep}')
        A(f's_sub_u32 s{sCNT}, s{sCNT}, 1\ns_cmp_lg_u32 s{sCNT}, 0\ns_cbranch_scc1 {lbl}')
        A(f'v_mov_b32 {v(vT)}, 0\nv_mov_b32 {v(vT+1)}, {code}\nglobal_store_dword {v(vT)}, {v(vT+1)}, {sp(sDBG)}')
        A(f'{lbl}_ok:')
    def wsload(dst, voff, soff): return f'buffer_load_dwordx4 {v(dst,4)}, {v(voff)}, {srd(rWS)}, s{soff} offen sc1'
    def put3_bf16(r0, t, va):
        A(f'v_cvt_pk_bf16_f32 {v(t)}, {v(r0)}, {v(r0+1)}\nv_cvt_pk_bf16_f32 {v(t+1)}, {v(r0+2)}, {v(r0+2)}')
        A(f'ds_write_b16 {v(va)}, {v(t)}\nds_write_b16_d16_hi {v(va)}, {v(t)} offset:2\nds_write_b16 {v(va)}, {v(t+1)} offset:4')
    def fdiv(q, n, d, r, e):
        A(f'v_mul_f32 {v(q)}, {v(n)}, {v(r)}\nv_fma_f32 {v(e)}, -{v(q)}, {v(d)}, {v(n)}\nv_fma_f32 {v(q)}, {v(e)}, {v(r)}, {v(q)}')
    def trread_mfma(ntile, va, off2, acc, first, frag, aop, va2=None, extra=None):
        def rd(t):
            A(f'ds_read_b64_tr_b16 {v(frag+4*t,2)}, {v(va)} offset:{32*t}')
            A(f'ds_read_b64_tr_b16 {v(frag+4*t+2,2)}, {v(va if va2 is None else va2)} offset:{32*t+off2}')
        pre = min(4, ntile)
        for t in range(pre): rd(t)
        for t in range(ntile):
            if t + pre < ntile: rd(t + pre)
            if extra and t + pre == ntile - 1: A(extra)
            left = min(ntile - 1, t + pre) - t
            A(f's_waitcnt lgkmcnt({2*left + (1 if extra and t + pre >= ntile - 1 else 0)})')
            c = '0' if first else v(acc+4*t, 4)
            A(f'v_mfma_f32_16x16x32_bf16 {v(acc+4*t,4)}, {v(aop,4)}, {v(frag+4*t,4)}, {c}')

    A(HEADER)
    A(f'; @launch grid=(256,1,1) block=(320,1,1) lds={LDS}')
    A('.amdgcn_target "amdgcn-amd-amdhsa--gfx950"\n.text')
    A(f'.globl {NAME}_kernel\n.p2align 8\n.type {NAME}_kernel,@function\n{NAME}_kernel:')
    A('s_cmp_ge_u32 s2, 256\ns_cbranch_scc1 L_end')
    A('s_load_dwordx16 s[4:19], s[0:1], 0\ns_load_dwordx8 s[20:27], s[0:1], 64')
    if fixdur: A('s_memrealtime s[96:97]')
    if stamps:
        A(f's_memrealtime {sp(sST)}')
        for i in range(2, 16): A(f's_mov_b32 s{sST+i}, 0')
    A(f'v_lshrrev_b32 {v(vT)}, 6, v0\nv_and_b32 {v(vLANE)}, 63, v0')
    A(f'v_readfirstlane_b32 s{sWAVE}, {v(vT)}')
    A(f'v_lshlrev_b32 {v(vL16)}, 4, {v(vLANE)}')
    A(f's_lshr_b32 s{sT0}, s2, 3\ns_lshl_b32 s{sT0}, s{sT0}, 2\ns_and_b32 s{sT1}, s2, 3\ns_add_u32 s{sRHO}, s{sT0}, s{sT1}')
    A(f's_bfe_u32 s{sHALF}, s2, 0x10002\ns_lshr_b32 s{sB}, s{sRHO}, 5\ns_and_b32 s{sH}, s{sRHO}, 31\ns_lshl_b32 s{sJ}, s{sB}, 1\ns_add_u32 s{sJ}, s{sJ}, s{sHALF}')
    A(f's_mul_i32 s{sU2}, s{sH}, 3\ns_add_u32 s{sU2}, s{sU2}, s{sJ}')
    A(f's_mov_b32 s{sSC}, {f2u(192**-0.5):#x}\ns_mov_b32 s{sL2E}, {f2u(1.4426950408889634):#x}')
    A('s_waitcnt lgkmcnt(0)')
    A(f's_mov_b32 s{rWS}, s{sWS}\ns_mov_b32 s{rWS+1}, s{sWS+1}\ns_mov_b32 s{rWS+2}, {WSZ}\ns_mov_b32 s{rWS+3}, 0x20000')
    A(f's_cmp_eq_u32 s{sWAVE}, 4\ns_cbranch_scc1 L_helper')

    A(f's_mul_i32 s{sT0}, s{sWAVE}, 1280\nv_lshlrev_b32 {v(vA)}, 2, {v(vLANE)}\nv_add_u32 {v(vA)}, s{sT0}, {v(vA)}')
    A('s_barrier')
    for k in range(5): A(f'global_load_dword {v(vF+k)}, {v(vA)}, {sp(sX)} offset:{256*k}')
    A(f'v_mov_b32 {v(vT)}, 0\nglobal_load_dword {v(vTAG)}, {v(vT)}, {sp(sWS)} sc1')
    A(f's_cmp_ge_u32 s{sJ}, 3\ns_cbranch_scc0 L_w1mlp')
    A(f's_mov_b32 s{sBETA}, s{sH}\ns_sub_u32 s{sPI}, s{sJ}, 3\ns_mov_b32 s{sRS}, 12288\ns_mov_b32 s{sHASW1}, 1')
    A(f's_mul_i32 s{sT1}, s{sH}, 384\ns_add_u32 s{rW1}, s{sWQ}, s{sT1}\ns_addc_u32 s{rW1+1}, s{sWQ+1}, 0')
    A('s_branch L_w1done\nL_w1mlp:')
    A(f's_mul_i32 s{sT1}, s{sU2}, 52429\ns_lshr_b32 s{sT1}, s{sT1}, 18')
    A(f's_mul_i32 s{sT2}, s{sT1}, 5\ns_sub_u32 s{sPI}, s{sU2}, s{sT2}\ns_add_u32 s{sBETA}, s{sT1}, 32\ns_mov_b32 s{sRS}, 3072')
    A(f's_cmp_lt_u32 s{sU2}, 80\ns_cselect_b32 s{sHASW1}, 1, 0')
    A(f's_cmp_lt_u32 s{sT1}, 8\ns_cselect_b32 s{rW1}, s{sWG}, s{sWU}\ns_cselect_b32 s{rW1+1}, s{sWG+1}, s{sWU+1}')
    A(f's_and_b32 s{sT1}, s{sT1}, 7\ns_mul_i32 s{sT1}, s{sT1}, 384\ns_add_u32 s{rW1}, s{rW1}, s{sT1}\ns_addc_u32 s{rW1+1}, s{rW1+1}, 0')
    A('L_w1done:')
    A(f's_lshl_b32 s{sT1}, s{sPI}, 2\ns_add_u32 s{sT1}, s{sT1}, s{sWAVE}\ns_lshl_b32 s{sT1}, s{sT1}, 5\ns_mul_i32 s{sT1}, s{sT1}, s{sRS}')
    A(f's_add_u32 s{rW1}, s{rW1}, s{sT1}\ns_addc_u32 s{rW1+1}, s{rW1+1}, 0')
    A(f's_mul_i32 s{sT1}, s{sRS}, 31\ns_add_u32 s{sT1}, s{sT1}, 384\ns_mul_i32 s{rW1+2}, s{sT1}, s{sHASW1}\ns_mov_b32 s{rW1+3}, 0x20000')
    if now: A(f's_mov_b32 s{rW1+2}, 0')
    for p in range(3):
        A(f'v_add_u32 {v(vT)}, {64*p}, {v(vLANE)}\nv_mul_u32_u24 {v(vT+1)}, 2731, {v(vT)}\nv_lshrrev_b32 {v(vT+1)}, 16, {v(vT+1)}')
        A(f'v_mul_u32_u24 {v(vT+2)}, 24, {v(vT+1)}\nv_sub_u32 {v(vT)}, {v(vT)}, {v(vT+2)}\nv_lshlrev_b32 {v(vT)}, 4, {v(vT)}')
        A(f'v_mad_u32_u24 {v(vS+p)}, {v(vT+1)}, s{sRS}, {v(vT)}')
    A(f's_mul_i32 s{sSLA}, s{sWAVE}, {RING}\ns_add_u32 s{sSLB}, s{sSLA}, {SLOT}\ns_mul_i32 s{sSLC}, s{sWAVE}, {WT}\ns_add_u32 s{sSLC}, s{sSLC}, {WREG}')
    A(f's_lshl_b32 s{sT2}, s{sRS}, 3\ns_mov_b32 s{sT1}, 0')
    for i in range(12):
        if i and i % 3 == 0: A(f's_add_u32 s{sT1}, s{sT1}, s{sT2}')
        A(f's_add_u32 m0, s{sSLC}, {1024*i}\ns_nop 0')
        A(f'buffer_load_dwordx4 {v(vS+i%3)}, {srd(rW1)}, s{sT1} offen {w1nt} lds')
    A(f's_mul_i32 s{sT1}, s{sRHO}, 1572864')
    A(f's_add_u32 s{rK}, s{sK}, s{sT1}\ns_addc_u32 s{rK+1}, s{sK+1}, 0\ns_mov_b32 s{rK+3}, 0x20000')
    A(f's_add_u32 s{sVB}, s{sV}, s{sT1}\ns_addc_u32 s{sVB+1}, s{sV+1}, 0')
    A(f's_mov_b32 s{sU}, s{sWAVE}\ns_mov_b32 s{sKLO}, s{rK}')
    block_params(1, sN0)
    dma_tile(sOFF, sSLA, None, 0, up, knt)
    A(f's_cmp_lt_u32 s{sJ}, 5\ns_cbranch_scc0 L_w2down')
    A(f's_mul_i32 s{sT1}, s{sH}, {192*1280}\ns_lshl_b32 s{sT2}, s{sJ}, 8\ns_add_u32 s{sT1}, s{sT1}, s{sT2}')
    A(f's_add_u32 s{rW2}, s{sWO}, s{sT1}\ns_addc_u32 s{rW2+1}, s{sWO+1}, 0\ns_mov_b32 s{rW2+2}, {47*1280+256}\ns_branch L_w2done')
    A('L_w2down:')
    A(f's_sub_u32 s{sT3}, s{sU2}, 5\ns_mul_i32 s{sT1}, s{sT3}, 52429\ns_lshr_b32 s{sT1}, s{sT1}, 18\ns_mul_i32 s{sT2}, s{sT1}, 5\ns_sub_u32 s{sT2}, s{sT3}, s{sT2}')
    A(f's_mul_i32 s{sT1}, s{sT1}, {96*1280}\ns_lshl_b32 s{sT2}, s{sT2}, 8\ns_add_u32 s{sT1}, s{sT1}, s{sT2}')
    A(f's_add_u32 s{rW2}, s{sWD}, s{sT1}\ns_addc_u32 s{rW2+1}, s{sWD+1}, 0')
    A(f's_cmp_lt_u32 s{sT3}, 80\ns_cselect_b32 s{rW2+2}, {47*1280+256}, 0\ns_cmp_lt_u32 s{sWAVE}, 2\ns_cselect_b32 s{rW2+2}, s{rW2+2}, 0')
    A('L_w2done:')
    A(f's_mul_i32 s{sT1}, s{sWAVE}, {48*1280}\ns_add_u32 s{rW2}, s{rW2}, s{sT1}\ns_addc_u32 s{rW2+1}, s{rW2+1}, 0\ns_mov_b32 s{rW2+3}, 0x20000')
    if now: A(f's_mov_b32 s{rW2+2}, 0')
    A(f'v_and_b32 {v(vT)}, 15, {v(vLANE)}\nv_mul_u32_u24 {v(vT)}, 384, {v(vT)}\nv_lshrrev_b32 {v(vT+1)}, 4, {v(vLANE)}\nv_lshl_add_u32 {v(vKA0)}, {v(vT+1)}, 4, {v(vT)}')
    A(f'v_lshrrev_b32 {v(vT)}, 2, {v(vLANE)}\nv_mul_u32_u24 {v(vT)}, 384, {v(vT)}\nv_and_b32 {v(vT+1)}, 3, {v(vLANE)}\nv_lshl_add_u32 {v(vVA0)}, {v(vT+1)}, 3, {v(vT)}')
    A(f's_waitcnt vmcnt({1+12+up})')
    X = vF + 8
    for k in range(5):
        A(f'v_lshlrev_b32 {v(X+2*k)}, 16, {v(vF+k)}\nv_and_b32 {v(X+2*k+1)}, 0xffff0000, {v(vF+k)}')
    a = vT
    A(f'v_add_f32 {v(a)}, {v(X)}, {v(X+1)}')
    for k in range(2, 10): A(f'v_add_f32 {v(a)}, {v(a)}, {v(X+k)}')
    xsum(a, a+1)
    A(f'v_mul_f32 {v(a)}, {f2u(1/640):#x}, {v(a)}')
    b_ = vT+2
    A(f'v_sub_f32 {v(a+1)}, {v(X)}, {v(a)}\nv_mul_f32 {v(b_)}, {v(a+1)}, {v(a+1)}')
    for k in range(1, 10): A(f'v_sub_f32 {v(a+1)}, {v(X+k)}, {v(a)}\nv_fmac_f32 {v(b_)}, {v(a+1)}, {v(a+1)}')
    xsum(b_, a+1)
    A(f'v_mul_f32 {v(b_)}, {f2u(1/640):#x}, {v(b_)}')
    rnd2(a, b_, a+1)
    A(f'v_add_f32 {v(b_)}, {f2u(1e-5):#x}, {v(b_)}')
    rnd(b_, a+1)
    c_ = vT+3
    A(f'v_sqrt_f32 {v(c_)}, {v(b_)}\ns_nop 0\nv_rcp_f32 {v(c_+1)}, {v(c_)}\nv_fma_f32 {v(a+1)}, -{v(c_)}, {v(c_)}, {v(b_)}')
    A(f'v_mul_f32 {v(c_+1)}, 0.5, {v(c_+1)}\nv_fma_f32 {v(c_)}, {v(a+1)}, {v(c_+1)}, {v(c_)}')
    rnd(c_, a+1)
    A(f'v_rcp_f32 {v(c_+1)}, {v(c_)}')
    A(f'v_mov_b32 {v(vT+6)}, {v(X)}\nv_mov_b32 {v(vT+7)}, {v(X+1)}')
    for k in range(1, 5):
        A(f's_cmp_eq_u32 s{sPI}, {k}\ns_cselect_b64 vcc, -1, 0\nv_cndmask_b32 {v(vT+6)}, {v(vT+6)}, {v(X+2*k)}, vcc\nv_cndmask_b32 {v(vT+7)}, {v(vT+7)}, {v(X+2*k+1)}, vcc')
    A(f'v_sub_f32 {v(vT+6)}, {v(vT+6)}, {v(a)}\nv_sub_f32 {v(vT+7)}, {v(vT+7)}, {v(a)}')
    rnd2(vT+6, vT+7, a+1)
    fdiv(vT+8, vT+6, c_, c_+1, a+1)
    fdiv(vT+9, vT+7, c_, c_+1, a+1)
    A(f'v_cvt_pk_bf16_f32 {v(vT+8)}, {v(vT+8)}, {v(vT+9)}')
    A(f's_lshl_b32 s{sT1}, s{sWAVE}, 8\ns_add_u32 s{sT1}, s{sT1}, {XN}\nv_lshlrev_b32 {v(vA)}, 2, {v(vLANE)}\nv_add_u32 {v(vA)}, s{sT1}, {v(vA)}')
    A(f'ds_write_b32 {v(vA)}, {v(vT+8)}')
    A(f'v_bfe_u32 {v(vT)}, {v(vLANE)}, 2, 2\nv_lshlrev_b32 {v(vT)}, 8, {v(vT)}\nv_lshrrev_b32 {v(vT+1)}, 4, {v(vLANE)}\nv_lshl_add_u32 {v(vT)}, {v(vT+1)}, 3, {v(vT)}')
    A(f's_lshl_b32 s{sT1}, s{sWAVE}, 6\ns_add_u32 s{sT1}, s{sT1}, {XN}\nv_add_u32 {v(vA)}, s{sT1}, {v(vT)}')
    A('s_waitcnt lgkmcnt(0)\ns_barrier')
    stamp(1)
    A(f'ds_read2_b64 {v(vP,4)}, {v(vA)} offset0:0 offset1:4')
    k0a = max(up, min(9, pace))
    dma_tile(sOFF, sSLA, pace, up, k0a, knt)
    A(f'v_add_u32 {v(vA)}, s{sSLC}, {v(vVA0)}')
    A(f's_waitcnt vmcnt({k0a}) lgkmcnt(0)')
    trread_mfma(12, vA, 6144, vO, True, vF, vP)
    A(f's_mul_i32 s{sT1}, s{sWAVE}, 3072\ns_add_u32 s{sT1}, s{sT1}, {RED}')
    A(f'v_lshrrev_b32 {v(vT)}, 4, {v(vLANE)}\nv_mul_u32_u24 {v(vT)}, 768, {v(vT)}\nv_and_b32 {v(vT+1)}, 15, {v(vLANE)}\nv_lshl_add_u32 {v(vT)}, {v(vT+1)}, 2, {v(vT)}\nv_add_u32 {v(vA)}, s{sT1}, {v(vT)}')
    A('s_nop 2')
    for t in range(12): A(f'ds_write_b32 {v(vA)}, {v(vO+4*t)} offset:{64*t}')
    A(f's_mul_i32 s{sT1}, s{sWAVE}, 768\ns_add_u32 s{sT1}, s{sT1}, {RED}\nv_mul_u32_u24 {v(vA)}, 12, {v(vLANE)}\nv_add_u32 {v(vA)}, s{sT1}, {v(vA)}')
    A('s_waitcnt lgkmcnt(0)\ns_barrier')
    for w in range(4):
        for k in range(3): A(f'ds_read_b32 {v(vF+4*w+k)}, {v(vA)} offset:{3072*w+4*k}')
    A(f'v_lshrrev_b32 {v(vT)}, 4, {v(vLANE)}\nv_mul_u32_u24 {v(vT)}, 1280, {v(vT)}\nv_and_b32 {v(vT+1)}, 15, {v(vLANE)}\nv_lshl_add_u32 {v(vS)}, {v(vT+1)}, 4, {v(vT)}')
    A(f's_mul_i32 s{sT1}, s{sBETA}, 5\ns_add_u32 s{sT1}, s{sT1}, s{sPI}\ns_lshl_b32 s{sT1}, s{sT1}, 2\ns_add_u32 s{sT1}, s{sT1}, s{sWAVE}\ns_lshl_b32 s{sT1}, s{sT1}, 10\ns_add_u32 s{sT1}, s{sT1}, {P1}')
    A(f'v_add_u32 {v(vTAG)}, {TAGC:#x}, {v(vTAG)}')
    A('s_waitcnt lgkmcnt(0)')
    for k in range(3):
        A(f'v_add_f32 {v(vF+k)}, {v(vF+k)}, {v(vF+4+k)}\nv_add_f32 {v(vF+8+k)}, {v(vF+8+k)}, {v(vF+12+k)}')
    for k in range(3): A(f'v_add_f32 {v(vF+k)}, {v(vF+k)}, {v(vF+8+k)}')
    A(f'v_mov_b32 {v(vF+3)}, {v(vTAG)}')
    A(f's_cmp_eq_u32 s{sHASW1}, 0\ns_cbranch_scc1 L_nopub1')
    A(f'buffer_store_dwordx4 {v(vF,4)}, {v(vL16)}, {srd(rWS)}, s{sT1} offen sc1')
    A('L_nopub1:')
    stamp(2)
    dma_tile(sOFF, sSLA, pace, k0a, 9, knt)
    A(f's_mov_b32 s{sT1}, 0')
    for i in range(12):
        A(f's_add_u32 m0, s{sSLC}, {1024*i}\ns_waitcnt vmcnt({pace-1})')
        A(f'buffer_load_dwordx4 {v(vS)}, {srd(rW2)}, s{sT1} offen {w2nt} lds')
        if i < 11: A(f's_add_u32 s{sT1}, s{sT1}, 5120')
    block_params(1, sN1)
    dma_tile(sOFF, sSLB, pace, 0, 9, knt)
    for t in range(12):
        for r in range(4): A(f'v_mov_b32 {v(vO+4*t+r)}, 0')
    A(f'v_mov_b32 {v(vM)}, {f2u(-1e30):#x}\nv_mov_b32 {v(vML)}, {f2u(-1e30):#x}\nv_mov_b32 {v(vLS)}, 0\ns_mov_b32 s{sNEG}, 0xff80ff80')
    A(f'v_and_b32 {v(vT)}, 15, {v(vLANE)}\nv_min_u32 {v(vT)}, 5, {v(vT)}\nv_mul_u32_u24 {v(vT)}, 384, {v(vT)}\nv_lshrrev_b32 {v(vT+1)}, 4, {v(vLANE)}\nv_lshl_add_u32 {v(vKA1)}, {v(vT+1)}, 4, {v(vT)}')
    A(f'v_lshrrev_b32 {v(vT)}, 2, {v(vLANE)}\nv_min_u32 {v(vT)}, 5, {v(vT)}\nv_mul_u32_u24 {v(vT)}, 384, {v(vT)}\nv_and_b32 {v(vT+2)}, 3, {v(vLANE)}\nv_lshl_add_u32 {v(vVA1)}, {v(vT+2)}, 3, {v(vT)}')
    A(f'v_cmp_gt_u32 vcc, 16, {v(vLANE)}\nv_mov_b32 {v(vT)}, 0xffff\nv_mov_b32 {v(vT+2)}, 0xffff0000\nv_cndmask_b32 {v(vM3)}, 0, -1, vcc')
    A(f'v_cmp_eq_u32 vcc, 1, {v(vT+1)}\ns_mul_i32 s{sT1}, s{sWAVE}, 1536\ns_add_u32 s{sT1}, s{sT1}, {STG}\nv_cndmask_b32 {v(vM2B)}, {v(vM3)}, {v(vT)}, vcc\nv_cndmask_b32 {v(vM2X)}, 0, {v(vT+2)}, vcc')
    A(f'v_lshl_add_u32 {v(vSK)}, {v(vT+1)}, 4, s{sT1}\nv_add_u32 {v(vSV)}, {22*64}, {v(vSK)}\nv_mov_b32 {v(vFA)}, {FLG+8}\nv_mov_b32 {v(vONE)}, 1')
    A(f'v_lshlrev_b32 {v(vA)}, 4, {v(vT+1)}\nv_add_u32 {v(vA)}, {QL}, {v(vA)}\nv_mov_b32 {v(vT+2)}, {FLG}')
    A('s_waitcnt vmcnt(9)\ns_barrier')
    stamp(3)
    A(f'ds_read_b128 {v(vT+4,4)}, {v(vT+2)}')
    for s in range(6): A(f'ds_read_b128 {v(vQ+4*s,4)}, {v(vA)} offset:{64*s}')
    A(f's_mov_b32 s{sT}, 0\ns_waitcnt lgkmcnt(6)')
    A(f'v_readfirstlane_b32 s{sFL}, {v(vT+4)}\nv_readfirstlane_b32 s{sFLV}, {v(vT+5)}')
    A(f's_nop 0\ns_xor_b32 s{sFL}, s{sFL}, s{sHALF}')
    A(f's_mov_b32 s{sPUB}, 4\ns_waitcnt lgkmcnt(0)')
    def arrive():
        A(f's_mov_b64 exec, 1\nds_add_u32 {v(vFA)}, {v(vONE)}\ns_mov_b64 exec, -1')
    chk = f'ds_read_b64 {v(vR,2)}, {v(vFA)}'
    def step_wait(lbl):
        if not sync: return
        A(f'{lbl}:\ns_waitcnt lgkmcnt(0)\nv_readfirstlane_b32 s{sT1}, {v(vR)}\ns_nop 0\ns_cmp_ge_u32 s{sT1}, s{sPUB}\ns_cbranch_scc1 {lbl}_ok')
        A(f'{chk}\ns_branch {lbl}\n{lbl}_ok:')
    A('.p2align 6\nL_kloop:')
    A(f'v_add_u32 {v(vA)}, s{sSLA}, {v(vKA0)}\nv_add_u32 {v(vA2)}, s{sSLA}, {v(vKA1)}')
    A('s_waitcnt vmcnt(9)')
    arrive()
    for kt in range(2):
        for s in range(6):
            if not (nocomp & 1): A(f'ds_read_b128 {v(vF+24*kt+4*s,4)}, {v(vA2 if kt else vA)} offset:{6144*kt+64*s}')
    A(chk)
    A(f'v_and_or_b32 {v(vT+8)}, {v(vM2X)}, s{sN0}, {v(vM2B)}\ns_mov_b32 s{sN0}, s{sN1}')
    A(f's_cmp_lg_u32 s{sT}, 22\ns_cbranch_scc1 L_knosw')
    A(f's_mov_b32 s{rK}, s{sVB}\ns_mov_b32 s{rK+1}, s{sVB+1}\ns_sub_u32 s{sU}, s{sU}, 8')
    A('L_knosw:')
    block_params(0, sN1)
    for kt in range(2):
        for s in range(6):
            i = 6*kt + s
            A(f's_waitcnt lgkmcnt({12-i})')
            c = '0' if s == 0 else v(vS+4*kt, 4)
            A(f'v_mfma_f32_16x16x32_bf16 {v(vS+4*kt,4)}, {v(vF+4*i,4)}, {v(vQ+4*s,4)}, {c}')
    step_wait('L_ks')
    dma_tile(sOFF, sSLA, None, 0, pre, knt)
    A(f's_nop {max(0, 7 - (pre + 2 if pre else 0))}')
    for k in range(4): rnd2(vS+2*k, vS+2*k+1, vT+k)
    for k in range(8): A(f'v_mul_f32 {v(vS+k)}, s{sSC}, {v(vS+k)}')
    for k in range(4): A(f'v_cvt_pk_bf16_f32 {v(vT+k)}, {v(vS+2*k)}, {v(vS+2*k+1)}')
    A(f'v_bfi_b32 {v(vT+2)}, {v(vT+8)}, {v(vT+2)}, s{sNEG}\nv_bfi_b32 {v(vT+3)}, {v(vM3)}, {v(vT+3)}, s{sNEG}')
    A(f's_mov_b32 exec_lo, 0x00010001\ns_mov_b32 exec_hi, 0x00010001\nds_write_b128 {v(vSK)}, {v(vT,4)}\ns_mov_b64 exec, -1\nv_add_u32 {v(vSK)}, 64, {v(vSK)}')
    A(f's_cmp_eq_u32 s{sT}, 23\ns_cbranch_scc1 L_vmid')
    dma_tile(sOFF, sSLA, D, pre, 9, knt)
    A(f's_mov_b32 s{sT1}, s{sSLA}\ns_mov_b32 s{sSLA}, s{sSLB}\ns_mov_b32 s{sSLB}, s{sT1}')
    A(f's_add_u32 s{sT}, s{sT}, 1\ns_add_u32 s{sPUB}, s{sPUB}, 4\ns_branch L_kloop')
    A('.p2align 6\nL_vloop:')
    A(f'v_add_u32 {v(vA)}, s{sSLA}, {v(vVA0)}\nv_add_u32 {v(vA2)}, s{sSLA}, {v(vVA1)}')
    A(f's_cmp_lg_u32 s{sT}, 24\ns_cbranch_scc1 L_vnosw\ns_mov_b32 s{sU}, s{sWAVE}\ns_xor_b32 s{sFL}, s{sFL}, s{sFLV}\nL_vnosw:')
    block_params(2, sN1)
    A('s_waitcnt vmcnt(9)')
    arrive()
    if not (nocomp & 2): trread_mfma(12, vA, 6144, vO, False, vF, vP, vA2, chk)
    else: A(chk)
    A(f's_cmp_eq_u32 s{sT}, 47\ns_cbranch_scc1 L_loopx')
    step_wait('L_vs')
    dma_tile(sOFF, sSLA, None, 0, pre, vnt)
    A('L_vmid:')
    if not noex:
        A(f's_cmp_lg_u32 s{sT}, 27\ns_cbranch_scc1 L_vnoc\ns_mov_b32 s{sCNT}, {spin*8}')
        A(f'L_vchk:\ns_waitcnt lgkmcnt(0)\nv_readfirstlane_b32 s{sT1}, {v(vR+1)}\ns_sub_u32 s{sCNT}, s{sCNT}, 1\ns_cmp_eq_u32 s{sCNT}, 0\ns_cbranch_scc1 L_vnoc')
        A(f's_cmp_lg_u32 s{sT1}, 0\ns_cbranch_scc1 L_vnoc\n{chk}\ns_branch L_vchk')
    A('L_vnoc:')
    A(f'ds_read_b128 {v(vT+8,4)}, {v(vSV)}\ns_cmp_eq_u32 s{sT}, 24\ns_cselect_b32 s{sT1}, {64-1536}, 64\nv_add_u32 {v(vSV)}, s{sT1}, {v(vSV)}\ns_waitcnt lgkmcnt(0)')
    for k in range(4): A(f'v_lshlrev_b32 {v(vS+2*k)}, 16, {v(vT+8+k)}\nv_and_b32 {v(vS+2*k+1)}, 0xffff0000, {v(vT+8+k)}')
    A(f'v_max3_f32 {v(vT)}, {v(vS)}, {v(vS+1)}, {v(vS+2)}\nv_max3_f32 {v(vT+1)}, {v(vS+3)}, {v(vS+4)}, {v(vS+5)}')
    A(f'v_max3_f32 {v(vM)}, {v(vS+6)}, {v(vS+7)}, {v(vM)}\nv_max3_f32 {v(vM)}, {v(vM)}, {v(vT)}, {v(vT+1)}')
    xsum(vM, vT, 'v_max_f32', full=False)
    A(f'v_mul_f32 {v(vT)}, s{sL2E}, {v(vM)}\nv_sub_f32 {v(vAL)}, {v(vML)}, {v(vT)}\nv_mov_b32 {v(vML)}, {v(vT)}\nv_exp_f32 {v(vAL)}, {v(vAL)}')
    for k in range(8): A(f'v_fma_f32 {v(vS+k)}, {v(vS+k)}, s{sL2E}, -{v(vML)}')
    for k in range(8): A(f'v_exp_f32 {v(vS+k)}, {v(vS+k)}')
    for t in range(12): A(f'v_mul_f32 {v(vO+4*t)}, {v(vAL)}, {v(vO+4*t)}')
    for k in range(4): A(f'v_cvt_pk_bf16_f32 {v(vP+k)}, {v(vS+2*k)}, {v(vS+2*k+1)}')
    for k in range(4): A(f'v_add_f32 {v(vT+k)}, {v(vS+2*k)}, {v(vS+2*k+1)}')
    A(f'v_add_f32 {v(vT)}, {v(vT)}, {v(vT+1)}\nv_add_f32 {v(vT+2)}, {v(vT+2)}, {v(vT+3)}\nv_add_f32 {v(vT)}, {v(vT)}, {v(vT+2)}')
    A(f'v_fma_f32 {v(vLS)}, {v(vLS)}, {v(vAL)}, {v(vT)}')
    dma_tile(sOFF, sSLA, D, pre, 9, vnt)
    A(f's_mov_b32 s{sT1}, s{sSLA}\ns_mov_b32 s{sSLA}, s{sSLB}\ns_mov_b32 s{sSLB}, s{sT1}')
    A(f's_add_u32 s{sT}, s{sT}, 1\ns_add_u32 s{sPUB}, s{sPUB}, 4\ns_branch L_vloop')
    A('L_loopx:')
    stamp(4)
    xsum(vLS, vT, full=False)
    A(f's_lshl_b32 s{sT1}, s{sWAVE}, 10\ns_add_u32 s{sT1}, s{sT1}, {OCB}\nv_lshlrev_b32 {v(vA)}, 2, {v(vLANE)}\nv_add_u32 {v(vA)}, s{sT1}, {v(vA)}')
    A('s_mov_b64 exec, 0xffff')
    for t in range(12): A(f'ds_write_b32 {v(vA)}, {v(vO+4*t)} offset:{64*t}')
    A(f's_mov_b64 exec, 1\nds_write2_b32 {v(vA)}, {v(vML)}, {v(vLS)} offset0:192 offset1:193\ns_mov_b64 exec, -1')
    A('s_waitcnt lgkmcnt(0)\ns_barrier')
    A(f's_cmp_ge_u32 s{sJ}, 5\ns_cbranch_scc1 L_sdone')
    A(f'v_lshrrev_b32 {v(vT)}, 2, {v(vLANE)}\nv_lshlrev_b32 {v(vT)}, 8, {v(vT)}\nv_and_b32 {v(vT+1)}, 3, {v(vLANE)}\nv_lshl_add_u32 {v(vT)}, {v(vT+1)}, 3, {v(vT)}')
    A(f's_lshl_b32 s{sT1}, s{sWAVE}, 6\ns_add_u32 s{sT1}, s{sT1}, {WREG}\nv_add_u32 {v(vA)}, s{sT1}, {v(vT)}')
    for s in range(6):
        for t in range(2):
            f = vW + 24*t + 4*s
            A(f'ds_read_b64_tr_b16 {v(f,2)}, {v(vA)} offset:{8192*s+32*t}\nds_read_b64_tr_b16 {v(f+2,2)}, {v(vA)} offset:{8192*s+32*t+4096}')
        if s % 2 == 1 and s < 5: A('s_waitcnt lgkmcnt(4)')
    A(f's_lshl_b32 s{sT1}, s{sH}, 3\ns_lshl_b32 s{sT2}, s{sWAVE}, 1\ns_add_u32 s{sT1}, s{sT1}, s{sT2}\ns_lshl_b32 s{sT1}, s{sT1}, 11\ns_add_u32 s{sT1}, s{sT1}, {OP}\ns_add_u32 s{sT2}, s{sT1}, 2048')
    A(f'v_mov_b32 {v(vA)}, 1024')
    if twostage:
        poll('L_pml', [wsload(vF+8, vA, sT1), wsload(vF+12, vA, sT2)], [vF+11, vF+15], 3)
        poll('L_po', [wsload(vF, vL16, sT1), wsload(vF+4, vL16, sT2)], [vF+3, vF+7], 4)
    else:
        poll('L_po', [wsload(vF, vL16, sT1), wsload(vF+4, vL16, sT2), wsload(vF+8, vA, sT1), wsload(vF+12, vA, sT2)], [vF+3, vF+7, vF+11, vF+15], 4)
    stamp(5)
    m0_, l0_, m1_, l1_ = vF+8, vF+9, vF+12, vF+13
    A(f'v_max_f32 {v(vT)}, {v(m0_)}, {v(m1_)}\nv_sub_f32 {v(m0_)}, {v(m0_)}, {v(vT)}\nv_sub_f32 {v(m1_)}, {v(m1_)}, {v(vT)}\nv_exp_f32 {v(m0_)}, {v(m0_)}\nv_exp_f32 {v(m1_)}, {v(m1_)}')
    A(f's_mul_i32 s{sT1}, s{sWAVE}, 384\ns_add_u32 s{sT1}, s{sT1}, {OBF}')
    A(f'v_mul_f32 {v(l0_)}, {v(l0_)}, {v(m0_)}\nv_fmac_f32 {v(l0_)}, {v(l1_)}, {v(m1_)}\nv_rcp_f32 {v(l1_)}, {v(l0_)}')
    for k in range(3): A(f'v_mul_f32 {v(vF+k)}, {v(vF+k)}, {v(m0_)}\nv_fmac_f32 {v(vF+k)}, {v(vF+4+k)}, {v(m1_)}')
    A(f'v_mul_u32_u24 {v(vA)}, 6, {v(vLANE)}\nv_add_u32 {v(vA)}, s{sT1}, {v(vA)}')
    for k in range(3): fdiv(vF+4+k, vF+k, l0_, l1_, vT)
    put3_bf16(vF+4, vT, vA)
    A(f'v_bfe_u32 {v(vT+2)}, {v(vLANE)}, 2, 2\nv_mul_u32_u24 {v(vT+2)}, 384, {v(vT+2)}\nv_lshrrev_b32 {v(vT+3)}, 4, {v(vLANE)}\nv_lshl_add_u32 {v(vT+2)}, {v(vT+3)}, 3, {v(vT+2)}\nv_add_u32 {v(vA)}, {OBF}, {v(vT+2)}')
    A(f's_lshl_b32 s{sT1}, s{sJ}, 2\ns_add_u32 s{sT1}, s{sT1}, s{sWAVE}\ns_lshl_b32 s{sT1}, s{sT1}, 5\ns_add_u32 s{sT1}, s{sT1}, s{sH}\ns_lshl_b32 s{sT1}, s{sT1}, 10\ns_add_u32 s{sT1}, s{sT1}, {YP}')
    A('s_waitcnt lgkmcnt(0)\ns_barrier')
    for s in range(6): A(f'ds_read2_b64 {v(vF+4*s,4)}, {v(vA)} offset0:{8*s} offset1:{8*s+4}')
    for s in range(6):
        A(f's_waitcnt lgkmcnt({5-s})')
        for t in range(2):
            c = '0' if s == 0 else v(vS+4*t, 4)
            A(f'v_mfma_f32_16x16x32_bf16 {v(vS+4*t,4)}, {v(vF+4*s,4)}, {v(vW+24*t+4*s,4)}, {c}')
    A(f'v_mov_b32 {v(vT+2)}, {v(vTAG)}\nv_mov_b32 {v(vT+3)}, {v(vTAG)}\ns_nop 5')
    A(f'v_mov_b32 {v(vT)}, {v(vS)}\nv_mov_b32 {v(vT+1)}, {v(vS+4)}')
    A(f'buffer_store_dwordx4 {v(vT,4)}, {v(vL16)}, {srd(rWS)}, s{sT1} offen sc1')
    A('L_sdone:')
    if fixdur:
        A(f'L_fix:\ns_memrealtime s[98:99]\ns_waitcnt lgkmcnt(0)\ns_sub_u32 s98, s98, s96\ns_cmp_lt_u32 s98, {fixdur*100}\ns_cbranch_scc1 L_fix')
    stamp(6)
    if stamps:
        A(f's_cmp_lg_u32 s{sWAVE}, 0\ns_cbranch_scc1 L_end\ns_waitcnt vmcnt(0)')
        stamp(7)
        write_stamps(0, 's')
    A('s_endpgm')

    A('L_helper:')
    A(f's_bitcmp1_b32 s{sRHO}, 0\ns_cselect_b32 s{sP}, s{sV}, s{sK}\ns_cselect_b32 s{sP+1}, s{sV+1}, s{sK+1}')
    A(f's_mul_i32 s{sT0}, s{sRHO}, 1572864\ns_add_u32 s{sP}, s{sP}, s{sT0}\ns_addc_u32 s{sP+1}, s{sP+1}, 0')
    A(f's_bfe_u32 s{sT0}, s{sP}, 0x10015\ns_lshl_b32 s{sT0}, s{sT0}, 13\ns_lshl_b32 s{sT1}, s{sHALF}, 12\ns_add_u32 s{sT0}, s{sT0}, s{sT1}')
    A(f'v_mov_b32 {v(vT)}, s{sT0}\nv_xor_b32 {v(vT+1)}, 0x2000, {v(vT)}\nv_mov_b32 {v(vT+4)}, 0\ns_mov_b64 exec, 1')
    A(f'global_load_dword {v(vT+2)}, {v(vT)}, {sp(sP)} nt\nglobal_load_dword {v(vT+3)}, {v(vT+1)}, {sp(sP)} nt\ns_mov_b64 exec, -1')
    A(f'global_load_dword {v(vTAG)}, {v(vT+4)}, {sp(sWS)} sc1')
    A('s_barrier')
    A(f's_getreg_b32 s{sT3}, hwreg(HW_REG_XCC_ID, 2, 1)')
    A(f's_waitcnt vmcnt(2)\ns_memtime s[36:37]\ns_waitcnt vmcnt(1)\ns_memtime s[38:39]\ns_waitcnt lgkmcnt(0)')
    A(f's_sub_u32 s{sT0}, s38, s36\ns_min_u32 s{sT0}, s{sT0}, {cap}\ns_sub_u32 s{sT0}, s{sT0}, {thr}\ns_sub_u32 s{sT1}, 0, s{sT0}')
    A(f's_cmp_eq_u32 s{sT3}, 0\ns_cselect_b32 s{sT0}, s{sT0}, s{sT1}')
    A(f'v_mov_b32 {v(vP)}, s{sT0}\nv_mov_b32 {v(vP+1)}, s{sT3}\nv_mov_b32 {v(vP+2)}, 0')
    A(f's_lshl_b32 s{sT0}, s{sRHO}, 1\ns_add_u32 s{sT0}, s{sT0}, s{sHALF}\ns_lshl_b32 s{sT0}, s{sT0}, 4\ns_add_u32 s{sT0}, s{sT0}, {VOTE}')
    A(f's_waitcnt vmcnt(0)\nv_add_u32 {v(vTAG)}, {TAGC:#x}, {v(vTAG)}\nv_mov_b32 {v(vP+3)}, {v(vTAG)}')
    A(f's_mov_b64 exec, 1\nbuffer_store_dwordx4 {v(vP,4)}, {v(vL16)}, {srd(rWS)}, s{sT0} offen sc1\ns_mov_b64 exec, -1')
    A(f's_and_b32 s{rK+5}, s{sT0}, 0xffffff00\nv_and_b32 {v(vAL)}, 0xf0, {v(vL16)}')
    A(f's_mul_i32 s{sT0}, s{sH}, {5*4096}\ns_lshl_b32 s{sT1}, s{sB}, 10\ns_add_u32 s{sT0}, s{sT0}, s{sT1}\ns_add_u32 s{rK}, s{sT0}, {P1}')
    for p in range(1, 5): A(f's_add_u32 s{rK+p}, s{rK}, {4096*p}')
    A(f's_sub_u32 s{sU2}, s{sU2}, 5')
    A(f'v_mov_b32 {v(vS+1)}, 0\nv_mov_b32 {v(vS+6)}, 0')
    A(f'v_mul_u32_u24 {v(vA)}, 6, {v(vLANE)}\nv_add_u32 {v(vA)}, {QL}, {v(vA)}')
    A('s_barrier\ns_barrier')
    stamp(1)
    poll('L_pq', [wsload(vF+4*p, vL16, rK+p) for p in range(5)] + [wsload(vF+20, vAL, rK+5)], [vF+4*p+3 for p in range(5 if nopoll else 0, 6)], 1)
    E = vF + 20
    for mode in ['quad_perm:[1,0,3,2]', 'row_ror:4', 'row_ror:8']:
        A(f's_nop 1\nv_add_u32_dpp {v(E)}, {v(E)}, {v(E)} {mode} row_mask:0xf bank_mask:0xf')
    A(f's_and_b32 s{sT2}, s{sRHO}, 7\ns_lshl_b32 s{sT2}, s{sT2}, 1')
    A(f'v_readlane_b32 s{sT0}, {v(E)}, 0\nv_readlane_b32 s{sT1}, {v(E)}, 2\nv_readlane_b32 s{sT2}, {v(E+1)}, s{sT2}')
    A(f's_nop 1\ns_lshr_b32 s{sT0}, s{sT0}, 31\ns_lshr_b32 s{sT1}, s{sT1}, 31\ns_xor_b32 s{sT0}, s{sT0}, s{sT2}\ns_xor_b32 s{sT1}, s{sT1}, s{sT2}')
    if force >= 0: A(f's_mov_b32 s{sT0}, {force & 1}\ns_mov_b32 s{sT1}, {force >> 1}')
    A(f's_mul_i32 s{sT2}, s{sRHO}, 1572864\ns_add_u32 s{sT3}, s{sK}, s{sT2}\ns_add_u32 s{sT2}, s{sV}, s{sT2}\ns_xor_b32 s{sT2}, s{sT2}, s{sT3}\ns_lshr_b32 s{sT2}, s{sT2}, 21')
    A(f's_xor_b32 s{sT2}, s{sT2}, s{sT0}\ns_xor_b32 s{sT2}, s{sT2}, s{sT1}\ns_and_b32 s{sXD}, s{sT2}, 1\ns_xor_b32 s{sXS}, s{sXD}, 1')
    A(f'v_mov_b32 {v(vT+4)}, s{sT0}\nv_mov_b32 {v(vT+5)}, s{sXD}\nv_mov_b32 {v(vT+6)}, 0\nv_mov_b32 {v(vT+7)}, s{sXS}\nv_mov_b32 {v(vT+3)}, {FLG}\nds_write_b128 {v(vT+3)}, {v(vT+4,4)}')
    if stamps:
        A(f's_lshl_b32 s{sT1}, s{sT1}, 1\ns_or_b32 s{sT1}, s{sT1}, s{sT0}\ns_lshl_b32 s{sT0}, s2, 2\ns_add_u32 s{sT0}, s{sT0}, 0x20100000')
        A(f'v_mov_b32 {v(vT+5)}, s{sT0}\nv_mov_b32 {v(vT+6)}, s{sT1}\nglobal_store_dword {v(vT+5)}, {v(vT+6)}, {sp(sWS)}')
    for k in range(3):
        for p in range(1, 5): A(f'v_add_f32 {v(vF+k)}, {v(vF+k)}, {v(vF+4*p+k)}')
    put3_bf16(vF, vT, vA)
    stamp(2)
    A('s_waitcnt lgkmcnt(0)\ns_barrier')
    A(f's_cmp_ge_u32 s{sJ}, 5\ns_cselect_b32 s{sHASW1}, 1, 0\ns_cmp_lt_u32 s{sU2}, 80\ns_cselect_b32 s{sHASW1}, s{sHASW1}, 0')
    A(f's_cmp_eq_u32 s{sHASW1}, 0\ns_cbranch_scc1 L_hx')
    A(f's_mul_i32 s{sR}, s{sU2}, 52429\ns_lshr_b32 s{sR}, s{sR}, 18\ns_mul_i32 s{sT0}, s{sR}, 5\ns_sub_u32 s{sCB}, s{sU2}, s{sT0}')
    A(f's_mul_i32 s{sRB}, s{sU2}, 52429\ns_lshr_b32 s{sRB}, s{sRB}, 20\ns_mul_i32 s{sT0}, s{sRB}, 20\ns_sub_u32 s{sSLC2}, s{sU2}, s{sT0}')
    vWD, vG4 = vS, vS+1
    A(f'v_lshrrev_b32 {v(vT)}, 4, {v(vLANE)}\nv_and_b32 {v(vT+1)}, 15, {v(vLANE)}\nv_lshlrev_b32 {v(vT+1)}, 4, {v(vT+1)}')
    A(f'v_mul_u32_u24 {v(vWD)}, 1280, {v(vT)}\nv_add_u32 {v(vWD)}, {v(vWD)}, {v(vT+1)}\nv_lshl_add_u32 {v(vG4)}, {v(vT)}, 10, {v(vT+1)}')
    A(f'v_lshrrev_b32 {v(vT)}, 5, {v(vLANE)}\nv_mul_u32_u24 {v(vT)}, {8*5*4096}, {v(vT)}\nv_and_b32 {v(vT+1)}, 31, {v(vLANE)}\nv_lshl_add_u32 {v(vA)}, {v(vT+1)}, 4, {v(vT)}')
    A(f's_lshr_b32 s{sT0}, s{sR}, 1\ns_add_u32 s{sT0}, s{sT0}, 32\ns_mul_i32 s{sT0}, s{sT0}, {5*4096}\ns_and_b32 s{sT1}, s{sR}, 1\ns_lshl_b32 s{sT1}, s{sT1}, 9\ns_add_u32 s{sT0}, s{sT0}, s{sT1}\ns_add_u32 s{rK}, s{sT0}, {P1}')
    for p in range(1, 5): A(f's_add_u32 s{rK+p}, s{rK}, {4096*p}')
    G = vF
    poll('L_pg', [wsload(G+20*b+4*p, vA, rK+p) + f' offset:{1024*b}' if False else
                  f'buffer_load_dwordx4 {v(G+20*b+4*p,4)}, {v(vA)}, {srd(rWS)}, s{rK+p} offen offset:{1024*b} sc1' for b in range(4) for p in range(5)],
         [G+20*b+4*p+3 for b in range(4) for p in range(5)], 2)
    A(f'v_and_b32 {v(vA)}, 31, {v(vLANE)}\nv_mul_u32_u24 {v(vA)}, 6, {v(vA)}\nv_add_u32 {v(vA)}, {HL}, {v(vA)}')
    for b in range(4):
        g0 = G + 20*b
        for k in range(3):
            for p in range(1, 5): A(f'v_add_f32 {v(g0+k)}, {v(g0+k)}, {v(g0+4*p+k)}')
        rnd2(g0, g0+1, vT); rnd(g0+2, vT)
        for k in range(3): A(f'v_mov_b32 {v(g0+4+k)}, {v(g0+k)}')
        A('s_nop 1')
        for k in range(3): A(f'v_permlane32_swap_b32 {v(g0+k)}, {v(g0+4+k)}')
        for k in range(3):
            A(f'v_cmp_lt_f32 vcc, 0, {v(g0+k)}\ns_nop 1\nv_cndmask_b32 {v(vT)}, 0, 1.0, vcc\nv_mul_f32 {v(g0+k)}, {v(g0+k)}, {v(vT)}\nv_mul_f32 {v(g0+k)}, {v(g0+k)}, {v(g0+4+k)}')
        put3_bf16(g0, vT, vA)
        if b < 3: A(f'v_add_u32 {v(vA)}, 192, {v(vA)}')
    A(f'v_bfe_u32 {v(vT+2)}, {v(vLANE)}, 2, 2\nv_mul_u32_u24 {v(vT+2)}, 192, {v(vT+2)}\nv_lshrrev_b32 {v(vT+3)}, 4, {v(vLANE)}\nv_lshl_add_u32 {v(vT+2)}, {v(vT+3)}, 3, {v(vT+2)}\nv_add_u32 {v(vA)}, {HL}, {v(vT+2)}')
    A('s_waitcnt lgkmcnt(0)')
    for s in range(3): A(f'ds_read2_b64 {v(vQ+4*s,4)}, {v(vA)} offset0:{8*s} offset1:{8*s+4}')
    A(f'v_lshrrev_b32 {v(vT)}, 2, {v(vLANE)}\nv_lshlrev_b32 {v(vT)}, 8, {v(vT)}\nv_and_b32 {v(vT+1)}, 3, {v(vLANE)}\nv_lshl_add_u32 {v(vT)}, {v(vT+1)}, 3, {v(vT)}\nv_add_u32 {v(vA)}, {WREG}, {v(vT)}')
    for s in range(3):
        A('s_waitcnt lgkmcnt(0)')
        trread_mfma(8, vA, 4096, vO, s == 0, vF, vQ+4*s)
        if s < 2: A(f'v_add_u32 {v(vA)}, 8192, {v(vA)}')
    A(f's_lshl_b32 s{sT0}, s{sCB}, 6\ns_add_u32 s{sT0}, s{sT0}, s{sR}\ns_lshl_b32 s{sT0}, s{sT0}, 10\ns_add_u32 s{sT0}, s{sT0}, {BP}')
    A('s_nop 4')
    for ww in range(4):
        t0 = vF + 4*ww
        A(f'v_mov_b32 {v(t0)}, {v(vO+8*ww)}\nv_mov_b32 {v(t0+1)}, {v(vO+8*ww+4)}\nv_mov_b32 {v(t0+2)}, {v(vTAG)}\nv_mov_b32 {v(t0+3)}, {v(vTAG)}')
        A(f'buffer_store_dwordx4 {v(t0,4)}, {v(vL16)}, {srd(rWS)}, s{sT0} offen sc1')
        if ww < 3: A(f's_add_u32 s{sT0}, s{sT0}, 16384')
    stamp(3)
    vG0, vG1, vX0, vX1, vXO = vS+2, vS+3, vS+4, vS+5, vS+6
    A(f's_mul_i32 s{sT0}, s{sRB}, 1280\ns_lshl_b32 s{sT1}, s{sSLC2}, 6\ns_add_u32 s{sT0}, s{sT0}, s{sT1}')
    A(f'v_and_b32 {v(vXO)}, 15, {v(vLANE)}\nv_lshlrev_b32 {v(vXO)}, 1, {v(vXO)}\nv_add_u32 {v(vXO)}, s{sT0}, {v(vXO)}')
    A(f'global_load_ushort {v(vX0)}, {v(vXO)}, {sp(sX)}\nglobal_load_ushort {v(vX1)}, {v(vXO)}, {sp(sX)} offset:32')
    A(f's_lshl_b32 s{sT0}, s{sSLC2}, 14\ns_lshl_b32 s{sT1}, s{sRB}, 8\ns_add_u32 s{sT0}, s{sT0}, s{sT1}\ns_add_u32 s{rK}, s{sT0}, {BP}')
    for p in range(1, 4): A(f's_add_u32 s{rK+p}, s{rK}, {4096*p}')
    G = vF + 16
    poll('L_pb', [wsload(G+4*p, vG4, rK+p) for p in range(4)], [G+4*p+3 for p in range(4)], 5)
    for k in range(2):
        A(f'v_add_f32 {v(G+k)}, {v(G+k)}, {v(G+4+k)}\nv_add_f32 {v(G+8+k)}, {v(G+8+k)}, {v(G+12+k)}\nv_add_f32 {v(G+k)}, {v(G+k)}, {v(G+8+k)}')
        xsum(G+k, vT, full=False)
    rnd2(G, G+1, vT)
    for k in range(2):
        A(f'v_mul_f32 {v(vT)}, s{sL2E}, {v(G+k)}\nv_max_f32 {v(vT)}, {f2u(-126.0):#x}, {v(vT)}\nv_exp_f32 {v(vT)}, -{v(vT)}\ns_nop 0\nv_add_f32 {v(vT)}, 1.0, {v(vT)}\nv_rcp_f32 {v(vT+1)}, {v(vT)}\ns_nop 0')
        fdiv(vG0+k, G+k, vT, vT+1, vT+2)
    rnd2(vG0, vG1, vT)
    A(f'v_lshlrev_b32 {v(vX0)}, 16, {v(vX0)}\nv_lshlrev_b32 {v(vX1)}, 16, {v(vX1)}')
    A(f's_lshl_b32 s{sT0}, s{sSLC2}, 15\ns_lshl_b32 s{sT1}, s{sRB}, 8\ns_add_u32 s{sT0}, s{sT0}, s{sT1}\ns_add_u32 s{rK}, s{sT0}, {YP}')
    for p in range(1, 8): A(f's_add_u32 s{rK+p}, s{rK}, {4096*p}')
    stamp(4)
    A('L_hx:')
    A(f's_cmp_lg_u32 s{sXS}, 0\ns_cbranch_scc1 L_hb4')
    sREC, sOTH = 36, 37
    A(f's_lshl_b32 s{sREC}, s{sRHO}, 1\ns_add_u32 s{sREC}, s{sREC}, s{sHALF}\ns_lshl_b32 s{sREC}, s{sREC}, 13\ns_add_u32 s{sREC}, s{sREC}, {SCO}\ns_xor_b32 s{sOTH}, s{sREC}, 8192')
    vXA, vXF = vQ, vQ+1
    A(f'v_mul_u32_u24 {v(vXA)}, 12, {v(vLANE)}\nv_add_u32 {v(vXA)}, {STG+128}, {v(vXA)}\nv_mov_b32 {v(vXF)}, {FLG+8}')
    def hwait(n, lbl):
        A(f's_mov_b32 s{sCNT}, {spin*8}\n{lbl}:\nds_read_b32 {v(vT)}, {v(vXF)}\ns_sub_u32 s{sCNT}, s{sCNT}, 1\ns_cmp_eq_u32 s{sCNT}, 0\ns_cbranch_scc1 {lbl}_ok')
        A(f's_waitcnt lgkmcnt(0)\nv_readfirstlane_b32 s{sT0}, {v(vT)}\ns_nop 0\ns_cmp_ge_u32 s{sT0}, {4*n}\ns_cbranch_scc1 {lbl}_ok\ns_sleep {hsl}\ns_branch {lbl}\n{lbl}_ok:')
    EX1 = 's_mov_b32 exec_hi, 0x3ff'
    hwait(23, 'L_hw0')
    if not (noex & 1):
        for i in range(2):
            if i: A(EX1)
            for w in range(4):
                r = vF + 16*i + 4*w
                A(f'ds_read_b32 {v(r)}, {v(vXA)} offset:{1536*w+768*i}\nds_read_b32 {v(r+1)}, {v(vXA)} offset:{1536*w+768*i+4}\nds_read_b32 {v(r+2)}, {v(vXA)} offset:{1536*w+768*i+8}\nv_mov_b32 {v(r+3)}, {v(vTAG)}')
            for w in range(4):
                r = vF + 16*i + 4*w
                A(f's_add_u32 s{sT0}, s{sREC}, {2048*w+1024*i}\ns_waitcnt lgkmcnt({9-3*w})')
                A(f'buffer_store_dwordx4 {v(r,4)}, {v(vL16)}, {srd(rWS)}, s{sT0} offen {stfl}')
        A('s_mov_b64 exec, -1')
    hwait(gat, 'L_hw1')
    if not noex:
        G = vF + 32
        for w in range(4): A(f'v_mov_b32 {v(G+16+4*w+3)}, {v(vTAG)}')
        lds_ = []
        for i in range(2):
            for w in range(4):
                pre_ = EX1 + '\n' if (i and w == 0) else ''
                post = '\ns_mov_b64 exec, -1' if (i and w == 3) else ''
                lds_.append(f'{pre_}s_add_u32 s{sT0}, s{sOTH}, {2048*w+1024*i}\nbuffer_load_dwordx4 {v(G+16*i+4*w,4)}, {v(vL16)}, {srd(rWS)}, s{sT0} offen {slfl}{post}')
        poll('L_px', lds_, [G+4*k+3 for k in range(8)], 8)
        for i in range(2):
            if i: A(EX1)
            for w in range(4):
                r = G + 16*i + 4*w
                for k in range(3): A(f'ds_write_b32 {v(vXA)}, {v(r+k)} offset:{1536*w+768*i+4*k}')
            if i == 0: A('s_waitcnt lgkmcnt(0)')
        A('s_mov_b64 exec, -1')
    A(f'v_mov_b32 {v(vT)}, 1\nds_write_b32 {v(vXF)}, {v(vT)} offset:4')
    A('L_hb4:')
    A(f'v_mul_u32_u24 {v(vA)}, 12, {v(vLANE)}\nv_add_u32 {v(vA)}, {OCB}, {v(vA)}\nv_mov_b32 {v(vAL)}, {OCB+768}')
    A(f's_lshl_b32 s{sT1}, s{sH}, 3\ns_add_u32 s{sT1}, s{sT1}, s{sJ}\ns_lshl_b32 s{sT1}, s{sT1}, 11\ns_add_u32 s{sT1}, s{sT1}, {OP}')
    A('s_barrier')
    stamp(5)
    Gm = vQ
    for w in range(4): A(f'ds_read_b64 {v(Gm+2*w,2)}, {v(vAL)} offset:{1024*w}')
    for w in range(4):
        A(f'ds_read2_b32 {v(vF+4*w,2)}, {v(vA)} offset0:0 offset1:1\nds_read_b32 {v(vF+4*w+2)}, {v(vA)} offset:8')
        if w < 3: A(f'v_add_u32 {v(vA)}, 1024, {v(vA)}')
    A('s_waitcnt lgkmcnt(8)')
    r0 = vP
    ml = vT + 4
    A(f'v_max3_f32 {v(ml)}, {v(Gm)}, {v(Gm+2)}, {v(Gm+4)}\nv_max_f32 {v(ml)}, {v(ml)}, {v(Gm+6)}')
    for w in range(4): A(f'v_sub_f32 {v(Gm+2*w)}, {v(Gm+2*w)}, {v(ml)}')
    for w in range(4): A(f'v_exp_f32 {v(Gm+2*w)}, {v(Gm+2*w)}')
    A(f'v_mov_b32 {v(r0+3)}, {v(vTAG)}\nv_mov_b32 {v(ml+3)}, {v(vTAG)}\nv_mov_b32 {v(ml+2)}, {v(vTAG)}')
    A(f'v_mul_f32 {v(ml+1)}, {v(Gm)}, {v(Gm+1)}')
    for w in range(1, 4): A(f'v_fmac_f32 {v(ml+1)}, {v(Gm+2*w)}, {v(Gm+2*w+1)}')
    A('s_waitcnt lgkmcnt(0)')
    for k in range(3): A(f'v_mul_f32 {v(r0+k)}, {v(Gm)}, {v(vF+k)}')
    for w in range(1, 4):
        for k in range(3): A(f'v_fmac_f32 {v(r0+k)}, {v(Gm+2*w)}, {v(vF+4*w+k)}')
    A(f'buffer_store_dwordx4 {v(r0,4)}, {v(vL16)}, {srd(rWS)}, s{sT1} offen sc1')
    A(f's_mov_b64 exec, 1\nbuffer_store_dwordx4 {v(ml,4)}, {v(vL16)}, {srd(rWS)}, s{sT1} offen offset:1024 sc1\ns_mov_b64 exec, -1')
    A(f's_cmp_eq_u32 s{sHASW1}, 0\ns_cbranch_scc1 L_hdone')
    G = vF + 16
    if twostage:
        pass
    poll('L_py', [wsload(G+4*p, vG4, rK+p) for p in range(8)], [G+4*p+3 for p in range(8)], 6)
    stamp(6)
    for k in range(2):
        for p in range(4): A(f'v_add_f32 {v(G+8*p+k)}, {v(G+8*p+k)}, {v(G+8*p+4+k)}')
        A(f'v_add_f32 {v(G+k)}, {v(G+k)}, {v(G+8+k)}\nv_add_f32 {v(G+16+k)}, {v(G+16+k)}, {v(G+24+k)}\nv_add_f32 {v(G+k)}, {v(G+k)}, {v(G+16+k)}')
    for k in range(2): xsum(G+k, vT+k, full=False)
    rnd2(G, G+1, vT)
    A(f'v_mul_f32 {v(G)}, {v(G)}, {v(vG0)}\nv_mul_f32 {v(G+1)}, {v(G+1)}, {v(vG1)}')
    rnd2(G, G+1, vT)
    A(f'v_add_f32 {v(G)}, {v(G)}, {v(vX0)}\nv_add_f32 {v(G+1)}, {v(G+1)}, {v(vX1)}\nv_cvt_pk_bf16_f32 {v(G)}, {v(G)}, {v(G+1)}')
    A(f's_mov_b64 exec, 0xffff\nglobal_store_short {v(vXO)}, {v(G)}, {sp(sOUT)}\nglobal_store_short_d16_hi {v(vXO)}, {v(G)}, {sp(sOUT)} offset:32')
    A(f's_cmp_lg_u32 s{sU2}, 0\ns_cbranch_scc1 L_hdone')
    A(f's_mov_b64 exec, 1\nv_mov_b32 {v(vT)}, 0\nglobal_store_dword {v(vT)}, {v(vTAG)}, {sp(sWS)} sc1')
    A('L_hdone:')
    if stamps:
        A('s_waitcnt vmcnt(0)')
        stamp(7)
        write_stamps(256, 'h')
    A('L_end:\ns_endpgm')
    A(f'''.section .rodata,"a"
.p2align 6
.amdhsa_kernel {NAME}_kernel
  .amdhsa_next_free_vgpr {NV}
  .amdhsa_next_free_sgpr 100
  .amdhsa_accum_offset {NV}
  .amdhsa_group_segment_fixed_size 0
  .amdhsa_kernarg_size 96
  .amdhsa_user_sgpr_count 2
  .amdhsa_user_sgpr_kernarg_segment_ptr 1
  .amdhsa_system_sgpr_workgroup_id_x 1
  .amdhsa_float_denorm_mode_32 3
.end_amdhsa_kernel''')
    open(fn, 'w').write('\n'.join(L) + '\n')

if __name__ == '__main__':
    fn = sys.argv[1]
    kw = {}
    for a in sys.argv[2:]:
        k, val = a.split('=')
        try: val = int(val)
        except ValueError: val = val.replace('+', ' ').replace('def', '')
        kw[k] = val
    gen(fn, **kw)
```

```python
import sys, os, struct
NAME = 'recurrent_scan__gqa_block_cached__glu_gated_reglu__decode'

HEADER = '''; Kernarg layout (96 bytes, ptrs only, base s[0:1]):
'''

def f2u(x): return struct.unpack('<I', struct.pack('<f', x))[0]

def gen(fn, stamps=False, pace=8, up=4, mapping='x', kvil=False, twostage=False, spin=1<<15, knt='nt', vnt='nt', w1nt='nt', w2nt='nt', sleep=0, fixdur=0, D=6, nomem=0, now=0, nopoll=0, nocomp=0, pre=2, force=-1, cap=400, thr=100, noex=0, sync=1, skipx=1, hsl=2, gat=27, dbgv=0, stfl='sc1', slfl='sc1'):
    L = []
    def A(s):
        for ln in s.strip('\n').split('\n'):
            L.append(ln.strip())
    SLOT = 9216; RING = 2*SLOT; WT = 12288
    WREG = 4*RING
    MISC = WREG + 4*WT
    XN = MISC; OBF = MISC
    RED = MISC + 1536
    OCB = RED + 8192
    QL = RED + 12288
    HL = QL + 384
    FLG = HL + 768
    STG = FLG + 64
    LDS = 147456
    assert STG + 6144 <= LDS
    P1 = 0x1000; OP = 0x100000; YP = 0x200000; BP = 0x300000; VOTE = 0x3F0000; SCO = 0x400000; WSZ = 0x600000
    TAGC = 0x9E3779B9
    sX, sK, sV, sWQ, sWO, sWG, sWU, sWD, sOUT, sDBG, sWS = 4, 6, 8, 10, 12, 16, 18, 20, 22, 24, 26
    rK, rV, rW1, rW2, rWS = 28, 32, 36, 40, 44
    sWAVE, sH, sJ, sB, sHALF = 48, 49, 50, 51, 52
    sBETA, sPI, sHASW1, sRS = 53, 54, 55, 56
    sSLA, sSLB, sSLC = 57, 58, 59
    sOFF, sT, sCNT = 60, 61, 62
    sSC, sL2E = 63, 64
    sT0, sT1, sT2, sT3 = 65, 66, 67, 68
    sU2, sR, sCB, sRB, sSLC2 = 69, 70, 71, 72, 73
    sN0, sN1, sFLV, sFL = 70, 71, 72, 73
    sU, sPUB, sNEG, sVB = 14, 15, 34, 32
    sRHO = 3
    sXD, sXS = 92, 93
    sKLO = 94
    sP = 74
    sST = 76
    def srd(r): return f's[{r}:{r+3}]'
    def sp(r): return f's[{r}:{r+1}]'
    vLANE, vL16, vTAG, vKA0, vVA0, vA, vM, vML, vLS, vAL = 1, 2, 3, 4, 5, 6, 7, 8, 9, 10
    vT = 12
    vS = 28
    vP = 36
    vQ = 40
    vF = 64
    vO = 112
    vW = 160
    vR = 208
    vKA1, vVA1, vA2, vM2B, vM2X, vM3, vSK, vSV, vFA, vONE = range(212, 222)
    NV = 224
    def v(r, n=1): return f'v{r}' if n == 1 else f'v[{r}:{r+n-1}]'
    nstamp = [0]
    def stamp(i):
        if stamps:
            A(f's_memrealtime {sp(sST+2*i)}\ns_waitcnt lgkmcnt(0)')
    def write_stamps(rec_base, lbl):
        if not stamps: return
        A(f's_lshl_b32 s{sT0}, s2, 6\ns_add_u32 s{sT0}, s{sT0}, {0x20000000 + rec_base*64}')
        A(f's_add_u32 s{sP}, s{sWS}, s{sT0}\ns_addc_u32 s{sP+1}, s{sWS+1}, 0')
        A(f's_mov_b64 exec, 1\nv_mov_b32 {v(vA)}, 0')
        for i in range(4):
            for k in range(4): A(f'v_mov_b32 {v(vT+k)}, s{sST+4*i+k}')
            A(f'global_store_dwordx4 {v(vA)}, {v(vT,4)}, {sp(sP)} offset:{16*i}\ns_nop 1')
    def xsum(r, t, op='v_add_f32', full=True):
        if full:
            for mode in ['quad_perm:[1,0,3,2]', 'quad_perm:[2,3,0,1]', 'row_half_mirror', 'row_mirror']:
                A(f's_nop 1\n{op}_dpp {v(r)}, {v(r)}, {v(r)} {mode} row_mask:0xf bank_mask:0xf')
        for sw in ['v_permlane16_swap_b32', 'v_permlane32_swap_b32']:
            A(f'v_mov_b32 {v(t)}, {v(r)}\ns_nop 1\n{sw} {v(r)}, {v(t)}\n{op} {v(r)}, {v(r)}, {v(t)}')
    def rnd(r, t):
        A(f'v_cvt_pk_bf16_f32 {v(t)}, {v(r)}, {v(r)}\nv_lshlrev_b32 {v(r)}, 16, {v(t)}')
    def rnd2(r0, r1, t):
        A(f'v_cvt_pk_bf16_f32 {v(t)}, {v(r0)}, {v(r1)}\nv_lshlrev_b32 {v(r0)}, 16, {v(t)}\nv_and_b32 {v(r1)}, 0xffff0000, {v(t)}')
    def dma_tile(soff, sslot, paced=None, lo=0, hi=9, fl='nt'):
        for i in range(lo, hi):
            if i == lo or i % 4 == 0:
                A(f's_add_u32 m0, s{sslot}, {4096*(i//4)}\ns_add_u32 s{sT0}, s{soff}, {4096*(i//4)}')
            if paced: A(f's_waitcnt vmcnt({paced-1})')
            A(f'buffer_load_dwordx4 {v(vL16)}, {srd(rK)}, s{sT0} offen offset:{1024*(i%4)} {fl} lds')
    def block_params(default, sn):
        if default == 1: A(f's_mov_b32 s{sT1}, s{sHALF}')
        else: A(f's_lshl_b32 s{sT1}, s{sU}, 14\ns_add_u32 s{sT1}, s{sT1}, s{sKLO}\ns_lshr_b32 s{sT1}, s{sT1}, 21\ns_xor_b32 s{sT1}, s{sT1}, s{sFL}\ns_and_b32 s{sT1}, s{sT1}, 1')
        if default == 2: A(f's_cmp_lt_u32 s{sT}, 26\ns_cselect_b32 s{sT1}, s{sHALF}, s{sT1}')
        A(f's_lshl_b32 s{sT2}, s{sU}, 1\ns_add_u32 s{sT1}, s{sT1}, s{sT2}\ns_lshl_b32 s{sT1}, s{sT1}, 6\ns_add_u32 s{sT2}, s{sT1}, 65\ns_add_u32 s{sT1}, s{sT1}, 1')
        A(f's_mul_i32 s{sT1}, s{sT1}, 43691\ns_mul_i32 s{sT2}, s{sT2}, 43691\ns_lshr_b32 s{sT1}, s{sT1}, 17\ns_lshr_b32 s{sT2}, s{sT2}, 17')
        A(f's_mul_i32 s{sOFF}, s{sT1}, 384\ns_sub_u32 s{sT1}, s{sT2}, s{sT1}\ns_mul_i32 s{sT2}, s{sT2}, 384\ns_min_u32 s{rK+2}, s{sT2}, {0 if nomem else 1572864}')
        if default == 2: A(f's_cmp_ge_u32 s{sT}, 46\ns_cselect_b32 s{rK+2}, 0, s{rK+2}\ns_add_u32 s{sU}, s{sU}, 4')
        else: A(f's_cmp_eq_u32 s{sT1}, 22\ns_cselect_b32 s{sn}, -1, 0\ns_add_u32 s{sU}, s{sU}, 4')
    def poll(lbl, loads, tagregs, code):
        A(f's_mov_b32 s{sCNT}, {spin}\n{lbl}:')
        for x in loads: A(x)
        A('s_waitcnt vmcnt(0)')
        A(f'v_xor_b32 {v(vT)}, {v(tagregs[0])}, {v(vTAG)}')
        for r in tagregs[1:]:
            A(f'v_xor_b32 {v(vT+1)}, {v(r)}, {v(vTAG)}\nv_or_b32 {v(vT)}, {v(vT)}, {v(vT+1)}')
        if nopoll and lbl != 'L_pq': A(f's_branch {lbl}_ok')
        A(f'v_cmp_ne_u32 vcc, 0, {v(vT)}\ns_cbranch_vccz {lbl}_ok')
        if sleep: A(f's_sleep {sleep}')
        A(f's_sub_u32 s{sCNT}, s{sCNT}, 1\ns_cmp_lg_u32 s{sCNT}, 0\ns_cbranch_scc1 {lbl}')
        A(f'v_mov_b32 {v(vT)}, 0\nv_mov_b32 {v(vT+1)}, {code}\nglobal_store_dword {v(vT)}, {v(vT+1)}, {sp(sDBG)}')
        A(f'{lbl}_ok:')
    def wsload(dst, voff, soff): return f'buffer_load_dwordx4 {v(dst,4)}, {v(voff)}, {srd(rWS)}, s{soff} offen sc1'
    def put3_bf16(r0, t, va):
        A(f'v_cvt_pk_bf16_f32 {v(t)}, {v(r0)}, {v(r0+1)}\nv_cvt_pk_bf16_f32 {v(t+1)}, {v(r0+2)}, {v(r0+2)}')
        A(f'ds_write_b16 {v(va)}, {v(t)}\nds_write_b16_d16_hi {v(va)}, {v(t)} offset:2\nds_write_b16 {v(va)}, {v(t+1)} offset:4')
    def fdiv(q, n, d, r, e):
        A(f'v_mul_f32 {v(q)}, {v(n)}, {v(r)}\nv_fma_f32 {v(e)}, -{v(q)}, {v(d)}, {v(n)}\nv_fma_f32 {v(q)}, {v(e)}, {v(r)}, {v(q)}')
    def trread_mfma(ntile, va, off2, acc, first, frag, aop, va2=None, extra=None):
        def rd(t):
            A(f'ds_read_b64_tr_b16 {v(frag+4*t,2)}, {v(va)} offset:{32*t}')
            A(f'ds_read_b64_tr_b16 {v(frag+4*t+2,2)}, {v(va if va2 is None else va2)} offset:{32*t+off2}')
        pre = min(4, ntile)
        for t in range(pre): rd(t)
        for t in range(ntile):
            if t + pre < ntile: rd(t + pre)
            if extra and t + pre == ntile - 1: A(extra)
            left = min(ntile - 1, t + pre) - t
            A(f's_waitcnt lgkmcnt({2*left + (1 if extra and t + pre >= ntile - 1 else 0)})')
            c = '0' if first else v(acc+4*t, 4)
            A(f'v_mfma_f32_16x16x32_bf16 {v(acc+4*t,4)}, {v(aop,4)}, {v(frag+4*t,4)}, {c}')

    A(HEADER)
    A(f'; @launch grid=(256,1,1) block=(320,1,1) lds={LDS}')
    A('.amdgcn_target "amdgcn-amd-amdhsa--gfx950"\n.text')
    A(f'.globl {NAME}_kernel\n.p2align 8\n.type {NAME}_kernel,@function\n{NAME}_kernel:')
    A('s_cmp_ge_u32 s2, 256\ns_cbranch_scc1 L_end')
    A('s_load_dwordx16 s[4:19], s[0:1], 0\ns_load_dwordx8 s[20:27], s[0:1], 64')
    if fixdur: A('s_memrealtime s[96:97]')
    if stamps:
        A(f's_memrealtime {sp(sST)}')
        for i in range(2, 16): A(f's_mov_b32 s{sST+i}, 0')
    A(f'v_lshrrev_b32 {v(vT)}, 6, v0\nv_and_b32 {v(vLANE)}, 63, v0')
    A(f'v_readfirstlane_b32 s{sWAVE}, {v(vT)}')
    A(f'v_lshlrev_b32 {v(vL16)}, 4, {v(vLANE)}')
    A(f's_lshr_b32 s{sT0}, s2, 3\ns_lshl_b32 s{sT0}, s{sT0}, 2\ns_and_b32 s{sT1}, s2, 3\ns_add_u32 s{sRHO}, s{sT0}, s{sT1}')
    A(f's_bfe_u32 s{sHALF}, s2, 0x10002\ns_lshr_b32 s{sB}, s{sRHO}, 5\ns_and_b32 s{sH}, s{sRHO}, 31\ns_lshl_b32 s{sJ}, s{sB}, 1\ns_add_u32 s{sJ}, s{sJ}, s{sHALF}')
    A(f's_mul_i32 s{sU2}, s{sH}, 3\ns_add_u32 s{sU2}, s{sU2}, s{sJ}')
    A(f's_mov_b32 s{sSC}, {f2u(192**-0.5):#x}\ns_mov_b32 s{sL2E}, {f2u(1.4426950408889634):#x}')
    A('s_waitcnt lgkmcnt(0)')
    A(f's_mov_b32 s{rWS}, s{sWS}\ns_mov_b32 s{rWS+1}, s{sWS+1}\ns_mov_b32 s{rWS+2}, {WSZ}\ns_mov_b32 s{rWS+3}, 0x20000')
    A(f's_cmp_eq_u32 s{sWAVE}, 4\ns_cbranch_scc1 L_helper')

    A(f's_mul_i32 s{sT0}, s{sWAVE}, 1280\nv_lshlrev_b32 {v(vA)}, 2, {v(vLANE)}\nv_add_u32 {v(vA)}, s{sT0}, {v(vA)}')
    A('s_barrier')
    for k in range(5): A(f'global_load_dword {v(vF+k)}, {v(vA)}, {sp(sX)} offset:{256*k}')
    A(f'v_mov_b32 {v(vT)}, 0\nglobal_load_dword {v(vTAG)}, {v(vT)}, {sp(sWS)} sc1')
    A(f's_cmp_ge_u32 s{sJ}, 3\ns_cbranch_scc0 L_w1mlp')
    A(f's_mov_b32 s{sBETA}, s{sH}\ns_sub_u32 s{sPI}, s{sJ}, 3\ns_mov_b32 s{sRS}, 12288\ns_mov_b32 s{sHASW1}, 1')
    A(f's_mul_i32 s{sT1}, s{sH}, 384\ns_add_u32 s{rW1}, s{sWQ}, s{sT1}\ns_addc_u32 s{rW1+1}, s{sWQ+1}, 0')
    A('s_branch L_w1done\nL_w1mlp:')
    A(f's_mul_i32 s{sT1}, s{sU2}, 52429\ns_lshr_b32 s{sT1}, s{sT1}, 18')
    A(f's_mul_i32 s{sT2}, s{sT1}, 5\ns_sub_u32 s{sPI}, s{sU2}, s{sT2}\ns_add_u32 s{sBETA}, s{sT1}, 32\ns_mov_b32 s{sRS}, 3072')
    A(f's_cmp_lt_u32 s{sU2}, 80\ns_cselect_b32 s{sHASW1}, 1, 0')
    A(f's_cmp_lt_u32 s{sT1}, 8\ns_cselect_b32 s{rW1}, s{sWG}, s{sWU}\ns_cselect_b32 s{rW1+1}, s{sWG+1}, s{sWU+1}')
    A(f's_and_b32 s{sT1}, s{sT1}, 7\ns_mul_i32 s{sT1}, s{sT1}, 384\ns_add_u32 s{rW1}, s{rW1}, s{sT1}\ns_addc_u32 s{rW1+1}, s{rW1+1}, 0')
    A('L_w1done:')
    A(f's_lshl_b32 s{sT1}, s{sPI}, 2\ns_add_u32 s{sT1}, s{sT1}, s{sWAVE}\ns_lshl_b32 s{sT1}, s{sT1}, 5\ns_mul_i32 s{sT1}, s{sT1}, s{sRS}')
    A(f's_add_u32 s{rW1}, s{rW1}, s{sT1}\ns_addc_u32 s{rW1+1}, s{rW1+1}, 0')
    A(f's_mul_i32 s{sT1}, s{sRS}, 31\ns_add_u32 s{sT1}, s{sT1}, 384\ns_mul_i32 s{rW1+2}, s{sT1}, s{sHASW1}\ns_mov_b32 s{rW1+3}, 0x20000')
    if now: A(f's_mov_b32 s{rW1+2}, 0')
    for p in range(3):
        A(f'v_add_u32 {v(vT)}, {64*p}, {v(vLANE)}\nv_mul_u32_u24 {v(vT+1)}, 2731, {v(vT)}\nv_lshrrev_b32 {v(vT+1)}, 16, {v(vT+1)}')
        A(f'v_mul_u32_u24 {v(vT+2)}, 24, {v(vT+1)}\nv_sub_u32 {v(vT)}, {v(vT)}, {v(vT+2)}\nv_lshlrev_b32 {v(vT)}, 4, {v(vT)}')
        A(f'v_mad_u32_u24 {v(vS+p)}, {v(vT+1)}, s{sRS}, {v(vT)}')
    A(f's_mul_i32 s{sSLA}, s{sWAVE}, {RING}\ns_add_u32 s{sSLB}, s{sSLA}, {SLOT}\ns_mul_i32 s{sSLC}, s{sWAVE}, {WT}\ns_add_u32 s{sSLC}, s{sSLC}, {WREG}')
    A(f's_lshl_b32 s{sT2}, s{sRS}, 3\ns_mov_b32 s{sT1}, 0')
    for i in range(12):
        if i and i % 3 == 0: A(f's_add_u32 s{sT1}, s{sT1}, s{sT2}')
        A(f's_add_u32 m0, s{sSLC}, {1024*i}\ns_nop 0')
        A(f'buffer_load_dwordx4 {v(vS+i%3)}, {srd(rW1)}, s{sT1} offen {w1nt} lds')
    A(f's_mul_i32 s{sT1}, s{sRHO}, 1572864')
    A(f's_add_u32 s{rK}, s{sK}, s{sT1}\ns_addc_u32 s{rK+1}, s{sK+1}, 0\ns_mov_b32 s{rK+3}, 0x20000')
    A(f's_add_u32 s{sVB}, s{sV}, s{sT1}\ns_addc_u32 s{sVB+1}, s{sV+1}, 0')
    A(f's_mov_b32 s{sU}, s{sWAVE}\ns_mov_b32 s{sKLO}, s{rK}')
    block_params(1, sN0)
    dma_tile(sOFF, sSLA, None, 0, up, knt)
    A(f's_cmp_lt_u32 s{sJ}, 5\ns_cbranch_scc0 L_w2down')
    A(f's_mul_i32 s{sT1}, s{sH}, {192*1280}\ns_lshl_b32 s{sT2}, s{sJ}, 8\ns_add_u32 s{sT1}, s{sT1}, s{sT2}')
    A(f's_add_u32 s{rW2}, s{sWO}, s{sT1}\ns_addc_u32 s{rW2+1}, s{sWO+1}, 0\ns_mov_b32 s{rW2+2}, {47*1280+256}\ns_branch L_w2done')
    A('L_w2down:')
    A(f's_sub_u32 s{sT3}, s{sU2}, 5\ns_mul_i32 s{sT1}, s{sT3}, 52429\ns_lshr_b32 s{sT1}, s{sT1}, 18\ns_mul_i32 s{sT2}, s{sT1}, 5\ns_sub_u32 s{sT2}, s{sT3}, s{sT2}')
    A(f's_mul_i32 s{sT1}, s{sT1}, {96*1280}\ns_lshl_b32 s{sT2}, s{sT2}, 8\ns_add_u32 s{sT1}, s{sT1}, s{sT2}')
    A(f's_add_u32 s{rW2}, s{sWD}, s{sT1}\ns_addc_u32 s{rW2+1}, s{sWD+1}, 0')
    A(f's_cmp_lt_u32 s{sT3}, 80\ns_cselect_b32 s{rW2+2}, {47*1280+256}, 0\ns_cmp_lt_u32 s{sWAVE}, 2\ns_cselect_b32 s{rW2+2}, s{rW2+2}, 0')
    A('L_w2done:')
    A(f's_mul_i32 s{sT1}, s{sWAVE}, {48*1280}\ns_add_u32 s{rW2}, s{rW2}, s{sT1}\ns_addc_u32 s{rW2+1}, s{rW2+1}, 0\ns_mov_b32 s{rW2+3}, 0x20000')
    if now: A(f's_mov_b32 s{rW2+2}, 0')
    A(f'v_and_b32 {v(vT)}, 15, {v(vLANE)}\nv_mul_u32_u24 {v(vT)}, 384, {v(vT)}\nv_lshrrev_b32 {v(vT+1)}, 4, {v(vLANE)}\nv_lshl_add_u32 {v(vKA0)}, {v(vT+1)}, 4, {v(vT)}')
    A(f'v_lshrrev_b32 {v(vT)}, 2, {v(vLANE)}\nv_mul_u32_u24 {v(vT)}, 384, {v(vT)}\nv_and_b32 {v(vT+1)}, 3, {v(vLANE)}\nv_lshl_add_u32 {v(vVA0)}, {v(vT+1)}, 3, {v(vT)}')
    A(f's_waitcnt vmcnt({1+12+up})')
    X = vF + 8
    for k in range(5):
        A(f'v_lshlrev_b32 {v(X+2*k)}, 16, {v(vF+k)}\nv_and_b32 {v(X+2*k+1)}, 0xffff0000, {v(vF+k)}')
    a = vT
    A(f'v_add_f32 {v(a)}, {v(X)}, {v(X+1)}')
    for k in range(2, 10): A(f'v_add_f32 {v(a)}, {v(a)}, {v(X+k)}')
    xsum(a, a+1)
    A(f'v_mul_f32 {v(a)}, {f2u(1/640):#x}, {v(a)}')
    b_ = vT+2
    A(f'v_sub_f32 {v(a+1)}, {v(X)}, {v(a)}\nv_mul_f32 {v(b_)}, {v(a+1)}, {v(a+1)}')
    for k in range(1, 10): A(f'v_sub_f32 {v(a+1)}, {v(X+k)}, {v(a)}\nv_fmac_f32 {v(b_)}, {v(a+1)}, {v(a+1)}')
    xsum(b_, a+1)
    A(f'v_mul_f32 {v(b_)}, {f2u(1/640):#x}, {v(b_)}')
    rnd2(a, b_, a+1)
    A(f'v_add_f32 {v(b_)}, {f2u(1e-5):#x}, {v(b_)}')
    rnd(b_, a+1)
    c_ = vT+3
    A(f'v_sqrt_f32 {v(c_)}, {v(b_)}\ns_nop 0\nv_rcp_f32 {v(c_+1)}, {v(c_)}\nv_fma_f32 {v(a+1)}, -{v(c_)}, {v(c_)}, {v(b_)}')
    A(f'v_mul_f32 {v(c_+1)}, 0.5, {v(c_+1)}\nv_fma_f32 {v(c_)}, {v(a+1)}, {v(c_+1)}, {v(c_)}')
    rnd(c_, a+1)
    A(f'v_rcp_f32 {v(c_+1)}, {v(c_)}')
    A(f'v_mov_b32 {v(vT+6)}, {v(X)}\nv_mov_b32 {v(vT+7)}, {v(X+1)}')
    for k in range(1, 5):
        A(f's_cmp_eq_u32 s{sPI}, {k}\ns_cselect_b64 vcc, -1, 0\nv_cndmask_b32 {v(vT+6)}, {v(vT+6)}, {v(X+2*k)}, vcc\nv_cndmask_b32 {v(vT+7)}, {v(vT+7)}, {v(X+2*k+1)}, vcc')
    A(f'v_sub_f32 {v(vT+6)}, {v(vT+6)}, {v(a)}\nv_sub_f32 {v(vT+7)}, {v(vT+7)}, {v(a)}')
    rnd2(vT+6, vT+7, a+1)
    fdiv(vT+8, vT+6, c_, c_+1, a+1)
    fdiv(vT+9, vT+7, c_, c_+1, a+1)
    A(f'v_cvt_pk_bf16_f32 {v(vT+8)}, {v(vT+8)}, {v(vT+9)}')
    A(f's_lshl_b32 s{sT1}, s{sWAVE}, 8\ns_add_u32 s{sT1}, s{sT1}, {XN}\nv_lshlrev_b32 {v(vA)}, 2, {v(vLANE)}\nv_add_u32 {v(vA)}, s{sT1}, {v(vA)}')
    A(f'ds_write_b32 {v(vA)}, {v(vT+8)}')
    A(f'v_bfe_u32 {v(vT)}, {v(vLANE)}, 2, 2\nv_lshlrev_b32 {v(vT)}, 8, {v(vT)}\nv_lshrrev_b32 {v(vT+1)}, 4, {v(vLANE)}\nv_lshl_add_u32 {v(vT)}, {v(vT+1)}, 3, {v(vT)}')
    A(f's_lshl_b32 s{sT1}, s{sWAVE}, 6\ns_add_u32 s{sT1}, s{sT1}, {XN}\nv_add_u32 {v(vA)}, s{sT1}, {v(vT)}')
    A('s_waitcnt lgkmcnt(0)\ns_barrier')
    stamp(1)
    A(f'ds_read2_b64 {v(vP,4)}, {v(vA)} offset0:0 offset1:4')
    k0a = max(up, min(9, pace))
    dma_tile(sOFF, sSLA, pace, up, k0a, knt)
    A(f'v_add_u32 {v(vA)}, s{sSLC}, {v(vVA0)}')
    A(f's_waitcnt vmcnt({k0a}) lgkmcnt(0)')
    trread_mfma(12, vA, 6144, vO, True, vF, vP)
    A(f's_mul_i32 s{sT1}, s{sWAVE}, 3072\ns_add_u32 s{sT1}, s{sT1}, {RED}')
    A(f'v_lshrrev_b32 {v(vT)}, 4, {v(vLANE)}\nv_mul_u32_u24 {v(vT)}, 768, {v(vT)}\nv_and_b32 {v(vT+1)}, 15, {v(vLANE)}\nv_lshl_add_u32 {v(vT)}, {v(vT+1)}, 2, {v(vT)}\nv_add_u32 {v(vA)}, s{sT1}, {v(vT)}')
    A('s_nop 2')
    for t in range(12): A(f'ds_write_b32 {v(vA)}, {v(vO+4*t)} offset:{64*t}')
    A(f's_mul_i32 s{sT1}, s{sWAVE}, 768\ns_add_u32 s{sT1}, s{sT1}, {RED}\nv_mul_u32_u24 {v(vA)}, 12, {v(vLANE)}\nv_add_u32 {v(vA)}, s{sT1}, {v(vA)}')
    A('s_waitcnt lgkmcnt(0)\ns_barrier')
    for w in range(4):
        for k in range(3): A(f'ds_read_b32 {v(vF+4*w+k)}, {v(vA)} offset:{3072*w+4*k}')
    A(f'v_lshrrev_b32 {v(vT)}, 4, {v(vLANE)}\nv_mul_u32_u24 {v(vT)}, 1280, {v(vT)}\nv_and_b32 {v(vT+1)}, 15, {v(vLANE)}\nv_lshl_add_u32 {v(vS)}, {v(vT+1)}, 4, {v(vT)}')
    A(f's_mul_i32 s{sT1}, s{sBETA}, 5\ns_add_u32 s{sT1}, s{sT1}, s{sPI}\ns_lshl_b32 s{sT1}, s{sT1}, 2\ns_add_u32 s{sT1}, s{sT1}, s{sWAVE}\ns_lshl_b32 s{sT1}, s{sT1}, 10\ns_add_u32 s{sT1}, s{sT1}, {P1}')
    A(f'v_add_u32 {v(vTAG)}, {TAGC:#x}, {v(vTAG)}')
    A('s_waitcnt lgkmcnt(0)')
    for k in range(3):
        A(f'v_add_f32 {v(vF+k)}, {v(vF+k)}, {v(vF+4+k)}\nv_add_f32 {v(vF+8+k)}, {v(vF+8+k)}, {v(vF+12+k)}')
    for k in range(3): A(f'v_add_f32 {v(vF+k)}, {v(vF+k)}, {v(vF+8+k)}')
    A(f'v_mov_b32 {v(vF+3)}, {v(vTAG)}')
    A(f's_cmp_eq_u32 s{sHASW1}, 0\ns_cbranch_scc1 L_nopub1')
    A(f'buffer_store_dwordx4 {v(vF,4)}, {v(vL16)}, {srd(rWS)}, s{sT1} offen sc1')
    A('L_nopub1:')
    stamp(2)
    dma_tile(sOFF, sSLA, pace, k0a, 9, knt)
    A(f's_mov_b32 s{sT1}, 0')
    for i in range(12):
        A(f's_add_u32 m0, s{sSLC}, {1024*i}\ns_waitcnt vmcnt({pace-1})')
        A(f'buffer_load_dwordx4 {v(vS)}, {srd(rW2)}, s{sT1} offen {w2nt} lds')
        if i < 11: A(f's_add_u32 s{sT1}, s{sT1}, 5120')
    block_params(1, sN1)
    dma_tile(sOFF, sSLB, pace, 0, 9, knt)
    for t in range(12):
        for r in range(4): A(f'v_mov_b32 {v(vO+4*t+r)}, 0')
    A(f'v_mov_b32 {v(vM)}, {f2u(-1e30):#x}\nv_mov_b32 {v(vML)}, {f2u(-1e30):#x}\nv_mov_b32 {v(vLS)}, 0\ns_mov_b32 s{sNEG}, 0xff80ff80')
    A(f'v_and_b32 {v(vT)}, 15, {v(vLANE)}\nv_min_u32 {v(vT)}, 5, {v(vT)}\nv_mul_u32_u24 {v(vT)}, 384, {v(vT)}\nv_lshrrev_b32 {v(vT+1)}, 4, {v(vLANE)}\nv_lshl_add_u32 {v(vKA1)}, {v(vT+1)}, 4, {v(vT)}')
    A(f'v_lshrrev_b32 {v(vT)}, 2, {v(vLANE)}\nv_min_u32 {v(vT)}, 5, {v(vT)}\nv_mul_u32_u24 {v(vT)}, 384, {v(vT)}\nv_and_b32 {v(vT+2)}, 3, {v(vLANE)}\nv_lshl_add_u32 {v(vVA1)}, {v(vT+2)}, 3, {v(vT)}')
    A(f'v_cmp_gt_u32 vcc, 16, {v(vLANE)}\nv_mov_b32 {v(vT)}, 0xffff\nv_mov_b32 {v(vT+2)}, 0xffff0000\nv_cndmask_b32 {v(vM3)}, 0, -1, vcc')
    A(f'v_cmp_eq_u32 vcc, 1, {v(vT+1)}\ns_mul_i32 s{sT1}, s{sWAVE}, 1536\ns_add_u32 s{sT1}, s{sT1}, {STG}\nv_cndmask_b32 {v(vM2B)}, {v(vM3)}, {v(vT)}, vcc\nv_cndmask_b32 {v(vM2X)}, 0, {v(vT+2)}, vcc')
    A(f'v_lshl_add_u32 {v(vSK)}, {v(vT+1)}, 4, s{sT1}\nv_add_u32 {v(vSV)}, {22*64}, {v(vSK)}\nv_mov_b32 {v(vFA)}, {FLG+8}\nv_mov_b32 {v(vONE)}, 1')
    A(f'v_lshlrev_b32 {v(vA)}, 4, {v(vT+1)}\nv_add_u32 {v(vA)}, {QL}, {v(vA)}\nv_mov_b32 {v(vT+2)}, {FLG}')
    A('s_waitcnt vmcnt(9)\ns_barrier')
    stamp(3)
    A(f'ds_read_b128 {v(vT+4,4)}, {v(vT+2)}')
    for s in range(6): A(f'ds_read_b128 {v(vQ+4*s,4)}, {v(vA)} offset:{64*s}')
    A(f's_mov_b32 s{sT}, 0\ns_waitcnt lgkmcnt(6)')
    A(f'v_readfirstlane_b32 s{sFL}, {v(vT+4)}\nv_readfirstlane_b32 s{sFLV}, {v(vT+5)}')
    A(f's_nop 0\ns_xor_b32 s{sFL}, s{sFL}, s{sHALF}')
    A(f's_mov_b32 s{sPUB}, 4\ns_waitcnt lgkmcnt(0)')
    def arrive():
        A(f's_mov_b64 exec, 1\nds_add_u32 {v(vFA)}, {v(vONE)}\ns_mov_b64 exec, -1')
    chk = f'ds_read_b64 {v(vR,2)}, {v(vFA)}'
    def step_wait(lbl):
        if not sync: return
        A(f'{lbl}:\ns_waitcnt lgkmcnt(0)\nv_readfirstlane_b32 s{sT1}, {v(vR)}\ns_nop 0\ns_cmp_ge_u32 s{sT1}, s{sPUB}\ns_cbranch_scc1 {lbl}_ok')
        A(f'{chk}\ns_branch {lbl}\n{lbl}_ok:')
    A('.p2align 6\nL_kloop:')
    A(f'v_add_u32 {v(vA)}, s{sSLA}, {v(vKA0)}\nv_add_u32 {v(vA2)}, s{sSLA}, {v(vKA1)}')
    A('s_waitcnt vmcnt(9)')
    arrive()
    for kt in range(2):
        for s in range(6):
            if not (nocomp & 1): A(f'ds_read_b128 {v(vF+24*kt+4*s,4)}, {v(vA2 if kt else vA)} offset:{6144*kt+64*s}')
    A(chk)
    A(f'v_and_or_b32 {v(vT+8)}, {v(vM2X)}, s{sN0}, {v(vM2B)}\ns_mov_b32 s{sN0}, s{sN1}')
    A(f's_cmp_lg_u32 s{sT}, 22\ns_cbranch_scc1 L_knosw')
    A(f's_mov_b32 s{rK}, s{sVB}\ns_mov_b32 s{rK+1}, s{sVB+1}\ns_sub_u32 s{sU}, s{sU}, 8')
    A('L_knosw:')
    block_params(0, sN1)
    for kt in range(2):
        for s in range(6):
            i = 6*kt + s
            A(f's_waitcnt lgkmcnt({12-i})')
            c = '0' if s == 0 else v(vS+4*kt, 4)
            A(f'v_mfma_f32_16x16x32_bf16 {v(vS+4*kt,4)}, {v(vF+4*i,4)}, {v(vQ+4*s,4)}, {c}')
    step_wait('L_ks')
    dma_tile(sOFF, sSLA, None, 0, pre, knt)
    A(f's_nop {max(0, 7 - (pre + 2 if pre else 0))}')
    for k in range(4): rnd2(vS+2*k, vS+2*k+1, vT+k)
    for k in range(8): A(f'v_mul_f32 {v(vS+k)}, s{sSC}, {v(vS+k)}')
    for k in range(4): A(f'v_cvt_pk_bf16_f32 {v(vT+k)}, {v(vS+2*k)}, {v(vS+2*k+1)}')
    A(f'v_bfi_b32 {v(vT+2)}, {v(vT+8)}, {v(vT+2)}, s{sNEG}\nv_bfi_b32 {v(vT+3)}, {v(vM3)}, {v(vT+3)}, s{sNEG}')
    A(f's_mov_b32 exec_lo, 0x00010001\ns_mov_b32 exec_hi, 0x00010001\nds_write_b128 {v(vSK)}, {v(vT,4)}\ns_mov_b64 exec, -1\nv_add_u32 {v(vSK)}, 64, {v(vSK)}')
    A(f's_cmp_eq_u32 s{sT}, 23\ns_cbranch_scc1 L_vmid')
    dma_tile(sOFF, sSLA, D, pre, 9, knt)
    A(f's_mov_b32 s{sT1}, s{sSLA}\ns_mov_b32 s{sSLA}, s{sSLB}\ns_mov_b32 s{sSLB}, s{sT1}')
    A(f's_add_u32 s{sT}, s{sT}, 1\ns_add_u32 s{sPUB}, s{sPUB}, 4\ns_branch L_kloop')
    A('.p2align 6\nL_vloop:')
    A(f'v_add_u32 {v(vA)}, s{sSLA}, {v(vVA0)}\nv_add_u32 {v(vA2)}, s{sSLA}, {v(vVA1)}')
    A(f's_cmp_lg_u32 s{sT}, 24\ns_cbranch_scc1 L_vnosw\ns_mov_b32 s{sU}, s{sWAVE}\ns_xor_b32 s{sFL}, s{sFL}, s{sFLV}\nL_vnosw:')
    block_params(2, sN1)
    A('s_waitcnt vmcnt(9)')
    arrive()
    if not (nocomp & 2): trread_mfma(12, vA, 6144, vO, False, vF, vP, vA2, chk)
    else: A(chk)
    A(f's_cmp_eq_u32 s{sT}, 47\ns_cbranch_scc1 L_loopx')
    step_wait('L_vs')
    dma_tile(sOFF, sSLA, None, 0, pre, vnt)
    A('L_vmid:')
    if not noex:
        A(f's_cmp_lg_u32 s{sT}, 27\ns_cbranch_scc1 L_vnoc\ns_mov_b32 s{sCNT}, {spin*8}')
        A(f'L_vchk:\ns_waitcnt lgkmcnt(0)\nv_readfirstlane_b32 s{sT1}, {v(vR+1)}\ns_sub_u32 s{sCNT}, s{sCNT}, 1\ns_cmp_eq_u32 s{sCNT}, 0\ns_cbranch_scc1 L_vnoc')
        A(f's_cmp_lg_u32 s{sT1}, 0\ns_cbranch_scc1 L_vnoc\n{chk}\ns_branch L_vchk')
    A('L_vnoc:')
    A(f'ds_read_b128 {v(vT+8,4)}, {v(vSV)}\ns_cmp_eq_u32 s{sT}, 24\ns_cselect_b32 s{sT1}, {64-1536}, 64\nv_add_u32 {v(vSV)}, s{sT1}, {v(vSV)}\ns_waitcnt lgkmcnt(0)')
    for k in range(4): A(f'v_lshlrev_b32 {v(vS+2*k)}, 16, {v(vT+8+k)}\nv_and_b32 {v(vS+2*k+1)}, 0xffff0000, {v(vT+8+k)}')
    A(f'v_max3_f32 {v(vT)}, {v(vS)}, {v(vS+1)}, {v(vS+2)}\nv_max3_f32 {v(vT+1)}, {v(vS+3)}, {v(vS+4)}, {v(vS+5)}')
    A(f'v_max3_f32 {v(vM)}, {v(vS+6)}, {v(vS+7)}, {v(vM)}\nv_max3_f32 {v(vM)}, {v(vM)}, {v(vT)}, {v(vT+1)}')
    xsum(vM, vT, 'v_max_f32', full=False)
    A(f'v_mul_f32 {v(vT)}, s{sL2E}, {v(vM)}\nv_sub_f32 {v(vAL)}, {v(vML)}, {v(vT)}\nv_mov_b32 {v(vML)}, {v(vT)}\nv_exp_f32 {v(vAL)}, {v(vAL)}')
    for k in range(8): A(f'v_fma_f32 {v(vS+k)}, {v(vS+k)}, s{sL2E}, -{v(vML)}')
    for k in range(8): A(f'v_exp_f32 {v(vS+k)}, {v(vS+k)}')
    for t in range(12): A(f'v_mul_f32 {v(vO+4*t)}, {v(vAL)}, {v(vO+4*t)}')
    for k in range(4): A(f'v_cvt_pk_bf16_f32 {v(vP+k)}, {v(vS+2*k)}, {v(vS+2*k+1)}')
    for k in range(4): A(f'v_add_f32 {v(vT+k)}, {v(vS+2*k)}, {v(vS+2*k+1)}')
    A(f'v_add_f32 {v(vT)}, {v(vT)}, {v(vT+1)}\nv_add_f32 {v(vT+2)}, {v(vT+2)}, {v(vT+3)}\nv_add_f32 {v(vT)}, {v(vT)}, {v(vT+2)}')
    A(f'v_fma_f32 {v(vLS)}, {v(vLS)}, {v(vAL)}, {v(vT)}')
    dma_tile(sOFF, sSLA, D, pre, 9, vnt)
    A(f's_mov_b32 s{sT1}, s{sSLA}\ns_mov_b32 s{sSLA}, s{sSLB}\ns_mov_b32 s{sSLB}, s{sT1}')
    A(f's_add_u32 s{sT}, s{sT}, 1\ns_add_u32 s{sPUB}, s{sPUB}, 4\ns_branch L_vloop')
    A('L_loopx:')
    stamp(4)
    xsum(vLS, vT, full=False)
    A(f's_lshl_b32 s{sT1}, s{sWAVE}, 10\ns_add_u32 s{sT1}, s{sT1}, {OCB}\nv_lshlrev_b32 {v(vA)}, 2, {v(vLANE)}\nv_add_u32 {v(vA)}, s{sT1}, {v(vA)}')
    A('s_mov_b64 exec, 0xffff')
    for t in range(12): A(f'ds_write_b32 {v(vA)}, {v(vO+4*t)} offset:{64*t}')
    A(f's_mov_b64 exec, 1\nds_write2_b32 {v(vA)}, {v(vML)}, {v(vLS)} offset0:192 offset1:193\ns_mov_b64 exec, -1')
    A('s_waitcnt lgkmcnt(0)\ns_barrier')
    A(f's_cmp_ge_u32 s{sJ}, 5\ns_cbranch_scc1 L_sdone')
    A(f'v_lshrrev_b32 {v(vT)}, 2, {v(vLANE)}\nv_lshlrev_b32 {v(vT)}, 8, {v(vT)}\nv_and_b32 {v(vT+1)}, 3, {v(vLANE)}\nv_lshl_add_u32 {v(vT)}, {v(vT+1)}, 3, {v(vT)}')
    A(f's_lshl_b32 s{sT1}, s{sWAVE}, 6\ns_add_u32 s{sT1}, s{sT1}, {WREG}\nv_add_u32 {v(vA)}, s{sT1}, {v(vT)}')
    for s in range(6):
        for t in range(2):
            f = vW + 24*t + 4*s
            A(f'ds_read_b64_tr_b16 {v(f,2)}, {v(vA)} offset:{8192*s+32*t}\nds_read_b64_tr_b16 {v(f+2,2)}, {v(vA)} offset:{8192*s+32*t+4096}')
        if s % 2 == 1 and s < 5: A('s_waitcnt lgkmcnt(4)')
    A(f's_lshl_b32 s{sT1}, s{sH}, 3\ns_lshl_b32 s{sT2}, s{sWAVE}, 1\ns_add_u32 s{sT1}, s{sT1}, s{sT2}\ns_lshl_b32 s{sT1}, s{sT1}, 11\ns_add_u32 s{sT1}, s{sT1}, {OP}\ns_add_u32 s{sT2}, s{sT1}, 2048')
    A(f'v_mov_b32 {v(vA)}, 1024')
    if twostage:
        poll('L_pml', [wsload(vF+8, vA, sT1), wsload(vF+12, vA, sT2)], [vF+11, vF+15], 3)
        poll('L_po', [wsload(vF, vL16, sT1), wsload(vF+4, vL16, sT2)], [vF+3, vF+7], 4)
    else:
        poll('L_po', [wsload(vF, vL16, sT1), wsload(vF+4, vL16, sT2), wsload(vF+8, vA, sT1), wsload(vF+12, vA, sT2)], [vF+3, vF+7, vF+11, vF+15], 4)
    stamp(5)
    m0_, l0_, m1_, l1_ = vF+8, vF+9, vF+12, vF+13
    A(f'v_max_f32 {v(vT)}, {v(m0_)}, {v(m1_)}\nv_sub_f32 {v(m0_)}, {v(m0_)}, {v(vT)}\nv_sub_f32 {v(m1_)}, {v(m1_)}, {v(vT)}\nv_exp_f32 {v(m0_)}, {v(m0_)}\nv_exp_f32 {v(m1_)}, {v(m1_)}')
    A(f's_mul_i32 s{sT1}, s{sWAVE}, 384\ns_add_u32 s{sT1}, s{sT1}, {OBF}')
    A(f'v_mul_f32 {v(l0_)}, {v(l0_)}, {v(m0_)}\nv_fmac_f32 {v(l0_)}, {v(l1_)}, {v(m1_)}\nv_rcp_f32 {v(l1_)}, {v(l0_)}')
    for k in range(3): A(f'v_mul_f32 {v(vF+k)}, {v(vF+k)}, {v(m0_)}\nv_fmac_f32 {v(vF+k)}, {v(vF+4+k)}, {v(m1_)}')
    A(f'v_mul_u32_u24 {v(vA)}, 6, {v(vLANE)}\nv_add_u32 {v(vA)}, s{sT1}, {v(vA)}')
    for k in range(3): fdiv(vF+4+k, vF+k, l0_, l1_, vT)
    put3_bf16(vF+4, vT, vA)
    A(f'v_bfe_u32 {v(vT+2)}, {v(vLANE)}, 2, 2\nv_mul_u32_u24 {v(vT+2)}, 384, {v(vT+2)}\nv_lshrrev_b32 {v(vT+3)}, 4, {v(vLANE)}\nv_lshl_add_u32 {v(vT+2)}, {v(vT+3)}, 3, {v(vT+2)}\nv_add_u32 {v(vA)}, {OBF}, {v(vT+2)}')
    A(f's_lshl_b32 s{sT1}, s{sJ}, 2\ns_add_u32 s{sT1}, s{sT1}, s{sWAVE}\ns_lshl_b32 s{sT1}, s{sT1}, 5\ns_add_u32 s{sT1}, s{sT1}, s{sH}\ns_lshl_b32 s{sT1}, s{sT1}, 10\ns_add_u32 s{sT1}, s{sT1}, {YP}')
    A('s_waitcnt lgkmcnt(0)\ns_barrier')
    for s in range(6): A(f'ds_read2_b64 {v(vF+4*s,4)}, {v(vA)} offset0:{8*s} offset1:{8*s+4}')
    for s in range(6):
        A(f's_waitcnt lgkmcnt({5-s})')
        for t in range(2):
            c = '0' if s == 0 else v(vS+4*t, 4)
            A(f'v_mfma_f32_16x16x32_bf16 {v(vS+4*t,4)}, {v(vF+4*s,4)}, {v(vW+24*t+4*s,4)}, {c}')
    A(f'v_mov_b32 {v(vT+2)}, {v(vTAG)}\nv_mov_b32 {v(vT+3)}, {v(vTAG)}\ns_nop 5')
    A(f'v_mov_b32 {v(vT)}, {v(vS)}\nv_mov_b32 {v(vT+1)}, {v(vS+4)}')
    A(f'buffer_store_dwordx4 {v(vT,4)}, {v(vL16)}, {srd(rWS)}, s{sT1} offen sc1')
    A('L_sdone:')
    if fixdur:
        A(f'L_fix:\ns_memrealtime s[98:99]\ns_waitcnt lgkmcnt(0)\ns_sub_u32 s98, s98, s96\ns_cmp_lt_u32 s98, {fixdur*100}\ns_cbranch_scc1 L_fix')
    stamp(6)
    if stamps:
        A(f's_cmp_lg_u32 s{sWAVE}, 0\ns_cbranch_scc1 L_end\ns_waitcnt vmcnt(0)')
        stamp(7)
        write_stamps(0, 's')
    A('s_endpgm')

    A('L_helper:')
    A(f's_bitcmp1_b32 s{sRHO}, 0\ns_cselect_b32 s{sP}, s{sV}, s{sK}\ns_cselect_b32 s{sP+1}, s{sV+1}, s{sK+1}')
    A(f's_mul_i32 s{sT0}, s{sRHO}, 1572864\ns_add_u32 s{sP}, s{sP}, s{sT0}\ns_addc_u32 s{sP+1}, s{sP+1}, 0')
    A(f's_bfe_u32 s{sT0}, s{sP}, 0x10015\ns_lshl_b32 s{sT0}, s{sT0}, 13\ns_lshl_b32 s{sT1}, s{sHALF}, 12\ns_add_u32 s{sT0}, s{sT0}, s{sT1}')
    A(f'v_mov_b32 {v(vT)}, s{sT0}\nv_xor_b32 {v(vT+1)}, 0x2000, {v(vT)}\nv_mov_b32 {v(vT+4)}, 0\ns_mov_b64 exec, 1')
    A(f'global_load_dword {v(vT+2)}, {v(vT)}, {sp(sP)} nt\nglobal_load_dword {v(vT+3)}, {v(vT+1)}, {sp(sP)} nt\ns_mov_b64 exec, -1')
    A(f'global_load_dword {v(vTAG)}, {v(vT+4)}, {sp(sWS)} sc1')
    A('s_barrier')
    A(f's_getreg_b32 s{sT3}, hwreg(HW_REG_XCC_ID, 2, 1)')
    A(f's_waitcnt vmcnt(2)\ns_memtime s[36:37]\ns_waitcnt vmcnt(1)\ns_memtime s[38:39]\ns_waitcnt lgkmcnt(0)')
    A(f's_sub_u32 s{sT0}, s38, s36\ns_min_u32 s{sT0}, s{sT0}, {cap}\ns_sub_u32 s{sT0}, s{sT0}, {thr}\ns_sub_u32 s{sT1}, 0, s{sT0}')
    A(f's_cmp_eq_u32 s{sT3}, 0\ns_cselect_b32 s{sT0}, s{sT0}, s{sT1}')
    A(f'v_mov_b32 {v(vP)}, s{sT0}\nv_mov_b32 {v(vP+1)}, s{sT3}\nv_mov_b32 {v(vP+2)}, 0')
    A(f's_lshl_b32 s{sT0}, s{sRHO}, 1\ns_add_u32 s{sT0}, s{sT0}, s{sHALF}\ns_lshl_b32 s{sT0}, s{sT0}, 4\ns_add_u32 s{sT0}, s{sT0}, {VOTE}')
    A(f's_waitcnt vmcnt(0)\nv_add_u32 {v(vTAG)}, {TAGC:#x}, {v(vTAG)}\nv_mov_b32 {v(vP+3)}, {v(vTAG)}')
    A(f's_mov_b64 exec, 1\nbuffer_store_dwordx4 {v(vP,4)}, {v(vL16)}, {srd(rWS)}, s{sT0} offen sc1\ns_mov_b64 exec, -1')
    A(f's_and_b32 s{rK+5}, s{sT0}, 0xffffff00\nv_and_b32 {v(vAL)}, 0xf0, {v(vL16)}')
    A(f's_mul_i32 s{sT0}, s{sH}, {5*4096}\ns_lshl_b32 s{sT1}, s{sB}, 10\ns_add_u32 s{sT0}, s{sT0}, s{sT1}\ns_add_u32 s{rK}, s{sT0}, {P1}')
    for p in range(1, 5): A(f's_add_u32 s{rK+p}, s{rK}, {4096*p}')
    A(f's_sub_u32 s{sU2}, s{sU2}, 5')
    A(f'v_mov_b32 {v(vS+1)}, 0\nv_mov_b32 {v(vS+6)}, 0')
    A(f'v_mul_u32_u24 {v(vA)}, 6, {v(vLANE)}\nv_add_u32 {v(vA)}, {QL}, {v(vA)}')
    A('s_barrier\ns_barrier')
    stamp(1)
    poll('L_pq', [wsload(vF+4*p, vL16, rK+p) for p in range(5)] + [wsload(vF+20, vAL, rK+5)], [vF+4*p+3 for p in range(5 if nopoll else 0, 6)], 1)
    E = vF + 20
    for mode in ['quad_perm:[1,0,3,2]', 'row_ror:4', 'row_ror:8']:
        A(f's_nop 1\nv_add_u32_dpp {v(E)}, {v(E)}, {v(E)} {mode} row_mask:0xf bank_mask:0xf')
    A(f's_and_b32 s{sT2}, s{sRHO}, 7\ns_lshl_b32 s{sT2}, s{sT2}, 1')
    A(f'v_readlane_b32 s{sT0}, {v(E)}, 0\nv_readlane_b32 s{sT1}, {v(E)}, 2\nv_readlane_b32 s{sT2}, {v(E+1)}, s{sT2}')
    if dbgv:
        A(f's_nop 1\ns_add_u32 s{sT3}, s{sT0}, 5000\ns_mul_i32 s{sT3}, s{sT3}, 10000\ns_add_u32 s{sT3}, s{sT3}, s{sT1}\ns_add_u32 s{sT3}, s{sT3}, 5000')
        A(f's_lshr_b32 s{sP}, s{sRHO}, 3\ns_lshl_b32 s{sP}, s{sP}, 2\nv_mov_b32 {v(vT+5)}, s{sP}\nv_mov_b32 {v(vT+6)}, s{sT3}\nglobal_store_dword {v(vT+5)}, {v(vT+6)}, {sp(sDBG)}')
    A(f's_nop 1\ns_lshr_b32 s{sT0}, s{sT0}, 31\ns_lshr_b32 s{sT1}, s{sT1}, 31\ns_xor_b32 s{sT0}, s{sT0}, s{sT2}\ns_xor_b32 s{sT1}, s{sT1}, s{sT2}')
    if force >= 0: A(f's_mov_b32 s{sT0}, {force & 1}\ns_mov_b32 s{sT1}, {force >> 1}')
    A(f's_mul_i32 s{sT2}, s{sRHO}, 1572864\ns_add_u32 s{sT3}, s{sK}, s{sT2}\ns_add_u32 s{sT2}, s{sV}, s{sT2}\ns_xor_b32 s{sT2}, s{sT2}, s{sT3}\ns_lshr_b32 s{sT2}, s{sT2}, 21')
    A(f's_xor_b32 s{sT2}, s{sT2}, s{sT0}\ns_xor_b32 s{sT2}, s{sT2}, s{sT1}\ns_and_b32 s{sXD}, s{sT2}, 1\ns_xor_b32 s{sXS}, s{sXD}, 1')
    A(f'v_mov_b32 {v(vT+4)}, s{sT0}\nv_mov_b32 {v(vT+5)}, s{sXD}\nv_mov_b32 {v(vT+6)}, 0\nv_mov_b32 {v(vT+7)}, s{sXS}\nv_mov_b32 {v(vT+3)}, {FLG}\nds_write_b128 {v(vT+3)}, {v(vT+4,4)}')
    if stamps:
        A(f's_lshl_b32 s{sT1}, s{sT1}, 1\ns_or_b32 s{sT1}, s{sT1}, s{sT0}\ns_lshl_b32 s{sT0}, s2, 2\ns_add_u32 s{sT0}, s{sT0}, 0x20100000')
        A(f'v_mov_b32 {v(vT+5)}, s{sT0}\nv_mov_b32 {v(vT+6)}, s{sT1}\nglobal_store_dword {v(vT+5)}, {v(vT+6)}, {sp(sWS)}')
    for k in range(3):
        for p in range(1, 5): A(f'v_add_f32 {v(vF+k)}, {v(vF+k)}, {v(vF+4*p+k)}')
    put3_bf16(vF, vT, vA)
    stamp(2)
    A('s_waitcnt lgkmcnt(0)\ns_barrier')
    A(f's_cmp_ge_u32 s{sJ}, 5\ns_cselect_b32 s{sHASW1}, 1, 0\ns_cmp_lt_u32 s{sU2}, 80\ns_cselect_b32 s{sHASW1}, s{sHASW1}, 0')
    A(f's_cmp_eq_u32 s{sHASW1}, 0\ns_cbranch_scc1 L_hx')
    A(f's_mul_i32 s{sR}, s{sU2}, 52429\ns_lshr_b32 s{sR}, s{sR}, 18\ns_mul_i32 s{sT0}, s{sR}, 5\ns_sub_u32 s{sCB}, s{sU2}, s{sT0}')
    A(f's_mul_i32 s{sRB}, s{sU2}, 52429\ns_lshr_b32 s{sRB}, s{sRB}, 20\ns_mul_i32 s{sT0}, s{sRB}, 20\ns_sub_u32 s{sSLC2}, s{sU2}, s{sT0}')
    vWD, vG4 = vS, vS+1
    A(f'v_lshrrev_b32 {v(vT)}, 4, {v(vLANE)}\nv_and_b32 {v(vT+1)}, 15, {v(vLANE)}\nv_lshlrev_b32 {v(vT+1)}, 4, {v(vT+1)}')
    A(f'v_mul_u32_u24 {v(vWD)}, 1280, {v(vT)}\nv_add_u32 {v(vWD)}, {v(vWD)}, {v(vT+1)}\nv_lshl_add_u32 {v(vG4)}, {v(vT)}, 10, {v(vT+1)}')
    A(f'v_lshrrev_b32 {v(vT)}, 5, {v(vLANE)}\nv_mul_u32_u24 {v(vT)}, {8*5*4096}, {v(vT)}\nv_and_b32 {v(vT+1)}, 31, {v(vLANE)}\nv_lshl_add_u32 {v(vA)}, {v(vT+1)}, 4, {v(vT)}')
    A(f's_lshr_b32 s{sT0}, s{sR}, 1\ns_add_u32 s{sT0}, s{sT0}, 32\ns_mul_i32 s{sT0}, s{sT0}, {5*4096}\ns_and_b32 s{sT1}, s{sR}, 1\ns_lshl_b32 s{sT1}, s{sT1}, 9\ns_add_u32 s{sT0}, s{sT0}, s{sT1}\ns_add_u32 s{rK}, s{sT0}, {P1}')
    for p in range(1, 5): A(f's_add_u32 s{rK+p}, s{rK}, {4096*p}')
    G = vF
    poll('L_pg', [wsload(G+20*b+4*p, vA, rK+p) + f' offset:{1024*b}' if False else
                  f'buffer_load_dwordx4 {v(G+20*b+4*p,4)}, {v(vA)}, {srd(rWS)}, s{rK+p} offen offset:{1024*b} sc1' for b in range(4) for p in range(5)],
         [G+20*b+4*p+3 for b in range(4) for p in range(5)], 2)
    A(f'v_and_b32 {v(vA)}, 31, {v(vLANE)}\nv_mul_u32_u24 {v(vA)}, 6, {v(vA)}\nv_add_u32 {v(vA)}, {HL}, {v(vA)}')
    for b in range(4):
        g0 = G + 20*b
        for k in range(3):
            for p in range(1, 5): A(f'v_add_f32 {v(g0+k)}, {v(g0+k)}, {v(g0+4*p+k)}')
        rnd2(g0, g0+1, vT); rnd(g0+2, vT)
        for k in range(3): A(f'v_mov_b32 {v(g0+4+k)}, {v(g0+k)}')
        A('s_nop 1')
        for k in range(3): A(f'v_permlane32_swap_b32 {v(g0+k)}, {v(g0+4+k)}')
        for k in range(3):
            A(f'v_cmp_lt_f32 vcc, 0, {v(g0+k)}\ns_nop 1\nv_cndmask_b32 {v(vT)}, 0, 1.0, vcc\nv_mul_f32 {v(g0+k)}, {v(g0+k)}, {v(vT)}\nv_mul_f32 {v(g0+k)}, {v(g0+k)}, {v(g0+4+k)}')
        put3_bf16(g0, vT, vA)
        if b < 3: A(f'v_add_u32 {v(vA)}, 192, {v(vA)}')
    A(f'v_bfe_u32 {v(vT+2)}, {v(vLANE)}, 2, 2\nv_mul_u32_u24 {v(vT+2)}, 192, {v(vT+2)}\nv_lshrrev_b32 {v(vT+3)}, 4, {v(vLANE)}\nv_lshl_add_u32 {v(vT+2)}, {v(vT+3)}, 3, {v(vT+2)}\nv_add_u32 {v(vA)}, {HL}, {v(vT+2)}')
    A('s_waitcnt lgkmcnt(0)')
    for s in range(3): A(f'ds_read2_b64 {v(vQ+4*s,4)}, {v(vA)} offset0:{8*s} offset1:{8*s+4}')
    A(f'v_lshrrev_b32 {v(vT)}, 2, {v(vLANE)}\nv_lshlrev_b32 {v(vT)}, 8, {v(vT)}\nv_and_b32 {v(vT+1)}, 3, {v(vLANE)}\nv_lshl_add_u32 {v(vT)}, {v(vT+1)}, 3, {v(vT)}\nv_add_u32 {v(vA)}, {WREG}, {v(vT)}')
    for s in range(3):
        A('s_waitcnt lgkmcnt(0)')
        trread_mfma(8, vA, 4096, vO, s == 0, vF, vQ+4*s)
        if s < 2: A(f'v_add_u32 {v(vA)}, 8192, {v(vA)}')
    A(f's_lshl_b32 s{sT0}, s{sCB}, 6\ns_add_u32 s{sT0}, s{sT0}, s{sR}\ns_lshl_b32 s{sT0}, s{sT0}, 10\ns_add_u32 s{sT0}, s{sT0}, {BP}')
    A('s_nop 4')
    for ww in range(4):
        t0 = vF + 4*ww
        A(f'v_mov_b32 {v(t0)}, {v(vO+8*ww)}\nv_mov_b32 {v(t0+1)}, {v(vO+8*ww+4)}\nv_mov_b32 {v(t0+2)}, {v(vTAG)}\nv_mov_b32 {v(t0+3)}, {v(vTAG)}')
        A(f'buffer_store_dwordx4 {v(t0,4)}, {v(vL16)}, {srd(rWS)}, s{sT0} offen sc1')
        if ww < 3: A(f's_add_u32 s{sT0}, s{sT0}, 16384')
    stamp(3)
    vG0, vG1, vX0, vX1, vXO = vS+2, vS+3, vS+4, vS+5, vS+6
    A(f's_mul_i32 s{sT0}, s{sRB}, 1280\ns_lshl_b32 s{sT1}, s{sSLC2}, 6\ns_add_u32 s{sT0}, s{sT0}, s{sT1}')
    A(f'v_and_b32 {v(vXO)}, 15, {v(vLANE)}\nv_lshlrev_b32 {v(vXO)}, 1, {v(vXO)}\nv_add_u32 {v(vXO)}, s{sT0}, {v(vXO)}')
    A(f'global_load_ushort {v(vX0)}, {v(vXO)}, {sp(sX)}\nglobal_load_ushort {v(vX1)}, {v(vXO)}, {sp(sX)} offset:32')
    A(f's_lshl_b32 s{sT0}, s{sSLC2}, 14\ns_lshl_b32 s{sT1}, s{sRB}, 8\ns_add_u32 s{sT0}, s{sT0}, s{sT1}\ns_add_u32 s{rK}, s{sT0}, {BP}')
    for p in range(1, 4): A(f's_add_u32 s{rK+p}, s{rK}, {4096*p}')
    G = vF + 16
    poll('L_pb', [wsload(G+4*p, vG4, rK+p) for p in range(4)], [G+4*p+3 for p in range(4)], 5)
    for k in range(2):
        A(f'v_add_f32 {v(G+k)}, {v(G+k)}, {v(G+4+k)}\nv_add_f32 {v(G+8+k)}, {v(G+8+k)}, {v(G+12+k)}\nv_add_f32 {v(G+k)}, {v(G+k)}, {v(G+8+k)}')
        xsum(G+k, vT, full=False)
    rnd2(G, G+1, vT)
    for k in range(2):
        A(f'v_mul_f32 {v(vT)}, s{sL2E}, {v(G+k)}\nv_max_f32 {v(vT)}, {f2u(-126.0):#x}, {v(vT)}\nv_exp_f32 {v(vT)}, -{v(vT)}\ns_nop 0\nv_add_f32 {v(vT)}, 1.0, {v(vT)}\nv_rcp_f32 {v(vT+1)}, {v(vT)}\ns_nop 0')
        fdiv(vG0+k, G+k, vT, vT+1, vT+2)
    rnd2(vG0, vG1, vT)
    A(f'v_lshlrev_b32 {v(vX0)}, 16, {v(vX0)}\nv_lshlrev_b32 {v(vX1)}, 16, {v(vX1)}')
    A(f's_lshl_b32 s{sT0}, s{sSLC2}, 15\ns_lshl_b32 s{sT1}, s{sRB}, 8\ns_add_u32 s{sT0}, s{sT0}, s{sT1}\ns_add_u32 s{rK}, s{sT0}, {YP}')
    for p in range(1, 8): A(f's_add_u32 s{rK+p}, s{rK}, {4096*p}')
    stamp(4)
    A('L_hx:')
    A(f's_cmp_lg_u32 s{sXS}, 0\ns_cbranch_scc1 L_hb4')
    sREC, sOTH = 36, 37
    A(f's_lshl_b32 s{sREC}, s{sRHO}, 1\ns_add_u32 s{sREC}, s{sREC}, s{sHALF}\ns_lshl_b32 s{sREC}, s{sREC}, 13\ns_add_u32 s{sREC}, s{sREC}, {SCO}\ns_xor_b32 s{sOTH}, s{sREC}, 8192')
    vXA, vXF = vQ, vQ+1
    A(f'v_mul_u32_u24 {v(vXA)}, 12, {v(vLANE)}\nv_add_u32 {v(vXA)}, {STG+128}, {v(vXA)}\nv_mov_b32 {v(vXF)}, {FLG+8}')
    def hwait(n, lbl):
        A(f's_mov_b32 s{sCNT}, {spin*8}\n{lbl}:\nds_read_b32 {v(vT)}, {v(vXF)}\ns_sub_u32 s{sCNT}, s{sCNT}, 1\ns_cmp_eq_u32 s{sCNT}, 0\ns_cbranch_scc1 {lbl}_ok')
        A(f's_waitcnt lgkmcnt(0)\nv_readfirstlane_b32 s{sT0}, {v(vT)}\ns_nop 0\ns_cmp_ge_u32 s{sT0}, {4*n}\ns_cbranch_scc1 {lbl}_ok\ns_sleep {hsl}\ns_branch {lbl}\n{lbl}_ok:')
    EX1 = 's_mov_b32 exec_hi, 0x3ff'
    hwait(23, 'L_hw0')
    if not (noex & 1):
        for i in range(2):
            if i: A(EX1)
            for w in range(4):
                r = vF + 16*i + 4*w
                A(f'ds_read_b32 {v(r)}, {v(vXA)} offset:{1536*w+768*i}\nds_read_b32 {v(r+1)}, {v(vXA)} offset:{1536*w+768*i+4}\nds_read_b32 {v(r+2)}, {v(vXA)} offset:{1536*w+768*i+8}\nv_mov_b32 {v(r+3)}, {v(vTAG)}')
            for w in range(4):
                r = vF + 16*i + 4*w
                A(f's_add_u32 s{sT0}, s{sREC}, {2048*w+1024*i}\ns_waitcnt lgkmcnt({9-3*w})')
                A(f'buffer_store_dwordx4 {v(r,4)}, {v(vL16)}, {srd(rWS)}, s{sT0} offen {stfl}')
        A('s_mov_b64 exec, -1')
    hwait(gat, 'L_hw1')
    if not noex:
        G = vF + 32
        for w in range(4): A(f'v_mov_b32 {v(G+16+4*w+3)}, {v(vTAG)}')
        lds_ = []
        for i in range(2):
            for w in range(4):
                pre_ = EX1 + '\n' if (i and w == 0) else ''
                post = '\ns_mov_b64 exec, -1' if (i and w == 3) else ''
                lds_.append(f'{pre_}s_add_u32 s{sT0}, s{sOTH}, {2048*w+1024*i}\nbuffer_load_dwordx4 {v(G+16*i+4*w,4)}, {v(vL16)}, {srd(rWS)}, s{sT0} offen {slfl}{post}')
        poll('L_px', lds_, [G+4*k+3 for k in range(8)], 8)
        for i in range(2):
            if i: A(EX1)
            for w in range(4):
                r = G + 16*i + 4*w
                for k in range(3): A(f'ds_write_b32 {v(vXA)}, {v(r+k)} offset:{1536*w+768*i+4*k}')
            if i == 0: A('s_waitcnt lgkmcnt(0)')
        A('s_mov_b64 exec, -1')
    A(f'v_mov_b32 {v(vT)}, 1\nds_write_b32 {v(vXF)}, {v(vT)} offset:4')
    A('L_hb4:')
    A(f'v_mul_u32_u24 {v(vA)}, 12, {v(vLANE)}\nv_add_u32 {v(vA)}, {OCB}, {v(vA)}\nv_mov_b32 {v(vAL)}, {OCB+768}')
    A(f's_lshl_b32 s{sT1}, s{sH}, 3\ns_add_u32 s{sT1}, s{sT1}, s{sJ}\ns_lshl_b32 s{sT1}, s{sT1}, 11\ns_add_u32 s{sT1}, s{sT1}, {OP}')
    A('s_barrier')
    stamp(5)
    Gm = vQ
    for w in range(4): A(f'ds_read_b64 {v(Gm+2*w,2)}, {v(vAL)} offset:{1024*w}')
    for w in range(4):
        A(f'ds_read2_b32 {v(vF+4*w,2)}, {v(vA)} offset0:0 offset1:1\nds_read_b32 {v(vF+4*w+2)}, {v(vA)} offset:8')
        if w < 3: A(f'v_add_u32 {v(vA)}, 1024, {v(vA)}')
    A('s_waitcnt lgkmcnt(8)')
    r0 = vP
    ml = vT + 4
    A(f'v_max3_f32 {v(ml)}, {v(Gm)}, {v(Gm+2)}, {v(Gm+4)}\nv_max_f32 {v(ml)}, {v(ml)}, {v(Gm+6)}')
    for w in range(4): A(f'v_sub_f32 {v(Gm+2*w)}, {v(Gm+2*w)}, {v(ml)}')
    for w in range(4): A(f'v_exp_f32 {v(Gm+2*w)}, {v(Gm+2*w)}')
    A(f'v_mov_b32 {v(r0+3)}, {v(vTAG)}\nv_mov_b32 {v(ml+3)}, {v(vTAG)}\nv_mov_b32 {v(ml+2)}, {v(vTAG)}')
    A(f'v_mul_f32 {v(ml+1)}, {v(Gm)}, {v(Gm+1)}')
    for w in range(1, 4): A(f'v_fmac_f32 {v(ml+1)}, {v(Gm+2*w)}, {v(Gm+2*w+1)}')
    A('s_waitcnt lgkmcnt(0)')
    for k in range(3): A(f'v_mul_f32 {v(r0+k)}, {v(Gm)}, {v(vF+k)}')
    for w in range(1, 4):
        for k in range(3): A(f'v_fmac_f32 {v(r0+k)}, {v(Gm+2*w)}, {v(vF+4*w+k)}')
    A(f'buffer_store_dwordx4 {v(r0,4)}, {v(vL16)}, {srd(rWS)}, s{sT1} offen sc1')
    A(f's_mov_b64 exec, 1\nbuffer_store_dwordx4 {v(ml,4)}, {v(vL16)}, {srd(rWS)}, s{sT1} offen offset:1024 sc1\ns_mov_b64 exec, -1')
    A(f's_cmp_eq_u32 s{sHASW1}, 0\ns_cbranch_scc1 L_hdone')
    G = vF + 16
    if twostage:
        pass
    poll('L_py', [wsload(G+4*p, vG4, rK+p) for p in range(8)], [G+4*p+3 for p in range(8)], 6)
    stamp(6)
    for k in range(2):
        for p in range(4): A(f'v_add_f32 {v(G+8*p+k)}, {v(G+8*p+k)}, {v(G+8*p+4+k)}')
        A(f'v_add_f32 {v(G+k)}, {v(G+k)}, {v(G+8+k)}\nv_add_f32 {v(G+16+k)}, {v(G+16+k)}, {v(G+24+k)}\nv_add_f32 {v(G+k)}, {v(G+k)}, {v(G+16+k)}')
    for k in range(2): xsum(G+k, vT+k, full=False)
    rnd2(G, G+1, vT)
    A(f'v_mul_f32 {v(G)}, {v(G)}, {v(vG0)}\nv_mul_f32 {v(G+1)}, {v(G+1)}, {v(vG1)}')
    rnd2(G, G+1, vT)
    A(f'v_add_f32 {v(G)}, {v(G)}, {v(vX0)}\nv_add_f32 {v(G+1)}, {v(G+1)}, {v(vX1)}\nv_cvt_pk_bf16_f32 {v(G)}, {v(G)}, {v(G+1)}')
    A(f's_mov_b64 exec, 0xffff\nglobal_store_short {v(vXO)}, {v(G)}, {sp(sOUT)}\nglobal_store_short_d16_hi {v(vXO)}, {v(G)}, {sp(sOUT)} offset:32')
    A(f's_cmp_lg_u32 s{sU2}, 0\ns_cbranch_scc1 L_hdone')
    A(f's_mov_b64 exec, 1\nv_mov_b32 {v(vT)}, 0\nglobal_store_dword {v(vT)}, {v(vTAG)}, {sp(sWS)} sc1')
    A('L_hdone:')
    if stamps:
        A('s_waitcnt vmcnt(0)')
        stamp(7)
        write_stamps(256, 'h')
    A('L_end:\ns_endpgm')
    A(f'''.section .rodata,"a"
.p2align 6
.amdhsa_kernel {NAME}_kernel
  .amdhsa_next_free_vgpr {NV}
  .amdhsa_next_free_sgpr 100
  .amdhsa_accum_offset {NV}
  .amdhsa_group_segment_fixed_size 0
  .amdhsa_kernarg_size 96
  .amdhsa_user_sgpr_count 2
  .amdhsa_user_sgpr_kernarg_segment_ptr 1
  .amdhsa_system_sgpr_workgroup_id_x 1
  .amdhsa_float_denorm_mode_32 3
.end_amdhsa_kernel''')
    open(fn, 'w').write('\n'.join(L) + '\n')

if __name__ == '__main__':
    fn = sys.argv[1]
    kw = {}
    for a in sys.argv[2:]:
        k, val = a.split('=')
        try: val = int(val)
        except ValueError: val = val.replace('+', ' ').replace('def', '')
        kw[k] = val
    gen(fn, **kw)
```

```python
import sys, os, struct
NAME = 'recurrent_scan__gqa_block_cached__glu_gated_reglu__decode'

HEADER = '''; Kernarg layout (96 bytes, ptrs only, base s[0:1]):
'''

def f2u(x): return struct.unpack('<I', struct.pack('<f', x))[0]

def gen(fn, stamps=False, pace=8, up=4, mapping='x', kvil=False, twostage=False, spin=1<<15, knt='nt', vnt='nt', w1nt='nt', w2nt='nt', sleep=0, fixdur=0, D=6, nomem=0, now=0, nopoll=0, nocomp=0, pre=2, force=-1, cap=400, thr=100, noex=0, sync=1, skipx=1, hsl=2, gat=27, nonuma=0, al=1, glate=1, touch=0, late=0, lred=1, pq=0, po=0, py=0, inl=1, nend=4, Dend=18, dbgv=0, stfl='sc1', slfl='sc1'):
    L = []
    def A(s):
        for ln in s.strip('\n').split('\n'):
            L.append(ln.strip())
    SLOT = 9216; RING = 2*SLOT; WT = 12288
    WREG = 4*RING
    MISC = WREG + 4*WT
    XN = MISC; OBF = MISC
    RED = MISC + 1536
    OCB = RED + 8192
    QL = RED + 12288
    HL = QL + 384
    FLG = HL + 768
    STG = FLG + 64
    LDS = 147456
    assert STG + 6144 <= LDS
    P1 = 0x1000; OP = 0x100000; YP = 0x200000; BP = 0x300000; VOTE = 0x3F0000; SCO = 0x400000; WSZ = 0x700000
    TAGC = 0x9E3779B9
    sX, sK, sV, sWQ, sWO, sWG, sWU, sWD, sOUT, sDBG, sWS = 4, 6, 8, 10, 12, 16, 18, 20, 22, 24, 26
    rK, rV, rW1, rW2, rWS = 28, 32, 36, 40, 44
    sWAVE, sH, sJ, sB, sHALF = 48, 49, 50, 51, 52
    sBETA, sPI, sHASW1, sRS = 53, 54, 55, 56
    sSLA, sSLB, sSLC = 57, 58, 59
    sOFF, sT, sCNT = 60, 61, 62
    sSC, sL2E = 63, 64
    sT0, sT1, sT2, sT3 = 65, 66, 67, 68
    sU2, sR, sCB, sRB, sSLC2 = 69, 70, 71, 72, 73
    sN0, sN1, sFLV, sFL = 70, 71, 72, 73
    sU, sPUB, sNEG, sVB = 14, 15, 34, 32
    sRHO = 3
    sXD, sXS = 92, 93
    sCM = 94
    sSTG = 35
    sP = 74
    sST = 76
    def srd(r): return f's[{r}:{r+3}]'
    def sp(r): return f's[{r}:{r+1}]'
    vLANE, vL16, vTAG, vKA0, vVA0, vA, vM, vML, vLS, vAL = 1, 2, 3, 4, 5, 6, 7, 8, 9, 10
    vT = 12
    vS = 28
    vP = 36
    vQ = 40
    vF = 64
    vO = 112
    vW = 160
    vR = 208
    vM2B, vM2X, vM3, vSK, vSV, vFA, vONE, vPA = range(212, 220)
    vSRC = 220
    vKB = 224
    vVB = 228
    vAD = 236
    NV = 244
    def v(r, n=1): return f'v{r}' if n == 1 else f'v[{r}:{r+n-1}]'
    inhelper = [False]
    def pstamp(i):
        if stamps == 3: A(f's_memrealtime {sp(sST+2*i)}\ns_waitcnt lgkmcnt(0)')
    def stamp(i):
        if stamps == 3 and i < 7 and not inhelper[0]: return
        if stamps:
            A(f's_memrealtime {sp(sST+2*i)}\ns_waitcnt lgkmcnt(0)')
    def write_stamps(rec_base, lbl):
        if not stamps: return
        A(f's_lshl_b32 s{sT0}, s2, 6\ns_add_u32 s{sT0}, s{sT0}, {0x20000000 + rec_base*64}')
        A(f's_add_u32 s{sP}, s{sWS}, s{sT0}\ns_addc_u32 s{sP+1}, s{sWS+1}, 0')
        A(f's_mov_b64 exec, 1\nv_mov_b32 {v(vA)}, 0')
        for i in range(4):
            for k in range(4): A(f'v_mov_b32 {v(vT+k)}, s{sST+4*i+k}')
            A(f'global_store_dwordx4 {v(vA)}, {v(vT,4)}, {sp(sP)} offset:{16*i}\ns_nop 1')
    def xsum(r, t, op='v_add_f32', full=True):
        if full:
            for mode in ['quad_perm:[1,0,3,2]', 'quad_perm:[2,3,0,1]', 'row_half_mirror', 'row_mirror']:
                A(f's_nop 1\n{op}_dpp {v(r)}, {v(r)}, {v(r)} {mode} row_mask:0xf bank_mask:0xf')
        for sw in ['v_permlane16_swap_b32', 'v_permlane32_swap_b32']:
            A(f'v_mov_b32 {v(t)}, {v(r)}\ns_nop 1\n{sw} {v(r)}, {v(t)}\n{op} {v(r)}, {v(r)}, {v(t)}')
    def rnd(r, t):
        A(f'v_cvt_pk_bf16_f32 {v(t)}, {v(r)}, {v(r)}\nv_lshlrev_b32 {v(r)}, 16, {v(t)}')
    def rnd2(r0, r1, t):
        A(f'v_cvt_pk_bf16_f32 {v(t)}, {v(r0)}, {v(r1)}\nv_lshlrev_b32 {v(r0)}, 16, {v(t)}\nv_and_b32 {v(r1)}, 0xffff0000, {v(t)}')
    def dma_tile(soff, sslot, paced=None, lo=0, hi=9, fl='nt'):
        for i in range(lo, hi):
            A(f's_add_u32 m0, s{sslot}, {1024*i}')
            if i == lo or i % 3 == 0: A(f's_add_u32 s{sT0}, s{soff}, {3072*(i//3)}')
            elif not paced: A('s_nop 0')
            if paced: A(f's_waitcnt vmcnt({paced-1})')
            A(f'buffer_load_dwordx4 {v(vSRC+i%3)}, {srd(rK)}, s{sT0} offen {fl} lds')
    def block_params(default, sn):
        if default == 1: A(f's_cmp_eq_u32 s{sHALF}, 1')
        else: A(f's_bitcmp1_b64 {sp(sCM)}, s{sT}')
        A(f's_addc_u32 s{sT1}, s{sU}, s{sU}\ns_lshl_b32 s{sT1}, s{sT1}, 6\ns_add_u32 s{sT2}, s{sT1}, 65\ns_add_u32 s{sT1}, s{sT1}, 1')
        A(f's_mul_i32 s{sT1}, s{sT1}, 43691\ns_mul_i32 s{sT2}, s{sT2}, 43691\ns_lshr_b32 s{sT1}, s{sT1}, 17\ns_lshr_b32 s{sT2}, s{sT2}, 17')
        A(f's_mul_i32 s{sOFF}, s{sT1}, 384\ns_sub_u32 s{sT1}, s{sT2}, s{sT1}\ns_mul_i32 s{sT2}, s{sT2}, 384\ns_min_u32 s{rK+2}, s{sT2}, {0 if nomem else 1572864}')
        if default == 2: A(f's_cmp_ge_u32 s{sT}, 46\ns_cselect_b32 s{rK+2}, 0, s{rK+2}\ns_add_u32 s{sU}, s{sU}, 4')
        else: A(f's_cmp_eq_u32 s{sT1}, 22\ns_cselect_b32 s{sn}, -1, 0\ns_add_u32 s{sU}, s{sU}, 4')
    def poll(lbl, loads, tagregs, code):
        A(f's_mov_b32 s{sCNT}, {spin}\n{lbl}:')
        for x in loads: A(x)
        A('s_waitcnt vmcnt(0)')
        A(f'v_xor_b32 {v(vT)}, {v(tagregs[0])}, {v(vTAG)}')
        for r in tagregs[1:]:
            A(f'v_xor_b32 {v(vT+1)}, {v(r)}, {v(vTAG)}\nv_or_b32 {v(vT)}, {v(vT)}, {v(vT+1)}')
        if nopoll and lbl != 'L_pq': A(f's_branch {lbl}_ok')
        A(f'v_cmp_ne_u32 vcc, 0, {v(vT)}\ns_cbranch_vccz {lbl}_ok')
        if sleep: A(f's_sleep {sleep}')
        A(f's_sub_u32 s{sCNT}, s{sCNT}, 1\ns_cmp_lg_u32 s{sCNT}, 0\ns_cbranch_scc1 {lbl}')
        A(f'v_mov_b32 {v(vT)}, 0\nv_mov_b32 {v(vT+1)}, {code}\nglobal_store_dword {v(vT)}, {v(vT+1)}, {sp(sDBG)}')
        A(f'{lbl}_ok:')
    def poll2(lbl, mk, n, base, alt, code, delay, use):
        def check(b, ok):
            A(f's_waitcnt vmcnt({n})')
            A(f'v_xor_b32 {v(vT)}, {v(b+3)}, {v(vTAG)}')
            for k in range(1, n): A(f'v_xor_b32 {v(vT+1)}, {v(b+4*k+3)}, {v(vTAG)}\nv_or_b32 {v(vT)}, {v(vT)}, {v(vT+1)}')
            A(f'v_cmp_ne_u32 vcc, 0, {v(vT)}\ns_cbranch_vccz {ok}')
        A(f's_mov_b32 s{sCNT}, {spin}')
        for x in mk(base): A(x)
        A(f's_sleep {delay}\n{lbl}:')
        for x in mk(alt): A(x)
        check(base, f'{lbl}_ok')
        for x in mk(base): A(x)
        check(alt, f'{lbl}_okb')
        A(f's_sub_u32 s{sCNT}, s{sCNT}, 1\ns_cmp_lg_u32 s{sCNT}, 0\ns_cbranch_scc1 {lbl}')
        A(f'v_mov_b32 {v(vT)}, 0\nv_mov_b32 {v(vT+1)}, {code}\nglobal_store_dword {v(vT)}, {v(vT+1)}, {sp(sDBG)}')
        A(f'{lbl}_okb:')
        use(alt)
        A(f's_branch {lbl}_done\n{lbl}_ok:')
        use(base)
        A(f'{lbl}_done:')
    def wsload(dst, voff, soff): return f'buffer_load_dwordx4 {v(dst,4)}, {v(voff)}, {srd(rWS)}, s{soff} offen sc1'
    def put3_bf16(r0, t, va):
        A(f'v_cvt_pk_bf16_f32 {v(t)}, {v(r0)}, {v(r0+1)}\nv_cvt_pk_bf16_f32 {v(t+1)}, {v(r0+2)}, {v(r0+2)}')
        A(f'ds_write_b16 {v(va)}, {v(t)}\nds_write_b16_d16_hi {v(va)}, {v(t)} offset:2\nds_write_b16 {v(va)}, {v(t+1)} offset:4')
    def fdiv(q, n, d, r, e):
        A(f'v_mul_f32 {v(q)}, {v(n)}, {v(r)}\nv_fma_f32 {v(e)}, -{v(q)}, {v(d)}, {v(n)}\nv_fma_f32 {v(q)}, {v(e)}, {v(r)}, {v(q)}')
    def trread_mfma(ntile, va, off2, acc, first, frag, aop, va2=None, extra=None):
        def rd(t):
            if va2 is None:
                A(f'ds_read_b64_tr_b16 {v(frag+4*t,2)}, {v(va)} offset:{32*t}')
                A(f'ds_read_b64_tr_b16 {v(frag+4*t+2,2)}, {v(va)} offset:{32*t+off2}')
            else:
                A(f'ds_read_b64_tr_b16 {v(frag+4*t,2)}, {v(va+(t&3))} offset:{128*(t>>2)}')
                A(f'ds_read_b64_tr_b16 {v(frag+4*t+2,2)}, {v(va2+(t&3))} offset:{128*(t>>2)}')
        pre = min(4, ntile)
        for t in range(pre): rd(t)
        for t in range(ntile):
            if t + pre < ntile: rd(t + pre)
            if extra and t + pre == ntile - 1: A(extra)
            left = min(ntile - 1, t + pre) - t
            A(f's_waitcnt lgkmcnt({2*left + (1 if extra and t + pre >= ntile - 1 else 0)})')
            c = '0' if first else v(acc+4*t, 4)
            A(f'v_mfma_f32_16x16x32_bf16 {v(acc+4*t,4)}, {v(aop,4)}, {v(frag+4*t,4)}, {c}')

    A(HEADER)
    A(f'; @launch grid=(256,1,1) block=(320,1,1) lds={LDS}')
    A('.amdgcn_target "amdgcn-amd-amdhsa--gfx950"\n.text')
    if al: A('.p2align 12')
    A(f'.globl {NAME}_kernel\n.p2align 8\n.type {NAME}_kernel,@function\n{NAME}_kernel:')
    A('s_cmp_ge_u32 s2, 256\ns_cbranch_scc1 L_end')
    A('s_load_dwordx16 s[4:19], s[0:1], 0\ns_load_dwordx8 s[20:27], s[0:1], 64')
    if fixdur: A('s_memrealtime s[96:97]')
    if stamps:
        A(f's_memrealtime {sp(sST)}')
        for i in range(2, 16): A(f's_mov_b32 s{sST+i}, 0')
    A(f'v_lshrrev_b32 {v(vT)}, 6, v0\nv_and_b32 {v(vLANE)}, 63, v0')
    A(f'v_readfirstlane_b32 s{sWAVE}, {v(vT)}')
    A(f'v_lshlrev_b32 {v(vL16)}, 4, {v(vLANE)}')
    A(f's_lshr_b32 s{sT0}, s2, 3\ns_lshl_b32 s{sT0}, s{sT0}, 2\ns_and_b32 s{sT1}, s2, 3\ns_add_u32 s{sRHO}, s{sT0}, s{sT1}')
    A(f's_bfe_u32 s{sHALF}, s2, 0x10002\ns_lshr_b32 s{sB}, s{sRHO}, 5\ns_and_b32 s{sH}, s{sRHO}, 31\ns_lshl_b32 s{sJ}, s{sB}, 1\ns_add_u32 s{sJ}, s{sJ}, s{sHALF}')
    A(f's_mul_i32 s{sU2}, s{sH}, 3\ns_add_u32 s{sU2}, s{sU2}, s{sJ}')
    A(f's_mov_b32 s{sSC}, {f2u(192**-0.5):#x}\ns_mov_b32 s{sL2E}, {f2u(1.4426950408889634):#x}')
    def ws_srd():
        A(f's_mov_b32 s{rWS}, s{sWS}\ns_mov_b32 s{rWS+1}, s{sWS+1}')
    A(f's_mov_b32 s{rWS+2}, {WSZ}\ns_mov_b32 s{rWS+3}, 0x20000')
    def vote_slot(src, sidx, sslot):
        A(f's_mul_i32 s{sidx}, s{src}, 3\ns_lshr_b32 s{sidx}, s{sidx}, 5\ns_lshl_b32 s{sslot}, s{sidx}, 5\ns_add_u32 s{sslot}, s{sslot}, 2\ns_mul_i32 s{sslot}, s{sslot}, 43691\ns_lshr_b32 s{sslot}, s{sslot}, 17\ns_sub_u32 s{sslot}, s{src}, s{sslot}')
    sIDX, sSLT = 40, 41
    A(f's_cmp_eq_u32 s{sWAVE}, 4\ns_cbranch_scc0 L_noprobe')
    vote_slot(2, sIDX, sSLT)
    A(f's_cmp_ge_u32 s{sIDX}, 12\ns_cselect_b32 s{sT0}, 12, 0\ns_sub_u32 s{sT0}, s{sIDX}, s{sT0}')
    A(f's_lshl_b32 s{sT0}, s{sT0}, 3\ns_and_b32 s{sT1}, s{sSLT}, 7\ns_add_u32 s{sT0}, s{sT0}, s{sT1}\ns_lshl_b32 s{sT0}, s{sT0}, 21')
    A(f's_lshr_b32 s{sT1}, s{sSLT}, 3\ns_lshl_b32 s{sT1}, s{sT1}, 12\nv_mov_b32 {v(vT+4)}, 0\ns_mov_b64 exec, 1\ns_cmp_ge_u32 s{sIDX}, 12')
    A('s_waitcnt lgkmcnt(0)')
    A(f's_cselect_b32 s{sP}, s{sV}, s{sK}\ns_cselect_b32 s{sP+1}, s{sV+1}, s{sK+1}\ns_add_u32 s{sP}, s{sP}, s{sT0}\ns_addc_u32 s{sP+1}, s{sP+1}, 0')
    A(f's_bfe_u32 s{sT0}, s{sP}, 0x10015\ns_lshl_b32 s{sT0}, s{sT0}, 13\ns_add_u32 s{sT0}, s{sT0}, s{sT1}')
    A(f'v_mov_b32 {v(vT)}, s{sT0}\nv_xor_b32 {v(vT+1)}, 0x2000, {v(vT)}')
    A(f'global_load_dword {v(vT+2)}, {v(vT)}, {sp(sP)} nt\nglobal_load_dword {v(vT+3)}, {v(vT+1)}, {sp(sP)} nt\ns_mov_b64 exec, -1')
    A('s_barrier')
    ws_srd()
    A('s_waitcnt vmcnt(1)\ns_memtime s[36:37]\ns_waitcnt vmcnt(0)\ns_memtime s[38:39]')
    A(f'global_load_dword {v(vTAG)}, {v(vT+4)}, {sp(sWS)} sc1\ns_branch L_helper\nL_noprobe:')

    sO1, sO2, sOK = sN0, sN1, sFLV
    A(f's_cmp_ge_u32 s{sJ}, 3\ns_cbranch_scc0 L_w1mlp')
    A(f's_mov_b32 s{sBETA}, s{sH}\ns_sub_u32 s{sPI}, s{sJ}, 3\ns_mov_b32 s{sRS}, 12288\ns_mov_b32 s{sHASW1}, 1\ns_mul_i32 s{sO1}, s{sH}, 384')
    A('s_branch L_w1done\nL_w1mlp:')
    A(f's_mul_i32 s{sT1}, s{sU2}, 52429\ns_lshr_b32 s{sT1}, s{sT1}, 18')
    A(f's_mul_i32 s{sT2}, s{sT1}, 5\ns_sub_u32 s{sPI}, s{sU2}, s{sT2}\ns_add_u32 s{sBETA}, s{sT1}, 32\ns_mov_b32 s{sRS}, 3072')
    A(f's_cmp_lt_u32 s{sU2}, 80\ns_cselect_b32 s{sHASW1}, 1, 0\ns_and_b32 s{sT1}, s{sT1}, 7\ns_mul_i32 s{sO1}, s{sT1}, 384')
    A('L_w1done:')
    A(f's_lshl_b32 s{sT1}, s{sPI}, 2\ns_add_u32 s{sT1}, s{sT1}, s{sWAVE}\ns_lshl_b32 s{sT1}, s{sT1}, 5\ns_mul_i32 s{sT1}, s{sT1}, s{sRS}\ns_add_u32 s{sO1}, s{sO1}, s{sT1}')
    A(f's_mul_i32 s{sT1}, s{sRS}, 31\ns_add_u32 s{sT1}, s{sT1}, 384\ns_mul_i32 s{rW1+2}, s{sT1}, s{sHASW1}\ns_mov_b32 s{rW1+3}, 0x20000')
    if now: A(f's_mov_b32 s{rW1+2}, 0')
    for p in range(3):
        A(f'v_add_u32 {v(vT)}, {64*p}, {v(vLANE)}\nv_mul_u32_u24 {v(vT+1)}, 2731, {v(vT)}\nv_lshrrev_b32 {v(vT+1)}, 16, {v(vT+1)}')
        A(f'v_mul_u32_u24 {v(vT+2)}, 24, {v(vT+1)}\nv_sub_u32 {v(vT)}, {v(vT)}, {v(vT+2)}\nv_lshlrev_b32 {v(vT)}, 4, {v(vT)}')
        A(f'v_mad_u32_u24 {v(vS+p)}, {v(vT+1)}, s{sRS}, {v(vT)}')
        A(f'v_and_b32 {v(vT+1)}, 6, {v(vT+1)}\nv_lshlrev_b32 {v(vT+1)}, 4, {v(vT+1)}\nv_xor_b32 {v(vT)}, {v(vT)}, {v(vT+1)}\nv_lshl_add_u32 {v(vSRC+p)}, {v(vT+2)}, 4, {v(vT)}')
    A(f's_mul_i32 s{sSLA}, s{sWAVE}, {RING}\ns_add_u32 s{sSLB}, s{sSLA}, {SLOT}\ns_mul_i32 s{sSLC}, s{sWAVE}, {WT}\ns_add_u32 s{sSLC}, s{sSLC}, {WREG}')
    A(f's_mul_i32 s{sT0}, s{sWAVE}, 1280\nv_lshlrev_b32 {v(vA)}, 2, {v(vLANE)}\nv_add_u32 {v(vA)}, s{sT0}, {v(vA)}\ns_mul_i32 s{sOK}, s{sRHO}, 1572864')
    A(f's_cmp_lt_u32 s{sBETA}, 40')
    A('s_waitcnt lgkmcnt(0)')
    pstamp(1)
    if stamps == 3: A(f's_cmp_lt_u32 s{sBETA}, 40')
    A(f's_cselect_b32 s{rW1}, s{sWG}, s{sWU}\ns_cselect_b32 s{rW1+1}, s{sWG+1}, s{sWU+1}\ns_cmp_lt_u32 s{sBETA}, 32\ns_cselect_b32 s{rW1}, s{sWQ}, s{rW1}\ns_cselect_b32 s{rW1+1}, s{sWQ+1}, s{rW1+1}')
    A(f's_add_u32 s{rW1}, s{rW1}, s{sO1}\ns_addc_u32 s{rW1+1}, s{rW1+1}, 0')
    if touch:
        A(f's_load_dword s96, {sp(rW1)}, 0\ns_load_dword s97, {sp(sX)}, 0\ns_load_dword s98, {sp(sK)}, s{sOK}')
    A('s_barrier')
    pstamp(2)
    for k in range(5): A(f'global_load_dword {v(vF+k)}, {v(vA)}, {sp(sX)} offset:{256*k}')
    def w1_issue():
        A(f's_lshl_b32 s{sT2}, s{sRS}, 3\ns_mov_b32 s{sT1}, 0')
        for i in range(12):
            A(f's_add_u32 m0, s{sSLC}, {1024*i}')
            A(f's_add_u32 s{sT1}, s{sT1}, s{sT2}' if i and i % 3 == 0 else 's_nop 0')
            A(f'buffer_load_dwordx4 {v(vS+i%3)}, {srd(rW1)}, s{sT1} offen {w1nt} lds')
    if late:
        assert up == 0
        A(f's_cmp_ge_u32 s{sJ}, 3\ns_cbranch_scc0 L_w1late')
    w1_issue()
    if late: A('L_w1late:')
    A(f'v_mov_b32 {v(vT)}, 0\nglobal_load_dword {v(vTAG)}, {v(vT)}, {sp(sWS)} sc1')
    pstamp(3)
    ws_srd()
    A(f's_add_u32 s{rK}, s{sK}, s{sOK}\ns_addc_u32 s{rK+1}, s{sK+1}, 0\ns_mov_b32 s{rK+3}, 0x20000')
    A(f's_add_u32 s{sVB}, s{sV}, s{sOK}\ns_addc_u32 s{sVB+1}, s{sV+1}, 0')
    A(f's_mov_b32 s{sU}, s{sWAVE}')
    block_params(1, sN0)
    dma_tile(sOFF, sSLA, None, 0, up, knt)
    A(f's_cmp_lt_u32 s{sJ}, 5\ns_cbranch_scc0 L_w2down')
    A(f's_mul_i32 s{sT1}, s{sH}, {192*1280}\ns_lshl_b32 s{sT2}, s{sJ}, 8\ns_add_u32 s{sT1}, s{sT1}, s{sT2}')
    A(f's_add_u32 s{rW2}, s{sWO}, s{sT1}\ns_addc_u32 s{rW2+1}, s{sWO+1}, 0\ns_mov_b32 s{rW2+2}, {47*1280+256}\ns_branch L_w2done')
    A('L_w2down:')
    A(f's_sub_u32 s{sT3}, s{sU2}, 5\ns_mul_i32 s{sT1}, s{sT3}, 52429\ns_lshr_b32 s{sT1}, s{sT1}, 18\ns_mul_i32 s{sT2}, s{sT1}, 5\ns_sub_u32 s{sT2}, s{sT3}, s{sT2}')
    A(f's_mul_i32 s{sT1}, s{sT1}, {96*1280}\ns_lshl_b32 s{sT2}, s{sT2}, 8\ns_add_u32 s{sT1}, s{sT1}, s{sT2}')
    A(f's_add_u32 s{rW2}, s{sWD}, s{sT1}\ns_addc_u32 s{rW2+1}, s{sWD+1}, 0')
    A(f's_cmp_lt_u32 s{sT3}, 80\ns_cselect_b32 s{rW2+2}, {47*1280+256}, 0\ns_cmp_lt_u32 s{sWAVE}, 2\ns_cselect_b32 s{rW2+2}, s{rW2+2}, 0')
    A('L_w2done:')
    A(f's_mul_i32 s{sT1}, s{sWAVE}, {48*1280}\ns_add_u32 s{rW2}, s{rW2}, s{sT1}\ns_addc_u32 s{rW2+1}, s{rW2+1}, 0\ns_mov_b32 s{rW2+3}, 0x20000')
    if now: A(f's_mov_b32 s{rW2+2}, 0')
    A(f'v_lshrrev_b32 {v(vT)}, 2, {v(vLANE)}\nv_mul_u32_u24 {v(vT)}, 384, {v(vT)}\nv_and_b32 {v(vT+1)}, 3, {v(vLANE)}\nv_lshl_add_u32 {v(vVA0)}, {v(vT+1)}, 3, {v(vT)}')
    if late:
        A(f's_cmp_ge_u32 s{sJ}, 3\ns_cbranch_scc1 L_xw\ns_waitcnt vmcnt(0)\nL_xw:')
    A(f's_waitcnt vmcnt({1+12+up})')
    pstamp(4)
    X = vF + 8
    for k in range(5):
        A(f'v_lshlrev_b32 {v(X+2*k)}, 16, {v(vF+k)}\nv_and_b32 {v(X+2*k+1)}, 0xffff0000, {v(vF+k)}')
    a = vT
    A(f'v_add_f32 {v(a)}, {v(X)}, {v(X+1)}')
    for k in range(2, 10): A(f'v_add_f32 {v(a)}, {v(a)}, {v(X+k)}')
    xsum(a, a+1)
    A(f'v_mul_f32 {v(a)}, {f2u(1/640):#x}, {v(a)}')
    b_ = vT+2
    A(f'v_sub_f32 {v(a+1)}, {v(X)}, {v(a)}\nv_mul_f32 {v(b_)}, {v(a+1)}, {v(a+1)}')
    for k in range(1, 10): A(f'v_sub_f32 {v(a+1)}, {v(X+k)}, {v(a)}\nv_fmac_f32 {v(b_)}, {v(a+1)}, {v(a+1)}')
    xsum(b_, a+1)
    A(f'v_mul_f32 {v(b_)}, {f2u(1/640):#x}, {v(b_)}')
    rnd2(a, b_, a+1)
    A(f'v_add_f32 {v(b_)}, {f2u(1e-5):#x}, {v(b_)}')
    rnd(b_, a+1)
    c_ = vT+3
    A(f'v_sqrt_f32 {v(c_)}, {v(b_)}\ns_nop 0\nv_rcp_f32 {v(c_+1)}, {v(c_)}\nv_fma_f32 {v(a+1)}, -{v(c_)}, {v(c_)}, {v(b_)}')
    A(f'v_mul_f32 {v(c_+1)}, 0.5, {v(c_+1)}\nv_fma_f32 {v(c_)}, {v(a+1)}, {v(c_+1)}, {v(c_)}')
    rnd(c_, a+1)
    A(f'v_rcp_f32 {v(c_+1)}, {v(c_)}')
    A(f'v_mov_b32 {v(vT+6)}, {v(X)}\nv_mov_b32 {v(vT+7)}, {v(X+1)}')
    for k in range(1, 5):
        A(f's_cmp_eq_u32 s{sPI}, {k}\ns_cselect_b64 vcc, -1, 0\nv_cndmask_b32 {v(vT+6)}, {v(vT+6)}, {v(X+2*k)}, vcc\nv_cndmask_b32 {v(vT+7)}, {v(vT+7)}, {v(X+2*k+1)}, vcc')
    A(f'v_sub_f32 {v(vT+6)}, {v(vT+6)}, {v(a)}\nv_sub_f32 {v(vT+7)}, {v(vT+7)}, {v(a)}')
    rnd2(vT+6, vT+7, a+1)
    fdiv(vT+8, vT+6, c_, c_+1, a+1)
    fdiv(vT+9, vT+7, c_, c_+1, a+1)
    A(f'v_cvt_pk_bf16_f32 {v(vT+8)}, {v(vT+8)}, {v(vT+9)}')
    A(f's_lshl_b32 s{sT1}, s{sWAVE}, 8\ns_add_u32 s{sT1}, s{sT1}, {XN}\nv_lshlrev_b32 {v(vA)}, 2, {v(vLANE)}\nv_add_u32 {v(vA)}, s{sT1}, {v(vA)}')
    A(f'ds_write_b32 {v(vA)}, {v(vT+8)}')
    A(f'v_bfe_u32 {v(vT)}, {v(vLANE)}, 2, 2\nv_lshlrev_b32 {v(vT)}, 8, {v(vT)}\nv_lshrrev_b32 {v(vT+1)}, 4, {v(vLANE)}\nv_lshl_add_u32 {v(vT)}, {v(vT+1)}, 3, {v(vT)}')
    A(f's_lshl_b32 s{sT1}, s{sWAVE}, 6\ns_add_u32 s{sT1}, s{sT1}, {XN}\nv_add_u32 {v(vA)}, s{sT1}, {v(vT)}')
    A('s_waitcnt lgkmcnt(0)\ns_barrier')
    if stamps == 1: stamp(1)
    pstamp(5)
    A(f'ds_read2_b64 {v(vP,4)}, {v(vA)} offset0:0 offset1:4')
    if late:
        A(f's_cmp_ge_u32 s{sJ}, 3\ns_cbranch_scc1 L_w1early')
        w1_issue()
        A('L_w1early:')
    k0a = max(up, min(9, pace))
    dma_tile(sOFF, sSLA, pace, up, k0a, knt)
    A(f'v_add_u32 {v(vA)}, s{sSLC}, {v(vVA0)}')
    A(f's_waitcnt vmcnt({k0a}) lgkmcnt(0)')
    pstamp(6)
    trread_mfma(12, vA, 6144, vO, True, vF, vP)
    A(f's_mul_i32 s{sT1}, s{sWAVE}, 3072\ns_add_u32 s{sT1}, s{sT1}, {RED}')
    A(f'v_lshrrev_b32 {v(vT)}, 4, {v(vLANE)}\nv_mul_u32_u24 {v(vT)}, 768, {v(vT)}\nv_and_b32 {v(vT+1)}, 15, {v(vLANE)}\nv_lshl_add_u32 {v(vT)}, {v(vT+1)}, 2, {v(vT)}\nv_add_u32 {v(vA)}, s{sT1}, {v(vT)}')
    A('s_nop 2')
    for t in range(12): A(f'ds_write_b32 {v(vA)}, {v(vO+4*t)} offset:{64*t}')
    A(f's_mul_i32 s{sT1}, s{sWAVE}, 768\ns_add_u32 s{sT1}, s{sT1}, {RED}\nv_mul_u32_u24 {v(vA)}, 12, {v(vLANE)}\nv_add_u32 {v(vA)}, s{sT1}, {v(vA)}')
    A('s_waitcnt lgkmcnt(0)\ns_barrier')
    for w in range(4):
        for k in range(3): A(f'ds_read_b32 {v(vF+4*w+k)}, {v(vA)} offset:{3072*w+4*k}')
    A(f'v_lshrrev_b32 {v(vT)}, 4, {v(vLANE)}\nv_mul_u32_u24 {v(vT)}, 1280, {v(vT)}\nv_and_b32 {v(vT+1)}, 15, {v(vLANE)}\nv_lshl_add_u32 {v(vS)}, {v(vT+1)}, 4, {v(vT)}')
    A(f's_mul_i32 s{sT1}, s{sBETA}, 5\ns_add_u32 s{sT1}, s{sT1}, s{sPI}\ns_lshl_b32 s{sT1}, s{sT1}, 2\ns_add_u32 s{sT1}, s{sT1}, s{sWAVE}\ns_lshl_b32 s{sT1}, s{sT1}, 10\ns_add_u32 s{sT1}, s{sT1}, {P1}')
    A(f'v_add_u32 {v(vTAG)}, {TAGC:#x}, {v(vTAG)}')
    A('s_waitcnt lgkmcnt(0)')
    for k in range(3):
        A(f'v_add_f32 {v(vF+k)}, {v(vF+k)}, {v(vF+4+k)}\nv_add_f32 {v(vF+8+k)}, {v(vF+8+k)}, {v(vF+12+k)}')
    for k in range(3): A(f'v_add_f32 {v(vF+k)}, {v(vF+k)}, {v(vF+8+k)}')
    A(f'v_mov_b32 {v(vF+3)}, {v(vTAG)}')
    A(f's_cmp_eq_u32 s{sHASW1}, 0\ns_cbranch_scc1 L_nopub1')
    A(f'buffer_store_dwordx4 {v(vF,4)}, {v(vL16)}, {srd(rWS)}, s{sT1} offen sc1')
    A('L_nopub1:')
    stamp(2)
    dma_tile(sOFF, sSLA, pace, k0a, 9, knt)
    A(f's_mov_b32 s{sT1}, 0')
    for i in range(12):
        A(f's_add_u32 m0, s{sSLC}, {1024*i}\ns_waitcnt vmcnt({pace-1})')
        A(f'buffer_load_dwordx4 {v(vS)}, {srd(rW2)}, s{sT1} offen {w2nt} lds')
        if i < 11: A(f's_add_u32 s{sT1}, s{sT1}, 5120')
    block_params(1, sN1)
    dma_tile(sOFF, sSLB, pace, 0, 9, knt)
    for t in range(12):
        for r in range(4): A(f'v_mov_b32 {v(vO+4*t+r)}, 0')
    A(f'v_mov_b32 {v(vM)}, {f2u(-1e30):#x}\nv_mov_b32 {v(vML)}, {f2u(-1e30):#x}\nv_mov_b32 {v(vLS)}, 0\ns_mov_b32 s{sNEG}, 0xff80ff80')
    A(f'v_lshrrev_b32 {v(vT+1)}, 4, {v(vLANE)}')
    for hf in range(2):
        A(f'v_and_b32 {v(vT)}, 15, {v(vLANE)}')
        if hf: A(f'v_min_u32 {v(vT)}, 5, {v(vT)}\nv_add_u32 {v(vT)}, 16, {v(vT)}')
        A(f'v_and_b32 {v(vT+2)}, 6, {v(vT)}\nv_xor_b32 {v(vT+2)}, {v(vT+2)}, {v(vT+1)}\nv_mul_u32_u24 {v(vT)}, 384, {v(vT)}')
        A(f'v_lshl_add_u32 {v(vKB+2*hf)}, {v(vT+2)}, 4, {v(vT)}\nv_xor_b32 {v(vT+2)}, 4, {v(vT+2)}\nv_lshl_add_u32 {v(vKB+2*hf+1)}, {v(vT+2)}, 4, {v(vT)}')
    for hf in range(2):
        A(f'v_lshrrev_b32 {v(vT)}, 2, {v(vLANE)}')
        if hf: A(f'v_min_u32 {v(vT)}, 5, {v(vT)}\nv_add_u32 {v(vT)}, 16, {v(vT)}')
        A(f'v_bfe_u32 {v(vT+2)}, {v(vT)}, 1, 2\nv_mul_u32_u24 {v(vT)}, 384, {v(vT)}\nv_and_b32 {v(vT+3)}, 3, {v(vLANE)}\nv_lshl_add_u32 {v(vT)}, {v(vT+3)}, 3, {v(vT)}')
        for k in range(4): A(f'v_xor_b32 {v(vT+3)}, {k}, {v(vT+2)}\nv_lshl_add_u32 {v(vVB+4*hf+k)}, {v(vT+3)}, 5, {v(vT)}')
    A(f'v_cmp_gt_u32 vcc, 16, {v(vLANE)}\nv_mov_b32 {v(vT)}, 0xffff\nv_mov_b32 {v(vT+2)}, 0xffff0000\nv_cndmask_b32 {v(vM3)}, 0, -1, vcc')
    A(f'v_cmp_eq_u32 vcc, 1, {v(vT+1)}\ns_mul_i32 s{sT1}, s{sWAVE}, 1536\ns_add_u32 s{sT1}, s{sT1}, {STG}\nv_cndmask_b32 {v(vM2B)}, {v(vM3)}, {v(vT)}, vcc\nv_cndmask_b32 {v(vM2X)}, 0, {v(vT+2)}, vcc')
    A(f'v_lshl_add_u32 {v(vSK)}, {v(vT+1)}, 4, s{sT1}\nv_add_u32 {v(vSV)}, {22*64}, {v(vSK)}\nv_mov_b32 {v(vFA)}, {FLG+8}\nv_mov_b32 {v(vONE)}, 1')
    A(f'v_add_u32 {v(vT)}, 352, {v(vLANE)}\nv_cmp_gt_u32 vcc, 32, {v(vLANE)}\nv_add_u32 {v(vT+2)}, -32, {v(vLANE)}\ns_nop 0\nv_cndmask_b32 {v(vT)}, {v(vT+2)}, {v(vT)}, vcc\nv_lshl_add_u32 {v(vPA)}, {v(vT)}, 2, s{sT1}')
    A(f's_add_u32 s{sSTG}, s{sT1}, 128')
    A(f'v_lshlrev_b32 {v(vA)}, 4, {v(vT+1)}\nv_add_u32 {v(vA)}, {QL}, {v(vA)}\nv_mov_b32 {v(vT+2)}, {FLG}')
    A('s_waitcnt vmcnt(9)')
    if stamps == 2: stamp(1)
    A('s_barrier')
    stamp(3)
    A(f'ds_read_b128 {v(vT+4,4)}, {v(vT+2)}')
    for s in range(6): A(f'ds_read_b128 {v(vQ+4*s,4)}, {v(vA)} offset:{64*s}')
    A(f's_mov_b32 s{sT}, 0\ns_waitcnt lgkmcnt(6)')
    A(f'v_readfirstlane_b32 s{sFL}, {v(vT+4)}\nv_readfirstlane_b32 s{sFLV}, {v(vT+5)}')
    A(f's_nop 0\ns_mov_b64 {sp(sCM)}, 0')
    grp = [0x3f, 0xff << 6, 0x3f << 14]
    for i in range(3):
        A(f's_bitcmp1_b32 s{sFL}, {i}\ns_cselect_b32 s{sT1}, {grp[i]:#x}, 0\ns_or_b32 s{sCM}, s{sCM}, s{sT1}')
        gv = grp[i] << 26
        A(f's_bitcmp1_b32 s{sFLV}, {i}')
        if gv & 0xffffffff: A(f's_cselect_b32 s{sT1}, {gv & 0xffffffff:#x}, 0')
        if gv >> 32: A(f's_cselect_b32 s{sT2}, {gv >> 32:#x}, 0\ns_or_b32 s{sCM+1}, s{sCM+1}, s{sT2}')
        if gv & 0xffffffff: A(f's_or_b32 s{sCM}, s{sCM}, s{sT1}')
    for k in range(2):
        A(f's_bitcmp1_b32 s{sRHO}, 0\ns_cselect_b32 s{sT1}, s{sFL if k else sFLV}, s{sFLV if k else sFL}\ns_bitcmp1_b32 s{sT1}, 2\ns_cselect_b32 s{sT1}, {5 << (20+k):#x}, 0\ns_or_b32 s{sCM}, s{sCM}, s{sT1}')
    A(f's_sub_u32 s{sT1}, 0, s{sHALF}\ns_xor_b32 s{sCM}, s{sCM}, s{sT1}\ns_xor_b32 s{sCM+1}, s{sCM+1}, s{sT1}')
    A(f's_mov_b32 s{sPUB}, 4\ns_waitcnt lgkmcnt(0)')
    def arrive():
        A(f's_mov_b64 exec, 1\nds_add_u32 {v(vFA)}, {v(vONE)}\ns_mov_b64 exec, -1')
    chk = f'ds_read_b64 {v(vR,2)}, {v(vFA)}'
    def step_wait(lbl):
        if not sync: return
        A(f'{lbl}:\ns_waitcnt lgkmcnt(0)\nv_readfirstlane_b32 s{sT1}, {v(vR)}\ns_nop 0\ns_cmp_ge_u32 s{sT1}, s{sPUB}\ns_cbranch_scc1 {lbl}_ok')
        A(f'{chk}\ns_branch {lbl}\n{lbl}_ok:')
    A('.p2align 6\nL_kloop:')
    for k in range(4): A(f'v_add_u32 {v(vAD+k)}, s{sSLA}, {v(vKB+k)}')
    A('s_waitcnt vmcnt(9)')
    arrive()
    for kt in range(2):
        for s in range(6):
            if not (nocomp & 1): A(f'ds_read_b128 {v(vF+24*kt+4*s,4)}, {v(vAD+2*kt+(s&1))} offset:{128*(s>>1)}')
    A(chk)
    A(f'v_and_or_b32 {v(vT+8)}, {v(vM2X)}, s{sN0}, {v(vM2B)}\ns_mov_b32 s{sN0}, s{sN1}')
    A(f's_cmp_lg_u32 s{sT}, 22\ns_cbranch_scc1 L_knosw')
    A(f's_mov_b32 s{rK}, s{sVB}\ns_mov_b32 s{rK+1}, s{sVB+1}\ns_sub_u32 s{sU}, s{sU}, 8')
    A('L_knosw:')
    block_params(0, sN1)
    for kt in range(2):
        for s in range(6):
            i = 6*kt + s
            A(f's_waitcnt lgkmcnt({12-i})')
            c = '0' if s == 0 else v(vS+4*kt, 4)
            A(f'v_mfma_f32_16x16x32_bf16 {v(vS+4*kt,4)}, {v(vF+4*i,4)}, {v(vQ+4*s,4)}, {c}')
    step_wait('L_ks')
    dma_tile(sOFF, sSLA, None, 0, pre, knt)
    A(f's_nop {max(0, 7 - 3*pre)}')
    for k in range(4): rnd2(vS+2*k, vS+2*k+1, vT+k)
    for k in range(8): A(f'v_mul_f32 {v(vS+k)}, s{sSC}, {v(vS+k)}')
    for k in range(4): A(f'v_cvt_pk_bf16_f32 {v(vT+k)}, {v(vS+2*k)}, {v(vS+2*k+1)}')
    A(f'v_bfi_b32 {v(vT+2)}, {v(vT+8)}, {v(vT+2)}, s{sNEG}\nv_bfi_b32 {v(vT+3)}, {v(vM3)}, {v(vT+3)}, s{sNEG}')
    A(f's_mov_b32 exec_lo, 0x00010001\ns_mov_b32 exec_hi, 0x00010001\nds_write_b128 {v(vSK)}, {v(vT,4)}\ns_mov_b64 exec, -1\nv_add_u32 {v(vSK)}, 64, {v(vSK)}')
    A(f's_cmp_eq_u32 s{sT}, 23\ns_cbranch_scc1 L_spa')
    dma_tile(sOFF, sSLA, D, pre, 9, knt)
    A(f's_mov_b32 s{sT1}, s{sSLA}\ns_mov_b32 s{sSLA}, s{sSLB}\ns_mov_b32 s{sSLB}, s{sT1}')
    A(f's_add_u32 s{sT}, s{sT}, 1\ns_add_u32 s{sPUB}, s{sPUB}, 4\ns_branch L_kloop')
    A('.p2align 6\nL_vloop:')
    for k in range(8): A(f'v_add_u32 {v(vAD+k)}, s{sSLA}, {v(vVB+k)}')
    A(f'ds_read_b128 {v(vP,4)}, {v(vSV)}\ns_cmp_eq_u32 s{sT}, 25\ns_cselect_b32 s{sT1}, {64-1536}, 64\nv_add_u32 {v(vSV)}, s{sT1}, {v(vSV)}')
    A(f's_cmp_lg_u32 s{sT}, 24\ns_cbranch_scc1 L_vnosw\ns_mov_b32 s{sU}, s{sWAVE}\nL_vnosw:')
    block_params(2, sN1)
    A('s_waitcnt vmcnt(9)')
    arrive()
    if not (nocomp & 2): trread_mfma(12, vAD, 0, vO, False, vF, vP, vAD+4, chk)
    else: A(chk)
    A(f's_cmp_eq_u32 s{sT}, 47\ns_cbranch_scc1 L_loopx')
    step_wait('L_vs')
    dma_tile(sOFF, sSLA, None, 0, pre, vnt)
    A(f's_cmp_eq_u32 s{sT}, 27\ns_cbranch_scc1 L_spb')
    A('L_vmid:')
    if nend:
        A(f's_cmp_ge_u32 s{sT}, {46-nend}\ns_cbranch_scc0 L_vpc')
        dma_tile(sOFF, sSLA, Dend if Dend < 18 else None, pre, 9, vnt)
        A('s_branch L_vpe\nL_vpc:')
    dma_tile(sOFF, sSLA, D, pre, 9, vnt)
    if nend: A('L_vpe:')
    A(f's_mov_b32 s{sT1}, s{sSLA}\ns_mov_b32 s{sSLA}, s{sSLB}\ns_mov_b32 s{sSLB}, s{sT1}')
    A(f's_add_u32 s{sT}, s{sT}, 1\ns_add_u32 s{sPUB}, s{sPUB}, 4\ns_branch L_vloop')
    A('L_loopx:')
    stamp(4)
    if lred:
        A('s_mov_b64 exec, 0xffff\ns_nop 3')
        for t in range(12): A(f'ds_write_b32 {v(vSK)}, {v(vO+4*t)} offset:{64*t}')
        A('s_mov_b64 exec, -1')
    else:
        xsum(vLS, vT)
        A(f's_lshl_b32 s{sT1}, s{sWAVE}, 10\ns_add_u32 s{sT1}, s{sT1}, {OCB}\nv_lshlrev_b32 {v(vA)}, 2, {v(vLANE)}\nv_add_u32 {v(vA)}, s{sT1}, {v(vA)}')
        A('s_mov_b64 exec, 0xffff')
        for t in range(12): A(f'ds_write_b32 {v(vA)}, {v(vO+4*t)} offset:{64*t}')
        A(f's_mov_b64 exec, 1\nds_write2_b32 {v(vA)}, {v(vML)}, {v(vLS)} offset0:192 offset1:193\ns_mov_b64 exec, -1')
    A('s_waitcnt lgkmcnt(0)\ns_barrier')
    A(f's_cmp_ge_u32 s{sJ}, 5\ns_cbranch_scc1 L_sdone')
    A(f'v_lshrrev_b32 {v(vT)}, 2, {v(vLANE)}\nv_lshlrev_b32 {v(vT)}, 8, {v(vT)}\nv_and_b32 {v(vT+1)}, 3, {v(vLANE)}\nv_lshl_add_u32 {v(vT)}, {v(vT+1)}, 3, {v(vT)}')
    A(f's_lshl_b32 s{sT1}, s{sWAVE}, 6\ns_add_u32 s{sT1}, s{sT1}, {WREG}\nv_add_u32 {v(vA)}, s{sT1}, {v(vT)}')
    for s in range(6):
        for t in range(2):
            f = vW + 24*t + 4*s
            A(f'ds_read_b64_tr_b16 {v(f,2)}, {v(vA)} offset:{8192*s+32*t}\nds_read_b64_tr_b16 {v(f+2,2)}, {v(vA)} offset:{8192*s+32*t+4096}')
        if s % 2 == 1 and s < 5: A('s_waitcnt lgkmcnt(4)')
    A(f's_lshl_b32 s{sT1}, s{sH}, 3\ns_lshl_b32 s{sT2}, s{sWAVE}, 1\ns_add_u32 s{sT1}, s{sT1}, s{sT2}\ns_lshl_b32 s{sT1}, s{sT1}, 11\ns_add_u32 s{sT1}, s{sT1}, {OP}\ns_add_u32 s{sT2}, s{sT1}, 2048')
    A(f'v_mov_b32 {v(vA)}, 1024')
    mko = lambda b: [wsload(b, vL16, sT1), wsload(b+4, vL16, sT2), wsload(b+8, vA, sT1), wsload(b+12, vA, sT2)]
    w0_, w1_, l0_, l1_, on_ = vQ, vQ+1, vQ+2, vQ+3, vQ+4
    def useo(b):
        A(f'v_max_f32 {v(vT)}, {v(b+8)}, {v(b+12)}\nv_sub_f32 {v(w0_)}, {v(b+8)}, {v(vT)}\nv_sub_f32 {v(w1_)}, {v(b+12)}, {v(vT)}\nv_exp_f32 {v(w0_)}, {v(w0_)}\nv_exp_f32 {v(w1_)}, {v(w1_)}\ns_nop 0')
        A(f'v_mul_f32 {v(l0_)}, {v(b+9)}, {v(w0_)}\nv_fmac_f32 {v(l0_)}, {v(b+13)}, {v(w1_)}\nv_rcp_f32 {v(l1_)}, {v(l0_)}')
        for k in range(3): A(f'v_mul_f32 {v(on_+k)}, {v(b+k)}, {v(w0_)}\nv_fmac_f32 {v(on_+k)}, {v(b+4+k)}, {v(w1_)}')
    if po: poll2('L_po', mko, 4, vF, vF+16, 4, po, useo)
    else:
        poll('L_po', mko(vF), [vF+3, vF+7, vF+11, vF+15], 4)
        useo(vF)
    stamp(5)
    A(f's_mul_i32 s{sT1}, s{sWAVE}, 384\ns_add_u32 s{sT1}, s{sT1}, {OBF}')
    A(f'v_mul_u32_u24 {v(vA)}, 6, {v(vLANE)}\nv_add_u32 {v(vA)}, s{sT1}, {v(vA)}')
    for k in range(3): fdiv(on_+4+k, on_+k, l0_, l1_, vT)
    put3_bf16(on_+4, vT, vA)
    A(f'v_bfe_u32 {v(vT+2)}, {v(vLANE)}, 2, 2\nv_mul_u32_u24 {v(vT+2)}, 384, {v(vT+2)}\nv_lshrrev_b32 {v(vT+3)}, 4, {v(vLANE)}\nv_lshl_add_u32 {v(vT+2)}, {v(vT+3)}, 3, {v(vT+2)}\nv_add_u32 {v(vA)}, {OBF}, {v(vT+2)}')
    A(f's_lshl_b32 s{sT1}, s{sJ}, 2\ns_add_u32 s{sT1}, s{sT1}, s{sWAVE}\ns_lshl_b32 s{sT1}, s{sT1}, 5\ns_add_u32 s{sT1}, s{sT1}, s{sH}\ns_lshl_b32 s{sT1}, s{sT1}, 10\ns_add_u32 s{sT1}, s{sT1}, {YP}')
    A('s_waitcnt lgkmcnt(0)\ns_barrier')
    for s in range(6): A(f'ds_read2_b64 {v(vO+4*s,4)}, {v(vA)} offset0:{8*s} offset1:{8*s+4}')
    for s in range(6):
        A(f's_waitcnt lgkmcnt({5-s})')
        for t in range(2):
            c = '0' if s == 0 else v(vS+4*t, 4)
            A(f'v_mfma_f32_16x16x32_bf16 {v(vS+4*t,4)}, {v(vO+4*s,4)}, {v(vW+24*t+4*s,4)}, {c}')
    A(f'v_mov_b32 {v(vT+2)}, {v(vTAG)}\nv_mov_b32 {v(vT+3)}, {v(vTAG)}\ns_nop 5')
    A(f'v_mov_b32 {v(vT)}, {v(vS)}\nv_mov_b32 {v(vT+1)}, {v(vS+4)}')
    A(f'buffer_store_dwordx4 {v(vT,4)}, {v(vL16)}, {srd(rWS)}, s{sT1} offen sc1')
    A('L_sdone:')
    if fixdur:
        A(f'L_fix:\ns_memrealtime s[98:99]\ns_waitcnt lgkmcnt(0)\ns_sub_u32 s98, s98, s96\ns_cmp_lt_u32 s98, {fixdur*100}\ns_cbranch_scc1 L_fix')
    stamp(6)
    if stamps:
        A(f's_cmp_lg_u32 s{sWAVE}, 0\ns_cbranch_scc1 L_end\ns_waitcnt vmcnt(0)')
        stamp(7)
        write_stamps(0, 's')
    A('s_endpgm')

    def soft_pass(n, addr, off):
        X = vF
        for i in range(n): A(f'ds_read_b32 {v(vT+8+i)}, {v(addr)} offset:{off*i}')
        for i in range(n):
            A(f's_waitcnt lgkmcnt({n-1-i})\nv_lshlrev_b32 {v(X+2*i)}, 16, {v(vT+8+i)}\nv_and_b32 {v(X+2*i+1)}, 0xffff0000, {v(vT+8+i)}\nv_max3_f32 {v(vM)}, {v(X+2*i)}, {v(X+2*i+1)}, {v(vM)}')
        xsum(vM, vT, 'v_max_f32')
        A(f'v_mul_f32 {v(vT)}, s{sL2E}, {v(vM)}\nv_sub_f32 {v(vAL)}, {v(vML)}, {v(vT)}\nv_mov_b32 {v(vML)}, {v(vT)}\nv_exp_f32 {v(vAL)}, {v(vAL)}')
        for k in range(2*n): A(f'v_fma_f32 {v(X+k)}, {v(X+k)}, s{sL2E}, -{v(vML)}')
        for k in range(2*n): A(f'v_exp_f32 {v(X+k)}, {v(X+k)}')
        A(f'v_mul_f32 {v(vLS)}, {v(vLS)}, {v(vAL)}')
        for i in range(n):
            A(f'v_cvt_pk_bf16_f32 {v(vT+8+i)}, {v(X+2*i)}, {v(X+2*i+1)}\nv_add_f32 {v(vLS)}, {v(vLS)}, {v(X+2*i)}\nv_add_f32 {v(vLS)}, {v(vLS)}, {v(X+2*i+1)}')
            A(f'ds_write_b32 {v(addr)}, {v(vT+8+i)} offset:{off*i}')
    A('L_spa:')
    soft_pass(1, vPA, 0)
    A('s_branch L_vmid')
    A('L_spb:')
    if not noex:
        A(f's_mov_b32 s{sCNT}, {spin*8}')
        A(f'L_vchk:\ns_waitcnt lgkmcnt(0)\nv_readfirstlane_b32 s{sT1}, {v(vR+1)}\ns_sub_u32 s{sCNT}, s{sCNT}, 1\ns_cmp_eq_u32 s{sCNT}, 0\ns_cbranch_scc1 L_vnoc')
        A(f's_cmp_lg_u32 s{sT1}, 0\ns_cbranch_scc1 L_vnoc\n{chk}\ns_branch L_vchk\nL_vnoc:')
    A(f'v_lshl_add_u32 {v(vPA)}, {v(vLANE)}, 2, s{sSTG}')
    soft_pass(5, vPA, 256)
    for t in range(12): A(f'v_mul_f32 {v(vO+4*t)}, {v(vAL)}, {v(vO+4*t)}')
    if lred:
        xsum(vLS, vT)
        A(f's_lshl_b32 s{sT1}, s{sWAVE}, 10\ns_add_u32 s{sT1}, s{sT1}, {OCB}\nv_lshlrev_b32 {v(vSK)}, 2, {v(vLANE)}\nv_add_u32 {v(vSK)}, s{sT1}, {v(vSK)}')
        A(f's_mov_b64 exec, 1\nds_write2_b32 {v(vSK)}, {v(vML)}, {v(vLS)} offset0:192 offset1:193\ns_mov_b64 exec, -1')
    A('s_branch L_vmid')
    A('L_helper:')
    inhelper[0] = True
    A(f's_getreg_b32 s{sT3}, hwreg(HW_REG_XCC_ID, 2, 1)')
    A('s_waitcnt lgkmcnt(0)')
    A(f's_sub_u32 s{sT0}, s38, s36\ns_min_u32 s{sT0}, s{sT0}, {cap}\ns_sub_u32 s{sT0}, s{sT0}, {thr}\ns_sub_u32 s{sT1}, 0, s{sT0}')
    A(f's_cmp_eq_u32 s{sT3}, 0\ns_cselect_b32 s{sT0}, s{sT0}, s{sT1}')
    A(f'v_mov_b32 {v(vP)}, s{sT0}\nv_mov_b32 {v(vP+1)}, s{sT3}\nv_mov_b32 {v(vP+2)}, 0')
    A(f's_lshl_b32 s{sT0}, s{sIDX}, 4\ns_add_u32 s{sT0}, s{sT0}, s{sSLT}\ns_lshl_b32 s{sT0}, s{sT0}, 4\ns_add_u32 s{sT0}, s{sT0}, {VOTE}')
    A(f's_waitcnt vmcnt(0)\nv_add_u32 {v(vTAG)}, {TAGC:#x}, {v(vTAG)}\nv_mov_b32 {v(vP+3)}, {v(vTAG)}')
    A(f's_mov_b64 exec, 1\nbuffer_store_dwordx4 {v(vP,4)}, {v(vL16)}, {srd(rWS)}, s{sT0} offen sc1\ns_mov_b64 exec, -1')
    sCA, sCB2 = 42, 43
    A(f's_mul_i32 s{sT0}, s{sRHO}, 3\ns_lshr_b32 s{sCA}, s{sT0}, 5\ns_add_u32 s{sT0}, s{sT0}, 2\ns_lshr_b32 s{sCB2}, s{sT0}, 5')
    A(f'v_lshrrev_b32 {v(vT)}, 5, {v(vLANE)}\nv_mul_u32_u24 {v(vT)}, 12, {v(vT)}\nv_bfe_u32 {v(vT+1)}, {v(vLANE)}, 4, 1\ns_sub_u32 s{sT0}, s{sCB2}, s{sCA}\nv_mul_u32_u24 {v(vT+1)}, s{sT0}, {v(vT+1)}')
    A(f'v_add3_u32 {v(vT)}, {v(vT)}, {v(vT+1)}, s{sCA}\nv_and_b32 {v(vT+1)}, 15, {v(vLANE)}\nv_min_u32 {v(vT+1)}, 9, {v(vT+1)}\nv_lshlrev_b32 {v(vT+1)}, 4, {v(vT+1)}\nv_lshl_add_u32 {v(vAL)}, {v(vT)}, 8, {v(vT+1)}')
    A(f's_andn2_b32 s{sT1}, s2, 4')
    vote_slot(sT1, sT2, sT3)
    A(f's_lshl_b32 s{sT2}, s{sT2}, 4\ns_add_u32 s{sT2}, s{sT2}, s{sT3}\ns_lshl_b32 s{sT2}, s{sT2}, 4\nv_mov_b32 {v(vM)}, s{sT2}\ns_mov_b32 s{rK+5}, {VOTE}')
    A(f's_mul_i32 s{sT0}, s{sH}, {5*4096}\ns_lshl_b32 s{sT1}, s{sB}, 10\ns_add_u32 s{sT0}, s{sT0}, s{sT1}\ns_add_u32 s{rK}, s{sT0}, {P1}')
    for p in range(1, 5): A(f's_add_u32 s{rK+p}, s{rK}, {4096*p}')
    A(f's_sub_u32 s{sU2}, s{sU2}, 5')
    A(f'v_mov_b32 {v(vS+1)}, 0\nv_mov_b32 {v(vS+6)}, 0')
    A(f'v_mul_u32_u24 {v(vA)}, 6, {v(vLANE)}\nv_add_u32 {v(vA)}, {QL}, {v(vA)}')
    A('s_barrier\ns_barrier')
    stamp(1)
    mkq = lambda b: [wsload(b+4*p, vL16, rK+p) for p in range(5)] + [wsload(b+20, vAL, rK+5), wsload(b+24, vM, rK+5)]
    QR = vW; E = vW + 3
    def useq(b):
        for k in range(3):
            A(f'v_add_f32 {v(QR+k)}, {v(b+k)}, {v(b+4+k)}')
        for p in range(2, 5):
            for k in range(3): A(f'v_add_f32 {v(QR+k)}, {v(QR+k)}, {v(b+4*p+k)}')
        put3_bf16(QR, vT, vA)
        A(f'v_and_b32 {v(vT)}, 15, {v(vLANE)}\nv_cmp_gt_u32 vcc, 10, {v(vT)}\nv_readfirstlane_b32 s{sT2}, {v(b+25)}\ns_nop 0\nv_cndmask_b32 {v(E)}, 0, {v(b+20)}, vcc')
    if pq: poll2('L_pq', mkq, 7, vF, vO, 1, pq, useq)
    else:
        poll('L_pq', mkq(vF), [vF+4*p+3 for p in range(5 if nopoll else 0, 7)], 1)
        useq(vF)
    for mode in ['quad_perm:[1,0,3,2]', 'quad_perm:[2,3,0,1]', 'row_half_mirror', 'row_mirror']:
        A(f's_nop 1\nv_add_u32_dpp {v(E)}, {v(E)}, {v(E)} {mode} row_mask:0xf bank_mask:0xf')
    if dbgv:
        A(f's_mul_i32 s{sT0}, s{sRHO}, 3\ns_and_b32 s{sT0}, s{sT0}, 31\ns_cmp_ge_u32 s{sT0}, 3\ns_cbranch_scc1 L_nodbg')
        A(f'v_readlane_b32 s{sT0}, {v(E)}, 16\nv_readlane_b32 s{sT1}, {v(E)}, 48')
        A(f's_nop 1\ns_add_u32 s{sT3}, s{sT0}, 5000\ns_mul_i32 s{sT3}, s{sT3}, 10000\ns_add_u32 s{sT3}, s{sT3}, s{sT1}\ns_add_u32 s{sT3}, s{sT3}, 5000')
        A(f's_lshl_b32 s{sP}, s{sCB2}, 2\nv_mov_b32 {v(vT+5)}, s{sP}\nv_mov_b32 {v(vT+6)}, s{sT3}\nglobal_store_dword {v(vT+5)}, {v(vT+6)}, {sp(sDBG)}\nL_nodbg:')
    A(f'v_lshrrev_b32 {v(E)}, 31, {v(E)}\nv_xor_b32 {v(E)}, s{sT2}, {v(E)}')
    if force >= 0: A(f'v_lshrrev_b32 {v(E)}, 5, {v(vLANE)}\nv_lshrrev_b32 {v(E)}, {v(E)}, {force}\nv_and_b32 {v(E)}, 1, {v(E)}')
    sF = [36, 37, 38, 39]
    A('s_nop 0')
    for g in range(4): A(f'v_readlane_b32 s{sF[g]}, {v(E)}, {16*g}')
    A(f's_mul_i32 s{sT3}, s{sRHO}, 1572864\ns_mov_b32 s{sT0}, 0\ns_mov_b32 s{sT1}, 0')
    for i in range(3):
        A(f's_lshr_b32 s{sT2}, s{sT3}, 24\ns_cmp_eq_u32 s{sT2}, s{sCA}\ns_cselect_b32 s{sXD}, s{sF[0]}, s{sF[1]}\ns_cselect_b32 s{sXS}, s{sF[2]}, s{sF[3]}')
        for acc, base, fl in [(sT0, sK, sXD), (sT1, sV, sXS)]:
            A(f's_add_u32 s{sT2}, s{base}, s{sT3}\ns_lshr_b32 s{sT2}, s{sT2}, 21\ns_xor_b32 s{sT2}, s{sT2}, s{fl}\ns_and_b32 s{sT2}, s{sT2}, 1\ns_lshl_b32 s{sT2}, s{sT2}, {i}\ns_or_b32 s{acc}, s{acc}, s{sT2}')
        if i < 2: A(f's_add_u32 s{sT3}, s{sT3}, 524288')
    if nonuma: A(f's_mov_b32 s{sT0}, {nonuma >> 1}\ns_mov_b32 s{sT1}, {nonuma >> 1}')
    A(f's_xor_b32 s{sXD}, s{sT0}, s{sT1}\ns_cselect_b32 s{sXS}, 0, 1')
    A(f'v_mov_b32 {v(vT+4)}, s{sT0}\nv_mov_b32 {v(vT+5)}, s{sT1}\nv_mov_b32 {v(vT+6)}, 0\nv_mov_b32 {v(vT+7)}, s{sXS}\nv_mov_b32 {v(vT+3)}, {FLG}\nds_write_b128 {v(vT+3)}, {v(vT+4,4)}')
    if stamps:
        A(f's_lshl_b32 s{sT1}, s{sXD}, 0\ns_or_b32 s{sT1}, s{sT1}, s{sT1}\ns_lshl_b32 s{sT0}, s2, 2\ns_add_u32 s{sT0}, s{sT0}, 0x20100000')
        A(f'v_mov_b32 {v(vT+5)}, s{sT0}\nv_mov_b32 {v(vT+6)}, s{sT1}\nglobal_store_dword {v(vT+5)}, {v(vT+6)}, {sp(sWS)}')
    stamp(2)
    A('s_waitcnt lgkmcnt(0)\ns_barrier')
    A('s_waitcnt vmcnt(0)')
    A(f's_cmp_ge_u32 s{sJ}, 5\ns_cselect_b32 s{sHASW1}, 1, 0\ns_cmp_lt_u32 s{sU2}, 80\ns_cselect_b32 s{sHASW1}, s{sHASW1}, 0')
    A(f's_cmp_eq_u32 s{sHASW1}, 0\ns_cbranch_scc1 L_hx')
    A(f's_mul_i32 s{sR}, s{sU2}, 52429\ns_lshr_b32 s{sR}, s{sR}, 18\ns_mul_i32 s{sT0}, s{sR}, 5\ns_sub_u32 s{sCB}, s{sU2}, s{sT0}')
    A(f's_mul_i32 s{sRB}, s{sU2}, 52429\ns_lshr_b32 s{sRB}, s{sRB}, 20\ns_mul_i32 s{sT0}, s{sRB}, 20\ns_sub_u32 s{sSLC2}, s{sU2}, s{sT0}')
    vWD, vG4 = vS, vS+1
    A(f'v_lshrrev_b32 {v(vT)}, 4, {v(vLANE)}\nv_and_b32 {v(vT+1)}, 15, {v(vLANE)}\nv_lshlrev_b32 {v(vT+1)}, 4, {v(vT+1)}')
    A(f'v_mul_u32_u24 {v(vWD)}, 1280, {v(vT)}\nv_add_u32 {v(vWD)}, {v(vWD)}, {v(vT+1)}\nv_lshl_add_u32 {v(vG4)}, {v(vT)}, 10, {v(vT+1)}')
    A(f'v_lshrrev_b32 {v(vT)}, 5, {v(vLANE)}\nv_mul_u32_u24 {v(vT)}, {8*5*4096}, {v(vT)}\nv_and_b32 {v(vT+1)}, 31, {v(vLANE)}\nv_lshl_add_u32 {v(vA)}, {v(vT+1)}, 4, {v(vT)}')
    A(f's_lshr_b32 s{sT0}, s{sR}, 1\ns_add_u32 s{sT0}, s{sT0}, 32\ns_mul_i32 s{sT0}, s{sT0}, {5*4096}\ns_and_b32 s{sT1}, s{sR}, 1\ns_lshl_b32 s{sT1}, s{sT1}, 9\ns_add_u32 s{sT0}, s{sT0}, s{sT1}\ns_add_u32 s{rK}, s{sT0}, {P1}')
    for p in range(1, 5): A(f's_add_u32 s{rK+p}, s{rK}, {4096*p}')
    G = vF
    poll('L_pg', [wsload(G+20*b+4*p, vA, rK+p) + f' offset:{1024*b}' if False else
                  f'buffer_load_dwordx4 {v(G+20*b+4*p,4)}, {v(vA)}, {srd(rWS)}, s{rK+p} offen offset:{1024*b} sc1' for b in range(4) for p in range(5)],
         [G+20*b+4*p+3 for b in range(4) for p in range(5)], 2)
    A(f'v_and_b32 {v(vA)}, 31, {v(vLANE)}\nv_mul_u32_u24 {v(vA)}, 6, {v(vA)}\nv_add_u32 {v(vA)}, {HL}, {v(vA)}')
    for b in range(4):
        g0 = G + 20*b
        for k in range(3):
            for p in range(1, 5): A(f'v_add_f32 {v(g0+k)}, {v(g0+k)}, {v(g0+4*p+k)}')
        rnd2(g0, g0+1, vT); rnd(g0+2, vT)
        for k in range(3): A(f'v_mov_b32 {v(g0+4+k)}, {v(g0+k)}')
        A('s_nop 1')
        for k in range(3): A(f'v_permlane32_swap_b32 {v(g0+k)}, {v(g0+4+k)}')
        for k in range(3):
            A(f'v_cmp_lt_f32 vcc, 0, {v(g0+k)}\ns_nop 1\nv_cndmask_b32 {v(vT)}, 0, 1.0, vcc\nv_mul_f32 {v(g0+k)}, {v(g0+k)}, {v(vT)}\nv_mul_f32 {v(g0+k)}, {v(g0+k)}, {v(g0+4+k)}')
        put3_bf16(g0, vT, vA)
        if b < 3: A(f'v_add_u32 {v(vA)}, 192, {v(vA)}')
    A(f'v_bfe_u32 {v(vT+2)}, {v(vLANE)}, 2, 2\nv_mul_u32_u24 {v(vT+2)}, 192, {v(vT+2)}\nv_lshrrev_b32 {v(vT+3)}, 4, {v(vLANE)}\nv_lshl_add_u32 {v(vT+2)}, {v(vT+3)}, 3, {v(vT+2)}\nv_add_u32 {v(vA)}, {HL}, {v(vT+2)}')
    A('s_waitcnt lgkmcnt(0)')
    for s in range(3): A(f'ds_read2_b64 {v(vQ+4*s,4)}, {v(vA)} offset0:{8*s} offset1:{8*s+4}')
    A(f'v_lshrrev_b32 {v(vT)}, 2, {v(vLANE)}\nv_lshlrev_b32 {v(vT)}, 8, {v(vT)}\nv_and_b32 {v(vT+1)}, 3, {v(vLANE)}\nv_lshl_add_u32 {v(vT)}, {v(vT+1)}, 3, {v(vT)}\nv_add_u32 {v(vA)}, {WREG}, {v(vT)}')
    for s in range(3):
        A('s_waitcnt lgkmcnt(0)')
        trread_mfma(8, vA, 4096, vO, s == 0, vF, vQ+4*s)
        if s < 2: A(f'v_add_u32 {v(vA)}, 8192, {v(vA)}')
    A(f's_lshl_b32 s{sT0}, s{sCB}, 6\ns_add_u32 s{sT0}, s{sT0}, s{sR}\ns_lshl_b32 s{sT0}, s{sT0}, 10\ns_add_u32 s{sT0}, s{sT0}, {BP}')
    A('s_nop 4')
    for ww in range(4):
        t0 = vF + 4*ww
        A(f'v_mov_b32 {v(t0)}, {v(vO+8*ww)}\nv_mov_b32 {v(t0+1)}, {v(vO+8*ww+4)}\nv_mov_b32 {v(t0+2)}, {v(vTAG)}\nv_mov_b32 {v(t0+3)}, {v(vTAG)}')
        A(f'buffer_store_dwordx4 {v(t0,4)}, {v(vL16)}, {srd(rWS)}, s{sT0} offen sc1')
        if ww < 3: A(f's_add_u32 s{sT0}, s{sT0}, 16384')
    stamp(3)
    vG0, vG1, vX0, vX1, vXO = vS+2, vS+3, vS+4, vS+5, vS+6
    A(f's_mul_i32 s{sT0}, s{sRB}, 1280\ns_lshl_b32 s{sT1}, s{sSLC2}, 6\ns_add_u32 s{sT0}, s{sT0}, s{sT1}')
    A(f'v_and_b32 {v(vXO)}, 15, {v(vLANE)}\nv_lshlrev_b32 {v(vXO)}, 1, {v(vXO)}\nv_add_u32 {v(vXO)}, s{sT0}, {v(vXO)}')
    A(f'global_load_ushort {v(vX0)}, {v(vXO)}, {sp(sX)}\nglobal_load_ushort {v(vX1)}, {v(vXO)}, {sp(sX)} offset:32')
    A(f's_lshl_b32 s{sT0}, s{sSLC2}, 14\ns_lshl_b32 s{sT1}, s{sRB}, 8\ns_add_u32 s{sT0}, s{sT0}, s{sT1}\ns_add_u32 s{rK}, s{sT0}, {BP}')
    for p in range(1, 4): A(f's_add_u32 s{rK+p}, s{rK}, {4096*p}')
    G = vF + 16
    poll('L_pb', [wsload(G+4*p, vG4, rK+p) for p in range(4)], [G+4*p+3 for p in range(4)], 5)
    for k in range(2):
        A(f'v_add_f32 {v(G+k)}, {v(G+k)}, {v(G+4+k)}\nv_add_f32 {v(G+8+k)}, {v(G+8+k)}, {v(G+12+k)}\nv_add_f32 {v(G+k)}, {v(G+k)}, {v(G+8+k)}')
        xsum(G+k, vT, full=False)
    rnd2(G, G+1, vT)
    for k in range(2):
        A(f'v_mul_f32 {v(vT)}, s{sL2E}, {v(G+k)}\nv_max_f32 {v(vT)}, {f2u(-126.0):#x}, {v(vT)}\nv_exp_f32 {v(vT)}, -{v(vT)}\ns_nop 0\nv_add_f32 {v(vT)}, 1.0, {v(vT)}\nv_rcp_f32 {v(vT+1)}, {v(vT)}\ns_nop 0')
        fdiv(vG0+k, G+k, vT, vT+1, vT+2)
    rnd2(vG0, vG1, vT)
    A(f'v_lshlrev_b32 {v(vX0)}, 16, {v(vX0)}\nv_lshlrev_b32 {v(vX1)}, 16, {v(vX1)}')
    A(f's_lshl_b32 s{sT0}, s{sSLC2}, 15\ns_lshl_b32 s{sT1}, s{sRB}, 8\ns_add_u32 s{sT0}, s{sT0}, s{sT1}\ns_add_u32 s{rK}, s{sT0}, {YP}')
    for p in range(1, 8): A(f's_add_u32 s{rK+p}, s{rK}, {4096*p}')
    stamp(4)
    A('L_hx:')
    A(f's_cmp_lg_u32 s{sXS}, 0\ns_cbranch_scc1 L_hb4')
    sREC, sOTH = 36, 37
    A(f's_lshl_b32 s{sREC}, s{sRHO}, 1\ns_add_u32 s{sOTH}, s{sREC}, 1\ns_sub_u32 s{sOTH}, s{sOTH}, s{sHALF}\ns_add_u32 s{sREC}, s{sREC}, s{sHALF}')
    A(f's_mul_i32 s{sREC}, s{sREC}, 12288\ns_add_u32 s{sREC}, s{sREC}, {SCO}\ns_mul_i32 s{sOTH}, s{sOTH}, 12288\ns_add_u32 s{sOTH}, s{sOTH}, {SCO}')
    vXA, vXF = vQ, vQ+1
    A(f'v_lshlrev_b32 {v(vXA)}, 3, {v(vLANE)}\nv_add_u32 {v(vXA)}, {STG}, {v(vXA)}\nv_mov_b32 {v(vXF)}, {FLG+8}')
    def hwait(n, lbl, hsl=hsl):
        A(f's_mov_b32 s{sCNT}, {spin*8}\n{lbl}:\nds_read_b32 {v(vT)}, {v(vXF)}\ns_sub_u32 s{sCNT}, s{sCNT}, 1\ns_cmp_eq_u32 s{sCNT}, 0\ns_cbranch_scc1 {lbl}_ok')
        A(f's_waitcnt lgkmcnt(0)\nv_readfirstlane_b32 s{sT0}, {v(vT)}\ns_nop 0\ns_cmp_ge_u32 s{sT0}, {4*n}\ns_cbranch_scc1 {lbl}_ok\ns_sleep {hsl}\ns_branch {lbl}\n{lbl}_ok:')
    EX = ['s_mov_b32 exec_lo, 0xffff0000', '', 's_mov_b32 exec_hi, 0xffff']
    hwait(23, 'L_hw0')
    if not (noex & 1):
        for i in range(3):
            A(f's_bitcmp1_b32 s{sXD}, {i}\ns_cbranch_scc0 L_np{i}')
            if EX[i]: A(EX[i])
            for w in range(4):
                r = vF + 16*i + 4*w
                A(f'ds_read_b64 {v(r,2)}, {v(vXA)} offset:{1536*w+512*i}\nv_mov_b32 {v(r+2)}, {v(vTAG)}\nv_mov_b32 {v(r+3)}, {v(vTAG)}')
            for w in range(4):
                r = vF + 16*i + 4*w
                A(f's_add_u32 s{sT0}, s{sREC}, {3072*w+1024*i}\ns_waitcnt lgkmcnt({3-w})')
                A(f'buffer_store_dwordx4 {v(r,4)}, {v(vL16)}, {srd(rWS)}, s{sT0} offen {stfl}')
            A(f's_mov_b64 exec, -1\nL_np{i}:')
    hwait(gat, 'L_hw1')
    if not noex:
        G = vO
        for k in range(12): A(f'v_mov_b32 {v(G+4*k+3)}, {v(vTAG)}')
        lds_ = []
        for i in range(3):
            t_ = f's_bitcmp1_b32 s{sXD}, {i}\ns_cbranch_scc0 L_ng{i}\n{EX[i]}\n'
            for w in range(4):
                t_ += f's_add_u32 s{sT0}, s{sOTH}, {3072*w+1024*i}\nbuffer_load_dwordx4 {v(G+16*i+4*w,4)}, {v(vL16)}, {srd(rWS)}, s{sT0} offen {slfl}\n'
            lds_.append(t_ + f's_mov_b64 exec, -1\nL_ng{i}:')
        poll('L_px', lds_, [G+4*k+3 for k in range(12)], 8)
        for i in range(3):
            A(f's_bitcmp1_b32 s{sXD}, {i}\ns_cbranch_scc0 L_nw{i}')
            if EX[i]: A(EX[i])
            for w in range(4): A(f'ds_write_b64 {v(vXA)}, {v(G+16*i+4*w,2)} offset:{1536*w+512*i}')
            A(f's_mov_b64 exec, -1\nL_nw{i}:')
    A(f'v_mov_b32 {v(vT)}, 1\nds_write_b32 {v(vXF)}, {v(vT)} offset:4')
    A('L_hb4:')
    A(f'v_mul_u32_u24 {v(vA)}, 12, {v(vLANE)}\nv_add_u32 {v(vA)}, {OCB}, {v(vA)}\nv_mov_b32 {v(vAL)}, {OCB+768}')
    A(f's_lshl_b32 s{sT1}, s{sH}, 3\ns_add_u32 s{sT1}, s{sT1}, s{sJ}\ns_lshl_b32 s{sT1}, s{sT1}, 11\ns_add_u32 s{sT1}, s{sT1}, {OP}')
    Gm = vQ + 8
    r0 = vP
    ml = vT + 4
    def weights():
        A(f'v_max3_f32 {v(ml)}, {v(Gm)}, {v(Gm+2)}, {v(Gm+4)}\nv_max_f32 {v(ml)}, {v(ml)}, {v(Gm+6)}')
        for w in range(4): A(f'v_sub_f32 {v(Gm+2*w)}, {v(Gm+2*w)}, {v(ml)}')
        for w in range(4): A(f'v_exp_f32 {v(Gm+2*w)}, {v(Gm+2*w)}')
        A(f'v_mov_b32 {v(r0+3)}, {v(vTAG)}\nv_mov_b32 {v(ml+3)}, {v(vTAG)}\nv_mov_b32 {v(ml+2)}, {v(vTAG)}')
        A(f'v_mul_f32 {v(ml+1)}, {v(Gm)}, {v(Gm+1)}')
        for w in range(1, 4): A(f'v_fmac_f32 {v(ml+1)}, {v(Gm+2*w)}, {v(Gm+2*w+1)}')
    if lred:
        A(f'v_mov_b32 {v(vXF)}, {FLG+8}')
        hwait(29, 'L_hw2', 8)
        for w in range(4): A(f'ds_read_b64 {v(Gm+2*w,2)}, {v(vAL)} offset:{1024*w}')
        A('s_waitcnt lgkmcnt(0)')
        weights()
        for w in range(1, 4): A(f'v_add_u32 {v(vQ+4+w)}, {1024*w}, {v(vA)}')
        A('s_barrier')
        stamp(5)
        for w in range(4):
            a_ = vA if w == 0 else vQ+4+w
            A(f'ds_read2_b32 {v(vF+4*w,2)}, {v(a_)} offset0:0 offset1:1\nds_read_b32 {v(vF+4*w+2)}, {v(a_)} offset:8')
    else:
        A('s_barrier')
        stamp(5)
        for w in range(4): A(f'ds_read_b64 {v(Gm+2*w,2)}, {v(vAL)} offset:{1024*w}')
        for w in range(4):
            A(f'ds_read2_b32 {v(vF+4*w,2)}, {v(vA)} offset0:0 offset1:1\nds_read_b32 {v(vF+4*w+2)}, {v(vA)} offset:8')
            if w < 3: A(f'v_add_u32 {v(vA)}, 1024, {v(vA)}')
        A('s_waitcnt lgkmcnt(8)')
        weights()
    A('s_waitcnt lgkmcnt(0)')
    for k in range(3): A(f'v_mul_f32 {v(r0+k)}, {v(Gm)}, {v(vF+k)}')
    for w in range(1, 4):
        for k in range(3): A(f'v_fmac_f32 {v(r0+k)}, {v(Gm+2*w)}, {v(vF+4*w+k)}')
    A(f'buffer_store_dwordx4 {v(r0,4)}, {v(vL16)}, {srd(rWS)}, s{sT1} offen sc1')
    A(f's_mov_b64 exec, 1\nbuffer_store_dwordx4 {v(ml,4)}, {v(vL16)}, {srd(rWS)}, s{sT1} offen offset:1024 sc1\ns_mov_b64 exec, -1')
    A(f's_cmp_eq_u32 s{sHASW1}, 0\ns_cbranch_scc1 L_hdone')
    mky = lambda b: [wsload(b+4*p, vG4, rK+p) for p in range(8)]
    G = vW
    def usey(b):
        for k in range(2):
            for p in range(4): A(f'v_add_f32 {v(G+2*p+k)}, {v(b+8*p+k)}, {v(b+8*p+4+k)}')
    if py: poll2('L_py', mky, 8, vF+16, vO, 6, py, usey)
    else:
        poll('L_py', mky(vF+16), [vF+16+4*p+3 for p in range(8)], 6)
        usey(vF+16)
    stamp(6)
    for k in range(2):
        A(f'v_add_f32 {v(G+k)}, {v(G+k)}, {v(G+2+k)}\nv_add_f32 {v(G+4+k)}, {v(G+4+k)}, {v(G+6+k)}\nv_add_f32 {v(G+k)}, {v(G+k)}, {v(G+4+k)}')
    for k in range(2): xsum(G+k, vT+k, full=False)
    rnd2(G, G+1, vT)
    A(f'v_mul_f32 {v(G)}, {v(G)}, {v(vG0)}\nv_mul_f32 {v(G+1)}, {v(G+1)}, {v(vG1)}')
    rnd2(G, G+1, vT)
    A(f'v_add_f32 {v(G)}, {v(G)}, {v(vX0)}\nv_add_f32 {v(G+1)}, {v(G+1)}, {v(vX1)}\nv_cvt_pk_bf16_f32 {v(G)}, {v(G)}, {v(G+1)}')
    A(f's_mov_b64 exec, 0xffff\nglobal_store_short {v(vXO)}, {v(G)}, {sp(sOUT)}\nglobal_store_short_d16_hi {v(vXO)}, {v(G)}, {sp(sOUT)} offset:32')
    A(f's_cmp_lg_u32 s{sU2}, 0\ns_cbranch_scc1 L_hdone')
    A(f's_mov_b64 exec, 1\nv_mov_b32 {v(vT)}, 0\nglobal_store_dword {v(vT)}, {v(vTAG)}, {sp(sWS)} sc1')
    A('L_hdone:')
    if stamps:
        A('s_waitcnt vmcnt(0)')
        stamp(7)
        write_stamps(256, 'h')
    A('L_end:\ns_endpgm')
    A(f'''.section .rodata,"a"
.p2align 6
.amdhsa_kernel {NAME}_kernel
  .amdhsa_next_free_vgpr {NV}
  .amdhsa_next_free_sgpr 100
  .amdhsa_accum_offset {NV}
  .amdhsa_group_segment_fixed_size 0
  .amdhsa_kernarg_size 96
  .amdhsa_user_sgpr_count 2
  .amdhsa_user_sgpr_kernarg_segment_ptr 1
  .amdhsa_system_sgpr_workgroup_id_x 1
  .amdhsa_float_denorm_mode_32 3
.end_amdhsa_kernel''')
    open(fn, 'w').write('\n'.join(L) + '\n')

if __name__ == '__main__':
    fn = sys.argv[1]
    kw = {}
    for a in sys.argv[2:]:
        k, val = a.split('=')
        try: val = int(val)
        except ValueError: val = val.replace('+', ' ').replace('def', '')
        kw[k] = val
    gen(fn, **kw)
```

```python
import sys, os, struct
NAME = 'recurrent_scan__gqa_block_cached__glu_gated_reglu__decode'

HEADER = '''; Kernarg layout (96 bytes, ptrs only, base s[0:1]):
'''

def f2u(x): return struct.unpack('<I', struct.pack('<f', x))[0]

def gen(fn, stamps=False, pace=8, up=4, mapping='x', kvil=False, twostage=False, spin=1<<15, knt='nt', vnt='nt', w1nt='nt', w2nt='nt', sleep=0, fixdur=0, D=6, nomem=0, now=0, nopoll=0, nocomp=0, pre=2, force=-1, cap=400, thr=100, noex=0, sync=1, skipx=1, hsl=2, gat=26, perturb=0, pall=0, lead=0, lmask=31, fb=26, blate=1, pubt=23, htouch=0, otouch=0, nonuma=0, al=1, glate=1, touch=0, late=0, lred=1, pq=0, po=0, py=0, inl=1, nend=4, Dend=18, dbgv=0, stfl='sc1', slfl='sc1'):
    L = []
    def A(s):
        for ln in s.strip('\n').split('\n'):
            L.append(ln.strip())
    SLOT = 9216; RING = 2*SLOT; WT = 12288
    WREG = 4*RING
    MISC = WREG + 4*WT
    XN = MISC; OBF = MISC
    RED = MISC + 1536
    OCB = RED + 8192
    QL = RED + 12288
    HL = QL + 384
    FLG = HL + 768
    STG = FLG + 64
    LDS = 147456
    assert STG + 6144 <= LDS
    P1 = 0x1000; OP = 0x100000; YP = 0x200000; BP = 0x300000; VOTE = 0x3F0000; GO = 0x3F8000; SCO = 0x400000; WSZ = 0x600000
    TAGC = 0x9E3779B9
    sX, sK, sV, sWQ, sWO, sWG, sWU, sWD, sOUT, sDBG, sWS = 4, 6, 8, 10, 12, 16, 18, 20, 22, 24, 26
    rK, rV, rW1, rW2, rWS = 28, 32, 36, 40, 44
    sWAVE, sH, sJ, sB, sHALF = 48, 49, 50, 51, 52
    sBETA, sPI, sHASW1, sRS = 53, 54, 55, 56
    sSLA, sSLB, sSLC = 57, 58, 59
    sOFF, sT, sCNT = 60, 61, 62
    sSC, sL2E = 63, 64
    sT0, sT1, sT2, sT3 = 65, 66, 67, 68
    sU2, sR, sCB, sRB, sSLC2 = 69, 70, 71, 72, 73
    sN0, sN1, sFLV, sFL = 70, 71, 72, 73
    sU, sPUB, sNEG, sVB = 14, 15, 34, 32
    sRHO = 3
    sXD, sXS = 92, 93
    sCM = 94
    sSTG = 35
    sP = 74
    sST = 76
    def srd(r): return f's[{r}:{r+3}]'
    def sp(r): return f's[{r}:{r+1}]'
    vLANE, vL16, vTAG, vKA0, vVA0, vA, vM, vML, vLS, vAL = 1, 2, 3, 4, 5, 6, 7, 8, 9, 10
    vT = 12
    vS = 28
    vP = 36
    vQ = 40
    vF = 64
    vO = 112
    vW = 160
    vR = 208
    vM2B, vM2X, vM3, vSK, vSV, vFA, vONE, vPA = range(212, 220)
    vSRC = 220
    vKB = 224
    vVB = 228
    vAD = 236
    NV = 244
    def v(r, n=1): return f'v{r}' if n == 1 else f'v[{r}:{r+n-1}]'
    inhelper = [False]
    def pstamp(i):
        if stamps == 3: A(f's_memrealtime {sp(sST+2*i)}\ns_waitcnt lgkmcnt(0)')
    def stamp(i):
        if stamps == 3 and i < 7 and not inhelper[0]: return
        if stamps:
            A(f's_memrealtime {sp(sST+2*i)}\ns_waitcnt lgkmcnt(0)')
    def write_stamps(rec_base, lbl):
        if not stamps: return
        A(f's_lshl_b32 s{sT0}, s2, 6\ns_add_u32 s{sT0}, s{sT0}, {0x20000000 + rec_base*64}')
        A(f's_add_u32 s{sP}, s{sWS}, s{sT0}\ns_addc_u32 s{sP+1}, s{sWS+1}, 0')
        A(f's_mov_b64 exec, 1\nv_mov_b32 {v(vA)}, 0')
        for i in range(4):
            for k in range(4): A(f'v_mov_b32 {v(vT+k)}, s{sST+4*i+k}')
            A(f'global_store_dwordx4 {v(vA)}, {v(vT,4)}, {sp(sP)} offset:{16*i}\ns_nop 1')
    def xsum(r, t, op='v_add_f32', full=True):
        if full:
            for mode in ['quad_perm:[1,0,3,2]', 'quad_perm:[2,3,0,1]', 'row_half_mirror', 'row_mirror']:
                A(f's_nop 1\n{op}_dpp {v(r)}, {v(r)}, {v(r)} {mode} row_mask:0xf bank_mask:0xf')
        for sw in ['v_permlane16_swap_b32', 'v_permlane32_swap_b32']:
            A(f'v_mov_b32 {v(t)}, {v(r)}\ns_nop 1\n{sw} {v(r)}, {v(t)}\n{op} {v(r)}, {v(r)}, {v(t)}')
    def rnd(r, t):
        A(f'v_cvt_pk_bf16_f32 {v(t)}, {v(r)}, {v(r)}\nv_lshlrev_b32 {v(r)}, 16, {v(t)}')
    def rnd2(r0, r1, t):
        A(f'v_cvt_pk_bf16_f32 {v(t)}, {v(r0)}, {v(r1)}\nv_lshlrev_b32 {v(r0)}, 16, {v(t)}\nv_and_b32 {v(r1)}, 0xffff0000, {v(t)}')
    def dma_tile(soff, sslot, paced=None, lo=0, hi=9, fl='nt'):
        for i in range(lo, hi):
            A(f's_add_u32 m0, s{sslot}, {1024*i}')
            if i == lo or i % 3 == 0: A(f's_add_u32 s{sT0}, s{soff}, {3072*(i//3)}')
            elif not paced: A('s_nop 0')
            if paced: A(f's_waitcnt vmcnt({paced-1})')
            A(f'buffer_load_dwordx4 {v(vSRC+i%3)}, {srd(rK)}, s{sT0} offen {fl} lds')
    def block_params(default, sn):
        if default == 1: A(f's_cmp_eq_u32 s{sHALF}, 1')
        else: A(f's_bitcmp1_b64 {sp(sCM)}, s{sT}')
        A(f's_addc_u32 s{sT1}, s{sU}, s{sU}\ns_lshl_b32 s{sT1}, s{sT1}, 6\ns_add_u32 s{sT2}, s{sT1}, 65\ns_add_u32 s{sT1}, s{sT1}, 1')
        A(f's_mul_i32 s{sT1}, s{sT1}, 43691\ns_mul_i32 s{sT2}, s{sT2}, 43691\ns_lshr_b32 s{sT1}, s{sT1}, 17\ns_lshr_b32 s{sT2}, s{sT2}, 17')
        A(f's_mul_i32 s{sOFF}, s{sT1}, 384\ns_sub_u32 s{sT1}, s{sT2}, s{sT1}\ns_mul_i32 s{sT2}, s{sT2}, 384\ns_min_u32 s{rK+2}, s{sT2}, {0 if nomem else 1572864}')
        if default == 2: A(f's_cmp_ge_u32 s{sT}, 46\ns_cselect_b32 s{rK+2}, 0, s{rK+2}\ns_add_u32 s{sU}, s{sU}, 4')
        else: A(f's_cmp_eq_u32 s{sT1}, 22\ns_cselect_b32 s{sn}, -1, 0\ns_add_u32 s{sU}, s{sU}, 4')
    def poll(lbl, loads, tagregs, code):
        A(f's_mov_b32 s{sCNT}, {spin}\n{lbl}:')
        for x in loads: A(x)
        A('s_waitcnt vmcnt(0)')
        A(f'v_xor_b32 {v(vT)}, {v(tagregs[0])}, {v(vTAG)}')
        for r in tagregs[1:]:
            A(f'v_xor_b32 {v(vT+1)}, {v(r)}, {v(vTAG)}\nv_or_b32 {v(vT)}, {v(vT)}, {v(vT+1)}')
        if (nopoll and lbl != 'L_pq') or (noex and lbl == 'L_px'): A(f's_branch {lbl}_ok')
        A(f'v_cmp_ne_u32 vcc, 0, {v(vT)}\ns_cbranch_vccz {lbl}_ok')
        if sleep: A(f's_sleep {sleep}')
        A(f's_sub_u32 s{sCNT}, s{sCNT}, 1\ns_cmp_lg_u32 s{sCNT}, 0\ns_cbranch_scc1 {lbl}')
        A(f'v_mov_b32 {v(vT)}, 0\nv_mov_b32 {v(vT+1)}, {code}\nglobal_store_dword {v(vT)}, {v(vT+1)}, {sp(sDBG)}')
        A(f'{lbl}_ok:')
    def poll2(lbl, mk, n, base, alt, code, delay, use):
        def check(b, ok):
            A(f's_waitcnt vmcnt({n})')
            A(f'v_xor_b32 {v(vT)}, {v(b+3)}, {v(vTAG)}')
            for k in range(1, n): A(f'v_xor_b32 {v(vT+1)}, {v(b+4*k+3)}, {v(vTAG)}\nv_or_b32 {v(vT)}, {v(vT)}, {v(vT+1)}')
            A(f'v_cmp_ne_u32 vcc, 0, {v(vT)}\ns_cbranch_vccz {ok}')
        A(f's_mov_b32 s{sCNT}, {spin}')
        for x in mk(base): A(x)
        A(f's_sleep {delay}\n{lbl}:')
        for x in mk(alt): A(x)
        check(base, f'{lbl}_ok')
        for x in mk(base): A(x)
        check(alt, f'{lbl}_okb')
        A(f's_sub_u32 s{sCNT}, s{sCNT}, 1\ns_cmp_lg_u32 s{sCNT}, 0\ns_cbranch_scc1 {lbl}')
        A(f'v_mov_b32 {v(vT)}, 0\nv_mov_b32 {v(vT+1)}, {code}\nglobal_store_dword {v(vT)}, {v(vT+1)}, {sp(sDBG)}')
        A(f'{lbl}_okb:')
        use(alt)
        A(f's_branch {lbl}_done\n{lbl}_ok:')
        use(base)
        A(f'{lbl}_done:')
    def wsload(dst, voff, soff): return f'buffer_load_dwordx4 {v(dst,4)}, {v(voff)}, {srd(rWS)}, s{soff} offen sc1'
    def put3_bf16(r0, t, va):
        A(f'v_cvt_pk_bf16_f32 {v(t)}, {v(r0)}, {v(r0+1)}\nv_cvt_pk_bf16_f32 {v(t+1)}, {v(r0+2)}, {v(r0+2)}')
        A(f'ds_write_b16 {v(va)}, {v(t)}\nds_write_b16_d16_hi {v(va)}, {v(t)} offset:2\nds_write_b16 {v(va)}, {v(t+1)} offset:4')
    def fdiv(q, n, d, r, e):
        A(f'v_mul_f32 {v(q)}, {v(n)}, {v(r)}\nv_fma_f32 {v(e)}, -{v(q)}, {v(d)}, {v(n)}\nv_fma_f32 {v(q)}, {v(e)}, {v(r)}, {v(q)}')
    def trread_mfma(ntile, va, off2, acc, first, frag, aop, va2=None, extra=None):
        def rd(t):
            if va2 is None:
                A(f'ds_read_b64_tr_b16 {v(frag+4*t,2)}, {v(va)} offset:{32*t}')
                A(f'ds_read_b64_tr_b16 {v(frag+4*t+2,2)}, {v(va)} offset:{32*t+off2}')
            else:
                A(f'ds_read_b64_tr_b16 {v(frag+4*t,2)}, {v(va+(t&3))} offset:{128*(t>>2)}')
                A(f'ds_read_b64_tr_b16 {v(frag+4*t+2,2)}, {v(va2+(t&3))} offset:{128*(t>>2)}')
        pre = min(4, ntile)
        for t in range(pre): rd(t)
        for t in range(ntile):
            if t + pre < ntile: rd(t + pre)
            if extra and t + pre == ntile - 1: A(extra)
            left = min(ntile - 1, t + pre) - t
            A(f's_waitcnt lgkmcnt({2*left + (1 if extra and t + pre >= ntile - 1 else 0)})')
            c = '0' if first else v(acc+4*t, 4)
            A(f'v_mfma_f32_16x16x32_bf16 {v(acc+4*t,4)}, {v(aop,4)}, {v(frag+4*t,4)}, {c}')

    A(HEADER)
    A(f'; @launch grid=(256,1,1) block=(320,1,1) lds={LDS}')
    A('.amdgcn_target "amdgcn-amd-amdhsa--gfx950"\n.text')
    if al: A('.p2align 12')
    A(f'.globl {NAME}_kernel\n.p2align 8\n.type {NAME}_kernel,@function\n{NAME}_kernel:')
    A('s_cmp_ge_u32 s2, 256\ns_cbranch_scc1 L_end')
    A('s_load_dwordx16 s[4:19], s[0:1], 0\ns_load_dwordx8 s[20:27], s[0:1], 64')
    if fixdur: A('s_memrealtime s[96:97]')
    if stamps:
        A(f's_memrealtime {sp(sST)}')
        for i in range(2, 16): A(f's_mov_b32 s{sST+i}, 0')
    A(f'v_lshrrev_b32 {v(vT)}, 6, v0\nv_and_b32 {v(vLANE)}, 63, v0')
    A(f'v_readfirstlane_b32 s{sWAVE}, {v(vT)}')
    A(f'v_lshlrev_b32 {v(vL16)}, 4, {v(vLANE)}')
    A(f's_lshr_b32 s{sT0}, s2, 3\ns_lshl_b32 s{sT0}, s{sT0}, 2\ns_and_b32 s{sT1}, s2, 3\ns_add_u32 s{sRHO}, s{sT0}, s{sT1}')
    A(f's_bfe_u32 s{sHALF}, s2, 0x10002\ns_lshr_b32 s{sB}, s{sRHO}, 5\ns_and_b32 s{sH}, s{sRHO}, 31\ns_lshl_b32 s{sJ}, s{sB}, 1\ns_add_u32 s{sJ}, s{sJ}, s{sHALF}')
    A(f's_mul_i32 s{sU2}, s{sH}, 3\ns_add_u32 s{sU2}, s{sU2}, s{sJ}')
    A(f's_mov_b32 s{sSC}, {f2u(192**-0.5):#x}\ns_mov_b32 s{sL2E}, {f2u(1.4426950408889634):#x}')
    def ws_srd():
        A(f's_mov_b32 s{rWS}, s{sWS}\ns_mov_b32 s{rWS+1}, s{sWS+1}')
    A(f's_mov_b32 s{rWS+2}, {WSZ}\ns_mov_b32 s{rWS+3}, 0x20000')
    def vote_slot(src, sidx, sslot):
        A(f's_mul_i32 s{sidx}, s{src}, 3\ns_lshr_b32 s{sidx}, s{sidx}, 5\ns_lshl_b32 s{sslot}, s{sidx}, 5\ns_add_u32 s{sslot}, s{sslot}, 2\ns_mul_i32 s{sslot}, s{sslot}, 43691\ns_lshr_b32 s{sslot}, s{sslot}, 17\ns_sub_u32 s{sslot}, s{src}, s{sslot}')
    sIDX, sSLT = 40, 41
    A(f's_cmp_eq_u32 s{sWAVE}, 4\ns_cbranch_scc0 L_noprobe')
    vote_slot(2, sIDX, sSLT)
    A(f's_cmp_ge_u32 s{sIDX}, 12\ns_cselect_b32 s{sT0}, 12, 0\ns_sub_u32 s{sT0}, s{sIDX}, s{sT0}')
    A(f's_lshl_b32 s{sT0}, s{sT0}, 3\ns_and_b32 s{sT1}, s{sSLT}, 7\ns_add_u32 s{sT0}, s{sT0}, s{sT1}\ns_lshl_b32 s{sT0}, s{sT0}, 21')
    A(f's_lshr_b32 s{sT1}, s{sSLT}, 3\ns_lshl_b32 s{sT1}, s{sT1}, 12\nv_mov_b32 {v(vT+4)}, 0\ns_mov_b64 exec, 1\ns_cmp_ge_u32 s{sIDX}, 12')
    A('s_waitcnt lgkmcnt(0)')
    A(f's_cselect_b32 s{sP}, s{sV}, s{sK}\ns_cselect_b32 s{sP+1}, s{sV+1}, s{sK+1}\ns_add_u32 s{sP}, s{sP}, s{sT0}\ns_addc_u32 s{sP+1}, s{sP+1}, 0')
    A(f's_bfe_u32 s{sT0}, s{sP}, 0x10015\ns_lshl_b32 s{sT0}, s{sT0}, 13\ns_add_u32 s{sT0}, s{sT0}, s{sT1}')
    A(f'v_mov_b32 {v(vT)}, s{sT0}\nv_xor_b32 {v(vT+1)}, 0x2000, {v(vT)}')
    A(f'global_load_dword {v(vT+2)}, {v(vT)}, {sp(sP)} nt\nglobal_load_dword {v(vT+3)}, {v(vT+1)}, {sp(sP)} nt\ns_mov_b64 exec, -1')
    A('s_barrier')
    ws_srd()
    A('s_waitcnt vmcnt(1)\ns_memtime s[36:37]\ns_waitcnt vmcnt(0)\ns_memtime s[38:39]')
    A(f'global_load_dword {v(vTAG)}, {v(vT+4)}, {sp(sWS)} sc1\ns_branch L_helper\nL_noprobe:')

    sO1, sO2, sOK = sN0, sN1, sFLV
    A(f's_cmp_ge_u32 s{sJ}, 3\ns_cbranch_scc0 L_w1mlp')
    A(f's_mov_b32 s{sBETA}, s{sH}\ns_sub_u32 s{sPI}, s{sJ}, 3\ns_mov_b32 s{sRS}, 12288\ns_mov_b32 s{sHASW1}, 1\ns_mul_i32 s{sO1}, s{sH}, 384')
    A('s_branch L_w1done\nL_w1mlp:')
    A(f's_mul_i32 s{sT1}, s{sU2}, 52429\ns_lshr_b32 s{sT1}, s{sT1}, 18')
    A(f's_mul_i32 s{sT2}, s{sT1}, 5\ns_sub_u32 s{sPI}, s{sU2}, s{sT2}\ns_add_u32 s{sBETA}, s{sT1}, 32\ns_mov_b32 s{sRS}, 3072')
    A(f's_cmp_lt_u32 s{sU2}, 80\ns_cselect_b32 s{sHASW1}, 1, 0\ns_and_b32 s{sT1}, s{sT1}, 7\ns_mul_i32 s{sO1}, s{sT1}, 384')
    A('L_w1done:')
    A(f's_lshl_b32 s{sT1}, s{sPI}, 2\ns_add_u32 s{sT1}, s{sT1}, s{sWAVE}\ns_lshl_b32 s{sT1}, s{sT1}, 5\ns_mul_i32 s{sT1}, s{sT1}, s{sRS}\ns_add_u32 s{sO1}, s{sO1}, s{sT1}')
    A(f's_mul_i32 s{sT1}, s{sRS}, 31\ns_add_u32 s{sT1}, s{sT1}, 384\ns_mul_i32 s{rW1+2}, s{sT1}, s{sHASW1}\ns_mov_b32 s{rW1+3}, 0x20000')
    if now: A(f's_mov_b32 s{rW1+2}, 0')
    for p in range(3):
        A(f'v_add_u32 {v(vT)}, {64*p}, {v(vLANE)}\nv_mul_u32_u24 {v(vT+1)}, 2731, {v(vT)}\nv_lshrrev_b32 {v(vT+1)}, 16, {v(vT+1)}')
        A(f'v_mul_u32_u24 {v(vT+2)}, 24, {v(vT+1)}\nv_sub_u32 {v(vT)}, {v(vT)}, {v(vT+2)}\nv_lshlrev_b32 {v(vT)}, 4, {v(vT)}')
        A(f'v_mad_u32_u24 {v(vS+p)}, {v(vT+1)}, s{sRS}, {v(vT)}')
        A(f'v_and_b32 {v(vT+1)}, 6, {v(vT+1)}\nv_lshlrev_b32 {v(vT+1)}, 4, {v(vT+1)}\nv_xor_b32 {v(vT)}, {v(vT)}, {v(vT+1)}\nv_lshl_add_u32 {v(vSRC+p)}, {v(vT+2)}, 4, {v(vT)}')
    A(f's_mul_i32 s{sSLA}, s{sWAVE}, {RING}\ns_add_u32 s{sSLB}, s{sSLA}, {SLOT}\ns_mul_i32 s{sSLC}, s{sWAVE}, {WT}\ns_add_u32 s{sSLC}, s{sSLC}, {WREG}')
    A(f's_mul_i32 s{sT0}, s{sWAVE}, 1280\nv_lshlrev_b32 {v(vA)}, 2, {v(vLANE)}\nv_add_u32 {v(vA)}, s{sT0}, {v(vA)}\ns_mul_i32 s{sOK}, s{sRHO}, 1572864')
    A(f's_cmp_lt_u32 s{sBETA}, 40')
    A('s_waitcnt lgkmcnt(0)')
    pstamp(1)
    if stamps == 3: A(f's_cmp_lt_u32 s{sBETA}, 40')
    A(f's_cselect_b32 s{rW1}, s{sWG}, s{sWU}\ns_cselect_b32 s{rW1+1}, s{sWG+1}, s{sWU+1}\ns_cmp_lt_u32 s{sBETA}, 32\ns_cselect_b32 s{rW1}, s{sWQ}, s{rW1}\ns_cselect_b32 s{rW1+1}, s{sWQ+1}, s{rW1+1}')
    A(f's_add_u32 s{rW1}, s{rW1}, s{sO1}\ns_addc_u32 s{rW1+1}, s{rW1+1}, 0')
    if touch:
        A(f's_load_dword s96, {sp(rW1)}, 0\ns_load_dword s97, {sp(sX)}, 0\ns_load_dword s98, {sp(sK)}, s{sOK}')
    A('s_barrier')
    pstamp(2)
    for k in range(5): A(f'global_load_dword {v(vF+k)}, {v(vA)}, {sp(sX)} offset:{256*k}')
    def w1_issue():
        A(f's_lshl_b32 s{sT2}, s{sRS}, 3\ns_mov_b32 s{sT1}, 0')
        for i in range(12):
            A(f's_add_u32 m0, s{sSLC}, {1024*i}')
            A(f's_add_u32 s{sT1}, s{sT1}, s{sT2}' if i and i % 3 == 0 else 's_nop 0')
            A(f'buffer_load_dwordx4 {v(vS+i%3)}, {srd(rW1)}, s{sT1} offen {w1nt} lds')
    if late:
        assert up == 0
        A(f's_cmp_ge_u32 s{sJ}, 3\ns_cbranch_scc0 L_w1late')
    w1_issue()
    if late: A('L_w1late:')
    A(f'v_mov_b32 {v(vT)}, 0\nglobal_load_dword {v(vTAG)}, {v(vT)}, {sp(sWS)} sc1')
    pstamp(3)
    ws_srd()
    A(f's_add_u32 s{rK}, s{sK}, s{sOK}\ns_addc_u32 s{rK+1}, s{sK+1}, 0\ns_mov_b32 s{rK+3}, 0x20000')
    A(f's_add_u32 s{sVB}, s{sV}, s{sOK}\ns_addc_u32 s{sVB+1}, s{sV+1}, 0')
    A(f's_mov_b32 s{sU}, s{sWAVE}')
    block_params(1, sN0)
    dma_tile(sOFF, sSLA, None, 0, up, knt)
    A(f's_cmp_lt_u32 s{sJ}, 5\ns_cbranch_scc0 L_w2down')
    A(f's_mul_i32 s{sT1}, s{sH}, {192*1280}\ns_lshl_b32 s{sT2}, s{sJ}, 8\ns_add_u32 s{sT1}, s{sT1}, s{sT2}')
    A(f's_add_u32 s{rW2}, s{sWO}, s{sT1}\ns_addc_u32 s{rW2+1}, s{sWO+1}, 0\ns_mov_b32 s{rW2+2}, {47*1280+256}\ns_branch L_w2done')
    A('L_w2down:')
    A(f's_sub_u32 s{sT3}, s{sU2}, 5\ns_mul_i32 s{sT1}, s{sT3}, 52429\ns_lshr_b32 s{sT1}, s{sT1}, 18\ns_mul_i32 s{sT2}, s{sT1}, 5\ns_sub_u32 s{sT2}, s{sT3}, s{sT2}')
    A(f's_mul_i32 s{sT1}, s{sT1}, {96*1280}\ns_lshl_b32 s{sT2}, s{sT2}, 8\ns_add_u32 s{sT1}, s{sT1}, s{sT2}')
    A(f's_add_u32 s{rW2}, s{sWD}, s{sT1}\ns_addc_u32 s{rW2+1}, s{sWD+1}, 0')
    A(f's_cmp_lt_u32 s{sT3}, 80\ns_cselect_b32 s{rW2+2}, {47*1280+256}, 0\ns_cmp_lt_u32 s{sWAVE}, 2\ns_cselect_b32 s{rW2+2}, s{rW2+2}, 0')
    A('L_w2done:')
    A(f's_mul_i32 s{sT1}, s{sWAVE}, {48*1280}\ns_add_u32 s{rW2}, s{rW2}, s{sT1}\ns_addc_u32 s{rW2+1}, s{rW2+1}, 0\ns_mov_b32 s{rW2+3}, 0x20000')
    if now: A(f's_mov_b32 s{rW2+2}, 0')
    A(f'v_lshrrev_b32 {v(vT)}, 2, {v(vLANE)}\nv_mul_u32_u24 {v(vT)}, 384, {v(vT)}\nv_and_b32 {v(vT+1)}, 3, {v(vLANE)}\nv_lshl_add_u32 {v(vVA0)}, {v(vT+1)}, 3, {v(vT)}')
    if late:
        A(f's_cmp_ge_u32 s{sJ}, 3\ns_cbranch_scc1 L_xw\ns_waitcnt vmcnt(0)\nL_xw:')
    A(f's_waitcnt vmcnt({1+12+up})')
    pstamp(4)
    X = vF + 8
    for k in range(5):
        A(f'v_lshlrev_b32 {v(X+2*k)}, 16, {v(vF+k)}\nv_and_b32 {v(X+2*k+1)}, 0xffff0000, {v(vF+k)}')
    a = vT
    A(f'v_add_f32 {v(a)}, {v(X)}, {v(X+1)}')
    for k in range(2, 10): A(f'v_add_f32 {v(a)}, {v(a)}, {v(X+k)}')
    xsum(a, a+1)
    A(f'v_mul_f32 {v(a)}, {f2u(1/640):#x}, {v(a)}')
    b_ = vT+2
    A(f'v_sub_f32 {v(a+1)}, {v(X)}, {v(a)}\nv_mul_f32 {v(b_)}, {v(a+1)}, {v(a+1)}')
    for k in range(1, 10): A(f'v_sub_f32 {v(a+1)}, {v(X+k)}, {v(a)}\nv_fmac_f32 {v(b_)}, {v(a+1)}, {v(a+1)}')
    xsum(b_, a+1)
    A(f'v_mul_f32 {v(b_)}, {f2u(1/640):#x}, {v(b_)}')
    rnd2(a, b_, a+1)
    A(f'v_add_f32 {v(b_)}, {f2u(1e-5):#x}, {v(b_)}')
    rnd(b_, a+1)
    c_ = vT+3
    A(f'v_sqrt_f32 {v(c_)}, {v(b_)}\ns_nop 0\nv_rcp_f32 {v(c_+1)}, {v(c_)}\nv_fma_f32 {v(a+1)}, -{v(c_)}, {v(c_)}, {v(b_)}')
    A(f'v_mul_f32 {v(c_+1)}, 0.5, {v(c_+1)}\nv_fma_f32 {v(c_)}, {v(a+1)}, {v(c_+1)}, {v(c_)}')
    rnd(c_, a+1)
    A(f'v_rcp_f32 {v(c_+1)}, {v(c_)}')
    A(f'v_mov_b32 {v(vT+6)}, {v(X)}\nv_mov_b32 {v(vT+7)}, {v(X+1)}')
    for k in range(1, 5):
        A(f's_cmp_eq_u32 s{sPI}, {k}\ns_cselect_b64 vcc, -1, 0\nv_cndmask_b32 {v(vT+6)}, {v(vT+6)}, {v(X+2*k)}, vcc\nv_cndmask_b32 {v(vT+7)}, {v(vT+7)}, {v(X+2*k+1)}, vcc')
    A(f'v_sub_f32 {v(vT+6)}, {v(vT+6)}, {v(a)}\nv_sub_f32 {v(vT+7)}, {v(vT+7)}, {v(a)}')
    rnd2(vT+6, vT+7, a+1)
    fdiv(vT+8, vT+6, c_, c_+1, a+1)
    fdiv(vT+9, vT+7, c_, c_+1, a+1)
    A(f'v_cvt_pk_bf16_f32 {v(vT+8)}, {v(vT+8)}, {v(vT+9)}')
    A(f's_lshl_b32 s{sT1}, s{sWAVE}, 8\ns_add_u32 s{sT1}, s{sT1}, {XN}\nv_lshlrev_b32 {v(vA)}, 2, {v(vLANE)}\nv_add_u32 {v(vA)}, s{sT1}, {v(vA)}')
    A(f'ds_write_b32 {v(vA)}, {v(vT+8)}')
    A(f'v_bfe_u32 {v(vT)}, {v(vLANE)}, 2, 2\nv_lshlrev_b32 {v(vT)}, 8, {v(vT)}\nv_lshrrev_b32 {v(vT+1)}, 4, {v(vLANE)}\nv_lshl_add_u32 {v(vT)}, {v(vT+1)}, 3, {v(vT)}')
    A(f's_lshl_b32 s{sT1}, s{sWAVE}, 6\ns_add_u32 s{sT1}, s{sT1}, {XN}\nv_add_u32 {v(vA)}, s{sT1}, {v(vT)}')
    A('s_waitcnt lgkmcnt(0)\ns_barrier')
    if stamps == 1: stamp(1)
    pstamp(5)
    A(f'ds_read2_b64 {v(vP,4)}, {v(vA)} offset0:0 offset1:4')
    if late:
        A(f's_cmp_ge_u32 s{sJ}, 3\ns_cbranch_scc1 L_w1early')
        w1_issue()
        A('L_w1early:')
    k0a = max(up, min(9, pace))
    dma_tile(sOFF, sSLA, pace, up, k0a, knt)
    A(f'v_add_u32 {v(vA)}, s{sSLC}, {v(vVA0)}')
    A(f's_waitcnt vmcnt({k0a}) lgkmcnt(0)')
    pstamp(6)
    trread_mfma(12, vA, 6144, vO, True, vF, vP)
    A(f's_mul_i32 s{sT1}, s{sWAVE}, 3072\ns_add_u32 s{sT1}, s{sT1}, {RED}')
    A(f'v_lshrrev_b32 {v(vT)}, 4, {v(vLANE)}\nv_mul_u32_u24 {v(vT)}, 768, {v(vT)}\nv_and_b32 {v(vT+1)}, 15, {v(vLANE)}\nv_lshl_add_u32 {v(vT)}, {v(vT+1)}, 2, {v(vT)}\nv_add_u32 {v(vA)}, s{sT1}, {v(vT)}')
    A('s_nop 2')
    for t in range(12): A(f'ds_write_b32 {v(vA)}, {v(vO+4*t)} offset:{64*t}')
    A(f's_mul_i32 s{sT1}, s{sWAVE}, 768\ns_add_u32 s{sT1}, s{sT1}, {RED}\nv_mul_u32_u24 {v(vA)}, 12, {v(vLANE)}\nv_add_u32 {v(vA)}, s{sT1}, {v(vA)}')
    A('s_waitcnt lgkmcnt(0)\ns_barrier')
    for w in range(4):
        for k in range(3): A(f'ds_read_b32 {v(vF+4*w+k)}, {v(vA)} offset:{3072*w+4*k}')
    A(f'v_lshrrev_b32 {v(vT)}, 4, {v(vLANE)}\nv_mul_u32_u24 {v(vT)}, 1280, {v(vT)}\nv_and_b32 {v(vT+1)}, 15, {v(vLANE)}\nv_lshl_add_u32 {v(vS)}, {v(vT+1)}, 4, {v(vT)}')
    A(f's_mul_i32 s{sT1}, s{sBETA}, 5\ns_add_u32 s{sT1}, s{sT1}, s{sPI}\ns_lshl_b32 s{sT1}, s{sT1}, 2\ns_add_u32 s{sT1}, s{sT1}, s{sWAVE}\ns_lshl_b32 s{sT1}, s{sT1}, 10\ns_add_u32 s{sT1}, s{sT1}, {P1}')
    A(f'v_add_u32 {v(vTAG)}, {TAGC:#x}, {v(vTAG)}')
    A('s_waitcnt lgkmcnt(0)')
    for k in range(3):
        A(f'v_add_f32 {v(vF+k)}, {v(vF+k)}, {v(vF+4+k)}\nv_add_f32 {v(vF+8+k)}, {v(vF+8+k)}, {v(vF+12+k)}')
    for k in range(3): A(f'v_add_f32 {v(vF+k)}, {v(vF+k)}, {v(vF+8+k)}')
    A(f'v_mov_b32 {v(vF+3)}, {v(vTAG)}')
    A(f's_cmp_eq_u32 s{sHASW1}, 0\ns_cbranch_scc1 L_nopub1')
    A(f'buffer_store_dwordx4 {v(vF,4)}, {v(vL16)}, {srd(rWS)}, s{sT1} offen sc1')
    A('L_nopub1:')
    stamp(2)
    dma_tile(sOFF, sSLA, pace, k0a, 9, knt)
    A(f's_mov_b32 s{sT1}, 0')
    for i in range(12):
        A(f's_add_u32 m0, s{sSLC}, {1024*i}\ns_waitcnt vmcnt({pace-1})')
        A(f'buffer_load_dwordx4 {v(vS)}, {srd(rW2)}, s{sT1} offen {w2nt} lds')
        if i < 11: A(f's_add_u32 s{sT1}, s{sT1}, 5120')
    block_params(1, sN1)
    dma_tile(sOFF, sSLB, pace, 0, 9, knt)
    for t in range(12):
        for r in range(4): A(f'v_mov_b32 {v(vO+4*t+r)}, 0')
    A(f'v_mov_b32 {v(vM)}, {f2u(-1e30):#x}\nv_mov_b32 {v(vML)}, {f2u(-1e30):#x}\nv_mov_b32 {v(vLS)}, 0\ns_mov_b32 s{sNEG}, 0xff80ff80')
    A(f'v_lshrrev_b32 {v(vT+1)}, 4, {v(vLANE)}')
    for hf in range(2):
        A(f'v_and_b32 {v(vT)}, 15, {v(vLANE)}')
        if hf: A(f'v_min_u32 {v(vT)}, 5, {v(vT)}\nv_add_u32 {v(vT)}, 16, {v(vT)}')
        A(f'v_and_b32 {v(vT+2)}, 6, {v(vT)}\nv_xor_b32 {v(vT+2)}, {v(vT+2)}, {v(vT+1)}\nv_mul_u32_u24 {v(vT)}, 384, {v(vT)}')
        A(f'v_lshl_add_u32 {v(vKB+2*hf)}, {v(vT+2)}, 4, {v(vT)}\nv_xor_b32 {v(vT+2)}, 4, {v(vT+2)}\nv_lshl_add_u32 {v(vKB+2*hf+1)}, {v(vT+2)}, 4, {v(vT)}')
    for hf in range(2):
        A(f'v_lshrrev_b32 {v(vT)}, 2, {v(vLANE)}')
        if hf: A(f'v_min_u32 {v(vT)}, 5, {v(vT)}\nv_add_u32 {v(vT)}, 16, {v(vT)}')
        A(f'v_bfe_u32 {v(vT+2)}, {v(vT)}, 1, 2\nv_mul_u32_u24 {v(vT)}, 384, {v(vT)}\nv_and_b32 {v(vT+3)}, 3, {v(vLANE)}\nv_lshl_add_u32 {v(vT)}, {v(vT+3)}, 3, {v(vT)}')
        for k in range(4): A(f'v_xor_b32 {v(vT+3)}, {k}, {v(vT+2)}\nv_lshl_add_u32 {v(vVB+4*hf+k)}, {v(vT+3)}, 5, {v(vT)}')
    A(f'v_cmp_gt_u32 vcc, 16, {v(vLANE)}\nv_mov_b32 {v(vT)}, 0xffff\nv_mov_b32 {v(vT+2)}, 0xffff0000\nv_cndmask_b32 {v(vM3)}, 0, -1, vcc')
    A(f'v_cmp_eq_u32 vcc, 1, {v(vT+1)}\ns_mul_i32 s{sT1}, s{sWAVE}, 1536\ns_add_u32 s{sT1}, s{sT1}, {STG}\nv_cndmask_b32 {v(vM2B)}, {v(vM3)}, {v(vT)}, vcc\nv_cndmask_b32 {v(vM2X)}, 0, {v(vT+2)}, vcc')
    A(f'v_lshl_add_u32 {v(vSK)}, {v(vT+1)}, 4, s{sT1}\nv_add_u32 {v(vSV)}, {22*64}, {v(vSK)}\nv_mov_b32 {v(vFA)}, {FLG+8}\nv_mov_b32 {v(vONE)}, 1')
    A(f'v_add_u32 {v(vT)}, 352, {v(vLANE)}\nv_cmp_gt_u32 vcc, 32, {v(vLANE)}\nv_add_u32 {v(vT+2)}, -32, {v(vLANE)}\ns_nop 0\nv_cndmask_b32 {v(vT)}, {v(vT+2)}, {v(vT)}, vcc\nv_lshl_add_u32 {v(vPA)}, {v(vT)}, 2, s{sT1}')
    A(f's_add_u32 s{sSTG}, s{sT1}, 128')
    A(f'v_lshlrev_b32 {v(vA)}, 4, {v(vT+1)}\nv_add_u32 {v(vA)}, {QL}, {v(vA)}\nv_mov_b32 {v(vT+2)}, {FLG}')
    A('s_waitcnt vmcnt(9)')
    if stamps == 2: stamp(1)
    A('s_barrier')
    stamp(3)
    A(f'ds_read_b128 {v(vT+4,4)}, {v(vT+2)}')
    for s in range(6): A(f'ds_read_b128 {v(vQ+4*s,4)}, {v(vA)} offset:{64*s}')
    A(f's_mov_b32 s{sT}, 0\ns_waitcnt lgkmcnt(6)')
    A(f'v_readfirstlane_b32 s{sFL}, {v(vT+4)}\nv_readfirstlane_b32 s{sFLV}, {v(vT+5)}')
    A(f's_nop 0\ns_mov_b64 {sp(sCM)}, 0')
    grp = [0x3f, 0xff << 6, 0x3f << 14]
    for i in range(3):
        A(f's_bitcmp1_b32 s{sFL}, {i}\ns_cselect_b32 s{sT1}, {grp[i]:#x}, 0\ns_or_b32 s{sCM}, s{sCM}, s{sT1}')
        gv = grp[i] << 26
        A(f's_bitcmp1_b32 s{sFLV}, {i}')
        if gv & 0xffffffff: A(f's_cselect_b32 s{sT1}, {gv & 0xffffffff:#x}, 0')
        if gv >> 32: A(f's_cselect_b32 s{sT2}, {gv >> 32:#x}, 0\ns_or_b32 s{sCM+1}, s{sCM+1}, s{sT2}')
        if gv & 0xffffffff: A(f's_or_b32 s{sCM}, s{sCM}, s{sT1}')
    for k in range(2):
        A(f's_bitcmp1_b32 s{sRHO}, 0\ns_cselect_b32 s{sT1}, s{sFL if k else sFLV}, s{sFLV if k else sFL}\ns_bitcmp1_b32 s{sT1}, 2\ns_cselect_b32 s{sT1}, {5 << (20+k):#x}, 0\ns_or_b32 s{sCM}, s{sCM}, s{sT1}')
    A(f's_sub_u32 s{sT1}, 0, s{sHALF}\ns_xor_b32 s{sCM}, s{sCM}, s{sT1}\ns_xor_b32 s{sCM+1}, s{sCM+1}, s{sT1}')
    A(f's_mov_b32 s{sPUB}, 4\ns_waitcnt lgkmcnt(0)')
    def arrive():
        A(f's_mov_b64 exec, 1\nds_add_u32 {v(vFA)}, {v(vONE)}\ns_mov_b64 exec, -1')
    chk = f'ds_read_b64 {v(vR,2)}, {v(vFA)}'
    def step_wait(lbl):
        if not sync: return
        A(f'{lbl}:\ns_waitcnt lgkmcnt(0)\nv_readfirstlane_b32 s{sT1}, {v(vR)}\ns_nop 0\ns_cmp_ge_u32 s{sT1}, s{sPUB}\ns_cbranch_scc1 {lbl}_ok')
        A(f'{chk}\ns_branch {lbl}\n{lbl}_ok:')
    A('.p2align 6\nL_kloop:')
    for k in range(4): A(f'v_add_u32 {v(vAD+k)}, s{sSLA}, {v(vKB+k)}')
    A('s_waitcnt vmcnt(9)')
    arrive()
    for kt in range(2):
        for s in range(6):
            if not (nocomp & 1): A(f'ds_read_b128 {v(vF+24*kt+4*s,4)}, {v(vAD+2*kt+(s&1))} offset:{128*(s>>1)}')
    A(chk)
    A(f'v_and_or_b32 {v(vT+8)}, {v(vM2X)}, s{sN0}, {v(vM2B)}\ns_mov_b32 s{sN0}, s{sN1}')
    A(f's_cmp_lg_u32 s{sT}, 22\ns_cbranch_scc1 L_knosw')
    A(f's_mov_b32 s{rK}, s{sVB}\ns_mov_b32 s{rK+1}, s{sVB+1}\ns_sub_u32 s{sU}, s{sU}, 8')
    A('L_knosw:')
    block_params(0, sN1)
    for kt in range(2):
        for s in range(6):
            i = 6*kt + s
            A(f's_waitcnt lgkmcnt({12-i})')
            c = '0' if s == 0 else v(vS+4*kt, 4)
            A(f'v_mfma_f32_16x16x32_bf16 {v(vS+4*kt,4)}, {v(vF+4*i,4)}, {v(vQ+4*s,4)}, {c}')
    step_wait('L_ks')
    dma_tile(sOFF, sSLA, None, 0, pre, knt)
    A(f's_nop {max(0, 7 - 3*pre)}')
    for k in range(4): rnd2(vS+2*k, vS+2*k+1, vT+k)
    for k in range(8): A(f'v_mul_f32 {v(vS+k)}, s{sSC}, {v(vS+k)}')
    for k in range(4): A(f'v_cvt_pk_bf16_f32 {v(vT+k)}, {v(vS+2*k)}, {v(vS+2*k+1)}')
    A(f'v_bfi_b32 {v(vT+2)}, {v(vT+8)}, {v(vT+2)}, s{sNEG}\nv_bfi_b32 {v(vT+3)}, {v(vM3)}, {v(vT+3)}, s{sNEG}')
    A(f's_mov_b32 exec_lo, 0x00010001\ns_mov_b32 exec_hi, 0x00010001\nds_write_b128 {v(vSK)}, {v(vT,4)}\ns_mov_b64 exec, -1\nv_add_u32 {v(vSK)}, 64, {v(vSK)}')
    A(f's_cmp_eq_u32 s{sT}, 23\ns_cbranch_scc1 L_spa')
    dma_tile(sOFF, sSLA, D, pre, 9, knt)
    A(f's_mov_b32 s{sT1}, s{sSLA}\ns_mov_b32 s{sSLA}, s{sSLB}\ns_mov_b32 s{sSLB}, s{sT1}')
    A(f's_add_u32 s{sT}, s{sT}, 1\ns_add_u32 s{sPUB}, s{sPUB}, 4\ns_branch L_kloop')
    A('.p2align 6\nL_vloop:')
    for k in range(8): A(f'v_add_u32 {v(vAD+k)}, s{sSLA}, {v(vVB+k)}')
    A(f'ds_read_b128 {v(vP,4)}, {v(vSV)}\ns_cmp_eq_u32 s{sT}, 25\ns_cselect_b32 s{sT1}, {64-1536}, 64\nv_add_u32 {v(vSV)}, s{sT1}, {v(vSV)}')
    A(f's_cmp_lg_u32 s{sT}, 24\ns_cbranch_scc1 L_vnosw\ns_mov_b32 s{sU}, s{sWAVE}\nL_vnosw:')
    block_params(2, sN1)
    A('s_waitcnt vmcnt(9)')
    arrive()
    if not (nocomp & 2): trread_mfma(12, vAD, 0, vO, False, vF, vP, vAD+4, chk)
    else: A(chk)
    A(f's_cmp_eq_u32 s{sT}, 47\ns_cbranch_scc1 L_loopx')
    step_wait('L_vs')
    dma_tile(sOFF, sSLA, None, 0, pre, vnt)
    A(f's_cmp_eq_u32 s{sT}, 27\ns_cbranch_scc1 L_spb')
    A('L_vmid:')
    if nend:
        A(f's_cmp_ge_u32 s{sT}, {46-nend}\ns_cbranch_scc0 L_vpc')
        dma_tile(sOFF, sSLA, Dend if Dend < 18 else None, pre, 9, vnt)
        A('s_branch L_vpe\nL_vpc:')
    dma_tile(sOFF, sSLA, D, pre, 9, vnt)
    if nend: A('L_vpe:')
    A(f's_mov_b32 s{sT1}, s{sSLA}\ns_mov_b32 s{sSLA}, s{sSLB}\ns_mov_b32 s{sSLB}, s{sT1}')
    A(f's_add_u32 s{sT}, s{sT}, 1\ns_add_u32 s{sPUB}, s{sPUB}, 4\ns_branch L_vloop')
    A('L_loopx:')
    stamp(4)
    if lred:
        A('s_mov_b64 exec, 0xffff\ns_nop 3')
        for t in range(12): A(f'ds_write_b32 {v(vSK)}, {v(vO+4*t)} offset:{64*t}')
        A('s_mov_b64 exec, -1')
    else:
        xsum(vLS, vT)
        A(f's_lshl_b32 s{sT1}, s{sWAVE}, 10\ns_add_u32 s{sT1}, s{sT1}, {OCB}\nv_lshlrev_b32 {v(vA)}, 2, {v(vLANE)}\nv_add_u32 {v(vA)}, s{sT1}, {v(vA)}')
        A('s_mov_b64 exec, 0xffff')
        for t in range(12): A(f'ds_write_b32 {v(vA)}, {v(vO+4*t)} offset:{64*t}')
        A(f's_mov_b64 exec, 1\nds_write2_b32 {v(vA)}, {v(vML)}, {v(vLS)} offset0:192 offset1:193\ns_mov_b64 exec, -1')
    A('s_waitcnt lgkmcnt(0)\ns_barrier')
    A(f's_cmp_ge_u32 s{sJ}, 5\ns_cbranch_scc1 L_sdone')
    A(f'v_lshrrev_b32 {v(vT)}, 2, {v(vLANE)}\nv_lshlrev_b32 {v(vT)}, 8, {v(vT)}\nv_and_b32 {v(vT+1)}, 3, {v(vLANE)}\nv_lshl_add_u32 {v(vT)}, {v(vT+1)}, 3, {v(vT)}')
    A(f's_lshl_b32 s{sT1}, s{sWAVE}, 6\ns_add_u32 s{sT1}, s{sT1}, {WREG}\nv_add_u32 {v(vA)}, s{sT1}, {v(vT)}')
    for s in range(6):
        for t in range(2):
            f = vW + 24*t + 4*s
            A(f'ds_read_b64_tr_b16 {v(f,2)}, {v(vA)} offset:{8192*s+32*t}\nds_read_b64_tr_b16 {v(f+2,2)}, {v(vA)} offset:{8192*s+32*t+4096}')
        if s % 2 == 1 and s < 5: A('s_waitcnt lgkmcnt(4)')
    A(f's_lshl_b32 s{sT1}, s{sH}, 3\ns_lshl_b32 s{sT2}, s{sWAVE}, 1\ns_add_u32 s{sT1}, s{sT1}, s{sT2}\ns_lshl_b32 s{sT1}, s{sT1}, 11\ns_add_u32 s{sT1}, s{sT1}, {OP}\ns_add_u32 s{sT2}, s{sT1}, 2048')
    A(f'v_mov_b32 {v(vA)}, 1024')
    mko = lambda b: [wsload(b, vL16, sT1), wsload(b+4, vL16, sT2), wsload(b+8, vA, sT1), wsload(b+12, vA, sT2)]
    w0_, w1_, l0_, l1_, on_ = vQ, vQ+1, vQ+2, vQ+3, vQ+4
    def useo(b):
        A(f'v_max_f32 {v(vT)}, {v(b+8)}, {v(b+12)}\nv_sub_f32 {v(w0_)}, {v(b+8)}, {v(vT)}\nv_sub_f32 {v(w1_)}, {v(b+12)}, {v(vT)}\nv_exp_f32 {v(w0_)}, {v(w0_)}\nv_exp_f32 {v(w1_)}, {v(w1_)}\ns_nop 0')
        A(f'v_mul_f32 {v(l0_)}, {v(b+9)}, {v(w0_)}\nv_fmac_f32 {v(l0_)}, {v(b+13)}, {v(w1_)}\nv_rcp_f32 {v(l1_)}, {v(l0_)}')
        for k in range(3): A(f'v_mul_f32 {v(on_+k)}, {v(b+k)}, {v(w0_)}\nv_fmac_f32 {v(on_+k)}, {v(b+4+k)}, {v(w1_)}')
    if po: poll2('L_po', mko, 4, vF, vF+16, 4, po, useo)
    else:
        poll('L_po', mko(vF), [vF+3, vF+7, vF+11, vF+15], 4)
        useo(vF)
    stamp(5)
    A(f's_mul_i32 s{sT1}, s{sWAVE}, 384\ns_add_u32 s{sT1}, s{sT1}, {OBF}')
    A(f'v_mul_u32_u24 {v(vA)}, 6, {v(vLANE)}\nv_add_u32 {v(vA)}, s{sT1}, {v(vA)}')
    for k in range(3): fdiv(on_+4+k, on_+k, l0_, l1_, vT)
    put3_bf16(on_+4, vT, vA)
    A(f'v_bfe_u32 {v(vT+2)}, {v(vLANE)}, 2, 2\nv_mul_u32_u24 {v(vT+2)}, 384, {v(vT+2)}\nv_lshrrev_b32 {v(vT+3)}, 4, {v(vLANE)}\nv_lshl_add_u32 {v(vT+2)}, {v(vT+3)}, 3, {v(vT+2)}\nv_add_u32 {v(vA)}, {OBF}, {v(vT+2)}')
    A(f's_lshl_b32 s{sT1}, s{sJ}, 2\ns_add_u32 s{sT1}, s{sT1}, s{sWAVE}\ns_lshl_b32 s{sT1}, s{sT1}, 5\ns_add_u32 s{sT1}, s{sT1}, s{sH}\ns_lshl_b32 s{sT1}, s{sT1}, 10\ns_add_u32 s{sT1}, s{sT1}, {YP}')
    A('s_waitcnt lgkmcnt(0)\ns_barrier')
    for s in range(6): A(f'ds_read2_b64 {v(vO+4*s,4)}, {v(vA)} offset0:{8*s} offset1:{8*s+4}')
    for s in range(6):
        A(f's_waitcnt lgkmcnt({5-s})')
        for t in range(2):
            c = '0' if s == 0 else v(vS+4*t, 4)
            A(f'v_mfma_f32_16x16x32_bf16 {v(vS+4*t,4)}, {v(vO+4*s,4)}, {v(vW+24*t+4*s,4)}, {c}')
    A(f'v_mov_b32 {v(vT+2)}, {v(vTAG)}\nv_mov_b32 {v(vT+3)}, {v(vTAG)}\ns_nop 5')
    A(f'v_mov_b32 {v(vT)}, {v(vS)}\nv_mov_b32 {v(vT+1)}, {v(vS+4)}')
    A(f'buffer_store_dwordx4 {v(vT,4)}, {v(vL16)}, {srd(rWS)}, s{sT1} offen sc1')
    A('L_sdone:')
    if fixdur:
        A(f'L_fix:\ns_memrealtime s[98:99]\ns_waitcnt lgkmcnt(0)\ns_sub_u32 s98, s98, s96\ns_cmp_lt_u32 s98, {fixdur*100}\ns_cbranch_scc1 L_fix')
    stamp(6)
    if stamps:
        A(f's_cmp_lg_u32 s{sWAVE}, 0\ns_cbranch_scc1 L_end\ns_waitcnt vmcnt(0)')
        stamp(7)
        write_stamps(0, 's')
    A('s_endpgm')

    def soft_pass(n, addr, off):
        X = vF
        for i in range(n): A(f'ds_read_b32 {v(vT+8+i)}, {v(addr)} offset:{off*i}')
        for i in range(n):
            A(f's_waitcnt lgkmcnt({n-1-i})\nv_lshlrev_b32 {v(X+2*i)}, 16, {v(vT+8+i)}\nv_and_b32 {v(X+2*i+1)}, 0xffff0000, {v(vT+8+i)}\nv_max3_f32 {v(vM)}, {v(X+2*i)}, {v(X+2*i+1)}, {v(vM)}')
        xsum(vM, vT, 'v_max_f32')
        A(f'v_mul_f32 {v(vT)}, s{sL2E}, {v(vM)}\nv_sub_f32 {v(vAL)}, {v(vML)}, {v(vT)}\nv_mov_b32 {v(vML)}, {v(vT)}\nv_exp_f32 {v(vAL)}, {v(vAL)}')
        for k in range(2*n): A(f'v_fma_f32 {v(X+k)}, {v(X+k)}, s{sL2E}, -{v(vML)}')
        for k in range(2*n): A(f'v_exp_f32 {v(X+k)}, {v(X+k)}')
        A(f'v_mul_f32 {v(vLS)}, {v(vLS)}, {v(vAL)}')
        for i in range(n):
            A(f'v_cvt_pk_bf16_f32 {v(vT+8+i)}, {v(X+2*i)}, {v(X+2*i+1)}\nv_add_f32 {v(vLS)}, {v(vLS)}, {v(X+2*i)}\nv_add_f32 {v(vLS)}, {v(vLS)}, {v(X+2*i+1)}')
            A(f'ds_write_b32 {v(addr)}, {v(vT+8+i)} offset:{off*i}')
    A('L_spa:')
    soft_pass(1, vPA, 0)
    A('s_branch L_vmid')
    A('L_spb:')
    if not noex:
        A(f's_mov_b32 s{sCNT}, {spin*8}')
        A(f'L_vchk:\ns_waitcnt lgkmcnt(0)\nv_readfirstlane_b32 s{sT1}, {v(vR+1)}\ns_sub_u32 s{sCNT}, s{sCNT}, 1\ns_cmp_eq_u32 s{sCNT}, 0\ns_cbranch_scc1 L_vnoc')
        A(f's_cmp_lg_u32 s{sT1}, 0\ns_cbranch_scc1 L_vnoc\n{chk}\ns_branch L_vchk\nL_vnoc:')
    A(f'v_lshl_add_u32 {v(vPA)}, {v(vLANE)}, 2, s{sSTG}')
    soft_pass(5, vPA, 256)
    for t in range(12): A(f'v_mul_f32 {v(vO+4*t)}, {v(vAL)}, {v(vO+4*t)}')
    if lred:
        xsum(vLS, vT)
        A(f's_lshl_b32 s{sT1}, s{sWAVE}, 10\ns_add_u32 s{sT1}, s{sT1}, {OCB}\nv_lshlrev_b32 {v(vSK)}, 2, {v(vLANE)}\nv_add_u32 {v(vSK)}, s{sT1}, {v(vSK)}')
        A(f's_mov_b64 exec, 1\nds_write2_b32 {v(vSK)}, {v(vML)}, {v(vLS)} offset0:192 offset1:193\ns_mov_b64 exec, -1')
    A('s_branch L_vmid')
    A('L_helper:')
    inhelper[0] = True
    A(f's_getreg_b32 s{sT3}, hwreg(HW_REG_XCC_ID, 2, 1)')
    A('s_waitcnt lgkmcnt(0)')
    A(f's_sub_u32 s{sT0}, s38, s36\ns_min_u32 s{sT0}, s{sT0}, {cap}\ns_sub_u32 s{sT0}, s{sT0}, {thr}\ns_sub_u32 s{sT1}, 0, s{sT0}')
    A(f's_cmp_eq_u32 s{sT3}, 0\ns_cselect_b32 s{sT0}, s{sT0}, s{sT1}')
    A(f'v_mov_b32 {v(vP)}, s{sT0}\nv_mov_b32 {v(vP+1)}, s{sT3}\nv_mov_b32 {v(vP+2)}, 0')
    A(f's_lshl_b32 s{sT0}, s{sIDX}, 4\ns_add_u32 s{sT0}, s{sT0}, s{sSLT}\ns_lshl_b32 s{sT0}, s{sT0}, 4\ns_add_u32 s{sT0}, s{sT0}, {VOTE}')
    A(f's_waitcnt vmcnt(0)\nv_add_u32 {v(vTAG)}, {TAGC:#x}, {v(vTAG)}\nv_mov_b32 {v(vP+3)}, {v(vTAG)}')
    A(f's_mov_b64 exec, 1\nbuffer_store_dwordx4 {v(vP,4)}, {v(vL16)}, {srd(rWS)}, s{sT0} offen sc1\ns_mov_b64 exec, -1')
    if htouch:
        A(f's_mul_i32 s{sT0}, s{sRHO}, 1572864\ns_load_dword s96, {sp(sV)}, s{sT0}\ns_add_u32 s{sT0}, s{sT0}, 1572860\ns_load_dword s97, {sp(sK)}, s{sT0}\ns_load_dword s98, {sp(sV)}, s{sT0}')
        if htouch > 1: A(f's_mul_i32 s{sT0}, s{sH}, {192*1280}\ns_load_dword s99, {sp(sWO)}, s{sT0}\ns_load_dword s96, {sp(sWD)}, 0')
    sCA, sCB2 = 42, 43
    A(f's_mul_i32 s{sT0}, s{sRHO}, 3\ns_lshr_b32 s{sCA}, s{sT0}, 5\ns_add_u32 s{sT0}, s{sT0}, 2\ns_lshr_b32 s{sCB2}, s{sT0}, 5')
    A(f'v_lshrrev_b32 {v(vT)}, 5, {v(vLANE)}\nv_mul_u32_u24 {v(vT)}, 12, {v(vT)}\nv_bfe_u32 {v(vT+1)}, {v(vLANE)}, 4, 1\ns_sub_u32 s{sT0}, s{sCB2}, s{sCA}\nv_mul_u32_u24 {v(vT+1)}, s{sT0}, {v(vT+1)}')
    A(f'v_add3_u32 {v(vT)}, {v(vT)}, {v(vT+1)}, s{sCA}\nv_and_b32 {v(vT+1)}, 15, {v(vLANE)}\nv_min_u32 {v(vT+1)}, 9, {v(vT+1)}\nv_lshlrev_b32 {v(vT+1)}, 4, {v(vT+1)}\nv_lshl_add_u32 {v(vAL)}, {v(vT)}, 8, {v(vT+1)}')
    A(f's_andn2_b32 s{sT1}, s2, 4')
    vote_slot(sT1, sT2, sT3)
    A(f's_lshl_b32 s{sT2}, s{sT2}, 4\ns_add_u32 s{sT2}, s{sT2}, s{sT3}\ns_lshl_b32 s{sT2}, s{sT2}, 4\nv_mov_b32 {v(vM)}, s{sT2}\ns_mov_b32 s{rK+5}, {VOTE}')
    A(f's_mul_i32 s{sT0}, s{sH}, {5*4096}\ns_lshl_b32 s{sT1}, s{sB}, 10\ns_add_u32 s{sT0}, s{sT0}, s{sT1}\ns_add_u32 s{rK}, s{sT0}, {P1}')
    for p in range(1, 5): A(f's_add_u32 s{rK+p}, s{rK}, {4096*p}')
    A(f's_sub_u32 s{sU2}, s{sU2}, 5')
    A(f'v_mov_b32 {v(vS+1)}, 0\nv_mov_b32 {v(vS+6)}, 0')
    A(f'v_mul_u32_u24 {v(vA)}, 6, {v(vLANE)}\nv_add_u32 {v(vA)}, {QL}, {v(vA)}')
    A('s_barrier\ns_barrier')
    stamp(1)
    mkq = lambda b: [wsload(b+4*p, vL16, rK+p) for p in range(5)] + [wsload(b+20, vAL, rK+5), wsload(b+24, vM, rK+5)]
    QR = vW; E = vW + 3
    def useq(b):
        for k in range(3):
            A(f'v_add_f32 {v(QR+k)}, {v(b+k)}, {v(b+4+k)}')
        for p in range(2, 5):
            for k in range(3): A(f'v_add_f32 {v(QR+k)}, {v(QR+k)}, {v(b+4*p+k)}')
        put3_bf16(QR, vT, vA)
        A(f'v_and_b32 {v(vT)}, 15, {v(vLANE)}\nv_cmp_gt_u32 vcc, 10, {v(vT)}\nv_readfirstlane_b32 s{sT2}, {v(b+25)}\ns_nop 0\nv_cndmask_b32 {v(E)}, 0, {v(b+20)}, vcc')
    if pq: poll2('L_pq', mkq, 7, vF, vO, 1, pq, useq)
    else:
        poll('L_pq', mkq(vF), [vF+4*p+3 for p in range(5 if nopoll else 0, 7)], 1)
        useq(vF)
    for mode in ['quad_perm:[1,0,3,2]', 'quad_perm:[2,3,0,1]', 'row_half_mirror', 'row_mirror']:
        A(f's_nop 1\nv_add_u32_dpp {v(E)}, {v(E)}, {v(E)} {mode} row_mask:0xf bank_mask:0xf')
    if dbgv:
        A(f's_mul_i32 s{sT0}, s{sRHO}, 3\ns_and_b32 s{sT0}, s{sT0}, 31\ns_cmp_ge_u32 s{sT0}, 3\ns_cbranch_scc1 L_nodbg')
        A(f'v_readlane_b32 s{sT0}, {v(E)}, 16\nv_readlane_b32 s{sT1}, {v(E)}, 48')
        A(f's_nop 1\ns_add_u32 s{sT3}, s{sT0}, 5000\ns_mul_i32 s{sT3}, s{sT3}, 10000\ns_add_u32 s{sT3}, s{sT3}, s{sT1}\ns_add_u32 s{sT3}, s{sT3}, 5000')
        A(f's_lshl_b32 s{sP}, s{sCB2}, 2\nv_mov_b32 {v(vT+5)}, s{sP}\nv_mov_b32 {v(vT+6)}, s{sT3}\nglobal_store_dword {v(vT+5)}, {v(vT+6)}, {sp(sDBG)}\nL_nodbg:')
    A(f'v_lshrrev_b32 {v(E)}, 31, {v(E)}\nv_xor_b32 {v(E)}, s{sT2}, {v(E)}')
    if force >= 0: A(f'v_lshrrev_b32 {v(E)}, 5, {v(vLANE)}\nv_lshrrev_b32 {v(E)}, {v(E)}, {force}\nv_and_b32 {v(E)}, 1, {v(E)}')
    sF = [36, 37, 38, 39]
    A('s_nop 0')
    for g in range(4): A(f'v_readlane_b32 s{sF[g]}, {v(E)}, {16*g}')
    A(f's_mul_i32 s{sT3}, s{sRHO}, 1572864\ns_mov_b32 s{sT0}, 0\ns_mov_b32 s{sT1}, 0')
    for i in range(3):
        A(f's_lshr_b32 s{sT2}, s{sT3}, 24\ns_cmp_eq_u32 s{sT2}, s{sCA}\ns_cselect_b32 s{sXD}, s{sF[0]}, s{sF[1]}\ns_cselect_b32 s{sXS}, s{sF[2]}, s{sF[3]}')
        for acc, base, fl in [(sT0, sK, sXD), (sT1, sV, sXS)]:
            A(f's_add_u32 s{sT2}, s{base}, s{sT3}\ns_lshr_b32 s{sT2}, s{sT2}, 21\ns_xor_b32 s{sT2}, s{sT2}, s{fl}\ns_and_b32 s{sT2}, s{sT2}, 1\ns_lshl_b32 s{sT2}, s{sT2}, {i}\ns_or_b32 s{acc}, s{acc}, s{sT2}')
        if i < 2: A(f's_add_u32 s{sT3}, s{sT3}, 524288')
    if nonuma: A(f's_mov_b32 s{sT0}, {nonuma >> 1}\ns_mov_b32 s{sT1}, {nonuma >> 1}')
    A(f's_xor_b32 s{sXD}, s{sT0}, s{sT1}\ns_cselect_b32 s{sXS}, 0, 1')
    A(f'v_mov_b32 {v(vT+4)}, s{sT0}\nv_mov_b32 {v(vT+5)}, s{sT1}\nv_mov_b32 {v(vT+6)}, 0\nv_mov_b32 {v(vT+7)}, s{sXS}\nv_mov_b32 {v(vT+3)}, {FLG}\nds_write_b128 {v(vT+3)}, {v(vT+4,4)}')
    if stamps:
        A(f's_lshl_b32 s{sT1}, s{sXD}, 0\ns_or_b32 s{sT1}, s{sT1}, s{sT1}\ns_lshl_b32 s{sT0}, s2, 2\ns_add_u32 s{sT0}, s{sT0}, 0x20100000')
        A(f'v_mov_b32 {v(vT+5)}, s{sT0}\nv_mov_b32 {v(vT+6)}, s{sT1}\nglobal_store_dword {v(vT+5)}, {v(vT+6)}, {sp(sWS)}')
    stamp(2)
    A('s_waitcnt lgkmcnt(0)\ns_barrier')
    A('s_waitcnt vmcnt(0)')
    A(f's_cmp_ge_u32 s{sJ}, 5\ns_cselect_b32 s{sHASW1}, 1, 0\ns_cmp_lt_u32 s{sU2}, 80\ns_cselect_b32 s{sHASW1}, s{sHASW1}, 0')
    A(f's_cmp_eq_u32 s{sHASW1}, 0\ns_cbranch_scc1 L_hx')
    A(f's_mul_i32 s{sR}, s{sU2}, 52429\ns_lshr_b32 s{sR}, s{sR}, 18\ns_mul_i32 s{sT0}, s{sR}, 5\ns_sub_u32 s{sCB}, s{sU2}, s{sT0}')
    A(f's_mul_i32 s{sRB}, s{sU2}, 52429\ns_lshr_b32 s{sRB}, s{sRB}, 20\ns_mul_i32 s{sT0}, s{sRB}, 20\ns_sub_u32 s{sSLC2}, s{sU2}, s{sT0}')
    vWD, vG4 = vS, vS+1
    A(f'v_lshrrev_b32 {v(vT)}, 4, {v(vLANE)}\nv_and_b32 {v(vT+1)}, 15, {v(vLANE)}\nv_lshlrev_b32 {v(vT+1)}, 4, {v(vT+1)}')
    A(f'v_mul_u32_u24 {v(vWD)}, 1280, {v(vT)}\nv_add_u32 {v(vWD)}, {v(vWD)}, {v(vT+1)}\nv_lshl_add_u32 {v(vG4)}, {v(vT)}, 10, {v(vT+1)}')
    A(f'v_lshrrev_b32 {v(vT)}, 5, {v(vLANE)}\nv_mul_u32_u24 {v(vT)}, {8*5*4096}, {v(vT)}\nv_and_b32 {v(vT+1)}, 31, {v(vLANE)}\nv_lshl_add_u32 {v(vA)}, {v(vT+1)}, 4, {v(vT)}')
    A(f's_lshr_b32 s{sT0}, s{sR}, 1\ns_add_u32 s{sT0}, s{sT0}, 32\ns_mul_i32 s{sT0}, s{sT0}, {5*4096}\ns_and_b32 s{sT1}, s{sR}, 1\ns_lshl_b32 s{sT1}, s{sT1}, 9\ns_add_u32 s{sT0}, s{sT0}, s{sT1}\ns_add_u32 s{rK}, s{sT0}, {P1}')
    for p in range(1, 5): A(f's_add_u32 s{rK+p}, s{rK}, {4096*p}')
    G = vF
    poll('L_pg', [wsload(G+20*b+4*p, vA, rK+p) + f' offset:{1024*b}' if False else
                  f'buffer_load_dwordx4 {v(G+20*b+4*p,4)}, {v(vA)}, {srd(rWS)}, s{rK+p} offen offset:{1024*b} sc1' for b in range(4) for p in range(5)],
         [G+20*b+4*p+3 for b in range(4) for p in range(5)], 2)
    A(f'v_and_b32 {v(vA)}, 31, {v(vLANE)}\nv_mul_u32_u24 {v(vA)}, 6, {v(vA)}\nv_add_u32 {v(vA)}, {HL}, {v(vA)}')
    for b in range(4):
        g0 = G + 20*b
        for k in range(3):
            for p in range(1, 5): A(f'v_add_f32 {v(g0+k)}, {v(g0+k)}, {v(g0+4*p+k)}')
        rnd2(g0, g0+1, vT); rnd(g0+2, vT)
        for k in range(3): A(f'v_mov_b32 {v(g0+4+k)}, {v(g0+k)}')
        A('s_nop 1')
        for k in range(3): A(f'v_permlane32_swap_b32 {v(g0+k)}, {v(g0+4+k)}')
        for k in range(3):
            A(f'v_cmp_lt_f32 vcc, 0, {v(g0+k)}\ns_nop 1\nv_cndmask_b32 {v(vT)}, 0, 1.0, vcc\nv_mul_f32 {v(g0+k)}, {v(g0+k)}, {v(vT)}\nv_mul_f32 {v(g0+k)}, {v(g0+k)}, {v(g0+4+k)}')
        put3_bf16(g0, vT, vA)
        if b < 3: A(f'v_add_u32 {v(vA)}, 192, {v(vA)}')
    A(f'v_bfe_u32 {v(vT+2)}, {v(vLANE)}, 2, 2\nv_mul_u32_u24 {v(vT+2)}, 192, {v(vT+2)}\nv_lshrrev_b32 {v(vT+3)}, 4, {v(vLANE)}\nv_lshl_add_u32 {v(vT+2)}, {v(vT+3)}, 3, {v(vT+2)}\nv_add_u32 {v(vA)}, {HL}, {v(vT+2)}')
    A('s_waitcnt lgkmcnt(0)')
    for s in range(3): A(f'ds_read2_b64 {v(vQ+4*s,4)}, {v(vA)} offset0:{8*s} offset1:{8*s+4}')
    A(f'v_lshrrev_b32 {v(vT)}, 2, {v(vLANE)}\nv_lshlrev_b32 {v(vT)}, 8, {v(vT)}\nv_and_b32 {v(vT+1)}, 3, {v(vLANE)}\nv_lshl_add_u32 {v(vT)}, {v(vT+1)}, 3, {v(vT)}\nv_add_u32 {v(vA)}, {WREG}, {v(vT)}')
    for s in range(3):
        A('s_waitcnt lgkmcnt(0)')
        trread_mfma(8, vA, 4096, vO, s == 0, vF, vQ+4*s)
        if s < 2: A(f'v_add_u32 {v(vA)}, 8192, {v(vA)}')
    sBPA = 39
    A(f's_lshl_b32 s{sBPA}, s{sCB}, 6\ns_add_u32 s{sBPA}, s{sBPA}, s{sR}\ns_lshl_b32 s{sBPA}, s{sBPA}, 10\ns_add_u32 s{sBPA}, s{sBPA}, {BP}')
    A('s_nop 4')
    BG = vW + 16
    for ww in range(4):
        t0 = BG + 4*ww
        A(f'v_mov_b32 {v(t0)}, {v(vO+8*ww)}\nv_mov_b32 {v(t0+1)}, {v(vO+8*ww+4)}\nv_mov_b32 {v(t0+2)}, {v(vTAG)}\nv_mov_b32 {v(t0+3)}, {v(vTAG)}')
    def b_publish():
        for ww in range(4):
            A(f'buffer_store_dwordx4 {v(BG+4*ww,4)}, {v(vL16)}, {srd(rWS)}, s{sBPA} offen sc1')
            if ww < 3: A(f's_add_u32 s{sBPA}, s{sBPA}, 16384')
    if not blate: b_publish()
    stamp(3)
    vG0, vG1, vX0, vX1, vXO = vS+2, vS+3, vS+4, vS+5, vS+6
    A(f's_mul_i32 s{sT0}, s{sRB}, 1280\ns_lshl_b32 s{sT1}, s{sSLC2}, 6\ns_add_u32 s{sT0}, s{sT0}, s{sT1}')
    A(f'v_and_b32 {v(vXO)}, 15, {v(vLANE)}\nv_lshlrev_b32 {v(vXO)}, 1, {v(vXO)}\nv_add_u32 {v(vXO)}, s{sT0}, {v(vXO)}')
    if otouch: A(f'global_load_ushort {v(vX0)}, {v(vXO)}, {sp(sOUT)}\ns_waitcnt vmcnt(0)')
    A(f'global_load_ushort {v(vX0)}, {v(vXO)}, {sp(sX)}\nglobal_load_ushort {v(vX1)}, {v(vXO)}, {sp(sX)} offset:32')
    sBG = 40
    A(f's_lshl_b32 s{sT0}, s{sSLC2}, 14\ns_lshl_b32 s{sT1}, s{sRB}, 8\ns_add_u32 s{sT0}, s{sT0}, s{sT1}\ns_add_u32 s{sBG}, s{sT0}, {BP}')
    for p in range(1, 4): A(f's_add_u32 s{sBG+p}, s{sBG}, {4096*p}')
    def b_gather():
        G = vF + 16
        poll('L_pb', [wsload(G+4*p, vG4, sBG+p) for p in range(4)], [G+4*p+3 for p in range(4)], 5)
        for k in range(2):
            A(f'v_add_f32 {v(G+k)}, {v(G+k)}, {v(G+4+k)}\nv_add_f32 {v(G+8+k)}, {v(G+8+k)}, {v(G+12+k)}\nv_add_f32 {v(G+k)}, {v(G+k)}, {v(G+8+k)}')
            xsum(G+k, vT, full=False)
        rnd2(G, G+1, vT)
        for k in range(2):
            A(f'v_mul_f32 {v(vT)}, s{sL2E}, {v(G+k)}\nv_max_f32 {v(vT)}, {f2u(-126.0):#x}, {v(vT)}\nv_exp_f32 {v(vT)}, -{v(vT)}\ns_nop 0\nv_add_f32 {v(vT)}, 1.0, {v(vT)}\nv_rcp_f32 {v(vT+1)}, {v(vT)}\ns_nop 0')
            fdiv(vG0+k, G+k, vT, vT+1, vT+2)
        rnd2(vG0, vG1, vT)
    if not blate: b_gather()
    A(f's_waitcnt vmcnt(0)\nv_lshlrev_b32 {v(vX0)}, 16, {v(vX0)}\nv_lshlrev_b32 {v(vX1)}, 16, {v(vX1)}')
    A(f's_lshl_b32 s{sT0}, s{sSLC2}, 15\ns_lshl_b32 s{sT1}, s{sRB}, 8\ns_add_u32 s{sT0}, s{sT0}, s{sT1}\ns_add_u32 s{rK}, s{sT0}, {YP}')
    for p in range(1, 8): A(f's_add_u32 s{rK+p}, s{rK}, {4096*p}')
    stamp(4)
    A('L_hx:')
    if lead:
        A(f's_and_b32 s{sT0}, s2, {lmask}\ns_cmp_eq_u32 s{sT0}, 5\ns_cselect_b32 s{sT0}, 0, s{sXS}\ns_cmp_lg_u32 s{sT0}, 0\ns_cbranch_scc1 L_hb4')
    else: A(f's_cmp_lg_u32 s{sXS}, 0\ns_cbranch_scc1 L_hb4')
    sREC, sOTH = 36, 37
    A(f's_lshl_b32 s{sREC}, s{sRHO}, 1\ns_add_u32 s{sOTH}, s{sREC}, 1\ns_sub_u32 s{sOTH}, s{sOTH}, s{sHALF}\ns_add_u32 s{sREC}, s{sREC}, s{sHALF}')
    A(f's_mul_i32 s{sREC}, s{sREC}, 6144\ns_add_u32 s{sREC}, s{sREC}, {SCO}\ns_mul_i32 s{sOTH}, s{sOTH}, 6144\ns_add_u32 s{sOTH}, s{sOTH}, {SCO}')
    vXA, vXF, vXB = vQ, vQ+1, vQ+2
    A(f'v_add_u32 {v(vXA)}, {STG}, {v(vL16)}\nv_mov_b32 {v(vXF)}, {FLG+8}\nv_and_b32 {v(vT)}, 3, {v(vLANE)}\nv_cmp_eq_u32 vcc, 2, {v(vT)}\nv_mov_b32 {v(vT)}, -20\ns_nop 0\nv_cndmask_b32 {v(vT)}, 8, {v(vT)}, vcc\nv_add_u32 {v(vXB)}, {v(vXA)}, {v(vT)}')
    sE0, sE1 = 96, 98
    A(f's_bitcmp1_b32 s{sXD}, 0\ns_cselect_b32 s{sE0}, 0xffffff00, 0\ns_bitcmp1_b32 s{sXD}, 1\ns_cselect_b32 s{sE0+1}, -1, 0\ns_bitcmp1_b32 s{sXD}, 2\ns_cselect_b32 s{sE1}, 0xffffff, 0\ns_mov_b32 s{sE1+1}, 0')
    def hwait(n, lbl, hsl=hsl):
        A(f's_mov_b32 s{sCNT}, {spin*8}\n{lbl}:\nds_read_b32 {v(vT)}, {v(vXF)}\ns_sub_u32 s{sCNT}, s{sCNT}, 1\ns_cmp_eq_u32 s{sCNT}, 0\ns_cbranch_scc1 {lbl}_ok')
        A(f's_waitcnt lgkmcnt(0)\nv_readfirstlane_b32 s{sT0}, {v(vT)}\ns_nop 0\ns_cmp_ge_u32 s{sT0}, {4*n}\ns_cbranch_scc1 {lbl}_ok\ns_sleep {hsl}\ns_branch {lbl}\n{lbl}_ok:')
    hwait(pubt, 'L_hw0')
    if lead:
        A(f'v_mov_b32 {v(vT+2)}, {GO}\ns_and_b32 s{sT0}, s2, {lmask}\ns_cmp_lg_u32 s{sT0}, 5\ns_cbranch_scc1 L_go')
        hwait(lead, 'L_hwl')
        A(f's_mov_b64 exec, 1\nbuffer_store_dword {v(vTAG)}, {v(vT+2)}, {srd(rWS)}, 0 offen sc1\ns_mov_b64 exec, -1')
        A(f'L_go:\nbuffer_load_dword {v(vT+3)}, {v(vT+2)}, {srd(rWS)}, 0 offen sc1\nds_read_b32 {v(vT)}, {v(vXF)}\ns_waitcnt vmcnt(0) lgkmcnt(0)')
        A(f'v_cmp_eq_u32 vcc, {v(vT+3)}, {v(vTAG)}\nv_readfirstlane_b32 s{sT0}, {v(vT)}\ns_cbranch_vccnz L_go_ok\ns_cmp_lt_u32 s{sT0}, {4*fb}\ns_cbranch_scc1 L_go\nL_go_ok:')
    def masked(i, lbl): return f's_cmp_eq_u64 {sp([sE0, sE1][i])}, 0\ns_cbranch_scc1 {lbl}{i}\ns_mov_b64 exec, {sp([sE0, sE1][i])}'
    if not (noex & 1):
        for i in range(2):
            A(masked(i, 'L_np'))
            for w in range(4):
                r = vF + 16*i + 4*w
                A(f'ds_read_b64 {v(r,2)}, {v(vXA)} offset:{1536*w+1024*i}\nds_read_b32 {v(r+2)}, {v(vXB)} offset:{1536*w+1024*i}\nv_mov_b32 {v(r+3)}, {v(vTAG)}')
            for w in range(4):
                r = vF + 16*i + 4*w
                A(f's_add_u32 s{sT0}, s{sREC}, {1536*w+1024*i}\ns_waitcnt lgkmcnt({6-2*w})')
                A(f'buffer_store_dwordx4 {v(r,4)}, {v(vL16)}, {srd(rWS)}, s{sT0} offen {stfl}')
            A(f's_mov_b64 exec, -1\nL_np{i}:')
    if lead: A(f's_cmp_lg_u32 s{sXS}, 0\ns_cbranch_scc1 L_hb4')
    hwait(gat, 'L_hw1')
    if not (noex & 2):
        G = vO
        for k in range(8): A(f'v_mov_b32 {v(G+4*k+3)}, {v(vTAG)}')
        lds_ = []
        for i in range(2):
            t_ = masked(i, 'L_ng') + '\n'
            for w in range(4):
                t_ += f's_add_u32 s{sT0}, s{sOTH}, {1536*w+1024*i}\nbuffer_load_dwordx4 {v(G+16*i+4*w,4)}, {v(vL16)}, {srd(rWS)}, s{sT0} offen {slfl}\n'
            lds_.append(t_ + f's_mov_b64 exec, -1\nL_ng{i}:')
        poll('L_px', lds_, [G+4*k+3 for k in range(8)], 8)
        for i in range(2):
            A(masked(i, 'L_nw'))
            for w in range(4): A(f'ds_write_b64 {v(vXA)}, {v(G+16*i+4*w,2)} offset:{1536*w+1024*i}\nds_write_b32 {v(vXB)}, {v(G+16*i+4*w+2)} offset:{1536*w+1024*i}')
            A(f's_mov_b64 exec, -1\ns_waitcnt lgkmcnt(0)\nL_nw{i}:')
    A(f'v_mov_b32 {v(vT)}, 1\nds_write_b32 {v(vXF)}, {v(vT)} offset:4')
    A('L_hb4:')
    A(f'v_mul_u32_u24 {v(vA)}, 12, {v(vLANE)}\nv_add_u32 {v(vA)}, {OCB}, {v(vA)}\nv_mov_b32 {v(vAL)}, {OCB+768}')
    A(f's_lshl_b32 s{sT1}, s{sH}, 3\ns_add_u32 s{sT1}, s{sT1}, s{sJ}\ns_lshl_b32 s{sT1}, s{sT1}, 11\ns_add_u32 s{sT1}, s{sT1}, {OP}')
    Gm = vQ + 8
    r0 = vP
    ml = vT + 4
    def weights():
        A(f'v_max3_f32 {v(ml)}, {v(Gm)}, {v(Gm+2)}, {v(Gm+4)}\nv_max_f32 {v(ml)}, {v(ml)}, {v(Gm+6)}')
        for w in range(4): A(f'v_sub_f32 {v(Gm+2*w)}, {v(Gm+2*w)}, {v(ml)}')
        for w in range(4): A(f'v_exp_f32 {v(Gm+2*w)}, {v(Gm+2*w)}')
        A(f'v_mov_b32 {v(r0+3)}, {v(vTAG)}\nv_mov_b32 {v(ml+3)}, {v(vTAG)}\nv_mov_b32 {v(ml+2)}, {v(vTAG)}')
        A(f'v_mul_f32 {v(ml+1)}, {v(Gm)}, {v(Gm+1)}')
        for w in range(1, 4): A(f'v_fmac_f32 {v(ml+1)}, {v(Gm+2*w)}, {v(Gm+2*w+1)}')
    if lred:
        A(f'v_mov_b32 {v(vXF)}, {FLG+8}')
        hwait(29, 'L_hw2', 8)
        for w in range(4): A(f'ds_read_b64 {v(Gm+2*w,2)}, {v(vAL)} offset:{1024*w}')
        A('s_waitcnt lgkmcnt(0)')
        weights()
        for w in range(1, 4): A(f'v_add_u32 {v(vQ+4+w)}, {1024*w}, {v(vA)}')
        A('s_barrier')
        stamp(5)
        for w in range(4):
            a_ = vA if w == 0 else vQ+4+w
            A(f'ds_read2_b32 {v(vF+4*w,2)}, {v(a_)} offset0:0 offset1:1\nds_read_b32 {v(vF+4*w+2)}, {v(a_)} offset:8')
    else:
        A('s_barrier')
        stamp(5)
        for w in range(4): A(f'ds_read_b64 {v(Gm+2*w,2)}, {v(vAL)} offset:{1024*w}')
        for w in range(4):
            A(f'ds_read2_b32 {v(vF+4*w,2)}, {v(vA)} offset0:0 offset1:1\nds_read_b32 {v(vF+4*w+2)}, {v(vA)} offset:8')
            if w < 3: A(f'v_add_u32 {v(vA)}, 1024, {v(vA)}')
        A('s_waitcnt lgkmcnt(8)')
        weights()
    A('s_waitcnt lgkmcnt(0)')
    for k in range(3): A(f'v_mul_f32 {v(r0+k)}, {v(Gm)}, {v(vF+k)}')
    for w in range(1, 4):
        for k in range(3): A(f'v_fmac_f32 {v(r0+k)}, {v(Gm+2*w)}, {v(vF+4*w+k)}')
    A(f'buffer_store_dwordx4 {v(r0,4)}, {v(vL16)}, {srd(rWS)}, s{sT1} offen sc1')
    A(f's_mov_b64 exec, 1\nbuffer_store_dwordx4 {v(ml,4)}, {v(vL16)}, {srd(rWS)}, s{sT1} offen offset:1024 sc1\ns_mov_b64 exec, -1')
    A(f's_cmp_eq_u32 s{sHASW1}, 0\ns_cbranch_scc1 L_hdone')
    if blate:
        b_publish()
        b_gather()
    mky = lambda b: [wsload(b+4*p, vG4, rK+p) for p in range(8)]
    G = vW
    def usey(b):
        for k in range(2):
            for p in range(4): A(f'v_add_f32 {v(G+2*p+k)}, {v(b+8*p+k)}, {v(b+8*p+4+k)}')
    if py: poll2('L_py', mky, 8, vF+16, vO, 6, py, usey)
    else:
        poll('L_py', mky(vF+16), [vF+16+4*p+3 for p in range(8)], 6)
        usey(vF+16)
    stamp(6)
    for k in range(2):
        A(f'v_add_f32 {v(G+k)}, {v(G+k)}, {v(G+2+k)}\nv_add_f32 {v(G+4+k)}, {v(G+4+k)}, {v(G+6+k)}\nv_add_f32 {v(G+k)}, {v(G+k)}, {v(G+4+k)}')
    for k in range(2): xsum(G+k, vT+k, full=False)
    rnd2(G, G+1, vT)
    A(f'v_mul_f32 {v(G)}, {v(G)}, {v(vG0)}\nv_mul_f32 {v(G+1)}, {v(G+1)}, {v(vG1)}')
    rnd2(G, G+1, vT)
    if perturb:
        A(f's_cmp_eq_u32 s{sU2}, 0\ns_cselect_b32 s{sT0}, {f2u(perturb/1000):#x}, 0\ns_mov_b64 exec, 1\nv_add_f32 {v(vX0)}, s{sT0}, {v(vX0)}\ns_mov_b64 exec, -1')
    if pall: A(f'v_mul_f32 {v(G)}, {f2u(1+pall/1000):#x}, {v(G)}\nv_mul_f32 {v(G+1)}, {f2u(1+pall/1000):#x}, {v(G+1)}')
    A(f'v_add_f32 {v(G)}, {v(G)}, {v(vX0)}\nv_add_f32 {v(G+1)}, {v(G+1)}, {v(vX1)}\nv_cvt_pk_bf16_f32 {v(G)}, {v(G)}, {v(G+1)}')
    A(f's_mov_b64 exec, 0xffff\nglobal_store_short {v(vXO)}, {v(G)}, {sp(sOUT)}\nglobal_store_short_d16_hi {v(vXO)}, {v(G)}, {sp(sOUT)} offset:32')
    A(f's_cmp_lg_u32 s{sU2}, 0\ns_cbranch_scc1 L_hdone')
    A(f's_mov_b64 exec, 1\nv_mov_b32 {v(vT)}, 0\nglobal_store_dword {v(vT)}, {v(vTAG)}, {sp(sWS)} sc1')
    A('L_hdone:')
    if stamps:
        A('s_waitcnt vmcnt(0)')
        stamp(7)
        write_stamps(256, 'h')
    A('L_end:\ns_endpgm')
    A(f'''.section .rodata,"a"
.p2align 6
.amdhsa_kernel {NAME}_kernel
  .amdhsa_next_free_vgpr {NV}
  .amdhsa_next_free_sgpr 100
  .amdhsa_accum_offset {NV}
  .amdhsa_group_segment_fixed_size 0
  .amdhsa_kernarg_size 96
  .amdhsa_user_sgpr_count 2
  .amdhsa_user_sgpr_kernarg_segment_ptr 1
  .amdhsa_system_sgpr_workgroup_id_x 1
  .amdhsa_float_denorm_mode_32 3
.end_amdhsa_kernel''')
    open(fn, 'w').write('\n'.join(L) + '\n')

if __name__ == '__main__':
    fn = sys.argv[1]
    kw = {}
    for a in sys.argv[2:]:
        k, val = a.split('=')
        try: val = int(val)
        except ValueError: val = val.replace('+', ' ').replace('def', '')
        kw[k] = val
    gen(fn, **kw)
```

```python
import sys, os, struct
NAME = 'recurrent_scan__gqa_block_cached__glu_gated_reglu__decode'

HEADER = '''; Kernarg layout (96 bytes, ptrs only, base s[0:1]):
'''

def f2u(x): return struct.unpack('<I', struct.pack('<f', x))[0]

def gen(fn, stamps=False, pace=8, up=4, mapping='x', kvil=False, twostage=False, spin=1<<15, knt='nt', vnt='nt', w1nt='nt', w2nt='nt', sleep=0, fixdur=0, D=7, nomem=0, now=0, nopoll=0, nocomp=0, pre=1, force=-1, cap=400, thr=100, noex=0, sync=1, skipx=1, hsl=2, gat=26, perturb=0, pall=0, lead=0, rot=2, rmul=1, umap=1, gord=2, w1sw=1, wearly=2, hb5=1, xtra=-1, sel=0, lpipe=0, lmask=31, fb=26, blate=1, pubt=23, htouch=0, otouch=0, nonuma=0, al=1, glate=1, touch=0, late=0, lred=1, pq=0, po=5, py=5, inl=1, nend=6, Dend=18, dbgv=0, stfl='sc1', slfl='sc1'):
    L = []
    def A(s):
        for ln in s.strip('\n').split('\n'):
            L.append(ln.strip())
    SLOT = 9216; RING = 2*SLOT; WT = 12288
    WREG = 4*RING
    MISC = WREG + 4*WT
    XN = MISC; OBF = MISC
    RED = MISC + 1536
    OCB = RED + 8192
    QL = RED + 12288
    HL = QL + 384
    FLG = HL + 768
    STG = FLG + 64
    LDS = 147456
    assert STG + 6144 <= LDS
    P1 = 0x1000; OP = 0x100000; YP = 0x200000; BP = 0x300000; VOTE = 0x3F0000; GO = 0x3F8000; SCO = 0x400000; WSZ = 0x600000
    TAGC = 0x9E3779B9
    sX, sK, sV, sWQ, sWO, sWG, sWU, sWD, sOUT, sDBG, sWS = 4, 6, 8, 10, 12, 16, 18, 20, 22, 24, 26
    rK, rV, rW1, rW2, rWS = 28, 32, 36, 40, 44
    sWAVE, sH, sJ, sB, sHALF = 48, 49, 50, 51, 52
    sBETA, sPI, sHASW1, sRS = 53, 54, 55, 56
    sSLA, sSLB, sSLC = 57, 58, 59
    sOFF, sT, sCNT = 60, 61, 62
    sSC, sL2E = 63, 64
    sT0, sT1, sT2, sT3 = 65, 66, 67, 68
    sU2, sR, sCB, sRB, sSLC2 = 69, 70, 71, 72, 73
    sN0, sN1, sFLV, sFL = 70, 71, 72, 73
    sU, sPUB, sNEG, sVB = 14, 15, 34, 32
    sRHO = 3
    sXD, sXS = 92, 93
    sCM = 94
    sSTG = 35
    sU0 = 96
    sP = 74
    sST = 76
    def srd(r): return f's[{r}:{r+3}]'
    def sp(r): return f's[{r}:{r+1}]'
    vLANE, vL16, vTAG, vKA0, vVA0, vA, vM, vML, vLS, vAL = 1, 2, 3, 4, 5, 6, 7, 8, 9, 10
    vT = 12
    vS = 28
    vP = 36
    vQ = 40
    vF = 64
    vO = 112
    vW = 160
    vR = 208
    vM2B, vM2X, vM3, vSK, vSV, vFA, vONE, vPA = range(212, 220)
    vSRC = 220
    vKB = 224
    vVB = 228
    vAD = 236
    NV = 244
    def v(r, n=1): return f'v{r}' if n == 1 else f'v[{r}:{r+n-1}]'
    inhelper = [False]
    def pstamp(i):
        if stamps == 3: A(f's_memrealtime {sp(sST+2*i)}\ns_waitcnt lgkmcnt(0)')
    def qstamp(i):
        if stamps == 4: A(f's_memrealtime {sp(sST+2*i)}\ns_waitcnt lgkmcnt(0)')
    def stamp(i):
        if stamps >= 3 and i < 7 and not inhelper[0]: return
        if stamps:
            A(f's_memrealtime {sp(sST+2*i)}\ns_waitcnt lgkmcnt(0)')
    def write_stamps(rec_base, lbl):
        if not stamps: return
        A(f's_lshl_b32 s{sT0}, s2, 6\ns_add_u32 s{sT0}, s{sT0}, {0x20000000 + rec_base*64}')
        A(f's_add_u32 s{sP}, s{sWS}, s{sT0}\ns_addc_u32 s{sP+1}, s{sWS+1}, 0')
        A(f's_mov_b64 exec, 1\nv_mov_b32 {v(vA)}, 0')
        for i in range(4):
            for k in range(4): A(f'v_mov_b32 {v(vT+k)}, s{sST+4*i+k}')
            A(f'global_store_dwordx4 {v(vA)}, {v(vT,4)}, {sp(sP)} offset:{16*i}\ns_nop 1')
    def xsum(r, t, op='v_add_f32', full=True):
        if full:
            for mode in ['quad_perm:[1,0,3,2]', 'quad_perm:[2,3,0,1]', 'row_half_mirror', 'row_mirror']:
                A(f's_nop 1\n{op}_dpp {v(r)}, {v(r)}, {v(r)} {mode} row_mask:0xf bank_mask:0xf')
        for sw in ['v_permlane16_swap_b32', 'v_permlane32_swap_b32']:
            A(f'v_mov_b32 {v(t)}, {v(r)}\ns_nop 1\n{sw} {v(r)}, {v(t)}\n{op} {v(r)}, {v(r)}, {v(t)}')
    def rnd(r, t):
        A(f'v_cvt_pk_bf16_f32 {v(t)}, {v(r)}, {v(r)}\nv_lshlrev_b32 {v(r)}, 16, {v(t)}')
    def rnd2(r0, r1, t):
        A(f'v_cvt_pk_bf16_f32 {v(t)}, {v(r0)}, {v(r1)}\nv_lshlrev_b32 {v(r0)}, 16, {v(t)}\nv_and_b32 {v(r1)}, 0xffff0000, {v(t)}')
    def dma_tile(soff, sslot, paced=None, lo=0, hi=9, fl='nt'):
        for i in range(lo, hi):
            A(f's_add_u32 m0, s{sslot}, {1024*i}')
            if i == lo or i % 3 == 0: A(f's_add_u32 s{sT0}, s{soff}, {3072*(i//3)}')
            elif not paced: A('s_nop 0')
            if paced: A(f's_waitcnt vmcnt({paced-1})')
            A(f'buffer_load_dwordx4 {v(vSRC+i%3)}, {srd(rK)}, s{sT0} offen {fl} lds')
    def rot3(dst, tmp):
        A(f's_lshr_b32 s{dst}, s{sRHO}, {rot}')
        if rmul != 1: A(f's_mul_i32 s{dst}, s{dst}, {rmul}')
        A(f's_mul_i32 s{tmp}, s{dst}, 43691\ns_lshr_b32 s{tmp}, s{tmp}, 17\ns_mul_i32 s{tmp}, s{tmp}, 3\ns_sub_u32 s{dst}, s{dst}, s{tmp}')
    def block_params(default, sn):
        if default == 1: A(f's_cmp_eq_u32 s{sHALF}, 1')
        else: A(f's_bitcmp1_b64 {sp(sCM)}, s{sT}')
        A(f's_addc_u32 s{sT1}, s{sU}, s{sU}\ns_lshl_b32 s{sT1}, s{sT1}, 6\ns_add_u32 s{sT2}, s{sT1}, 65\ns_add_u32 s{sT1}, s{sT1}, 1')
        A(f's_mul_i32 s{sT1}, s{sT1}, 43691\ns_mul_i32 s{sT2}, s{sT2}, 43691\ns_lshr_b32 s{sT1}, s{sT1}, 17\ns_lshr_b32 s{sT2}, s{sT2}, 17')
        A(f's_mul_i32 s{sOFF}, s{sT1}, 384\ns_sub_u32 s{sT1}, s{sT2}, s{sT1}\ns_mul_i32 s{sT2}, s{sT2}, 384\ns_min_u32 s{rK+2}, s{sT2}, {0 if nomem else 1572864}')
        if default == 2: A(f's_cmp_ge_u32 s{sT}, 46\ns_cselect_b32 s{rK+2}, 0, s{rK+2}')
        else: A(f's_cmp_eq_u32 s{sT1}, 22\ns_cselect_b32 s{sn}, -1, 0')
        if umap: A(f's_bitcmp1_b32 s{sU}, 0\ns_cselect_b32 s{sT1}, 7, 1\ns_add_u32 s{sU}, s{sU}, s{sT1}')
        else: A(f's_add_u32 s{sU}, s{sU}, 4')
        if rot >= 0: A(f's_cmp_ge_u32 s{sU}, 96\ns_cselect_b32 s{sT1}, 96, 0\ns_sub_u32 s{sU}, s{sU}, s{sT1}')
    def poll(lbl, loads, tagregs, code):
        A(f's_mov_b32 s{sCNT}, {spin}\n{lbl}:')
        for x in loads: A(x)
        A('s_waitcnt vmcnt(0)')
        A(f'v_xor_b32 {v(vT)}, {v(tagregs[0])}, {v(vTAG)}')
        for r in tagregs[1:]:
            A(f'v_xor_b32 {v(vT+1)}, {v(r)}, {v(vTAG)}\nv_or_b32 {v(vT)}, {v(vT)}, {v(vT+1)}')
        if (nopoll and lbl != 'L_pq') or (noex and lbl == 'L_px'): A(f's_branch {lbl}_ok')
        A(f'v_cmp_ne_u32 vcc, 0, {v(vT)}\ns_cbranch_vccz {lbl}_ok')
        if sleep: A(f's_sleep {sleep}')
        A(f's_sub_u32 s{sCNT}, s{sCNT}, 1\ns_cmp_lg_u32 s{sCNT}, 0\ns_cbranch_scc1 {lbl}')
        A(f'v_mov_b32 {v(vT)}, 0\nv_mov_b32 {v(vT+1)}, {code}\nglobal_store_dword {v(vT)}, {v(vT+1)}, {sp(sDBG)}')
        A(f'{lbl}_ok:')
    def polls(lbl, loads, tagregs, code):
        A(f's_mov_b32 s{sCNT}, {spin}')
        for x in loads: A(x)
        A(f'{lbl}:\ns_waitcnt vmcnt(0)\ns_mov_b32 s{sT3}, 0')
        for k, (x, r) in enumerate(zip(loads, tagregs)):
            A(f'v_cmp_ne_u32 vcc, {v(r)}, {v(vTAG)}\ns_cbranch_vccz {lbl}_s{k}\ns_mov_b64 exec, vcc')
            A(x)
            A(f's_mov_b64 exec, -1\ns_mov_b32 s{sT3}, 1\n{lbl}_s{k}:')
        A(f's_cmp_eq_u32 s{sT3}, 0\ns_cbranch_scc1 {lbl}_ok')
        A(f's_sub_u32 s{sCNT}, s{sCNT}, 1\ns_cmp_lg_u32 s{sCNT}, 0\ns_cbranch_scc1 {lbl}')
        A(f'v_mov_b32 {v(vT)}, 0\nv_mov_b32 {v(vT+1)}, {code}\nglobal_store_dword {v(vT)}, {v(vT+1)}, {sp(sDBG)}\ns_waitcnt vmcnt(0)')
        A(f'{lbl}_ok:')
    def poll2(lbl, mk, n, base, alt, code, delay, use):
        def check(b, ok):
            A(f's_waitcnt vmcnt({n})')
            A(f'v_xor_b32 {v(vT)}, {v(b+3)}, {v(vTAG)}')
            for k in range(1, n): A(f'v_xor_b32 {v(vT+1)}, {v(b+4*k+3)}, {v(vTAG)}\nv_or_b32 {v(vT)}, {v(vT)}, {v(vT+1)}')
            A(f'v_cmp_ne_u32 vcc, 0, {v(vT)}\ns_cbranch_vccz {ok}')
        A(f's_mov_b32 s{sCNT}, {spin}')
        for x in mk(base): A(x)
        A(f's_sleep {delay}\n{lbl}:')
        for x in mk(alt): A(x)
        check(base, f'{lbl}_ok')
        for x in mk(base): A(x)
        check(alt, f'{lbl}_okb')
        A(f's_sub_u32 s{sCNT}, s{sCNT}, 1\ns_cmp_lg_u32 s{sCNT}, 0\ns_cbranch_scc1 {lbl}')
        A(f'v_mov_b32 {v(vT)}, 0\nv_mov_b32 {v(vT+1)}, {code}\nglobal_store_dword {v(vT)}, {v(vT+1)}, {sp(sDBG)}')
        A(f'{lbl}_okb:')
        use(alt)
        A(f's_branch {lbl}_done\n{lbl}_ok:')
        use(base)
        A(f'{lbl}_done:')
    def wsload(dst, voff, soff): return f'buffer_load_dwordx4 {v(dst,4)}, {v(voff)}, {srd(rWS)}, s{soff} offen sc1'
    def put3_bf16(r0, t, va):
        A(f'v_cvt_pk_bf16_f32 {v(t)}, {v(r0)}, {v(r0+1)}\nv_cvt_pk_bf16_f32 {v(t+1)}, {v(r0+2)}, {v(r0+2)}')
        A(f'ds_write_b16 {v(va)}, {v(t)}\nds_write_b16_d16_hi {v(va)}, {v(t)} offset:2\nds_write_b16 {v(va)}, {v(t+1)} offset:4')
    def fdiv(q, n, d, r, e):
        A(f'v_mul_f32 {v(q)}, {v(n)}, {v(r)}\nv_fma_f32 {v(e)}, -{v(q)}, {v(d)}, {v(n)}\nv_fma_f32 {v(q)}, {v(e)}, {v(r)}, {v(q)}')
    def trread_mfma(ntile, va, off2, acc, first, frag, aop, va2=None, extra=None):
        def rd(t):
            if va2 is None:
                A(f'ds_read_b64_tr_b16 {v(frag+4*t,2)}, {v(va)} offset:{32*t}')
                A(f'ds_read_b64_tr_b16 {v(frag+4*t+2,2)}, {v(va)} offset:{32*t+off2}')
            else:
                A(f'ds_read_b64_tr_b16 {v(frag+4*t,2)}, {v(va+(t&3))} offset:{128*(t>>2)}')
                A(f'ds_read_b64_tr_b16 {v(frag+4*t+2,2)}, {v(va2+(t&3))} offset:{128*(t>>2)}')
        pre = min(4, ntile)
        for t in range(pre): rd(t)
        for t in range(ntile):
            if t + pre < ntile: rd(t + pre)
            if extra and t + pre == ntile - 1: A(extra)
            left = min(ntile - 1, t + pre) - t
            A(f's_waitcnt lgkmcnt({2*left + (1 if extra and t + pre >= ntile - 1 else 0)})')
            c = '0' if first else v(acc+4*t, 4)
            A(f'v_mfma_f32_16x16x32_bf16 {v(acc+4*t,4)}, {v(aop,4)}, {v(frag+4*t,4)}, {c}')

    A(HEADER)
    A(f'; @launch grid=(256,1,1) block=(320,1,1) lds={LDS}')
    A('.amdgcn_target "amdgcn-amd-amdhsa--gfx950"\n.text')
    if al: A('.p2align 12')
    A(f'.globl {NAME}_kernel\n.p2align 8\n.type {NAME}_kernel,@function\n{NAME}_kernel:')
    A('s_cmp_ge_u32 s2, 256\ns_cbranch_scc1 L_end')
    A('s_load_dwordx16 s[4:19], s[0:1], 0\ns_load_dwordx8 s[20:27], s[0:1], 64')
    if fixdur: A('s_memrealtime s[96:97]')
    if stamps:
        A(f's_memrealtime {sp(sST)}')
        for i in range(2, 16): A(f's_mov_b32 s{sST+i}, 0')
    A(f'v_lshrrev_b32 {v(vT)}, 6, v0\nv_and_b32 {v(vLANE)}, 63, v0')
    A(f'v_readfirstlane_b32 s{sWAVE}, {v(vT)}')
    A(f'v_lshlrev_b32 {v(vL16)}, 4, {v(vLANE)}')
    A(f's_lshr_b32 s{sT0}, s2, 3\ns_lshl_b32 s{sT0}, s{sT0}, 2\ns_and_b32 s{sT1}, s2, 3\ns_add_u32 s{sRHO}, s{sT0}, s{sT1}')
    A(f's_bfe_u32 s{sHALF}, s2, 0x10002\ns_lshr_b32 s{sB}, s{sRHO}, 5\ns_and_b32 s{sH}, s{sRHO}, 31\ns_lshl_b32 s{sJ}, s{sB}, 1\ns_add_u32 s{sJ}, s{sJ}, s{sHALF}')
    A(f's_mul_i32 s{sU2}, s{sH}, 3\ns_add_u32 s{sU2}, s{sU2}, s{sJ}')
    A(f's_mov_b32 s{sSC}, {f2u(192**-0.5):#x}\ns_mov_b32 s{sL2E}, {f2u(1.4426950408889634):#x}')
    def ws_srd():
        A(f's_mov_b32 s{rWS}, s{sWS}\ns_mov_b32 s{rWS+1}, s{sWS+1}')
    A(f's_mov_b32 s{rWS+2}, {WSZ}\ns_mov_b32 s{rWS+3}, 0x20000')
    def vote_slot(src, sidx, sslot):
        A(f's_mul_i32 s{sidx}, s{src}, 3\ns_lshr_b32 s{sidx}, s{sidx}, 5\ns_lshl_b32 s{sslot}, s{sidx}, 5\ns_add_u32 s{sslot}, s{sslot}, 2\ns_mul_i32 s{sslot}, s{sslot}, 43691\ns_lshr_b32 s{sslot}, s{sslot}, 17\ns_sub_u32 s{sslot}, s{src}, s{sslot}')
    sIDX, sSLT = 40, 41
    A(f's_cmp_eq_u32 s{sWAVE}, 4\ns_cbranch_scc0 L_noprobe')
    vote_slot(2, sIDX, sSLT)
    A(f's_cmp_ge_u32 s{sIDX}, 12\ns_cselect_b32 s{sT0}, 12, 0\ns_sub_u32 s{sT0}, s{sIDX}, s{sT0}')
    A(f's_lshl_b32 s{sT0}, s{sT0}, 3\ns_and_b32 s{sT1}, s{sSLT}, 7\ns_add_u32 s{sT0}, s{sT0}, s{sT1}\ns_lshl_b32 s{sT0}, s{sT0}, 21')
    A(f's_lshr_b32 s{sT1}, s{sSLT}, 3\ns_lshl_b32 s{sT1}, s{sT1}, 12\nv_mov_b32 {v(vT+4)}, 0\ns_mov_b64 exec, 1\ns_cmp_ge_u32 s{sIDX}, 12')
    A('s_waitcnt lgkmcnt(0)')
    A(f's_cselect_b32 s{sP}, s{sV}, s{sK}\ns_cselect_b32 s{sP+1}, s{sV+1}, s{sK+1}\ns_add_u32 s{sP}, s{sP}, s{sT0}\ns_addc_u32 s{sP+1}, s{sP+1}, 0')
    A(f's_bfe_u32 s{sT0}, s{sP}, 0x10015\ns_lshl_b32 s{sT0}, s{sT0}, 13\ns_add_u32 s{sT0}, s{sT0}, s{sT1}')
    A(f'v_mov_b32 {v(vT)}, s{sT0}\nv_xor_b32 {v(vT+1)}, 0x2000, {v(vT)}')
    A(f'global_load_dword {v(vT+2)}, {v(vT)}, {sp(sP)} nt\nglobal_load_dword {v(vT+3)}, {v(vT+1)}, {sp(sP)} nt\ns_mov_b64 exec, -1')
    if gord == 2: A(f'global_load_dword {v(vTAG)}, {v(vT+4)}, {sp(sWS)} sc1')
    A('s_barrier')
    ws_srd()
    e_ = 1 if gord == 2 else 0
    A(f's_waitcnt vmcnt({1+e_})\ns_memtime s[36:37]\ns_waitcnt vmcnt({e_})\ns_memtime s[38:39]')
    if gord != 2: A(f'global_load_dword {v(vTAG)}, {v(vT+4)}, {sp(sWS)} sc1')
    A('s_branch L_helper\nL_noprobe:')

    sO1, sO2, sOK = sN0, sN1, sFLV
    A(f's_cmp_ge_u32 s{sJ}, 3\ns_cbranch_scc0 L_w1mlp')
    A(f's_mov_b32 s{sBETA}, s{sH}\ns_sub_u32 s{sPI}, s{sJ}, 3\ns_mov_b32 s{sRS}, 12288\ns_mov_b32 s{sHASW1}, 1\ns_mul_i32 s{sO1}, s{sH}, 384')
    A('s_branch L_w1done\nL_w1mlp:')
    A(f's_mul_i32 s{sT1}, s{sU2}, 52429\ns_lshr_b32 s{sT1}, s{sT1}, 18')
    A(f's_mul_i32 s{sT2}, s{sT1}, 5\ns_sub_u32 s{sPI}, s{sU2}, s{sT2}\ns_add_u32 s{sBETA}, s{sT1}, 32\ns_mov_b32 s{sRS}, 3072')
    A(f's_cmp_lt_u32 s{sU2}, 80\ns_cselect_b32 s{sHASW1}, 1, 0\ns_and_b32 s{sT1}, s{sT1}, 7\ns_mul_i32 s{sO1}, s{sT1}, 384')
    A('L_w1done:')
    A(f's_lshl_b32 s{sT1}, s{sPI}, 2\ns_add_u32 s{sT1}, s{sT1}, s{sWAVE}\ns_lshl_b32 s{sT1}, s{sT1}, 5\ns_mul_i32 s{sT1}, s{sT1}, s{sRS}\ns_add_u32 s{sO1}, s{sO1}, s{sT1}')
    A(f's_mul_i32 s{sT1}, s{sRS}, 31\ns_add_u32 s{sT1}, s{sT1}, 384\ns_mul_i32 s{rW1+2}, s{sT1}, s{sHASW1}\ns_mov_b32 s{rW1+3}, 0x20000')
    if now: A(f's_mov_b32 s{rW1+2}, 0')
    for p in range(3):
        A(f'v_add_u32 {v(vT)}, {64*p}, {v(vLANE)}\nv_mul_u32_u24 {v(vT+1)}, 2731, {v(vT)}\nv_lshrrev_b32 {v(vT+1)}, 16, {v(vT+1)}')
        A(f'v_mul_u32_u24 {v(vT+2)}, 24, {v(vT+1)}\nv_sub_u32 {v(vT)}, {v(vT)}, {v(vT+2)}\nv_lshlrev_b32 {v(vT)}, 4, {v(vT)}')
        if not w1sw: A(f'v_mad_u32_u24 {v(vS+p)}, {v(vT+1)}, s{sRS}, {v(vT)}')
        A(f'v_and_b32 {v(vT+3)}, 6, {v(vT+1)}\nv_lshlrev_b32 {v(vT+3)}, 4, {v(vT+3)}\nv_xor_b32 {v(vT)}, {v(vT)}, {v(vT+3)}\nv_lshl_add_u32 {v(vSRC+p)}, {v(vT+2)}, 4, {v(vT)}')
        if w1sw: A(f'v_mad_u32_u24 {v(vS+p)}, {v(vT+1)}, s{sRS}, {v(vT)}')
    A(f's_mul_i32 s{sSLA}, s{sWAVE}, {RING}\ns_add_u32 s{sSLB}, s{sSLA}, {SLOT}\ns_mul_i32 s{sSLC}, s{sWAVE}, {WT}\ns_add_u32 s{sSLC}, s{sSLC}, {WREG}')
    A(f's_mul_i32 s{sT0}, s{sWAVE}, 1280\nv_lshlrev_b32 {v(vA)}, 2, {v(vLANE)}\nv_add_u32 {v(vA)}, s{sT0}, {v(vA)}\ns_mul_i32 s{sOK}, s{sRHO}, 1572864')
    A(f's_cmp_lt_u32 s{sBETA}, 40')
    A('s_waitcnt lgkmcnt(0)')
    pstamp(1)
    if stamps == 3: A(f's_cmp_lt_u32 s{sBETA}, 40')
    A(f's_cselect_b32 s{rW1}, s{sWG}, s{sWU}\ns_cselect_b32 s{rW1+1}, s{sWG+1}, s{sWU+1}\ns_cmp_lt_u32 s{sBETA}, 32\ns_cselect_b32 s{rW1}, s{sWQ}, s{rW1}\ns_cselect_b32 s{rW1+1}, s{sWQ+1}, s{rW1+1}')
    A(f's_add_u32 s{rW1}, s{rW1}, s{sO1}\ns_addc_u32 s{rW1+1}, s{rW1+1}, 0')
    if touch:
        A(f's_load_dword s96, {sp(rW1)}, 0\ns_load_dword s97, {sp(sX)}, 0\ns_load_dword s98, {sp(sK)}, s{sOK}')
    A('s_barrier')
    pstamp(2)
    for k in range(5): A(f'global_load_dword {v(vF+k)}, {v(vA)}, {sp(sX)} offset:{256*k}')
    def w1_issue():
        A(f's_lshl_b32 s{sT2}, s{sRS}, 3\ns_mov_b32 s{sT1}, 0')
        for i in range(12):
            A(f's_add_u32 m0, s{sSLC}, {1024*i}')
            A(f's_add_u32 s{sT1}, s{sT1}, s{sT2}' if i and i % 3 == 0 else 's_nop 0')
            A(f'buffer_load_dwordx4 {v(vS+i%3)}, {srd(rW1)}, s{sT1} offen {w1nt} lds')
    if late:
        assert up == 0
        A(f's_cmp_ge_u32 s{sJ}, 3\ns_cbranch_scc0 L_w1late')
    w1_issue()
    if late: A('L_w1late:')
    A(f'v_mov_b32 {v(vT)}, 0\nglobal_load_dword {v(vTAG)}, {v(vT)}, {sp(sWS)} sc1')
    pstamp(3)
    ws_srd()
    A(f's_add_u32 s{rK}, s{sK}, s{sOK}\ns_addc_u32 s{rK+1}, s{sK+1}, 0\ns_mov_b32 s{rK+3}, 0x20000')
    A(f's_add_u32 s{sVB}, s{sV}, s{sOK}\ns_addc_u32 s{sVB+1}, s{sV+1}, 0')
    A(f's_lshl_b32 s{sU}, s{sWAVE}, {umap}')
    if rot >= 0:
        rot3(sT1, sT2)
        A(f's_lshl_b32 s{sT1}, s{sT1}, 5\ns_add_u32 s{sU}, s{sU}, s{sT1}')
    A(f's_mov_b32 s{sU0}, s{sU}')
    block_params(1, sN0)
    dma_tile(sOFF, sSLA, None, 0, up, knt)
    A(f's_cmp_lt_u32 s{sJ}, 5\ns_cbranch_scc0 L_w2down')
    A(f's_mul_i32 s{sT1}, s{sH}, {192*1280}\ns_lshl_b32 s{sT2}, s{sJ}, 8\ns_add_u32 s{sT1}, s{sT1}, s{sT2}')
    A(f's_add_u32 s{rW2}, s{sWO}, s{sT1}\ns_addc_u32 s{rW2+1}, s{sWO+1}, 0\ns_mov_b32 s{rW2+2}, {47*1280+256}\ns_branch L_w2done')
    A('L_w2down:')
    A(f's_sub_u32 s{sT3}, s{sU2}, 5\ns_mul_i32 s{sT1}, s{sT3}, 52429\ns_lshr_b32 s{sT1}, s{sT1}, 18\ns_mul_i32 s{sT2}, s{sT1}, 5\ns_sub_u32 s{sT2}, s{sT3}, s{sT2}')
    A(f's_mul_i32 s{sT1}, s{sT1}, {96*1280}\ns_lshl_b32 s{sT2}, s{sT2}, 8\ns_add_u32 s{sT1}, s{sT1}, s{sT2}')
    A(f's_add_u32 s{rW2}, s{sWD}, s{sT1}\ns_addc_u32 s{rW2+1}, s{sWD+1}, 0')
    A(f's_cmp_lt_u32 s{sT3}, 80\ns_cselect_b32 s{rW2+2}, {47*1280+256}, 0\ns_cmp_lt_u32 s{sWAVE}, 2\ns_cselect_b32 s{rW2+2}, s{rW2+2}, 0')
    A('L_w2done:')
    A(f's_mul_i32 s{sT1}, s{sWAVE}, {48*1280}\ns_add_u32 s{rW2}, s{rW2}, s{sT1}\ns_addc_u32 s{rW2+1}, s{rW2+1}, 0\ns_mov_b32 s{rW2+3}, 0x20000')
    if now: A(f's_mov_b32 s{rW2+2}, 0')
    def vbases(hf):
        A(f'v_lshrrev_b32 {v(vT)}, 2, {v(vLANE)}')
        if hf: A(f'v_min_u32 {v(vT)}, 5, {v(vT)}\nv_add_u32 {v(vT)}, 16, {v(vT)}')
        A(f'v_bfe_u32 {v(vT+2)}, {v(vT)}, 1, 2\nv_mul_u32_u24 {v(vT)}, 384, {v(vT)}\nv_and_b32 {v(vT+3)}, 3, {v(vLANE)}\nv_lshl_add_u32 {v(vT)}, {v(vT+3)}, 3, {v(vT)}')
        for k in range(4): A(f'v_xor_b32 {v(vT+3)}, {k}, {v(vT+2)}\nv_lshl_add_u32 {v(vVB+4*hf+k)}, {v(vT+3)}, 5, {v(vT)}')
    if w1sw:
        vbases(0)
        for k in range(4): A(f'v_add_u32 {v(vAD+k)}, s{sSLC}, {v(vVB+k)}\nv_add_u32 {v(vAD+4+k)}, 6144, {v(vAD+k)}')
    if not w1sw: A(f'v_lshrrev_b32 {v(vT)}, 2, {v(vLANE)}\nv_mul_u32_u24 {v(vT)}, 384, {v(vT)}\nv_and_b32 {v(vT+1)}, 3, {v(vLANE)}\nv_lshl_add_u32 {v(vVA0)}, {v(vT+1)}, 3, {v(vT)}')
    if late:
        A(f's_cmp_ge_u32 s{sJ}, 3\ns_cbranch_scc1 L_xw\ns_waitcnt vmcnt(0)\nL_xw:')
    A(f's_waitcnt vmcnt({1+12+up})')
    pstamp(4)
    X = vF + 8
    for k in range(5):
        A(f'v_lshlrev_b32 {v(X+2*k)}, 16, {v(vF+k)}\nv_and_b32 {v(X+2*k+1)}, 0xffff0000, {v(vF+k)}')
    a = vT
    A(f'v_add_f32 {v(a)}, {v(X)}, {v(X+1)}')
    for k in range(2, 10): A(f'v_add_f32 {v(a)}, {v(a)}, {v(X+k)}')
    xsum(a, a+1)
    A(f'v_mul_f32 {v(a)}, {f2u(1/640):#x}, {v(a)}')
    b_ = vT+2
    A(f'v_sub_f32 {v(a+1)}, {v(X)}, {v(a)}\nv_mul_f32 {v(b_)}, {v(a+1)}, {v(a+1)}')
    for k in range(1, 10): A(f'v_sub_f32 {v(a+1)}, {v(X+k)}, {v(a)}\nv_fmac_f32 {v(b_)}, {v(a+1)}, {v(a+1)}')
    xsum(b_, a+1)
    A(f'v_mul_f32 {v(b_)}, {f2u(1/640):#x}, {v(b_)}')
    rnd2(a, b_, a+1)
    A(f'v_add_f32 {v(b_)}, {f2u(1e-5):#x}, {v(b_)}')
    rnd(b_, a+1)
    c_ = vT+3
    A(f'v_sqrt_f32 {v(c_)}, {v(b_)}\ns_nop 0\nv_rcp_f32 {v(c_+1)}, {v(c_)}\nv_fma_f32 {v(a+1)}, -{v(c_)}, {v(c_)}, {v(b_)}')
    A(f'v_mul_f32 {v(c_+1)}, 0.5, {v(c_+1)}\nv_fma_f32 {v(c_)}, {v(a+1)}, {v(c_+1)}, {v(c_)}')
    rnd(c_, a+1)
    A(f'v_rcp_f32 {v(c_+1)}, {v(c_)}')
    A(f'v_mov_b32 {v(vT+6)}, {v(X)}\nv_mov_b32 {v(vT+7)}, {v(X+1)}')
    for k in range(1, 5):
        A(f's_cmp_eq_u32 s{sPI}, {k}\ns_cselect_b64 vcc, -1, 0\nv_cndmask_b32 {v(vT+6)}, {v(vT+6)}, {v(X+2*k)}, vcc\nv_cndmask_b32 {v(vT+7)}, {v(vT+7)}, {v(X+2*k+1)}, vcc')
    A(f'v_sub_f32 {v(vT+6)}, {v(vT+6)}, {v(a)}\nv_sub_f32 {v(vT+7)}, {v(vT+7)}, {v(a)}')
    rnd2(vT+6, vT+7, a+1)
    fdiv(vT+8, vT+6, c_, c_+1, a+1)
    fdiv(vT+9, vT+7, c_, c_+1, a+1)
    A(f'v_cvt_pk_bf16_f32 {v(vT+8)}, {v(vT+8)}, {v(vT+9)}')
    A(f's_lshl_b32 s{sT1}, s{sWAVE}, 8\ns_add_u32 s{sT1}, s{sT1}, {XN}\nv_lshlrev_b32 {v(vA)}, 2, {v(vLANE)}\nv_add_u32 {v(vA)}, s{sT1}, {v(vA)}')
    A(f'ds_write_b32 {v(vA)}, {v(vT+8)}')
    A(f'v_bfe_u32 {v(vT)}, {v(vLANE)}, 2, 2\nv_lshlrev_b32 {v(vT)}, 8, {v(vT)}\nv_lshrrev_b32 {v(vT+1)}, 4, {v(vLANE)}\nv_lshl_add_u32 {v(vT)}, {v(vT+1)}, 3, {v(vT)}')
    A(f's_lshl_b32 s{sT1}, s{sWAVE}, 6\ns_add_u32 s{sT1}, s{sT1}, {XN}\nv_add_u32 {v(vA)}, s{sT1}, {v(vT)}')
    A('s_waitcnt lgkmcnt(0)\ns_barrier')
    if stamps == 1: stamp(1)
    pstamp(5); qstamp(1)
    A(f'ds_read2_b64 {v(vP,4)}, {v(vA)} offset0:0 offset1:4')
    if late:
        A(f's_cmp_ge_u32 s{sJ}, 3\ns_cbranch_scc1 L_w1early')
        w1_issue()
        A('L_w1early:')
    k0a = max(up, min(9, pace))
    dma_tile(sOFF, sSLA, pace, up, k0a, knt)
    if not w1sw: A(f'v_add_u32 {v(vA)}, s{sSLC}, {v(vVA0)}')
    A(f's_waitcnt vmcnt({k0a}) lgkmcnt(0)')
    pstamp(6); qstamp(2)
    if xtra >= 0:
        dma_tile(sOFF, sSLA, None, k0a, 9, knt)
        block_params(1, sN1)
        dma_tile(sOFF, sSLB, None, 0, xtra, knt)
    if w1sw: trread_mfma(12, vAD, 0, vO, True, vF, vP, vAD+4)
    else: trread_mfma(12, vA, 6144, vO, True, vF, vP)
    qstamp(3)
    A(f's_mul_i32 s{sT1}, s{sWAVE}, 3072\ns_add_u32 s{sT1}, s{sT1}, {RED}')
    A(f'v_lshrrev_b32 {v(vT)}, 4, {v(vLANE)}\nv_mul_u32_u24 {v(vT)}, 768, {v(vT)}\nv_and_b32 {v(vT+1)}, 15, {v(vLANE)}\nv_lshl_add_u32 {v(vT)}, {v(vT+1)}, 2, {v(vT)}\nv_add_u32 {v(vA)}, s{sT1}, {v(vT)}')
    A('s_nop 2')
    for t in range(12): A(f'ds_write_b32 {v(vA)}, {v(vO+4*t)} offset:{64*t}')
    A(f's_mul_i32 s{sT1}, s{sWAVE}, 768\ns_add_u32 s{sT1}, s{sT1}, {RED}\nv_mul_u32_u24 {v(vA)}, 12, {v(vLANE)}\nv_add_u32 {v(vA)}, s{sT1}, {v(vA)}')
    A('s_waitcnt lgkmcnt(0)')
    qstamp(4)
    A('s_barrier')
    qstamp(5)
    for w in range(4):
        for k in range(3): A(f'ds_read_b32 {v(vF+4*w+k)}, {v(vA)} offset:{3072*w+4*k}')
    A(f'v_lshrrev_b32 {v(vT)}, 4, {v(vLANE)}\nv_mul_u32_u24 {v(vT)}, 1280, {v(vT)}\nv_and_b32 {v(vT+1)}, 15, {v(vLANE)}\nv_lshl_add_u32 {v(vS)}, {v(vT+1)}, 4, {v(vT)}')
    A(f's_mul_i32 s{sT1}, s{sBETA}, 5\ns_add_u32 s{sT1}, s{sT1}, s{sPI}\ns_lshl_b32 s{sT1}, s{sT1}, 2\ns_add_u32 s{sT1}, s{sT1}, s{sWAVE}\ns_lshl_b32 s{sT1}, s{sT1}, 10\ns_add_u32 s{sT1}, s{sT1}, {P1}')
    A(f'v_add_u32 {v(vTAG)}, {TAGC:#x}, {v(vTAG)}')
    A('s_waitcnt lgkmcnt(0)')
    for k in range(3):
        A(f'v_add_f32 {v(vF+k)}, {v(vF+k)}, {v(vF+4+k)}\nv_add_f32 {v(vF+8+k)}, {v(vF+8+k)}, {v(vF+12+k)}')
    for k in range(3): A(f'v_add_f32 {v(vF+k)}, {v(vF+k)}, {v(vF+8+k)}')
    A(f'v_mov_b32 {v(vF+3)}, {v(vTAG)}')
    A(f's_cmp_eq_u32 s{sHASW1}, 0\ns_cbranch_scc1 L_nopub1')
    A(f'buffer_store_dwordx4 {v(vF,4)}, {v(vL16)}, {srd(rWS)}, s{sT1} offen sc1')
    A('L_nopub1:')
    qstamp(6)
    stamp(2)
    if xtra >= 0: dma_tile(sOFF, sSLB, pace, xtra, 9, knt)
    else: dma_tile(sOFF, sSLA, pace, k0a, 9, knt)
    A(f's_mov_b32 s{sT1}, 0')
    for i in range(12):
        A(f's_add_u32 m0, s{sSLC}, {1024*i}\ns_waitcnt vmcnt({pace-1})')
        A(f'buffer_load_dwordx4 {v(vS)}, {srd(rW2)}, s{sT1} offen {w2nt} lds')
        if i < 11: A(f's_add_u32 s{sT1}, s{sT1}, 5120')
    if xtra < 0:
        block_params(1, sN1)
        dma_tile(sOFF, sSLB, pace, 0, 9, knt)
    for t in range(12):
        for r in range(4): A(f'v_mov_b32 {v(vO+4*t+r)}, 0')
    A(f'v_mov_b32 {v(vM)}, {f2u(-1e30):#x}\nv_mov_b32 {v(vML)}, {f2u(-1e30):#x}\nv_mov_b32 {v(vLS)}, 0\ns_mov_b32 s{sNEG}, 0xff80ff80')
    A(f'v_lshrrev_b32 {v(vT+1)}, 4, {v(vLANE)}')
    for hf in range(2):
        A(f'v_and_b32 {v(vT)}, 15, {v(vLANE)}')
        if hf: A(f'v_min_u32 {v(vT)}, 5, {v(vT)}\nv_add_u32 {v(vT)}, 16, {v(vT)}')
        A(f'v_and_b32 {v(vT+2)}, 6, {v(vT)}\nv_xor_b32 {v(vT+2)}, {v(vT+2)}, {v(vT+1)}\nv_mul_u32_u24 {v(vT)}, 384, {v(vT)}')
        A(f'v_lshl_add_u32 {v(vKB+2*hf)}, {v(vT+2)}, 4, {v(vT)}\nv_xor_b32 {v(vT+2)}, 4, {v(vT+2)}\nv_lshl_add_u32 {v(vKB+2*hf+1)}, {v(vT+2)}, 4, {v(vT)}')
    vbases(1)
    if not w1sw: vbases(0)
    A(f'v_cmp_gt_u32 vcc, 16, {v(vLANE)}\nv_mov_b32 {v(vT)}, 0xffff\nv_mov_b32 {v(vT+2)}, 0xffff0000\nv_cndmask_b32 {v(vM3)}, 0, -1, vcc')
    A(f'v_cmp_eq_u32 vcc, 1, {v(vT+1)}\ns_mul_i32 s{sT1}, s{sWAVE}, 1536\ns_add_u32 s{sT1}, s{sT1}, {STG}\nv_cndmask_b32 {v(vM2B)}, {v(vM3)}, {v(vT)}, vcc\nv_cndmask_b32 {v(vM2X)}, 0, {v(vT+2)}, vcc')
    A(f'v_lshl_add_u32 {v(vSK)}, {v(vT+1)}, 4, s{sT1}\nv_add_u32 {v(vSV)}, {22*64}, {v(vSK)}\nv_mov_b32 {v(vFA)}, {FLG+8}\nv_mov_b32 {v(vONE)}, 1')
    A(f'v_add_u32 {v(vT)}, 352, {v(vLANE)}\nv_cmp_gt_u32 vcc, 32, {v(vLANE)}\nv_add_u32 {v(vT+2)}, -32, {v(vLANE)}\ns_nop 0\nv_cndmask_b32 {v(vT)}, {v(vT+2)}, {v(vT)}, vcc\nv_lshl_add_u32 {v(vPA)}, {v(vT)}, 2, s{sT1}')
    A(f's_add_u32 s{sSTG}, s{sT1}, 128')
    A(f'v_lshlrev_b32 {v(vA)}, 4, {v(vT+1)}\nv_add_u32 {v(vA)}, {QL}, {v(vA)}\nv_mov_b32 {v(vT+2)}, {FLG}')
    A('s_waitcnt vmcnt(9)')
    if stamps == 2: stamp(1)
    A('s_barrier')
    stamp(3)
    A(f'ds_read_b128 {v(vT+4,4)}, {v(vT+2)}')
    for s in range(6): A(f'ds_read_b128 {v(vQ+4*s,4)}, {v(vA)} offset:{64*s}')
    A(f's_mov_b32 s{sT}, 0\ns_waitcnt lgkmcnt(6)')
    A(f'v_readfirstlane_b32 s{sFL}, {v(vT+4)}\nv_readfirstlane_b32 s{sFLV}, {v(vT+5)}')
    A(f's_nop 0\ns_mov_b64 {sp(sCM)}, 0')
    grp = [0x3f, 0xff << 6, 0x3f << 14]
    for i in range(3):
        A(f's_bitcmp1_b32 s{sFL}, {i}\ns_cselect_b32 s{sT1}, {grp[i]:#x}, 0\ns_or_b32 s{sCM}, s{sCM}, s{sT1}')
        gv = grp[i] << 26
        A(f's_bitcmp1_b32 s{sFLV}, {i}')
        if gv & 0xffffffff: A(f's_cselect_b32 s{sT1}, {gv & 0xffffffff:#x}, 0')
        if gv >> 32: A(f's_cselect_b32 s{sT2}, {gv >> 32:#x}, 0\ns_or_b32 s{sCM+1}, s{sCM+1}, s{sT2}')
        if gv & 0xffffffff: A(f's_or_b32 s{sCM}, s{sCM}, s{sT1}')
    for k in range(2):
        A(f's_bitcmp1_b32 s{sRHO}, 0\ns_cselect_b32 s{sT1}, s{sFL if k else sFLV}, s{sFLV if k else sFL}\ns_bitcmp1_b32 s{sT1}, 2\ns_cselect_b32 s{sT1}, {5 << (20+k):#x}, 0\ns_or_b32 s{sCM}, s{sCM}, s{sT1}')
    A(f's_sub_u32 s{sT1}, 0, s{sHALF}\ns_xor_b32 s{sCM}, s{sCM}, s{sT1}\ns_xor_b32 s{sCM+1}, s{sCM+1}, s{sT1}')
    A(f's_mov_b32 s{sPUB}, 4\ns_waitcnt lgkmcnt(0)')
    def arrive():
        A(f's_mov_b64 exec, 1\nds_add_u32 {v(vFA)}, {v(vONE)}\ns_mov_b64 exec, -1')
    chk = f'ds_read_b64 {v(vR,2)}, {v(vFA)}'
    def step_wait(lbl):
        if not sync: return
        A(f'{lbl}:\ns_waitcnt lgkmcnt(0)\nv_readfirstlane_b32 s{sT1}, {v(vR)}\ns_nop 0\ns_cmp_ge_u32 s{sT1}, s{sPUB}\ns_cbranch_scc1 {lbl}_ok')
        A(f'{chk}\ns_branch {lbl}\n{lbl}_ok:')
    def wo_frags():
        A(f'v_lshrrev_b32 {v(vT)}, 2, {v(vLANE)}\nv_lshlrev_b32 {v(vT)}, 8, {v(vT)}\nv_and_b32 {v(vT+1)}, 3, {v(vLANE)}\nv_lshl_add_u32 {v(vT)}, {v(vT+1)}, 3, {v(vT)}')
        A(f's_lshl_b32 s{sT1}, s{sWAVE}, 6\ns_add_u32 s{sT1}, s{sT1}, {WREG}\nv_add_u32 {v(vA)}, s{sT1}, {v(vT)}')
        for s in range(6):
            for t in range(2):
                f = vW + 24*t + 4*s
                A(f'ds_read_b64_tr_b16 {v(f,2)}, {v(vA)} offset:{8192*s+32*t}\nds_read_b64_tr_b16 {v(f+2,2)}, {v(vA)} offset:{8192*s+32*t+4096}')
            if s % 2 == 1 and s < 5: A('s_waitcnt lgkmcnt(4)')
    A('.p2align 6\nL_kloop:')
    for k in range(4): A(f'v_add_u32 {v(vAD+k)}, s{sSLA}, {v(vKB+k)}')
    A('s_waitcnt vmcnt(9)')
    arrive()
    for kt in range(2):
        for s in range(6):
            if not (nocomp & 1): A(f'ds_read_b128 {v(vF+24*kt+4*s,4)}, {v(vAD+2*kt+(s&1))} offset:{128*(s>>1)}')
    A(chk)
    A(f'v_and_or_b32 {v(vT+8)}, {v(vM2X)}, s{sN0}, {v(vM2B)}\ns_mov_b32 s{sN0}, s{sN1}')
    A(f's_cmp_lg_u32 s{sT}, 22\ns_cbranch_scc1 L_knosw')
    A(f's_mov_b32 s{rK}, s{sVB}\ns_mov_b32 s{rK+1}, s{sVB+1}\ns_cmp_ge_u32 s{sU0}, 8\ns_cselect_b32 s{sU}, -8, 88\ns_add_u32 s{sU}, s{sU}, s{sU0}')
    A('L_knosw:')
    block_params(0, sN1)
    for kt in range(2):
        for s in range(6):
            i = 6*kt + s
            A(f's_waitcnt lgkmcnt({12-i})')
            c = '0' if s == 0 else v(vS+4*kt, 4)
            A(f'v_mfma_f32_16x16x32_bf16 {v(vS+4*kt,4)}, {v(vF+4*i,4)}, {v(vQ+4*s,4)}, {c}')
    step_wait('L_ks')
    dma_tile(sOFF, sSLA, None, 0, pre, knt)
    A(f's_nop {max(0, 7 - 3*pre)}')
    for k in range(4): rnd2(vS+2*k, vS+2*k+1, vT+k)
    for k in range(8): A(f'v_mul_f32 {v(vS+k)}, s{sSC}, {v(vS+k)}')
    for k in range(4): A(f'v_cvt_pk_bf16_f32 {v(vT+k)}, {v(vS+2*k)}, {v(vS+2*k+1)}')
    A(f'v_bfi_b32 {v(vT+2)}, {v(vT+8)}, {v(vT+2)}, s{sNEG}\nv_bfi_b32 {v(vT+3)}, {v(vM3)}, {v(vT+3)}, s{sNEG}')
    A(f's_mov_b32 exec_lo, 0x00010001\ns_mov_b32 exec_hi, 0x00010001\nds_write_b128 {v(vSK)}, {v(vT,4)}\ns_mov_b64 exec, -1\nv_add_u32 {v(vSK)}, 64, {v(vSK)}')
    A(f's_cmp_eq_u32 s{sT}, 23\ns_cbranch_scc1 L_spa')
    dma_tile(sOFF, sSLA, D, pre, 9, knt)
    A(f's_mov_b32 s{sT1}, s{sSLA}\ns_mov_b32 s{sSLA}, s{sSLB}\ns_mov_b32 s{sSLB}, s{sT1}')
    A(f's_add_u32 s{sT}, s{sT}, 1\ns_add_u32 s{sPUB}, s{sPUB}, 4\ns_branch L_kloop')
    A('.p2align 6\nL_vloop:')
    for k in range(8): A(f'v_add_u32 {v(vAD+k)}, s{sSLA}, {v(vVB+k)}')
    A(f'ds_read_b128 {v(vP,4)}, {v(vSV)}\ns_cmp_eq_u32 s{sT}, 25\ns_cselect_b32 s{sT1}, {64-1536}, 64\nv_add_u32 {v(vSV)}, s{sT1}, {v(vSV)}')
    A(f's_cmp_lg_u32 s{sT}, 24\ns_cbranch_scc1 L_vnosw\ns_mov_b32 s{sU}, s{sU0}\nL_vnosw:')
    block_params(2, sN1)
    A('s_waitcnt vmcnt(9)')
    arrive()
    if not (nocomp & 2): trread_mfma(12, vAD, 0, vO, False, vF, vP, vAD+4, chk)
    else: A(chk)
    A(f's_cmp_eq_u32 s{sT}, 47\ns_cbranch_scc1 L_loopx')
    step_wait('L_vs')
    dma_tile(sOFF, sSLA, None, 0, pre, vnt)
    A(f's_cmp_eq_u32 s{sT}, 27\ns_cbranch_scc1 L_spb')
    A('L_vmid:')
    if nend:
        A(f's_cmp_ge_u32 s{sT}, {46-nend}\ns_cbranch_scc0 L_vpc')
        dma_tile(sOFF, sSLA, Dend if Dend < 18 else None, pre, 9, vnt)
        A('s_branch L_vpe\nL_vpc:')
    dma_tile(sOFF, sSLA, D, pre, 9, vnt)
    A('L_vpe:')
    A(f's_mov_b32 s{sT1}, s{sSLA}\ns_mov_b32 s{sSLA}, s{sSLB}\ns_mov_b32 s{sSLB}, s{sT1}')
    A(f's_add_u32 s{sT}, s{sT}, 1\ns_add_u32 s{sPUB}, s{sPUB}, 4\ns_branch L_vloop')
    A('L_loopx:')
    stamp(4)
    if lred:
        A('s_mov_b64 exec, 0xffff\ns_nop 3')
        for t in range(12): A(f'ds_write_b32 {v(vSK)}, {v(vO+4*t)} offset:{64*t}')
        A('s_mov_b64 exec, -1')
    else:
        xsum(vLS, vT)
        A(f's_lshl_b32 s{sT1}, s{sWAVE}, 10\ns_add_u32 s{sT1}, s{sT1}, {OCB}\nv_lshlrev_b32 {v(vA)}, 2, {v(vLANE)}\nv_add_u32 {v(vA)}, s{sT1}, {v(vA)}')
        A('s_mov_b64 exec, 0xffff')
        for t in range(12): A(f'ds_write_b32 {v(vA)}, {v(vO+4*t)} offset:{64*t}')
        A(f's_mov_b64 exec, 1\nds_write2_b32 {v(vA)}, {v(vML)}, {v(vLS)} offset0:192 offset1:193\ns_mov_b64 exec, -1')
    A('s_waitcnt lgkmcnt(0)\ns_barrier')
    A(f's_cmp_ge_u32 s{sJ}, 5\ns_cbranch_scc1 L_sdone')
    if not wearly: wo_frags()
    A(f's_lshl_b32 s{sT1}, s{sH}, 3\ns_lshl_b32 s{sT2}, s{sWAVE}, 1\ns_add_u32 s{sT1}, s{sT1}, s{sT2}\ns_lshl_b32 s{sT1}, s{sT1}, 11\ns_add_u32 s{sT1}, s{sT1}, {OP}\ns_add_u32 s{sT2}, s{sT1}, 2048')
    A(f'v_mov_b32 {v(vA)}, 1024')
    mko = lambda b: [wsload(b, vL16, sT1), wsload(b+4, vL16, sT2), wsload(b+8, vA, sT1), wsload(b+12, vA, sT2)]
    w0_, w1_, l0_, l1_, on_ = vQ, vQ+1, vQ+2, vQ+3, vQ+4
    def useo(b):
        A(f'v_max_f32 {v(vT)}, {v(b+8)}, {v(b+12)}\nv_sub_f32 {v(w0_)}, {v(b+8)}, {v(vT)}\nv_sub_f32 {v(w1_)}, {v(b+12)}, {v(vT)}\nv_exp_f32 {v(w0_)}, {v(w0_)}\nv_exp_f32 {v(w1_)}, {v(w1_)}\ns_nop 0')
        A(f'v_mul_f32 {v(l0_)}, {v(b+9)}, {v(w0_)}\nv_fmac_f32 {v(l0_)}, {v(b+13)}, {v(w1_)}\nv_rcp_f32 {v(l1_)}, {v(l0_)}')
        for k in range(3): A(f'v_mul_f32 {v(on_+k)}, {v(b+k)}, {v(w0_)}\nv_fmac_f32 {v(on_+k)}, {v(b+4+k)}, {v(w1_)}')
    if po: poll2('L_po', mko, 4, vF, vF+16, 4, po, useo)
    else:
        (polls if sel & 1 else poll)('L_po', mko(vF), [vF+3, vF+7, vF+11, vF+15], 4)
        useo(vF)
    stamp(5)
    A(f's_mul_i32 s{sT1}, s{sWAVE}, 384\ns_add_u32 s{sT1}, s{sT1}, {OBF}')
    A(f'v_mul_u32_u24 {v(vA)}, 6, {v(vLANE)}\nv_add_u32 {v(vA)}, s{sT1}, {v(vA)}')
    for k in range(3): fdiv(on_+4+k, on_+k, l0_, l1_, vT)
    put3_bf16(on_+4, vT, vA)
    A(f'v_bfe_u32 {v(vT+2)}, {v(vLANE)}, 2, 2\nv_mul_u32_u24 {v(vT+2)}, 384, {v(vT+2)}\nv_lshrrev_b32 {v(vT+3)}, 4, {v(vLANE)}\nv_lshl_add_u32 {v(vT+2)}, {v(vT+3)}, 3, {v(vT+2)}\nv_add_u32 {v(vA)}, {OBF}, {v(vT+2)}')
    A(f's_lshl_b32 s{sT1}, s{sJ}, 2\ns_add_u32 s{sT1}, s{sT1}, s{sWAVE}\ns_lshl_b32 s{sT1}, s{sT1}, 5\ns_add_u32 s{sT1}, s{sT1}, s{sH}\ns_lshl_b32 s{sT1}, s{sT1}, 10\ns_add_u32 s{sT1}, s{sT1}, {YP}')
    A('s_waitcnt lgkmcnt(0)\ns_barrier')
    for s in range(6): A(f'ds_read2_b64 {v(vO+4*s,4)}, {v(vA)} offset0:{8*s} offset1:{8*s+4}')
    for s in range(6):
        A(f's_waitcnt lgkmcnt({5-s})')
        for t in range(2):
            c = '0' if s == 0 else v(vS+4*t, 4)
            A(f'v_mfma_f32_16x16x32_bf16 {v(vS+4*t,4)}, {v(vO+4*s,4)}, {v(vW+24*t+4*s,4)}, {c}')
    A(f'v_mov_b32 {v(vT+2)}, {v(vTAG)}\nv_mov_b32 {v(vT+3)}, {v(vTAG)}\ns_nop 5')
    A(f'v_mov_b32 {v(vT)}, {v(vS)}\nv_mov_b32 {v(vT+1)}, {v(vS+4)}')
    A(f'buffer_store_dwordx4 {v(vT,4)}, {v(vL16)}, {srd(rWS)}, s{sT1} offen sc1')
    A('L_sdone:')
    if fixdur:
        A(f'L_fix:\ns_memrealtime s[98:99]\ns_waitcnt lgkmcnt(0)\ns_sub_u32 s98, s98, s96\ns_cmp_lt_u32 s98, {fixdur*100}\ns_cbranch_scc1 L_fix')
    stamp(6)
    if stamps:
        A(f's_cmp_lg_u32 s{sWAVE}, 0\ns_cbranch_scc1 L_end\ns_waitcnt vmcnt(0)')
        stamp(7)
        write_stamps(0, 's')
    A('s_endpgm')

    def soft_pass(n, addr, off):
        X = vF
        for i in range(n): A(f'ds_read_b32 {v(vT+8+i)}, {v(addr)} offset:{off*i}')
        for i in range(n):
            A(f's_waitcnt lgkmcnt({n-1-i})\nv_lshlrev_b32 {v(X+2*i)}, 16, {v(vT+8+i)}\nv_and_b32 {v(X+2*i+1)}, 0xffff0000, {v(vT+8+i)}\nv_max3_f32 {v(vM)}, {v(X+2*i)}, {v(X+2*i+1)}, {v(vM)}')
        xsum(vM, vT, 'v_max_f32')
        A(f'v_mul_f32 {v(vT)}, s{sL2E}, {v(vM)}\nv_sub_f32 {v(vAL)}, {v(vML)}, {v(vT)}\nv_mov_b32 {v(vML)}, {v(vT)}\nv_exp_f32 {v(vAL)}, {v(vAL)}')
        for k in range(2*n): A(f'v_fma_f32 {v(X+k)}, {v(X+k)}, s{sL2E}, -{v(vML)}')
        for k in range(2*n): A(f'v_exp_f32 {v(X+k)}, {v(X+k)}')
        A(f'v_mul_f32 {v(vLS)}, {v(vLS)}, {v(vAL)}')
        for i in range(n):
            A(f'v_cvt_pk_bf16_f32 {v(vT+8+i)}, {v(X+2*i)}, {v(X+2*i+1)}\nv_add_f32 {v(vLS)}, {v(vLS)}, {v(X+2*i)}\nv_add_f32 {v(vLS)}, {v(vLS)}, {v(X+2*i+1)}')
            A(f'ds_write_b32 {v(addr)}, {v(vT+8+i)} offset:{off*i}')
    A('L_spa:')
    soft_pass(1, vPA, 0)
    A('s_branch L_vmid')
    A('L_spb:')
    if not noex:
        A(f's_mov_b32 s{sCNT}, {spin*8}')
        A(f'L_vchk:\ns_waitcnt lgkmcnt(0)\nv_readfirstlane_b32 s{sT1}, {v(vR+1)}\ns_sub_u32 s{sCNT}, s{sCNT}, 1\ns_cmp_eq_u32 s{sCNT}, 0\ns_cbranch_scc1 L_vnoc')
        A(f's_cmp_lg_u32 s{sT1}, 0\ns_cbranch_scc1 L_vnoc\n{chk}\ns_branch L_vchk\nL_vnoc:')
    A(f'v_lshl_add_u32 {v(vPA)}, {v(vLANE)}, 2, s{sSTG}')
    soft_pass(5, vPA, 256)
    for t in range(12): A(f'v_mul_f32 {v(vO+4*t)}, {v(vAL)}, {v(vO+4*t)}')
    if lred:
        xsum(vLS, vT)
        A(f's_lshl_b32 s{sT1}, s{sWAVE}, 10\ns_add_u32 s{sT1}, s{sT1}, {OCB}\nv_lshlrev_b32 {v(vSK)}, 2, {v(vLANE)}\nv_add_u32 {v(vSK)}, s{sT1}, {v(vSK)}')
        A(f's_mov_b64 exec, 1\nds_write2_b32 {v(vSK)}, {v(vML)}, {v(vLS)} offset0:192 offset1:193\ns_mov_b64 exec, -1')
    if wearly == 1:
        A(f's_cmp_ge_u32 s{sJ}, 5\ns_cbranch_scc1 L_vmid\ns_waitcnt lgkmcnt(0)')
        wo_frags()
        A('s_waitcnt lgkmcnt(0)')
    if wearly == 2:
        A(f's_cmp_ge_u32 s{sJ}, 5\ns_cbranch_scc1 L_vmid')
        A(f'v_lshrrev_b32 {v(vT)}, 2, {v(vLANE)}\nv_lshlrev_b32 {v(vT)}, 8, {v(vT)}\nv_and_b32 {v(vT+1)}, 3, {v(vLANE)}\nv_lshl_add_u32 {v(vT)}, {v(vT+1)}, 3, {v(vT)}')
        A(f's_lshl_b32 s{sT1}, s{sWAVE}, 6\ns_add_u32 s{sT1}, s{sT1}, {WREG}\nv_add_u32 {v(vA)}, s{sT1}, {v(vT)}')
        for s_ in range(max(6, 9-pre)):
            if pre + s_ < 9: dma_tile(sOFF, sSLA, D, pre + s_, pre + s_ + 1, vnt)
            if s_ < 6:
                A('s_waitcnt lgkmcnt(4)')
                for t in range(2):
                    f = vW + 24*t + 4*s_
                    A(f'ds_read_b64_tr_b16 {v(f,2)}, {v(vA)} offset:{8192*s_+32*t}\nds_read_b64_tr_b16 {v(f+2,2)}, {v(vA)} offset:{8192*s_+32*t+4096}')
        A('s_waitcnt lgkmcnt(0)\ns_branch L_vpe')
    A('s_branch L_vmid')
    def hwait(n, lbl, hsl=hsl):
        A(f's_mov_b32 s{sCNT}, {spin*8}\n{lbl}:\nds_read_b32 {v(vT)}, {v(vXF)}\ns_sub_u32 s{sCNT}, s{sCNT}, 1\ns_cmp_eq_u32 s{sCNT}, 0\ns_cbranch_scc1 {lbl}_ok')
        A(f's_waitcnt lgkmcnt(0)\nv_readfirstlane_b32 s{sT0}, {v(vT)}\ns_nop 0\ns_cmp_ge_u32 s{sT0}, {4*n}\ns_cbranch_scc1 {lbl}_ok\ns_sleep {hsl}\ns_branch {lbl}\n{lbl}_ok:')
    vXA, vXF, vXB = vQ+12, vQ+13, vQ+14
    A('L_helper:')
    inhelper[0] = True
    A(f's_getreg_b32 s{sT3}, hwreg(HW_REG_XCC_ID, 2, 1)')
    A('s_waitcnt lgkmcnt(0)')
    A(f's_sub_u32 s{sT0}, s38, s36\ns_min_u32 s{sT0}, s{sT0}, {cap}\ns_sub_u32 s{sT0}, s{sT0}, {thr}\ns_sub_u32 s{sT1}, 0, s{sT0}')
    A(f's_cmp_eq_u32 s{sT3}, 0\ns_cselect_b32 s{sT0}, s{sT0}, s{sT1}')
    A(f'v_mov_b32 {v(vP)}, s{sT0}\nv_mov_b32 {v(vP+1)}, s{sT3}\nv_mov_b32 {v(vP+2)}, 0')
    A(f's_lshl_b32 s{sT0}, s{sIDX}, 4\ns_add_u32 s{sT0}, s{sT0}, s{sSLT}\ns_lshl_b32 s{sT0}, s{sT0}, 4\ns_add_u32 s{sT0}, s{sT0}, {VOTE}')
    if gord == 1: A('s_barrier')
    A(f's_waitcnt vmcnt(0)\nv_add_u32 {v(vTAG)}, {TAGC:#x}, {v(vTAG)}\nv_mov_b32 {v(vP+3)}, {v(vTAG)}')
    A(f's_mov_b64 exec, 1\nbuffer_store_dwordx4 {v(vP,4)}, {v(vL16)}, {srd(rWS)}, s{sT0} offen sc1\ns_mov_b64 exec, -1')
    if htouch:
        A(f's_mul_i32 s{sT0}, s{sRHO}, 1572864\ns_load_dword s96, {sp(sV)}, s{sT0}\ns_add_u32 s{sT0}, s{sT0}, 1572860\ns_load_dword s97, {sp(sK)}, s{sT0}\ns_load_dword s98, {sp(sV)}, s{sT0}')
        if htouch > 1: A(f's_mul_i32 s{sT0}, s{sH}, {192*1280}\ns_load_dword s99, {sp(sWO)}, s{sT0}\ns_load_dword s96, {sp(sWD)}, 0')
    sCA, sCB2 = 42, 43
    A(f's_mul_i32 s{sT0}, s{sRHO}, 3\ns_lshr_b32 s{sCA}, s{sT0}, 5\ns_add_u32 s{sT0}, s{sT0}, 2\ns_lshr_b32 s{sCB2}, s{sT0}, 5')
    A(f'v_lshrrev_b32 {v(vT)}, 5, {v(vLANE)}\nv_mul_u32_u24 {v(vT)}, 12, {v(vT)}\nv_bfe_u32 {v(vT+1)}, {v(vLANE)}, 4, 1\ns_sub_u32 s{sT0}, s{sCB2}, s{sCA}\nv_mul_u32_u24 {v(vT+1)}, s{sT0}, {v(vT+1)}')
    A(f'v_add3_u32 {v(vT)}, {v(vT)}, {v(vT+1)}, s{sCA}\nv_and_b32 {v(vT+1)}, 15, {v(vLANE)}\nv_min_u32 {v(vT+1)}, 9, {v(vT+1)}\nv_lshlrev_b32 {v(vT+1)}, 4, {v(vT+1)}\nv_lshl_add_u32 {v(vAL)}, {v(vT)}, 8, {v(vT+1)}')
    A(f's_andn2_b32 s{sT1}, s2, 4')
    vote_slot(sT1, sT2, sT3)
    A(f's_lshl_b32 s{sT2}, s{sT2}, 4\ns_add_u32 s{sT2}, s{sT2}, s{sT3}\ns_lshl_b32 s{sT2}, s{sT2}, 4\nv_mov_b32 {v(vM)}, s{sT2}\ns_mov_b32 s{rK+5}, {VOTE}')
    A(f's_mul_i32 s{sT0}, s{sH}, {5*4096}\ns_lshl_b32 s{sT1}, s{sB}, 10\ns_add_u32 s{sT0}, s{sT0}, s{sT1}\ns_add_u32 s{rK}, s{sT0}, {P1}')
    for p in range(1, 5): A(f's_add_u32 s{rK+p}, s{rK}, {4096*p}')
    A(f's_sub_u32 s{sU2}, s{sU2}, 5')
    A(f'v_mov_b32 {v(vS+1)}, 0\nv_mov_b32 {v(vS+6)}, 0')
    A(f'v_mul_u32_u24 {v(vA)}, 6, {v(vLANE)}\nv_add_u32 {v(vA)}, {QL}, {v(vA)}')
    A('s_barrier' if gord == 1 else 's_barrier\ns_barrier')
    stamp(1)
    mkq = lambda b: [wsload(b+4*p, vL16, rK+p) for p in range(5)] + [wsload(b+20, vAL, rK+5), wsload(b+24, vM, rK+5)]
    QR = vW; E = vW + 3
    def useq(b):
        for k in range(3):
            A(f'v_add_f32 {v(QR+k)}, {v(b+k)}, {v(b+4+k)}')
        for p in range(2, 5):
            for k in range(3): A(f'v_add_f32 {v(QR+k)}, {v(QR+k)}, {v(b+4*p+k)}')
        put3_bf16(QR, vT, vA)
        A(f'v_and_b32 {v(vT)}, 15, {v(vLANE)}\nv_cmp_gt_u32 vcc, 10, {v(vT)}\nv_readfirstlane_b32 s{sT2}, {v(b+25)}\ns_nop 0\nv_cndmask_b32 {v(E)}, 0, {v(b+20)}, vcc')
    if pq: poll2('L_pq', mkq, 7, vF, vO, 1, pq, useq)
    else:
        (polls if sel & 4 else poll)('L_pq', mkq(vF), [vF+4*p+3 for p in range(5 if nopoll else 0, 7)], 1)
        useq(vF)
    for mode in ['quad_perm:[1,0,3,2]', 'quad_perm:[2,3,0,1]', 'row_half_mirror', 'row_mirror']:
        A(f's_nop 1\nv_add_u32_dpp {v(E)}, {v(E)}, {v(E)} {mode} row_mask:0xf bank_mask:0xf')
    if dbgv:
        A(f's_mul_i32 s{sT0}, s{sRHO}, 3\ns_and_b32 s{sT0}, s{sT0}, 31\ns_cmp_ge_u32 s{sT0}, 3\ns_cbranch_scc1 L_nodbg')
        A(f'v_readlane_b32 s{sT0}, {v(E)}, 16\nv_readlane_b32 s{sT1}, {v(E)}, 48')
        A(f's_nop 1\ns_add_u32 s{sT3}, s{sT0}, 5000\ns_mul_i32 s{sT3}, s{sT3}, 10000\ns_add_u32 s{sT3}, s{sT3}, s{sT1}\ns_add_u32 s{sT3}, s{sT3}, 5000')
        A(f's_lshl_b32 s{sP}, s{sCB2}, 2\nv_mov_b32 {v(vT+5)}, s{sP}\nv_mov_b32 {v(vT+6)}, s{sT3}\nglobal_store_dword {v(vT+5)}, {v(vT+6)}, {sp(sDBG)}\nL_nodbg:')
    A(f'v_lshrrev_b32 {v(E)}, 31, {v(E)}\nv_xor_b32 {v(E)}, s{sT2}, {v(E)}')
    if force >= 0: A(f'v_lshrrev_b32 {v(E)}, 5, {v(vLANE)}\nv_lshrrev_b32 {v(E)}, {v(E)}, {force}\nv_and_b32 {v(E)}, 1, {v(E)}')
    sF = [36, 37, 38, 39]
    A('s_nop 0')
    for g in range(4): A(f'v_readlane_b32 s{sF[g]}, {v(E)}, {16*g}')
    sRG = 97
    if rot >= 0: rot3(sRG, sT3)
    else: A(f's_mov_b32 s{sRG}, 0')
    A(f's_mov_b32 s{sT0}, 0\ns_mov_b32 s{sT1}, 0')
    for i in range(3):
        A(f's_mul_i32 s{sT3}, s{sRHO}, 3\ns_add_u32 s{sT3}, s{sT3}, s{sRG}\ns_lshl_b32 s{sT3}, s{sT3}, 19')
        A(f's_lshr_b32 s{sT2}, s{sT3}, 24\ns_cmp_eq_u32 s{sT2}, s{sCA}\ns_cselect_b32 s{sXD}, s{sF[0]}, s{sF[1]}\ns_cselect_b32 s{sXS}, s{sF[2]}, s{sF[3]}')
        for acc, base, fl in [(sT0, sK, sXD), (sT1, sV, sXS)]:
            A(f's_add_u32 s{sT2}, s{base}, s{sT3}\ns_lshr_b32 s{sT2}, s{sT2}, 21\ns_xor_b32 s{sT2}, s{sT2}, s{fl}\ns_and_b32 s{sT2}, s{sT2}, 1\ns_lshl_b32 s{sT2}, s{sT2}, {i}\ns_or_b32 s{acc}, s{acc}, s{sT2}')
        if i < 2: A(f's_add_u32 s{sRG}, s{sRG}, 1\ns_cmp_eq_u32 s{sRG}, 3\ns_cselect_b32 s{sRG}, 0, s{sRG}')
    if nonuma: A(f's_mov_b32 s{sT0}, {nonuma >> 1}\ns_mov_b32 s{sT1}, {nonuma >> 1}')
    A(f's_xor_b32 s{sXD}, s{sT0}, s{sT1}\ns_cselect_b32 s{sXS}, 0, 1')
    A(f'v_mov_b32 {v(vT+4)}, s{sT0}\nv_mov_b32 {v(vT+5)}, s{sT1}\nv_mov_b32 {v(vT+6)}, 0\nv_mov_b32 {v(vT+7)}, s{sXS}\nv_mov_b32 {v(vT+3)}, {FLG}\nds_write_b128 {v(vT+3)}, {v(vT+4,4)}')
    if stamps:
        A(f's_lshl_b32 s{sT1}, s{sXD}, 0\ns_or_b32 s{sT1}, s{sT1}, s{sT1}\ns_lshl_b32 s{sT0}, s2, 2\ns_add_u32 s{sT0}, s{sT0}, 0x20100000')
        A(f'v_mov_b32 {v(vT+5)}, s{sT0}\nv_mov_b32 {v(vT+6)}, s{sT1}\nglobal_store_dword {v(vT+5)}, {v(vT+6)}, {sp(sWS)}')
    stamp(2)
    A('s_waitcnt lgkmcnt(0)\ns_barrier')
    A('s_waitcnt vmcnt(0)')
    A(f's_cmp_ge_u32 s{sJ}, 5\ns_cselect_b32 s{sHASW1}, 1, 0\ns_cmp_lt_u32 s{sU2}, 80\ns_cselect_b32 s{sHASW1}, s{sHASW1}, 0')
    A(f's_cmp_eq_u32 s{sHASW1}, 0\ns_cbranch_scc1 L_hx')
    A(f's_mul_i32 s{sR}, s{sU2}, 52429\ns_lshr_b32 s{sR}, s{sR}, 18\ns_mul_i32 s{sT0}, s{sR}, 5\ns_sub_u32 s{sCB}, s{sU2}, s{sT0}')
    A(f's_mul_i32 s{sRB}, s{sU2}, 52429\ns_lshr_b32 s{sRB}, s{sRB}, 20\ns_mul_i32 s{sT0}, s{sRB}, 20\ns_sub_u32 s{sSLC2}, s{sU2}, s{sT0}')
    vWD, vG4 = vS, vS+1
    A(f'v_lshrrev_b32 {v(vT)}, 4, {v(vLANE)}\nv_and_b32 {v(vT+1)}, 15, {v(vLANE)}\nv_lshlrev_b32 {v(vT+1)}, 4, {v(vT+1)}')
    A(f'v_mul_u32_u24 {v(vWD)}, 1280, {v(vT)}\nv_add_u32 {v(vWD)}, {v(vWD)}, {v(vT+1)}\nv_lshl_add_u32 {v(vG4)}, {v(vT)}, 10, {v(vT+1)}')
    A(f'v_lshrrev_b32 {v(vT)}, 5, {v(vLANE)}\nv_mul_u32_u24 {v(vT)}, {8*5*4096}, {v(vT)}\nv_and_b32 {v(vT+1)}, 31, {v(vLANE)}\nv_lshl_add_u32 {v(vA)}, {v(vT+1)}, 4, {v(vT)}')
    A(f's_lshr_b32 s{sT0}, s{sR}, 1\ns_add_u32 s{sT0}, s{sT0}, 32\ns_mul_i32 s{sT0}, s{sT0}, {5*4096}\ns_and_b32 s{sT1}, s{sR}, 1\ns_lshl_b32 s{sT1}, s{sT1}, 9\ns_add_u32 s{sT0}, s{sT0}, s{sT1}\ns_add_u32 s{rK}, s{sT0}, {P1}')
    for p in range(1, 5): A(f's_add_u32 s{rK+p}, s{rK}, {4096*p}')
    G = vF
    poll('L_pg', [wsload(G+20*b+4*p, vA, rK+p) + f' offset:{1024*b}' if False else
                  f'buffer_load_dwordx4 {v(G+20*b+4*p,4)}, {v(vA)}, {srd(rWS)}, s{rK+p} offen offset:{1024*b} sc1' for b in range(4) for p in range(5)],
         [G+20*b+4*p+3 for b in range(4) for p in range(5)], 2)
    A(f'v_and_b32 {v(vA)}, 31, {v(vLANE)}\nv_mul_u32_u24 {v(vA)}, 6, {v(vA)}\nv_add_u32 {v(vA)}, {HL}, {v(vA)}')
    for b in range(4):
        g0 = G + 20*b
        for k in range(3):
            for p in range(1, 5): A(f'v_add_f32 {v(g0+k)}, {v(g0+k)}, {v(g0+4*p+k)}')
        rnd2(g0, g0+1, vT); rnd(g0+2, vT)
        for k in range(3): A(f'v_mov_b32 {v(g0+4+k)}, {v(g0+k)}')
        A('s_nop 1')
        for k in range(3): A(f'v_permlane32_swap_b32 {v(g0+k)}, {v(g0+4+k)}')
        for k in range(3):
            A(f'v_cmp_lt_f32 vcc, 0, {v(g0+k)}\ns_nop 1\nv_cndmask_b32 {v(vT)}, 0, 1.0, vcc\nv_mul_f32 {v(g0+k)}, {v(g0+k)}, {v(vT)}\nv_mul_f32 {v(g0+k)}, {v(g0+k)}, {v(g0+4+k)}')
        put3_bf16(g0, vT, vA)
        if b < 3: A(f'v_add_u32 {v(vA)}, 192, {v(vA)}')
    A(f'v_bfe_u32 {v(vT+2)}, {v(vLANE)}, 2, 2\nv_mul_u32_u24 {v(vT+2)}, 192, {v(vT+2)}\nv_lshrrev_b32 {v(vT+3)}, 4, {v(vLANE)}\nv_lshl_add_u32 {v(vT+2)}, {v(vT+3)}, 3, {v(vT+2)}\nv_add_u32 {v(vA)}, {HL}, {v(vT+2)}')
    A('s_waitcnt lgkmcnt(0)')
    for s in range(3): A(f'ds_read2_b64 {v(vQ+4*s,4)}, {v(vA)} offset0:{8*s} offset1:{8*s+4}')
    if xtra >= 0:
        A(f'v_mov_b32 {v(vXF)}, {FLG+8}')
        hwait(2, 'L_hww')
    A(f'v_lshrrev_b32 {v(vT)}, 2, {v(vLANE)}\nv_lshlrev_b32 {v(vT)}, 8, {v(vT)}\nv_and_b32 {v(vT+1)}, 3, {v(vLANE)}\nv_lshl_add_u32 {v(vT)}, {v(vT+1)}, 3, {v(vT)}\nv_add_u32 {v(vA)}, {WREG}, {v(vT)}')
    for s in range(3):
        A('s_waitcnt lgkmcnt(0)')
        trread_mfma(8, vA, 4096, vO, s == 0, vF, vQ+4*s)
        if s < 2: A(f'v_add_u32 {v(vA)}, 8192, {v(vA)}')
    sBPA = 39
    A(f's_lshl_b32 s{sBPA}, s{sCB}, 6\ns_add_u32 s{sBPA}, s{sBPA}, s{sR}\ns_lshl_b32 s{sBPA}, s{sBPA}, 10\ns_add_u32 s{sBPA}, s{sBPA}, {BP}')
    A('s_nop 4')
    BG = vW + 16
    for ww in range(4):
        t0 = BG + 4*ww
        A(f'v_mov_b32 {v(t0)}, {v(vO+8*ww)}\nv_mov_b32 {v(t0+1)}, {v(vO+8*ww+4)}\nv_mov_b32 {v(t0+2)}, {v(vTAG)}\nv_mov_b32 {v(t0+3)}, {v(vTAG)}')
    def b_publish():
        for ww in range(4):
            A(f'buffer_store_dwordx4 {v(BG+4*ww,4)}, {v(vL16)}, {srd(rWS)}, s{sBPA} offen sc1')
            if ww < 3: A(f's_add_u32 s{sBPA}, s{sBPA}, 16384')
    if not blate: b_publish()
    vG0, vG1, vX0, vX1, vXO = vS+2, vS+3, vS+4, vS+5, vS+6
    A(f's_mul_i32 s{sT0}, s{sRB}, 1280\ns_lshl_b32 s{sT1}, s{sSLC2}, 6\ns_add_u32 s{sT0}, s{sT0}, s{sT1}')
    A(f'v_and_b32 {v(vXO)}, 15, {v(vLANE)}\nv_lshlrev_b32 {v(vXO)}, 1, {v(vXO)}\nv_add_u32 {v(vXO)}, s{sT0}, {v(vXO)}')
    if otouch: A(f'global_load_ushort {v(vX0)}, {v(vXO)}, {sp(sOUT)}\ns_waitcnt vmcnt(0)')
    A(f'global_load_ushort {v(vX0)}, {v(vXO)}, {sp(sX)}\nglobal_load_ushort {v(vX1)}, {v(vXO)}, {sp(sX)} offset:32')
    sBG = 40
    A(f's_lshl_b32 s{sT0}, s{sSLC2}, 14\ns_lshl_b32 s{sT1}, s{sRB}, 8\ns_add_u32 s{sT0}, s{sT0}, s{sT1}\ns_add_u32 s{sBG}, s{sT0}, {BP}')
    for p in range(1, 4): A(f's_add_u32 s{sBG+p}, s{sBG}, {4096*p}')
    def b_gather():
        G = vF + 16
        (polls if sel & 2 else poll)('L_pb', [wsload(G+4*p, vG4, sBG+p) for p in range(4)], [G+4*p+3 for p in range(4)], 5)
        for k in range(2):
            A(f'v_add_f32 {v(G+k)}, {v(G+k)}, {v(G+4+k)}\nv_add_f32 {v(G+8+k)}, {v(G+8+k)}, {v(G+12+k)}\nv_add_f32 {v(G+k)}, {v(G+k)}, {v(G+8+k)}')
            xsum(G+k, vT, full=False)
        rnd2(G, G+1, vT)
        for k in range(2):
            A(f'v_mul_f32 {v(vT)}, s{sL2E}, {v(G+k)}\nv_max_f32 {v(vT)}, {f2u(-126.0):#x}, {v(vT)}\nv_exp_f32 {v(vT)}, -{v(vT)}\ns_nop 0\nv_add_f32 {v(vT)}, 1.0, {v(vT)}\nv_rcp_f32 {v(vT+1)}, {v(vT)}\ns_nop 0')
            fdiv(vG0+k, G+k, vT, vT+1, vT+2)
        rnd2(vG0, vG1, vT)
    if not blate: b_gather()
    A(f's_waitcnt vmcnt(0)\nv_lshlrev_b32 {v(vX0)}, 16, {v(vX0)}\nv_lshlrev_b32 {v(vX1)}, 16, {v(vX1)}')
    A(f's_lshl_b32 s{sT0}, s{sSLC2}, 15\ns_lshl_b32 s{sT1}, s{sRB}, 8\ns_add_u32 s{sT0}, s{sT0}, s{sT1}\ns_add_u32 s{rK}, s{sT0}, {YP}')
    for p in range(1, 8): A(f's_add_u32 s{rK+p}, s{rK}, {4096*p}')
    A('L_hx:')
    if lead:
        A(f's_and_b32 s{sT0}, s2, {lmask}\ns_cmp_eq_u32 s{sT0}, 5\ns_cselect_b32 s{sT0}, 0, s{sXS}\ns_cmp_lg_u32 s{sT0}, 0\ns_cbranch_scc1 L_hb4')
    else: A(f's_cmp_lg_u32 s{sXS}, 0\ns_cbranch_scc1 L_hb4')
    sREC, sOTH = 36, 37
    A(f's_lshl_b32 s{sREC}, s{sRHO}, 1\ns_add_u32 s{sOTH}, s{sREC}, 1\ns_sub_u32 s{sOTH}, s{sOTH}, s{sHALF}\ns_add_u32 s{sREC}, s{sREC}, s{sHALF}')
    A(f's_mul_i32 s{sREC}, s{sREC}, 6144\ns_add_u32 s{sREC}, s{sREC}, {SCO}\ns_mul_i32 s{sOTH}, s{sOTH}, 6144\ns_add_u32 s{sOTH}, s{sOTH}, {SCO}')
    A(f'v_add_u32 {v(vXA)}, {STG}, {v(vL16)}\nv_mov_b32 {v(vXF)}, {FLG+8}\nv_and_b32 {v(vT)}, 3, {v(vLANE)}\nv_cmp_eq_u32 vcc, 2, {v(vT)}\nv_mov_b32 {v(vT)}, -20\ns_nop 0\nv_cndmask_b32 {v(vT)}, 8, {v(vT)}, vcc\nv_add_u32 {v(vXB)}, {v(vXA)}, {v(vT)}')
    sE0, sE1 = 96, 98
    A(f's_bitcmp1_b32 s{sXD}, 0\ns_cselect_b32 s{sE0}, 0xffffff00, 0\ns_bitcmp1_b32 s{sXD}, 1\ns_cselect_b32 s{sE0+1}, -1, 0\ns_bitcmp1_b32 s{sXD}, 2\ns_cselect_b32 s{sE1}, 0xffffff, 0\ns_mov_b32 s{sE1+1}, 0')
    hwait(pubt, 'L_hw0')
    stamp(1)
    if lead:
        A(f'v_mov_b32 {v(vT+2)}, {GO}\ns_and_b32 s{sT0}, s2, {lmask}\ns_cmp_lg_u32 s{sT0}, 5\ns_cbranch_scc1 L_go')
        hwait(lead, 'L_hwl')
        A(f's_mov_b64 exec, 1\nbuffer_store_dword {v(vTAG)}, {v(vT+2)}, {srd(rWS)}, 0 offen sc1\ns_mov_b64 exec, -1')
        if lpipe:
            A('L_go:')
            for k in range(3): A(f'buffer_load_dword {v(vT+4+k)}, {v(vT+2)}, {srd(rWS)}, 0 offen sc1\ns_sleep {lpipe}')
            A('L_go2:')
            for k in range(4):
                A(f'buffer_load_dword {v(vT+4+(k+3)%4)}, {v(vT+2)}, {srd(rWS)}, 0 offen sc1\nds_read_b32 {v(vT)}, {v(vXF)}\ns_waitcnt vmcnt(3) lgkmcnt(0)')
                A(f'v_cmp_eq_u32 vcc, {v(vT+4+k)}, {v(vTAG)}\nv_readfirstlane_b32 s{sT0}, {v(vT)}\ns_cbranch_vccnz L_go_ok\ns_cmp_ge_u32 s{sT0}, {4*fb}\ns_cbranch_scc1 L_go_ok')
            A('s_branch L_go2\nL_go_ok:')
        else:
            A(f'L_go:\nbuffer_load_dword {v(vT+3)}, {v(vT+2)}, {srd(rWS)}, 0 offen sc1\nds_read_b32 {v(vT)}, {v(vXF)}\ns_waitcnt vmcnt(0) lgkmcnt(0)')
            A(f'v_cmp_eq_u32 vcc, {v(vT+3)}, {v(vTAG)}\nv_readfirstlane_b32 s{sT0}, {v(vT)}\ns_cbranch_vccnz L_go_ok\ns_cmp_lt_u32 s{sT0}, {4*fb}\ns_cbranch_scc1 L_go\nL_go_ok:')
    stamp(3)
    def masked(i, lbl): return f's_cmp_eq_u64 {sp([sE0, sE1][i])}, 0\ns_cbranch_scc1 {lbl}{i}\ns_mov_b64 exec, {sp([sE0, sE1][i])}'
    if not (noex & 1):
        for i in range(2):
            A(masked(i, 'L_np'))
            for w in range(4):
                r = vF + 16*i + 4*w
                A(f'ds_read_b64 {v(r,2)}, {v(vXA)} offset:{1536*w+1024*i}\nds_read_b32 {v(r+2)}, {v(vXB)} offset:{1536*w+1024*i}\nv_mov_b32 {v(r+3)}, {v(vTAG)}')
            for w in range(4):
                r = vF + 16*i + 4*w
                A(f's_add_u32 s{sT0}, s{sREC}, {1536*w+1024*i}\ns_waitcnt lgkmcnt({6-2*w})')
                A(f'buffer_store_dwordx4 {v(r,4)}, {v(vL16)}, {srd(rWS)}, s{sT0} offen {stfl}')
            A(f's_mov_b64 exec, -1\nL_np{i}:')
    if lead: A(f's_cmp_lg_u32 s{sXS}, 0\ns_cbranch_scc1 L_hb4')
    hwait(gat, 'L_hw1')
    if not (noex & 2):
        G = vO
        for k in range(8): A(f'v_mov_b32 {v(G+4*k+3)}, {v(vTAG)}')
        lds_ = []
        for i in range(2):
            t_ = masked(i, 'L_ng') + '\n'
            for w in range(4):
                t_ += f's_add_u32 s{sT0}, s{sOTH}, {1536*w+1024*i}\nbuffer_load_dwordx4 {v(G+16*i+4*w,4)}, {v(vL16)}, {srd(rWS)}, s{sT0} offen {slfl}\n'
            lds_.append(t_ + f's_mov_b64 exec, -1\nL_ng{i}:')
        poll('L_px', lds_, [G+4*k+3 for k in range(8)], 8)
        for i in range(2):
            A(masked(i, 'L_nw'))
            for w in range(4): A(f'ds_write_b64 {v(vXA)}, {v(G+16*i+4*w,2)} offset:{1536*w+1024*i}\nds_write_b32 {v(vXB)}, {v(G+16*i+4*w+2)} offset:{1536*w+1024*i}')
            A(f's_mov_b64 exec, -1\ns_waitcnt lgkmcnt(0)\nL_nw{i}:')
    A(f'v_mov_b32 {v(vT)}, 1\nds_write_b32 {v(vXF)}, {v(vT)} offset:4')
    stamp(4)
    A('L_hb4:')
    A(f'v_mul_u32_u24 {v(vA)}, 12, {v(vLANE)}\nv_add_u32 {v(vA)}, {OCB}, {v(vA)}\nv_mov_b32 {v(vAL)}, {OCB+768}')
    A(f's_lshl_b32 s{sT1}, s{sH}, 3\ns_add_u32 s{sT1}, s{sT1}, s{sJ}\ns_lshl_b32 s{sT1}, s{sT1}, 11\ns_add_u32 s{sT1}, s{sT1}, {OP}')
    Gm = vQ + 16
    r0 = vP
    ml = vT + 4
    def weights():
        A(f'v_max3_f32 {v(ml)}, {v(Gm)}, {v(Gm+2)}, {v(Gm+4)}\nv_max_f32 {v(ml)}, {v(ml)}, {v(Gm+6)}')
        for w in range(4): A(f'v_sub_f32 {v(Gm+2*w)}, {v(Gm+2*w)}, {v(ml)}')
        for w in range(4): A(f'v_exp_f32 {v(Gm+2*w)}, {v(Gm+2*w)}')
        A(f'v_mov_b32 {v(r0+3)}, {v(vTAG)}\nv_mov_b32 {v(ml+3)}, {v(vTAG)}\nv_mov_b32 {v(ml+2)}, {v(vTAG)}')
        A(f'v_mul_f32 {v(ml+1)}, {v(Gm)}, {v(Gm+1)}')
        for w in range(1, 4): A(f'v_fmac_f32 {v(ml+1)}, {v(Gm+2*w)}, {v(Gm+2*w+1)}')
    if lred:
        A(f'v_mov_b32 {v(vXF)}, {FLG+8}')
        hwait(29, 'L_hw2', 8)
        for w in range(4): A(f'ds_read_b64 {v(Gm+2*w,2)}, {v(vAL)} offset:{1024*w}')
        A('s_waitcnt lgkmcnt(0)')
        weights()
        for w in range(1, 4): A(f'v_add_u32 {v(vQ+4+w)}, {1024*w}, {v(vA)}')
        A('s_barrier')
        stamp(5)
        for w in range(4):
            a_ = vA if w == 0 else vQ+4+w
            A(f'ds_read2_b32 {v(vF+4*w,2)}, {v(a_)} offset0:0 offset1:1\nds_read_b32 {v(vF+4*w+2)}, {v(a_)} offset:8')
    else:
        A('s_barrier')
        stamp(5)
        for w in range(4): A(f'ds_read_b64 {v(Gm+2*w,2)}, {v(vAL)} offset:{1024*w}')
        for w in range(4):
            A(f'ds_read2_b32 {v(vF+4*w,2)}, {v(vA)} offset0:0 offset1:1\nds_read_b32 {v(vF+4*w+2)}, {v(vA)} offset:8')
            if w < 3: A(f'v_add_u32 {v(vA)}, 1024, {v(vA)}')
        A('s_waitcnt lgkmcnt(8)')
        weights()
    A('s_waitcnt lgkmcnt(0)')
    for k in range(3): A(f'v_mul_f32 {v(r0+k)}, {v(Gm)}, {v(vF+k)}')
    for w in range(1, 4):
        for k in range(3): A(f'v_fmac_f32 {v(r0+k)}, {v(Gm+2*w)}, {v(vF+4*w+k)}')
    A(f'buffer_store_dwordx4 {v(r0,4)}, {v(vL16)}, {srd(rWS)}, s{sT1} offen sc1')
    A(f's_mov_b64 exec, 1\nbuffer_store_dwordx4 {v(ml,4)}, {v(vL16)}, {srd(rWS)}, s{sT1} offen offset:1024 sc1\ns_mov_b64 exec, -1')
    if hb5: A(f's_cmp_ge_u32 s{sJ}, 5\ns_cbranch_scc1 L_hnb5\ns_barrier\nL_hnb5:')
    A(f's_cmp_eq_u32 s{sHASW1}, 0\ns_cbranch_scc1 L_hdone')
    if blate:
        b_publish()
        b_gather()
    mky = lambda b: [wsload(b+4*p, vG4, rK+p) for p in range(8)]
    G = vW
    def usey(b):
        for k in range(2):
            for p in range(4): A(f'v_add_f32 {v(G+2*p+k)}, {v(b+8*p+k)}, {v(b+8*p+4+k)}')
    if py: poll2('L_py', mky, 8, vF+16, vO, 6, py, usey)
    else:
        (polls if sel & 2 else poll)('L_py', mky(vF+16), [vF+16+4*p+3 for p in range(8)], 6)
        usey(vF+16)
    stamp(6)
    for k in range(2):
        A(f'v_add_f32 {v(G+k)}, {v(G+k)}, {v(G+2+k)}\nv_add_f32 {v(G+4+k)}, {v(G+4+k)}, {v(G+6+k)}\nv_add_f32 {v(G+k)}, {v(G+k)}, {v(G+4+k)}')
    for k in range(2): xsum(G+k, vT+k, full=False)
    rnd2(G, G+1, vT)
    A(f'v_mul_f32 {v(G)}, {v(G)}, {v(vG0)}\nv_mul_f32 {v(G+1)}, {v(G+1)}, {v(vG1)}')
    rnd2(G, G+1, vT)
    if perturb:
        A(f's_cmp_eq_u32 s{sU2}, 0\ns_cselect_b32 s{sT0}, {f2u(perturb/1000):#x}, 0\ns_mov_b64 exec, 1\nv_add_f32 {v(vX0)}, s{sT0}, {v(vX0)}\ns_mov_b64 exec, -1')
    if pall: A(f'v_mul_f32 {v(G)}, {f2u(1+pall/1000):#x}, {v(G)}\nv_mul_f32 {v(G+1)}, {f2u(1+pall/1000):#x}, {v(G+1)}')
    A(f'v_add_f32 {v(G)}, {v(G)}, {v(vX0)}\nv_add_f32 {v(G+1)}, {v(G+1)}, {v(vX1)}\nv_cvt_pk_bf16_f32 {v(G)}, {v(G)}, {v(G+1)}')
    A(f's_mov_b64 exec, 0xffff\nglobal_store_short {v(vXO)}, {v(G)}, {sp(sOUT)}\nglobal_store_short_d16_hi {v(vXO)}, {v(G)}, {sp(sOUT)} offset:32')
    A(f's_cmp_lg_u32 s{sU2}, 0\ns_cbranch_scc1 L_hdone')
    A(f's_mov_b64 exec, 1\nv_mov_b32 {v(vT)}, 0\nglobal_store_dword {v(vT)}, {v(vTAG)}, {sp(sWS)} sc1')
    A('L_hdone:')
    if stamps:
        A('s_waitcnt vmcnt(0)')
        stamp(7)
        write_stamps(256, 'h')
    A('L_end:\ns_endpgm')
    A(f'''.section .rodata,"a"
.p2align 6
.amdhsa_kernel {NAME}_kernel
  .amdhsa_next_free_vgpr {NV}
  .amdhsa_next_free_sgpr 100
  .amdhsa_accum_offset {NV}
  .amdhsa_group_segment_fixed_size 0
  .amdhsa_kernarg_size 96
  .amdhsa_user_sgpr_count 2
  .amdhsa_user_sgpr_kernarg_segment_ptr 1
  .amdhsa_system_sgpr_workgroup_id_x 1
  .amdhsa_float_denorm_mode_32 3
.end_amdhsa_kernel''')
    open(fn, 'w').write('\n'.join(L) + '\n')

if __name__ == '__main__':
    fn = sys.argv[1]
    kw = {}
    for a in sys.argv[2:]:
        k, val = a.split('=')
        try: val = int(val)
        except ValueError: val = val.replace('+', ' ').replace('def', '')
        kw[k] = val
    gen(fn, **kw)
```

```python
import sys, os, struct
NAME = 'recurrent_scan__gqa_block_cached__glu_gated_reglu__decode'

HEADER = '''; Kernarg layout (96 bytes, pointers only, base s[0:1]), everything bf16:
;
'''

def f2u(x): return struct.unpack('<I', struct.pack('<f', x))[0]

def gen(fn, stamps=False, pace=8, up=4, mapping='x', kvil=False, twostage=False, spin=1<<15, knt='nt', vnt='nt', w1nt='nt', w2nt='nt', sleep=0, fixdur=0, D=7, nomem=0, now=0, nopoll=0, nocomp=0, pre=1, force=-1, cap=400, thr=100, noex=0, sync=1, skipx=1, hsl=2, gat=26, perturb=0, pall=0, lead=0, nosleep=1, y8=0, rot=2, rmul=1, umap=1, gord=2, w1sw=1, wearly=2, hb5=1, xtra=-1, sel=0, lpipe=0, lmask=31, fb=26, blate=1, pubt=23, htouch=0, otouch=0, nonuma=0, al=1, glate=1, touch=0, late=0, lred=1, pq=0, po=0, py=0, inl=1, nend=6, Dend=18, dbgv=0, stfl='sc1', slfl='sc1'):
    L = []
    def A(s):
        for ln in s.strip('\n').split('\n'):
            L.append(ln.strip())
    SLOT = 9216; RING = 2*SLOT; WT = 12288
    WREG = 4*RING
    MISC = WREG + 4*WT
    XN = MISC; OBF = MISC
    RED = MISC + 1536
    OCB = RED + 8192
    QL = RED + 12288
    HL = QL + 384
    FLG = HL + 768
    STG = FLG + 64
    LDS = 147456
    assert STG + 6144 <= LDS
    P1 = 0x1000; OP = 0x100000; YP = 0x200000; BP = 0x300000; VOTE = 0x3F0000; GO = 0x3F8000; SCO = 0x400000; WSZ = 0x600000
    TAGC = 0x9E3779B9
    sX, sK, sV, sWQ, sWO, sWG, sWU, sWD, sOUT, sDBG, sWS = 4, 6, 8, 10, 12, 16, 18, 20, 22, 24, 26
    rK, rV, rW1, rW2, rWS = 28, 32, 36, 40, 44
    sWAVE, sH, sJ, sB, sHALF = 48, 49, 50, 51, 52
    sBETA, sPI, sHASW1, sRS = 53, 54, 55, 56
    sSLA, sSLB, sSLC = 57, 58, 59
    sOFF, sT, sCNT = 60, 61, 62
    sSC, sL2E = 63, 64
    sT0, sT1, sT2, sT3 = 65, 66, 67, 68
    sU2, sR, sCB, sRB, sSLC2 = 69, 70, 71, 72, 73
    sN0, sN1, sFLV, sFL = 70, 71, 72, 73
    sU, sPUB, sNEG, sVB = 14, 15, 34, 32
    sRHO = 3
    sXD, sXS = 92, 93
    sCM = 94
    sSTG = 35
    sU0 = 96
    sP = 74
    sST = 76
    def srd(r): return f's[{r}:{r+3}]'
    def sp(r): return f's[{r}:{r+1}]'
    vLANE, vL16, vTAG, vKA0, vVA0, vA, vM, vML, vLS, vAL = 1, 2, 3, 4, 5, 6, 7, 8, 9, 10
    vT = 12
    vS = 28
    vP = 36
    vQ = 40
    vF = 64
    vO = 112
    vW = 160
    vR = 208
    vM2B, vM2X, vM3, vSK, vSV, vFA, vONE, vPA = range(212, 220)
    vSRC = 220
    vKB = 224
    vVB = 228
    vAD = 236
    NV = 244
    def v(r, n=1): return f'v{r}' if n == 1 else f'v[{r}:{r+n-1}]'
    inhelper = [False]
    def pstamp(i):
        if stamps == 3: A(f's_memrealtime {sp(sST+2*i)}\ns_waitcnt lgkmcnt(0)')
    def qstamp(i):
        if stamps == 4: A(f's_memrealtime {sp(sST+2*i)}\ns_waitcnt lgkmcnt(0)')
    def stamp(i):
        if stamps >= 3 and i < 7 and not inhelper[0]: return
        if stamps:
            A(f's_memrealtime {sp(sST+2*i)}\ns_waitcnt lgkmcnt(0)')
    def write_stamps(rec_base, lbl):
        if not stamps: return
        A(f's_lshl_b32 s{sT0}, s2, 6\ns_add_u32 s{sT0}, s{sT0}, {0x20000000 + rec_base*64}')
        A(f's_add_u32 s{sP}, s{sWS}, s{sT0}\ns_addc_u32 s{sP+1}, s{sWS+1}, 0')
        A(f's_mov_b64 exec, 1\nv_mov_b32 {v(vA)}, 0')
        for i in range(4):
            for k in range(4): A(f'v_mov_b32 {v(vT+k)}, s{sST+4*i+k}')
            A(f'global_store_dwordx4 {v(vA)}, {v(vT,4)}, {sp(sP)} offset:{16*i}\ns_nop 1')
    def xsum(r, t, op='v_add_f32', full=True):
        if full:
            for mode in ['quad_perm:[1,0,3,2]', 'quad_perm:[2,3,0,1]', 'row_half_mirror', 'row_mirror']:
                A(f's_nop 1\n{op}_dpp {v(r)}, {v(r)}, {v(r)} {mode} row_mask:0xf bank_mask:0xf')
        for sw in ['v_permlane16_swap_b32', 'v_permlane32_swap_b32']:
            A(f'v_mov_b32 {v(t)}, {v(r)}\ns_nop 1\n{sw} {v(r)}, {v(t)}\n{op} {v(r)}, {v(r)}, {v(t)}')
    def rnd(r, t):
        A(f'v_cvt_pk_bf16_f32 {v(t)}, {v(r)}, {v(r)}\nv_lshlrev_b32 {v(r)}, 16, {v(t)}')
    def rnd2(r0, r1, t):
        A(f'v_cvt_pk_bf16_f32 {v(t)}, {v(r0)}, {v(r1)}\nv_lshlrev_b32 {v(r0)}, 16, {v(t)}\nv_and_b32 {v(r1)}, 0xffff0000, {v(t)}')
    def dma_tile(soff, sslot, paced=None, lo=0, hi=9, fl='nt'):
        for i in range(lo, hi):
            A(f's_add_u32 m0, s{sslot}, {1024*i}')
            if i == lo or i % 3 == 0: A(f's_add_u32 s{sT0}, s{soff}, {3072*(i//3)}')
            elif not paced: A('s_nop 0')
            if paced: A(f's_waitcnt vmcnt({paced-1})')
            A(f'buffer_load_dwordx4 {v(vSRC+i%3)}, {srd(rK)}, s{sT0} offen {fl} lds')
    def rot3(dst, tmp):
        A(f's_lshr_b32 s{dst}, s{sRHO}, {rot}')
        if rmul != 1: A(f's_mul_i32 s{dst}, s{dst}, {rmul}')
        A(f's_mul_i32 s{tmp}, s{dst}, 43691\ns_lshr_b32 s{tmp}, s{tmp}, 17\ns_mul_i32 s{tmp}, s{tmp}, 3\ns_sub_u32 s{dst}, s{dst}, s{tmp}')
    def block_params(default, sn):
        if default == 1: A(f's_cmp_eq_u32 s{sHALF}, 1')
        else: A(f's_bitcmp1_b64 {sp(sCM)}, s{sT}')
        A(f's_addc_u32 s{sT1}, s{sU}, s{sU}\ns_lshl_b32 s{sT1}, s{sT1}, 6\ns_add_u32 s{sT2}, s{sT1}, 65\ns_add_u32 s{sT1}, s{sT1}, 1')
        A(f's_mul_i32 s{sT1}, s{sT1}, 43691\ns_mul_i32 s{sT2}, s{sT2}, 43691\ns_lshr_b32 s{sT1}, s{sT1}, 17\ns_lshr_b32 s{sT2}, s{sT2}, 17')
        A(f's_mul_i32 s{sOFF}, s{sT1}, 384\ns_sub_u32 s{sT1}, s{sT2}, s{sT1}\ns_mul_i32 s{sT2}, s{sT2}, 384\ns_min_u32 s{rK+2}, s{sT2}, {0 if nomem else 1572864}')
        if default == 2: A(f's_cmp_ge_u32 s{sT}, 46\ns_cselect_b32 s{rK+2}, 0, s{rK+2}')
        else: A(f's_cmp_eq_u32 s{sT1}, 22\ns_cselect_b32 s{sn}, -1, 0')
        if umap: A(f's_bitcmp1_b32 s{sU}, 0\ns_cselect_b32 s{sT1}, 7, 1\ns_add_u32 s{sU}, s{sU}, s{sT1}')
        else: A(f's_add_u32 s{sU}, s{sU}, 4')
        if rot >= 0: A(f's_cmp_ge_u32 s{sU}, 96\ns_cselect_b32 s{sT1}, 96, 0\ns_sub_u32 s{sU}, s{sU}, s{sT1}')
    def poll(lbl, loads, tagregs, code):
        A(f's_mov_b32 s{sCNT}, {spin}\n{lbl}:')
        for x in loads: A(x)
        A('s_waitcnt vmcnt(0)')
        A(f'v_xor_b32 {v(vT)}, {v(tagregs[0])}, {v(vTAG)}')
        for r in tagregs[1:]:
            A(f'v_xor_b32 {v(vT+1)}, {v(r)}, {v(vTAG)}\nv_or_b32 {v(vT)}, {v(vT)}, {v(vT+1)}')
        if (nopoll and lbl != 'L_pq') or (noex and lbl == 'L_px'): A(f's_branch {lbl}_ok')
        A(f'v_cmp_ne_u32 vcc, 0, {v(vT)}\ns_cbranch_vccz {lbl}_ok')
        if sleep: A(f's_sleep {sleep}')
        A(f's_sub_u32 s{sCNT}, s{sCNT}, 1\ns_cmp_lg_u32 s{sCNT}, 0\ns_cbranch_scc1 {lbl}')
        A(f'v_mov_b32 {v(vT)}, 0\nv_mov_b32 {v(vT+1)}, {code}\nglobal_store_dword {v(vT)}, {v(vT+1)}, {sp(sDBG)}')
        A(f'{lbl}_ok:')
    def polls(lbl, loads, tagregs, code):
        A(f's_mov_b32 s{sCNT}, {spin}')
        for x in loads: A(x)
        A(f'{lbl}:\ns_waitcnt vmcnt(0)\ns_mov_b32 s{sT3}, 0')
        for k, (x, r) in enumerate(zip(loads, tagregs)):
            A(f'v_cmp_ne_u32 vcc, {v(r)}, {v(vTAG)}\ns_cbranch_vccz {lbl}_s{k}\ns_mov_b64 exec, vcc')
            A(x)
            A(f's_mov_b64 exec, -1\ns_mov_b32 s{sT3}, 1\n{lbl}_s{k}:')
        A(f's_cmp_eq_u32 s{sT3}, 0\ns_cbranch_scc1 {lbl}_ok')
        A(f's_sub_u32 s{sCNT}, s{sCNT}, 1\ns_cmp_lg_u32 s{sCNT}, 0\ns_cbranch_scc1 {lbl}')
        A(f'v_mov_b32 {v(vT)}, 0\nv_mov_b32 {v(vT+1)}, {code}\nglobal_store_dword {v(vT)}, {v(vT+1)}, {sp(sDBG)}\ns_waitcnt vmcnt(0)')
        A(f'{lbl}_ok:')
    def poll2(lbl, mk, n, base, alt, code, delay, use):
        def check(b, ok):
            A(f's_waitcnt vmcnt({n})')
            A(f'v_xor_b32 {v(vT)}, {v(b+3)}, {v(vTAG)}')
            for k in range(1, n): A(f'v_xor_b32 {v(vT+1)}, {v(b+4*k+3)}, {v(vTAG)}\nv_or_b32 {v(vT)}, {v(vT)}, {v(vT+1)}')
            A(f'v_cmp_ne_u32 vcc, 0, {v(vT)}\ns_cbranch_vccz {ok}')
        A(f's_mov_b32 s{sCNT}, {spin}')
        for x in mk(base): A(x)
        A(f's_sleep {delay}\n{lbl}:')
        for x in mk(alt): A(x)
        check(base, f'{lbl}_ok')
        for x in mk(base): A(x)
        check(alt, f'{lbl}_okb')
        A(f's_sub_u32 s{sCNT}, s{sCNT}, 1\ns_cmp_lg_u32 s{sCNT}, 0\ns_cbranch_scc1 {lbl}')
        A(f'v_mov_b32 {v(vT)}, 0\nv_mov_b32 {v(vT+1)}, {code}\nglobal_store_dword {v(vT)}, {v(vT+1)}, {sp(sDBG)}')
        A(f'{lbl}_okb:')
        use(alt)
        A(f's_branch {lbl}_done\n{lbl}_ok:')
        use(base)
        A(f'{lbl}_done:')
    def wsload(dst, voff, soff): return f'buffer_load_dwordx4 {v(dst,4)}, {v(voff)}, {srd(rWS)}, s{soff} offen sc1'
    def put3_bf16(r0, t, va):
        A(f'v_cvt_pk_bf16_f32 {v(t)}, {v(r0)}, {v(r0+1)}\nv_cvt_pk_bf16_f32 {v(t+1)}, {v(r0+2)}, {v(r0+2)}')
        A(f'ds_write_b16 {v(va)}, {v(t)}\nds_write_b16_d16_hi {v(va)}, {v(t)} offset:2\nds_write_b16 {v(va)}, {v(t+1)} offset:4')
    def fdiv(q, n, d, r, e):
        A(f'v_mul_f32 {v(q)}, {v(n)}, {v(r)}\nv_fma_f32 {v(e)}, -{v(q)}, {v(d)}, {v(n)}\nv_fma_f32 {v(q)}, {v(e)}, {v(r)}, {v(q)}')
    def trread_mfma(ntile, va, off2, acc, first, frag, aop, va2=None, extra=None):
        def rd(t):
            if va2 is None:
                A(f'ds_read_b64_tr_b16 {v(frag+4*t,2)}, {v(va)} offset:{32*t}')
                A(f'ds_read_b64_tr_b16 {v(frag+4*t+2,2)}, {v(va)} offset:{32*t+off2}')
            else:
                A(f'ds_read_b64_tr_b16 {v(frag+4*t,2)}, {v(va+(t&3))} offset:{128*(t>>2)}')
                A(f'ds_read_b64_tr_b16 {v(frag+4*t+2,2)}, {v(va2+(t&3))} offset:{128*(t>>2)}')
        pre = min(4, ntile)
        for t in range(pre): rd(t)
        for t in range(ntile):
            if t + pre < ntile: rd(t + pre)
            if extra and t + pre == ntile - 1: A(extra)
            left = min(ntile - 1, t + pre) - t
            A(f's_waitcnt lgkmcnt({2*left + (1 if extra and t + pre >= ntile - 1 else 0)})')
            c = '0' if first else v(acc+4*t, 4)
            A(f'v_mfma_f32_16x16x32_bf16 {v(acc+4*t,4)}, {v(aop,4)}, {v(frag+4*t,4)}, {c}')

    A(HEADER)
    A(f'; @launch grid=(256,1,1) block=(320,1,1) lds={LDS}')
    A('.amdgcn_target "amdgcn-amd-amdhsa--gfx950"\n.text')
    if al: A('.p2align 12')
    A(f'.globl {NAME}_kernel\n.p2align 8\n.type {NAME}_kernel,@function\n{NAME}_kernel:')
    A('s_cmp_ge_u32 s2, 256\ns_cbranch_scc1 L_end')
    A('s_load_dwordx16 s[4:19], s[0:1], 0\ns_load_dwordx8 s[20:27], s[0:1], 64')
    if fixdur: A('s_memrealtime s[96:97]')
    if stamps:
        A(f's_memrealtime {sp(sST)}')
        for i in range(2, 16): A(f's_mov_b32 s{sST+i}, 0')
    A(f'v_lshrrev_b32 {v(vT)}, 6, v0\nv_and_b32 {v(vLANE)}, 63, v0')
    A(f'v_readfirstlane_b32 s{sWAVE}, {v(vT)}')
    A(f'v_lshlrev_b32 {v(vL16)}, 4, {v(vLANE)}')
    A(f's_lshr_b32 s{sT0}, s2, 3\ns_lshl_b32 s{sT0}, s{sT0}, 2\ns_and_b32 s{sT1}, s2, 3\ns_add_u32 s{sRHO}, s{sT0}, s{sT1}')
    A(f's_bfe_u32 s{sHALF}, s2, 0x10002\ns_lshr_b32 s{sB}, s{sRHO}, 5\ns_and_b32 s{sH}, s{sRHO}, 31\ns_lshl_b32 s{sJ}, s{sB}, 1\ns_add_u32 s{sJ}, s{sJ}, s{sHALF}')
    A(f's_mul_i32 s{sU2}, s{sH}, 3\ns_add_u32 s{sU2}, s{sU2}, s{sJ}')
    A(f's_mov_b32 s{sSC}, {f2u(192**-0.5):#x}\ns_mov_b32 s{sL2E}, {f2u(1.4426950408889634):#x}')
    def ws_srd():
        A(f's_mov_b32 s{rWS}, s{sWS}\ns_mov_b32 s{rWS+1}, s{sWS+1}')
    A(f's_mov_b32 s{rWS+2}, {WSZ}\ns_mov_b32 s{rWS+3}, 0x20000')
    def vote_slot(src, sidx, sslot):
        A(f's_mul_i32 s{sidx}, s{src}, 3\ns_lshr_b32 s{sidx}, s{sidx}, 5\ns_lshl_b32 s{sslot}, s{sidx}, 5\ns_add_u32 s{sslot}, s{sslot}, 2\ns_mul_i32 s{sslot}, s{sslot}, 43691\ns_lshr_b32 s{sslot}, s{sslot}, 17\ns_sub_u32 s{sslot}, s{src}, s{sslot}')
    sIDX, sSLT = 40, 41
    A(f's_cmp_eq_u32 s{sWAVE}, 4\ns_cbranch_scc0 L_noprobe')
    vote_slot(2, sIDX, sSLT)
    A(f's_cmp_ge_u32 s{sIDX}, 12\ns_cselect_b32 s{sT0}, 12, 0\ns_sub_u32 s{sT0}, s{sIDX}, s{sT0}')
    A(f's_lshl_b32 s{sT0}, s{sT0}, 3\ns_and_b32 s{sT1}, s{sSLT}, 7\ns_add_u32 s{sT0}, s{sT0}, s{sT1}\ns_lshl_b32 s{sT0}, s{sT0}, 21')
    A(f's_lshr_b32 s{sT1}, s{sSLT}, 3\ns_lshl_b32 s{sT1}, s{sT1}, 12\nv_mov_b32 {v(vT+4)}, 0\ns_mov_b64 exec, 1\ns_cmp_ge_u32 s{sIDX}, 12')
    A('s_waitcnt lgkmcnt(0)')
    A(f's_cselect_b32 s{sP}, s{sV}, s{sK}\ns_cselect_b32 s{sP+1}, s{sV+1}, s{sK+1}\ns_add_u32 s{sP}, s{sP}, s{sT0}\ns_addc_u32 s{sP+1}, s{sP+1}, 0')
    A(f's_bfe_u32 s{sT0}, s{sP}, 0x10015\ns_lshl_b32 s{sT0}, s{sT0}, 13\ns_add_u32 s{sT0}, s{sT0}, s{sT1}')
    A(f'v_mov_b32 {v(vT)}, s{sT0}\nv_xor_b32 {v(vT+1)}, 0x2000, {v(vT)}')
    A(f'global_load_dword {v(vT+2)}, {v(vT)}, {sp(sP)} nt\nglobal_load_dword {v(vT+3)}, {v(vT+1)}, {sp(sP)} nt\ns_mov_b64 exec, -1')
    if gord == 2: A(f'global_load_dword {v(vTAG)}, {v(vT+4)}, {sp(sWS)} sc1')
    A('s_barrier')
    ws_srd()
    e_ = 1 if gord == 2 else 0
    A(f's_waitcnt vmcnt({1+e_})\ns_memtime s[36:37]\ns_waitcnt vmcnt({e_})\ns_memtime s[38:39]')
    if gord != 2: A(f'global_load_dword {v(vTAG)}, {v(vT+4)}, {sp(sWS)} sc1')
    A('s_branch L_helper\nL_noprobe:')

    sO1, sO2, sOK = sN0, sN1, sFLV
    A(f's_cmp_ge_u32 s{sJ}, 3\ns_cbranch_scc0 L_w1mlp')
    A(f's_mov_b32 s{sBETA}, s{sH}\ns_sub_u32 s{sPI}, s{sJ}, 3\ns_mov_b32 s{sRS}, 12288\ns_mov_b32 s{sHASW1}, 1\ns_mul_i32 s{sO1}, s{sH}, 384')
    A('s_branch L_w1done\nL_w1mlp:')
    A(f's_mul_i32 s{sT1}, s{sU2}, 52429\ns_lshr_b32 s{sT1}, s{sT1}, 18')
    A(f's_mul_i32 s{sT2}, s{sT1}, 5\ns_sub_u32 s{sPI}, s{sU2}, s{sT2}\ns_add_u32 s{sBETA}, s{sT1}, 32\ns_mov_b32 s{sRS}, 3072')
    A(f's_cmp_lt_u32 s{sU2}, 80\ns_cselect_b32 s{sHASW1}, 1, 0\ns_and_b32 s{sT1}, s{sT1}, 7\ns_mul_i32 s{sO1}, s{sT1}, 384')
    A('L_w1done:')
    A(f's_lshl_b32 s{sT1}, s{sPI}, 2\ns_add_u32 s{sT1}, s{sT1}, s{sWAVE}\ns_lshl_b32 s{sT1}, s{sT1}, 5\ns_mul_i32 s{sT1}, s{sT1}, s{sRS}\ns_add_u32 s{sO1}, s{sO1}, s{sT1}')
    A(f's_mul_i32 s{sT1}, s{sRS}, 31\ns_add_u32 s{sT1}, s{sT1}, 384\ns_mul_i32 s{rW1+2}, s{sT1}, s{sHASW1}\ns_mov_b32 s{rW1+3}, 0x20000')
    if now: A(f's_mov_b32 s{rW1+2}, 0')
    for p in range(3):
        A(f'v_add_u32 {v(vT)}, {64*p}, {v(vLANE)}\nv_mul_u32_u24 {v(vT+1)}, 2731, {v(vT)}\nv_lshrrev_b32 {v(vT+1)}, 16, {v(vT+1)}')
        A(f'v_mul_u32_u24 {v(vT+2)}, 24, {v(vT+1)}\nv_sub_u32 {v(vT)}, {v(vT)}, {v(vT+2)}\nv_lshlrev_b32 {v(vT)}, 4, {v(vT)}')
        if not w1sw: A(f'v_mad_u32_u24 {v(vS+p)}, {v(vT+1)}, s{sRS}, {v(vT)}')
        A(f'v_and_b32 {v(vT+3)}, 6, {v(vT+1)}\nv_lshlrev_b32 {v(vT+3)}, 4, {v(vT+3)}\nv_xor_b32 {v(vT)}, {v(vT)}, {v(vT+3)}\nv_lshl_add_u32 {v(vSRC+p)}, {v(vT+2)}, 4, {v(vT)}')
        if w1sw: A(f'v_mad_u32_u24 {v(vS+p)}, {v(vT+1)}, s{sRS}, {v(vT)}')
    A(f's_mul_i32 s{sSLA}, s{sWAVE}, {RING}\ns_add_u32 s{sSLB}, s{sSLA}, {SLOT}\ns_mul_i32 s{sSLC}, s{sWAVE}, {WT}\ns_add_u32 s{sSLC}, s{sSLC}, {WREG}')
    A(f's_mul_i32 s{sT0}, s{sWAVE}, 1280\nv_lshlrev_b32 {v(vA)}, 2, {v(vLANE)}\nv_add_u32 {v(vA)}, s{sT0}, {v(vA)}\ns_mul_i32 s{sOK}, s{sRHO}, 1572864')
    A(f's_cmp_lt_u32 s{sBETA}, 40')
    A('s_waitcnt lgkmcnt(0)')
    pstamp(1)
    if stamps == 3: A(f's_cmp_lt_u32 s{sBETA}, 40')
    A(f's_cselect_b32 s{rW1}, s{sWG}, s{sWU}\ns_cselect_b32 s{rW1+1}, s{sWG+1}, s{sWU+1}\ns_cmp_lt_u32 s{sBETA}, 32\ns_cselect_b32 s{rW1}, s{sWQ}, s{rW1}\ns_cselect_b32 s{rW1+1}, s{sWQ+1}, s{rW1+1}')
    A(f's_add_u32 s{rW1}, s{rW1}, s{sO1}\ns_addc_u32 s{rW1+1}, s{rW1+1}, 0')
    if touch:
        A(f's_load_dword s96, {sp(rW1)}, 0\ns_load_dword s97, {sp(sX)}, 0\ns_load_dword s98, {sp(sK)}, s{sOK}')
    A('s_barrier')
    pstamp(2)
    for k in range(5): A(f'global_load_dword {v(vF+k)}, {v(vA)}, {sp(sX)} offset:{256*k}')
    def w1_issue():
        A(f's_lshl_b32 s{sT2}, s{sRS}, 3\ns_mov_b32 s{sT1}, 0')
        for i in range(12):
            A(f's_add_u32 m0, s{sSLC}, {1024*i}')
            A(f's_add_u32 s{sT1}, s{sT1}, s{sT2}' if i and i % 3 == 0 else 's_nop 0')
            A(f'buffer_load_dwordx4 {v(vS+i%3)}, {srd(rW1)}, s{sT1} offen {w1nt} lds')
    if late:
        assert up == 0
        A(f's_cmp_ge_u32 s{sJ}, 3\ns_cbranch_scc0 L_w1late')
    w1_issue()
    if late: A('L_w1late:')
    A(f'v_mov_b32 {v(vT)}, 0\nglobal_load_dword {v(vTAG)}, {v(vT)}, {sp(sWS)} sc1')
    pstamp(3)
    ws_srd()
    A(f's_add_u32 s{rK}, s{sK}, s{sOK}\ns_addc_u32 s{rK+1}, s{sK+1}, 0\ns_mov_b32 s{rK+3}, 0x20000')
    A(f's_add_u32 s{sVB}, s{sV}, s{sOK}\ns_addc_u32 s{sVB+1}, s{sV+1}, 0')
    A(f's_lshl_b32 s{sU}, s{sWAVE}, {umap}')
    if rot >= 0:
        rot3(sT1, sT2)
        A(f's_lshl_b32 s{sT1}, s{sT1}, 5\ns_add_u32 s{sU}, s{sU}, s{sT1}')
    A(f's_mov_b32 s{sU0}, s{sU}')
    block_params(1, sN0)
    dma_tile(sOFF, sSLA, None, 0, up, knt)
    A(f's_cmp_lt_u32 s{sJ}, 5\ns_cbranch_scc0 L_w2down')
    A(f's_mul_i32 s{sT1}, s{sH}, {192*1280}\ns_lshl_b32 s{sT2}, s{sJ}, 8\ns_add_u32 s{sT1}, s{sT1}, s{sT2}')
    A(f's_add_u32 s{rW2}, s{sWO}, s{sT1}\ns_addc_u32 s{rW2+1}, s{sWO+1}, 0\ns_mov_b32 s{rW2+2}, {47*1280+256}\ns_branch L_w2done')
    A('L_w2down:')
    A(f's_sub_u32 s{sT3}, s{sU2}, 5\ns_mul_i32 s{sT1}, s{sT3}, 52429\ns_lshr_b32 s{sT1}, s{sT1}, 18\ns_mul_i32 s{sT2}, s{sT1}, 5\ns_sub_u32 s{sT2}, s{sT3}, s{sT2}')
    A(f's_mul_i32 s{sT1}, s{sT1}, {96*1280}\ns_lshl_b32 s{sT2}, s{sT2}, 8\ns_add_u32 s{sT1}, s{sT1}, s{sT2}')
    A(f's_add_u32 s{rW2}, s{sWD}, s{sT1}\ns_addc_u32 s{rW2+1}, s{sWD+1}, 0')
    A(f's_cmp_lt_u32 s{sT3}, 80\ns_cselect_b32 s{rW2+2}, {47*1280+256}, 0\ns_cmp_lt_u32 s{sWAVE}, 2\ns_cselect_b32 s{rW2+2}, s{rW2+2}, 0')
    A('L_w2done:')
    A(f's_mul_i32 s{sT1}, s{sWAVE}, {48*1280}\ns_add_u32 s{rW2}, s{rW2}, s{sT1}\ns_addc_u32 s{rW2+1}, s{rW2+1}, 0\ns_mov_b32 s{rW2+3}, 0x20000')
    if now: A(f's_mov_b32 s{rW2+2}, 0')
    def vbases(hf):
        A(f'v_lshrrev_b32 {v(vT)}, 2, {v(vLANE)}')
        if hf: A(f'v_min_u32 {v(vT)}, 5, {v(vT)}\nv_add_u32 {v(vT)}, 16, {v(vT)}')
        A(f'v_bfe_u32 {v(vT+2)}, {v(vT)}, 1, 2\nv_mul_u32_u24 {v(vT)}, 384, {v(vT)}\nv_and_b32 {v(vT+3)}, 3, {v(vLANE)}\nv_lshl_add_u32 {v(vT)}, {v(vT+3)}, 3, {v(vT)}')
        for k in range(4): A(f'v_xor_b32 {v(vT+3)}, {k}, {v(vT+2)}\nv_lshl_add_u32 {v(vVB+4*hf+k)}, {v(vT+3)}, 5, {v(vT)}')
    if w1sw:
        vbases(0)
        for k in range(4): A(f'v_add_u32 {v(vAD+k)}, s{sSLC}, {v(vVB+k)}\nv_add_u32 {v(vAD+4+k)}, 6144, {v(vAD+k)}')
    if not w1sw: A(f'v_lshrrev_b32 {v(vT)}, 2, {v(vLANE)}\nv_mul_u32_u24 {v(vT)}, 384, {v(vT)}\nv_and_b32 {v(vT+1)}, 3, {v(vLANE)}\nv_lshl_add_u32 {v(vVA0)}, {v(vT+1)}, 3, {v(vT)}')
    if late:
        A(f's_cmp_ge_u32 s{sJ}, 3\ns_cbranch_scc1 L_xw\ns_waitcnt vmcnt(0)\nL_xw:')
    A(f's_waitcnt vmcnt({1+12+up})')
    pstamp(4)
    X = vF + 8
    for k in range(5):
        A(f'v_lshlrev_b32 {v(X+2*k)}, 16, {v(vF+k)}\nv_and_b32 {v(X+2*k+1)}, 0xffff0000, {v(vF+k)}')
    a = vT
    A(f'v_add_f32 {v(a)}, {v(X)}, {v(X+1)}')
    for k in range(2, 10): A(f'v_add_f32 {v(a)}, {v(a)}, {v(X+k)}')
    xsum(a, a+1)
    A(f'v_mul_f32 {v(a)}, {f2u(1/640):#x}, {v(a)}')
    b_ = vT+2
    A(f'v_sub_f32 {v(a+1)}, {v(X)}, {v(a)}\nv_mul_f32 {v(b_)}, {v(a+1)}, {v(a+1)}')
    for k in range(1, 10): A(f'v_sub_f32 {v(a+1)}, {v(X+k)}, {v(a)}\nv_fmac_f32 {v(b_)}, {v(a+1)}, {v(a+1)}')
    xsum(b_, a+1)
    A(f'v_mul_f32 {v(b_)}, {f2u(1/640):#x}, {v(b_)}')
    rnd2(a, b_, a+1)
    A(f'v_add_f32 {v(b_)}, {f2u(1e-5):#x}, {v(b_)}')
    rnd(b_, a+1)
    c_ = vT+3
    A(f'v_sqrt_f32 {v(c_)}, {v(b_)}\ns_nop 0\nv_rcp_f32 {v(c_+1)}, {v(c_)}\nv_fma_f32 {v(a+1)}, -{v(c_)}, {v(c_)}, {v(b_)}')
    A(f'v_mul_f32 {v(c_+1)}, 0.5, {v(c_+1)}\nv_fma_f32 {v(c_)}, {v(a+1)}, {v(c_+1)}, {v(c_)}')
    rnd(c_, a+1)
    A(f'v_rcp_f32 {v(c_+1)}, {v(c_)}')
    A(f'v_mov_b32 {v(vT+6)}, {v(X)}\nv_mov_b32 {v(vT+7)}, {v(X+1)}')
    for k in range(1, 5):
        A(f's_cmp_eq_u32 s{sPI}, {k}\ns_cselect_b64 vcc, -1, 0\nv_cndmask_b32 {v(vT+6)}, {v(vT+6)}, {v(X+2*k)}, vcc\nv_cndmask_b32 {v(vT+7)}, {v(vT+7)}, {v(X+2*k+1)}, vcc')
    A(f'v_sub_f32 {v(vT+6)}, {v(vT+6)}, {v(a)}\nv_sub_f32 {v(vT+7)}, {v(vT+7)}, {v(a)}')
    rnd2(vT+6, vT+7, a+1)
    fdiv(vT+8, vT+6, c_, c_+1, a+1)
    fdiv(vT+9, vT+7, c_, c_+1, a+1)
    A(f'v_cvt_pk_bf16_f32 {v(vT+8)}, {v(vT+8)}, {v(vT+9)}')
    A(f's_lshl_b32 s{sT1}, s{sWAVE}, 8\ns_add_u32 s{sT1}, s{sT1}, {XN}\nv_lshlrev_b32 {v(vA)}, 2, {v(vLANE)}\nv_add_u32 {v(vA)}, s{sT1}, {v(vA)}')
    A(f'ds_write_b32 {v(vA)}, {v(vT+8)}')
    A(f'v_bfe_u32 {v(vT)}, {v(vLANE)}, 2, 2\nv_lshlrev_b32 {v(vT)}, 8, {v(vT)}\nv_lshrrev_b32 {v(vT+1)}, 4, {v(vLANE)}\nv_lshl_add_u32 {v(vT)}, {v(vT+1)}, 3, {v(vT)}')
    A(f's_lshl_b32 s{sT1}, s{sWAVE}, 6\ns_add_u32 s{sT1}, s{sT1}, {XN}\nv_add_u32 {v(vA)}, s{sT1}, {v(vT)}')
    A('s_waitcnt lgkmcnt(0)\ns_barrier')
    if stamps == 1: stamp(1)
    pstamp(5); qstamp(1)
    A(f'ds_read2_b64 {v(vP,4)}, {v(vA)} offset0:0 offset1:4')
    if late:
        A(f's_cmp_ge_u32 s{sJ}, 3\ns_cbranch_scc1 L_w1early')
        w1_issue()
        A('L_w1early:')
    k0a = max(up, min(9, pace))
    dma_tile(sOFF, sSLA, pace, up, k0a, knt)
    if not w1sw: A(f'v_add_u32 {v(vA)}, s{sSLC}, {v(vVA0)}')
    A(f's_waitcnt vmcnt({k0a}) lgkmcnt(0)')
    pstamp(6); qstamp(2)
    if xtra >= 0:
        dma_tile(sOFF, sSLA, None, k0a, 9, knt)
        block_params(1, sN1)
        dma_tile(sOFF, sSLB, None, 0, xtra, knt)
    if w1sw: trread_mfma(12, vAD, 0, vO, True, vF, vP, vAD+4)
    else: trread_mfma(12, vA, 6144, vO, True, vF, vP)
    qstamp(3)
    A(f's_mul_i32 s{sT1}, s{sWAVE}, 3072\ns_add_u32 s{sT1}, s{sT1}, {RED}')
    A(f'v_lshrrev_b32 {v(vT)}, 4, {v(vLANE)}\nv_mul_u32_u24 {v(vT)}, 768, {v(vT)}\nv_and_b32 {v(vT+1)}, 15, {v(vLANE)}\nv_lshl_add_u32 {v(vT)}, {v(vT+1)}, 2, {v(vT)}\nv_add_u32 {v(vA)}, s{sT1}, {v(vT)}')
    A('s_nop 2')
    for t in range(12): A(f'ds_write_b32 {v(vA)}, {v(vO+4*t)} offset:{64*t}')
    A(f's_mul_i32 s{sT1}, s{sWAVE}, 768\ns_add_u32 s{sT1}, s{sT1}, {RED}\nv_mul_u32_u24 {v(vA)}, 12, {v(vLANE)}\nv_add_u32 {v(vA)}, s{sT1}, {v(vA)}')
    A('s_waitcnt lgkmcnt(0)')
    qstamp(4)
    A('s_barrier')
    qstamp(5)
    for w in range(4):
        for k in range(3): A(f'ds_read_b32 {v(vF+4*w+k)}, {v(vA)} offset:{3072*w+4*k}')
    A(f'v_lshrrev_b32 {v(vT)}, 4, {v(vLANE)}\nv_mul_u32_u24 {v(vT)}, 1280, {v(vT)}\nv_and_b32 {v(vT+1)}, 15, {v(vLANE)}\nv_lshl_add_u32 {v(vS)}, {v(vT+1)}, 4, {v(vT)}')
    A(f's_mul_i32 s{sT1}, s{sBETA}, 5\ns_add_u32 s{sT1}, s{sT1}, s{sPI}\ns_lshl_b32 s{sT1}, s{sT1}, 2\ns_add_u32 s{sT1}, s{sT1}, s{sWAVE}\ns_lshl_b32 s{sT1}, s{sT1}, 10\ns_add_u32 s{sT1}, s{sT1}, {P1}')
    A(f'v_add_u32 {v(vTAG)}, {TAGC:#x}, {v(vTAG)}')
    A('s_waitcnt lgkmcnt(0)')
    for k in range(3):
        A(f'v_add_f32 {v(vF+k)}, {v(vF+k)}, {v(vF+4+k)}\nv_add_f32 {v(vF+8+k)}, {v(vF+8+k)}, {v(vF+12+k)}')
    for k in range(3): A(f'v_add_f32 {v(vF+k)}, {v(vF+k)}, {v(vF+8+k)}')
    A(f'v_mov_b32 {v(vF+3)}, {v(vTAG)}')
    A(f's_cmp_eq_u32 s{sHASW1}, 0\ns_cbranch_scc1 L_nopub1')
    A(f'buffer_store_dwordx4 {v(vF,4)}, {v(vL16)}, {srd(rWS)}, s{sT1} offen sc1')
    A('L_nopub1:')
    qstamp(6)
    stamp(2)
    if xtra >= 0: dma_tile(sOFF, sSLB, pace, xtra, 9, knt)
    else: dma_tile(sOFF, sSLA, pace, k0a, 9, knt)
    A(f's_mov_b32 s{sT1}, 0')
    for i in range(12):
        A(f's_add_u32 m0, s{sSLC}, {1024*i}\ns_waitcnt vmcnt({pace-1})')
        A(f'buffer_load_dwordx4 {v(vS)}, {srd(rW2)}, s{sT1} offen {w2nt} lds')
        if i < 11: A(f's_add_u32 s{sT1}, s{sT1}, 5120')
    if xtra < 0:
        block_params(1, sN1)
        dma_tile(sOFF, sSLB, pace, 0, 9, knt)
    for t in range(12):
        for r in range(4): A(f'v_mov_b32 {v(vO+4*t+r)}, 0')
    A(f'v_mov_b32 {v(vM)}, {f2u(-1e30):#x}\nv_mov_b32 {v(vML)}, {f2u(-1e30):#x}\nv_mov_b32 {v(vLS)}, 0\ns_mov_b32 s{sNEG}, 0xff80ff80')
    A(f'v_lshrrev_b32 {v(vT+1)}, 4, {v(vLANE)}')
    for hf in range(2):
        A(f'v_and_b32 {v(vT)}, 15, {v(vLANE)}')
        if hf: A(f'v_min_u32 {v(vT)}, 5, {v(vT)}\nv_add_u32 {v(vT)}, 16, {v(vT)}')
        A(f'v_and_b32 {v(vT+2)}, 6, {v(vT)}\nv_xor_b32 {v(vT+2)}, {v(vT+2)}, {v(vT+1)}\nv_mul_u32_u24 {v(vT)}, 384, {v(vT)}')
        A(f'v_lshl_add_u32 {v(vKB+2*hf)}, {v(vT+2)}, 4, {v(vT)}\nv_xor_b32 {v(vT+2)}, 4, {v(vT+2)}\nv_lshl_add_u32 {v(vKB+2*hf+1)}, {v(vT+2)}, 4, {v(vT)}')
    vbases(1)
    if not w1sw: vbases(0)
    A(f'v_cmp_gt_u32 vcc, 16, {v(vLANE)}\nv_mov_b32 {v(vT)}, 0xffff\nv_mov_b32 {v(vT+2)}, 0xffff0000\nv_cndmask_b32 {v(vM3)}, 0, -1, vcc')
    A(f'v_cmp_eq_u32 vcc, 1, {v(vT+1)}\ns_mul_i32 s{sT1}, s{sWAVE}, 1536\ns_add_u32 s{sT1}, s{sT1}, {STG}\nv_cndmask_b32 {v(vM2B)}, {v(vM3)}, {v(vT)}, vcc\nv_cndmask_b32 {v(vM2X)}, 0, {v(vT+2)}, vcc')
    A(f'v_lshl_add_u32 {v(vSK)}, {v(vT+1)}, 4, s{sT1}\nv_add_u32 {v(vSV)}, {22*64}, {v(vSK)}\nv_mov_b32 {v(vFA)}, {FLG+8}\nv_mov_b32 {v(vONE)}, 1')
    A(f'v_add_u32 {v(vT)}, 352, {v(vLANE)}\nv_cmp_gt_u32 vcc, 32, {v(vLANE)}\nv_add_u32 {v(vT+2)}, -32, {v(vLANE)}\ns_nop 0\nv_cndmask_b32 {v(vT)}, {v(vT+2)}, {v(vT)}, vcc\nv_lshl_add_u32 {v(vPA)}, {v(vT)}, 2, s{sT1}')
    A(f's_add_u32 s{sSTG}, s{sT1}, 128')
    A(f'v_lshlrev_b32 {v(vA)}, 4, {v(vT+1)}\nv_add_u32 {v(vA)}, {QL}, {v(vA)}\nv_mov_b32 {v(vT+2)}, {FLG}')
    A('s_waitcnt vmcnt(9)')
    if stamps == 2: stamp(1)
    A('s_barrier')
    stamp(3)
    A(f'ds_read_b128 {v(vT+4,4)}, {v(vT+2)}')
    for s in range(6): A(f'ds_read_b128 {v(vQ+4*s,4)}, {v(vA)} offset:{64*s}')
    A(f's_mov_b32 s{sT}, 0\ns_waitcnt lgkmcnt(6)')
    A(f'v_readfirstlane_b32 s{sFL}, {v(vT+4)}\nv_readfirstlane_b32 s{sFLV}, {v(vT+5)}')
    A(f's_nop 0\ns_mov_b64 {sp(sCM)}, 0')
    grp = [0x3f, 0xff << 6, 0x3f << 14]
    for i in range(3):
        A(f's_bitcmp1_b32 s{sFL}, {i}\ns_cselect_b32 s{sT1}, {grp[i]:#x}, 0\ns_or_b32 s{sCM}, s{sCM}, s{sT1}')
        gv = grp[i] << 26
        A(f's_bitcmp1_b32 s{sFLV}, {i}')
        if gv & 0xffffffff: A(f's_cselect_b32 s{sT1}, {gv & 0xffffffff:#x}, 0')
        if gv >> 32: A(f's_cselect_b32 s{sT2}, {gv >> 32:#x}, 0\ns_or_b32 s{sCM+1}, s{sCM+1}, s{sT2}')
        if gv & 0xffffffff: A(f's_or_b32 s{sCM}, s{sCM}, s{sT1}')
    for k in range(2):
        A(f's_bitcmp1_b32 s{sRHO}, 0\ns_cselect_b32 s{sT1}, s{sFL if k else sFLV}, s{sFLV if k else sFL}\ns_bitcmp1_b32 s{sT1}, 2\ns_cselect_b32 s{sT1}, {5 << (20+k):#x}, 0\ns_or_b32 s{sCM}, s{sCM}, s{sT1}')
    A(f's_sub_u32 s{sT1}, 0, s{sHALF}\ns_xor_b32 s{sCM}, s{sCM}, s{sT1}\ns_xor_b32 s{sCM+1}, s{sCM+1}, s{sT1}')
    A(f's_mov_b32 s{sPUB}, 4\ns_waitcnt lgkmcnt(0)')
    def arrive():
        A(f's_mov_b64 exec, 1\nds_add_u32 {v(vFA)}, {v(vONE)}\ns_mov_b64 exec, -1')
    chk = f'ds_read_b64 {v(vR,2)}, {v(vFA)}'
    def step_wait(lbl):
        if not sync: return
        A(f'{lbl}:\ns_waitcnt lgkmcnt(0)\nv_readfirstlane_b32 s{sT1}, {v(vR)}\ns_nop 0\ns_cmp_ge_u32 s{sT1}, s{sPUB}\ns_cbranch_scc1 {lbl}_ok')
        A(f'{chk}\ns_branch {lbl}\n{lbl}_ok:')
    def wo_frags():
        A(f'v_lshrrev_b32 {v(vT)}, 2, {v(vLANE)}\nv_lshlrev_b32 {v(vT)}, 8, {v(vT)}\nv_and_b32 {v(vT+1)}, 3, {v(vLANE)}\nv_lshl_add_u32 {v(vT)}, {v(vT+1)}, 3, {v(vT)}')
        A(f's_lshl_b32 s{sT1}, s{sWAVE}, 6\ns_add_u32 s{sT1}, s{sT1}, {WREG}\nv_add_u32 {v(vA)}, s{sT1}, {v(vT)}')
        for s in range(6):
            for t in range(2):
                f = vW + 24*t + 4*s
                A(f'ds_read_b64_tr_b16 {v(f,2)}, {v(vA)} offset:{8192*s+32*t}\nds_read_b64_tr_b16 {v(f+2,2)}, {v(vA)} offset:{8192*s+32*t+4096}')
            if s % 2 == 1 and s < 5: A('s_waitcnt lgkmcnt(4)')
    A('.p2align 6\nL_kloop:')
    for k in range(4): A(f'v_add_u32 {v(vAD+k)}, s{sSLA}, {v(vKB+k)}')
    A('s_waitcnt vmcnt(9)')
    arrive()
    for kt in range(2):
        for s in range(6):
            if not (nocomp & 1): A(f'ds_read_b128 {v(vF+24*kt+4*s,4)}, {v(vAD+2*kt+(s&1))} offset:{128*(s>>1)}')
    A(chk)
    A(f'v_and_or_b32 {v(vT+8)}, {v(vM2X)}, s{sN0}, {v(vM2B)}\ns_mov_b32 s{sN0}, s{sN1}')
    A(f's_cmp_lg_u32 s{sT}, 22\ns_cbranch_scc1 L_knosw')
    A(f's_mov_b32 s{rK}, s{sVB}\ns_mov_b32 s{rK+1}, s{sVB+1}\ns_cmp_ge_u32 s{sU0}, 8\ns_cselect_b32 s{sU}, -8, 88\ns_add_u32 s{sU}, s{sU}, s{sU0}')
    A('L_knosw:')
    block_params(0, sN1)
    for kt in range(2):
        for s in range(6):
            i = 6*kt + s
            A(f's_waitcnt lgkmcnt({12-i})')
            c = '0' if s == 0 else v(vS+4*kt, 4)
            A(f'v_mfma_f32_16x16x32_bf16 {v(vS+4*kt,4)}, {v(vF+4*i,4)}, {v(vQ+4*s,4)}, {c}')
    step_wait('L_ks')
    dma_tile(sOFF, sSLA, None, 0, pre, knt)
    A(f's_nop {max(0, 7 - 3*pre)}')
    for k in range(4): rnd2(vS+2*k, vS+2*k+1, vT+k)
    for k in range(8): A(f'v_mul_f32 {v(vS+k)}, s{sSC}, {v(vS+k)}')
    for k in range(4): A(f'v_cvt_pk_bf16_f32 {v(vT+k)}, {v(vS+2*k)}, {v(vS+2*k+1)}')
    A(f'v_bfi_b32 {v(vT+2)}, {v(vT+8)}, {v(vT+2)}, s{sNEG}\nv_bfi_b32 {v(vT+3)}, {v(vM3)}, {v(vT+3)}, s{sNEG}')
    A(f's_mov_b32 exec_lo, 0x00010001\ns_mov_b32 exec_hi, 0x00010001\nds_write_b128 {v(vSK)}, {v(vT,4)}\ns_mov_b64 exec, -1\nv_add_u32 {v(vSK)}, 64, {v(vSK)}')
    A(f's_cmp_eq_u32 s{sT}, 23\ns_cbranch_scc1 L_spa')
    dma_tile(sOFF, sSLA, D, pre, 9, knt)
    A(f's_mov_b32 s{sT1}, s{sSLA}\ns_mov_b32 s{sSLA}, s{sSLB}\ns_mov_b32 s{sSLB}, s{sT1}')
    A(f's_add_u32 s{sT}, s{sT}, 1\ns_add_u32 s{sPUB}, s{sPUB}, 4\ns_branch L_kloop')
    A('.p2align 6\nL_vloop:')
    for k in range(8): A(f'v_add_u32 {v(vAD+k)}, s{sSLA}, {v(vVB+k)}')
    A(f'ds_read_b128 {v(vP,4)}, {v(vSV)}\ns_cmp_eq_u32 s{sT}, 25\ns_cselect_b32 s{sT1}, {64-1536}, 64\nv_add_u32 {v(vSV)}, s{sT1}, {v(vSV)}')
    A(f's_cmp_lg_u32 s{sT}, 24\ns_cbranch_scc1 L_vnosw\ns_mov_b32 s{sU}, s{sU0}\nL_vnosw:')
    block_params(2, sN1)
    A('s_waitcnt vmcnt(9)')
    arrive()
    if not (nocomp & 2): trread_mfma(12, vAD, 0, vO, False, vF, vP, vAD+4, chk)
    else: A(chk)
    A(f's_cmp_eq_u32 s{sT}, 47\ns_cbranch_scc1 L_loopx')
    step_wait('L_vs')
    dma_tile(sOFF, sSLA, None, 0, pre, vnt)
    A(f's_cmp_eq_u32 s{sT}, 27\ns_cbranch_scc1 L_spb')
    A('L_vmid:')
    if nend:
        A(f's_cmp_ge_u32 s{sT}, {46-nend}\ns_cbranch_scc0 L_vpc')
        dma_tile(sOFF, sSLA, Dend if Dend < 18 else None, pre, 9, vnt)
        A('s_branch L_vpe\nL_vpc:')
    dma_tile(sOFF, sSLA, D, pre, 9, vnt)
    A('L_vpe:')
    A(f's_mov_b32 s{sT1}, s{sSLA}\ns_mov_b32 s{sSLA}, s{sSLB}\ns_mov_b32 s{sSLB}, s{sT1}')
    A(f's_add_u32 s{sT}, s{sT}, 1\ns_add_u32 s{sPUB}, s{sPUB}, 4\ns_branch L_vloop')
    A('L_loopx:')
    stamp(4)
    if lred:
        A('s_mov_b64 exec, 0xffff\ns_nop 3')
        for t in range(12): A(f'ds_write_b32 {v(vSK)}, {v(vO+4*t)} offset:{64*t}')
        A('s_mov_b64 exec, -1')
    else:
        xsum(vLS, vT)
        A(f's_lshl_b32 s{sT1}, s{sWAVE}, 10\ns_add_u32 s{sT1}, s{sT1}, {OCB}\nv_lshlrev_b32 {v(vA)}, 2, {v(vLANE)}\nv_add_u32 {v(vA)}, s{sT1}, {v(vA)}')
        A('s_mov_b64 exec, 0xffff')
        for t in range(12): A(f'ds_write_b32 {v(vA)}, {v(vO+4*t)} offset:{64*t}')
        A(f's_mov_b64 exec, 1\nds_write2_b32 {v(vA)}, {v(vML)}, {v(vLS)} offset0:192 offset1:193\ns_mov_b64 exec, -1')
    A('s_waitcnt lgkmcnt(0)\ns_barrier')
    A(f's_cmp_ge_u32 s{sJ}, 5\ns_cbranch_scc1 L_sdone')
    if not wearly: wo_frags()
    A(f's_lshl_b32 s{sT1}, s{sH}, 3\ns_lshl_b32 s{sT2}, s{sWAVE}, 1\ns_add_u32 s{sT1}, s{sT1}, s{sT2}\ns_lshl_b32 s{sT1}, s{sT1}, 11\ns_add_u32 s{sT1}, s{sT1}, {OP}\ns_add_u32 s{sT2}, s{sT1}, 2048')
    A(f'v_mov_b32 {v(vA)}, 1024')
    mko = lambda b: [wsload(b, vL16, sT1), wsload(b+4, vL16, sT2), wsload(b+8, vA, sT1), wsload(b+12, vA, sT2)]
    w0_, w1_, l0_, l1_, on_ = vQ, vQ+1, vQ+2, vQ+3, vQ+4
    def useo(b):
        A(f'v_max_f32 {v(vT)}, {v(b+8)}, {v(b+12)}\nv_sub_f32 {v(w0_)}, {v(b+8)}, {v(vT)}\nv_sub_f32 {v(w1_)}, {v(b+12)}, {v(vT)}\nv_exp_f32 {v(w0_)}, {v(w0_)}\nv_exp_f32 {v(w1_)}, {v(w1_)}\ns_nop 0')
        A(f'v_mul_f32 {v(l0_)}, {v(b+9)}, {v(w0_)}\nv_fmac_f32 {v(l0_)}, {v(b+13)}, {v(w1_)}\nv_rcp_f32 {v(l1_)}, {v(l0_)}')
        for k in range(3): A(f'v_mul_f32 {v(on_+k)}, {v(b+k)}, {v(w0_)}\nv_fmac_f32 {v(on_+k)}, {v(b+4+k)}, {v(w1_)}')
    if po: poll2('L_po', mko, 4, vF, vF+16, 4, po, useo)
    else:
        (polls if sel & 1 else poll)('L_po', mko(vF), [vF+3, vF+7, vF+11, vF+15], 4)
        useo(vF)
    stamp(5)
    A(f's_mul_i32 s{sT1}, s{sWAVE}, 384\ns_add_u32 s{sT1}, s{sT1}, {OBF}')
    A(f'v_mul_u32_u24 {v(vA)}, 6, {v(vLANE)}\nv_add_u32 {v(vA)}, s{sT1}, {v(vA)}')
    for k in range(3): fdiv(on_+4+k, on_+k, l0_, l1_, vT)
    put3_bf16(on_+4, vT, vA)
    A(f'v_bfe_u32 {v(vT+2)}, {v(vLANE)}, 2, 2\nv_mul_u32_u24 {v(vT+2)}, 384, {v(vT+2)}\nv_lshrrev_b32 {v(vT+3)}, 4, {v(vLANE)}\nv_lshl_add_u32 {v(vT+2)}, {v(vT+3)}, 3, {v(vT+2)}\nv_add_u32 {v(vA)}, {OBF}, {v(vT+2)}')
    A(f's_lshl_b32 s{sT1}, s{sJ}, 2\ns_add_u32 s{sT1}, s{sT1}, s{sWAVE}\ns_lshl_b32 s{sT1}, s{sT1}, 5\ns_add_u32 s{sT1}, s{sT1}, s{sH}\ns_lshl_b32 s{sT1}, s{sT1}, {9 if y8 else 10}\ns_add_u32 s{sT1}, s{sT1}, {YP}')
    A('s_waitcnt lgkmcnt(0)\ns_barrier')
    for s in range(6): A(f'ds_read2_b64 {v(vO+4*s,4)}, {v(vA)} offset0:{8*s} offset1:{8*s+4}')
    for s in range(6):
        A(f's_waitcnt lgkmcnt({5-s})')
        for t in range(2):
            c = '0' if s == 0 else v(vS+4*t, 4)
            A(f'v_mfma_f32_16x16x32_bf16 {v(vS+4*t,4)}, {v(vO+4*s,4)}, {v(vW+24*t+4*s,4)}, {c}')
    if y8:
        A(f'v_mov_b32 {v(vT+1)}, {v(vTAG)}\nv_lshlrev_b32 {v(vA)}, 3, {v(vLANE)}\ns_nop 5')
        A(f'v_cvt_pk_bf16_f32 {v(vT)}, {v(vS)}, {v(vS+4)}')
        A(f'buffer_store_dwordx2 {v(vT,2)}, {v(vA)}, {srd(rWS)}, s{sT1} offen sc1')
    else:
        A(f'v_mov_b32 {v(vT+2)}, {v(vTAG)}\nv_mov_b32 {v(vT+3)}, {v(vTAG)}\ns_nop 5')
        A(f'v_mov_b32 {v(vT)}, {v(vS)}\nv_mov_b32 {v(vT+1)}, {v(vS+4)}')
        A(f'buffer_store_dwordx4 {v(vT,4)}, {v(vL16)}, {srd(rWS)}, s{sT1} offen sc1')
    A('L_sdone:')
    if fixdur:
        A(f'L_fix:\ns_memrealtime s[98:99]\ns_waitcnt lgkmcnt(0)\ns_sub_u32 s98, s98, s96\ns_cmp_lt_u32 s98, {fixdur*100}\ns_cbranch_scc1 L_fix')
    stamp(6)
    if stamps:
        A(f's_cmp_lg_u32 s{sWAVE}, 0\ns_cbranch_scc1 L_end\ns_waitcnt vmcnt(0)')
        stamp(7)
        write_stamps(0, 's')
    A('s_endpgm')

    def soft_pass(n, addr, off):
        X = vF
        for i in range(n): A(f'ds_read_b32 {v(vT+8+i)}, {v(addr)} offset:{off*i}')
        for i in range(n):
            A(f's_waitcnt lgkmcnt({n-1-i})\nv_lshlrev_b32 {v(X+2*i)}, 16, {v(vT+8+i)}\nv_and_b32 {v(X+2*i+1)}, 0xffff0000, {v(vT+8+i)}\nv_max3_f32 {v(vM)}, {v(X+2*i)}, {v(X+2*i+1)}, {v(vM)}')
        xsum(vM, vT, 'v_max_f32')
        A(f'v_mul_f32 {v(vT)}, s{sL2E}, {v(vM)}\nv_sub_f32 {v(vAL)}, {v(vML)}, {v(vT)}\nv_mov_b32 {v(vML)}, {v(vT)}\nv_exp_f32 {v(vAL)}, {v(vAL)}')
        for k in range(2*n): A(f'v_fma_f32 {v(X+k)}, {v(X+k)}, s{sL2E}, -{v(vML)}')
        for k in range(2*n): A(f'v_exp_f32 {v(X+k)}, {v(X+k)}')
        A(f'v_mul_f32 {v(vLS)}, {v(vLS)}, {v(vAL)}')
        for i in range(n):
            A(f'v_cvt_pk_bf16_f32 {v(vT+8+i)}, {v(X+2*i)}, {v(X+2*i+1)}\nv_add_f32 {v(vLS)}, {v(vLS)}, {v(X+2*i)}\nv_add_f32 {v(vLS)}, {v(vLS)}, {v(X+2*i+1)}')
            A(f'ds_write_b32 {v(addr)}, {v(vT+8+i)} offset:{off*i}')
    A('L_spa:')
    soft_pass(1, vPA, 0)
    A('s_branch L_vmid')
    A('L_spb:')
    if not noex:
        A(f's_mov_b32 s{sCNT}, {spin*8}')
        A(f'L_vchk:\ns_waitcnt lgkmcnt(0)\nv_readfirstlane_b32 s{sT1}, {v(vR+1)}\ns_sub_u32 s{sCNT}, s{sCNT}, 1\ns_cmp_eq_u32 s{sCNT}, 0\ns_cbranch_scc1 L_vnoc')
        A(f's_cmp_lg_u32 s{sT1}, 0\ns_cbranch_scc1 L_vnoc\n{chk}\ns_branch L_vchk\nL_vnoc:')
    A(f'v_lshl_add_u32 {v(vPA)}, {v(vLANE)}, 2, s{sSTG}')
    soft_pass(5, vPA, 256)
    for t in range(12): A(f'v_mul_f32 {v(vO+4*t)}, {v(vAL)}, {v(vO+4*t)}')
    if lred:
        xsum(vLS, vT)
        A(f's_lshl_b32 s{sT1}, s{sWAVE}, 10\ns_add_u32 s{sT1}, s{sT1}, {OCB}\nv_lshlrev_b32 {v(vSK)}, 2, {v(vLANE)}\nv_add_u32 {v(vSK)}, s{sT1}, {v(vSK)}')
        A(f's_mov_b64 exec, 1\nds_write2_b32 {v(vSK)}, {v(vML)}, {v(vLS)} offset0:192 offset1:193\ns_mov_b64 exec, -1')
    if wearly == 1:
        A(f's_cmp_ge_u32 s{sJ}, 5\ns_cbranch_scc1 L_vmid\ns_waitcnt lgkmcnt(0)')
        wo_frags()
        A('s_waitcnt lgkmcnt(0)')
    if wearly == 2:
        A(f's_cmp_ge_u32 s{sJ}, 5\ns_cbranch_scc1 L_vmid')
        A(f'v_lshrrev_b32 {v(vT)}, 2, {v(vLANE)}\nv_lshlrev_b32 {v(vT)}, 8, {v(vT)}\nv_and_b32 {v(vT+1)}, 3, {v(vLANE)}\nv_lshl_add_u32 {v(vT)}, {v(vT+1)}, 3, {v(vT)}')
        A(f's_lshl_b32 s{sT1}, s{sWAVE}, 6\ns_add_u32 s{sT1}, s{sT1}, {WREG}\nv_add_u32 {v(vA)}, s{sT1}, {v(vT)}')
        for s_ in range(max(6, 9-pre)):
            if pre + s_ < 9: dma_tile(sOFF, sSLA, D, pre + s_, pre + s_ + 1, vnt)
            if s_ < 6:
                A('s_waitcnt lgkmcnt(4)')
                for t in range(2):
                    f = vW + 24*t + 4*s_
                    A(f'ds_read_b64_tr_b16 {v(f,2)}, {v(vA)} offset:{8192*s_+32*t}\nds_read_b64_tr_b16 {v(f+2,2)}, {v(vA)} offset:{8192*s_+32*t+4096}')
        A('s_waitcnt lgkmcnt(0)\ns_branch L_vpe')
    A('s_branch L_vmid')
    def hwait(n, lbl, hsl=hsl):
        A(f's_mov_b32 s{sCNT}, {spin*8}\n{lbl}:\nds_read_b32 {v(vT)}, {v(vXF)}\ns_sub_u32 s{sCNT}, s{sCNT}, 1\ns_cmp_eq_u32 s{sCNT}, 0\ns_cbranch_scc1 {lbl}_ok')
        A(f's_waitcnt lgkmcnt(0)\nv_readfirstlane_b32 s{sT0}, {v(vT)}\ns_nop 0\ns_cmp_ge_u32 s{sT0}, {4*n}\ns_cbranch_scc1 {lbl}_ok\n{f"s_sleep {hsl}" if hsl and not nosleep else ""}\ns_branch {lbl}\n{lbl}_ok:')
    vXA, vXF, vXB = vQ+12, vQ+13, vQ+14
    A('L_helper:')
    inhelper[0] = True
    A(f's_getreg_b32 s{sT3}, hwreg(HW_REG_XCC_ID, 2, 1)')
    A('s_waitcnt lgkmcnt(0)')
    A(f's_sub_u32 s{sT0}, s38, s36\ns_min_u32 s{sT0}, s{sT0}, {cap}\ns_sub_u32 s{sT0}, s{sT0}, {thr}\ns_sub_u32 s{sT1}, 0, s{sT0}')
    A(f's_cmp_eq_u32 s{sT3}, 0\ns_cselect_b32 s{sT0}, s{sT0}, s{sT1}')
    A(f'v_mov_b32 {v(vP)}, s{sT0}\nv_mov_b32 {v(vP+1)}, s{sT3}\nv_mov_b32 {v(vP+2)}, 0')
    A(f's_lshl_b32 s{sT0}, s{sIDX}, 4\ns_add_u32 s{sT0}, s{sT0}, s{sSLT}\ns_lshl_b32 s{sT0}, s{sT0}, 4\ns_add_u32 s{sT0}, s{sT0}, {VOTE}')
    if gord == 1: A('s_barrier')
    A(f's_waitcnt vmcnt(0)\nv_add_u32 {v(vTAG)}, {TAGC:#x}, {v(vTAG)}\nv_mov_b32 {v(vP+3)}, {v(vTAG)}')
    A(f's_mov_b64 exec, 1\nbuffer_store_dwordx4 {v(vP,4)}, {v(vL16)}, {srd(rWS)}, s{sT0} offen sc1\ns_mov_b64 exec, -1')
    if htouch:
        A(f's_mul_i32 s{sT0}, s{sRHO}, 1572864\ns_load_dword s96, {sp(sV)}, s{sT0}\ns_add_u32 s{sT0}, s{sT0}, 1572860\ns_load_dword s97, {sp(sK)}, s{sT0}\ns_load_dword s98, {sp(sV)}, s{sT0}')
        if htouch > 1: A(f's_mul_i32 s{sT0}, s{sH}, {192*1280}\ns_load_dword s99, {sp(sWO)}, s{sT0}\ns_load_dword s96, {sp(sWD)}, 0')
    sCA, sCB2 = 42, 43
    A(f's_mul_i32 s{sT0}, s{sRHO}, 3\ns_lshr_b32 s{sCA}, s{sT0}, 5\ns_add_u32 s{sT0}, s{sT0}, 2\ns_lshr_b32 s{sCB2}, s{sT0}, 5')
    A(f'v_lshrrev_b32 {v(vT)}, 5, {v(vLANE)}\nv_mul_u32_u24 {v(vT)}, 12, {v(vT)}\nv_bfe_u32 {v(vT+1)}, {v(vLANE)}, 4, 1\ns_sub_u32 s{sT0}, s{sCB2}, s{sCA}\nv_mul_u32_u24 {v(vT+1)}, s{sT0}, {v(vT+1)}')
    A(f'v_add3_u32 {v(vT)}, {v(vT)}, {v(vT+1)}, s{sCA}\nv_and_b32 {v(vT+1)}, 15, {v(vLANE)}\nv_min_u32 {v(vT+1)}, 9, {v(vT+1)}\nv_lshlrev_b32 {v(vT+1)}, 4, {v(vT+1)}\nv_lshl_add_u32 {v(vAL)}, {v(vT)}, 8, {v(vT+1)}')
    A(f's_andn2_b32 s{sT1}, s2, 4')
    vote_slot(sT1, sT2, sT3)
    A(f's_lshl_b32 s{sT2}, s{sT2}, 4\ns_add_u32 s{sT2}, s{sT2}, s{sT3}\ns_lshl_b32 s{sT2}, s{sT2}, 4\nv_mov_b32 {v(vM)}, s{sT2}\ns_mov_b32 s{rK+5}, {VOTE}')
    A(f's_mul_i32 s{sT0}, s{sH}, {5*4096}\ns_lshl_b32 s{sT1}, s{sB}, 10\ns_add_u32 s{sT0}, s{sT0}, s{sT1}\ns_add_u32 s{rK}, s{sT0}, {P1}')
    for p in range(1, 5): A(f's_add_u32 s{rK+p}, s{rK}, {4096*p}')
    A(f's_sub_u32 s{sU2}, s{sU2}, 5')
    A(f'v_mov_b32 {v(vS+1)}, 0\nv_mov_b32 {v(vS+6)}, 0\nv_mov_b32 {v(vS+7)}, 0')
    A(f'v_mul_u32_u24 {v(vA)}, 6, {v(vLANE)}\nv_add_u32 {v(vA)}, {QL}, {v(vA)}')
    A('s_barrier' if gord == 1 else 's_barrier\ns_barrier')
    stamp(1)
    mkq = lambda b: [wsload(b+4*p, vL16, rK+p) for p in range(5)] + [wsload(b+20, vAL, rK+5), wsload(b+24, vM, rK+5)]
    QR = vW; E = vW + 3
    def useq(b):
        for k in range(3):
            A(f'v_add_f32 {v(QR+k)}, {v(b+k)}, {v(b+4+k)}')
        for p in range(2, 5):
            for k in range(3): A(f'v_add_f32 {v(QR+k)}, {v(QR+k)}, {v(b+4*p+k)}')
        put3_bf16(QR, vT, vA)
        A(f'v_and_b32 {v(vT)}, 15, {v(vLANE)}\nv_cmp_gt_u32 vcc, 10, {v(vT)}\nv_readfirstlane_b32 s{sT2}, {v(b+25)}\ns_nop 0\nv_cndmask_b32 {v(E)}, 0, {v(b+20)}, vcc')
    if pq: poll2('L_pq', mkq, 7, vF, vO, 1, pq, useq)
    else:
        (polls if sel & 4 else poll)('L_pq', mkq(vF), [vF+4*p+3 for p in range(5 if nopoll else 0, 7)], 1)
        useq(vF)
    for mode in ['quad_perm:[1,0,3,2]', 'quad_perm:[2,3,0,1]', 'row_half_mirror', 'row_mirror']:
        A(f's_nop 1\nv_add_u32_dpp {v(E)}, {v(E)}, {v(E)} {mode} row_mask:0xf bank_mask:0xf')
    if dbgv:
        A(f's_mul_i32 s{sT0}, s{sRHO}, 3\ns_and_b32 s{sT0}, s{sT0}, 31\ns_cmp_ge_u32 s{sT0}, 3\ns_cbranch_scc1 L_nodbg')
        A(f'v_readlane_b32 s{sT0}, {v(E)}, 16\nv_readlane_b32 s{sT1}, {v(E)}, 48')
        A(f's_nop 1\ns_add_u32 s{sT3}, s{sT0}, 5000\ns_mul_i32 s{sT3}, s{sT3}, 10000\ns_add_u32 s{sT3}, s{sT3}, s{sT1}\ns_add_u32 s{sT3}, s{sT3}, 5000')
        A(f's_lshl_b32 s{sP}, s{sCB2}, 2\nv_mov_b32 {v(vT+5)}, s{sP}\nv_mov_b32 {v(vT+6)}, s{sT3}\nglobal_store_dword {v(vT+5)}, {v(vT+6)}, {sp(sDBG)}\nL_nodbg:')
    A(f'v_lshrrev_b32 {v(E)}, 31, {v(E)}\nv_xor_b32 {v(E)}, s{sT2}, {v(E)}')
    if force >= 0: A(f'v_lshrrev_b32 {v(E)}, 5, {v(vLANE)}\nv_lshrrev_b32 {v(E)}, {v(E)}, {force}\nv_and_b32 {v(E)}, 1, {v(E)}')
    sF = [36, 37, 38, 39]
    A('s_nop 0')
    for g in range(4): A(f'v_readlane_b32 s{sF[g]}, {v(E)}, {16*g}')
    sRG = 97
    if rot >= 0: rot3(sRG, sT3)
    else: A(f's_mov_b32 s{sRG}, 0')
    A(f's_mov_b32 s{sT0}, 0\ns_mov_b32 s{sT1}, 0')
    for i in range(3):
        A(f's_mul_i32 s{sT3}, s{sRHO}, 3\ns_add_u32 s{sT3}, s{sT3}, s{sRG}\ns_lshl_b32 s{sT3}, s{sT3}, 19')
        A(f's_lshr_b32 s{sT2}, s{sT3}, 24\ns_cmp_eq_u32 s{sT2}, s{sCA}\ns_cselect_b32 s{sXD}, s{sF[0]}, s{sF[1]}\ns_cselect_b32 s{sXS}, s{sF[2]}, s{sF[3]}')
        for acc, base, fl in [(sT0, sK, sXD), (sT1, sV, sXS)]:
            A(f's_add_u32 s{sT2}, s{base}, s{sT3}\ns_lshr_b32 s{sT2}, s{sT2}, 21\ns_xor_b32 s{sT2}, s{sT2}, s{fl}\ns_and_b32 s{sT2}, s{sT2}, 1\ns_lshl_b32 s{sT2}, s{sT2}, {i}\ns_or_b32 s{acc}, s{acc}, s{sT2}')
        if i < 2: A(f's_add_u32 s{sRG}, s{sRG}, 1\ns_cmp_eq_u32 s{sRG}, 3\ns_cselect_b32 s{sRG}, 0, s{sRG}')
    if nonuma: A(f's_mov_b32 s{sT0}, {nonuma >> 1}\ns_mov_b32 s{sT1}, {nonuma >> 1}')
    A(f's_xor_b32 s{sXD}, s{sT0}, s{sT1}\ns_cselect_b32 s{sXS}, 0, 1')
    A(f'v_mov_b32 {v(vT+4)}, s{sT0}\nv_mov_b32 {v(vT+5)}, s{sT1}\nv_mov_b32 {v(vT+6)}, 0\nv_mov_b32 {v(vT+7)}, s{sXS}\nv_mov_b32 {v(vT+3)}, {FLG}\nds_write_b128 {v(vT+3)}, {v(vT+4,4)}')
    if stamps:
        A(f's_lshl_b32 s{sT1}, s{sXD}, 0\ns_or_b32 s{sT1}, s{sT1}, s{sT1}\ns_lshl_b32 s{sT0}, s2, 2\ns_add_u32 s{sT0}, s{sT0}, 0x20100000')
        A(f'v_mov_b32 {v(vT+5)}, s{sT0}\nv_mov_b32 {v(vT+6)}, s{sT1}\nglobal_store_dword {v(vT+5)}, {v(vT+6)}, {sp(sWS)}')
    stamp(2)
    A('s_waitcnt lgkmcnt(0)\ns_barrier')
    A('s_waitcnt vmcnt(0)')
    A(f's_cmp_ge_u32 s{sJ}, 5\ns_cselect_b32 s{sHASW1}, 1, 0\ns_cmp_lt_u32 s{sU2}, 80\ns_cselect_b32 s{sHASW1}, s{sHASW1}, 0')
    A(f's_cmp_eq_u32 s{sHASW1}, 0\ns_cbranch_scc1 L_hx')
    A(f's_mul_i32 s{sR}, s{sU2}, 52429\ns_lshr_b32 s{sR}, s{sR}, 18\ns_mul_i32 s{sT0}, s{sR}, 5\ns_sub_u32 s{sCB}, s{sU2}, s{sT0}')
    A(f's_mul_i32 s{sRB}, s{sU2}, 52429\ns_lshr_b32 s{sRB}, s{sRB}, 20\ns_mul_i32 s{sT0}, s{sRB}, 20\ns_sub_u32 s{sSLC2}, s{sU2}, s{sT0}')
    vWD, vG4 = vS, vS+1
    A(f'v_lshrrev_b32 {v(vT)}, 4, {v(vLANE)}\nv_and_b32 {v(vT+1)}, 15, {v(vLANE)}\nv_lshlrev_b32 {v(vT+1)}, 4, {v(vT+1)}')
    A(f'v_mul_u32_u24 {v(vWD)}, 1280, {v(vT)}\nv_add_u32 {v(vWD)}, {v(vWD)}, {v(vT+1)}\nv_lshl_add_u32 {v(vG4)}, {v(vT)}, 10, {v(vT+1)}')
    A(f'v_lshrrev_b32 {v(vT)}, 5, {v(vLANE)}\nv_mul_u32_u24 {v(vT)}, {8*5*4096}, {v(vT)}\nv_and_b32 {v(vT+1)}, 31, {v(vLANE)}\nv_lshl_add_u32 {v(vA)}, {v(vT+1)}, 4, {v(vT)}')
    A(f's_lshr_b32 s{sT0}, s{sR}, 1\ns_add_u32 s{sT0}, s{sT0}, 32\ns_mul_i32 s{sT0}, s{sT0}, {5*4096}\ns_and_b32 s{sT1}, s{sR}, 1\ns_lshl_b32 s{sT1}, s{sT1}, 9\ns_add_u32 s{sT0}, s{sT0}, s{sT1}\ns_add_u32 s{rK}, s{sT0}, {P1}')
    for p in range(1, 5): A(f's_add_u32 s{rK+p}, s{rK}, {4096*p}')
    G = vF
    poll('L_pg', [wsload(G+20*b+4*p, vA, rK+p) + f' offset:{1024*b}' if False else
                  f'buffer_load_dwordx4 {v(G+20*b+4*p,4)}, {v(vA)}, {srd(rWS)}, s{rK+p} offen offset:{1024*b} sc1' for b in range(4) for p in range(5)],
         [G+20*b+4*p+3 for b in range(4) for p in range(5)], 2)
    A(f'v_and_b32 {v(vA)}, 31, {v(vLANE)}\nv_mul_u32_u24 {v(vA)}, 6, {v(vA)}\nv_add_u32 {v(vA)}, {HL}, {v(vA)}')
    for b in range(4):
        g0 = G + 20*b
        for k in range(3):
            for p in range(1, 5): A(f'v_add_f32 {v(g0+k)}, {v(g0+k)}, {v(g0+4*p+k)}')
        rnd2(g0, g0+1, vT); rnd(g0+2, vT)
        for k in range(3): A(f'v_mov_b32 {v(g0+4+k)}, {v(g0+k)}')
        A('s_nop 1')
        for k in range(3): A(f'v_permlane32_swap_b32 {v(g0+k)}, {v(g0+4+k)}')
        for k in range(3):
            A(f'v_cmp_lt_f32 vcc, 0, {v(g0+k)}\ns_nop 1\nv_cndmask_b32 {v(vT)}, 0, 1.0, vcc\nv_mul_f32 {v(g0+k)}, {v(g0+k)}, {v(vT)}\nv_mul_f32 {v(g0+k)}, {v(g0+k)}, {v(g0+4+k)}')
        put3_bf16(g0, vT, vA)
        if b < 3: A(f'v_add_u32 {v(vA)}, 192, {v(vA)}')
    A(f'v_bfe_u32 {v(vT+2)}, {v(vLANE)}, 2, 2\nv_mul_u32_u24 {v(vT+2)}, 192, {v(vT+2)}\nv_lshrrev_b32 {v(vT+3)}, 4, {v(vLANE)}\nv_lshl_add_u32 {v(vT+2)}, {v(vT+3)}, 3, {v(vT+2)}\nv_add_u32 {v(vA)}, {HL}, {v(vT+2)}')
    A('s_waitcnt lgkmcnt(0)')
    for s in range(3): A(f'ds_read2_b64 {v(vQ+4*s,4)}, {v(vA)} offset0:{8*s} offset1:{8*s+4}')
    if xtra >= 0:
        A(f'v_mov_b32 {v(vXF)}, {FLG+8}')
        hwait(2, 'L_hww')
    A(f'v_lshrrev_b32 {v(vT)}, 2, {v(vLANE)}\nv_lshlrev_b32 {v(vT)}, 8, {v(vT)}\nv_and_b32 {v(vT+1)}, 3, {v(vLANE)}\nv_lshl_add_u32 {v(vT)}, {v(vT+1)}, 3, {v(vT)}\nv_add_u32 {v(vA)}, {WREG}, {v(vT)}')
    for s in range(3):
        A('s_waitcnt lgkmcnt(0)')
        trread_mfma(8, vA, 4096, vO, s == 0, vF, vQ+4*s)
        if s < 2: A(f'v_add_u32 {v(vA)}, 8192, {v(vA)}')
    sBPA = 39
    A(f's_lshl_b32 s{sBPA}, s{sCB}, 6\ns_add_u32 s{sBPA}, s{sBPA}, s{sR}\ns_lshl_b32 s{sBPA}, s{sBPA}, 10\ns_add_u32 s{sBPA}, s{sBPA}, {BP}')
    A('s_nop 4')
    BG = vW + 16
    for ww in range(4):
        t0 = BG + 4*ww
        A(f'v_mov_b32 {v(t0)}, {v(vO+8*ww)}\nv_mov_b32 {v(t0+1)}, {v(vO+8*ww+4)}\nv_mov_b32 {v(t0+2)}, {v(vTAG)}\nv_mov_b32 {v(t0+3)}, {v(vTAG)}')
    def b_publish():
        for ww in range(4):
            A(f'buffer_store_dwordx4 {v(BG+4*ww,4)}, {v(vL16)}, {srd(rWS)}, s{sBPA} offen sc1')
            if ww < 3: A(f's_add_u32 s{sBPA}, s{sBPA}, 16384')
    if not blate: b_publish()
    vG0, vG1, vX0, vX1, vXO = vS+2, vS+3, vS+4, vS+5, vS+6
    A(f's_mul_i32 s{sT0}, s{sRB}, 1280\ns_lshl_b32 s{sT1}, s{sSLC2}, 6\ns_add_u32 s{sT0}, s{sT0}, s{sT1}')
    A(f'v_and_b32 {v(vXO)}, 15, {v(vLANE)}\nv_lshlrev_b32 {v(vXO)}, 1, {v(vXO)}\nv_add_u32 {v(vXO)}, s{sT0}, {v(vXO)}')
    if otouch: A(f'global_load_ushort {v(vX0)}, {v(vXO)}, {sp(sOUT)}\ns_waitcnt vmcnt(0)')
    A(f'global_load_ushort {v(vX0)}, {v(vXO)}, {sp(sX)}\nglobal_load_ushort {v(vX1)}, {v(vXO)}, {sp(sX)} offset:32')
    sBG = 40
    A(f's_lshl_b32 s{sT0}, s{sSLC2}, 14\ns_lshl_b32 s{sT1}, s{sRB}, 8\ns_add_u32 s{sT0}, s{sT0}, s{sT1}\ns_add_u32 s{sBG}, s{sT0}, {BP}')
    for p in range(1, 4): A(f's_add_u32 s{sBG+p}, s{sBG}, {4096*p}')
    def b_gather():
        G = vF + 16
        (polls if sel & 2 else poll)('L_pb', [wsload(G+4*p, vG4, sBG+p) for p in range(4)], [G+4*p+3 for p in range(4)], 5)
        for k in range(2):
            A(f'v_add_f32 {v(G+k)}, {v(G+k)}, {v(G+4+k)}\nv_add_f32 {v(G+8+k)}, {v(G+8+k)}, {v(G+12+k)}\nv_add_f32 {v(G+k)}, {v(G+k)}, {v(G+8+k)}')
            xsum(G+k, vT, full=False)
        rnd2(G, G+1, vT)
        for k in range(2):
            A(f'v_mul_f32 {v(vT)}, s{sL2E}, {v(G+k)}\nv_max_f32 {v(vT)}, {f2u(-126.0):#x}, {v(vT)}\nv_exp_f32 {v(vT)}, -{v(vT)}\ns_nop 0\nv_add_f32 {v(vT)}, 1.0, {v(vT)}\nv_rcp_f32 {v(vT+1)}, {v(vT)}\ns_nop 0')
            fdiv(vG0+k, G+k, vT, vT+1, vT+2)
        rnd2(vG0, vG1, vT)
    if not blate: b_gather()
    A(f's_waitcnt vmcnt(0)\nv_lshlrev_b32 {v(vX0)}, 16, {v(vX0)}\nv_lshlrev_b32 {v(vX1)}, 16, {v(vX1)}')
    A(f's_lshl_b32 s{sT0}, s{sSLC2}, {14 if y8 else 15}\ns_lshl_b32 s{sT1}, s{sRB}, {7 if y8 else 8}\ns_add_u32 s{sT0}, s{sT0}, s{sT1}\ns_add_u32 s{rK}, s{sT0}, {YP}')
    for p in range(1, 8): A(f's_add_u32 s{rK+p}, s{rK}, {(2048 if y8 else 4096)*p}')
    vG8 = vS + 7
    A(f'v_lshrrev_b32 {v(vG8)}, 1, {v(vG4)}')
    A('L_hx:')
    if lead:
        A(f's_and_b32 s{sT0}, s2, {lmask}\ns_cmp_eq_u32 s{sT0}, 5\ns_cselect_b32 s{sT0}, 0, s{sXS}\ns_cmp_lg_u32 s{sT0}, 0\ns_cbranch_scc1 L_hb4')
    else: A(f's_cmp_lg_u32 s{sXS}, 0\ns_cbranch_scc1 L_hb4')
    sREC, sOTH = 36, 37
    A(f's_lshl_b32 s{sREC}, s{sRHO}, 1\ns_add_u32 s{sOTH}, s{sREC}, 1\ns_sub_u32 s{sOTH}, s{sOTH}, s{sHALF}\ns_add_u32 s{sREC}, s{sREC}, s{sHALF}')
    A(f's_mul_i32 s{sREC}, s{sREC}, 6144\ns_add_u32 s{sREC}, s{sREC}, {SCO}\ns_mul_i32 s{sOTH}, s{sOTH}, 6144\ns_add_u32 s{sOTH}, s{sOTH}, {SCO}')
    A(f'v_add_u32 {v(vXA)}, {STG}, {v(vL16)}\nv_mov_b32 {v(vXF)}, {FLG+8}\nv_and_b32 {v(vT)}, 3, {v(vLANE)}\nv_cmp_eq_u32 vcc, 2, {v(vT)}\nv_mov_b32 {v(vT)}, -20\ns_nop 0\nv_cndmask_b32 {v(vT)}, 8, {v(vT)}, vcc\nv_add_u32 {v(vXB)}, {v(vXA)}, {v(vT)}')
    sE0, sE1 = 96, 98
    A(f's_bitcmp1_b32 s{sXD}, 0\ns_cselect_b32 s{sE0}, 0xffffff00, 0\ns_bitcmp1_b32 s{sXD}, 1\ns_cselect_b32 s{sE0+1}, -1, 0\ns_bitcmp1_b32 s{sXD}, 2\ns_cselect_b32 s{sE1}, 0xffffff, 0\ns_mov_b32 s{sE1+1}, 0')
    hwait(pubt, 'L_hw0')
    stamp(1)
    if lead:
        A(f'v_mov_b32 {v(vT+2)}, {GO}\ns_and_b32 s{sT0}, s2, {lmask}\ns_cmp_lg_u32 s{sT0}, 5\ns_cbranch_scc1 L_go')
        hwait(lead, 'L_hwl')
        A(f's_mov_b64 exec, 1\nbuffer_store_dword {v(vTAG)}, {v(vT+2)}, {srd(rWS)}, 0 offen sc1\ns_mov_b64 exec, -1')
        if lpipe:
            A('L_go:')
            for k in range(3): A(f'buffer_load_dword {v(vT+4+k)}, {v(vT+2)}, {srd(rWS)}, 0 offen sc1\ns_sleep {lpipe}')
            A('L_go2:')
            for k in range(4):
                A(f'buffer_load_dword {v(vT+4+(k+3)%4)}, {v(vT+2)}, {srd(rWS)}, 0 offen sc1\nds_read_b32 {v(vT)}, {v(vXF)}\ns_waitcnt vmcnt(3) lgkmcnt(0)')
                A(f'v_cmp_eq_u32 vcc, {v(vT+4+k)}, {v(vTAG)}\nv_readfirstlane_b32 s{sT0}, {v(vT)}\ns_cbranch_vccnz L_go_ok\ns_cmp_ge_u32 s{sT0}, {4*fb}\ns_cbranch_scc1 L_go_ok')
            A('s_branch L_go2\nL_go_ok:')
        else:
            A(f'L_go:\nbuffer_load_dword {v(vT+3)}, {v(vT+2)}, {srd(rWS)}, 0 offen sc1\nds_read_b32 {v(vT)}, {v(vXF)}\ns_waitcnt vmcnt(0) lgkmcnt(0)')
            A(f'v_cmp_eq_u32 vcc, {v(vT+3)}, {v(vTAG)}\nv_readfirstlane_b32 s{sT0}, {v(vT)}\ns_cbranch_vccnz L_go_ok\ns_cmp_lt_u32 s{sT0}, {4*fb}\ns_cbranch_scc1 L_go\nL_go_ok:')
    stamp(3)
    def masked(i, lbl): return f's_cmp_eq_u64 {sp([sE0, sE1][i])}, 0\ns_cbranch_scc1 {lbl}{i}\ns_mov_b64 exec, {sp([sE0, sE1][i])}'
    if not (noex & 1):
        for i in range(2):
            A(masked(i, 'L_np'))
            for w in range(4):
                r = vF + 16*i + 4*w
                A(f'ds_read_b64 {v(r,2)}, {v(vXA)} offset:{1536*w+1024*i}\nds_read_b32 {v(r+2)}, {v(vXB)} offset:{1536*w+1024*i}\nv_mov_b32 {v(r+3)}, {v(vTAG)}')
            for w in range(4):
                r = vF + 16*i + 4*w
                A(f's_add_u32 s{sT0}, s{sREC}, {1536*w+1024*i}\ns_waitcnt lgkmcnt({6-2*w})')
                A(f'buffer_store_dwordx4 {v(r,4)}, {v(vL16)}, {srd(rWS)}, s{sT0} offen {stfl}')
            A(f's_mov_b64 exec, -1\nL_np{i}:')
    if lead: A(f's_cmp_lg_u32 s{sXS}, 0\ns_cbranch_scc1 L_hb4')
    hwait(gat, 'L_hw1')
    if not (noex & 2):
        G = vO
        for k in range(8): A(f'v_mov_b32 {v(G+4*k+3)}, {v(vTAG)}')
        lds_ = []
        for i in range(2):
            t_ = masked(i, 'L_ng') + '\n'
            for w in range(4):
                t_ += f's_add_u32 s{sT0}, s{sOTH}, {1536*w+1024*i}\nbuffer_load_dwordx4 {v(G+16*i+4*w,4)}, {v(vL16)}, {srd(rWS)}, s{sT0} offen {slfl}\n'
            lds_.append(t_ + f's_mov_b64 exec, -1\nL_ng{i}:')
        poll('L_px', lds_, [G+4*k+3 for k in range(8)], 8)
        for i in range(2):
            A(masked(i, 'L_nw'))
            for w in range(4): A(f'ds_write_b64 {v(vXA)}, {v(G+16*i+4*w,2)} offset:{1536*w+1024*i}\nds_write_b32 {v(vXB)}, {v(G+16*i+4*w+2)} offset:{1536*w+1024*i}')
            A(f's_mov_b64 exec, -1\ns_waitcnt lgkmcnt(0)\nL_nw{i}:')
    A(f'v_mov_b32 {v(vT)}, 1\nds_write_b32 {v(vXF)}, {v(vT)} offset:4')
    stamp(4)
    A('L_hb4:')
    A(f'v_mul_u32_u24 {v(vA)}, 12, {v(vLANE)}\nv_add_u32 {v(vA)}, {OCB}, {v(vA)}\nv_mov_b32 {v(vAL)}, {OCB+768}')
    A(f's_lshl_b32 s{sT1}, s{sH}, 3\ns_add_u32 s{sT1}, s{sT1}, s{sJ}\ns_lshl_b32 s{sT1}, s{sT1}, 11\ns_add_u32 s{sT1}, s{sT1}, {OP}')
    Gm = vQ + 16
    r0 = vP
    ml = vT + 4
    def weights():
        A(f'v_max3_f32 {v(ml)}, {v(Gm)}, {v(Gm+2)}, {v(Gm+4)}\nv_max_f32 {v(ml)}, {v(ml)}, {v(Gm+6)}')
        for w in range(4): A(f'v_sub_f32 {v(Gm+2*w)}, {v(Gm+2*w)}, {v(ml)}')
        for w in range(4): A(f'v_exp_f32 {v(Gm+2*w)}, {v(Gm+2*w)}')
        A(f'v_mov_b32 {v(r0+3)}, {v(vTAG)}\nv_mov_b32 {v(ml+3)}, {v(vTAG)}\nv_mov_b32 {v(ml+2)}, {v(vTAG)}')
        A(f'v_mul_f32 {v(ml+1)}, {v(Gm)}, {v(Gm+1)}')
        for w in range(1, 4): A(f'v_fmac_f32 {v(ml+1)}, {v(Gm+2*w)}, {v(Gm+2*w+1)}')
    if lred:
        A(f'v_mov_b32 {v(vXF)}, {FLG+8}')
        hwait(29, 'L_hw2', 8)
        for w in range(4): A(f'ds_read_b64 {v(Gm+2*w,2)}, {v(vAL)} offset:{1024*w}')
        A('s_waitcnt lgkmcnt(0)')
        weights()
        for w in range(1, 4): A(f'v_add_u32 {v(vQ+4+w)}, {1024*w}, {v(vA)}')
        A('s_barrier')
        stamp(5)
        for w in range(4):
            a_ = vA if w == 0 else vQ+4+w
            A(f'ds_read2_b32 {v(vF+4*w,2)}, {v(a_)} offset0:0 offset1:1\nds_read_b32 {v(vF+4*w+2)}, {v(a_)} offset:8')
    else:
        A('s_barrier')
        stamp(5)
        for w in range(4): A(f'ds_read_b64 {v(Gm+2*w,2)}, {v(vAL)} offset:{1024*w}')
        for w in range(4):
            A(f'ds_read2_b32 {v(vF+4*w,2)}, {v(vA)} offset0:0 offset1:1\nds_read_b32 {v(vF+4*w+2)}, {v(vA)} offset:8')
            if w < 3: A(f'v_add_u32 {v(vA)}, 1024, {v(vA)}')
        A('s_waitcnt lgkmcnt(8)')
        weights()
    A('s_waitcnt lgkmcnt(0)')
    for k in range(3): A(f'v_mul_f32 {v(r0+k)}, {v(Gm)}, {v(vF+k)}')
    for w in range(1, 4):
        for k in range(3): A(f'v_fmac_f32 {v(r0+k)}, {v(Gm+2*w)}, {v(vF+4*w+k)}')
    A(f'buffer_store_dwordx4 {v(r0,4)}, {v(vL16)}, {srd(rWS)}, s{sT1} offen sc1')
    A(f's_mov_b64 exec, 1\nbuffer_store_dwordx4 {v(ml,4)}, {v(vL16)}, {srd(rWS)}, s{sT1} offen offset:1024 sc1\ns_mov_b64 exec, -1')
    if hb5: A(f's_cmp_ge_u32 s{sJ}, 5\ns_cbranch_scc1 L_hnb5\ns_barrier\nL_hnb5:')
    A(f's_cmp_eq_u32 s{sHASW1}, 0\ns_cbranch_scc1 L_hdone')
    if blate:
        b_publish()
        b_gather()
    G = vW
    if y8:
        mky = lambda b: [f'buffer_load_dwordx2 {v(b+4*p+2,2)}, {v(vG8)}, {srd(rWS)}, s{rK+p} offen sc1' for p in range(8)]
        def usey(b):
            for p in range(4):
                A(f'v_lshlrev_b32 {v(G+2*p)}, 16, {v(b+8*p+2)}\nv_and_b32 {v(G+2*p+1)}, 0xffff0000, {v(b+8*p+2)}\nv_lshlrev_b32 {v(G+8)}, 16, {v(b+8*p+6)}\nv_and_b32 {v(G+9)}, 0xffff0000, {v(b+8*p+6)}')
                A(f'v_add_f32 {v(G+2*p)}, {v(G+2*p)}, {v(G+8)}\nv_add_f32 {v(G+2*p+1)}, {v(G+2*p+1)}, {v(G+9)}')
    else:
        mky = lambda b: [wsload(b+4*p, vG4, rK+p) for p in range(8)]
        def usey(b):
            for k in range(2):
                for p in range(4): A(f'v_add_f32 {v(G+2*p+k)}, {v(b+8*p+k)}, {v(b+8*p+4+k)}')
    if py: poll2('L_py', mky, 8, vF+16, vO, 6, py, usey)
    else:
        (polls if sel & 2 else poll)('L_py', mky(vF+16), [vF+16+4*p+3 for p in range(8)], 6)
        usey(vF+16)
    stamp(6)
    for k in range(2):
        A(f'v_add_f32 {v(G+k)}, {v(G+k)}, {v(G+2+k)}\nv_add_f32 {v(G+4+k)}, {v(G+4+k)}, {v(G+6+k)}\nv_add_f32 {v(G+k)}, {v(G+k)}, {v(G+4+k)}')
    for k in range(2): xsum(G+k, vT+k, full=False)
    rnd2(G, G+1, vT)
    A(f'v_mul_f32 {v(G)}, {v(G)}, {v(vG0)}\nv_mul_f32 {v(G+1)}, {v(G+1)}, {v(vG1)}')
    rnd2(G, G+1, vT)
    if perturb:
        A(f's_cmp_eq_u32 s{sU2}, 0\ns_cselect_b32 s{sT0}, {f2u(perturb/1000):#x}, 0\ns_mov_b64 exec, 1\nv_add_f32 {v(vX0)}, s{sT0}, {v(vX0)}\ns_mov_b64 exec, -1')
    if pall: A(f'v_mul_f32 {v(G)}, {f2u(1+pall/1000):#x}, {v(G)}\nv_mul_f32 {v(G+1)}, {f2u(1+pall/1000):#x}, {v(G+1)}')
    A(f'v_add_f32 {v(G)}, {v(G)}, {v(vX0)}\nv_add_f32 {v(G+1)}, {v(G+1)}, {v(vX1)}\nv_cvt_pk_bf16_f32 {v(G)}, {v(G)}, {v(G+1)}')
    A(f's_mov_b64 exec, 0xffff\nglobal_store_short {v(vXO)}, {v(G)}, {sp(sOUT)}\nglobal_store_short_d16_hi {v(vXO)}, {v(G)}, {sp(sOUT)} offset:32')
    A(f's_cmp_lg_u32 s{sU2}, 0\ns_cbranch_scc1 L_hdone')
    A(f's_mov_b64 exec, 1\nv_mov_b32 {v(vT)}, 0\nglobal_store_dword {v(vT)}, {v(vTAG)}, {sp(sWS)} sc1')
    A('L_hdone:')
    if stamps:
        A('s_waitcnt vmcnt(0)')
        stamp(7)
        write_stamps(256, 'h')
    A('L_end:\ns_endpgm')
    A(f'''.section .rodata,"a"
.p2align 6
.amdhsa_kernel {NAME}_kernel
  .amdhsa_next_free_vgpr {NV}
  .amdhsa_next_free_sgpr 100
  .amdhsa_accum_offset {NV}
  .amdhsa_group_segment_fixed_size 0
  .amdhsa_kernarg_size 96
  .amdhsa_user_sgpr_count 2
  .amdhsa_user_sgpr_kernarg_segment_ptr 1
  .amdhsa_system_sgpr_workgroup_id_x 1
  .amdhsa_float_denorm_mode_32 3
.end_amdhsa_kernel''')
    open(fn, 'w').write('\n'.join(L) + '\n')

if __name__ == '__main__':
    fn = sys.argv[1]
    kw = {}
    for a in sys.argv[2:]:
        k, val = a.split('=')
        try: val = int(val)
        except ValueError: val = val.replace('+', ' ').replace('def', '')
        kw[k] = val
    gen(fn, **kw)
```

```python
import sys, os, struct
NAME = 'recurrent_scan__gqa_block_cached__glu_gated_reglu__decode'

HEADER = '''; Kernarg layout (96 bytes, pointers only, base s[0:1]), everything bf16:
;
'''

def f2u(x): return struct.unpack('<I', struct.pack('<f', x))[0]

def gen(fn, stamps=False, pace=8, up=4, mapping='x', kvil=False, twostage=False, spin=1<<15, knt='nt', vnt='nt', w1nt='nt', w2nt='nt', sleep=0, fixdur=0, D=7, nomem=0, now=0, nopoll=0, nocomp=0, pre=1, force=-1, cap=400, thr=100, noex=0, sync=1, skipx=1, hsl=2, gat=26, perturb=0, pall=0, lead=0, bal=5, gain=15, dead=20, kmax=10, bneg=0, cps='23.34', cgap=3, lastneg=0, ofl='', prio=0, nosleep=1, y8=0, rot=2, rmul=1, umap=1, gord=2, w1sw=1, wearly=2, hb5=1, xtra=-1, sel=0, lpipe=0, lmask=31, fb=26, blate=1, pubt=23, htouch=0, otouch=0, nonuma=0, al=1, glate=1, touch=0, late=0, lred=1, pq=0, po=0, py=0, inl=1, nend=4, Dend=18, dbgv=0, stfl='sc1', slfl='sc1'):
    L = []
    cpl = [int(x) for x in str(cps).split('.')]
    def A(s):
        for ln in s.strip('\n').split('\n'):
            L.append(ln.strip())
    SLOT = 9216; RING = 2*SLOT; WT = 12288
    WREG = 4*RING
    MISC = WREG + 4*WT
    XN = MISC; OBF = MISC
    RED = MISC + 1536
    OCB = RED + 8192
    QL = RED + 12288
    HL = QL + 384
    FLG = HL + 768
    STG = FLG + 64
    LDS = 147456
    assert STG + 6144 <= LDS
    P1 = 0x1000; OP = 0x100000; YP = 0x200000; BP = 0x300000; VOTE = 0x3F0000; GO = 0x3F8000; TS = 0x3E0000; SCO = 0x400000; WSZ = 0x600000
    TAGC = 0x9E3779B9
    sX, sK, sV, sWQ, sWO, sWG, sWU, sWD, sOUT, sDBG, sWS = 4, 6, 8, 10, 12, 16, 18, 20, 22, 24, 26
    rK, rV, rW1, rW2, rWS = 28, 32, 36, 40, 44
    sWAVE, sH, sJ, sB, sHALF = 48, 49, 50, 51, 52
    sBETA, sPI, sHASW1, sRS = 53, 54, 55, 56
    sSLA, sSLB, sSLC = 57, 58, 59
    sOFF, sT, sCNT = 60, 61, 62
    sSC, sL2E = 63, 64
    sT0, sT1, sT2, sT3 = 65, 66, 67, 68
    sU2, sR, sCB, sRB, sSLC2 = 69, 70, 71, 72, 73
    sN0, sN1, sFLV, sFL = 70, 71, 72, 73
    sU, sPUB, sNEG, sVB = 14, 15, 34, 32
    sRHO = 3
    sXD, sXS = 92, 93
    sCM = 94
    sSTG = 35
    sU0 = 96
    sP = 74
    sST = 76
    def srd(r): return f's[{r}:{r+3}]'
    def sp(r): return f's[{r}:{r+1}]'
    vLANE, vL16, vTAG, vKA0, vVA0, vA, vM, vML, vLS, vAL = 1, 2, 3, 4, 5, 6, 7, 8, 9, 10
    vT = 12
    vS = 28
    vP = 36
    vQ = 40
    vF = 64
    vO = 112
    vW = 160
    vR = 208
    vM2B, vM2X, vM3, vSK, vSV, vFA, vONE, vPA = range(212, 220)
    vSRC = 220
    vKB = 224
    vVB = 228
    vAD = 236
    NV = 244
    def v(r, n=1): return f'v{r}' if n == 1 else f'v[{r}:{r+n-1}]'
    inhelper = [False]
    def pstamp(i):
        if stamps == 3: A(f's_memrealtime {sp(sST+2*i)}\ns_waitcnt lgkmcnt(0)')
    def qstamp(i):
        if stamps == 4: A(f's_memrealtime {sp(sST+2*i)}\ns_waitcnt lgkmcnt(0)')
    def stamp(i):
        if stamps in (3, 4) and i < 7 and not inhelper[0]: return
        if stamps == 5 and inhelper[0] and i in (3, 4): return
        if stamps:
            A(f's_memrealtime {sp(sST+2*i)}\ns_waitcnt lgkmcnt(0)')
    def write_stamps(rec_base, lbl):
        if not stamps: return
        A(f's_lshl_b32 s{sT0}, s2, 6\ns_add_u32 s{sT0}, s{sT0}, {0x20000000 + rec_base*64}')
        A(f's_add_u32 s{sP}, s{sWS}, s{sT0}\ns_addc_u32 s{sP+1}, s{sWS+1}, 0')
        A(f's_mov_b64 exec, 1\nv_mov_b32 {v(vA)}, 0')
        for i in range(4):
            for k in range(4): A(f'v_mov_b32 {v(vT+k)}, s{sST+4*i+k}')
            A(f'global_store_dwordx4 {v(vA)}, {v(vT,4)}, {sp(sP)} offset:{16*i}\ns_nop 1')
    def xsum(r, t, op='v_add_f32', full=True):
        if full:
            for mode in ['quad_perm:[1,0,3,2]', 'quad_perm:[2,3,0,1]', 'row_half_mirror', 'row_mirror']:
                A(f's_nop 1\n{op}_dpp {v(r)}, {v(r)}, {v(r)} {mode} row_mask:0xf bank_mask:0xf')
        for sw in ['v_permlane16_swap_b32', 'v_permlane32_swap_b32']:
            A(f'v_mov_b32 {v(t)}, {v(r)}\ns_nop 1\n{sw} {v(r)}, {v(t)}\n{op} {v(r)}, {v(r)}, {v(t)}')
    def rnd(r, t):
        A(f'v_cvt_pk_bf16_f32 {v(t)}, {v(r)}, {v(r)}\nv_lshlrev_b32 {v(r)}, 16, {v(t)}')
    def rnd2(r0, r1, t):
        A(f'v_cvt_pk_bf16_f32 {v(t)}, {v(r0)}, {v(r1)}\nv_lshlrev_b32 {v(r0)}, 16, {v(t)}\nv_and_b32 {v(r1)}, 0xffff0000, {v(t)}')
    def dma_tile(soff, sslot, paced=None, lo=0, hi=9, fl='nt'):
        for i in range(lo, hi):
            A(f's_add_u32 m0, s{sslot}, {1024*i}')
            if i == lo or i % 3 == 0: A(f's_add_u32 s{sT0}, s{soff}, {3072*(i//3)}')
            elif not paced: A('s_nop 0')
            if paced: A(f's_waitcnt vmcnt({paced-1})')
            A(f'buffer_load_dwordx4 {v(vSRC+i%3)}, {srd(rK)}, s{sT0} offen {fl} lds')
    def rot3(dst, tmp):
        A(f's_lshr_b32 s{dst}, s{sRHO}, {rot}')
        if rmul != 1: A(f's_mul_i32 s{dst}, s{dst}, {rmul}')
        A(f's_mul_i32 s{tmp}, s{dst}, 43691\ns_lshr_b32 s{tmp}, s{tmp}, 17\ns_mul_i32 s{tmp}, s{tmp}, 3\ns_sub_u32 s{dst}, s{dst}, s{tmp}')
    def block_params(default, sn):
        if default == 1: A(f's_cmp_eq_u32 s{sHALF}, 1')
        else: A(f's_bitcmp1_b64 {sp(sCM)}, s{sT}')
        A(f's_addc_u32 s{sT1}, s{sU}, s{sU}\ns_lshl_b32 s{sT1}, s{sT1}, 6\ns_add_u32 s{sT2}, s{sT1}, 65\ns_add_u32 s{sT1}, s{sT1}, 1')
        A(f's_mul_i32 s{sT1}, s{sT1}, 43691\ns_mul_i32 s{sT2}, s{sT2}, 43691\ns_lshr_b32 s{sT1}, s{sT1}, 17\ns_lshr_b32 s{sT2}, s{sT2}, 17')
        A(f's_mul_i32 s{sOFF}, s{sT1}, 384\ns_sub_u32 s{sT1}, s{sT2}, s{sT1}\ns_mul_i32 s{sT2}, s{sT2}, 384\ns_min_u32 s{rK+2}, s{sT2}, {0 if nomem else 1572864}')
        if default == 2: A(f's_cmp_ge_u32 s{sT}, 46\ns_cselect_b32 s{rK+2}, 0, s{rK+2}')
        else: A(f's_cmp_eq_u32 s{sT1}, 22\ns_cselect_b32 s{sn}, -1, 0')
        if umap: A(f's_bitcmp1_b32 s{sU}, 0\ns_cselect_b32 s{sT1}, 7, 1\ns_add_u32 s{sU}, s{sU}, s{sT1}')
        else: A(f's_add_u32 s{sU}, s{sU}, 4')
        if rot >= 0: A(f's_cmp_ge_u32 s{sU}, 96\ns_cselect_b32 s{sT1}, 96, 0\ns_sub_u32 s{sU}, s{sU}, s{sT1}')
    def poll(lbl, loads, tagregs, code):
        A(f's_mov_b32 s{sCNT}, {spin}\n{lbl}:')
        for x in loads: A(x)
        A('s_waitcnt vmcnt(0)')
        A(f'v_xor_b32 {v(vT)}, {v(tagregs[0])}, {v(vTAG)}')
        for r in tagregs[1:]:
            A(f'v_xor_b32 {v(vT+1)}, {v(r)}, {v(vTAG)}\nv_or_b32 {v(vT)}, {v(vT)}, {v(vT+1)}')
        if (nopoll and lbl != 'L_pq') or (noex and lbl == 'L_px'): A(f's_branch {lbl}_ok')
        A(f'v_cmp_ne_u32 vcc, 0, {v(vT)}\ns_cbranch_vccz {lbl}_ok')
        if sleep: A(f's_sleep {sleep}')
        A(f's_sub_u32 s{sCNT}, s{sCNT}, 1\ns_cmp_lg_u32 s{sCNT}, 0\ns_cbranch_scc1 {lbl}')
        A(f'v_mov_b32 {v(vT)}, 0\nv_mov_b32 {v(vT+1)}, {code}\nglobal_store_dword {v(vT)}, {v(vT+1)}, {sp(sDBG)}')
        A(f'{lbl}_ok:')
    def polls(lbl, loads, tagregs, code):
        A(f's_mov_b32 s{sCNT}, {spin}')
        for x in loads: A(x)
        A(f'{lbl}:\ns_waitcnt vmcnt(0)\ns_mov_b32 s{sT3}, 0')
        for k, (x, r) in enumerate(zip(loads, tagregs)):
            A(f'v_cmp_ne_u32 vcc, {v(r)}, {v(vTAG)}\ns_cbranch_vccz {lbl}_s{k}\ns_mov_b64 exec, vcc')
            A(x)
            A(f's_mov_b64 exec, -1\ns_mov_b32 s{sT3}, 1\n{lbl}_s{k}:')
        A(f's_cmp_eq_u32 s{sT3}, 0\ns_cbranch_scc1 {lbl}_ok')
        A(f's_sub_u32 s{sCNT}, s{sCNT}, 1\ns_cmp_lg_u32 s{sCNT}, 0\ns_cbranch_scc1 {lbl}')
        A(f'v_mov_b32 {v(vT)}, 0\nv_mov_b32 {v(vT+1)}, {code}\nglobal_store_dword {v(vT)}, {v(vT+1)}, {sp(sDBG)}\ns_waitcnt vmcnt(0)')
        A(f'{lbl}_ok:')
    def poll2(lbl, mk, n, base, alt, code, delay, use):
        def check(b, ok):
            A(f's_waitcnt vmcnt({n})')
            A(f'v_xor_b32 {v(vT)}, {v(b+3)}, {v(vTAG)}')
            for k in range(1, n): A(f'v_xor_b32 {v(vT+1)}, {v(b+4*k+3)}, {v(vTAG)}\nv_or_b32 {v(vT)}, {v(vT)}, {v(vT+1)}')
            A(f'v_cmp_ne_u32 vcc, 0, {v(vT)}\ns_cbranch_vccz {ok}')
        A(f's_mov_b32 s{sCNT}, {spin}')
        for x in mk(base): A(x)
        A(f's_sleep {delay}\n{lbl}:')
        for x in mk(alt): A(x)
        check(base, f'{lbl}_ok')
        for x in mk(base): A(x)
        check(alt, f'{lbl}_okb')
        A(f's_sub_u32 s{sCNT}, s{sCNT}, 1\ns_cmp_lg_u32 s{sCNT}, 0\ns_cbranch_scc1 {lbl}')
        A(f'v_mov_b32 {v(vT)}, 0\nv_mov_b32 {v(vT+1)}, {code}\nglobal_store_dword {v(vT)}, {v(vT+1)}, {sp(sDBG)}')
        A(f'{lbl}_okb:')
        use(alt)
        A(f's_branch {lbl}_done\n{lbl}_ok:')
        use(base)
        A(f'{lbl}_done:')
    def wsload(dst, voff, soff): return f'buffer_load_dwordx4 {v(dst,4)}, {v(voff)}, {srd(rWS)}, s{soff} offen sc1'
    def put3_bf16(r0, t, va):
        A(f'v_cvt_pk_bf16_f32 {v(t)}, {v(r0)}, {v(r0+1)}\nv_cvt_pk_bf16_f32 {v(t+1)}, {v(r0+2)}, {v(r0+2)}')
        A(f'ds_write_b16 {v(va)}, {v(t)}\nds_write_b16_d16_hi {v(va)}, {v(t)} offset:2\nds_write_b16 {v(va)}, {v(t+1)} offset:4')
    def fdiv(q, n, d, r, e):
        A(f'v_mul_f32 {v(q)}, {v(n)}, {v(r)}\nv_fma_f32 {v(e)}, -{v(q)}, {v(d)}, {v(n)}\nv_fma_f32 {v(q)}, {v(e)}, {v(r)}, {v(q)}')
    def trread_mfma(ntile, va, off2, acc, first, frag, aop, va2=None, extra=None):
        def rd(t):
            if va2 is None:
                A(f'ds_read_b64_tr_b16 {v(frag+4*t,2)}, {v(va)} offset:{32*t}')
                A(f'ds_read_b64_tr_b16 {v(frag+4*t+2,2)}, {v(va)} offset:{32*t+off2}')
            else:
                A(f'ds_read_b64_tr_b16 {v(frag+4*t,2)}, {v(va+(t&3))} offset:{128*(t>>2)}')
                A(f'ds_read_b64_tr_b16 {v(frag+4*t+2,2)}, {v(va2+(t&3))} offset:{128*(t>>2)}')
        pre = min(4, ntile)
        for t in range(pre): rd(t)
        for t in range(ntile):
            if t + pre < ntile: rd(t + pre)
            if extra and t + pre == ntile - 1: A(extra)
            left = min(ntile - 1, t + pre) - t
            A(f's_waitcnt lgkmcnt({2*left + (1 if extra and t + pre >= ntile - 1 else 0)})')
            c = '0' if first else v(acc+4*t, 4)
            A(f'v_mfma_f32_16x16x32_bf16 {v(acc+4*t,4)}, {v(aop,4)}, {v(frag+4*t,4)}, {c}')

    A(HEADER)
    A(f'; @launch grid=(256,1,1) block=(320,1,1) lds={LDS}')
    A('.amdgcn_target "amdgcn-amd-amdhsa--gfx950"\n.text')
    if al: A('.p2align 12')
    A(f'.globl {NAME}_kernel\n.p2align 8\n.type {NAME}_kernel,@function\n{NAME}_kernel:')
    A('s_cmp_ge_u32 s2, 256\ns_cbranch_scc1 L_end')
    A('s_load_dwordx16 s[4:19], s[0:1], 0\ns_load_dwordx8 s[20:27], s[0:1], 64')
    if fixdur: A('s_memrealtime s[96:97]')
    if stamps:
        A(f's_memrealtime {sp(sST)}')
        for i in range(2, 16): A(f's_mov_b32 s{sST+i}, 0')
    A(f'v_lshrrev_b32 {v(vT)}, 6, v0\nv_and_b32 {v(vLANE)}, 63, v0')
    A(f'v_readfirstlane_b32 s{sWAVE}, {v(vT)}')
    A(f'v_lshlrev_b32 {v(vL16)}, 4, {v(vLANE)}')
    A(f's_lshr_b32 s{sT0}, s2, 3\ns_lshl_b32 s{sT0}, s{sT0}, 2\ns_and_b32 s{sT1}, s2, 3\ns_add_u32 s{sRHO}, s{sT0}, s{sT1}')
    A(f's_bfe_u32 s{sHALF}, s2, 0x10002\ns_lshr_b32 s{sB}, s{sRHO}, 5\ns_and_b32 s{sH}, s{sRHO}, 31\ns_lshl_b32 s{sJ}, s{sB}, 1\ns_add_u32 s{sJ}, s{sJ}, s{sHALF}')
    A(f's_mul_i32 s{sU2}, s{sH}, 3\ns_add_u32 s{sU2}, s{sU2}, s{sJ}')
    A(f's_mov_b32 s{sSC}, {f2u(192**-0.5):#x}\ns_mov_b32 s{sL2E}, {f2u(1.4426950408889634):#x}')
    def ws_srd():
        A(f's_mov_b32 s{rWS}, s{sWS}\ns_mov_b32 s{rWS+1}, s{sWS+1}')
    A(f's_mov_b32 s{rWS+2}, {WSZ}\ns_mov_b32 s{rWS+3}, 0x20000')
    def vote_slot(src, sidx, sslot):
        A(f's_mul_i32 s{sidx}, s{src}, 3\ns_lshr_b32 s{sidx}, s{sidx}, 5\ns_lshl_b32 s{sslot}, s{sidx}, 5\ns_add_u32 s{sslot}, s{sslot}, 2\ns_mul_i32 s{sslot}, s{sslot}, 43691\ns_lshr_b32 s{sslot}, s{sslot}, 17\ns_sub_u32 s{sslot}, s{src}, s{sslot}')
    sIDX, sSLT = 40, 41
    A(f's_cmp_eq_u32 s{sWAVE}, 4\ns_cbranch_scc0 L_noprobe')
    if prio: A(f's_setprio {prio}')
    vote_slot(2, sIDX, sSLT)
    A(f's_cmp_ge_u32 s{sIDX}, 12\ns_cselect_b32 s{sT0}, 12, 0\ns_sub_u32 s{sT0}, s{sIDX}, s{sT0}')
    A(f's_lshl_b32 s{sT0}, s{sT0}, 3\ns_and_b32 s{sT1}, s{sSLT}, 7\ns_add_u32 s{sT0}, s{sT0}, s{sT1}\ns_lshl_b32 s{sT0}, s{sT0}, 21')
    A(f's_lshr_b32 s{sT1}, s{sSLT}, 3\ns_lshl_b32 s{sT1}, s{sT1}, 12\nv_mov_b32 {v(vT+4)}, 0\ns_mov_b64 exec, 1\ns_cmp_ge_u32 s{sIDX}, 12')
    A('s_waitcnt lgkmcnt(0)')
    A(f's_cselect_b32 s{sP}, s{sV}, s{sK}\ns_cselect_b32 s{sP+1}, s{sV+1}, s{sK+1}\ns_add_u32 s{sP}, s{sP}, s{sT0}\ns_addc_u32 s{sP+1}, s{sP+1}, 0')
    A(f's_bfe_u32 s{sT0}, s{sP}, 0x10015\ns_lshl_b32 s{sT0}, s{sT0}, 13\ns_add_u32 s{sT0}, s{sT0}, s{sT1}')
    A(f'v_mov_b32 {v(vT)}, s{sT0}\nv_xor_b32 {v(vT+1)}, 0x2000, {v(vT)}')
    A(f'global_load_dword {v(vT+2)}, {v(vT)}, {sp(sP)} nt\nglobal_load_dword {v(vT+3)}, {v(vT+1)}, {sp(sP)} nt\ns_mov_b64 exec, -1')
    if gord == 2: A(f'global_load_dword {v(vTAG)}, {v(vT+4)}, {sp(sWS)} sc1')
    A('s_barrier')
    ws_srd()
    e_ = 1 if gord == 2 else 0
    A(f's_waitcnt vmcnt({1+e_})\ns_memtime s[36:37]\ns_waitcnt vmcnt({e_})\ns_memtime s[38:39]')
    if gord != 2: A(f'global_load_dword {v(vTAG)}, {v(vT+4)}, {sp(sWS)} sc1')
    A('s_branch L_helper\nL_noprobe:')

    sO1, sO2, sOK = sN0, sN1, sFLV
    A(f's_cmp_ge_u32 s{sJ}, 3\ns_cbranch_scc0 L_w1mlp')
    A(f's_mov_b32 s{sBETA}, s{sH}\ns_sub_u32 s{sPI}, s{sJ}, 3\ns_mov_b32 s{sRS}, 12288\ns_mov_b32 s{sHASW1}, 1\ns_mul_i32 s{sO1}, s{sH}, 384')
    A('s_branch L_w1done\nL_w1mlp:')
    A(f's_mul_i32 s{sT1}, s{sU2}, 52429\ns_lshr_b32 s{sT1}, s{sT1}, 18')
    A(f's_mul_i32 s{sT2}, s{sT1}, 5\ns_sub_u32 s{sPI}, s{sU2}, s{sT2}\ns_add_u32 s{sBETA}, s{sT1}, 32\ns_mov_b32 s{sRS}, 3072')
    A(f's_cmp_lt_u32 s{sU2}, 80\ns_cselect_b32 s{sHASW1}, 1, 0\ns_and_b32 s{sT1}, s{sT1}, 7\ns_mul_i32 s{sO1}, s{sT1}, 384')
    A('L_w1done:')
    A(f's_lshl_b32 s{sT1}, s{sPI}, 2\ns_add_u32 s{sT1}, s{sT1}, s{sWAVE}\ns_lshl_b32 s{sT1}, s{sT1}, 5\ns_mul_i32 s{sT1}, s{sT1}, s{sRS}\ns_add_u32 s{sO1}, s{sO1}, s{sT1}')
    A(f's_mul_i32 s{sT1}, s{sRS}, 31\ns_add_u32 s{sT1}, s{sT1}, 384\ns_mul_i32 s{rW1+2}, s{sT1}, s{sHASW1}\ns_mov_b32 s{rW1+3}, 0x20000')
    if now: A(f's_mov_b32 s{rW1+2}, 0')
    for p in range(3):
        A(f'v_add_u32 {v(vT)}, {64*p}, {v(vLANE)}\nv_mul_u32_u24 {v(vT+1)}, 2731, {v(vT)}\nv_lshrrev_b32 {v(vT+1)}, 16, {v(vT+1)}')
        A(f'v_mul_u32_u24 {v(vT+2)}, 24, {v(vT+1)}\nv_sub_u32 {v(vT)}, {v(vT)}, {v(vT+2)}\nv_lshlrev_b32 {v(vT)}, 4, {v(vT)}')
        if not w1sw: A(f'v_mad_u32_u24 {v(vS+p)}, {v(vT+1)}, s{sRS}, {v(vT)}')
        A(f'v_and_b32 {v(vT+3)}, 6, {v(vT+1)}\nv_lshlrev_b32 {v(vT+3)}, 4, {v(vT+3)}\nv_xor_b32 {v(vT)}, {v(vT)}, {v(vT+3)}\nv_lshl_add_u32 {v(vSRC+p)}, {v(vT+2)}, 4, {v(vT)}')
        if w1sw: A(f'v_mad_u32_u24 {v(vS+p)}, {v(vT+1)}, s{sRS}, {v(vT)}')
    A(f's_mul_i32 s{sSLA}, s{sWAVE}, {RING}\ns_add_u32 s{sSLB}, s{sSLA}, {SLOT}\ns_mul_i32 s{sSLC}, s{sWAVE}, {WT}\ns_add_u32 s{sSLC}, s{sSLC}, {WREG}')
    A(f's_mul_i32 s{sT0}, s{sWAVE}, 1280\nv_lshlrev_b32 {v(vA)}, 2, {v(vLANE)}\nv_add_u32 {v(vA)}, s{sT0}, {v(vA)}\ns_mul_i32 s{sOK}, s{sRHO}, 1572864')
    A(f's_cmp_lt_u32 s{sBETA}, 40')
    A('s_waitcnt lgkmcnt(0)')
    pstamp(1)
    if stamps == 3: A(f's_cmp_lt_u32 s{sBETA}, 40')
    A(f's_cselect_b32 s{rW1}, s{sWG}, s{sWU}\ns_cselect_b32 s{rW1+1}, s{sWG+1}, s{sWU+1}\ns_cmp_lt_u32 s{sBETA}, 32\ns_cselect_b32 s{rW1}, s{sWQ}, s{rW1}\ns_cselect_b32 s{rW1+1}, s{sWQ+1}, s{rW1+1}')
    A(f's_add_u32 s{rW1}, s{rW1}, s{sO1}\ns_addc_u32 s{rW1+1}, s{rW1+1}, 0')
    if touch:
        A(f's_load_dword s96, {sp(rW1)}, 0\ns_load_dword s97, {sp(sX)}, 0\ns_load_dword s98, {sp(sK)}, s{sOK}')
    A('s_barrier')
    pstamp(2)
    for k in range(5): A(f'global_load_dword {v(vF+k)}, {v(vA)}, {sp(sX)} offset:{256*k}')
    def w1_issue():
        A(f's_lshl_b32 s{sT2}, s{sRS}, 3\ns_mov_b32 s{sT1}, 0')
        for i in range(12):
            A(f's_add_u32 m0, s{sSLC}, {1024*i}')
            A(f's_add_u32 s{sT1}, s{sT1}, s{sT2}' if i and i % 3 == 0 else 's_nop 0')
            A(f'buffer_load_dwordx4 {v(vS+i%3)}, {srd(rW1)}, s{sT1} offen {w1nt} lds')
    if late:
        assert up == 0
        A(f's_cmp_ge_u32 s{sJ}, 3\ns_cbranch_scc0 L_w1late')
    w1_issue()
    if late: A('L_w1late:')
    A(f'v_mov_b32 {v(vT)}, 0\nglobal_load_dword {v(vTAG)}, {v(vT)}, {sp(sWS)} sc1')
    pstamp(3)
    ws_srd()
    A(f's_add_u32 s{rK}, s{sK}, s{sOK}\ns_addc_u32 s{rK+1}, s{sK+1}, 0\ns_mov_b32 s{rK+3}, 0x20000')
    A(f's_add_u32 s{sVB}, s{sV}, s{sOK}\ns_addc_u32 s{sVB+1}, s{sV+1}, 0')
    A(f's_lshl_b32 s{sU}, s{sWAVE}, {umap}')
    if rot >= 0:
        rot3(sT1, sT2)
        A(f's_lshl_b32 s{sT1}, s{sT1}, 5\ns_add_u32 s{sU}, s{sU}, s{sT1}')
    A(f's_mov_b32 s{sU0}, s{sU}')
    block_params(1, sN0)
    dma_tile(sOFF, sSLA, None, 0, up, knt)
    A(f's_cmp_lt_u32 s{sJ}, 5\ns_cbranch_scc0 L_w2down')
    A(f's_mul_i32 s{sT1}, s{sH}, {192*1280}\ns_lshl_b32 s{sT2}, s{sJ}, 8\ns_add_u32 s{sT1}, s{sT1}, s{sT2}')
    A(f's_add_u32 s{rW2}, s{sWO}, s{sT1}\ns_addc_u32 s{rW2+1}, s{sWO+1}, 0\ns_mov_b32 s{rW2+2}, {47*1280+256}\ns_branch L_w2done')
    A('L_w2down:')
    A(f's_sub_u32 s{sT3}, s{sU2}, 5\ns_mul_i32 s{sT1}, s{sT3}, 52429\ns_lshr_b32 s{sT1}, s{sT1}, 18\ns_mul_i32 s{sT2}, s{sT1}, 5\ns_sub_u32 s{sT2}, s{sT3}, s{sT2}')
    A(f's_mul_i32 s{sT1}, s{sT1}, {96*1280}\ns_lshl_b32 s{sT2}, s{sT2}, 8\ns_add_u32 s{sT1}, s{sT1}, s{sT2}')
    A(f's_add_u32 s{rW2}, s{sWD}, s{sT1}\ns_addc_u32 s{rW2+1}, s{sWD+1}, 0')
    A(f's_cmp_lt_u32 s{sT3}, 80\ns_cselect_b32 s{rW2+2}, {47*1280+256}, 0\ns_cmp_lt_u32 s{sWAVE}, 2\ns_cselect_b32 s{rW2+2}, s{rW2+2}, 0')
    A('L_w2done:')
    A(f's_mul_i32 s{sT1}, s{sWAVE}, {48*1280}\ns_add_u32 s{rW2}, s{rW2}, s{sT1}\ns_addc_u32 s{rW2+1}, s{rW2+1}, 0\ns_mov_b32 s{rW2+3}, 0x20000')
    if now: A(f's_mov_b32 s{rW2+2}, 0')
    def vbases(hf):
        A(f'v_lshrrev_b32 {v(vT)}, 2, {v(vLANE)}')
        if hf: A(f'v_min_u32 {v(vT)}, 5, {v(vT)}\nv_add_u32 {v(vT)}, 16, {v(vT)}')
        A(f'v_bfe_u32 {v(vT+2)}, {v(vT)}, 1, 2\nv_mul_u32_u24 {v(vT)}, 384, {v(vT)}\nv_and_b32 {v(vT+3)}, 3, {v(vLANE)}\nv_lshl_add_u32 {v(vT)}, {v(vT+3)}, 3, {v(vT)}')
        for k in range(4): A(f'v_xor_b32 {v(vT+3)}, {k}, {v(vT+2)}\nv_lshl_add_u32 {v(vVB+4*hf+k)}, {v(vT+3)}, 5, {v(vT)}')
    if w1sw:
        vbases(0)
        for k in range(4): A(f'v_add_u32 {v(vAD+k)}, s{sSLC}, {v(vVB+k)}\nv_add_u32 {v(vAD+4+k)}, 6144, {v(vAD+k)}')
    if not w1sw: A(f'v_lshrrev_b32 {v(vT)}, 2, {v(vLANE)}\nv_mul_u32_u24 {v(vT)}, 384, {v(vT)}\nv_and_b32 {v(vT+1)}, 3, {v(vLANE)}\nv_lshl_add_u32 {v(vVA0)}, {v(vT+1)}, 3, {v(vT)}')
    if late:
        A(f's_cmp_ge_u32 s{sJ}, 3\ns_cbranch_scc1 L_xw\ns_waitcnt vmcnt(0)\nL_xw:')
    A(f's_waitcnt vmcnt({1+12+up})')
    pstamp(4)
    X = vF + 8
    for k in range(5):
        A(f'v_lshlrev_b32 {v(X+2*k)}, 16, {v(vF+k)}\nv_and_b32 {v(X+2*k+1)}, 0xffff0000, {v(vF+k)}')
    a = vT
    A(f'v_add_f32 {v(a)}, {v(X)}, {v(X+1)}')
    for k in range(2, 10): A(f'v_add_f32 {v(a)}, {v(a)}, {v(X+k)}')
    xsum(a, a+1)
    A(f'v_mul_f32 {v(a)}, {f2u(1/640):#x}, {v(a)}')
    b_ = vT+2
    A(f'v_sub_f32 {v(a+1)}, {v(X)}, {v(a)}\nv_mul_f32 {v(b_)}, {v(a+1)}, {v(a+1)}')
    for k in range(1, 10): A(f'v_sub_f32 {v(a+1)}, {v(X+k)}, {v(a)}\nv_fmac_f32 {v(b_)}, {v(a+1)}, {v(a+1)}')
    xsum(b_, a+1)
    A(f'v_mul_f32 {v(b_)}, {f2u(1/640):#x}, {v(b_)}')
    rnd2(a, b_, a+1)
    A(f'v_add_f32 {v(b_)}, {f2u(1e-5):#x}, {v(b_)}')
    rnd(b_, a+1)
    c_ = vT+3
    A(f'v_sqrt_f32 {v(c_)}, {v(b_)}\ns_nop 0\nv_rcp_f32 {v(c_+1)}, {v(c_)}\nv_fma_f32 {v(a+1)}, -{v(c_)}, {v(c_)}, {v(b_)}')
    A(f'v_mul_f32 {v(c_+1)}, 0.5, {v(c_+1)}\nv_fma_f32 {v(c_)}, {v(a+1)}, {v(c_+1)}, {v(c_)}')
    rnd(c_, a+1)
    A(f'v_rcp_f32 {v(c_+1)}, {v(c_)}')
    A(f'v_mov_b32 {v(vT+6)}, {v(X)}\nv_mov_b32 {v(vT+7)}, {v(X+1)}')
    for k in range(1, 5):
        A(f's_cmp_eq_u32 s{sPI}, {k}\ns_cselect_b64 vcc, -1, 0\nv_cndmask_b32 {v(vT+6)}, {v(vT+6)}, {v(X+2*k)}, vcc\nv_cndmask_b32 {v(vT+7)}, {v(vT+7)}, {v(X+2*k+1)}, vcc')
    A(f'v_sub_f32 {v(vT+6)}, {v(vT+6)}, {v(a)}\nv_sub_f32 {v(vT+7)}, {v(vT+7)}, {v(a)}')
    rnd2(vT+6, vT+7, a+1)
    fdiv(vT+8, vT+6, c_, c_+1, a+1)
    fdiv(vT+9, vT+7, c_, c_+1, a+1)
    A(f'v_cvt_pk_bf16_f32 {v(vT+8)}, {v(vT+8)}, {v(vT+9)}')
    A(f's_lshl_b32 s{sT1}, s{sWAVE}, 8\ns_add_u32 s{sT1}, s{sT1}, {XN}\nv_lshlrev_b32 {v(vA)}, 2, {v(vLANE)}\nv_add_u32 {v(vA)}, s{sT1}, {v(vA)}')
    A(f'ds_write_b32 {v(vA)}, {v(vT+8)}')
    A(f'v_bfe_u32 {v(vT)}, {v(vLANE)}, 2, 2\nv_lshlrev_b32 {v(vT)}, 8, {v(vT)}\nv_lshrrev_b32 {v(vT+1)}, 4, {v(vLANE)}\nv_lshl_add_u32 {v(vT)}, {v(vT+1)}, 3, {v(vT)}')
    A(f's_lshl_b32 s{sT1}, s{sWAVE}, 6\ns_add_u32 s{sT1}, s{sT1}, {XN}\nv_add_u32 {v(vA)}, s{sT1}, {v(vT)}')
    A('s_waitcnt lgkmcnt(0)\ns_barrier')
    if stamps == 1: stamp(1)
    pstamp(5); qstamp(1)
    A(f'ds_read2_b64 {v(vP,4)}, {v(vA)} offset0:0 offset1:4')
    if late:
        A(f's_cmp_ge_u32 s{sJ}, 3\ns_cbranch_scc1 L_w1early')
        w1_issue()
        A('L_w1early:')
    k0a = max(up, min(9, pace))
    dma_tile(sOFF, sSLA, pace, up, k0a, knt)
    if not w1sw: A(f'v_add_u32 {v(vA)}, s{sSLC}, {v(vVA0)}')
    A(f's_waitcnt vmcnt({k0a}) lgkmcnt(0)')
    pstamp(6); qstamp(2)
    if xtra >= 0:
        dma_tile(sOFF, sSLA, None, k0a, 9, knt)
        block_params(1, sN1)
        dma_tile(sOFF, sSLB, None, 0, xtra, knt)
    if w1sw: trread_mfma(12, vAD, 0, vO, True, vF, vP, vAD+4)
    else: trread_mfma(12, vA, 6144, vO, True, vF, vP)
    qstamp(3)
    A(f's_mul_i32 s{sT1}, s{sWAVE}, 3072\ns_add_u32 s{sT1}, s{sT1}, {RED}')
    A(f'v_lshrrev_b32 {v(vT)}, 4, {v(vLANE)}\nv_mul_u32_u24 {v(vT)}, 768, {v(vT)}\nv_and_b32 {v(vT+1)}, 15, {v(vLANE)}\nv_lshl_add_u32 {v(vT)}, {v(vT+1)}, 2, {v(vT)}\nv_add_u32 {v(vA)}, s{sT1}, {v(vT)}')
    A('s_nop 2')
    for t in range(12): A(f'ds_write_b32 {v(vA)}, {v(vO+4*t)} offset:{64*t}')
    A(f's_mul_i32 s{sT1}, s{sWAVE}, 768\ns_add_u32 s{sT1}, s{sT1}, {RED}\nv_mul_u32_u24 {v(vA)}, 12, {v(vLANE)}\nv_add_u32 {v(vA)}, s{sT1}, {v(vA)}')
    A('s_waitcnt lgkmcnt(0)')
    qstamp(4)
    A('s_barrier')
    qstamp(5)
    for w in range(4):
        for k in range(3): A(f'ds_read_b32 {v(vF+4*w+k)}, {v(vA)} offset:{3072*w+4*k}')
    A(f'v_lshrrev_b32 {v(vT)}, 4, {v(vLANE)}\nv_mul_u32_u24 {v(vT)}, 1280, {v(vT)}\nv_and_b32 {v(vT+1)}, 15, {v(vLANE)}\nv_lshl_add_u32 {v(vS)}, {v(vT+1)}, 4, {v(vT)}')
    A(f's_mul_i32 s{sT1}, s{sBETA}, 5\ns_add_u32 s{sT1}, s{sT1}, s{sPI}\ns_lshl_b32 s{sT1}, s{sT1}, 2\ns_add_u32 s{sT1}, s{sT1}, s{sWAVE}\ns_lshl_b32 s{sT1}, s{sT1}, 10\ns_add_u32 s{sT1}, s{sT1}, {P1}')
    A(f'v_add_u32 {v(vTAG)}, {TAGC:#x}, {v(vTAG)}')
    A('s_waitcnt lgkmcnt(0)')
    for k in range(3):
        A(f'v_add_f32 {v(vF+k)}, {v(vF+k)}, {v(vF+4+k)}\nv_add_f32 {v(vF+8+k)}, {v(vF+8+k)}, {v(vF+12+k)}')
    for k in range(3): A(f'v_add_f32 {v(vF+k)}, {v(vF+k)}, {v(vF+8+k)}')
    A(f'v_mov_b32 {v(vF+3)}, {v(vTAG)}')
    A(f's_cmp_eq_u32 s{sHASW1}, 0\ns_cbranch_scc1 L_nopub1')
    A(f'buffer_store_dwordx4 {v(vF,4)}, {v(vL16)}, {srd(rWS)}, s{sT1} offen sc1')
    A('L_nopub1:')
    qstamp(6)
    stamp(2)
    if xtra >= 0: dma_tile(sOFF, sSLB, pace, xtra, 9, knt)
    else: dma_tile(sOFF, sSLA, pace, k0a, 9, knt)
    A(f's_mov_b32 s{sT1}, 0')
    for i in range(12):
        A(f's_add_u32 m0, s{sSLC}, {1024*i}\ns_waitcnt vmcnt({pace-1})')
        A(f'buffer_load_dwordx4 {v(vS)}, {srd(rW2)}, s{sT1} offen {w2nt} lds')
        if i < 11: A(f's_add_u32 s{sT1}, s{sT1}, 5120')
    if xtra < 0:
        block_params(1, sN1)
        dma_tile(sOFF, sSLB, pace, 0, 9, knt)
    for t in range(12):
        for r in range(4): A(f'v_mov_b32 {v(vO+4*t+r)}, 0')
    A(f'v_mov_b32 {v(vM)}, {f2u(-1e30):#x}\nv_mov_b32 {v(vML)}, {f2u(-1e30):#x}\nv_mov_b32 {v(vLS)}, 0\ns_mov_b32 s{sNEG}, 0xff80ff80')
    A(f'v_lshrrev_b32 {v(vT+1)}, 4, {v(vLANE)}')
    for hf in range(2):
        A(f'v_and_b32 {v(vT)}, 15, {v(vLANE)}')
        if hf: A(f'v_min_u32 {v(vT)}, 5, {v(vT)}\nv_add_u32 {v(vT)}, 16, {v(vT)}')
        A(f'v_and_b32 {v(vT+2)}, 6, {v(vT)}\nv_xor_b32 {v(vT+2)}, {v(vT+2)}, {v(vT+1)}\nv_mul_u32_u24 {v(vT)}, 384, {v(vT)}')
        A(f'v_lshl_add_u32 {v(vKB+2*hf)}, {v(vT+2)}, 4, {v(vT)}\nv_xor_b32 {v(vT+2)}, 4, {v(vT+2)}\nv_lshl_add_u32 {v(vKB+2*hf+1)}, {v(vT+2)}, 4, {v(vT)}')
    vbases(1)
    if not w1sw: vbases(0)
    A(f'v_cmp_gt_u32 vcc, 16, {v(vLANE)}\nv_mov_b32 {v(vT)}, 0xffff\nv_mov_b32 {v(vT+2)}, 0xffff0000\nv_cndmask_b32 {v(vM3)}, 0, -1, vcc')
    A(f'v_cmp_eq_u32 vcc, 1, {v(vT+1)}\ns_mul_i32 s{sT1}, s{sWAVE}, 1536\ns_add_u32 s{sT1}, s{sT1}, {STG}\nv_cndmask_b32 {v(vM2B)}, {v(vM3)}, {v(vT)}, vcc\nv_cndmask_b32 {v(vM2X)}, 0, {v(vT+2)}, vcc')
    A(f'v_lshl_add_u32 {v(vSK)}, {v(vT+1)}, 4, s{sT1}\nv_add_u32 {v(vSV)}, {22*64}, {v(vSK)}\nv_mov_b32 {v(vFA)}, {FLG+16}\nv_mov_b32 {v(vONE)}, 1')
    A(f'v_add_u32 {v(vT)}, 352, {v(vLANE)}\nv_cmp_gt_u32 vcc, 32, {v(vLANE)}\nv_add_u32 {v(vT+2)}, -32, {v(vLANE)}\ns_nop 0\nv_cndmask_b32 {v(vT)}, {v(vT+2)}, {v(vT)}, vcc\nv_lshl_add_u32 {v(vPA)}, {v(vT)}, 2, s{sT1}')
    A(f's_add_u32 s{sSTG}, s{sT1}, 128')
    A(f'v_lshlrev_b32 {v(vA)}, 4, {v(vT+1)}\nv_add_u32 {v(vA)}, {QL}, {v(vA)}\nv_mov_b32 {v(vT+2)}, {FLG}')
    A('s_waitcnt vmcnt(9)')
    if stamps == 2: stamp(1)
    A('s_barrier')
    stamp(3)
    A(f'ds_read_b64 {v(vT+4,2)}, {v(vT+2)}')
    for s in range(6): A(f'ds_read_b128 {v(vQ+4*s,4)}, {v(vA)} offset:{64*s}')
    A(f's_mov_b32 s{sT}, 0\ns_waitcnt lgkmcnt(6)')
    A(f'v_readfirstlane_b32 s{sFL}, {v(vT+4)}\nv_readfirstlane_b32 s{sFLV}, {v(vT+5)}')
    A(f's_nop 0\ns_mov_b64 {sp(sCM)}, 0')
    grp = [0x3f, 0xff << 6, 0x3f << 14]
    for i in range(3):
        A(f's_bitcmp1_b32 s{sFL}, {i}\ns_cselect_b32 s{sT1}, {grp[i]:#x}, 0\ns_or_b32 s{sCM}, s{sCM}, s{sT1}')
        gv = grp[i] << 26
        A(f's_bitcmp1_b32 s{sFLV}, {i}')
        if gv & 0xffffffff: A(f's_cselect_b32 s{sT1}, {gv & 0xffffffff:#x}, 0')
        if gv >> 32: A(f's_cselect_b32 s{sT2}, {gv >> 32:#x}, 0\ns_or_b32 s{sCM+1}, s{sCM+1}, s{sT2}')
        if gv & 0xffffffff: A(f's_or_b32 s{sCM}, s{sCM}, s{sT1}')
    for k in range(2):
        A(f's_bitcmp1_b32 s{sRHO}, 0\ns_cselect_b32 s{sT1}, s{sFL if k else sFLV}, s{sFLV if k else sFL}\ns_bitcmp1_b32 s{sT1}, 2\ns_cselect_b32 s{sT1}, {5 << (20+k):#x}, 0\ns_or_b32 s{sCM}, s{sCM}, s{sT1}')
    A(f's_sub_u32 s{sT1}, 0, s{sHALF}\ns_xor_b32 s{sCM}, s{sCM}, s{sT1}\ns_xor_b32 s{sCM+1}, s{sCM+1}, s{sT1}')
    A(f's_mov_b32 s{sPUB}, 4\ns_waitcnt lgkmcnt(0)')
    def arrive():
        A(f's_mov_b64 exec, 1\nds_add_u32 {v(vFA)}, {v(vONE)}\ns_mov_b64 exec, -1')
    chk = f'ds_read_b128 {v(vR,4)}, {v(vFA)}'
    def step_wait(lbl):
        if not sync: return
        A(f'{lbl}:\ns_waitcnt lgkmcnt(0)\nv_readfirstlane_b32 s{sT1}, {v(vR)}\ns_nop 0\ns_cmp_ge_u32 s{sT1}, s{sPUB}\ns_cbranch_scc1 {lbl}_ok')
        A(f'{chk}\ns_branch {lbl}\n{lbl}_ok:')
    def wo_frags():
        A(f'v_lshrrev_b32 {v(vT)}, 2, {v(vLANE)}\nv_lshlrev_b32 {v(vT)}, 8, {v(vT)}\nv_and_b32 {v(vT+1)}, 3, {v(vLANE)}\nv_lshl_add_u32 {v(vT)}, {v(vT+1)}, 3, {v(vT)}')
        A(f's_lshl_b32 s{sT1}, s{sWAVE}, 6\ns_add_u32 s{sT1}, s{sT1}, {WREG}\nv_add_u32 {v(vA)}, s{sT1}, {v(vT)}')
        for s in range(6):
            for t in range(2):
                f = vW + 24*t + 4*s
                A(f'ds_read_b64_tr_b16 {v(f,2)}, {v(vA)} offset:{8192*s+32*t}\nds_read_b64_tr_b16 {v(f+2,2)}, {v(vA)} offset:{8192*s+32*t+4096}')
            if s % 2 == 1 and s < 5: A('s_waitcnt lgkmcnt(4)')
    A('.p2align 6\nL_kloop:')
    for k in range(4): A(f'v_add_u32 {v(vAD+k)}, s{sSLA}, {v(vKB+k)}')
    A('s_waitcnt vmcnt(9)')
    arrive()
    for kt in range(2):
        for s in range(6):
            if not (nocomp & 1): A(f'ds_read_b128 {v(vF+24*kt+4*s,4)}, {v(vAD+2*kt+(s&1))} offset:{128*(s>>1)}')
    A(chk)
    A(f'v_and_or_b32 {v(vT+8)}, {v(vM2X)}, s{sN0}, {v(vM2B)}\ns_mov_b32 s{sN0}, s{sN1}')
    A(f's_cmp_lg_u32 s{sT}, 22\ns_cbranch_scc1 L_knosw')
    A(f's_mov_b32 s{rK}, s{sVB}\ns_mov_b32 s{rK+1}, s{sVB+1}\ns_cmp_ge_u32 s{sU0}, 8\ns_cselect_b32 s{sU}, -8, 88\ns_add_u32 s{sU}, s{sU}, s{sU0}')
    A('L_knosw:')
    block_params(0, sN1)
    for kt in range(2):
        for s in range(6):
            i = 6*kt + s
            A(f's_waitcnt lgkmcnt({12-i})')
            c = '0' if s == 0 else v(vS+4*kt, 4)
            A(f'v_mfma_f32_16x16x32_bf16 {v(vS+4*kt,4)}, {v(vF+4*i,4)}, {v(vQ+4*s,4)}, {c}')
    step_wait('L_ks')
    dma_tile(sOFF, sSLA, None, 0, pre, knt)
    A(f's_nop {max(0, 7 - 3*pre)}')
    for k in range(4): rnd2(vS+2*k, vS+2*k+1, vT+k)
    for k in range(8): A(f'v_mul_f32 {v(vS+k)}, s{sSC}, {v(vS+k)}')
    for k in range(4): A(f'v_cvt_pk_bf16_f32 {v(vT+k)}, {v(vS+2*k)}, {v(vS+2*k+1)}')
    A(f'v_bfi_b32 {v(vT+2)}, {v(vT+8)}, {v(vT+2)}, s{sNEG}\nv_bfi_b32 {v(vT+3)}, {v(vM3)}, {v(vT+3)}, s{sNEG}')
    A(f's_mov_b32 exec_lo, 0x00010001\ns_mov_b32 exec_hi, 0x00010001\nds_write_b128 {v(vSK)}, {v(vT,4)}\ns_mov_b64 exec, -1\nv_add_u32 {v(vSK)}, 64, {v(vSK)}')
    A(f's_cmp_eq_u32 s{sT}, 23\ns_cbranch_scc1 L_spa')
    kbal = bal and min(cpl) < 20
    if kbal:
        A(f'v_readfirstlane_b32 s{sT1}, {v(vR+2)}\ns_nop 0\ns_cmp_gt_i32 s{sT1}, s{sT}\ns_cbranch_scc1 L_kup')
        if bneg: A(f's_add_i32 s{sT1}, s{sT1}, s{sT}\ns_cmp_lt_i32 s{sT1}, 0\ns_cbranch_scc1 L_kdn')
    dma_tile(sOFF, sSLA, D, pre, 9, knt)
    A('L_kpe:')
    A(f's_mov_b32 s{sT1}, s{sSLA}\ns_mov_b32 s{sSLA}, s{sSLB}\ns_mov_b32 s{sSLB}, s{sT1}')
    A(f's_add_u32 s{sT}, s{sT}, 1\ns_add_u32 s{sPUB}, s{sPUB}, 4\ns_branch L_kloop')
    A('.p2align 6\nL_vloop:')
    for k in range(8): A(f'v_add_u32 {v(vAD+k)}, s{sSLA}, {v(vVB+k)}')
    A(f'ds_read_b128 {v(vP,4)}, {v(vSV)}\ns_cmp_eq_u32 s{sT}, 25\ns_cselect_b32 s{sT1}, {64-1536}, 64\nv_add_u32 {v(vSV)}, s{sT1}, {v(vSV)}')
    A(f's_cmp_lg_u32 s{sT}, 24\ns_cbranch_scc1 L_vnosw\ns_mov_b32 s{sU}, s{sU0}\nL_vnosw:')
    block_params(2, sN1)
    A('s_waitcnt vmcnt(9)')
    arrive()
    if not (nocomp & 2): trread_mfma(12, vAD, 0, vO, False, vF, vP, vAD+4, chk)
    else: A(chk)
    A(f's_cmp_eq_u32 s{sT}, 47\ns_cbranch_scc1 L_loopx')
    step_wait('L_vs')
    dma_tile(sOFF, sSLA, None, 0, pre, vnt)
    A(f's_cmp_eq_u32 s{sT}, 27\ns_cbranch_scc1 L_spb')
    A('L_vmid:')
    if bal:
        A(f'v_readfirstlane_b32 s{sT2}, {v(vR+2)}\ns_nop 0')
        if bneg and lastneg: A(f's_add_i32 s{sT1}, s{sT2}, s{sT}\ns_cmp_lt_i32 s{sT1}, 0\ns_cbranch_scc1 L_vdn')
    if nend:
        A(f's_cmp_ge_u32 s{sT}, {46-nend}\ns_cbranch_scc0 L_vpc')
        dma_tile(sOFF, sSLA, Dend if Dend < 18 else None, pre, 9, vnt)
        A('s_branch L_vpe\nL_vpc:')
    if bal:
        A(f's_cmp_gt_i32 s{sT2}, s{sT}\ns_cbranch_scc1 L_vup')
        if bneg and not lastneg: A(f's_add_i32 s{sT1}, s{sT2}, s{sT}\ns_cmp_lt_i32 s{sT1}, 0\ns_cbranch_scc1 L_vdn')
    dma_tile(sOFF, sSLA, D, pre, 9, vnt)
    A('L_vpe:')
    A(f's_mov_b32 s{sT1}, s{sSLA}\ns_mov_b32 s{sSLA}, s{sSLB}\ns_mov_b32 s{sSLB}, s{sT1}')
    A(f's_add_u32 s{sT}, s{sT}, 1\ns_add_u32 s{sPUB}, s{sPUB}, 4\ns_branch L_vloop')
    A('L_loopx:')
    stamp(4)
    if lred:
        A('s_mov_b64 exec, 0xffff\ns_nop 3')
        for t in range(12): A(f'ds_write_b32 {v(vSK)}, {v(vO+4*t)} offset:{64*t}')
        A('s_mov_b64 exec, -1')
    else:
        xsum(vLS, vT)
        A(f's_lshl_b32 s{sT1}, s{sWAVE}, 10\ns_add_u32 s{sT1}, s{sT1}, {OCB}\nv_lshlrev_b32 {v(vA)}, 2, {v(vLANE)}\nv_add_u32 {v(vA)}, s{sT1}, {v(vA)}')
        A('s_mov_b64 exec, 0xffff')
        for t in range(12): A(f'ds_write_b32 {v(vA)}, {v(vO+4*t)} offset:{64*t}')
        A(f's_mov_b64 exec, 1\nds_write2_b32 {v(vA)}, {v(vML)}, {v(vLS)} offset0:192 offset1:193\ns_mov_b64 exec, -1')
    A('s_waitcnt lgkmcnt(0)\ns_barrier')
    A(f's_cmp_ge_u32 s{sJ}, 5\ns_cbranch_scc1 L_sdone')
    if not wearly: wo_frags()
    A(f's_lshl_b32 s{sT1}, s{sH}, 3\ns_lshl_b32 s{sT2}, s{sWAVE}, 1\ns_add_u32 s{sT1}, s{sT1}, s{sT2}\ns_lshl_b32 s{sT1}, s{sT1}, 11\ns_add_u32 s{sT1}, s{sT1}, {OP}\ns_add_u32 s{sT2}, s{sT1}, 2048')
    A(f'v_mov_b32 {v(vA)}, 1024')
    mko = lambda b: [wsload(b, vL16, sT1), wsload(b+4, vL16, sT2), wsload(b+8, vA, sT1), wsload(b+12, vA, sT2)]
    w0_, w1_, l0_, l1_, on_ = vQ, vQ+1, vQ+2, vQ+3, vQ+4
    def useo(b):
        A(f'v_max_f32 {v(vT)}, {v(b+8)}, {v(b+12)}\nv_sub_f32 {v(w0_)}, {v(b+8)}, {v(vT)}\nv_sub_f32 {v(w1_)}, {v(b+12)}, {v(vT)}\nv_exp_f32 {v(w0_)}, {v(w0_)}\nv_exp_f32 {v(w1_)}, {v(w1_)}\ns_nop 0')
        A(f'v_mul_f32 {v(l0_)}, {v(b+9)}, {v(w0_)}\nv_fmac_f32 {v(l0_)}, {v(b+13)}, {v(w1_)}\nv_rcp_f32 {v(l1_)}, {v(l0_)}')
        for k in range(3): A(f'v_mul_f32 {v(on_+k)}, {v(b+k)}, {v(w0_)}\nv_fmac_f32 {v(on_+k)}, {v(b+4+k)}, {v(w1_)}')
    if po: poll2('L_po', mko, 4, vF, vF+16, 4, po, useo)
    else:
        (polls if sel & 1 else poll)('L_po', mko(vF), [vF+3, vF+7, vF+11, vF+15], 4)
        useo(vF)
    stamp(5)
    A(f's_mul_i32 s{sT1}, s{sWAVE}, 384\ns_add_u32 s{sT1}, s{sT1}, {OBF}')
    A(f'v_mul_u32_u24 {v(vA)}, 6, {v(vLANE)}\nv_add_u32 {v(vA)}, s{sT1}, {v(vA)}')
    for k in range(3): fdiv(on_+4+k, on_+k, l0_, l1_, vT)
    put3_bf16(on_+4, vT, vA)
    A(f'v_bfe_u32 {v(vT+2)}, {v(vLANE)}, 2, 2\nv_mul_u32_u24 {v(vT+2)}, 384, {v(vT+2)}\nv_lshrrev_b32 {v(vT+3)}, 4, {v(vLANE)}\nv_lshl_add_u32 {v(vT+2)}, {v(vT+3)}, 3, {v(vT+2)}\nv_add_u32 {v(vA)}, {OBF}, {v(vT+2)}')
    A(f's_lshl_b32 s{sT1}, s{sJ}, 2\ns_add_u32 s{sT1}, s{sT1}, s{sWAVE}\ns_lshl_b32 s{sT1}, s{sT1}, 5\ns_add_u32 s{sT1}, s{sT1}, s{sH}\ns_lshl_b32 s{sT1}, s{sT1}, {9 if y8 else 10}\ns_add_u32 s{sT1}, s{sT1}, {YP}')
    A('s_waitcnt lgkmcnt(0)\ns_barrier')
    for s in range(6): A(f'ds_read2_b64 {v(vO+4*s,4)}, {v(vA)} offset0:{8*s} offset1:{8*s+4}')
    for s in range(6):
        A(f's_waitcnt lgkmcnt({5-s})')
        for t in range(2):
            c = '0' if s == 0 else v(vS+4*t, 4)
            A(f'v_mfma_f32_16x16x32_bf16 {v(vS+4*t,4)}, {v(vO+4*s,4)}, {v(vW+24*t+4*s,4)}, {c}')
    if y8:
        A(f'v_mov_b32 {v(vT+1)}, {v(vTAG)}\nv_lshlrev_b32 {v(vA)}, 3, {v(vLANE)}\ns_nop 5')
        A(f'v_cvt_pk_bf16_f32 {v(vT)}, {v(vS)}, {v(vS+4)}')
        A(f'buffer_store_dwordx2 {v(vT,2)}, {v(vA)}, {srd(rWS)}, s{sT1} offen sc1')
    else:
        A(f'v_mov_b32 {v(vT+2)}, {v(vTAG)}\nv_mov_b32 {v(vT+3)}, {v(vTAG)}\ns_nop 5')
        A(f'v_mov_b32 {v(vT)}, {v(vS)}\nv_mov_b32 {v(vT+1)}, {v(vS+4)}')
        A(f'buffer_store_dwordx4 {v(vT,4)}, {v(vL16)}, {srd(rWS)}, s{sT1} offen sc1')
    A('L_sdone:')
    if fixdur:
        A(f'L_fix:\ns_memrealtime s[98:99]\ns_waitcnt lgkmcnt(0)\ns_sub_u32 s98, s98, s96\ns_cmp_lt_u32 s98, {fixdur*100}\ns_cbranch_scc1 L_fix')
    stamp(6)
    if stamps:
        A(f's_cmp_lg_u32 s{sWAVE}, 0\ns_cbranch_scc1 L_end\ns_waitcnt vmcnt(0)')
        stamp(7)
        write_stamps(0, 's')
    A('s_endpgm')

    def soft_pass(n, addr, off):
        X = vF
        for i in range(n): A(f'ds_read_b32 {v(vT+8+i)}, {v(addr)} offset:{off*i}')
        for i in range(n):
            A(f's_waitcnt lgkmcnt({n-1-i})\nv_lshlrev_b32 {v(X+2*i)}, 16, {v(vT+8+i)}\nv_and_b32 {v(X+2*i+1)}, 0xffff0000, {v(vT+8+i)}\nv_max3_f32 {v(vM)}, {v(X+2*i)}, {v(X+2*i+1)}, {v(vM)}')
        xsum(vM, vT, 'v_max_f32')
        A(f'v_mul_f32 {v(vT)}, s{sL2E}, {v(vM)}\nv_sub_f32 {v(vAL)}, {v(vML)}, {v(vT)}\nv_mov_b32 {v(vML)}, {v(vT)}\nv_exp_f32 {v(vAL)}, {v(vAL)}')
        for k in range(2*n): A(f'v_fma_f32 {v(X+k)}, {v(X+k)}, s{sL2E}, -{v(vML)}')
        for k in range(2*n): A(f'v_exp_f32 {v(X+k)}, {v(X+k)}')
        A(f'v_mul_f32 {v(vLS)}, {v(vLS)}, {v(vAL)}')
        for i in range(n):
            A(f'v_cvt_pk_bf16_f32 {v(vT+8+i)}, {v(X+2*i)}, {v(X+2*i+1)}\nv_add_f32 {v(vLS)}, {v(vLS)}, {v(X+2*i)}\nv_add_f32 {v(vLS)}, {v(vLS)}, {v(X+2*i+1)}')
            A(f'ds_write_b32 {v(addr)}, {v(vT+8+i)} offset:{off*i}')
    if kbal:
        A('L_kup:')
        dma_tile(sOFF, sSLA, D+bal, pre, 9, knt)
        A('s_branch L_kpe\nL_kdn:')
        dma_tile(sOFF, sSLA, D-bneg, pre, 9, knt)
        A('s_branch L_kpe')
    if bal:
        A('; ---- a workgroup that lags the others keeps more loads in flight for a few steps')
        A('L_vup:')
        dma_tile(sOFF, sSLA, D+bal, pre, 9, vnt)
        A('s_branch L_vpe')
        if bneg:
            A('L_vdn:')
            dma_tile(sOFF, sSLA, D-bneg, pre, 9, vnt)
            A('s_branch L_vpe')
    A('L_spa:')
    soft_pass(1, vPA, 0)
    A('s_branch L_vmid')
    A('L_spb:')
    if not noex:
        A(f's_mov_b32 s{sCNT}, {spin*8}')
        A(f'L_vchk:\ns_waitcnt lgkmcnt(0)\nv_readfirstlane_b32 s{sT1}, {v(vR+1)}\ns_sub_u32 s{sCNT}, s{sCNT}, 1\ns_cmp_eq_u32 s{sCNT}, 0\ns_cbranch_scc1 L_vnoc')
        A(f's_cmp_lg_u32 s{sT1}, 0\ns_cbranch_scc1 L_vnoc\n{chk}\ns_branch L_vchk\nL_vnoc:')
    A(f'v_lshl_add_u32 {v(vPA)}, {v(vLANE)}, 2, s{sSTG}')
    soft_pass(5, vPA, 256)
    for t in range(12): A(f'v_mul_f32 {v(vO+4*t)}, {v(vAL)}, {v(vO+4*t)}')
    if lred:
        xsum(vLS, vT)
        A(f's_lshl_b32 s{sT1}, s{sWAVE}, 10\ns_add_u32 s{sT1}, s{sT1}, {OCB}\nv_lshlrev_b32 {v(vSK)}, 2, {v(vLANE)}\nv_add_u32 {v(vSK)}, s{sT1}, {v(vSK)}')
        A(f's_mov_b64 exec, 1\nds_write2_b32 {v(vSK)}, {v(vML)}, {v(vLS)} offset0:192 offset1:193\ns_mov_b64 exec, -1')
    if wearly == 1:
        A(f's_cmp_ge_u32 s{sJ}, 5\ns_cbranch_scc1 L_vmid\ns_waitcnt lgkmcnt(0)')
        wo_frags()
        A('s_waitcnt lgkmcnt(0)')
    if wearly == 2:
        A(f's_cmp_ge_u32 s{sJ}, 5\ns_cbranch_scc1 L_vmid')
        A(f'v_lshrrev_b32 {v(vT)}, 2, {v(vLANE)}\nv_lshlrev_b32 {v(vT)}, 8, {v(vT)}\nv_and_b32 {v(vT+1)}, 3, {v(vLANE)}\nv_lshl_add_u32 {v(vT)}, {v(vT+1)}, 3, {v(vT)}')
        A(f's_lshl_b32 s{sT1}, s{sWAVE}, 6\ns_add_u32 s{sT1}, s{sT1}, {WREG}\nv_add_u32 {v(vA)}, s{sT1}, {v(vT)}')
        for s_ in range(max(6, 9-pre)):
            if pre + s_ < 9: dma_tile(sOFF, sSLA, D, pre + s_, pre + s_ + 1, vnt)
            if s_ < 6:
                A('s_waitcnt lgkmcnt(4)')
                for t in range(2):
                    f = vW + 24*t + 4*s_
                    A(f'ds_read_b64_tr_b16 {v(f,2)}, {v(vA)} offset:{8192*s_+32*t}\nds_read_b64_tr_b16 {v(f+2,2)}, {v(vA)} offset:{8192*s_+32*t+4096}')
        A('s_waitcnt lgkmcnt(0)\ns_branch L_vpe')
    A('s_branch L_vmid')
    def hwait(n, lbl, hsl=hsl):
        A(f's_mov_b32 s{sCNT}, {spin*8}\n{lbl}:\nds_read_b32 {v(vT)}, {v(vXF)}\ns_sub_u32 s{sCNT}, s{sCNT}, 1\ns_cmp_eq_u32 s{sCNT}, 0\ns_cbranch_scc1 {lbl}_ok')
        A(f's_waitcnt lgkmcnt(0)\nv_readfirstlane_b32 s{sT0}, {v(vT)}\ns_nop 0\ns_cmp_ge_u32 s{sT0}, {4*n}\ns_cbranch_scc1 {lbl}_ok\n{f"s_sleep {hsl}" if hsl and not nosleep else ""}\ns_branch {lbl}\n{lbl}_ok:')
    vXA, vXF, vXB = vQ+12, vQ+13, vQ+14
    A('L_helper:')
    inhelper[0] = True
    A(f's_getreg_b32 s{sT3}, hwreg(HW_REG_XCC_ID, 2, 1)')
    A('s_waitcnt lgkmcnt(0)')
    A(f's_sub_u32 s{sT0}, s38, s36\ns_min_u32 s{sT0}, s{sT0}, {cap}\ns_sub_u32 s{sT0}, s{sT0}, {thr}\ns_sub_u32 s{sT1}, 0, s{sT0}')
    A(f's_cmp_eq_u32 s{sT3}, 0\ns_cselect_b32 s{sT0}, s{sT0}, s{sT1}')
    A(f'v_mov_b32 {v(vP)}, s{sT0}\nv_mov_b32 {v(vP+1)}, s{sT3}\nv_mov_b32 {v(vP+2)}, 0')
    A(f's_lshl_b32 s{sT0}, s{sIDX}, 4\ns_add_u32 s{sT0}, s{sT0}, s{sSLT}\ns_lshl_b32 s{sT0}, s{sT0}, 4\ns_add_u32 s{sT0}, s{sT0}, {VOTE}')
    if gord == 1: A('s_barrier')
    A(f's_waitcnt vmcnt(0)\nv_add_u32 {v(vTAG)}, {TAGC:#x}, {v(vTAG)}\nv_mov_b32 {v(vP+3)}, {v(vTAG)}')
    A(f's_mov_b64 exec, 1\nbuffer_store_dwordx4 {v(vP,4)}, {v(vL16)}, {srd(rWS)}, s{sT0} offen sc1\ns_mov_b64 exec, -1')
    if htouch:
        A(f's_mul_i32 s{sT0}, s{sRHO}, 1572864\ns_load_dword s96, {sp(sV)}, s{sT0}\ns_add_u32 s{sT0}, s{sT0}, 1572860\ns_load_dword s97, {sp(sK)}, s{sT0}\ns_load_dword s98, {sp(sV)}, s{sT0}')
        if htouch > 1: A(f's_mul_i32 s{sT0}, s{sH}, {192*1280}\ns_load_dword s99, {sp(sWO)}, s{sT0}\ns_load_dword s96, {sp(sWD)}, 0')
    sCA, sCB2 = 42, 43
    A(f's_mul_i32 s{sT0}, s{sRHO}, 3\ns_lshr_b32 s{sCA}, s{sT0}, 5\ns_add_u32 s{sT0}, s{sT0}, 2\ns_lshr_b32 s{sCB2}, s{sT0}, 5')
    A(f'v_lshrrev_b32 {v(vT)}, 5, {v(vLANE)}\nv_mul_u32_u24 {v(vT)}, 12, {v(vT)}\nv_bfe_u32 {v(vT+1)}, {v(vLANE)}, 4, 1\ns_sub_u32 s{sT0}, s{sCB2}, s{sCA}\nv_mul_u32_u24 {v(vT+1)}, s{sT0}, {v(vT+1)}')
    A(f'v_add3_u32 {v(vT)}, {v(vT)}, {v(vT+1)}, s{sCA}\nv_and_b32 {v(vT+1)}, 15, {v(vLANE)}\nv_min_u32 {v(vT+1)}, 9, {v(vT+1)}\nv_lshlrev_b32 {v(vT+1)}, 4, {v(vT+1)}\nv_lshl_add_u32 {v(vAL)}, {v(vT)}, 8, {v(vT+1)}')
    A(f's_andn2_b32 s{sT1}, s2, 4')
    vote_slot(sT1, sT2, sT3)
    A(f's_lshl_b32 s{sT2}, s{sT2}, 4\ns_add_u32 s{sT2}, s{sT2}, s{sT3}\ns_lshl_b32 s{sT2}, s{sT2}, 4\nv_mov_b32 {v(vM)}, s{sT2}\ns_mov_b32 s{rK+5}, {VOTE}')
    A(f's_mul_i32 s{sT0}, s{sH}, {5*4096}\ns_lshl_b32 s{sT1}, s{sB}, 10\ns_add_u32 s{sT0}, s{sT0}, s{sT1}\ns_add_u32 s{rK}, s{sT0}, {P1}')
    for p in range(1, 5): A(f's_add_u32 s{rK+p}, s{rK}, {4096*p}')
    A(f's_sub_u32 s{sU2}, s{sU2}, 5')
    A(f'v_mov_b32 {v(vS+1)}, 0\nv_mov_b32 {v(vS+6)}, 0\nv_mov_b32 {v(vS+7)}, 0')
    A(f'v_mul_u32_u24 {v(vA)}, 6, {v(vLANE)}\nv_add_u32 {v(vA)}, {QL}, {v(vA)}')
    A('s_barrier' if gord == 1 else 's_barrier\ns_barrier')
    stamp(1)
    mkq = lambda b: [wsload(b+4*p, vL16, rK+p) for p in range(5)] + [wsload(b+20, vAL, rK+5), wsload(b+24, vM, rK+5)]
    QR = vW; E = vW + 3
    def useq(b):
        for k in range(3):
            A(f'v_add_f32 {v(QR+k)}, {v(b+k)}, {v(b+4+k)}')
        for p in range(2, 5):
            for k in range(3): A(f'v_add_f32 {v(QR+k)}, {v(QR+k)}, {v(b+4*p+k)}')
        put3_bf16(QR, vT, vA)
        A(f'v_and_b32 {v(vT)}, 15, {v(vLANE)}\nv_cmp_gt_u32 vcc, 10, {v(vT)}\nv_readfirstlane_b32 s{sT2}, {v(b+25)}\ns_nop 0\nv_cndmask_b32 {v(E)}, 0, {v(b+20)}, vcc')
    if pq: poll2('L_pq', mkq, 7, vF, vO, 1, pq, useq)
    else:
        (polls if sel & 4 else poll)('L_pq', mkq(vF), [vF+4*p+3 for p in range(5 if nopoll else 0, 7)], 1)
        useq(vF)
    for mode in ['quad_perm:[1,0,3,2]', 'quad_perm:[2,3,0,1]', 'row_half_mirror', 'row_mirror']:
        A(f's_nop 1\nv_add_u32_dpp {v(E)}, {v(E)}, {v(E)} {mode} row_mask:0xf bank_mask:0xf')
    if dbgv:
        A(f's_mul_i32 s{sT0}, s{sRHO}, 3\ns_and_b32 s{sT0}, s{sT0}, 31\ns_cmp_ge_u32 s{sT0}, 3\ns_cbranch_scc1 L_nodbg')
        A(f'v_readlane_b32 s{sT0}, {v(E)}, 16\nv_readlane_b32 s{sT1}, {v(E)}, 48')
        A(f's_nop 1\ns_add_u32 s{sT3}, s{sT0}, 5000\ns_mul_i32 s{sT3}, s{sT3}, 10000\ns_add_u32 s{sT3}, s{sT3}, s{sT1}\ns_add_u32 s{sT3}, s{sT3}, 5000')
        A(f's_lshl_b32 s{sP}, s{sCB2}, 2\nv_mov_b32 {v(vT+5)}, s{sP}\nv_mov_b32 {v(vT+6)}, s{sT3}\nglobal_store_dword {v(vT+5)}, {v(vT+6)}, {sp(sDBG)}\nL_nodbg:')
    A(f'v_lshrrev_b32 {v(E)}, 31, {v(E)}\nv_xor_b32 {v(E)}, s{sT2}, {v(E)}')
    if force >= 0: A(f'v_lshrrev_b32 {v(E)}, 5, {v(vLANE)}\nv_lshrrev_b32 {v(E)}, {v(E)}, {force}\nv_and_b32 {v(E)}, 1, {v(E)}')
    sF = [36, 37, 38, 39]
    A('s_nop 0')
    for g in range(4): A(f'v_readlane_b32 s{sF[g]}, {v(E)}, {16*g}')
    sRG = 97
    if rot >= 0: rot3(sRG, sT3)
    else: A(f's_mov_b32 s{sRG}, 0')
    A(f's_mov_b32 s{sT0}, 0\ns_mov_b32 s{sT1}, 0')
    for i in range(3):
        A(f's_mul_i32 s{sT3}, s{sRHO}, 3\ns_add_u32 s{sT3}, s{sT3}, s{sRG}\ns_lshl_b32 s{sT3}, s{sT3}, 19')
        A(f's_lshr_b32 s{sT2}, s{sT3}, 24\ns_cmp_eq_u32 s{sT2}, s{sCA}\ns_cselect_b32 s{sXD}, s{sF[0]}, s{sF[1]}\ns_cselect_b32 s{sXS}, s{sF[2]}, s{sF[3]}')
        for acc, base, fl in [(sT0, sK, sXD), (sT1, sV, sXS)]:
            A(f's_add_u32 s{sT2}, s{base}, s{sT3}\ns_lshr_b32 s{sT2}, s{sT2}, 21\ns_xor_b32 s{sT2}, s{sT2}, s{fl}\ns_and_b32 s{sT2}, s{sT2}, 1\ns_lshl_b32 s{sT2}, s{sT2}, {i}\ns_or_b32 s{acc}, s{acc}, s{sT2}')
        if i < 2: A(f's_add_u32 s{sRG}, s{sRG}, 1\ns_cmp_eq_u32 s{sRG}, 3\ns_cselect_b32 s{sRG}, 0, s{sRG}')
    if nonuma: A(f's_mov_b32 s{sT0}, {nonuma >> 1}\ns_mov_b32 s{sT1}, {nonuma >> 1}')
    A(f's_xor_b32 s{sXD}, s{sT0}, s{sT1}\ns_cselect_b32 s{sXS}, 0, 1')
    A(f'v_mov_b32 {v(vT+4)}, s{sT0}\nv_mov_b32 {v(vT+5)}, s{sT1}\nv_mov_b32 {v(vT+3)}, {FLG}\nds_write_b64 {v(vT+3)}, {v(vT+4,2)}')
    A(f'v_mov_b32 {v(vT+8)}, 0\nv_mov_b32 {v(vT+9)}, s{sXS}\nv_mov_b32 {v(vT+10)}, 0\nv_mov_b32 {v(vT+11)}, 0\nds_write_b128 {v(vT+3)}, {v(vT+8,4)} offset:16')
    if stamps:
        A(f's_lshl_b32 s{sT1}, s{sXD}, 0\ns_or_b32 s{sT1}, s{sT1}, s{sT1}\ns_lshl_b32 s{sT0}, s2, 2\ns_add_u32 s{sT0}, s{sT0}, 0x20100000')
        A(f'v_mov_b32 {v(vT+5)}, s{sT0}\nv_mov_b32 {v(vT+6)}, s{sT1}\nglobal_store_dword {v(vT+5)}, {v(vT+6)}, {sp(sWS)}')
    stamp(2)
    A('s_waitcnt lgkmcnt(0)\ns_barrier')
    A('s_waitcnt vmcnt(0)')
    A(f's_cmp_ge_u32 s{sJ}, 5\ns_cselect_b32 s{sHASW1}, 1, 0\ns_cmp_lt_u32 s{sU2}, 80\ns_cselect_b32 s{sHASW1}, s{sHASW1}, 0')
    A(f's_cmp_eq_u32 s{sHASW1}, 0\ns_cbranch_scc1 L_hx')
    A(f's_mul_i32 s{sR}, s{sU2}, 52429\ns_lshr_b32 s{sR}, s{sR}, 18\ns_mul_i32 s{sT0}, s{sR}, 5\ns_sub_u32 s{sCB}, s{sU2}, s{sT0}')
    A(f's_mul_i32 s{sRB}, s{sU2}, 52429\ns_lshr_b32 s{sRB}, s{sRB}, 20\ns_mul_i32 s{sT0}, s{sRB}, 20\ns_sub_u32 s{sSLC2}, s{sU2}, s{sT0}')
    vWD, vG4 = vS, vS+1
    A(f'v_lshrrev_b32 {v(vT)}, 4, {v(vLANE)}\nv_and_b32 {v(vT+1)}, 15, {v(vLANE)}\nv_lshlrev_b32 {v(vT+1)}, 4, {v(vT+1)}')
    A(f'v_mul_u32_u24 {v(vWD)}, 1280, {v(vT)}\nv_add_u32 {v(vWD)}, {v(vWD)}, {v(vT+1)}\nv_lshl_add_u32 {v(vG4)}, {v(vT)}, 10, {v(vT+1)}')
    A(f'v_lshrrev_b32 {v(vT)}, 5, {v(vLANE)}\nv_mul_u32_u24 {v(vT)}, {8*5*4096}, {v(vT)}\nv_and_b32 {v(vT+1)}, 31, {v(vLANE)}\nv_lshl_add_u32 {v(vA)}, {v(vT+1)}, 4, {v(vT)}')
    A(f's_lshr_b32 s{sT0}, s{sR}, 1\ns_add_u32 s{sT0}, s{sT0}, 32\ns_mul_i32 s{sT0}, s{sT0}, {5*4096}\ns_and_b32 s{sT1}, s{sR}, 1\ns_lshl_b32 s{sT1}, s{sT1}, 9\ns_add_u32 s{sT0}, s{sT0}, s{sT1}\ns_add_u32 s{rK}, s{sT0}, {P1}')
    for p in range(1, 5): A(f's_add_u32 s{rK+p}, s{rK}, {4096*p}')
    G = vF
    poll('L_pg', [wsload(G+20*b+4*p, vA, rK+p) + f' offset:{1024*b}' if False else
                  f'buffer_load_dwordx4 {v(G+20*b+4*p,4)}, {v(vA)}, {srd(rWS)}, s{rK+p} offen offset:{1024*b} sc1' for b in range(4) for p in range(5)],
         [G+20*b+4*p+3 for b in range(4) for p in range(5)], 2)
    A(f'v_and_b32 {v(vA)}, 31, {v(vLANE)}\nv_mul_u32_u24 {v(vA)}, 6, {v(vA)}\nv_add_u32 {v(vA)}, {HL}, {v(vA)}')
    for b in range(4):
        g0 = G + 20*b
        for k in range(3):
            for p in range(1, 5): A(f'v_add_f32 {v(g0+k)}, {v(g0+k)}, {v(g0+4*p+k)}')
        rnd2(g0, g0+1, vT); rnd(g0+2, vT)
        for k in range(3): A(f'v_mov_b32 {v(g0+4+k)}, {v(g0+k)}')
        A('s_nop 1')
        for k in range(3): A(f'v_permlane32_swap_b32 {v(g0+k)}, {v(g0+4+k)}')
        for k in range(3):
            A(f'v_cmp_lt_f32 vcc, 0, {v(g0+k)}\ns_nop 1\nv_cndmask_b32 {v(vT)}, 0, 1.0, vcc\nv_mul_f32 {v(g0+k)}, {v(g0+k)}, {v(vT)}\nv_mul_f32 {v(g0+k)}, {v(g0+k)}, {v(g0+4+k)}')
        put3_bf16(g0, vT, vA)
        if b < 3: A(f'v_add_u32 {v(vA)}, 192, {v(vA)}')
    A(f'v_bfe_u32 {v(vT+2)}, {v(vLANE)}, 2, 2\nv_mul_u32_u24 {v(vT+2)}, 192, {v(vT+2)}\nv_lshrrev_b32 {v(vT+3)}, 4, {v(vLANE)}\nv_lshl_add_u32 {v(vT+2)}, {v(vT+3)}, 3, {v(vT+2)}\nv_add_u32 {v(vA)}, {HL}, {v(vT+2)}')
    A('s_waitcnt lgkmcnt(0)')
    for s in range(3): A(f'ds_read2_b64 {v(vQ+4*s,4)}, {v(vA)} offset0:{8*s} offset1:{8*s+4}')
    if xtra >= 0:
        A(f'v_mov_b32 {v(vXF)}, {FLG+16}')
        hwait(2, 'L_hww')
    A(f'v_lshrrev_b32 {v(vT)}, 2, {v(vLANE)}\nv_lshlrev_b32 {v(vT)}, 8, {v(vT)}\nv_and_b32 {v(vT+1)}, 3, {v(vLANE)}\nv_lshl_add_u32 {v(vT)}, {v(vT+1)}, 3, {v(vT)}\nv_add_u32 {v(vA)}, {WREG}, {v(vT)}')
    for s in range(3):
        A('s_waitcnt lgkmcnt(0)')
        trread_mfma(8, vA, 4096, vO, s == 0, vF, vQ+4*s)
        if s < 2: A(f'v_add_u32 {v(vA)}, 8192, {v(vA)}')
    sBPA = 39
    A(f's_lshl_b32 s{sBPA}, s{sCB}, 6\ns_add_u32 s{sBPA}, s{sBPA}, s{sR}\ns_lshl_b32 s{sBPA}, s{sBPA}, 10\ns_add_u32 s{sBPA}, s{sBPA}, {BP}')
    A('s_nop 4')
    BG = vW + 16
    for ww in range(4):
        t0 = BG + 4*ww
        A(f'v_mov_b32 {v(t0)}, {v(vO+8*ww)}\nv_mov_b32 {v(t0+1)}, {v(vO+8*ww+4)}\nv_mov_b32 {v(t0+2)}, {v(vTAG)}\nv_mov_b32 {v(t0+3)}, {v(vTAG)}')
    def b_publish():
        for ww in range(4):
            A(f'buffer_store_dwordx4 {v(BG+4*ww,4)}, {v(vL16)}, {srd(rWS)}, s{sBPA} offen sc1')
            if ww < 3: A(f's_add_u32 s{sBPA}, s{sBPA}, 16384')
    if not blate: b_publish()
    vG0, vG1, vX0, vX1, vXO = vS+2, vS+3, vS+4, vS+5, vS+6
    A(f's_mul_i32 s{sT0}, s{sRB}, 1280\ns_lshl_b32 s{sT1}, s{sSLC2}, 6\ns_add_u32 s{sT0}, s{sT0}, s{sT1}')
    A(f'v_and_b32 {v(vXO)}, 15, {v(vLANE)}\nv_lshlrev_b32 {v(vXO)}, 1, {v(vXO)}\nv_add_u32 {v(vXO)}, s{sT0}, {v(vXO)}')
    if otouch: A(f'global_load_ushort {v(vX0)}, {v(vXO)}, {sp(sOUT)}\ns_waitcnt vmcnt(0)')
    A(f'global_load_ushort {v(vX0)}, {v(vXO)}, {sp(sX)}\nglobal_load_ushort {v(vX1)}, {v(vXO)}, {sp(sX)} offset:32')
    sBG = 40
    A(f's_lshl_b32 s{sT0}, s{sSLC2}, 14\ns_lshl_b32 s{sT1}, s{sRB}, 8\ns_add_u32 s{sT0}, s{sT0}, s{sT1}\ns_add_u32 s{sBG}, s{sT0}, {BP}')
    for p in range(1, 4): A(f's_add_u32 s{sBG+p}, s{sBG}, {4096*p}')
    def b_gather():
        G = vF + 16
        (polls if sel & 2 else poll)('L_pb', [wsload(G+4*p, vG4, sBG+p) for p in range(4)], [G+4*p+3 for p in range(4)], 5)
        for k in range(2):
            A(f'v_add_f32 {v(G+k)}, {v(G+k)}, {v(G+4+k)}\nv_add_f32 {v(G+8+k)}, {v(G+8+k)}, {v(G+12+k)}\nv_add_f32 {v(G+k)}, {v(G+k)}, {v(G+8+k)}')
            xsum(G+k, vT, full=False)
        rnd2(G, G+1, vT)
        for k in range(2):
            A(f'v_mul_f32 {v(vT)}, s{sL2E}, {v(G+k)}\nv_max_f32 {v(vT)}, {f2u(-126.0):#x}, {v(vT)}\nv_exp_f32 {v(vT)}, -{v(vT)}\ns_nop 0\nv_add_f32 {v(vT)}, 1.0, {v(vT)}\nv_rcp_f32 {v(vT+1)}, {v(vT)}\ns_nop 0')
            fdiv(vG0+k, G+k, vT, vT+1, vT+2)
        rnd2(vG0, vG1, vT)
    if not blate: b_gather()
    A(f's_waitcnt vmcnt(0)\nv_lshlrev_b32 {v(vX0)}, 16, {v(vX0)}\nv_lshlrev_b32 {v(vX1)}, 16, {v(vX1)}')
    A(f's_lshl_b32 s{sT0}, s{sSLC2}, {14 if y8 else 15}\ns_lshl_b32 s{sT1}, s{sRB}, {7 if y8 else 8}\ns_add_u32 s{sT0}, s{sT0}, s{sT1}\ns_add_u32 s{rK}, s{sT0}, {YP}')
    for p in range(1, 8): A(f's_add_u32 s{rK+p}, s{rK}, {(2048 if y8 else 4096)*p}')
    vG8 = vS + 7
    A(f'v_lshrrev_b32 {v(vG8)}, 1, {v(vG4)}')
    A('L_hx:')
    if stamps == 5:
        A(f'v_mov_b32 {v(vXF)}, {FLG+16}')
        hwait(13, 'L_hws')
        A(f's_memrealtime {sp(sST+2*3)}\ns_waitcnt lgkmcnt(0)')
    if lead:
        A(f's_and_b32 s{sT0}, s2, {lmask}\ns_cmp_eq_u32 s{sT0}, 5\ns_cselect_b32 s{sT0}, 0, s{sXS}\ns_cmp_lg_u32 s{sT0}, 0\ns_cbranch_scc1 L_hb4')
    elif not bal: A(f's_cmp_lg_u32 s{sXS}, 0\ns_cbranch_scc1 L_hb4')
    sREC, sOTH = 36, 37
    A(f's_lshl_b32 s{sREC}, s{sRHO}, 1\ns_add_u32 s{sOTH}, s{sREC}, 1\ns_sub_u32 s{sOTH}, s{sOTH}, s{sHALF}\ns_add_u32 s{sREC}, s{sREC}, s{sHALF}')
    A(f's_mul_i32 s{sREC}, s{sREC}, 6144\ns_add_u32 s{sREC}, s{sREC}, {SCO}\ns_mul_i32 s{sOTH}, s{sOTH}, 6144\ns_add_u32 s{sOTH}, s{sOTH}, {SCO}')
    A(f'v_add_u32 {v(vXA)}, {STG}, {v(vL16)}\nv_mov_b32 {v(vXF)}, {FLG+16}\nv_and_b32 {v(vT)}, 3, {v(vLANE)}\nv_cmp_eq_u32 vcc, 2, {v(vT)}\nv_mov_b32 {v(vT)}, -20\ns_nop 0\nv_cndmask_b32 {v(vT)}, 8, {v(vT)}, vcc\nv_add_u32 {v(vXB)}, {v(vXA)}, {v(vT)}')
    sE0, sE1 = 96, 98
    A(f's_bitcmp1_b32 s{sXD}, 0\ns_cselect_b32 s{sE0}, 0xffffff00, 0\ns_bitcmp1_b32 s{sXD}, 1\ns_cselect_b32 s{sE0+1}, -1, 0\ns_bitcmp1_b32 s{sXD}, 2\ns_cselect_b32 s{sE1}, 0xffffff, 0\ns_mov_b32 s{sE1+1}, 0')
    sTO = 38
    def cp_pub(i):
        A(f's_memrealtime {sp(sP)}\ns_lshl_b32 s{sT1}, s2, 4\ns_add_u32 s{sT1}, s{sT1}, {TS + 4096*i}\nv_mov_b32 {v(vS+11)}, {v(vTAG)}\ns_waitcnt lgkmcnt(0)\ns_add_u32 s{sTO}, s{sP}, 0')
        A(f'v_mov_b32 {v(vS+8)}, s{sTO}\ns_mov_b64 exec, 1\nbuffer_store_dwordx4 {v(vS+8,4)}, {v(vL16)}, {srd(rWS)}, s{sT1} offen sc1\ns_mov_b64 exec, -1')
    CG = vW + 32
    def cp_load(i):
        A(f'v_lshlrev_b32 {v(vT+2)}, 6, {v(vLANE)}\nv_bfe_u32 {v(vT+3)}, {v(vLANE)}, 1, 2\nv_lshl_add_u32 {v(vT+2)}, {v(vT+3)}, 4, {v(vT+2)}\ns_mov_b32 s{sT1}, {TS + 4096*i}')
        A(f'buffer_load_dwordx4 {v(CG,4)}, {v(vT+2)}, {srd(rWS)}, s{sT1} offen sc1\ns_memrealtime {sp(sP)}')
    def cp_use():
        A(f's_waitcnt vmcnt(0) lgkmcnt(0)\ns_sub_u32 s{sT0}, s{sP}, s{sTO}\nv_cmp_eq_u32 vcc, {v(CG+3)}, {v(vTAG)}\nv_subrev_u32 {v(CG)}, s{sTO}, {v(CG)}\nv_mov_b32 {v(vT)}, s{sT0}')
        A(f'v_cndmask_b32 {v(CG)}, {v(vT)}, {v(CG)}, vcc\nv_mov_b32 {v(vT)}, 0x190\nv_mov_b32 {v(vT+1)}, -400\nv_med3_i32 {v(CG)}, {v(CG)}, {v(vT)}, {v(vT+1)}')
        xsum(CG, vT, 'v_add_u32')
        A(f'ds_read_b32 {v(vT+2)}, {v(vXF)}\nv_readfirstlane_b32 s{sT0}, {v(CG)}\ns_nop 0\ns_ashr_i32 s{sT0}, s{sT0}, 6')
        A(f's_abs_i32 s{sT1}, s{sT0}\ns_sub_i32 s{sT1}, s{sT1}, {dead}\ns_max_i32 s{sT1}, s{sT1}, 0\ns_mul_i32 s{sT1}, s{sT1}, {gain}\ns_lshr_b32 s{sT1}, s{sT1}, 8\ns_min_u32 s{sT1}, s{sT1}, {kmax}')
        A(f's_waitcnt lgkmcnt(0)\nv_readfirstlane_b32 s{sT2}, {v(vT+2)}\ns_nop 0\ns_lshr_b32 s{sT2}, s{sT2}, 2\ns_add_u32 s{sT2}, s{sT2}, s{sT1}\ns_cmp_eq_u32 s{sT1}, 0\ns_cselect_b32 s{sT2}, 0, s{sT2}')
        A(f's_sub_i32 s{sT1}, 0, s{sT2}\ns_cmp_lt_i32 s{sT0}, 0\ns_cselect_b32 s{sT2}, s{sT2}, s{sT1}\nv_mov_b32 {v(vT)}, s{sT2}\nds_write_b32 {v(vXF)}, {v(vT)} offset:8')
    def cp_all(sel_):
        for i, n in enumerate(cpl):
            if bal and n != 23 and sel_(n):
                hwait(n, f'L_cp{i}'); cp_pub(i); hwait(n + cgap, f'L_cg{i}'); cp_load(i); cp_use()
    cp_all(lambda n: n < 23)
    hwait(pubt, 'L_hw0')
    stamp(1)
    if bal and 23 in cpl: cp_pub(cpl.index(23))
    if lead:
        A(f'v_mov_b32 {v(vT+2)}, {GO}\ns_and_b32 s{sT0}, s2, {lmask}\ns_cmp_lg_u32 s{sT0}, 5\ns_cbranch_scc1 L_go')
        hwait(lead, 'L_hwl')
        A(f's_mov_b64 exec, 1\nbuffer_store_dword {v(vTAG)}, {v(vT+2)}, {srd(rWS)}, 0 offen sc1\ns_mov_b64 exec, -1')
        if lpipe:
            A('L_go:')
            for k in range(3): A(f'buffer_load_dword {v(vT+4+k)}, {v(vT+2)}, {srd(rWS)}, 0 offen sc1\ns_sleep {lpipe}')
            A('L_go2:')
            for k in range(4):
                A(f'buffer_load_dword {v(vT+4+(k+3)%4)}, {v(vT+2)}, {srd(rWS)}, 0 offen sc1\nds_read_b32 {v(vT)}, {v(vXF)}\ns_waitcnt vmcnt(3) lgkmcnt(0)')
                A(f'v_cmp_eq_u32 vcc, {v(vT+4+k)}, {v(vTAG)}\nv_readfirstlane_b32 s{sT0}, {v(vT)}\ns_cbranch_vccnz L_go_ok\ns_cmp_ge_u32 s{sT0}, {4*fb}\ns_cbranch_scc1 L_go_ok')
            A('s_branch L_go2\nL_go_ok:')
        else:
            A(f'L_go:\nbuffer_load_dword {v(vT+3)}, {v(vT+2)}, {srd(rWS)}, 0 offen sc1\nds_read_b32 {v(vT)}, {v(vXF)}\ns_waitcnt vmcnt(0) lgkmcnt(0)')
            A(f'v_cmp_eq_u32 vcc, {v(vT+3)}, {v(vTAG)}\nv_readfirstlane_b32 s{sT0}, {v(vT)}\ns_cbranch_vccnz L_go_ok\ns_cmp_lt_u32 s{sT0}, {4*fb}\ns_cbranch_scc1 L_go\nL_go_ok:')
    stamp(3)
    def masked(i, lbl): return f's_cmp_eq_u64 {sp([sE0, sE1][i])}, 0\ns_cbranch_scc1 {lbl}{i}\ns_mov_b64 exec, {sp([sE0, sE1][i])}'
    if not (noex & 1):
        for i in range(2):
            A(masked(i, 'L_np'))
            for w in range(4):
                r = vF + 16*i + 4*w
                A(f'ds_read_b64 {v(r,2)}, {v(vXA)} offset:{1536*w+1024*i}\nds_read_b32 {v(r+2)}, {v(vXB)} offset:{1536*w+1024*i}\nv_mov_b32 {v(r+3)}, {v(vTAG)}')
            for w in range(4):
                r = vF + 16*i + 4*w
                A(f's_add_u32 s{sT0}, s{sREC}, {1536*w+1024*i}\ns_waitcnt lgkmcnt({6-2*w})')
                A(f'buffer_store_dwordx4 {v(r,4)}, {v(vL16)}, {srd(rWS)}, s{sT0} offen {stfl}')
            A(f's_mov_b64 exec, -1\nL_np{i}:')
    if lead: A(f's_cmp_lg_u32 s{sXS}, 0\ns_cbranch_scc1 L_hb4')
    hwait(gat, 'L_hw1')
    if bal and 23 in cpl: cp_load(cpl.index(23))
    if bal: A(f's_cmp_lg_u32 s{sXS}, 0\ns_cbranch_scc1 L_nox')
    if not (noex & 2):
        G = vO
        for k in range(8): A(f'v_mov_b32 {v(G+4*k+3)}, {v(vTAG)}')
        lds_ = []
        for i in range(2):
            t_ = masked(i, 'L_ng') + '\n'
            for w in range(4):
                t_ += f's_add_u32 s{sT0}, s{sOTH}, {1536*w+1024*i}\nbuffer_load_dwordx4 {v(G+16*i+4*w,4)}, {v(vL16)}, {srd(rWS)}, s{sT0} offen {slfl}\n'
            lds_.append(t_ + f's_mov_b64 exec, -1\nL_ng{i}:')
        poll('L_px', lds_, [G+4*k+3 for k in range(8)], 8)
        for i in range(2):
            A(masked(i, 'L_nw'))
            for w in range(4): A(f'ds_write_b64 {v(vXA)}, {v(G+16*i+4*w,2)} offset:{1536*w+1024*i}\nds_write_b32 {v(vXB)}, {v(G+16*i+4*w+2)} offset:{1536*w+1024*i}')
            A(f's_mov_b64 exec, -1\ns_waitcnt lgkmcnt(0)\nL_nw{i}:')
    A(f'v_mov_b32 {v(vT)}, 1\nds_write_b32 {v(vXF)}, {v(vT)} offset:4')
    stamp(4)
    if bal: A('L_nox:')
    if bal and 23 in cpl: cp_use()
    A('L_hb4:')
    A(f'v_mul_u32_u24 {v(vA)}, 12, {v(vLANE)}\nv_add_u32 {v(vA)}, {OCB}, {v(vA)}\nv_mov_b32 {v(vAL)}, {OCB+768}')
    A(f's_lshl_b32 s{sT1}, s{sH}, 3\ns_add_u32 s{sT1}, s{sT1}, s{sJ}\ns_lshl_b32 s{sT1}, s{sT1}, 11\ns_add_u32 s{sT1}, s{sT1}, {OP}')
    Gm = vQ + 16
    r0 = vP
    ml = vT + 4
    def weights():
        A(f'v_max3_f32 {v(ml)}, {v(Gm)}, {v(Gm+2)}, {v(Gm+4)}\nv_max_f32 {v(ml)}, {v(ml)}, {v(Gm+6)}')
        for w in range(4): A(f'v_sub_f32 {v(Gm+2*w)}, {v(Gm+2*w)}, {v(ml)}')
        for w in range(4): A(f'v_exp_f32 {v(Gm+2*w)}, {v(Gm+2*w)}')
        A(f'v_mov_b32 {v(r0+3)}, {v(vTAG)}\nv_mov_b32 {v(ml+3)}, {v(vTAG)}\nv_mov_b32 {v(ml+2)}, {v(vTAG)}')
        A(f'v_mul_f32 {v(ml+1)}, {v(Gm)}, {v(Gm+1)}')
        for w in range(1, 4): A(f'v_fmac_f32 {v(ml+1)}, {v(Gm+2*w)}, {v(Gm+2*w+1)}')
    if lred:
        A(f'v_mov_b32 {v(vXF)}, {FLG+16}')
        hwait(29, 'L_hw2', 8)
        if stamps == 5: A(f's_memrealtime {sp(sST+2*4)}\ns_waitcnt lgkmcnt(0)')
        for w in range(4): A(f'ds_read_b64 {v(Gm+2*w,2)}, {v(vAL)} offset:{1024*w}')
        A('s_waitcnt lgkmcnt(0)')
        weights()
        for w in range(1, 4): A(f'v_add_u32 {v(vQ+4+w)}, {1024*w}, {v(vA)}')
        if bal and max(cpl) > 23:
            A(f's_mov_b32 s{sOTH}, s{sT1}')
            cp_all(lambda n: n > 23)
            A(f's_mov_b32 s{sT1}, s{sOTH}\nv_mov_b32 {v(r0+3)}, {v(vTAG)}')
        A('s_barrier')
        stamp(5)
        for w in range(4):
            a_ = vA if w == 0 else vQ+4+w
            A(f'ds_read2_b32 {v(vF+4*w,2)}, {v(a_)} offset0:0 offset1:1\nds_read_b32 {v(vF+4*w+2)}, {v(a_)} offset:8')
    else:
        A('s_barrier')
        stamp(5)
        for w in range(4): A(f'ds_read_b64 {v(Gm+2*w,2)}, {v(vAL)} offset:{1024*w}')
        for w in range(4):
            A(f'ds_read2_b32 {v(vF+4*w,2)}, {v(vA)} offset0:0 offset1:1\nds_read_b32 {v(vF+4*w+2)}, {v(vA)} offset:8')
            if w < 3: A(f'v_add_u32 {v(vA)}, 1024, {v(vA)}')
        A('s_waitcnt lgkmcnt(8)')
        weights()
    A('s_waitcnt lgkmcnt(0)')
    for k in range(3): A(f'v_mul_f32 {v(r0+k)}, {v(Gm)}, {v(vF+k)}')
    for w in range(1, 4):
        for k in range(3): A(f'v_fmac_f32 {v(r0+k)}, {v(Gm+2*w)}, {v(vF+4*w+k)}')
    A(f'buffer_store_dwordx4 {v(r0,4)}, {v(vL16)}, {srd(rWS)}, s{sT1} offen sc1')
    A(f's_mov_b64 exec, 1\nbuffer_store_dwordx4 {v(ml,4)}, {v(vL16)}, {srd(rWS)}, s{sT1} offen offset:1024 sc1\ns_mov_b64 exec, -1')
    if hb5: A(f's_cmp_ge_u32 s{sJ}, 5\ns_cbranch_scc1 L_hnb5\ns_barrier\nL_hnb5:')
    A(f's_cmp_eq_u32 s{sHASW1}, 0\ns_cbranch_scc1 L_hdone')
    if blate:
        b_publish()
        b_gather()
    G = vW
    if y8:
        mky = lambda b: [f'buffer_load_dwordx2 {v(b+4*p+2,2)}, {v(vG8)}, {srd(rWS)}, s{rK+p} offen sc1' for p in range(8)]
        def usey(b):
            for p in range(4):
                A(f'v_lshlrev_b32 {v(G+2*p)}, 16, {v(b+8*p+2)}\nv_and_b32 {v(G+2*p+1)}, 0xffff0000, {v(b+8*p+2)}\nv_lshlrev_b32 {v(G+8)}, 16, {v(b+8*p+6)}\nv_and_b32 {v(G+9)}, 0xffff0000, {v(b+8*p+6)}')
                A(f'v_add_f32 {v(G+2*p)}, {v(G+2*p)}, {v(G+8)}\nv_add_f32 {v(G+2*p+1)}, {v(G+2*p+1)}, {v(G+9)}')
    else:
        mky = lambda b: [wsload(b+4*p, vG4, rK+p) for p in range(8)]
        def usey(b):
            for k in range(2):
                for p in range(4): A(f'v_add_f32 {v(G+2*p+k)}, {v(b+8*p+k)}, {v(b+8*p+4+k)}')
    if py: poll2('L_py', mky, 8, vF+16, vO, 6, py, usey)
    else:
        (polls if sel & 2 else poll)('L_py', mky(vF+16), [vF+16+4*p+3 for p in range(8)], 6)
        usey(vF+16)
    stamp(6)
    for k in range(2):
        A(f'v_add_f32 {v(G+k)}, {v(G+k)}, {v(G+2+k)}\nv_add_f32 {v(G+4+k)}, {v(G+4+k)}, {v(G+6+k)}\nv_add_f32 {v(G+k)}, {v(G+k)}, {v(G+4+k)}')
    for k in range(2): xsum(G+k, vT+k, full=False)
    rnd2(G, G+1, vT)
    A(f'v_mul_f32 {v(G)}, {v(G)}, {v(vG0)}\nv_mul_f32 {v(G+1)}, {v(G+1)}, {v(vG1)}')
    rnd2(G, G+1, vT)
    if perturb:
        A(f's_cmp_eq_u32 s{sU2}, 0\ns_cselect_b32 s{sT0}, {f2u(perturb/1000):#x}, 0\ns_mov_b64 exec, 1\nv_add_f32 {v(vX0)}, s{sT0}, {v(vX0)}\ns_mov_b64 exec, -1')
    if pall: A(f'v_mul_f32 {v(G)}, {f2u(1+pall/1000):#x}, {v(G)}\nv_mul_f32 {v(G+1)}, {f2u(1+pall/1000):#x}, {v(G+1)}')
    A(f'v_add_f32 {v(G)}, {v(G)}, {v(vX0)}\nv_add_f32 {v(G+1)}, {v(G+1)}, {v(vX1)}\nv_cvt_pk_bf16_f32 {v(G)}, {v(G)}, {v(G+1)}')
    A(f's_mov_b64 exec, 0xffff\nglobal_store_short {v(vXO)}, {v(G)}, {sp(sOUT)} {ofl}\nglobal_store_short_d16_hi {v(vXO)}, {v(G)}, {sp(sOUT)} offset:32 {ofl}')
    A(f's_cmp_lg_u32 s{sU2}, 0\ns_cbranch_scc1 L_hdone')
    A(f's_mov_b64 exec, 1\nv_mov_b32 {v(vT)}, 0\nglobal_store_dword {v(vT)}, {v(vTAG)}, {sp(sWS)} sc1')
    A('L_hdone:')
    if stamps:
        A('s_waitcnt vmcnt(0)')
        stamp(7)
        write_stamps(256, 'h')
    A('L_end:\ns_endpgm')
    A(f'''.section .rodata,"a"
.p2align 6
.amdhsa_kernel {NAME}_kernel
  .amdhsa_next_free_vgpr {NV}
  .amdhsa_next_free_sgpr 100
  .amdhsa_accum_offset {NV}
  .amdhsa_group_segment_fixed_size 0
  .amdhsa_kernarg_size 96
  .amdhsa_user_sgpr_count 2
  .amdhsa_user_sgpr_kernarg_segment_ptr 1
  .amdhsa_system_sgpr_workgroup_id_x 1
  .amdhsa_float_denorm_mode_32 3
.end_amdhsa_kernel''')
    open(fn, 'w').write('\n'.join(L) + '\n')

if __name__ == '__main__':
    fn = sys.argv[1]
    kw = {}
    for a in sys.argv[2:]:
        k, val = a.split('=')
        try: val = int(val)
        except ValueError: val = val.replace('+', ' ').replace('def', '')
        kw[k] = val
    gen(fn, **kw)
```

```python
import sys, os, struct
NAME = 'recurrent_scan__gqa_block_cached__glu_gated_reglu__decode'

HEADER = '''; Kernarg layout (96 bytes, pointers only, base s[0:1]), everything bf16:
;
'''

def f2u(x): return struct.unpack('<I', struct.pack('<f', x))[0]

def gen(fn, stamps=False, pace=8, up=4, mapping='x', kvil=False, twostage=False, spin=1<<15, knt='nt', vnt='nt', w1nt='nt', w2nt='nt', sleep=0, fixdur=0, D=7, nomem=0, now=0, nopoll=0, nocomp=0, pre=1, force=-1, cap=400, thr=100, noex=0, sync=1, skipx=1, hsl=2, gat=26, perturb=0, pall=0, lead=0, bal=5, gain=15, dead=20, kmax=10, bneg=0, cps='23.34', cgap=3, rank=0, xs=0, qdel=9, rsp=7, rc0=24, rg=2, lastneg=0, ofl='', prio=0, nosleep=1, y8=0, rot=2, rmul=1, umap=1, gord=2, w1sw=1, wearly=2, hb5=1, xtra=-1, sel=0, lpipe=0, lmask=31, fb=26, blate=1, pubt=23, htouch=0, otouch=0, nonuma=0, al=1, glate=1, touch=0, late=0, lred=1, pq=0, po=0, py=0, inl=1, nend=4, Dend=18, dbgv=0, stfl='sc1', slfl='sc1'):
    L = []
    cpl = [int(x) for x in str(cps).split('.')]
    def A(s):
        for ln in s.strip('\n').split('\n'):
            L.append(ln.strip())
    SLOT = 9216; RING = 2*SLOT; WT = 12288
    WREG = 4*RING
    MISC = WREG + 4*WT
    XN = MISC; OBF = MISC
    RED = MISC + 1536
    OCB = RED + 8192
    QL = RED + 12288
    HL = QL + 384
    FLG = HL + 768
    STG = FLG + 64
    LDS = 147456
    assert STG + 6144 <= LDS
    P1 = 0x1000; OP = 0x100000; YP = 0x200000; BP = 0x300000; VOTE = 0x3F0000; GO = 0x3F8000; TS = 0x3E0000; SCO = 0x400000; WSZ = 0x600000
    TAGC = 0x9E3779B9
    sX, sK, sV, sWQ, sWO, sWG, sWU, sWD, sOUT, sDBG, sWS = 4, 6, 8, 10, 12, 16, 18, 20, 22, 24, 26
    rK, rV, rW1, rW2, rWS = 28, 32, 36, 40, 44
    sWAVE, sH, sJ, sB, sHALF = 48, 49, 50, 51, 52
    sBETA, sPI, sHASW1, sRS = 53, 54, 55, 56
    sSLA, sSLB, sSLC = 57, 58, 59
    sOFF, sT, sCNT = 60, 61, 62
    sSC, sL2E = 63, 64
    sT0, sT1, sT2, sT3 = 65, 66, 67, 68
    sU2, sR, sCB, sRB, sSLC2 = 69, 70, 71, 72, 73
    sN0, sN1, sFLV, sFL = 70, 71, 72, 73
    sU, sPUB, sNEG, sVB = 14, 15, 34, 32
    sRHO = 3
    sXD, sXS = 92, 93
    sCM = 94
    sSTG = 35
    sU0 = 96
    sP = 74
    sST = 76
    def srd(r): return f's[{r}:{r+3}]'
    def sp(r): return f's[{r}:{r+1}]'
    vLANE, vL16, vTAG, vKA0, vVA0, vA, vM, vML, vLS, vAL = 1, 2, 3, 4, 5, 6, 7, 8, 9, 10
    vT = 12
    vS = 28
    vP = 36
    vQ = 40
    vF = 64
    vO = 112
    vW = 160
    vR = 208
    vM2B, vM2X, vM3, vSK, vSV, vFA, vONE, vPA = range(212, 220)
    vSRC = 220
    vKB = 224
    vVB = 228
    vAD = 236
    NV = 244
    def v(r, n=1): return f'v{r}' if n == 1 else f'v[{r}:{r+n-1}]'
    inhelper = [False]
    def pstamp(i):
        if stamps == 3: A(f's_memrealtime {sp(sST+2*i)}\ns_waitcnt lgkmcnt(0)')
    def qstamp(i):
        if stamps == 4: A(f's_memrealtime {sp(sST+2*i)}\ns_waitcnt lgkmcnt(0)')
    def stamp(i):
        if stamps in (3, 4) and i < 7 and not inhelper[0]: return
        if stamps == 5 and inhelper[0] and i in (3, 4): return
        if stamps:
            A(f's_memrealtime {sp(sST+2*i)}\ns_waitcnt lgkmcnt(0)')
    def write_stamps(rec_base, lbl):
        if not stamps: return
        A(f's_lshl_b32 s{sT0}, s2, 6\ns_add_u32 s{sT0}, s{sT0}, {0x20000000 + rec_base*64}')
        A(f's_add_u32 s{sP}, s{sWS}, s{sT0}\ns_addc_u32 s{sP+1}, s{sWS+1}, 0')
        A(f's_mov_b64 exec, 1\nv_mov_b32 {v(vA)}, 0')
        for i in range(4):
            for k in range(4): A(f'v_mov_b32 {v(vT+k)}, s{sST+4*i+k}')
            A(f'global_store_dwordx4 {v(vA)}, {v(vT,4)}, {sp(sP)} offset:{16*i}\ns_nop 1')
    def xsum(r, t, op='v_add_f32', full=True):
        if full:
            for mode in ['quad_perm:[1,0,3,2]', 'quad_perm:[2,3,0,1]', 'row_half_mirror', 'row_mirror']:
                A(f's_nop 1\n{op}_dpp {v(r)}, {v(r)}, {v(r)} {mode} row_mask:0xf bank_mask:0xf')
        for sw in ['v_permlane16_swap_b32', 'v_permlane32_swap_b32']:
            A(f'v_mov_b32 {v(t)}, {v(r)}\ns_nop 1\n{sw} {v(r)}, {v(t)}\n{op} {v(r)}, {v(r)}, {v(t)}')
    def rnd(r, t):
        A(f'v_cvt_pk_bf16_f32 {v(t)}, {v(r)}, {v(r)}\nv_lshlrev_b32 {v(r)}, 16, {v(t)}')
    def rnd2(r0, r1, t):
        A(f'v_cvt_pk_bf16_f32 {v(t)}, {v(r0)}, {v(r1)}\nv_lshlrev_b32 {v(r0)}, 16, {v(t)}\nv_and_b32 {v(r1)}, 0xffff0000, {v(t)}')
    def dma_tile(soff, sslot, paced=None, lo=0, hi=9, fl='nt'):
        for i in range(lo, hi):
            A(f's_add_u32 m0, s{sslot}, {1024*i}')
            if i == lo or i % 3 == 0: A(f's_add_u32 s{sT0}, s{soff}, {3072*(i//3)}')
            elif not paced: A('s_nop 0')
            if paced: A(f's_waitcnt vmcnt({paced-1})')
            A(f'buffer_load_dwordx4 {v(vSRC+i%3)}, {srd(rK)}, s{sT0} offen {fl} lds')
    def rot3(dst, tmp):
        A(f's_lshr_b32 s{dst}, s{sRHO}, {rot}')
        if rmul != 1: A(f's_mul_i32 s{dst}, s{dst}, {rmul}')
        A(f's_mul_i32 s{tmp}, s{dst}, 43691\ns_lshr_b32 s{tmp}, s{tmp}, 17\ns_mul_i32 s{tmp}, s{tmp}, 3\ns_sub_u32 s{dst}, s{dst}, s{tmp}')
    def block_params(default, sn):
        if default == 1: A(f's_cmp_eq_u32 s{sHALF}, 1')
        else: A(f's_bitcmp1_b64 {sp(sCM)}, s{sT}')
        A(f's_addc_u32 s{sT1}, s{sU}, s{sU}\ns_lshl_b32 s{sT1}, s{sT1}, 6\ns_add_u32 s{sT2}, s{sT1}, 65\ns_add_u32 s{sT1}, s{sT1}, 1')
        A(f's_mul_i32 s{sT1}, s{sT1}, 43691\ns_mul_i32 s{sT2}, s{sT2}, 43691\ns_lshr_b32 s{sT1}, s{sT1}, 17\ns_lshr_b32 s{sT2}, s{sT2}, 17')
        A(f's_mul_i32 s{sOFF}, s{sT1}, 384\ns_sub_u32 s{sT1}, s{sT2}, s{sT1}\ns_mul_i32 s{sT2}, s{sT2}, 384\ns_min_u32 s{rK+2}, s{sT2}, {0 if nomem else 1572864}')
        if default == 2: A(f's_cmp_ge_u32 s{sT}, 46\ns_cselect_b32 s{rK+2}, 0, s{rK+2}')
        else: A(f's_cmp_eq_u32 s{sT1}, 22\ns_cselect_b32 s{sn}, -1, 0')
        if umap: A(f's_bitcmp1_b32 s{sU}, 0\ns_cselect_b32 s{sT1}, 7, 1\ns_add_u32 s{sU}, s{sU}, s{sT1}')
        else: A(f's_add_u32 s{sU}, s{sU}, 4')
        if rot >= 0: A(f's_cmp_ge_u32 s{sU}, 96\ns_cselect_b32 s{sT1}, 96, 0\ns_sub_u32 s{sU}, s{sU}, s{sT1}')
    def poll(lbl, loads, tagregs, code):
        A(f's_mov_b32 s{sCNT}, {spin}\n{lbl}:')
        for x in loads: A(x)
        A('s_waitcnt vmcnt(0)')
        A(f'v_xor_b32 {v(vT)}, {v(tagregs[0])}, {v(vTAG)}')
        for r in tagregs[1:]:
            A(f'v_xor_b32 {v(vT+1)}, {v(r)}, {v(vTAG)}\nv_or_b32 {v(vT)}, {v(vT)}, {v(vT+1)}')
        if (nopoll and lbl != 'L_pq') or (noex and lbl == 'L_px'): A(f's_branch {lbl}_ok')
        A(f'v_cmp_ne_u32 vcc, 0, {v(vT)}\ns_cbranch_vccz {lbl}_ok')
        if sleep: A(f's_sleep {sleep}')
        A(f's_sub_u32 s{sCNT}, s{sCNT}, 1\ns_cmp_lg_u32 s{sCNT}, 0\ns_cbranch_scc1 {lbl}')
        A(f'v_mov_b32 {v(vT)}, 0\nv_mov_b32 {v(vT+1)}, {code}\nglobal_store_dword {v(vT)}, {v(vT+1)}, {sp(sDBG)}')
        A(f'{lbl}_ok:')
    def polls(lbl, loads, tagregs, code):
        A(f's_mov_b32 s{sCNT}, {spin}')
        for x in loads: A(x)
        A(f'{lbl}:\ns_waitcnt vmcnt(0)\ns_mov_b32 s{sT3}, 0')
        for k, (x, r) in enumerate(zip(loads, tagregs)):
            A(f'v_cmp_ne_u32 vcc, {v(r)}, {v(vTAG)}\ns_cbranch_vccz {lbl}_s{k}\ns_mov_b64 exec, vcc')
            A(x)
            A(f's_mov_b64 exec, -1\ns_mov_b32 s{sT3}, 1\n{lbl}_s{k}:')
        A(f's_cmp_eq_u32 s{sT3}, 0\ns_cbranch_scc1 {lbl}_ok')
        A(f's_sub_u32 s{sCNT}, s{sCNT}, 1\ns_cmp_lg_u32 s{sCNT}, 0\ns_cbranch_scc1 {lbl}')
        A(f'v_mov_b32 {v(vT)}, 0\nv_mov_b32 {v(vT+1)}, {code}\nglobal_store_dword {v(vT)}, {v(vT+1)}, {sp(sDBG)}\ns_waitcnt vmcnt(0)')
        A(f'{lbl}_ok:')
    def poll2(lbl, mk, n, base, alt, code, delay, use):
        def check(b, ok):
            A(f's_waitcnt vmcnt({n})')
            A(f'v_xor_b32 {v(vT)}, {v(b+3)}, {v(vTAG)}')
            for k in range(1, n): A(f'v_xor_b32 {v(vT+1)}, {v(b+4*k+3)}, {v(vTAG)}\nv_or_b32 {v(vT)}, {v(vT)}, {v(vT+1)}')
            A(f'v_cmp_ne_u32 vcc, 0, {v(vT)}\ns_cbranch_vccz {ok}')
        A(f's_mov_b32 s{sCNT}, {spin}')
        for x in mk(base): A(x)
        A(f's_sleep {delay}\n{lbl}:')
        for x in mk(alt): A(x)
        check(base, f'{lbl}_ok')
        for x in mk(base): A(x)
        check(alt, f'{lbl}_okb')
        A(f's_sub_u32 s{sCNT}, s{sCNT}, 1\ns_cmp_lg_u32 s{sCNT}, 0\ns_cbranch_scc1 {lbl}')
        A(f'v_mov_b32 {v(vT)}, 0\nv_mov_b32 {v(vT+1)}, {code}\nglobal_store_dword {v(vT)}, {v(vT+1)}, {sp(sDBG)}')
        A(f'{lbl}_okb:')
        use(alt)
        A(f's_branch {lbl}_done\n{lbl}_ok:')
        use(base)
        A(f'{lbl}_done:')
    def wsload(dst, voff, soff): return f'buffer_load_dwordx4 {v(dst,4)}, {v(voff)}, {srd(rWS)}, s{soff} offen sc1'
    def put3_bf16(r0, t, va):
        A(f'v_cvt_pk_bf16_f32 {v(t)}, {v(r0)}, {v(r0+1)}\nv_cvt_pk_bf16_f32 {v(t+1)}, {v(r0+2)}, {v(r0+2)}')
        A(f'ds_write_b16 {v(va)}, {v(t)}\nds_write_b16_d16_hi {v(va)}, {v(t)} offset:2\nds_write_b16 {v(va)}, {v(t+1)} offset:4')
    def fdiv(q, n, d, r, e):
        A(f'v_mul_f32 {v(q)}, {v(n)}, {v(r)}\nv_fma_f32 {v(e)}, -{v(q)}, {v(d)}, {v(n)}\nv_fma_f32 {v(q)}, {v(e)}, {v(r)}, {v(q)}')
    def trread_mfma(ntile, va, off2, acc, first, frag, aop, va2=None, extra=None):
        def rd(t):
            if va2 is None:
                A(f'ds_read_b64_tr_b16 {v(frag+4*t,2)}, {v(va)} offset:{32*t}')
                A(f'ds_read_b64_tr_b16 {v(frag+4*t+2,2)}, {v(va)} offset:{32*t+off2}')
            else:
                A(f'ds_read_b64_tr_b16 {v(frag+4*t,2)}, {v(va+(t&3))} offset:{128*(t>>2)}')
                A(f'ds_read_b64_tr_b16 {v(frag+4*t+2,2)}, {v(va2+(t&3))} offset:{128*(t>>2)}')
        pre = min(4, ntile)
        for t in range(pre): rd(t)
        for t in range(ntile):
            if t + pre < ntile: rd(t + pre)
            if extra and t + pre == ntile - 1: A(extra)
            left = min(ntile - 1, t + pre) - t
            A(f's_waitcnt lgkmcnt({2*left + (1 if extra and t + pre >= ntile - 1 else 0)})')
            c = '0' if first else v(acc+4*t, 4)
            A(f'v_mfma_f32_16x16x32_bf16 {v(acc+4*t,4)}, {v(aop,4)}, {v(frag+4*t,4)}, {c}')

    A(HEADER)
    A(f'; @launch grid=(256,1,1) block=(320,1,1) lds={LDS}')
    A('.amdgcn_target "amdgcn-amd-amdhsa--gfx950"\n.text')
    if al: A('.p2align 12')
    A(f'.globl {NAME}_kernel\n.p2align 8\n.type {NAME}_kernel,@function\n{NAME}_kernel:')
    A('s_cmp_ge_u32 s2, 256\ns_cbranch_scc1 L_end')
    A('s_load_dwordx16 s[4:19], s[0:1], 0\ns_load_dwordx8 s[20:27], s[0:1], 64')
    if fixdur: A('s_memrealtime s[96:97]')
    if stamps:
        A(f's_memrealtime {sp(sST)}')
        for i in range(2, 16): A(f's_mov_b32 s{sST+i}, 0')
    A(f'v_lshrrev_b32 {v(vT)}, 6, v0\nv_and_b32 {v(vLANE)}, 63, v0')
    A(f'v_readfirstlane_b32 s{sWAVE}, {v(vT)}')
    A(f'v_lshlrev_b32 {v(vL16)}, 4, {v(vLANE)}')
    A(f's_lshr_b32 s{sT0}, s2, 3\ns_lshl_b32 s{sT0}, s{sT0}, 2\ns_and_b32 s{sT1}, s2, 3\ns_add_u32 s{sRHO}, s{sT0}, s{sT1}')
    A(f's_bfe_u32 s{sHALF}, s2, 0x10002\ns_lshr_b32 s{sB}, s{sRHO}, 5\ns_and_b32 s{sH}, s{sRHO}, 31\ns_lshl_b32 s{sJ}, s{sB}, 1\ns_add_u32 s{sJ}, s{sJ}, s{sHALF}')
    A(f's_mul_i32 s{sU2}, s{sH}, 3\ns_add_u32 s{sU2}, s{sU2}, s{sJ}')
    A(f's_mov_b32 s{sSC}, {f2u(192**-0.5):#x}\ns_mov_b32 s{sL2E}, {f2u(1.4426950408889634):#x}')
    def ws_srd():
        A(f's_mov_b32 s{rWS}, s{sWS}\ns_mov_b32 s{rWS+1}, s{sWS+1}')
    A(f's_mov_b32 s{rWS+2}, {WSZ}\ns_mov_b32 s{rWS+3}, 0x20000')
    def vote_slot(src, sidx, sslot):
        A(f's_mul_i32 s{sidx}, s{src}, 3\ns_lshr_b32 s{sidx}, s{sidx}, 5\ns_lshl_b32 s{sslot}, s{sidx}, 5\ns_add_u32 s{sslot}, s{sslot}, 2\ns_mul_i32 s{sslot}, s{sslot}, 43691\ns_lshr_b32 s{sslot}, s{sslot}, 17\ns_sub_u32 s{sslot}, s{src}, s{sslot}')
    sIDX, sSLT = 40, 41
    A(f's_cmp_eq_u32 s{sWAVE}, 4\ns_cbranch_scc0 L_noprobe')
    if prio: A(f's_setprio {prio}')
    vote_slot(2, sIDX, sSLT)
    A(f's_cmp_ge_u32 s{sIDX}, 12\ns_cselect_b32 s{sT0}, 12, 0\ns_sub_u32 s{sT0}, s{sIDX}, s{sT0}')
    A(f's_lshl_b32 s{sT0}, s{sT0}, 3\ns_and_b32 s{sT1}, s{sSLT}, 7\ns_add_u32 s{sT0}, s{sT0}, s{sT1}\ns_lshl_b32 s{sT0}, s{sT0}, 21')
    A(f's_lshr_b32 s{sT1}, s{sSLT}, 3\ns_lshl_b32 s{sT1}, s{sT1}, 12\nv_mov_b32 {v(vT+4)}, 0\ns_mov_b64 exec, 1\ns_cmp_ge_u32 s{sIDX}, 12')
    A('s_waitcnt lgkmcnt(0)')
    A(f's_cselect_b32 s{sP}, s{sV}, s{sK}\ns_cselect_b32 s{sP+1}, s{sV+1}, s{sK+1}\ns_add_u32 s{sP}, s{sP}, s{sT0}\ns_addc_u32 s{sP+1}, s{sP+1}, 0')
    A(f's_bfe_u32 s{sT0}, s{sP}, 0x10015\ns_lshl_b32 s{sT0}, s{sT0}, 13\ns_add_u32 s{sT0}, s{sT0}, s{sT1}')
    A(f'v_mov_b32 {v(vT)}, s{sT0}\nv_xor_b32 {v(vT+1)}, 0x2000, {v(vT)}')
    A(f'global_load_dword {v(vT+2)}, {v(vT)}, {sp(sP)} nt\nglobal_load_dword {v(vT+3)}, {v(vT+1)}, {sp(sP)} nt\ns_mov_b64 exec, -1')
    if gord == 2: A(f'global_load_dword {v(vTAG)}, {v(vT+4)}, {sp(sWS)} sc1')
    A('s_barrier')
    ws_srd()
    e_ = 1 if gord == 2 else 0
    A(f's_waitcnt vmcnt({1+e_})\ns_memtime s[36:37]\ns_waitcnt vmcnt({e_})\ns_memtime s[38:39]')
    if gord != 2: A(f'global_load_dword {v(vTAG)}, {v(vT+4)}, {sp(sWS)} sc1')
    A('s_branch L_helper\nL_noprobe:')

    sO1, sO2, sOK = sN0, sN1, sFLV
    A(f's_cmp_ge_u32 s{sJ}, 3\ns_cbranch_scc0 L_w1mlp')
    A(f's_mov_b32 s{sBETA}, s{sH}\ns_sub_u32 s{sPI}, s{sJ}, 3\ns_mov_b32 s{sRS}, 12288\ns_mov_b32 s{sHASW1}, 1\ns_mul_i32 s{sO1}, s{sH}, 384')
    A('s_branch L_w1done\nL_w1mlp:')
    A(f's_mul_i32 s{sT1}, s{sU2}, 52429\ns_lshr_b32 s{sT1}, s{sT1}, 18')
    A(f's_mul_i32 s{sT2}, s{sT1}, 5\ns_sub_u32 s{sPI}, s{sU2}, s{sT2}\ns_add_u32 s{sBETA}, s{sT1}, 32\ns_mov_b32 s{sRS}, 3072')
    A(f's_cmp_lt_u32 s{sU2}, 80\ns_cselect_b32 s{sHASW1}, 1, 0\ns_and_b32 s{sT1}, s{sT1}, 7\ns_mul_i32 s{sO1}, s{sT1}, 384')
    A('L_w1done:')
    A(f's_lshl_b32 s{sT1}, s{sPI}, 2\ns_add_u32 s{sT1}, s{sT1}, s{sWAVE}\ns_lshl_b32 s{sT1}, s{sT1}, 5\ns_mul_i32 s{sT1}, s{sT1}, s{sRS}\ns_add_u32 s{sO1}, s{sO1}, s{sT1}')
    A(f's_mul_i32 s{sT1}, s{sRS}, 31\ns_add_u32 s{sT1}, s{sT1}, 384\ns_mul_i32 s{rW1+2}, s{sT1}, s{sHASW1}\ns_mov_b32 s{rW1+3}, 0x20000')
    if now: A(f's_mov_b32 s{rW1+2}, 0')
    for p in range(3):
        A(f'v_add_u32 {v(vT)}, {64*p}, {v(vLANE)}\nv_mul_u32_u24 {v(vT+1)}, 2731, {v(vT)}\nv_lshrrev_b32 {v(vT+1)}, 16, {v(vT+1)}')
        A(f'v_mul_u32_u24 {v(vT+2)}, 24, {v(vT+1)}\nv_sub_u32 {v(vT)}, {v(vT)}, {v(vT+2)}\nv_lshlrev_b32 {v(vT)}, 4, {v(vT)}')
        if not w1sw: A(f'v_mad_u32_u24 {v(vS+p)}, {v(vT+1)}, s{sRS}, {v(vT)}')
        A(f'v_and_b32 {v(vT+3)}, 6, {v(vT+1)}\nv_lshlrev_b32 {v(vT+3)}, 4, {v(vT+3)}\nv_xor_b32 {v(vT)}, {v(vT)}, {v(vT+3)}\nv_lshl_add_u32 {v(vSRC+p)}, {v(vT+2)}, 4, {v(vT)}')
        if w1sw: A(f'v_mad_u32_u24 {v(vS+p)}, {v(vT+1)}, s{sRS}, {v(vT)}')
    A(f's_mul_i32 s{sSLA}, s{sWAVE}, {RING}\ns_add_u32 s{sSLB}, s{sSLA}, {SLOT}\ns_mul_i32 s{sSLC}, s{sWAVE}, {WT}\ns_add_u32 s{sSLC}, s{sSLC}, {WREG}')
    A(f's_mul_i32 s{sT0}, s{sWAVE}, 1280\nv_lshlrev_b32 {v(vA)}, 2, {v(vLANE)}\nv_add_u32 {v(vA)}, s{sT0}, {v(vA)}\ns_mul_i32 s{sOK}, s{sRHO}, 1572864')
    A(f's_cmp_lt_u32 s{sBETA}, 40')
    A('s_waitcnt lgkmcnt(0)')
    pstamp(1)
    if stamps == 3: A(f's_cmp_lt_u32 s{sBETA}, 40')
    A(f's_cselect_b32 s{rW1}, s{sWG}, s{sWU}\ns_cselect_b32 s{rW1+1}, s{sWG+1}, s{sWU+1}\ns_cmp_lt_u32 s{sBETA}, 32\ns_cselect_b32 s{rW1}, s{sWQ}, s{rW1}\ns_cselect_b32 s{rW1+1}, s{sWQ+1}, s{rW1+1}')
    A(f's_add_u32 s{rW1}, s{rW1}, s{sO1}\ns_addc_u32 s{rW1+1}, s{rW1+1}, 0')
    if touch:
        A(f's_load_dword s96, {sp(rW1)}, 0\ns_load_dword s97, {sp(sX)}, 0\ns_load_dword s98, {sp(sK)}, s{sOK}')
    A('s_barrier')
    pstamp(2)
    for k in range(5): A(f'global_load_dword {v(vF+k)}, {v(vA)}, {sp(sX)} offset:{256*k}')
    def w1_issue():
        A(f's_lshl_b32 s{sT2}, s{sRS}, 3\ns_mov_b32 s{sT1}, 0')
        for i in range(12):
            A(f's_add_u32 m0, s{sSLC}, {1024*i}')
            A(f's_add_u32 s{sT1}, s{sT1}, s{sT2}' if i and i % 3 == 0 else 's_nop 0')
            A(f'buffer_load_dwordx4 {v(vS+i%3)}, {srd(rW1)}, s{sT1} offen {w1nt} lds')
    if late:
        assert up == 0
        A(f's_cmp_ge_u32 s{sJ}, 3\ns_cbranch_scc0 L_w1late')
    w1_issue()
    if late: A('L_w1late:')
    A(f'v_mov_b32 {v(vT)}, 0\nglobal_load_dword {v(vTAG)}, {v(vT)}, {sp(sWS)} sc1')
    pstamp(3)
    ws_srd()
    A(f's_add_u32 s{rK}, s{sK}, s{sOK}\ns_addc_u32 s{rK+1}, s{sK+1}, 0\ns_mov_b32 s{rK+3}, 0x20000')
    A(f's_add_u32 s{sVB}, s{sV}, s{sOK}\ns_addc_u32 s{sVB+1}, s{sV+1}, 0')
    A(f's_lshl_b32 s{sU}, s{sWAVE}, {umap}')
    if rot >= 0:
        rot3(sT1, sT2)
        A(f's_lshl_b32 s{sT1}, s{sT1}, 5\ns_add_u32 s{sU}, s{sU}, s{sT1}')
    A(f's_mov_b32 s{sU0}, s{sU}')
    block_params(1, sN0)
    dma_tile(sOFF, sSLA, None, 0, up, knt)
    A(f's_cmp_lt_u32 s{sJ}, 5\ns_cbranch_scc0 L_w2down')
    A(f's_mul_i32 s{sT1}, s{sH}, {192*1280}\ns_lshl_b32 s{sT2}, s{sJ}, 8\ns_add_u32 s{sT1}, s{sT1}, s{sT2}')
    A(f's_add_u32 s{rW2}, s{sWO}, s{sT1}\ns_addc_u32 s{rW2+1}, s{sWO+1}, 0\ns_mov_b32 s{rW2+2}, {47*1280+256}\ns_branch L_w2done')
    A('L_w2down:')
    A(f's_sub_u32 s{sT3}, s{sU2}, 5\ns_mul_i32 s{sT1}, s{sT3}, 52429\ns_lshr_b32 s{sT1}, s{sT1}, 18\ns_mul_i32 s{sT2}, s{sT1}, 5\ns_sub_u32 s{sT2}, s{sT3}, s{sT2}')
    A(f's_mul_i32 s{sT1}, s{sT1}, {96*1280}\ns_lshl_b32 s{sT2}, s{sT2}, 8\ns_add_u32 s{sT1}, s{sT1}, s{sT2}')
    A(f's_add_u32 s{rW2}, s{sWD}, s{sT1}\ns_addc_u32 s{rW2+1}, s{sWD+1}, 0')
    A(f's_cmp_lt_u32 s{sT3}, 80\ns_cselect_b32 s{rW2+2}, {47*1280+256}, 0\ns_cmp_lt_u32 s{sWAVE}, 2\ns_cselect_b32 s{rW2+2}, s{rW2+2}, 0')
    A('L_w2done:')
    A(f's_mul_i32 s{sT1}, s{sWAVE}, {48*1280}\ns_add_u32 s{rW2}, s{rW2}, s{sT1}\ns_addc_u32 s{rW2+1}, s{rW2+1}, 0\ns_mov_b32 s{rW2+3}, 0x20000')
    if now: A(f's_mov_b32 s{rW2+2}, 0')
    def vbases(hf):
        A(f'v_lshrrev_b32 {v(vT)}, 2, {v(vLANE)}')
        if hf: A(f'v_min_u32 {v(vT)}, 5, {v(vT)}\nv_add_u32 {v(vT)}, 16, {v(vT)}')
        A(f'v_bfe_u32 {v(vT+2)}, {v(vT)}, 1, 2\nv_mul_u32_u24 {v(vT)}, 384, {v(vT)}\nv_and_b32 {v(vT+3)}, 3, {v(vLANE)}\nv_lshl_add_u32 {v(vT)}, {v(vT+3)}, 3, {v(vT)}')
        for k in range(4): A(f'v_xor_b32 {v(vT+3)}, {k}, {v(vT+2)}\nv_lshl_add_u32 {v(vVB+4*hf+k)}, {v(vT+3)}, 5, {v(vT)}')
    if w1sw:
        vbases(0)
        for k in range(4): A(f'v_add_u32 {v(vAD+k)}, s{sSLC}, {v(vVB+k)}\nv_add_u32 {v(vAD+4+k)}, 6144, {v(vAD+k)}')
    if not w1sw: A(f'v_lshrrev_b32 {v(vT)}, 2, {v(vLANE)}\nv_mul_u32_u24 {v(vT)}, 384, {v(vT)}\nv_and_b32 {v(vT+1)}, 3, {v(vLANE)}\nv_lshl_add_u32 {v(vVA0)}, {v(vT+1)}, 3, {v(vT)}')
    if late:
        A(f's_cmp_ge_u32 s{sJ}, 3\ns_cbranch_scc1 L_xw\ns_waitcnt vmcnt(0)\nL_xw:')
    A(f's_waitcnt vmcnt({1+12+up})')
    pstamp(4)
    X = vF + 8
    for k in range(5):
        A(f'v_lshlrev_b32 {v(X+2*k)}, 16, {v(vF+k)}\nv_and_b32 {v(X+2*k+1)}, 0xffff0000, {v(vF+k)}')
    a = vT
    A(f'v_add_f32 {v(a)}, {v(X)}, {v(X+1)}')
    for k in range(2, 10): A(f'v_add_f32 {v(a)}, {v(a)}, {v(X+k)}')
    xsum(a, a+1)
    A(f'v_mul_f32 {v(a)}, {f2u(1/640):#x}, {v(a)}')
    b_ = vT+2
    A(f'v_sub_f32 {v(a+1)}, {v(X)}, {v(a)}\nv_mul_f32 {v(b_)}, {v(a+1)}, {v(a+1)}')
    for k in range(1, 10): A(f'v_sub_f32 {v(a+1)}, {v(X+k)}, {v(a)}\nv_fmac_f32 {v(b_)}, {v(a+1)}, {v(a+1)}')
    xsum(b_, a+1)
    A(f'v_mul_f32 {v(b_)}, {f2u(1/640):#x}, {v(b_)}')
    rnd2(a, b_, a+1)
    A(f'v_add_f32 {v(b_)}, {f2u(1e-5):#x}, {v(b_)}')
    rnd(b_, a+1)
    c_ = vT+3
    A(f'v_sqrt_f32 {v(c_)}, {v(b_)}\ns_nop 0\nv_rcp_f32 {v(c_+1)}, {v(c_)}\nv_fma_f32 {v(a+1)}, -{v(c_)}, {v(c_)}, {v(b_)}')
    A(f'v_mul_f32 {v(c_+1)}, 0.5, {v(c_+1)}\nv_fma_f32 {v(c_)}, {v(a+1)}, {v(c_+1)}, {v(c_)}')
    rnd(c_, a+1)
    A(f'v_rcp_f32 {v(c_+1)}, {v(c_)}')
    A(f'v_mov_b32 {v(vT+6)}, {v(X)}\nv_mov_b32 {v(vT+7)}, {v(X+1)}')
    for k in range(1, 5):
        A(f's_cmp_eq_u32 s{sPI}, {k}\ns_cselect_b64 vcc, -1, 0\nv_cndmask_b32 {v(vT+6)}, {v(vT+6)}, {v(X+2*k)}, vcc\nv_cndmask_b32 {v(vT+7)}, {v(vT+7)}, {v(X+2*k+1)}, vcc')
    A(f'v_sub_f32 {v(vT+6)}, {v(vT+6)}, {v(a)}\nv_sub_f32 {v(vT+7)}, {v(vT+7)}, {v(a)}')
    rnd2(vT+6, vT+7, a+1)
    fdiv(vT+8, vT+6, c_, c_+1, a+1)
    fdiv(vT+9, vT+7, c_, c_+1, a+1)
    A(f'v_cvt_pk_bf16_f32 {v(vT+8)}, {v(vT+8)}, {v(vT+9)}')
    A(f's_lshl_b32 s{sT1}, s{sWAVE}, 8\ns_add_u32 s{sT1}, s{sT1}, {XN}\nv_lshlrev_b32 {v(vA)}, 2, {v(vLANE)}\nv_add_u32 {v(vA)}, s{sT1}, {v(vA)}')
    A(f'ds_write_b32 {v(vA)}, {v(vT+8)}')
    A(f'v_bfe_u32 {v(vT)}, {v(vLANE)}, 2, 2\nv_lshlrev_b32 {v(vT)}, 8, {v(vT)}\nv_lshrrev_b32 {v(vT+1)}, 4, {v(vLANE)}\nv_lshl_add_u32 {v(vT)}, {v(vT+1)}, 3, {v(vT)}')
    A(f's_lshl_b32 s{sT1}, s{sWAVE}, 6\ns_add_u32 s{sT1}, s{sT1}, {XN}\nv_add_u32 {v(vA)}, s{sT1}, {v(vT)}')
    A('s_waitcnt lgkmcnt(0)\ns_barrier')
    if stamps == 1: stamp(1)
    pstamp(5); qstamp(1)
    A(f'ds_read2_b64 {v(vP,4)}, {v(vA)} offset0:0 offset1:4')
    if late:
        A(f's_cmp_ge_u32 s{sJ}, 3\ns_cbranch_scc1 L_w1early')
        w1_issue()
        A('L_w1early:')
    k0a = max(up, min(9, pace))
    dma_tile(sOFF, sSLA, pace, up, k0a, knt)
    if not w1sw: A(f'v_add_u32 {v(vA)}, s{sSLC}, {v(vVA0)}')
    A(f's_waitcnt vmcnt({k0a}) lgkmcnt(0)')
    pstamp(6); qstamp(2)
    if xtra >= 0:
        dma_tile(sOFF, sSLA, None, k0a, 9, knt)
        block_params(1, sN1)
        dma_tile(sOFF, sSLB, None, 0, xtra, knt)
    if w1sw: trread_mfma(12, vAD, 0, vO, True, vF, vP, vAD+4)
    else: trread_mfma(12, vA, 6144, vO, True, vF, vP)
    qstamp(3)
    A(f's_mul_i32 s{sT1}, s{sWAVE}, 3072\ns_add_u32 s{sT1}, s{sT1}, {RED}')
    A(f'v_lshrrev_b32 {v(vT)}, 4, {v(vLANE)}\nv_mul_u32_u24 {v(vT)}, 768, {v(vT)}\nv_and_b32 {v(vT+1)}, 15, {v(vLANE)}\nv_lshl_add_u32 {v(vT)}, {v(vT+1)}, 2, {v(vT)}\nv_add_u32 {v(vA)}, s{sT1}, {v(vT)}')
    A('s_nop 2')
    for t in range(12): A(f'ds_write_b32 {v(vA)}, {v(vO+4*t)} offset:{64*t}')
    A(f's_mul_i32 s{sT1}, s{sWAVE}, 768\ns_add_u32 s{sT1}, s{sT1}, {RED}\nv_mul_u32_u24 {v(vA)}, 12, {v(vLANE)}\nv_add_u32 {v(vA)}, s{sT1}, {v(vA)}')
    A('s_waitcnt lgkmcnt(0)')
    qstamp(4)
    A('s_barrier')
    qstamp(5)
    for w in range(4):
        for k in range(3): A(f'ds_read_b32 {v(vF+4*w+k)}, {v(vA)} offset:{3072*w+4*k}')
    A(f'v_lshrrev_b32 {v(vT)}, 4, {v(vLANE)}\nv_mul_u32_u24 {v(vT)}, 1280, {v(vT)}\nv_and_b32 {v(vT+1)}, 15, {v(vLANE)}\nv_lshl_add_u32 {v(vS)}, {v(vT+1)}, 4, {v(vT)}')
    A(f's_mul_i32 s{sT1}, s{sBETA}, 5\ns_add_u32 s{sT1}, s{sT1}, s{sPI}\ns_lshl_b32 s{sT1}, s{sT1}, 2\ns_add_u32 s{sT1}, s{sT1}, s{sWAVE}\ns_lshl_b32 s{sT1}, s{sT1}, 10\ns_add_u32 s{sT1}, s{sT1}, {P1}')
    A(f'v_add_u32 {v(vTAG)}, {TAGC:#x}, {v(vTAG)}')
    A('s_waitcnt lgkmcnt(0)')
    for k in range(3):
        A(f'v_add_f32 {v(vF+k)}, {v(vF+k)}, {v(vF+4+k)}\nv_add_f32 {v(vF+8+k)}, {v(vF+8+k)}, {v(vF+12+k)}')
    for k in range(3): A(f'v_add_f32 {v(vF+k)}, {v(vF+k)}, {v(vF+8+k)}')
    A(f'v_mov_b32 {v(vF+3)}, {v(vTAG)}')
    A(f's_cmp_eq_u32 s{sHASW1}, 0\ns_cbranch_scc1 L_nopub1')
    A(f'buffer_store_dwordx4 {v(vF,4)}, {v(vL16)}, {srd(rWS)}, s{sT1} offen sc1')
    A('L_nopub1:')
    qstamp(6)
    stamp(2)
    if xtra >= 0: dma_tile(sOFF, sSLB, pace, xtra, 9, knt)
    else: dma_tile(sOFF, sSLA, pace, k0a, 9, knt)
    A(f's_mov_b32 s{sT1}, 0')
    for i in range(12):
        A(f's_add_u32 m0, s{sSLC}, {1024*i}\ns_waitcnt vmcnt({pace-1})')
        A(f'buffer_load_dwordx4 {v(vS)}, {srd(rW2)}, s{sT1} offen {w2nt} lds')
        if i == qdel: A(f'v_mov_b32 {v(vT)}, {FLG+32}\nv_mov_b32 {v(vT+1)}, 4\nds_write_b32 {v(vT)}, {v(vT+1)}')
        if i < 11: A(f's_add_u32 s{sT1}, s{sT1}, 5120')
    if xtra < 0:
        block_params(1, sN1)
        if qdel >= 12:
            dma_tile(sOFF, sSLB, pace, 0, qdel - 11, knt)
            A(f'v_mov_b32 {v(vT)}, {FLG+32}\nv_mov_b32 {v(vT+1)}, 4\nds_write_b32 {v(vT)}, {v(vT+1)}')
            dma_tile(sOFF, sSLB, pace, qdel - 11, 9, knt)
        else: dma_tile(sOFF, sSLB, pace, 0, 9, knt)
    for t in range(12):
        for r in range(4): A(f'v_mov_b32 {v(vO+4*t+r)}, 0')
    A(f'v_mov_b32 {v(vM)}, {f2u(-1e30):#x}\nv_mov_b32 {v(vML)}, {f2u(-1e30):#x}\nv_mov_b32 {v(vLS)}, 0\ns_mov_b32 s{sNEG}, 0xff80ff80')
    A(f'v_lshrrev_b32 {v(vT+1)}, 4, {v(vLANE)}')
    for hf in range(2):
        A(f'v_and_b32 {v(vT)}, 15, {v(vLANE)}')
        if hf: A(f'v_min_u32 {v(vT)}, 5, {v(vT)}\nv_add_u32 {v(vT)}, 16, {v(vT)}')
        A(f'v_and_b32 {v(vT+2)}, 6, {v(vT)}\nv_xor_b32 {v(vT+2)}, {v(vT+2)}, {v(vT+1)}\nv_mul_u32_u24 {v(vT)}, 384, {v(vT)}')
        A(f'v_lshl_add_u32 {v(vKB+2*hf)}, {v(vT+2)}, 4, {v(vT)}\nv_xor_b32 {v(vT+2)}, 4, {v(vT+2)}\nv_lshl_add_u32 {v(vKB+2*hf+1)}, {v(vT+2)}, 4, {v(vT)}')
    vbases(1)
    if not w1sw: vbases(0)
    A(f'v_cmp_gt_u32 vcc, 16, {v(vLANE)}\nv_mov_b32 {v(vT)}, 0xffff\nv_mov_b32 {v(vT+2)}, 0xffff0000\nv_cndmask_b32 {v(vM3)}, 0, -1, vcc')
    A(f'v_cmp_eq_u32 vcc, 1, {v(vT+1)}\ns_mul_i32 s{sT1}, s{sWAVE}, 1536\ns_add_u32 s{sT1}, s{sT1}, {STG}\nv_cndmask_b32 {v(vM2B)}, {v(vM3)}, {v(vT)}, vcc\nv_cndmask_b32 {v(vM2X)}, 0, {v(vT+2)}, vcc')
    A(f'v_lshl_add_u32 {v(vSK)}, {v(vT+1)}, 4, s{sT1}\nv_add_u32 {v(vSV)}, {22*64}, {v(vSK)}\nv_mov_b32 {v(vFA)}, {FLG+16}\nv_mov_b32 {v(vONE)}, 1')
    A(f'v_add_u32 {v(vT)}, 352, {v(vLANE)}\nv_cmp_gt_u32 vcc, 32, {v(vLANE)}\nv_add_u32 {v(vT+2)}, -32, {v(vLANE)}\ns_nop 0\nv_cndmask_b32 {v(vT)}, {v(vT+2)}, {v(vT)}, vcc\nv_lshl_add_u32 {v(vPA)}, {v(vT)}, 2, s{sT1}')
    A(f's_add_u32 s{sSTG}, s{sT1}, 128')
    A(f'v_lshlrev_b32 {v(vA)}, 4, {v(vT+1)}\nv_add_u32 {v(vA)}, {QL}, {v(vA)}\nv_mov_b32 {v(vT+2)}, {FLG}')
    A('s_waitcnt vmcnt(9)')
    if stamps == 2: stamp(1)
    A('s_barrier')
    stamp(3)
    A(f'ds_read_b64 {v(vT+4,2)}, {v(vT+2)}')
    for s in range(6): A(f'ds_read_b128 {v(vQ+4*s,4)}, {v(vA)} offset:{64*s}')
    A(f's_mov_b32 s{sT}, 0\ns_waitcnt lgkmcnt(6)')
    A(f'v_readfirstlane_b32 s{sFL}, {v(vT+4)}\nv_readfirstlane_b32 s{sFLV}, {v(vT+5)}')
    A(f's_nop 0\ns_mov_b64 {sp(sCM)}, 0')
    grp = [0x3f, 0xff << 6, 0x3f << 14]
    for i in range(3):
        A(f's_bitcmp1_b32 s{sFL}, {i}\ns_cselect_b32 s{sT1}, {grp[i]:#x}, 0\ns_or_b32 s{sCM}, s{sCM}, s{sT1}')
        gv = grp[i] << 26
        A(f's_bitcmp1_b32 s{sFLV}, {i}')
        if gv & 0xffffffff: A(f's_cselect_b32 s{sT1}, {gv & 0xffffffff:#x}, 0')
        if gv >> 32: A(f's_cselect_b32 s{sT2}, {gv >> 32:#x}, 0\ns_or_b32 s{sCM+1}, s{sCM+1}, s{sT2}')
        if gv & 0xffffffff: A(f's_or_b32 s{sCM}, s{sCM}, s{sT1}')
    for k in range(2):
        A(f's_bitcmp1_b32 s{sRHO}, 0\ns_cselect_b32 s{sT1}, s{sFL if k else sFLV}, s{sFLV if k else sFL}\ns_bitcmp1_b32 s{sT1}, 2\ns_cselect_b32 s{sT1}, {5 << (20+k):#x}, 0\ns_or_b32 s{sCM}, s{sCM}, s{sT1}')
    A(f's_sub_u32 s{sT1}, 0, s{sHALF}\ns_xor_b32 s{sCM}, s{sCM}, s{sT1}\ns_xor_b32 s{sCM+1}, s{sCM+1}, s{sT1}')
    A(f's_mov_b32 s{sPUB}, 4\ns_waitcnt lgkmcnt(0)')
    def arrive():
        A(f's_mov_b64 exec, 1\nds_add_u32 {v(vFA)}, {v(vONE)}\ns_mov_b64 exec, -1')
    chk = f'ds_read_b128 {v(vR,4)}, {v(vFA)}'
    def step_wait(lbl):
        if not sync: return
        A(f'{lbl}:\ns_waitcnt lgkmcnt(0)\nv_readfirstlane_b32 s{sT1}, {v(vR)}\ns_nop 0\ns_cmp_ge_u32 s{sT1}, s{sPUB}\ns_cbranch_scc1 {lbl}_ok')
        A(f'{chk}\ns_branch {lbl}\n{lbl}_ok:')
    def wo_frags():
        A(f'v_lshrrev_b32 {v(vT)}, 2, {v(vLANE)}\nv_lshlrev_b32 {v(vT)}, 8, {v(vT)}\nv_and_b32 {v(vT+1)}, 3, {v(vLANE)}\nv_lshl_add_u32 {v(vT)}, {v(vT+1)}, 3, {v(vT)}')
        A(f's_lshl_b32 s{sT1}, s{sWAVE}, 6\ns_add_u32 s{sT1}, s{sT1}, {WREG}\nv_add_u32 {v(vA)}, s{sT1}, {v(vT)}')
        for s in range(6):
            for t in range(2):
                f = vW + 24*t + 4*s
                A(f'ds_read_b64_tr_b16 {v(f,2)}, {v(vA)} offset:{8192*s+32*t}\nds_read_b64_tr_b16 {v(f+2,2)}, {v(vA)} offset:{8192*s+32*t+4096}')
            if s % 2 == 1 and s < 5: A('s_waitcnt lgkmcnt(4)')
    A('.p2align 6\nL_kloop:')
    for k in range(4): A(f'v_add_u32 {v(vAD+k)}, s{sSLA}, {v(vKB+k)}')
    A('s_waitcnt vmcnt(9)')
    arrive()
    for kt in range(2):
        for s in range(6):
            if not (nocomp & 1): A(f'ds_read_b128 {v(vF+24*kt+4*s,4)}, {v(vAD+2*kt+(s&1))} offset:{128*(s>>1)}')
    A(chk)
    A(f'v_and_or_b32 {v(vT+8)}, {v(vM2X)}, s{sN0}, {v(vM2B)}\ns_mov_b32 s{sN0}, s{sN1}')
    A(f's_cmp_lg_u32 s{sT}, 22\ns_cbranch_scc1 L_knosw')
    A(f's_mov_b32 s{rK}, s{sVB}\ns_mov_b32 s{rK+1}, s{sVB+1}\ns_cmp_ge_u32 s{sU0}, 8\ns_cselect_b32 s{sU}, -8, 88\ns_add_u32 s{sU}, s{sU}, s{sU0}')
    A('L_knosw:')
    block_params(0, sN1)
    for kt in range(2):
        for s in range(6):
            i = 6*kt + s
            A(f's_waitcnt lgkmcnt({12-i})')
            c = '0' if s == 0 else v(vS+4*kt, 4)
            A(f'v_mfma_f32_16x16x32_bf16 {v(vS+4*kt,4)}, {v(vF+4*i,4)}, {v(vQ+4*s,4)}, {c}')
    step_wait('L_ks')
    dma_tile(sOFF, sSLA, None, 0, pre, knt)
    A(f's_nop {max(0, 7 - 3*pre)}')
    for k in range(4): rnd2(vS+2*k, vS+2*k+1, vT+k)
    for k in range(8): A(f'v_mul_f32 {v(vS+k)}, s{sSC}, {v(vS+k)}')
    for k in range(4): A(f'v_cvt_pk_bf16_f32 {v(vT+k)}, {v(vS+2*k)}, {v(vS+2*k+1)}')
    A(f'v_bfi_b32 {v(vT+2)}, {v(vT+8)}, {v(vT+2)}, s{sNEG}\nv_bfi_b32 {v(vT+3)}, {v(vM3)}, {v(vT+3)}, s{sNEG}')
    A(f's_mov_b32 exec_lo, 0x00010001\ns_mov_b32 exec_hi, 0x00010001\nds_write_b128 {v(vSK)}, {v(vT,4)}\ns_mov_b64 exec, -1\nv_add_u32 {v(vSK)}, 64, {v(vSK)}')
    A(f's_cmp_eq_u32 s{sT}, 23\ns_cbranch_scc1 L_spa')
    kbal = bal and min(cpl) < 20
    if kbal:
        A(f'v_readfirstlane_b32 s{sT1}, {v(vR+2)}\ns_nop 0\ns_cmp_gt_i32 s{sT1}, s{sT}\ns_cbranch_scc1 L_kup')
        if bneg: A(f's_add_i32 s{sT1}, s{sT1}, s{sT}\ns_cmp_lt_i32 s{sT1}, 0\ns_cbranch_scc1 L_kdn')
    dma_tile(sOFF, sSLA, D, pre, 9, knt)
    A('L_kpe:')
    A(f's_mov_b32 s{sT1}, s{sSLA}\ns_mov_b32 s{sSLA}, s{sSLB}\ns_mov_b32 s{sSLB}, s{sT1}')
    A(f's_add_u32 s{sT}, s{sT}, 1\ns_add_u32 s{sPUB}, s{sPUB}, 4\ns_branch L_kloop')
    A('.p2align 6\nL_vloop:')
    for k in range(8): A(f'v_add_u32 {v(vAD+k)}, s{sSLA}, {v(vVB+k)}')
    A(f'ds_read_b128 {v(vP,4)}, {v(vSV)}\ns_cmp_eq_u32 s{sT}, 25\ns_cselect_b32 s{sT1}, {64-1536}, 64\nv_add_u32 {v(vSV)}, s{sT1}, {v(vSV)}')
    A(f's_cmp_lg_u32 s{sT}, 24\ns_cbranch_scc1 L_vnosw\ns_mov_b32 s{sU}, s{sU0}\nL_vnosw:')
    block_params(2, sN1)
    A('s_waitcnt vmcnt(9)')
    arrive()
    if not (nocomp & 2): trread_mfma(12, vAD, 0, vO, False, vF, vP, vAD+4, chk)
    else: A(chk)
    A(f's_cmp_eq_u32 s{sT}, 47\ns_cbranch_scc1 L_loopx')
    step_wait('L_vs')
    dma_tile(sOFF, sSLA, None, 0, pre, vnt)
    A(f's_cmp_eq_u32 s{sT}, 27\ns_cbranch_scc1 L_spb')
    A('L_vmid:')
    if bal:
        A(f'v_readfirstlane_b32 s{sT2}, {v(vR+2)}\ns_nop 0')
        if bneg and lastneg: A(f's_add_i32 s{sT1}, s{sT2}, s{sT}\ns_cmp_lt_i32 s{sT1}, 0\ns_cbranch_scc1 L_vdn')
    if nend:
        A(f's_cmp_ge_u32 s{sT}, {46-nend}\ns_cbranch_scc0 L_vpc')
        dma_tile(sOFF, sSLA, Dend if Dend < 18 else None, pre, 9, vnt)
        A('s_branch L_vpe\nL_vpc:')
    if bal:
        A(f's_cmp_gt_i32 s{sT2}, s{sT}\ns_cbranch_scc1 L_vup')
        if bneg and not lastneg: A(f's_add_i32 s{sT1}, s{sT2}, s{sT}\ns_cmp_lt_i32 s{sT1}, 0\ns_cbranch_scc1 L_vdn')
    dma_tile(sOFF, sSLA, D, pre, 9, vnt)
    A('L_vpe:')
    A(f's_mov_b32 s{sT1}, s{sSLA}\ns_mov_b32 s{sSLA}, s{sSLB}\ns_mov_b32 s{sSLB}, s{sT1}')
    A(f's_add_u32 s{sT}, s{sT}, 1\ns_add_u32 s{sPUB}, s{sPUB}, 4\ns_branch L_vloop')
    A('L_loopx:')
    stamp(4)
    if lred:
        A('s_mov_b64 exec, 0xffff\ns_nop 3')
        for t in range(12): A(f'ds_write_b32 {v(vSK)}, {v(vO+4*t)} offset:{64*t}')
        A('s_mov_b64 exec, -1')
    else:
        xsum(vLS, vT)
        A(f's_lshl_b32 s{sT1}, s{sWAVE}, 10\ns_add_u32 s{sT1}, s{sT1}, {OCB}\nv_lshlrev_b32 {v(vA)}, 2, {v(vLANE)}\nv_add_u32 {v(vA)}, s{sT1}, {v(vA)}')
        A('s_mov_b64 exec, 0xffff')
        for t in range(12): A(f'ds_write_b32 {v(vA)}, {v(vO+4*t)} offset:{64*t}')
        A(f's_mov_b64 exec, 1\nds_write2_b32 {v(vA)}, {v(vML)}, {v(vLS)} offset0:192 offset1:193\ns_mov_b64 exec, -1')
    A('s_waitcnt lgkmcnt(0)\ns_barrier')
    A(f's_cmp_ge_u32 s{sJ}, 5\ns_cbranch_scc1 L_sdone')
    if not wearly: wo_frags()
    A(f's_lshl_b32 s{sT1}, s{sH}, 3\ns_lshl_b32 s{sT2}, s{sWAVE}, 1\ns_add_u32 s{sT1}, s{sT1}, s{sT2}\ns_lshl_b32 s{sT1}, s{sT1}, 11\ns_add_u32 s{sT1}, s{sT1}, {OP}\ns_add_u32 s{sT2}, s{sT1}, 2048')
    A(f'v_mov_b32 {v(vA)}, 1024')
    mko = lambda b: [wsload(b, vL16, sT1), wsload(b+4, vL16, sT2), wsload(b+8, vA, sT1), wsload(b+12, vA, sT2)]
    w0_, w1_, l0_, l1_, on_ = vQ, vQ+1, vQ+2, vQ+3, vQ+4
    def useo(b):
        A(f'v_max_f32 {v(vT)}, {v(b+8)}, {v(b+12)}\nv_sub_f32 {v(w0_)}, {v(b+8)}, {v(vT)}\nv_sub_f32 {v(w1_)}, {v(b+12)}, {v(vT)}\nv_exp_f32 {v(w0_)}, {v(w0_)}\nv_exp_f32 {v(w1_)}, {v(w1_)}\ns_nop 0')
        A(f'v_mul_f32 {v(l0_)}, {v(b+9)}, {v(w0_)}\nv_fmac_f32 {v(l0_)}, {v(b+13)}, {v(w1_)}\nv_rcp_f32 {v(l1_)}, {v(l0_)}')
        for k in range(3): A(f'v_mul_f32 {v(on_+k)}, {v(b+k)}, {v(w0_)}\nv_fmac_f32 {v(on_+k)}, {v(b+4+k)}, {v(w1_)}')
    if po: poll2('L_po', mko, 4, vF, vF+16, 4, po, useo)
    else:
        (polls if sel & 1 else poll)('L_po', mko(vF), [vF+3, vF+7, vF+11, vF+15], 4)
        useo(vF)
    stamp(5)
    A(f's_mul_i32 s{sT1}, s{sWAVE}, 384\ns_add_u32 s{sT1}, s{sT1}, {OBF}')
    A(f'v_mul_u32_u24 {v(vA)}, 6, {v(vLANE)}\nv_add_u32 {v(vA)}, s{sT1}, {v(vA)}')
    for k in range(3): fdiv(on_+4+k, on_+k, l0_, l1_, vT)
    put3_bf16(on_+4, vT, vA)
    A(f'v_bfe_u32 {v(vT+2)}, {v(vLANE)}, 2, 2\nv_mul_u32_u24 {v(vT+2)}, 384, {v(vT+2)}\nv_lshrrev_b32 {v(vT+3)}, 4, {v(vLANE)}\nv_lshl_add_u32 {v(vT+2)}, {v(vT+3)}, 3, {v(vT+2)}\nv_add_u32 {v(vA)}, {OBF}, {v(vT+2)}')
    A(f's_lshl_b32 s{sT1}, s{sJ}, 2\ns_add_u32 s{sT1}, s{sT1}, s{sWAVE}\ns_lshl_b32 s{sT1}, s{sT1}, 5\ns_add_u32 s{sT1}, s{sT1}, s{sH}\ns_lshl_b32 s{sT1}, s{sT1}, {9 if y8 else 10}\ns_add_u32 s{sT1}, s{sT1}, {YP}')
    A('s_waitcnt lgkmcnt(0)\ns_barrier')
    for s in range(6): A(f'ds_read2_b64 {v(vO+4*s,4)}, {v(vA)} offset0:{8*s} offset1:{8*s+4}')
    for s in range(6):
        A(f's_waitcnt lgkmcnt({5-s})')
        for t in range(2):
            c = '0' if s == 0 else v(vS+4*t, 4)
            A(f'v_mfma_f32_16x16x32_bf16 {v(vS+4*t,4)}, {v(vO+4*s,4)}, {v(vW+24*t+4*s,4)}, {c}')
    if y8:
        A(f'v_mov_b32 {v(vT+1)}, {v(vTAG)}\nv_lshlrev_b32 {v(vA)}, 3, {v(vLANE)}\ns_nop 5')
        A(f'v_cvt_pk_bf16_f32 {v(vT)}, {v(vS)}, {v(vS+4)}')
        A(f'buffer_store_dwordx2 {v(vT,2)}, {v(vA)}, {srd(rWS)}, s{sT1} offen sc1')
    else:
        A(f'v_mov_b32 {v(vT+2)}, {v(vTAG)}\nv_mov_b32 {v(vT+3)}, {v(vTAG)}\ns_nop 5')
        A(f'v_mov_b32 {v(vT)}, {v(vS)}\nv_mov_b32 {v(vT+1)}, {v(vS+4)}')
        A(f'buffer_store_dwordx4 {v(vT,4)}, {v(vL16)}, {srd(rWS)}, s{sT1} offen sc1')
    A('L_sdone:')
    if fixdur:
        A(f'L_fix:\ns_memrealtime s[98:99]\ns_waitcnt lgkmcnt(0)\ns_sub_u32 s98, s98, s96\ns_cmp_lt_u32 s98, {fixdur*100}\ns_cbranch_scc1 L_fix')
    stamp(6)
    if stamps:
        A(f's_cmp_lg_u32 s{sWAVE}, 0\ns_cbranch_scc1 L_end\ns_waitcnt vmcnt(0)')
        stamp(7)
        write_stamps(0, 's')
    A('s_endpgm')

    def soft_pass(n, addr, off):
        X = vF
        for i in range(n): A(f'ds_read_b32 {v(vT+8+i)}, {v(addr)} offset:{off*i}')
        for i in range(n):
            A(f's_waitcnt lgkmcnt({n-1-i})\nv_lshlrev_b32 {v(X+2*i)}, 16, {v(vT+8+i)}\nv_and_b32 {v(X+2*i+1)}, 0xffff0000, {v(vT+8+i)}\nv_max3_f32 {v(vM)}, {v(X+2*i)}, {v(X+2*i+1)}, {v(vM)}')
        xsum(vM, vT, 'v_max_f32')
        A(f'v_mul_f32 {v(vT)}, s{sL2E}, {v(vM)}\nv_sub_f32 {v(vAL)}, {v(vML)}, {v(vT)}\nv_mov_b32 {v(vML)}, {v(vT)}\nv_exp_f32 {v(vAL)}, {v(vAL)}')
        for k in range(2*n): A(f'v_fma_f32 {v(X+k)}, {v(X+k)}, s{sL2E}, -{v(vML)}')
        for k in range(2*n): A(f'v_exp_f32 {v(X+k)}, {v(X+k)}')
        A(f'v_mul_f32 {v(vLS)}, {v(vLS)}, {v(vAL)}')
        for i in range(n):
            A(f'v_cvt_pk_bf16_f32 {v(vT+8+i)}, {v(X+2*i)}, {v(X+2*i+1)}\nv_add_f32 {v(vLS)}, {v(vLS)}, {v(X+2*i)}\nv_add_f32 {v(vLS)}, {v(vLS)}, {v(X+2*i+1)}')
            A(f'ds_write_b32 {v(addr)}, {v(vT+8+i)} offset:{off*i}')
    if kbal:
        A('L_kup:')
        dma_tile(sOFF, sSLA, D+bal, pre, 9, knt)
        A('s_branch L_kpe\nL_kdn:')
        dma_tile(sOFF, sSLA, D-bneg, pre, 9, knt)
        A('s_branch L_kpe')
    if bal:
        A('; ---- a workgroup that lags the others keeps more loads in flight for a few steps')
        A('L_vup:')
        dma_tile(sOFF, sSLA, D+bal, pre, 9, vnt)
        A('s_branch L_vpe')
        if bneg:
            A('L_vdn:')
            dma_tile(sOFF, sSLA, D-bneg, pre, 9, vnt)
            A('s_branch L_vpe')
    A('L_spa:')
    soft_pass(1, vPA, 0)
    A('s_branch L_vmid')
    A('L_spb:')
    if not noex:
        A(f's_mov_b32 s{sCNT}, {spin*8}')
        A(f'L_vchk:\ns_waitcnt lgkmcnt(0)\nv_readfirstlane_b32 s{sT1}, {v(vR+1)}\ns_sub_u32 s{sCNT}, s{sCNT}, 1\ns_cmp_eq_u32 s{sCNT}, 0\ns_cbranch_scc1 L_vnoc')
        A(f's_cmp_lg_u32 s{sT1}, 0\ns_cbranch_scc1 L_vnoc\n{chk}\ns_branch L_vchk\nL_vnoc:')
    A(f'v_lshl_add_u32 {v(vPA)}, {v(vLANE)}, 2, s{sSTG}')
    soft_pass(5, vPA, 256)
    for t in range(12): A(f'v_mul_f32 {v(vO+4*t)}, {v(vAL)}, {v(vO+4*t)}')
    if lred:
        xsum(vLS, vT)
        A(f's_lshl_b32 s{sT1}, s{sWAVE}, 10\ns_add_u32 s{sT1}, s{sT1}, {OCB}\nv_lshlrev_b32 {v(vSK)}, 2, {v(vLANE)}\nv_add_u32 {v(vSK)}, s{sT1}, {v(vSK)}')
        A(f's_mov_b64 exec, 1\nds_write2_b32 {v(vSK)}, {v(vML)}, {v(vLS)} offset0:192 offset1:193\ns_mov_b64 exec, -1')
    if wearly == 1:
        A(f's_cmp_ge_u32 s{sJ}, 5\ns_cbranch_scc1 L_vmid\ns_waitcnt lgkmcnt(0)')
        wo_frags()
        A('s_waitcnt lgkmcnt(0)')
    if wearly == 2:
        A(f's_cmp_ge_u32 s{sJ}, 5\ns_cbranch_scc1 L_vmid')
        A(f'v_lshrrev_b32 {v(vT)}, 2, {v(vLANE)}\nv_lshlrev_b32 {v(vT)}, 8, {v(vT)}\nv_and_b32 {v(vT+1)}, 3, {v(vLANE)}\nv_lshl_add_u32 {v(vT)}, {v(vT+1)}, 3, {v(vT)}')
        A(f's_lshl_b32 s{sT1}, s{sWAVE}, 6\ns_add_u32 s{sT1}, s{sT1}, {WREG}\nv_add_u32 {v(vA)}, s{sT1}, {v(vT)}')
        for s_ in range(max(6, 9-pre)):
            if pre + s_ < 9: dma_tile(sOFF, sSLA, D, pre + s_, pre + s_ + 1, vnt)
            if s_ < 6:
                A('s_waitcnt lgkmcnt(4)')
                for t in range(2):
                    f = vW + 24*t + 4*s_
                    A(f'ds_read_b64_tr_b16 {v(f,2)}, {v(vA)} offset:{8192*s_+32*t}\nds_read_b64_tr_b16 {v(f+2,2)}, {v(vA)} offset:{8192*s_+32*t+4096}')
        A('s_waitcnt lgkmcnt(0)\ns_branch L_vpe')
    A('s_branch L_vmid')
    def hwait(n, lbl, hsl=hsl):
        A(f's_mov_b32 s{sCNT}, {spin*8}\n{lbl}:\nds_read_b32 {v(vT)}, {v(vXF)}\ns_sub_u32 s{sCNT}, s{sCNT}, 1\ns_cmp_eq_u32 s{sCNT}, 0\ns_cbranch_scc1 {lbl}_ok')
        A(f's_waitcnt lgkmcnt(0)\nv_readfirstlane_b32 s{sT0}, {v(vT)}\ns_nop 0\ns_cmp_ge_u32 s{sT0}, {4*n}\ns_cbranch_scc1 {lbl}_ok\n{f"s_sleep {hsl}" if hsl and not nosleep else ""}\ns_branch {lbl}\n{lbl}_ok:')
    vXA, vXF, vXB = vQ+12, vQ+13, vQ+14
    A('L_helper:')
    inhelper[0] = True
    A(f's_getreg_b32 s{sT3}, hwreg(HW_REG_XCC_ID, 2, 1)')
    A('s_waitcnt lgkmcnt(0)')
    A(f's_sub_u32 s{sT0}, s38, s36\ns_min_u32 s{sT0}, s{sT0}, {cap}\ns_sub_u32 s{sT0}, s{sT0}, {thr}\ns_sub_u32 s{sT1}, 0, s{sT0}')
    A(f's_cmp_eq_u32 s{sT3}, 0\ns_cselect_b32 s{sT0}, s{sT0}, s{sT1}')
    A(f'v_mov_b32 {v(vP)}, s{sT0}\nv_mov_b32 {v(vP+1)}, s{sT3}\nv_mov_b32 {v(vP+2)}, 0')
    A(f's_lshl_b32 s{sT0}, s{sIDX}, 4\ns_add_u32 s{sT0}, s{sT0}, s{sSLT}\ns_lshl_b32 s{sT0}, s{sT0}, 4\ns_add_u32 s{sT0}, s{sT0}, {VOTE}')
    if gord == 1: A('s_barrier')
    A(f's_waitcnt vmcnt(0)\nv_add_u32 {v(vTAG)}, {TAGC:#x}, {v(vTAG)}\nv_mov_b32 {v(vP+3)}, {v(vTAG)}')
    A(f's_mov_b64 exec, 1\nbuffer_store_dwordx4 {v(vP,4)}, {v(vL16)}, {srd(rWS)}, s{sT0} offen sc1\ns_mov_b64 exec, -1')
    if htouch:
        A(f's_mul_i32 s{sT0}, s{sRHO}, 1572864\ns_load_dword s96, {sp(sV)}, s{sT0}\ns_add_u32 s{sT0}, s{sT0}, 1572860\ns_load_dword s97, {sp(sK)}, s{sT0}\ns_load_dword s98, {sp(sV)}, s{sT0}')
        if htouch > 1: A(f's_mul_i32 s{sT0}, s{sH}, {192*1280}\ns_load_dword s99, {sp(sWO)}, s{sT0}\ns_load_dword s96, {sp(sWD)}, 0')
    sCA, sCB2 = 42, 43
    A(f's_mul_i32 s{sT0}, s{sRHO}, 3\ns_lshr_b32 s{sCA}, s{sT0}, 5\ns_add_u32 s{sT0}, s{sT0}, 2\ns_lshr_b32 s{sCB2}, s{sT0}, 5')
    A(f'v_lshrrev_b32 {v(vT)}, 5, {v(vLANE)}\nv_mul_u32_u24 {v(vT)}, 12, {v(vT)}\nv_bfe_u32 {v(vT+1)}, {v(vLANE)}, 4, 1\ns_sub_u32 s{sT0}, s{sCB2}, s{sCA}\nv_mul_u32_u24 {v(vT+1)}, s{sT0}, {v(vT+1)}')
    A(f'v_add3_u32 {v(vT)}, {v(vT)}, {v(vT+1)}, s{sCA}\nv_and_b32 {v(vT+1)}, 15, {v(vLANE)}\nv_min_u32 {v(vT+1)}, 9, {v(vT+1)}\nv_lshlrev_b32 {v(vT+1)}, 4, {v(vT+1)}\nv_lshl_add_u32 {v(vAL)}, {v(vT)}, 8, {v(vT+1)}')
    A(f's_andn2_b32 s{sT1}, s2, 4')
    vote_slot(sT1, sT2, sT3)
    A(f's_lshl_b32 s{sT2}, s{sT2}, 4\ns_add_u32 s{sT2}, s{sT2}, s{sT3}\ns_lshl_b32 s{sT2}, s{sT2}, 4\nv_mov_b32 {v(vM)}, s{sT2}\ns_mov_b32 s{rK+5}, {VOTE}')
    A(f's_mul_i32 s{sT0}, s{sH}, {5*4096}\ns_lshl_b32 s{sT1}, s{sB}, 10\ns_add_u32 s{sT0}, s{sT0}, s{sT1}\ns_add_u32 s{rK}, s{sT0}, {P1}')
    for p in range(1, 5): A(f's_add_u32 s{rK+p}, s{rK}, {4096*p}')
    A(f's_sub_u32 s{sU2}, s{sU2}, 5')
    A(f'v_mov_b32 {v(vS+1)}, 0\nv_mov_b32 {v(vS+6)}, 0\nv_mov_b32 {v(vS+7)}, 0')
    A(f'v_mul_u32_u24 {v(vA)}, 6, {v(vLANE)}\nv_add_u32 {v(vA)}, {QL}, {v(vA)}')
    if qdel >= 0: A(f'v_mov_b32 {v(vXF)}, {FLG+32}\nv_mov_b32 {v(vT)}, 0\nds_write_b32 {v(vXF)}, {v(vT)}\ns_waitcnt lgkmcnt(0)')
    A('s_barrier' if gord == 1 else 's_barrier\ns_barrier')
    if qdel >= 0: hwait(1, 'L_hwq')
    stamp(1)
    mkq = lambda b: [wsload(b+4*p, vL16, rK+p) for p in range(5)] + [wsload(b+20, vAL, rK+5), wsload(b+24, vM, rK+5)]
    QR = vW; E = vW + 3
    def useq(b):
        for k in range(3):
            A(f'v_add_f32 {v(QR+k)}, {v(b+k)}, {v(b+4+k)}')
        for p in range(2, 5):
            for k in range(3): A(f'v_add_f32 {v(QR+k)}, {v(QR+k)}, {v(b+4*p+k)}')
        put3_bf16(QR, vT, vA)
        A(f'v_and_b32 {v(vT)}, 15, {v(vLANE)}\nv_cmp_gt_u32 vcc, 10, {v(vT)}\nv_readfirstlane_b32 s{sT2}, {v(b+25)}\ns_nop 0\nv_cndmask_b32 {v(E)}, 0, {v(b+20)}, vcc')
    if pq: poll2('L_pq', mkq, 7, vF, vO, 1, pq, useq)
    else:
        (polls if sel & 4 else poll)('L_pq', mkq(vF), [vF+4*p+3 for p in range(5 if nopoll else 0, 7)], 1)
        useq(vF)
    for mode in ['quad_perm:[1,0,3,2]', 'quad_perm:[2,3,0,1]', 'row_half_mirror', 'row_mirror']:
        A(f's_nop 1\nv_add_u32_dpp {v(E)}, {v(E)}, {v(E)} {mode} row_mask:0xf bank_mask:0xf')
    if dbgv:
        A(f's_mul_i32 s{sT0}, s{sRHO}, 3\ns_and_b32 s{sT0}, s{sT0}, 31\ns_cmp_ge_u32 s{sT0}, 3\ns_cbranch_scc1 L_nodbg')
        A(f'v_readlane_b32 s{sT0}, {v(E)}, 16\nv_readlane_b32 s{sT1}, {v(E)}, 48')
        A(f's_nop 1\ns_add_u32 s{sT3}, s{sT0}, 5000\ns_mul_i32 s{sT3}, s{sT3}, 10000\ns_add_u32 s{sT3}, s{sT3}, s{sT1}\ns_add_u32 s{sT3}, s{sT3}, 5000')
        A(f's_lshl_b32 s{sP}, s{sCB2}, 2\nv_mov_b32 {v(vT+5)}, s{sP}\nv_mov_b32 {v(vT+6)}, s{sT3}\nglobal_store_dword {v(vT+5)}, {v(vT+6)}, {sp(sDBG)}\nL_nodbg:')
    A(f'v_lshrrev_b32 {v(E)}, 31, {v(E)}\nv_xor_b32 {v(E)}, s{sT2}, {v(E)}')
    if force >= 0: A(f'v_lshrrev_b32 {v(E)}, 5, {v(vLANE)}\nv_lshrrev_b32 {v(E)}, {v(E)}, {force}\nv_and_b32 {v(E)}, 1, {v(E)}')
    sF = [36, 37, 38, 39]
    A('s_nop 0')
    for g in range(4): A(f'v_readlane_b32 s{sF[g]}, {v(E)}, {16*g}')
    sRG = 97
    if rot >= 0: rot3(sRG, sT3)
    else: A(f's_mov_b32 s{sRG}, 0')
    A(f's_mov_b32 s{sT0}, 0\ns_mov_b32 s{sT1}, 0')
    for i in range(3):
        A(f's_mul_i32 s{sT3}, s{sRHO}, 3\ns_add_u32 s{sT3}, s{sT3}, s{sRG}\ns_lshl_b32 s{sT3}, s{sT3}, 19')
        A(f's_lshr_b32 s{sT2}, s{sT3}, 24\ns_cmp_eq_u32 s{sT2}, s{sCA}\ns_cselect_b32 s{sXD}, s{sF[0]}, s{sF[1]}\ns_cselect_b32 s{sXS}, s{sF[2]}, s{sF[3]}')
        for acc, base, fl in [(sT0, sK, sXD), (sT1, sV, sXS)]:
            A(f's_add_u32 s{sT2}, s{base}, s{sT3}\ns_lshr_b32 s{sT2}, s{sT2}, 21\ns_xor_b32 s{sT2}, s{sT2}, s{fl}\ns_and_b32 s{sT2}, s{sT2}, 1\ns_lshl_b32 s{sT2}, s{sT2}, {i}\ns_or_b32 s{acc}, s{acc}, s{sT2}')
        if i < 2: A(f's_add_u32 s{sRG}, s{sRG}, 1\ns_cmp_eq_u32 s{sRG}, 3\ns_cselect_b32 s{sRG}, 0, s{sRG}')
    if nonuma: A(f's_mov_b32 s{sT0}, {nonuma >> 1}\ns_mov_b32 s{sT1}, {nonuma >> 1}')
    A(f's_xor_b32 s{sXD}, s{sT0}, s{sT1}\ns_cselect_b32 s{sXS}, 0, 1')
    A(f'v_mov_b32 {v(vT+4)}, s{sT0}\nv_mov_b32 {v(vT+5)}, s{sT1}\nv_mov_b32 {v(vT+3)}, {FLG}\nds_write_b64 {v(vT+3)}, {v(vT+4,2)}')
    A(f'v_mov_b32 {v(vT+8)}, 0\nv_mov_b32 {v(vT+9)}, s{sXS}\nv_mov_b32 {v(vT+10)}, 0\nv_mov_b32 {v(vT+11)}, 0\nds_write_b128 {v(vT+3)}, {v(vT+8,4)} offset:16')
    if stamps:
        A(f's_lshl_b32 s{sT1}, s{sXD}, 0\ns_or_b32 s{sT1}, s{sT1}, s{sT1}\ns_lshl_b32 s{sT0}, s2, 2\ns_add_u32 s{sT0}, s{sT0}, 0x20100000')
        A(f'v_mov_b32 {v(vT+5)}, s{sT0}\nv_mov_b32 {v(vT+6)}, s{sT1}\nglobal_store_dword {v(vT+5)}, {v(vT+6)}, {sp(sWS)}')
    stamp(2)
    A('s_waitcnt lgkmcnt(0)\ns_barrier')
    A('s_waitcnt vmcnt(0)')
    A(f's_cmp_ge_u32 s{sJ}, 5\ns_cselect_b32 s{sHASW1}, 1, 0\ns_cmp_lt_u32 s{sU2}, 80\ns_cselect_b32 s{sHASW1}, s{sHASW1}, 0')
    A(f's_cmp_eq_u32 s{sHASW1}, 0\ns_cbranch_scc1 L_hx')
    A(f's_mul_i32 s{sR}, s{sU2}, 52429\ns_lshr_b32 s{sR}, s{sR}, 18\ns_mul_i32 s{sT0}, s{sR}, 5\ns_sub_u32 s{sCB}, s{sU2}, s{sT0}')
    A(f's_mul_i32 s{sRB}, s{sU2}, 52429\ns_lshr_b32 s{sRB}, s{sRB}, 20\ns_mul_i32 s{sT0}, s{sRB}, 20\ns_sub_u32 s{sSLC2}, s{sU2}, s{sT0}')
    vWD, vG4 = vS, vS+1
    A(f'v_lshrrev_b32 {v(vT)}, 4, {v(vLANE)}\nv_and_b32 {v(vT+1)}, 15, {v(vLANE)}\nv_lshlrev_b32 {v(vT+1)}, 4, {v(vT+1)}')
    A(f'v_mul_u32_u24 {v(vWD)}, 1280, {v(vT)}\nv_add_u32 {v(vWD)}, {v(vWD)}, {v(vT+1)}\nv_lshl_add_u32 {v(vG4)}, {v(vT)}, 10, {v(vT+1)}')
    A(f'v_lshrrev_b32 {v(vT)}, 5, {v(vLANE)}\nv_mul_u32_u24 {v(vT)}, {8*5*4096}, {v(vT)}\nv_and_b32 {v(vT+1)}, 31, {v(vLANE)}\nv_lshl_add_u32 {v(vA)}, {v(vT+1)}, 4, {v(vT)}')
    A(f's_lshr_b32 s{sT0}, s{sR}, 1\ns_add_u32 s{sT0}, s{sT0}, 32\ns_mul_i32 s{sT0}, s{sT0}, {5*4096}\ns_and_b32 s{sT1}, s{sR}, 1\ns_lshl_b32 s{sT1}, s{sT1}, 9\ns_add_u32 s{sT0}, s{sT0}, s{sT1}\ns_add_u32 s{rK}, s{sT0}, {P1}')
    for p in range(1, 5): A(f's_add_u32 s{rK+p}, s{rK}, {4096*p}')
    G = vF
    poll('L_pg', [wsload(G+20*b+4*p, vA, rK+p) + f' offset:{1024*b}' if False else
                  f'buffer_load_dwordx4 {v(G+20*b+4*p,4)}, {v(vA)}, {srd(rWS)}, s{rK+p} offen offset:{1024*b} sc1' for b in range(4) for p in range(5)],
         [G+20*b+4*p+3 for b in range(4) for p in range(5)], 2)
    A(f'v_and_b32 {v(vA)}, 31, {v(vLANE)}\nv_mul_u32_u24 {v(vA)}, 6, {v(vA)}\nv_add_u32 {v(vA)}, {HL}, {v(vA)}')
    for b in range(4):
        g0 = G + 20*b
        for k in range(3):
            for p in range(1, 5): A(f'v_add_f32 {v(g0+k)}, {v(g0+k)}, {v(g0+4*p+k)}')
        rnd2(g0, g0+1, vT); rnd(g0+2, vT)
        for k in range(3): A(f'v_mov_b32 {v(g0+4+k)}, {v(g0+k)}')
        A('s_nop 1')
        for k in range(3): A(f'v_permlane32_swap_b32 {v(g0+k)}, {v(g0+4+k)}')
        for k in range(3):
            A(f'v_cmp_lt_f32 vcc, 0, {v(g0+k)}\ns_nop 1\nv_cndmask_b32 {v(vT)}, 0, 1.0, vcc\nv_mul_f32 {v(g0+k)}, {v(g0+k)}, {v(vT)}\nv_mul_f32 {v(g0+k)}, {v(g0+k)}, {v(g0+4+k)}')
        put3_bf16(g0, vT, vA)
        if b < 3: A(f'v_add_u32 {v(vA)}, 192, {v(vA)}')
    A(f'v_bfe_u32 {v(vT+2)}, {v(vLANE)}, 2, 2\nv_mul_u32_u24 {v(vT+2)}, 192, {v(vT+2)}\nv_lshrrev_b32 {v(vT+3)}, 4, {v(vLANE)}\nv_lshl_add_u32 {v(vT+2)}, {v(vT+3)}, 3, {v(vT+2)}\nv_add_u32 {v(vA)}, {HL}, {v(vT+2)}')
    A('s_waitcnt lgkmcnt(0)')
    for s in range(3): A(f'ds_read2_b64 {v(vQ+4*s,4)}, {v(vA)} offset0:{8*s} offset1:{8*s+4}')
    if xtra >= 0:
        A(f'v_mov_b32 {v(vXF)}, {FLG+16}')
        hwait(2, 'L_hww')
    A(f'v_lshrrev_b32 {v(vT)}, 2, {v(vLANE)}\nv_lshlrev_b32 {v(vT)}, 8, {v(vT)}\nv_and_b32 {v(vT+1)}, 3, {v(vLANE)}\nv_lshl_add_u32 {v(vT)}, {v(vT+1)}, 3, {v(vT)}\nv_add_u32 {v(vA)}, {WREG}, {v(vT)}')
    for s in range(3):
        A('s_waitcnt lgkmcnt(0)')
        trread_mfma(8, vA, 4096, vO, s == 0, vF, vQ+4*s)
        if s < 2: A(f'v_add_u32 {v(vA)}, 8192, {v(vA)}')
    sBPA = 39
    A(f's_lshl_b32 s{sBPA}, s{sCB}, 6\ns_add_u32 s{sBPA}, s{sBPA}, s{sR}\ns_lshl_b32 s{sBPA}, s{sBPA}, 10\ns_add_u32 s{sBPA}, s{sBPA}, {BP}')
    A('s_nop 4')
    BG = vW + 16
    for ww in range(4):
        t0 = BG + 4*ww
        A(f'v_mov_b32 {v(t0)}, {v(vO+8*ww)}\nv_mov_b32 {v(t0+1)}, {v(vO+8*ww+4)}\nv_mov_b32 {v(t0+2)}, {v(vTAG)}\nv_mov_b32 {v(t0+3)}, {v(vTAG)}')
    def b_publish():
        for ww in range(4):
            A(f'buffer_store_dwordx4 {v(BG+4*ww,4)}, {v(vL16)}, {srd(rWS)}, s{sBPA} offen sc1')
            if ww < 3: A(f's_add_u32 s{sBPA}, s{sBPA}, 16384')
    if not blate: b_publish()
    vG0, vG1, vX0, vX1, vXO = vS+2, vS+3, vS+4, vS+5, vS+6
    A(f's_mul_i32 s{sT0}, s{sRB}, 1280\ns_lshl_b32 s{sT1}, s{sSLC2}, 6\ns_add_u32 s{sT0}, s{sT0}, s{sT1}')
    A(f'v_and_b32 {v(vXO)}, 15, {v(vLANE)}\nv_lshlrev_b32 {v(vXO)}, 1, {v(vXO)}\nv_add_u32 {v(vXO)}, s{sT0}, {v(vXO)}')
    if otouch: A(f'global_load_ushort {v(vX0)}, {v(vXO)}, {sp(sOUT)}\ns_waitcnt vmcnt(0)')
    A(f'global_load_ushort {v(vX0)}, {v(vXO)}, {sp(sX)}\nglobal_load_ushort {v(vX1)}, {v(vXO)}, {sp(sX)} offset:32')
    sBG = 40
    A(f's_lshl_b32 s{sT0}, s{sSLC2}, 14\ns_lshl_b32 s{sT1}, s{sRB}, 8\ns_add_u32 s{sT0}, s{sT0}, s{sT1}\ns_add_u32 s{sBG}, s{sT0}, {BP}')
    for p in range(1, 4): A(f's_add_u32 s{sBG+p}, s{sBG}, {4096*p}')
    def b_gather():
        G = vF + 16
        (polls if sel & 2 else poll)('L_pb', [wsload(G+4*p, vG4, sBG+p) for p in range(4)], [G+4*p+3 for p in range(4)], 5)
        for k in range(2):
            A(f'v_add_f32 {v(G+k)}, {v(G+k)}, {v(G+4+k)}\nv_add_f32 {v(G+8+k)}, {v(G+8+k)}, {v(G+12+k)}\nv_add_f32 {v(G+k)}, {v(G+k)}, {v(G+8+k)}')
            xsum(G+k, vT, full=False)
        rnd2(G, G+1, vT)
        for k in range(2):
            A(f'v_mul_f32 {v(vT)}, s{sL2E}, {v(G+k)}\nv_max_f32 {v(vT)}, {f2u(-126.0):#x}, {v(vT)}\nv_exp_f32 {v(vT)}, -{v(vT)}\ns_nop 0\nv_add_f32 {v(vT)}, 1.0, {v(vT)}\nv_rcp_f32 {v(vT+1)}, {v(vT)}\ns_nop 0')
            fdiv(vG0+k, G+k, vT, vT+1, vT+2)
        rnd2(vG0, vG1, vT)
    if not blate: b_gather()
    A(f's_waitcnt vmcnt(0)\nv_lshlrev_b32 {v(vX0)}, 16, {v(vX0)}\nv_lshlrev_b32 {v(vX1)}, 16, {v(vX1)}')
    A(f's_lshl_b32 s{sT0}, s{sSLC2}, {14 if y8 else 15}\ns_lshl_b32 s{sT1}, s{sRB}, {7 if y8 else 8}\ns_add_u32 s{sT0}, s{sT0}, s{sT1}\ns_add_u32 s{rK}, s{sT0}, {YP}')
    for p in range(1, 8): A(f's_add_u32 s{rK+p}, s{rK}, {(2048 if y8 else 4096)*p}')
    vG8 = vS + 7
    A(f'v_lshrrev_b32 {v(vG8)}, 1, {v(vG4)}')
    A('L_hx:')
    if stamps == 5:
        A(f'v_mov_b32 {v(vXF)}, {FLG+16}')
        hwait(13, 'L_hws')
        A(f's_memrealtime {sp(sST+2*3)}\ns_waitcnt lgkmcnt(0)')
    if lead:
        A(f's_and_b32 s{sT0}, s2, {lmask}\ns_cmp_eq_u32 s{sT0}, 5\ns_cselect_b32 s{sT0}, 0, s{sXS}\ns_cmp_lg_u32 s{sT0}, 0\ns_cbranch_scc1 L_hb4')
    elif not bal: A(f's_cmp_lg_u32 s{sXS}, 0\ns_cbranch_scc1 L_hb4')
    sREC, sOTH = 36, 37
    A(f's_lshl_b32 s{sREC}, s{sRHO}, 1\ns_add_u32 s{sOTH}, s{sREC}, 1\ns_sub_u32 s{sOTH}, s{sOTH}, s{sHALF}\ns_add_u32 s{sREC}, s{sREC}, s{sHALF}')
    vXG = vQ + 15
    if xs:
        for r_ in (sREC, sOTH):
            A(f's_lshr_b32 s{sT0}, s{r_}, 7\ns_lshl_b32 s{sT0}, s{sT0}, 20\ns_and_b32 s{r_}, s{r_}, 127\ns_lshl_b32 s{r_}, s{r_}, 8\ns_add_u32 s{r_}, s{r_}, s{sT0}\ns_add_u32 s{r_}, s{r_}, {SCO}')
        A(f'v_and_b32 {v(vXG)}, 0xf0, {v(vL16)}\nv_lshrrev_b32 {v(vT)}, 4, {v(vLANE)}\nv_lshl_add_u32 {v(vXG)}, {v(vT)}, {xs}, {v(vXG)}')
    else:
        A(f's_mul_i32 s{sREC}, s{sREC}, 6144\ns_add_u32 s{sREC}, s{sREC}, {SCO}\ns_mul_i32 s{sOTH}, s{sOTH}, 6144\ns_add_u32 s{sOTH}, s{sOTH}, {SCO}')
        A(f'v_mov_b32 {v(vXG)}, {v(vL16)}')
    xoff = (lambda w, i: (2*w + i) << 17) if xs else (lambda w, i: 1536*w + 1024*i)
    A(f'v_add_u32 {v(vXA)}, {STG}, {v(vL16)}\nv_mov_b32 {v(vXF)}, {FLG+16}\nv_and_b32 {v(vT)}, 3, {v(vLANE)}\nv_cmp_eq_u32 vcc, 2, {v(vT)}\nv_mov_b32 {v(vT)}, -20\ns_nop 0\nv_cndmask_b32 {v(vT)}, 8, {v(vT)}, vcc\nv_add_u32 {v(vXB)}, {v(vXA)}, {v(vT)}')
    sE0, sE1 = 96, 98
    A(f's_bitcmp1_b32 s{sXD}, 0\ns_cselect_b32 s{sE0}, 0xffffff00, 0\ns_bitcmp1_b32 s{sXD}, 1\ns_cselect_b32 s{sE0+1}, -1, 0\ns_bitcmp1_b32 s{sXD}, 2\ns_cselect_b32 s{sE1}, 0xffffff, 0\ns_mov_b32 s{sE1+1}, 0')
    sTO = 38
    def cp_pub(i):
        A(f's_memrealtime {sp(sP)}\ns_lshl_b32 s{sT1}, s2, 4\ns_add_u32 s{sT1}, s{sT1}, {TS + 4096*i}\nv_mov_b32 {v(vS+11)}, {v(vTAG)}\ns_waitcnt lgkmcnt(0)\ns_add_u32 s{sTO}, s{sP}, 0')
        A(f'v_mov_b32 {v(vS+8)}, s{sTO}\ns_mov_b64 exec, 1\nbuffer_store_dwordx4 {v(vS+8,4)}, {v(vL16)}, {srd(rWS)}, s{sT1} offen sc1\ns_mov_b64 exec, -1')
    CG = vW + 32
    def cp_load(i):
        A(f'v_lshlrev_b32 {v(vT+2)}, 6, {v(vLANE)}\nv_bfe_u32 {v(vT+3)}, {v(vLANE)}, 1, 2\nv_lshl_add_u32 {v(vT+2)}, {v(vT+3)}, 4, {v(vT+2)}\ns_mov_b32 s{sT1}, {TS + 4096*i}')
        A(f'buffer_load_dwordx4 {v(CG,4)}, {v(vT+2)}, {srd(rWS)}, s{sT1} offen sc1\ns_memrealtime {sp(sP)}')
    def cp_use():
        A(f's_waitcnt vmcnt(0) lgkmcnt(0)\ns_sub_u32 s{sT0}, s{sP}, s{sTO}\nv_cmp_eq_u32 vcc, {v(CG+3)}, {v(vTAG)}\nv_subrev_u32 {v(CG)}, s{sTO}, {v(CG)}\nv_mov_b32 {v(vT)}, s{sT0}')
        A(f'v_cndmask_b32 {v(CG)}, {v(vT)}, {v(CG)}, vcc\nv_mov_b32 {v(vT)}, 0x190\nv_mov_b32 {v(vT+1)}, -400\nv_med3_i32 {v(CG)}, {v(CG)}, {v(vT)}, {v(vT+1)}')
        xsum(CG, vT, 'v_add_u32')
        A(f'ds_read_b32 {v(vT+2)}, {v(vXF)}\nv_readfirstlane_b32 s{sT0}, {v(CG)}\ns_nop 0\ns_ashr_i32 s{sT0}, s{sT0}, 6')
        A(f's_abs_i32 s{sT1}, s{sT0}\ns_sub_i32 s{sT1}, s{sT1}, {dead}\ns_max_i32 s{sT1}, s{sT1}, 0\ns_mul_i32 s{sT1}, s{sT1}, {gain}\ns_lshr_b32 s{sT1}, s{sT1}, 8\ns_min_u32 s{sT1}, s{sT1}, {kmax}')
        A(f's_waitcnt lgkmcnt(0)\nv_readfirstlane_b32 s{sT2}, {v(vT+2)}\ns_nop 0\ns_lshr_b32 s{sT2}, s{sT2}, 2\ns_add_u32 s{sT2}, s{sT2}, s{sT1}\ns_cmp_eq_u32 s{sT1}, 0\ns_cselect_b32 s{sT2}, 0, s{sT2}')
        A(f's_sub_i32 s{sT1}, 0, s{sT2}\ns_cmp_lt_i32 s{sT0}, 0\ns_cselect_b32 s{sT2}, s{sT2}, s{sT1}\nv_mov_b32 {v(vT)}, s{sT2}\nds_write_b32 {v(vXF)}, {v(vT)} offset:8')
    def rk_issue(i):
        A(f'v_lshlrev_b32 {v(vT+2)}, {rsp+2}, {v(vLANE)}\nv_bfe_u32 {v(vT+3)}, {v(vLANE)}, 1, 2\nv_lshl_add_u32 {v(vT+2)}, {v(vT+3)}, {rsp}, {v(vT+2)}\ns_mov_b32 s{sT0}, {0x360000 + (256 << rsp)*i}')
        A(f'buffer_load_dword {v(CG)}, {v(vT+2)}, {srd(rWS)}, s{sT0} offen sc1\ns_lshl_b32 s{sT1}, s2, {rsp}\ns_add_u32 s{sT1}, s{sT1}, s{sT0}')
        for k in range(4): A(f'v_mov_b32 {v(vS+8+k)}, {v(vTAG)}')
        A(f's_mov_b64 exec, {(1 << (1 << (rsp-4))) - 1}\nbuffer_store_dwordx4 {v(vS+8,4)}, {v(vL16)}, {srd(rWS)}, s{sT1} offen sc1\ns_mov_b64 exec, -1')
    def rk_use(n, w):
        A(f's_waitcnt vmcnt({w})\nv_cmp_eq_u32 vcc, {v(CG)}, {v(vTAG)}\ns_nop 0\ns_bcnt1_i32_b64 s{sT1}, vcc\ns_sub_i32 s{sT1}, s{sT1}, {rc0}\ns_max_i32 s{sT1}, s{sT1}, 0')
        A(f's_mul_i32 s{sT1}, s{sT1}, s{sT1}\ns_mul_i32 s{sT1}, s{sT1}, {rg}\ns_lshr_b32 s{sT1}, s{sT1}, 8\ns_min_u32 s{sT1}, s{sT1}, {kmax}\ns_add_u32 s{sT1}, s{sT1}, {n}')
        A(f'v_mov_b32 {v(vT)}, s{sT1}\nds_write_b32 {v(vXF)}, {v(vT)} offset:8')
    def cp_all(sel_):
        for i, n in enumerate(cpl):
            if bal and n != 23 and sel_(n):
                hwait(n, f'L_cp{i}')
                if rank: rk_issue(i); rk_use(n, 1)
                else: cp_pub(i); hwait(n + cgap, f'L_cg{i}'); cp_load(i); cp_use()
    cp_all(lambda n: n < 23)
    hwait(pubt, 'L_hw0')
    stamp(1)
    if bal and 23 in cpl: (rk_issue if rank else cp_pub)(cpl.index(23))
    if lead:
        A(f'v_mov_b32 {v(vT+2)}, {GO}\ns_and_b32 s{sT0}, s2, {lmask}\ns_cmp_lg_u32 s{sT0}, 5\ns_cbranch_scc1 L_go')
        hwait(lead, 'L_hwl')
        A(f's_mov_b64 exec, 1\nbuffer_store_dword {v(vTAG)}, {v(vT+2)}, {srd(rWS)}, 0 offen sc1\ns_mov_b64 exec, -1')
        if lpipe:
            A('L_go:')
            for k in range(3): A(f'buffer_load_dword {v(vT+4+k)}, {v(vT+2)}, {srd(rWS)}, 0 offen sc1\ns_sleep {lpipe}')
            A('L_go2:')
            for k in range(4):
                A(f'buffer_load_dword {v(vT+4+(k+3)%4)}, {v(vT+2)}, {srd(rWS)}, 0 offen sc1\nds_read_b32 {v(vT)}, {v(vXF)}\ns_waitcnt vmcnt(3) lgkmcnt(0)')
                A(f'v_cmp_eq_u32 vcc, {v(vT+4+k)}, {v(vTAG)}\nv_readfirstlane_b32 s{sT0}, {v(vT)}\ns_cbranch_vccnz L_go_ok\ns_cmp_ge_u32 s{sT0}, {4*fb}\ns_cbranch_scc1 L_go_ok')
            A('s_branch L_go2\nL_go_ok:')
        else:
            A(f'L_go:\nbuffer_load_dword {v(vT+3)}, {v(vT+2)}, {srd(rWS)}, 0 offen sc1\nds_read_b32 {v(vT)}, {v(vXF)}\ns_waitcnt vmcnt(0) lgkmcnt(0)')
            A(f'v_cmp_eq_u32 vcc, {v(vT+3)}, {v(vTAG)}\nv_readfirstlane_b32 s{sT0}, {v(vT)}\ns_cbranch_vccnz L_go_ok\ns_cmp_lt_u32 s{sT0}, {4*fb}\ns_cbranch_scc1 L_go\nL_go_ok:')
    stamp(3)
    def masked(i, lbl): return f's_cmp_eq_u64 {sp([sE0, sE1][i])}, 0\ns_cbranch_scc1 {lbl}{i}\ns_mov_b64 exec, {sp([sE0, sE1][i])}'
    if not (noex & 1):
        for i in range(2):
            A(masked(i, 'L_np'))
            for w in range(4):
                r = vF + 16*i + 4*w
                A(f'ds_read_b64 {v(r,2)}, {v(vXA)} offset:{1536*w+1024*i}\nds_read_b32 {v(r+2)}, {v(vXB)} offset:{1536*w+1024*i}\nv_mov_b32 {v(r+3)}, {v(vTAG)}')
            for w in range(4):
                r = vF + 16*i + 4*w
                A(f's_add_u32 s{sT0}, s{sREC}, {xoff(w, i)}\ns_waitcnt lgkmcnt({6-2*w})')
                A(f'buffer_store_dwordx4 {v(r,4)}, {v(vXG)}, {srd(rWS)}, s{sT0} offen {stfl}')
            A(f's_mov_b64 exec, -1\nL_np{i}:')
    if bal and rank and 23 in cpl: rk_use(24, 0)
    if lead: A(f's_cmp_lg_u32 s{sXS}, 0\ns_cbranch_scc1 L_hb4')
    if bal and rank: A(f's_cmp_lg_u32 s{sXS}, 0\ns_cbranch_scc1 L_hb4')
    hwait(gat, 'L_hw1')
    if bal and not rank and 23 in cpl: cp_load(cpl.index(23))
    if bal and not rank: A(f's_cmp_lg_u32 s{sXS}, 0\ns_cbranch_scc1 L_nox')
    if not (noex & 2):
        G = vO
        for k in range(8): A(f'v_mov_b32 {v(G+4*k+3)}, {v(vTAG)}')
        lds_ = []
        for i in range(2):
            t_ = masked(i, 'L_ng') + '\n'
            for w in range(4):
                t_ += f's_add_u32 s{sT0}, s{sOTH}, {xoff(w, i)}\nbuffer_load_dwordx4 {v(G+16*i+4*w,4)}, {v(vXG)}, {srd(rWS)}, s{sT0} offen {slfl}\n'
            lds_.append(t_ + f's_mov_b64 exec, -1\nL_ng{i}:')
        poll('L_px', lds_, [G+4*k+3 for k in range(8)], 8)
        for i in range(2):
            A(masked(i, 'L_nw'))
            for w in range(4): A(f'ds_write_b64 {v(vXA)}, {v(G+16*i+4*w,2)} offset:{1536*w+1024*i}\nds_write_b32 {v(vXB)}, {v(G+16*i+4*w+2)} offset:{1536*w+1024*i}')
            A(f's_mov_b64 exec, -1\ns_waitcnt lgkmcnt(0)\nL_nw{i}:')
    A(f'v_mov_b32 {v(vT)}, 1\nds_write_b32 {v(vXF)}, {v(vT)} offset:4')
    stamp(4)
    if bal and not rank: A('L_nox:')
    if bal and not rank and 23 in cpl: cp_use()
    A('L_hb4:')
    A(f'v_mul_u32_u24 {v(vA)}, 12, {v(vLANE)}\nv_add_u32 {v(vA)}, {OCB}, {v(vA)}\nv_mov_b32 {v(vAL)}, {OCB+768}')
    A(f's_lshl_b32 s{sT1}, s{sH}, 3\ns_add_u32 s{sT1}, s{sT1}, s{sJ}\ns_lshl_b32 s{sT1}, s{sT1}, 11\ns_add_u32 s{sT1}, s{sT1}, {OP}')
    Gm = vQ + 16
    r0 = vP
    ml = vT + 4
    def weights():
        A(f'v_max3_f32 {v(ml)}, {v(Gm)}, {v(Gm+2)}, {v(Gm+4)}\nv_max_f32 {v(ml)}, {v(ml)}, {v(Gm+6)}')
        for w in range(4): A(f'v_sub_f32 {v(Gm+2*w)}, {v(Gm+2*w)}, {v(ml)}')
        for w in range(4): A(f'v_exp_f32 {v(Gm+2*w)}, {v(Gm+2*w)}')
        A(f'v_mov_b32 {v(r0+3)}, {v(vTAG)}\nv_mov_b32 {v(ml+3)}, {v(vTAG)}\nv_mov_b32 {v(ml+2)}, {v(vTAG)}')
        A(f'v_mul_f32 {v(ml+1)}, {v(Gm)}, {v(Gm+1)}')
        for w in range(1, 4): A(f'v_fmac_f32 {v(ml+1)}, {v(Gm+2*w)}, {v(Gm+2*w+1)}')
    if lred:
        A(f'v_mov_b32 {v(vXF)}, {FLG+16}')
        hwait(29, 'L_hw2', 8)
        if stamps == 5: A(f's_memrealtime {sp(sST+2*4)}\ns_waitcnt lgkmcnt(0)')
        for w in range(4): A(f'ds_read_b64 {v(Gm+2*w,2)}, {v(vAL)} offset:{1024*w}')
        A('s_waitcnt lgkmcnt(0)')
        weights()
        for w in range(1, 4): A(f'v_add_u32 {v(vQ+4+w)}, {1024*w}, {v(vA)}')
        if bal and max(cpl) > 23:
            A(f's_mov_b32 s{sOTH}, s{sT1}')
            cp_all(lambda n: n > 23)
            A(f's_mov_b32 s{sT1}, s{sOTH}\nv_mov_b32 {v(r0+3)}, {v(vTAG)}')
        A('s_barrier')
        stamp(5)
        for w in range(4):
            a_ = vA if w == 0 else vQ+4+w
            A(f'ds_read2_b32 {v(vF+4*w,2)}, {v(a_)} offset0:0 offset1:1\nds_read_b32 {v(vF+4*w+2)}, {v(a_)} offset:8')
    else:
        A('s_barrier')
        stamp(5)
        for w in range(4): A(f'ds_read_b64 {v(Gm+2*w,2)}, {v(vAL)} offset:{1024*w}')
        for w in range(4):
            A(f'ds_read2_b32 {v(vF+4*w,2)}, {v(vA)} offset0:0 offset1:1\nds_read_b32 {v(vF+4*w+2)}, {v(vA)} offset:8')
            if w < 3: A(f'v_add_u32 {v(vA)}, 1024, {v(vA)}')
        A('s_waitcnt lgkmcnt(8)')
        weights()
    A('s_waitcnt lgkmcnt(0)')
    for k in range(3): A(f'v_mul_f32 {v(r0+k)}, {v(Gm)}, {v(vF+k)}')
    for w in range(1, 4):
        for k in range(3): A(f'v_fmac_f32 {v(r0+k)}, {v(Gm+2*w)}, {v(vF+4*w+k)}')
    A(f'buffer_store_dwordx4 {v(r0,4)}, {v(vL16)}, {srd(rWS)}, s{sT1} offen sc1')
    A(f's_mov_b64 exec, 1\nbuffer_store_dwordx4 {v(ml,4)}, {v(vL16)}, {srd(rWS)}, s{sT1} offen offset:1024 sc1\ns_mov_b64 exec, -1')
    if hb5: A(f's_cmp_ge_u32 s{sJ}, 5\ns_cbranch_scc1 L_hnb5\ns_barrier\nL_hnb5:')
    A(f's_cmp_eq_u32 s{sHASW1}, 0\ns_cbranch_scc1 L_hdone')
    if blate:
        b_publish()
        b_gather()
    G = vW
    if y8:
        mky = lambda b: [f'buffer_load_dwordx2 {v(b+4*p+2,2)}, {v(vG8)}, {srd(rWS)}, s{rK+p} offen sc1' for p in range(8)]
        def usey(b):
            for p in range(4):
                A(f'v_lshlrev_b32 {v(G+2*p)}, 16, {v(b+8*p+2)}\nv_and_b32 {v(G+2*p+1)}, 0xffff0000, {v(b+8*p+2)}\nv_lshlrev_b32 {v(G+8)}, 16, {v(b+8*p+6)}\nv_and_b32 {v(G+9)}, 0xffff0000, {v(b+8*p+6)}')
                A(f'v_add_f32 {v(G+2*p)}, {v(G+2*p)}, {v(G+8)}\nv_add_f32 {v(G+2*p+1)}, {v(G+2*p+1)}, {v(G+9)}')
    else:
        mky = lambda b: [wsload(b+4*p, vG4, rK+p) for p in range(8)]
        def usey(b):
            for k in range(2):
                for p in range(4): A(f'v_add_f32 {v(G+2*p+k)}, {v(b+8*p+k)}, {v(b+8*p+4+k)}')
    if py: poll2('L_py', mky, 8, vF+16, vO, 6, py, usey)
    else:
        (polls if sel & 2 else poll)('L_py', mky(vF+16), [vF+16+4*p+3 for p in range(8)], 6)
        usey(vF+16)
    stamp(6)
    for k in range(2):
        A(f'v_add_f32 {v(G+k)}, {v(G+k)}, {v(G+2+k)}\nv_add_f32 {v(G+4+k)}, {v(G+4+k)}, {v(G+6+k)}\nv_add_f32 {v(G+k)}, {v(G+k)}, {v(G+4+k)}')
    for k in range(2): xsum(G+k, vT+k, full=False)
    rnd2(G, G+1, vT)
    A(f'v_mul_f32 {v(G)}, {v(G)}, {v(vG0)}\nv_mul_f32 {v(G+1)}, {v(G+1)}, {v(vG1)}')
    rnd2(G, G+1, vT)
    if perturb:
        A(f's_cmp_eq_u32 s{sU2}, 0\ns_cselect_b32 s{sT0}, {f2u(perturb/1000):#x}, 0\ns_mov_b64 exec, 1\nv_add_f32 {v(vX0)}, s{sT0}, {v(vX0)}\ns_mov_b64 exec, -1')
    if pall: A(f'v_mul_f32 {v(G)}, {f2u(1+pall/1000):#x}, {v(G)}\nv_mul_f32 {v(G+1)}, {f2u(1+pall/1000):#x}, {v(G+1)}')
    A(f'v_add_f32 {v(G)}, {v(G)}, {v(vX0)}\nv_add_f32 {v(G+1)}, {v(G+1)}, {v(vX1)}\nv_cvt_pk_bf16_f32 {v(G)}, {v(G)}, {v(G+1)}')
    A(f's_mov_b64 exec, 0xffff\nglobal_store_short {v(vXO)}, {v(G)}, {sp(sOUT)} {ofl}\nglobal_store_short_d16_hi {v(vXO)}, {v(G)}, {sp(sOUT)} offset:32 {ofl}')
    A(f's_cmp_lg_u32 s{sU2}, 0\ns_cbranch_scc1 L_hdone')
    A(f's_mov_b64 exec, 1\nv_mov_b32 {v(vT)}, 0\nglobal_store_dword {v(vT)}, {v(vTAG)}, {sp(sWS)} sc1')
    A('L_hdone:')
    if stamps:
        A('s_waitcnt vmcnt(0)')
        stamp(7)
        write_stamps(256, 'h')
    A('L_end:\ns_endpgm')
    A(f'''.section .rodata,"a"
.p2align 6
.amdhsa_kernel {NAME}_kernel
  .amdhsa_next_free_vgpr {NV}
  .amdhsa_next_free_sgpr 100
  .amdhsa_accum_offset {NV}
  .amdhsa_group_segment_fixed_size 0
  .amdhsa_kernarg_size 96
  .amdhsa_user_sgpr_count 2
  .amdhsa_user_sgpr_kernarg_segment_ptr 1
  .amdhsa_system_sgpr_workgroup_id_x 1
  .amdhsa_float_denorm_mode_32 3
.end_amdhsa_kernel''')
    open(fn, 'w').write('\n'.join(L) + '\n')

if __name__ == '__main__':
    fn = sys.argv[1]
    kw = {}
    for a in sys.argv[2:]:
        k, val = a.split('=')
        try: val = int(val)
        except ValueError: val = val.replace('+', ' ').replace('def', '')
        kw[k] = val
    gen(fn, **kw)
```

```python
import sys, os, struct
NAME = 'recurrent_scan__gqa_block_cached__glu_gated_reglu__decode'

HEADER = '''; Kernarg layout (96 bytes, pointers only, base s[0:1]), everything bf16:
;
'''

def f2u(x): return struct.unpack('<I', struct.pack('<f', x))[0]

def gen(fn, stamps=False, pace=8, up=4, mapping='x', kvil=False, twostage=False, spin=1<<15, knt='nt', vnt='nt', w1nt='nt', w2nt='nt', sleep=0, fixdur=0, D=7, nomem=0, now=0, nopoll=0, nocomp=0, pre=1, force=-1, cap=400, thr=100, noex=0, sync=1, skipx=1, hsl=2, gat=26, perturb=0, pall=0, lead=0, bal=5, gain=15, dead=20, kmax=10, bneg=0, cps='23.34', cgap=3, rank=0, wlate=0, qdel2=9, xs=0, qdel=9, rsp=7, rc0=24, rg=2, lastneg=0, ofl='', prio=0, nosleep=1, y8=0, rot=2, rmul=1, umap=1, gord=2, w1sw=1, wearly=2, hb5=1, xtra=-1, sel=0, lpipe=0, lmask=31, fb=26, blate=1, pubt=23, htouch=0, otouch=0, nonuma=0, al=1, glate=1, touch=0, late=0, lred=1, pq=0, po=0, py=0, inl=1, nend=4, Dend=18, dbgv=0, stfl='sc1', slfl='sc1'):
    L = []
    cpl = [int(x) for x in str(cps).split('.')]
    def A(s):
        for ln in s.strip('\n').split('\n'):
            L.append(ln.strip())
    SLOT = 9216; RING = 2*SLOT; WT = 12288
    WREG = 4*RING
    MISC = WREG + 4*WT
    XN = MISC; OBF = MISC
    RED = MISC + 1536
    OCB = RED + 8192
    QL = RED + 12288
    HL = QL + 384
    FLG = HL + 768
    STG = FLG + 64
    LDS = 147456
    assert STG + 6144 <= LDS
    P1 = 0x1000; OP = 0x100000; YP = 0x200000; BP = 0x300000; VOTE = 0x3F0000; GO = 0x3F8000; TS = 0x3E0000; SCO = 0x400000; WSZ = 0x600000
    TAGC = 0x9E3779B9
    sX, sK, sV, sWQ, sWO, sWG, sWU, sWD, sOUT, sDBG, sWS = 4, 6, 8, 10, 12, 16, 18, 20, 22, 24, 26
    rK, rV, rW1, rW2, rWS = 28, 32, 36, 40, 44
    sWAVE, sH, sJ, sB, sHALF = 48, 49, 50, 51, 52
    sBETA, sPI, sHASW1, sRS = 53, 54, 55, 56
    sSLA, sSLB, sSLC = 57, 58, 59
    sOFF, sT, sCNT = 60, 61, 62
    sSC, sL2E = 63, 64
    sT0, sT1, sT2, sT3 = 65, 66, 67, 68
    sU2, sR, sCB, sRB, sSLC2 = 69, 70, 71, 72, 73
    sN0, sN1, sFLV, sFL = 70, 71, 72, 73
    sU, sPUB, sNEG, sVB = 14, 15, 34, 32
    sRHO = 3
    sXD, sXS = 92, 93
    sCM = 94
    sSTG = 35
    sU0 = 96
    sP = 74
    sST = 76
    def srd(r): return f's[{r}:{r+3}]'
    def sp(r): return f's[{r}:{r+1}]'
    vLANE, vL16, vTAG, vKA0, vVA0, vA, vM, vML, vLS, vAL = 1, 2, 3, 4, 5, 6, 7, 8, 9, 10
    vT = 12
    vS = 28
    vP = 36
    vQ = 40
    vF = 64
    vO = 112
    vW = 160
    vR = 208
    vM2B, vM2X, vM3, vSK, vSV, vFA, vONE, vPA = range(212, 220)
    vSRC = 220
    vKB = 224
    vVB = 228
    vAD = 236
    NV = 244
    def v(r, n=1): return f'v{r}' if n == 1 else f'v[{r}:{r+n-1}]'
    inhelper = [False]
    def pstamp(i):
        if stamps == 3: A(f's_memrealtime {sp(sST+2*i)}\ns_waitcnt lgkmcnt(0)')
    def qstamp(i):
        if stamps == 4: A(f's_memrealtime {sp(sST+2*i)}\ns_waitcnt lgkmcnt(0)')
    def stamp(i):
        if stamps in (3, 4) and i < 7 and not inhelper[0]: return
        if stamps == 5 and inhelper[0] and i in (3, 4): return
        if stamps:
            A(f's_memrealtime {sp(sST+2*i)}\ns_waitcnt lgkmcnt(0)')
    def write_stamps(rec_base, lbl):
        if not stamps: return
        A(f's_lshl_b32 s{sT0}, s2, 6\ns_add_u32 s{sT0}, s{sT0}, {0x20000000 + rec_base*64}')
        A(f's_add_u32 s{sP}, s{sWS}, s{sT0}\ns_addc_u32 s{sP+1}, s{sWS+1}, 0')
        A(f's_mov_b64 exec, 1\nv_mov_b32 {v(vA)}, 0')
        for i in range(4):
            for k in range(4): A(f'v_mov_b32 {v(vT+k)}, s{sST+4*i+k}')
            A(f'global_store_dwordx4 {v(vA)}, {v(vT,4)}, {sp(sP)} offset:{16*i}\ns_nop 1')
    def xsum(r, t, op='v_add_f32', full=True):
        if full:
            for mode in ['quad_perm:[1,0,3,2]', 'quad_perm:[2,3,0,1]', 'row_half_mirror', 'row_mirror']:
                A(f's_nop 1\n{op}_dpp {v(r)}, {v(r)}, {v(r)} {mode} row_mask:0xf bank_mask:0xf')
        for sw in ['v_permlane16_swap_b32', 'v_permlane32_swap_b32']:
            A(f'v_mov_b32 {v(t)}, {v(r)}\ns_nop 1\n{sw} {v(r)}, {v(t)}\n{op} {v(r)}, {v(r)}, {v(t)}')
    def rnd(r, t):
        A(f'v_cvt_pk_bf16_f32 {v(t)}, {v(r)}, {v(r)}\nv_lshlrev_b32 {v(r)}, 16, {v(t)}')
    def rnd2(r0, r1, t):
        A(f'v_cvt_pk_bf16_f32 {v(t)}, {v(r0)}, {v(r1)}\nv_lshlrev_b32 {v(r0)}, 16, {v(t)}\nv_and_b32 {v(r1)}, 0xffff0000, {v(t)}')
    def dma_tile(soff, sslot, paced=None, lo=0, hi=9, fl='nt'):
        for i in range(lo, hi):
            A(f's_add_u32 m0, s{sslot}, {1024*i}')
            if i == lo or i % 3 == 0: A(f's_add_u32 s{sT0}, s{soff}, {3072*(i//3)}')
            elif not paced: A('s_nop 0')
            if paced: A(f's_waitcnt vmcnt({paced-1})')
            A(f'buffer_load_dwordx4 {v(vSRC+i%3)}, {srd(rK)}, s{sT0} offen {fl} lds')
    def rot3(dst, tmp):
        A(f's_lshr_b32 s{dst}, s{sRHO}, {rot}')
        if rmul != 1: A(f's_mul_i32 s{dst}, s{dst}, {rmul}')
        A(f's_mul_i32 s{tmp}, s{dst}, 43691\ns_lshr_b32 s{tmp}, s{tmp}, 17\ns_mul_i32 s{tmp}, s{tmp}, 3\ns_sub_u32 s{dst}, s{dst}, s{tmp}')
    def block_params(default, sn):
        if default == 1: A(f's_cmp_eq_u32 s{sHALF}, 1')
        else: A(f's_bitcmp1_b64 {sp(sCM)}, s{sT}')
        A(f's_addc_u32 s{sT1}, s{sU}, s{sU}\ns_lshl_b32 s{sT1}, s{sT1}, 6\ns_add_u32 s{sT2}, s{sT1}, 65\ns_add_u32 s{sT1}, s{sT1}, 1')
        A(f's_mul_i32 s{sT1}, s{sT1}, 43691\ns_mul_i32 s{sT2}, s{sT2}, 43691\ns_lshr_b32 s{sT1}, s{sT1}, 17\ns_lshr_b32 s{sT2}, s{sT2}, 17')
        A(f's_mul_i32 s{sOFF}, s{sT1}, 384\ns_sub_u32 s{sT1}, s{sT2}, s{sT1}\ns_mul_i32 s{sT2}, s{sT2}, 384\ns_min_u32 s{rK+2}, s{sT2}, {0 if nomem else 1572864}')
        if default == 2: A(f's_cmp_ge_u32 s{sT}, 46\ns_cselect_b32 s{rK+2}, 0, s{rK+2}')
        else: A(f's_cmp_eq_u32 s{sT1}, 22\ns_cselect_b32 s{sn}, -1, 0')
        if umap: A(f's_bitcmp1_b32 s{sU}, 0\ns_cselect_b32 s{sT1}, 7, 1\ns_add_u32 s{sU}, s{sU}, s{sT1}')
        else: A(f's_add_u32 s{sU}, s{sU}, 4')
        if rot >= 0: A(f's_cmp_ge_u32 s{sU}, 96\ns_cselect_b32 s{sT1}, 96, 0\ns_sub_u32 s{sU}, s{sU}, s{sT1}')
    def poll(lbl, loads, tagregs, code, mid=None):
        A(f's_mov_b32 s{sCNT}, {spin}\n{lbl}:')
        for x in loads: A(x)
        if mid: A(f'{mid}:')
        A('s_waitcnt vmcnt(0)')
        A(f'v_xor_b32 {v(vT)}, {v(tagregs[0])}, {v(vTAG)}')
        for r in tagregs[1:]:
            A(f'v_xor_b32 {v(vT+1)}, {v(r)}, {v(vTAG)}\nv_or_b32 {v(vT)}, {v(vT)}, {v(vT+1)}')
        if (nopoll and lbl != 'L_pq') or (noex and lbl == 'L_px'): A(f's_branch {lbl}_ok')
        A(f'v_cmp_ne_u32 vcc, 0, {v(vT)}\ns_cbranch_vccz {lbl}_ok')
        if sleep: A(f's_sleep {sleep}')
        A(f's_sub_u32 s{sCNT}, s{sCNT}, 1\ns_cmp_lg_u32 s{sCNT}, 0\ns_cbranch_scc1 {lbl}')
        A(f'v_mov_b32 {v(vT)}, 0\nv_mov_b32 {v(vT+1)}, {code}\nglobal_store_dword {v(vT)}, {v(vT+1)}, {sp(sDBG)}')
        A(f'{lbl}_ok:')
    def polls(lbl, loads, tagregs, code):
        A(f's_mov_b32 s{sCNT}, {spin}')
        for x in loads: A(x)
        A(f'{lbl}:\ns_waitcnt vmcnt(0)\ns_mov_b32 s{sT3}, 0')
        for k, (x, r) in enumerate(zip(loads, tagregs)):
            A(f'v_cmp_ne_u32 vcc, {v(r)}, {v(vTAG)}\ns_cbranch_vccz {lbl}_s{k}\ns_mov_b64 exec, vcc')
            A(x)
            A(f's_mov_b64 exec, -1\ns_mov_b32 s{sT3}, 1\n{lbl}_s{k}:')
        A(f's_cmp_eq_u32 s{sT3}, 0\ns_cbranch_scc1 {lbl}_ok')
        A(f's_sub_u32 s{sCNT}, s{sCNT}, 1\ns_cmp_lg_u32 s{sCNT}, 0\ns_cbranch_scc1 {lbl}')
        A(f'v_mov_b32 {v(vT)}, 0\nv_mov_b32 {v(vT+1)}, {code}\nglobal_store_dword {v(vT)}, {v(vT+1)}, {sp(sDBG)}\ns_waitcnt vmcnt(0)')
        A(f'{lbl}_ok:')
    def poll2(lbl, mk, n, base, alt, code, delay, use):
        def check(b, ok):
            A(f's_waitcnt vmcnt({n})')
            A(f'v_xor_b32 {v(vT)}, {v(b+3)}, {v(vTAG)}')
            for k in range(1, n): A(f'v_xor_b32 {v(vT+1)}, {v(b+4*k+3)}, {v(vTAG)}\nv_or_b32 {v(vT)}, {v(vT)}, {v(vT+1)}')
            A(f'v_cmp_ne_u32 vcc, 0, {v(vT)}\ns_cbranch_vccz {ok}')
        A(f's_mov_b32 s{sCNT}, {spin}')
        for x in mk(base): A(x)
        if callable(delay): delay()
        else: A(f's_sleep {delay}')
        A(f'{lbl}:')
        for x in mk(alt): A(x)
        check(base, f'{lbl}_ok')
        for x in mk(base): A(x)
        check(alt, f'{lbl}_okb')
        A(f's_sub_u32 s{sCNT}, s{sCNT}, 1\ns_cmp_lg_u32 s{sCNT}, 0\ns_cbranch_scc1 {lbl}')
        A(f'v_mov_b32 {v(vT)}, 0\nv_mov_b32 {v(vT+1)}, {code}\nglobal_store_dword {v(vT)}, {v(vT+1)}, {sp(sDBG)}')
        A(f'{lbl}_okb:')
        use(alt)
        A(f's_branch {lbl}_done\n{lbl}_ok:')
        use(base)
        A(f'{lbl}_done:')
    def wsload(dst, voff, soff): return f'buffer_load_dwordx4 {v(dst,4)}, {v(voff)}, {srd(rWS)}, s{soff} offen sc1'
    def put3_bf16(r0, t, va):
        A(f'v_cvt_pk_bf16_f32 {v(t)}, {v(r0)}, {v(r0+1)}\nv_cvt_pk_bf16_f32 {v(t+1)}, {v(r0+2)}, {v(r0+2)}')
        A(f'ds_write_b16 {v(va)}, {v(t)}\nds_write_b16_d16_hi {v(va)}, {v(t)} offset:2\nds_write_b16 {v(va)}, {v(t+1)} offset:4')
    def fdiv(q, n, d, r, e):
        A(f'v_mul_f32 {v(q)}, {v(n)}, {v(r)}\nv_fma_f32 {v(e)}, -{v(q)}, {v(d)}, {v(n)}\nv_fma_f32 {v(q)}, {v(e)}, {v(r)}, {v(q)}')
    def trread_mfma(ntile, va, off2, acc, first, frag, aop, va2=None, extra=None):
        def rd(t):
            if va2 is None:
                A(f'ds_read_b64_tr_b16 {v(frag+4*t,2)}, {v(va)} offset:{32*t}')
                A(f'ds_read_b64_tr_b16 {v(frag+4*t+2,2)}, {v(va)} offset:{32*t+off2}')
            else:
                A(f'ds_read_b64_tr_b16 {v(frag+4*t,2)}, {v(va+(t&3))} offset:{128*(t>>2)}')
                A(f'ds_read_b64_tr_b16 {v(frag+4*t+2,2)}, {v(va2+(t&3))} offset:{128*(t>>2)}')
        pre = min(4, ntile)
        for t in range(pre): rd(t)
        for t in range(ntile):
            if t + pre < ntile: rd(t + pre)
            if extra and t + pre == ntile - 1: A(extra)
            left = min(ntile - 1, t + pre) - t
            A(f's_waitcnt lgkmcnt({2*left + (1 if extra and t + pre >= ntile - 1 else 0)})')
            c = '0' if first else v(acc+4*t, 4)
            A(f'v_mfma_f32_16x16x32_bf16 {v(acc+4*t,4)}, {v(aop,4)}, {v(frag+4*t,4)}, {c}')

    A(HEADER)
    A(f'; @launch grid=(256,1,1) block=(320,1,1) lds={LDS}')
    A('.amdgcn_target "amdgcn-amd-amdhsa--gfx950"\n.text')
    if al: A('.p2align 12')
    A(f'.globl {NAME}_kernel\n.p2align 8\n.type {NAME}_kernel,@function\n{NAME}_kernel:')
    A('s_cmp_ge_u32 s2, 256\ns_cbranch_scc1 L_end')
    A('s_load_dwordx16 s[4:19], s[0:1], 0\ns_load_dwordx8 s[20:27], s[0:1], 64')
    if fixdur: A('s_memrealtime s[96:97]')
    if stamps:
        A(f's_memrealtime {sp(sST)}')
        for i in range(2, 16): A(f's_mov_b32 s{sST+i}, 0')
    A(f'v_lshrrev_b32 {v(vT)}, 6, v0\nv_and_b32 {v(vLANE)}, 63, v0')
    A(f'v_readfirstlane_b32 s{sWAVE}, {v(vT)}')
    A(f'v_lshlrev_b32 {v(vL16)}, 4, {v(vLANE)}')
    A(f's_lshr_b32 s{sT0}, s2, 3\ns_lshl_b32 s{sT0}, s{sT0}, 2\ns_and_b32 s{sT1}, s2, 3\ns_add_u32 s{sRHO}, s{sT0}, s{sT1}')
    A(f's_bfe_u32 s{sHALF}, s2, 0x10002\ns_lshr_b32 s{sB}, s{sRHO}, 5\ns_and_b32 s{sH}, s{sRHO}, 31\ns_lshl_b32 s{sJ}, s{sB}, 1\ns_add_u32 s{sJ}, s{sJ}, s{sHALF}')
    A(f's_mul_i32 s{sU2}, s{sH}, 3\ns_add_u32 s{sU2}, s{sU2}, s{sJ}')
    A(f's_mov_b32 s{sSC}, {f2u(192**-0.5):#x}\ns_mov_b32 s{sL2E}, {f2u(1.4426950408889634):#x}')
    def ws_srd():
        A(f's_mov_b32 s{rWS}, s{sWS}\ns_mov_b32 s{rWS+1}, s{sWS+1}')
    A(f's_mov_b32 s{rWS+2}, {WSZ}\ns_mov_b32 s{rWS+3}, 0x20000')
    def vote_slot(src, sidx, sslot):
        A(f's_mul_i32 s{sidx}, s{src}, 3\ns_lshr_b32 s{sidx}, s{sidx}, 5\ns_lshl_b32 s{sslot}, s{sidx}, 5\ns_add_u32 s{sslot}, s{sslot}, 2\ns_mul_i32 s{sslot}, s{sslot}, 43691\ns_lshr_b32 s{sslot}, s{sslot}, 17\ns_sub_u32 s{sslot}, s{src}, s{sslot}')
    sIDX, sSLT = 40, 41
    A(f's_cmp_eq_u32 s{sWAVE}, 4\ns_cbranch_scc0 L_noprobe')
    if prio: A(f's_setprio {prio}')
    vote_slot(2, sIDX, sSLT)
    A(f's_cmp_ge_u32 s{sIDX}, 12\ns_cselect_b32 s{sT0}, 12, 0\ns_sub_u32 s{sT0}, s{sIDX}, s{sT0}')
    A(f's_lshl_b32 s{sT0}, s{sT0}, 3\ns_and_b32 s{sT1}, s{sSLT}, 7\ns_add_u32 s{sT0}, s{sT0}, s{sT1}\ns_lshl_b32 s{sT0}, s{sT0}, 21')
    A(f's_lshr_b32 s{sT1}, s{sSLT}, 3\ns_lshl_b32 s{sT1}, s{sT1}, 12\nv_mov_b32 {v(vT+4)}, 0\ns_mov_b64 exec, 1\ns_cmp_ge_u32 s{sIDX}, 12')
    A('s_waitcnt lgkmcnt(0)')
    A(f's_cselect_b32 s{sP}, s{sV}, s{sK}\ns_cselect_b32 s{sP+1}, s{sV+1}, s{sK+1}\ns_add_u32 s{sP}, s{sP}, s{sT0}\ns_addc_u32 s{sP+1}, s{sP+1}, 0')
    A(f's_bfe_u32 s{sT0}, s{sP}, 0x10015\ns_lshl_b32 s{sT0}, s{sT0}, 13\ns_add_u32 s{sT0}, s{sT0}, s{sT1}')
    A(f'v_mov_b32 {v(vT)}, s{sT0}\nv_xor_b32 {v(vT+1)}, 0x2000, {v(vT)}')
    A(f'global_load_dword {v(vT+2)}, {v(vT)}, {sp(sP)} nt\nglobal_load_dword {v(vT+3)}, {v(vT+1)}, {sp(sP)} nt\ns_mov_b64 exec, -1')
    if gord == 2: A(f'global_load_dword {v(vTAG)}, {v(vT+4)}, {sp(sWS)} sc1')
    A('s_barrier')
    ws_srd()
    e_ = 1 if gord == 2 else 0
    A(f's_waitcnt vmcnt({1+e_})\ns_memtime s[36:37]\ns_waitcnt vmcnt({e_})\ns_memtime s[38:39]')
    if gord != 2: A(f'global_load_dword {v(vTAG)}, {v(vT+4)}, {sp(sWS)} sc1')
    A('s_branch L_helper\nL_noprobe:')

    sO1, sO2, sOK = sN0, sN1, sFLV
    A(f's_cmp_ge_u32 s{sJ}, 3\ns_cbranch_scc0 L_w1mlp')
    A(f's_mov_b32 s{sBETA}, s{sH}\ns_sub_u32 s{sPI}, s{sJ}, 3\ns_mov_b32 s{sRS}, 12288\ns_mov_b32 s{sHASW1}, 1\ns_mul_i32 s{sO1}, s{sH}, 384')
    A('s_branch L_w1done\nL_w1mlp:')
    A(f's_mul_i32 s{sT1}, s{sU2}, 52429\ns_lshr_b32 s{sT1}, s{sT1}, 18')
    A(f's_mul_i32 s{sT2}, s{sT1}, 5\ns_sub_u32 s{sPI}, s{sU2}, s{sT2}\ns_add_u32 s{sBETA}, s{sT1}, 32\ns_mov_b32 s{sRS}, 3072')
    A(f's_cmp_lt_u32 s{sU2}, 80\ns_cselect_b32 s{sHASW1}, 1, 0\ns_and_b32 s{sT1}, s{sT1}, 7\ns_mul_i32 s{sO1}, s{sT1}, 384')
    A('L_w1done:')
    A(f's_lshl_b32 s{sT1}, s{sPI}, 2\ns_add_u32 s{sT1}, s{sT1}, s{sWAVE}\ns_lshl_b32 s{sT1}, s{sT1}, 5\ns_mul_i32 s{sT1}, s{sT1}, s{sRS}\ns_add_u32 s{sO1}, s{sO1}, s{sT1}')
    A(f's_mul_i32 s{sT1}, s{sRS}, 31\ns_add_u32 s{sT1}, s{sT1}, 384\ns_mul_i32 s{rW1+2}, s{sT1}, s{sHASW1}\ns_mov_b32 s{rW1+3}, 0x20000')
    if now: A(f's_mov_b32 s{rW1+2}, 0')
    for p in range(3):
        A(f'v_add_u32 {v(vT)}, {64*p}, {v(vLANE)}\nv_mul_u32_u24 {v(vT+1)}, 2731, {v(vT)}\nv_lshrrev_b32 {v(vT+1)}, 16, {v(vT+1)}')
        A(f'v_mul_u32_u24 {v(vT+2)}, 24, {v(vT+1)}\nv_sub_u32 {v(vT)}, {v(vT)}, {v(vT+2)}\nv_lshlrev_b32 {v(vT)}, 4, {v(vT)}')
        if not w1sw: A(f'v_mad_u32_u24 {v(vS+p)}, {v(vT+1)}, s{sRS}, {v(vT)}')
        A(f'v_and_b32 {v(vT+3)}, 6, {v(vT+1)}\nv_lshlrev_b32 {v(vT+3)}, 4, {v(vT+3)}\nv_xor_b32 {v(vT)}, {v(vT)}, {v(vT+3)}\nv_lshl_add_u32 {v(vSRC+p)}, {v(vT+2)}, 4, {v(vT)}')
        if w1sw: A(f'v_mad_u32_u24 {v(vS+p)}, {v(vT+1)}, s{sRS}, {v(vT)}')
    A(f's_mul_i32 s{sSLA}, s{sWAVE}, {RING}\ns_add_u32 s{sSLB}, s{sSLA}, {SLOT}\ns_mul_i32 s{sSLC}, s{sWAVE}, {WT}\ns_add_u32 s{sSLC}, s{sSLC}, {WREG}')
    A(f's_mul_i32 s{sT0}, s{sWAVE}, 1280\nv_lshlrev_b32 {v(vA)}, 2, {v(vLANE)}\nv_add_u32 {v(vA)}, s{sT0}, {v(vA)}\ns_mul_i32 s{sOK}, s{sRHO}, 1572864')
    A(f's_cmp_lt_u32 s{sBETA}, 40')
    A('s_waitcnt lgkmcnt(0)')
    pstamp(1)
    if stamps == 3: A(f's_cmp_lt_u32 s{sBETA}, 40')
    A(f's_cselect_b32 s{rW1}, s{sWG}, s{sWU}\ns_cselect_b32 s{rW1+1}, s{sWG+1}, s{sWU+1}\ns_cmp_lt_u32 s{sBETA}, 32\ns_cselect_b32 s{rW1}, s{sWQ}, s{rW1}\ns_cselect_b32 s{rW1+1}, s{sWQ+1}, s{rW1+1}')
    A(f's_add_u32 s{rW1}, s{rW1}, s{sO1}\ns_addc_u32 s{rW1+1}, s{rW1+1}, 0')
    if touch:
        A(f's_load_dword s96, {sp(rW1)}, 0\ns_load_dword s97, {sp(sX)}, 0\ns_load_dword s98, {sp(sK)}, s{sOK}')
    A('s_barrier')
    pstamp(2)
    for k in range(5): A(f'global_load_dword {v(vF+k)}, {v(vA)}, {sp(sX)} offset:{256*k}')
    def w1_issue():
        A(f's_lshl_b32 s{sT2}, s{sRS}, 3\ns_mov_b32 s{sT1}, 0')
        for i in range(12):
            A(f's_add_u32 m0, s{sSLC}, {1024*i}')
            A(f's_add_u32 s{sT1}, s{sT1}, s{sT2}' if i and i % 3 == 0 else 's_nop 0')
            A(f'buffer_load_dwordx4 {v(vS+i%3)}, {srd(rW1)}, s{sT1} offen {w1nt} lds')
    if late:
        assert up == 0
        A(f's_cmp_ge_u32 s{sJ}, 3\ns_cbranch_scc0 L_w1late')
    w1_issue()
    if late: A('L_w1late:')
    A(f'v_mov_b32 {v(vT)}, 0\nglobal_load_dword {v(vTAG)}, {v(vT)}, {sp(sWS)} sc1')
    pstamp(3)
    ws_srd()
    A(f's_add_u32 s{rK}, s{sK}, s{sOK}\ns_addc_u32 s{rK+1}, s{sK+1}, 0\ns_mov_b32 s{rK+3}, 0x20000')
    A(f's_add_u32 s{sVB}, s{sV}, s{sOK}\ns_addc_u32 s{sVB+1}, s{sV+1}, 0')
    A(f's_lshl_b32 s{sU}, s{sWAVE}, {umap}')
    if rot >= 0:
        rot3(sT1, sT2)
        A(f's_lshl_b32 s{sT1}, s{sT1}, 5\ns_add_u32 s{sU}, s{sU}, s{sT1}')
    A(f's_mov_b32 s{sU0}, s{sU}')
    block_params(1, sN0)
    dma_tile(sOFF, sSLA, None, 0, up, knt)
    A(f's_cmp_lt_u32 s{sJ}, 5\ns_cbranch_scc0 L_w2down')
    A(f's_mul_i32 s{sT1}, s{sH}, {192*1280}\ns_lshl_b32 s{sT2}, s{sJ}, 8\ns_add_u32 s{sT1}, s{sT1}, s{sT2}')
    if wlate:
        A(f's_lshl_b32 s{sT2}, s{sWAVE}, 6\ns_add_u32 s{sT1}, s{sT1}, s{sT2}\ns_add_u32 s{rW2}, s{sWO}, s{sT1}\ns_addc_u32 s{rW2+1}, s{sWO+1}, 0\ns_mov_b32 s{rW2+2}, {191*1280+64}\ns_mov_b32 s{rW2+3}, 0x20000\ns_branch L_w2fin')
    else: A(f's_add_u32 s{rW2}, s{sWO}, s{sT1}\ns_addc_u32 s{rW2+1}, s{sWO+1}, 0\ns_mov_b32 s{rW2+2}, {47*1280+256}\ns_branch L_w2done')
    A('L_w2down:')
    A(f's_sub_u32 s{sT3}, s{sU2}, 5\ns_mul_i32 s{sT1}, s{sT3}, 52429\ns_lshr_b32 s{sT1}, s{sT1}, 18\ns_mul_i32 s{sT2}, s{sT1}, 5\ns_sub_u32 s{sT2}, s{sT3}, s{sT2}')
    A(f's_mul_i32 s{sT1}, s{sT1}, {96*1280}\ns_lshl_b32 s{sT2}, s{sT2}, 8\ns_add_u32 s{sT1}, s{sT1}, s{sT2}')
    A(f's_add_u32 s{rW2}, s{sWD}, s{sT1}\ns_addc_u32 s{rW2+1}, s{sWD+1}, 0')
    A(f's_cmp_lt_u32 s{sT3}, 80\ns_cselect_b32 s{rW2+2}, {47*1280+256}, 0\ns_cmp_lt_u32 s{sWAVE}, 2\ns_cselect_b32 s{rW2+2}, s{rW2+2}, 0')
    A('L_w2done:')
    A(f's_mul_i32 s{sT1}, s{sWAVE}, {48*1280}\ns_add_u32 s{rW2}, s{rW2}, s{sT1}\ns_addc_u32 s{rW2+1}, s{rW2+1}, 0\ns_mov_b32 s{rW2+3}, 0x20000')
    if now: A(f's_mov_b32 s{rW2+2}, 0')
    if wlate: A('L_w2fin:')
    def vbases(hf):
        A(f'v_lshrrev_b32 {v(vT)}, 2, {v(vLANE)}')
        if hf: A(f'v_min_u32 {v(vT)}, 5, {v(vT)}\nv_add_u32 {v(vT)}, 16, {v(vT)}')
        A(f'v_bfe_u32 {v(vT+2)}, {v(vT)}, 1, 2\nv_mul_u32_u24 {v(vT)}, 384, {v(vT)}\nv_and_b32 {v(vT+3)}, 3, {v(vLANE)}\nv_lshl_add_u32 {v(vT)}, {v(vT+3)}, 3, {v(vT)}')
        for k in range(4): A(f'v_xor_b32 {v(vT+3)}, {k}, {v(vT+2)}\nv_lshl_add_u32 {v(vVB+4*hf+k)}, {v(vT+3)}, 5, {v(vT)}')
    if w1sw:
        vbases(0)
        for k in range(4): A(f'v_add_u32 {v(vAD+k)}, s{sSLC}, {v(vVB+k)}\nv_add_u32 {v(vAD+4+k)}, 6144, {v(vAD+k)}')
    if not w1sw: A(f'v_lshrrev_b32 {v(vT)}, 2, {v(vLANE)}\nv_mul_u32_u24 {v(vT)}, 384, {v(vT)}\nv_and_b32 {v(vT+1)}, 3, {v(vLANE)}\nv_lshl_add_u32 {v(vVA0)}, {v(vT+1)}, 3, {v(vT)}')
    if late:
        A(f's_cmp_ge_u32 s{sJ}, 3\ns_cbranch_scc1 L_xw\ns_waitcnt vmcnt(0)\nL_xw:')
    A(f's_waitcnt vmcnt({1+12+up})')
    pstamp(4)
    X = vF + 8
    for k in range(5):
        A(f'v_lshlrev_b32 {v(X+2*k)}, 16, {v(vF+k)}\nv_and_b32 {v(X+2*k+1)}, 0xffff0000, {v(vF+k)}')
    a = vT
    A(f'v_add_f32 {v(a)}, {v(X)}, {v(X+1)}')
    for k in range(2, 10): A(f'v_add_f32 {v(a)}, {v(a)}, {v(X+k)}')
    xsum(a, a+1)
    A(f'v_mul_f32 {v(a)}, {f2u(1/640):#x}, {v(a)}')
    b_ = vT+2
    A(f'v_sub_f32 {v(a+1)}, {v(X)}, {v(a)}\nv_mul_f32 {v(b_)}, {v(a+1)}, {v(a+1)}')
    for k in range(1, 10): A(f'v_sub_f32 {v(a+1)}, {v(X+k)}, {v(a)}\nv_fmac_f32 {v(b_)}, {v(a+1)}, {v(a+1)}')
    xsum(b_, a+1)
    A(f'v_mul_f32 {v(b_)}, {f2u(1/640):#x}, {v(b_)}')
    rnd2(a, b_, a+1)
    A(f'v_add_f32 {v(b_)}, {f2u(1e-5):#x}, {v(b_)}')
    rnd(b_, a+1)
    c_ = vT+3
    A(f'v_sqrt_f32 {v(c_)}, {v(b_)}\ns_nop 0\nv_rcp_f32 {v(c_+1)}, {v(c_)}\nv_fma_f32 {v(a+1)}, -{v(c_)}, {v(c_)}, {v(b_)}')
    A(f'v_mul_f32 {v(c_+1)}, 0.5, {v(c_+1)}\nv_fma_f32 {v(c_)}, {v(a+1)}, {v(c_+1)}, {v(c_)}')
    rnd(c_, a+1)
    A(f'v_rcp_f32 {v(c_+1)}, {v(c_)}')
    A(f'v_mov_b32 {v(vT+6)}, {v(X)}\nv_mov_b32 {v(vT+7)}, {v(X+1)}')
    for k in range(1, 5):
        A(f's_cmp_eq_u32 s{sPI}, {k}\ns_cselect_b64 vcc, -1, 0\nv_cndmask_b32 {v(vT+6)}, {v(vT+6)}, {v(X+2*k)}, vcc\nv_cndmask_b32 {v(vT+7)}, {v(vT+7)}, {v(X+2*k+1)}, vcc')
    A(f'v_sub_f32 {v(vT+6)}, {v(vT+6)}, {v(a)}\nv_sub_f32 {v(vT+7)}, {v(vT+7)}, {v(a)}')
    rnd2(vT+6, vT+7, a+1)
    fdiv(vT+8, vT+6, c_, c_+1, a+1)
    fdiv(vT+9, vT+7, c_, c_+1, a+1)
    A(f'v_cvt_pk_bf16_f32 {v(vT+8)}, {v(vT+8)}, {v(vT+9)}')
    A(f's_lshl_b32 s{sT1}, s{sWAVE}, 8\ns_add_u32 s{sT1}, s{sT1}, {XN}\nv_lshlrev_b32 {v(vA)}, 2, {v(vLANE)}\nv_add_u32 {v(vA)}, s{sT1}, {v(vA)}')
    A(f'ds_write_b32 {v(vA)}, {v(vT+8)}')
    A(f'v_bfe_u32 {v(vT)}, {v(vLANE)}, 2, 2\nv_lshlrev_b32 {v(vT)}, 8, {v(vT)}\nv_lshrrev_b32 {v(vT+1)}, 4, {v(vLANE)}\nv_lshl_add_u32 {v(vT)}, {v(vT+1)}, 3, {v(vT)}')
    A(f's_lshl_b32 s{sT1}, s{sWAVE}, 6\ns_add_u32 s{sT1}, s{sT1}, {XN}\nv_add_u32 {v(vA)}, s{sT1}, {v(vT)}')
    A('s_waitcnt lgkmcnt(0)\ns_barrier')
    if stamps == 1: stamp(1)
    pstamp(5); qstamp(1)
    A(f'ds_read2_b64 {v(vP,4)}, {v(vA)} offset0:0 offset1:4')
    if late:
        A(f's_cmp_ge_u32 s{sJ}, 3\ns_cbranch_scc1 L_w1early')
        w1_issue()
        A('L_w1early:')
    k0a = max(up, min(9, pace))
    dma_tile(sOFF, sSLA, pace, up, k0a, knt)
    if not w1sw: A(f'v_add_u32 {v(vA)}, s{sSLC}, {v(vVA0)}')
    A(f's_waitcnt vmcnt({k0a}) lgkmcnt(0)')
    pstamp(6); qstamp(2)
    if xtra >= 0:
        dma_tile(sOFF, sSLA, None, k0a, 9, knt)
        block_params(1, sN1)
        dma_tile(sOFF, sSLB, None, 0, xtra, knt)
    if w1sw: trread_mfma(12, vAD, 0, vO, True, vF, vP, vAD+4)
    else: trread_mfma(12, vA, 6144, vO, True, vF, vP)
    qstamp(3)
    A(f's_mul_i32 s{sT1}, s{sWAVE}, 3072\ns_add_u32 s{sT1}, s{sT1}, {RED}')
    A(f'v_lshrrev_b32 {v(vT)}, 4, {v(vLANE)}\nv_mul_u32_u24 {v(vT)}, 768, {v(vT)}\nv_and_b32 {v(vT+1)}, 15, {v(vLANE)}\nv_lshl_add_u32 {v(vT)}, {v(vT+1)}, 2, {v(vT)}\nv_add_u32 {v(vA)}, s{sT1}, {v(vT)}')
    A('s_nop 2')
    for t in range(12): A(f'ds_write_b32 {v(vA)}, {v(vO+4*t)} offset:{64*t}')
    A(f's_mul_i32 s{sT1}, s{sWAVE}, 768\ns_add_u32 s{sT1}, s{sT1}, {RED}\nv_mul_u32_u24 {v(vA)}, 12, {v(vLANE)}\nv_add_u32 {v(vA)}, s{sT1}, {v(vA)}')
    A('s_waitcnt lgkmcnt(0)')
    qstamp(4)
    A('s_barrier')
    qstamp(5)
    for w in range(4):
        for k in range(3): A(f'ds_read_b32 {v(vF+4*w+k)}, {v(vA)} offset:{3072*w+4*k}')
    A(f'v_lshrrev_b32 {v(vT)}, 4, {v(vLANE)}\nv_mul_u32_u24 {v(vT)}, 1280, {v(vT)}\nv_and_b32 {v(vT+1)}, 15, {v(vLANE)}\nv_lshl_add_u32 {v(vS)}, {v(vT+1)}, 4, {v(vT)}')
    A(f's_mul_i32 s{sT1}, s{sBETA}, 5\ns_add_u32 s{sT1}, s{sT1}, s{sPI}\ns_lshl_b32 s{sT1}, s{sT1}, 2\ns_add_u32 s{sT1}, s{sT1}, s{sWAVE}\ns_lshl_b32 s{sT1}, s{sT1}, 10\ns_add_u32 s{sT1}, s{sT1}, {P1}')
    A(f'v_add_u32 {v(vTAG)}, {TAGC:#x}, {v(vTAG)}')
    A('s_waitcnt lgkmcnt(0)')
    for k in range(3):
        A(f'v_add_f32 {v(vF+k)}, {v(vF+k)}, {v(vF+4+k)}\nv_add_f32 {v(vF+8+k)}, {v(vF+8+k)}, {v(vF+12+k)}')
    for k in range(3): A(f'v_add_f32 {v(vF+k)}, {v(vF+k)}, {v(vF+8+k)}')
    A(f'v_mov_b32 {v(vF+3)}, {v(vTAG)}')
    A(f's_cmp_eq_u32 s{sHASW1}, 0\ns_cbranch_scc1 L_nopub1')
    A(f'buffer_store_dwordx4 {v(vF,4)}, {v(vL16)}, {srd(rWS)}, s{sT1} offen sc1')
    A('L_nopub1:')
    qstamp(6)
    stamp(2)
    if xtra >= 0: dma_tile(sOFF, sSLB, pace, xtra, 9, knt)
    else: dma_tile(sOFF, sSLA, pace, k0a, 9, knt)
    A(f's_mov_b32 s{sT1}, 0')
    if wlate: A(f's_cmp_lt_u32 s{sJ}, 5\ns_cbranch_scc1 L_w2skip')
    for i in range(12):
        A(f's_add_u32 m0, s{sSLC}, {1024*i}\ns_waitcnt vmcnt({pace-1})')
        A(f'buffer_load_dwordx4 {v(vS)}, {srd(rW2)}, s{sT1} offen {w2nt} lds')
        if i == qdel: A(f'v_mov_b32 {v(vT)}, {FLG+32}\nv_mov_b32 {v(vT+1)}, 4\nds_write_b32 {v(vT)}, {v(vT+1)}')
        if i < 11: A(f's_add_u32 s{sT1}, s{sT1}, 5120')
    if wlate: A('L_w2skip:')
    if xtra < 0:
        block_params(1, sN1)
        if qdel >= 12 or wlate:
            qk = qdel2 if wlate else qdel - 11
            dma_tile(sOFF, sSLB, pace, 0, min(qk, 9), knt)
            if qk > 9: A(f's_waitcnt vmcnt({max(0, 9 + pace - 1 - qk)})')
            A(f'v_mov_b32 {v(vT)}, {FLG+32}\nv_mov_b32 {v(vT+1)}, 4\nds_write_b32 {v(vT)}, {v(vT+1)}')
            dma_tile(sOFF, sSLB, pace, min(qk, 9), 9, knt)
        else: dma_tile(sOFF, sSLB, pace, 0, 9, knt)
    for t in range(12):
        for r in range(4): A(f'v_mov_b32 {v(vO+4*t+r)}, 0')
    A(f'v_mov_b32 {v(vM)}, {f2u(-1e30):#x}\nv_mov_b32 {v(vML)}, {f2u(-1e30):#x}\nv_mov_b32 {v(vLS)}, 0\ns_mov_b32 s{sNEG}, 0xff80ff80')
    A(f'v_lshrrev_b32 {v(vT+1)}, 4, {v(vLANE)}')
    for hf in range(2):
        A(f'v_and_b32 {v(vT)}, 15, {v(vLANE)}')
        if hf: A(f'v_min_u32 {v(vT)}, 5, {v(vT)}\nv_add_u32 {v(vT)}, 16, {v(vT)}')
        A(f'v_and_b32 {v(vT+2)}, 6, {v(vT)}\nv_xor_b32 {v(vT+2)}, {v(vT+2)}, {v(vT+1)}\nv_mul_u32_u24 {v(vT)}, 384, {v(vT)}')
        A(f'v_lshl_add_u32 {v(vKB+2*hf)}, {v(vT+2)}, 4, {v(vT)}\nv_xor_b32 {v(vT+2)}, 4, {v(vT+2)}\nv_lshl_add_u32 {v(vKB+2*hf+1)}, {v(vT+2)}, 4, {v(vT)}')
    vbases(1)
    if not w1sw: vbases(0)
    A(f'v_cmp_gt_u32 vcc, 16, {v(vLANE)}\nv_mov_b32 {v(vT)}, 0xffff\nv_mov_b32 {v(vT+2)}, 0xffff0000\nv_cndmask_b32 {v(vM3)}, 0, -1, vcc')
    A(f'v_cmp_eq_u32 vcc, 1, {v(vT+1)}\ns_mul_i32 s{sT1}, s{sWAVE}, 1536\ns_add_u32 s{sT1}, s{sT1}, {STG}\nv_cndmask_b32 {v(vM2B)}, {v(vM3)}, {v(vT)}, vcc\nv_cndmask_b32 {v(vM2X)}, 0, {v(vT+2)}, vcc')
    A(f'v_lshl_add_u32 {v(vSK)}, {v(vT+1)}, 4, s{sT1}\nv_add_u32 {v(vSV)}, {22*64}, {v(vSK)}\nv_mov_b32 {v(vFA)}, {FLG+16}\nv_mov_b32 {v(vONE)}, 1')
    A(f'v_add_u32 {v(vT)}, 352, {v(vLANE)}\nv_cmp_gt_u32 vcc, 32, {v(vLANE)}\nv_add_u32 {v(vT+2)}, -32, {v(vLANE)}\ns_nop 0\nv_cndmask_b32 {v(vT)}, {v(vT+2)}, {v(vT)}, vcc\nv_lshl_add_u32 {v(vPA)}, {v(vT)}, 2, s{sT1}')
    A(f's_add_u32 s{sSTG}, s{sT1}, 128')
    A(f'v_lshlrev_b32 {v(vA)}, 4, {v(vT+1)}\nv_add_u32 {v(vA)}, {QL}, {v(vA)}\nv_mov_b32 {v(vT+2)}, {FLG}')
    A('s_waitcnt vmcnt(9)')
    if stamps == 2: stamp(1)
    A('s_barrier')
    stamp(3)
    A(f'ds_read_b64 {v(vT+4,2)}, {v(vT+2)}')
    for s in range(6): A(f'ds_read_b128 {v(vQ+4*s,4)}, {v(vA)} offset:{64*s}')
    A(f's_mov_b32 s{sT}, 0\ns_waitcnt lgkmcnt(6)')
    A(f'v_readfirstlane_b32 s{sFL}, {v(vT+4)}\nv_readfirstlane_b32 s{sFLV}, {v(vT+5)}')
    A(f's_nop 0\ns_mov_b64 {sp(sCM)}, 0')
    grp = [0x3f, 0xff << 6, 0x3f << 14]
    for i in range(3):
        A(f's_bitcmp1_b32 s{sFL}, {i}\ns_cselect_b32 s{sT1}, {grp[i]:#x}, 0\ns_or_b32 s{sCM}, s{sCM}, s{sT1}')
        gv = grp[i] << 26
        A(f's_bitcmp1_b32 s{sFLV}, {i}')
        if gv & 0xffffffff: A(f's_cselect_b32 s{sT1}, {gv & 0xffffffff:#x}, 0')
        if gv >> 32: A(f's_cselect_b32 s{sT2}, {gv >> 32:#x}, 0\ns_or_b32 s{sCM+1}, s{sCM+1}, s{sT2}')
        if gv & 0xffffffff: A(f's_or_b32 s{sCM}, s{sCM}, s{sT1}')
    for k in range(2):
        A(f's_bitcmp1_b32 s{sRHO}, 0\ns_cselect_b32 s{sT1}, s{sFL if k else sFLV}, s{sFLV if k else sFL}\ns_bitcmp1_b32 s{sT1}, 2\ns_cselect_b32 s{sT1}, {5 << (20+k):#x}, 0\ns_or_b32 s{sCM}, s{sCM}, s{sT1}')
    A(f's_sub_u32 s{sT1}, 0, s{sHALF}\ns_xor_b32 s{sCM}, s{sCM}, s{sT1}\ns_xor_b32 s{sCM+1}, s{sCM+1}, s{sT1}')
    A(f's_mov_b32 s{sPUB}, 4\ns_waitcnt lgkmcnt(0)')
    def arrive():
        A(f's_mov_b64 exec, 1\nds_add_u32 {v(vFA)}, {v(vONE)}\ns_mov_b64 exec, -1')
    chk = f'ds_read_b128 {v(vR,4)}, {v(vFA)}'
    def step_wait(lbl):
        if not sync: return
        A(f'{lbl}:\ns_waitcnt lgkmcnt(0)\nv_readfirstlane_b32 s{sT1}, {v(vR)}\ns_nop 0\ns_cmp_ge_u32 s{sT1}, s{sPUB}\ns_cbranch_scc1 {lbl}_ok')
        A(f'{chk}\ns_branch {lbl}\n{lbl}_ok:')
    def wo_frags(vA=vA):
        A(f'v_lshrrev_b32 {v(vT)}, 2, {v(vLANE)}\nv_lshlrev_b32 {v(vT)}, 8, {v(vT)}\nv_and_b32 {v(vT+1)}, 3, {v(vLANE)}\nv_lshl_add_u32 {v(vT)}, {v(vT+1)}, 3, {v(vT)}')
        A(f's_lshl_b32 s{sT3}, s{sWAVE}, 6\ns_add_u32 s{sT3}, s{sT3}, {WREG}\nv_add_u32 {v(vA)}, s{sT3}, {v(vT)}')
        for s in range(6):
            for t in range(2):
                f = vW + 24*t + 4*s
                A(f'ds_read_b64_tr_b16 {v(f,2)}, {v(vA)} offset:{8192*s+32*t}\nds_read_b64_tr_b16 {v(f+2,2)}, {v(vA)} offset:{8192*s+32*t+4096}')
            if s % 2 == 1 and s < 5: A('s_waitcnt lgkmcnt(4)')
    A('.p2align 6\nL_kloop:')
    for k in range(4): A(f'v_add_u32 {v(vAD+k)}, s{sSLA}, {v(vKB+k)}')
    A('s_waitcnt vmcnt(9)')
    arrive()
    for kt in range(2):
        for s in range(6):
            if not (nocomp & 1): A(f'ds_read_b128 {v(vF+24*kt+4*s,4)}, {v(vAD+2*kt+(s&1))} offset:{128*(s>>1)}')
    A(chk)
    A(f'v_and_or_b32 {v(vT+8)}, {v(vM2X)}, s{sN0}, {v(vM2B)}\ns_mov_b32 s{sN0}, s{sN1}')
    A(f's_cmp_lg_u32 s{sT}, 22\ns_cbranch_scc1 L_knosw')
    A(f's_mov_b32 s{rK}, s{sVB}\ns_mov_b32 s{rK+1}, s{sVB+1}\ns_cmp_ge_u32 s{sU0}, 8\ns_cselect_b32 s{sU}, -8, 88\ns_add_u32 s{sU}, s{sU}, s{sU0}')
    A('L_knosw:')
    block_params(0, sN1)
    for kt in range(2):
        for s in range(6):
            i = 6*kt + s
            A(f's_waitcnt lgkmcnt({12-i})')
            c = '0' if s == 0 else v(vS+4*kt, 4)
            A(f'v_mfma_f32_16x16x32_bf16 {v(vS+4*kt,4)}, {v(vF+4*i,4)}, {v(vQ+4*s,4)}, {c}')
    step_wait('L_ks')
    dma_tile(sOFF, sSLA, None, 0, pre, knt)
    A(f's_nop {max(0, 7 - 3*pre)}')
    for k in range(4): rnd2(vS+2*k, vS+2*k+1, vT+k)
    for k in range(8): A(f'v_mul_f32 {v(vS+k)}, s{sSC}, {v(vS+k)}')
    for k in range(4): A(f'v_cvt_pk_bf16_f32 {v(vT+k)}, {v(vS+2*k)}, {v(vS+2*k+1)}')
    A(f'v_bfi_b32 {v(vT+2)}, {v(vT+8)}, {v(vT+2)}, s{sNEG}\nv_bfi_b32 {v(vT+3)}, {v(vM3)}, {v(vT+3)}, s{sNEG}')
    A(f's_mov_b32 exec_lo, 0x00010001\ns_mov_b32 exec_hi, 0x00010001\nds_write_b128 {v(vSK)}, {v(vT,4)}\ns_mov_b64 exec, -1\nv_add_u32 {v(vSK)}, 64, {v(vSK)}')
    A(f's_cmp_eq_u32 s{sT}, 23\ns_cbranch_scc1 L_spa')
    kbal = bal and min(cpl) < 20
    if kbal:
        A(f'v_readfirstlane_b32 s{sT1}, {v(vR+2)}\ns_nop 0\ns_cmp_gt_i32 s{sT1}, s{sT}\ns_cbranch_scc1 L_kup')
        if bneg: A(f's_add_i32 s{sT1}, s{sT1}, s{sT}\ns_cmp_lt_i32 s{sT1}, 0\ns_cbranch_scc1 L_kdn')
    dma_tile(sOFF, sSLA, D, pre, 9, knt)
    A('L_kpe:')
    A(f's_mov_b32 s{sT1}, s{sSLA}\ns_mov_b32 s{sSLA}, s{sSLB}\ns_mov_b32 s{sSLB}, s{sT1}')
    A(f's_add_u32 s{sT}, s{sT}, 1\ns_add_u32 s{sPUB}, s{sPUB}, 4\ns_branch L_kloop')
    A('.p2align 6\nL_vloop:')
    for k in range(8): A(f'v_add_u32 {v(vAD+k)}, s{sSLA}, {v(vVB+k)}')
    A(f'ds_read_b128 {v(vP,4)}, {v(vSV)}\ns_cmp_eq_u32 s{sT}, 25\ns_cselect_b32 s{sT1}, {64-1536}, 64\nv_add_u32 {v(vSV)}, s{sT1}, {v(vSV)}')
    A(f's_cmp_lg_u32 s{sT}, 24\ns_cbranch_scc1 L_vnosw\ns_mov_b32 s{sU}, s{sU0}\nL_vnosw:')
    block_params(2, sN1)
    if wlate: A(f's_cmp_eq_u32 s{sT}, 47\ns_cbranch_scc1 L_vw12')
    A('s_waitcnt vmcnt(9)')
    if wlate: A('L_vw12:\ns_waitcnt vmcnt(12)')
    arrive()
    if not (nocomp & 2): trread_mfma(12, vAD, 0, vO, False, vF, vP, vAD+4, chk)
    else: A(chk)
    A(f's_cmp_eq_u32 s{sT}, 47\ns_cbranch_scc1 L_loopx')
    step_wait('L_vs')
    if wlate: A(f's_cmp_eq_u32 s{sT}, 46\ns_cbranch_scc1 L_wl')
    dma_tile(sOFF, sSLA, None, 0, pre, vnt)
    A(f's_cmp_eq_u32 s{sT}, 27\ns_cbranch_scc1 L_spb')
    A('L_vmid:')
    if bal:
        A(f'v_readfirstlane_b32 s{sT2}, {v(vR+2)}\ns_nop 0')
        if bneg and lastneg: A(f's_add_i32 s{sT1}, s{sT2}, s{sT}\ns_cmp_lt_i32 s{sT1}, 0\ns_cbranch_scc1 L_vdn')
    if nend:
        A(f's_cmp_ge_u32 s{sT}, {46-nend}\ns_cbranch_scc0 L_vpc')
        dma_tile(sOFF, sSLA, Dend if Dend < 18 else None, pre, 9, vnt)
        A('s_branch L_vpe\nL_vpc:')
    if bal:
        A(f's_cmp_gt_i32 s{sT2}, s{sT}\ns_cbranch_scc1 L_vup')
        if bneg and not lastneg: A(f's_add_i32 s{sT1}, s{sT2}, s{sT}\ns_cmp_lt_i32 s{sT1}, 0\ns_cbranch_scc1 L_vdn')
    dma_tile(sOFF, sSLA, D, pre, 9, vnt)
    A('L_vpe:')
    A(f's_mov_b32 s{sT1}, s{sSLA}\ns_mov_b32 s{sSLA}, s{sSLB}\ns_mov_b32 s{sSLB}, s{sT1}')
    A(f's_add_u32 s{sT}, s{sT}, 1\ns_add_u32 s{sPUB}, s{sPUB}, 4\ns_branch L_vloop')
    A('L_loopx:')
    stamp(4)
    if lred:
        A('s_mov_b64 exec, 0xffff\ns_nop 3')
        for t in range(12): A(f'ds_write_b32 {v(vSK)}, {v(vO+4*t)} offset:{64*t}')
        A('s_mov_b64 exec, -1')
    else:
        xsum(vLS, vT)
        A(f's_lshl_b32 s{sT1}, s{sWAVE}, 10\ns_add_u32 s{sT1}, s{sT1}, {OCB}\nv_lshlrev_b32 {v(vA)}, 2, {v(vLANE)}\nv_add_u32 {v(vA)}, s{sT1}, {v(vA)}')
        A('s_mov_b64 exec, 0xffff')
        for t in range(12): A(f'ds_write_b32 {v(vA)}, {v(vO+4*t)} offset:{64*t}')
        A(f's_mov_b64 exec, 1\nds_write2_b32 {v(vA)}, {v(vML)}, {v(vLS)} offset0:192 offset1:193\ns_mov_b64 exec, -1')
    A('s_waitcnt lgkmcnt(0)\ns_barrier')
    A(f's_cmp_ge_u32 s{sJ}, 5\ns_cbranch_scc1 L_sdone')
    if not wearly and not wlate and po >= 0: wo_frags()
    A(f's_lshl_b32 s{sT1}, s{sH}, 3\ns_lshl_b32 s{sT2}, s{sWAVE}, 1\ns_add_u32 s{sT1}, s{sT1}, s{sT2}\ns_lshl_b32 s{sT1}, s{sT1}, 11\ns_add_u32 s{sT1}, s{sT1}, {OP}\ns_add_u32 s{sT2}, s{sT1}, 2048')
    A(f'v_mov_b32 {v(vA)}, 1024')
    def o_addr():
        A(f's_mul_i32 s{sT3}, s{sWAVE}, 384\ns_add_u32 s{sT3}, s{sT3}, {OBF}\nv_mul_u32_u24 {v(vAD)}, 6, {v(vLANE)}\nv_add_u32 {v(vAD)}, s{sT3}, {v(vAD)}')
        A(f'v_bfe_u32 {v(vT+2)}, {v(vLANE)}, 2, 2\nv_mul_u32_u24 {v(vT+2)}, 384, {v(vT+2)}\nv_lshrrev_b32 {v(vT+3)}, 4, {v(vLANE)}\nv_lshl_add_u32 {v(vT+2)}, {v(vT+3)}, 3, {v(vT+2)}\nv_add_u32 {v(vAD+1)}, {OBF}, {v(vT+2)}')
        A(f's_lshl_b32 s{sN0}, s{sJ}, 2\ns_add_u32 s{sN0}, s{sN0}, s{sWAVE}\ns_lshl_b32 s{sN0}, s{sN0}, 5\ns_add_u32 s{sN0}, s{sN0}, s{sH}\ns_lshl_b32 s{sN0}, s{sN0}, {9 if y8 else 10}\ns_add_u32 s{sN0}, s{sN0}, {YP}')
        if po < 0 and not wearly: wo_frags(vAD+2)
    if po >= 0: o_addr()
    mko = lambda b: [wsload(b, vL16, sT1), wsload(b+4, vL16, sT2), wsload(b+8, vA, sT1), wsload(b+12, vA, sT2)]
    w0_, w1_, l0_, l1_, on_ = vQ, vQ+1, vQ+2, vQ+3, vQ+4
    def useo(b):
        A(f'v_max_f32 {v(vT)}, {v(b+8)}, {v(b+12)}\nv_sub_f32 {v(w0_)}, {v(b+8)}, {v(vT)}\nv_sub_f32 {v(w1_)}, {v(b+12)}, {v(vT)}\nv_exp_f32 {v(w0_)}, {v(w0_)}\nv_exp_f32 {v(w1_)}, {v(w1_)}\ns_nop 0')
        A(f'v_mul_f32 {v(l0_)}, {v(b+9)}, {v(w0_)}\nv_fmac_f32 {v(l0_)}, {v(b+13)}, {v(w1_)}\nv_rcp_f32 {v(l1_)}, {v(l0_)}')
        for k in range(3): A(f'v_mul_f32 {v(on_+k)}, {v(b+k)}, {v(w0_)}\nv_fmac_f32 {v(on_+k)}, {v(b+4+k)}, {v(w1_)}')
    if wlate:
        for x in mko(vF): A(x)
        A(f'v_lshrrev_b32 {v(vT)}, 2, {v(vLANE)}\nv_lshlrev_b32 {v(vT)}, 6, {v(vT)}\nv_and_b32 {v(vT+1)}, 3, {v(vLANE)}\nv_lshl_add_u32 {v(vT)}, {v(vT+1)}, 3, {v(vT)}\nv_add_u32 {v(vAL)}, s{sSLC}, {v(vT)}')
        A('s_waitcnt vmcnt(4)')
        for s_ in range(6):
            for t in range(2):
                f = vW + 24*t + 4*s_
                A(f'ds_read_b64_tr_b16 {v(f,2)}, {v(vAL)} offset:{2048*s_+32*t}\nds_read_b64_tr_b16 {v(f+2,2)}, {v(vAL)} offset:{2048*s_+32*t+1024}')
            if s_ % 2 == 1 and s_ < 5: A('s_waitcnt lgkmcnt(4)')
        A(f's_mov_b32 s{sCNT}, {spin}\ns_branch L_po_w')
        poll('L_po', mko(vF), [vF+3, vF+7, vF+11, vF+15], 4, 'L_po_w')
        useo(vF)
    elif po: poll2('L_po', mko, 4, vF, vF+16, 4, po if po > 0 else o_addr, useo)
    else:
        (polls if sel & 1 else poll)('L_po', mko(vF), [vF+3, vF+7, vF+11, vF+15], 4)
        useo(vF)
    stamp(5)
    for k in range(3): fdiv(on_+4+k, on_+k, l0_, l1_, vT)
    put3_bf16(on_+4, vT, vAD)
    A('s_waitcnt lgkmcnt(0)\ns_barrier')
    for s in range(6): A(f'ds_read2_b64 {v(vO+4*s,4)}, {v(vAD+1)} offset0:{8*s} offset1:{8*s+4}')
    for s in range(6):
        A(f's_waitcnt lgkmcnt({5-s})')
        for t in range(2):
            c = '0' if s == 0 else v(vS+4*t, 4)
            A(f'v_mfma_f32_16x16x32_bf16 {v(vS+4*t,4)}, {v(vO+4*s,4)}, {v(vW+24*t+4*s,4)}, {c}')
    if y8:
        A(f'v_mov_b32 {v(vT+1)}, {v(vTAG)}\nv_lshlrev_b32 {v(vA)}, 3, {v(vLANE)}\ns_nop 5')
        A(f'v_cvt_pk_bf16_f32 {v(vT)}, {v(vS)}, {v(vS+4)}')
        A(f'buffer_store_dwordx2 {v(vT,2)}, {v(vA)}, {srd(rWS)}, s{sN0} offen sc1')
    else:
        A(f'v_mov_b32 {v(vT+2)}, {v(vTAG)}\nv_mov_b32 {v(vT+3)}, {v(vTAG)}\ns_nop 5')
        A(f'v_mov_b32 {v(vT)}, {v(vS)}\nv_mov_b32 {v(vT+1)}, {v(vS+4)}')
        A(f'buffer_store_dwordx4 {v(vT,4)}, {v(vL16)}, {srd(rWS)}, s{sN0} offen sc1')
    A('L_sdone:')
    if fixdur:
        A(f'L_fix:\ns_memrealtime s[98:99]\ns_waitcnt lgkmcnt(0)\ns_sub_u32 s98, s98, s96\ns_cmp_lt_u32 s98, {fixdur*100}\ns_cbranch_scc1 L_fix')
    stamp(6)
    if stamps:
        A(f's_cmp_lg_u32 s{sWAVE}, 0\ns_cbranch_scc1 L_end\ns_waitcnt vmcnt(0)')
        stamp(7)
        write_stamps(0, 's')
    A('s_endpgm')

    def soft_pass(n, addr, off):
        X = vF
        for i in range(n): A(f'ds_read_b32 {v(vT+8+i)}, {v(addr)} offset:{off*i}')
        for i in range(n):
            A(f's_waitcnt lgkmcnt({n-1-i})\nv_lshlrev_b32 {v(X+2*i)}, 16, {v(vT+8+i)}\nv_and_b32 {v(X+2*i+1)}, 0xffff0000, {v(vT+8+i)}\nv_max3_f32 {v(vM)}, {v(X+2*i)}, {v(X+2*i+1)}, {v(vM)}')
        xsum(vM, vT, 'v_max_f32')
        A(f'v_mul_f32 {v(vT)}, s{sL2E}, {v(vM)}\nv_sub_f32 {v(vAL)}, {v(vML)}, {v(vT)}\nv_mov_b32 {v(vML)}, {v(vT)}\nv_exp_f32 {v(vAL)}, {v(vAL)}')
        for k in range(2*n): A(f'v_fma_f32 {v(X+k)}, {v(X+k)}, s{sL2E}, -{v(vML)}')
        for k in range(2*n): A(f'v_exp_f32 {v(X+k)}, {v(X+k)}')
        A(f'v_mul_f32 {v(vLS)}, {v(vLS)}, {v(vAL)}')
        for i in range(n):
            A(f'v_cvt_pk_bf16_f32 {v(vT+8+i)}, {v(X+2*i)}, {v(X+2*i+1)}\nv_add_f32 {v(vLS)}, {v(vLS)}, {v(X+2*i)}\nv_add_f32 {v(vLS)}, {v(vLS)}, {v(X+2*i+1)}')
            A(f'ds_write_b32 {v(addr)}, {v(vT+8+i)} offset:{off*i}')
    if kbal:
        A('L_kup:')
        dma_tile(sOFF, sSLA, D+bal, pre, 9, knt)
        A('s_branch L_kpe\nL_kdn:')
        dma_tile(sOFF, sSLA, D-bneg, pre, 9, knt)
        A('s_branch L_kpe')
    if bal:
        A('; ---- a workgroup that lags the others keeps more loads in flight for a few steps')
        A('L_vup:')
        dma_tile(sOFF, sSLA, D+bal, pre, 9, vnt)
        A('s_branch L_vpe')
        if bneg:
            A('L_vdn:')
            dma_tile(sOFF, sSLA, D-bneg, pre, 9, vnt)
            A('s_branch L_vpe')
    if wlate:
        A('; ---- nothing left to stream: the wo slice of this wave (192 rows x 32 columns) follows the last V block')
        A(f'L_wl:\ns_cmp_ge_u32 s{sJ}, 5\ns_cselect_b32 s{rW2+2}, 0, s{rW2+2}')
        A(f'v_lshrrev_b32 {v(vT)}, 2, {v(vLANE)}\nv_mul_u32_u24 {v(vT)}, 1280, {v(vT)}\nv_and_b32 {v(vT+1)}, 3, {v(vLANE)}\nv_lshl_add_u32 {v(vA)}, {v(vT+1)}, 4, {v(vT)}\ns_mov_b32 s{sT1}, 0')
        for i in range(12):
            A(f's_add_u32 m0, s{sSLA if False else sSLC}, {1024*i}')
            A(f's_add_u32 s{sT1}, s{sT1}, 20480' if i else 's_nop 0')
            A(f'buffer_load_dwordx4 {v(vA)}, {srd(rW2)}, s{sT1} offen {w2nt} lds')
        A('s_branch L_vpe')
    A('L_spa:')
    soft_pass(1, vPA, 0)
    A('s_branch L_vmid')
    A('L_spb:')
    if not noex:
        A(f's_mov_b32 s{sCNT}, {spin*8}')
        A(f'L_vchk:\ns_waitcnt lgkmcnt(0)\nv_readfirstlane_b32 s{sT1}, {v(vR+1)}\ns_sub_u32 s{sCNT}, s{sCNT}, 1\ns_cmp_eq_u32 s{sCNT}, 0\ns_cbranch_scc1 L_vnoc')
        A(f's_cmp_lg_u32 s{sT1}, 0\ns_cbranch_scc1 L_vnoc\n{chk}\ns_branch L_vchk\nL_vnoc:')
    A(f'v_lshl_add_u32 {v(vPA)}, {v(vLANE)}, 2, s{sSTG}')
    soft_pass(5, vPA, 256)
    for t in range(12): A(f'v_mul_f32 {v(vO+4*t)}, {v(vAL)}, {v(vO+4*t)}')
    if lred:
        xsum(vLS, vT)
        A(f's_lshl_b32 s{sT1}, s{sWAVE}, 10\ns_add_u32 s{sT1}, s{sT1}, {OCB}\nv_lshlrev_b32 {v(vSK)}, 2, {v(vLANE)}\nv_add_u32 {v(vSK)}, s{sT1}, {v(vSK)}')
        A(f's_mov_b64 exec, 1\nds_write2_b32 {v(vSK)}, {v(vML)}, {v(vLS)} offset0:192 offset1:193\ns_mov_b64 exec, -1')
    if wearly == 1:
        A(f's_cmp_ge_u32 s{sJ}, 5\ns_cbranch_scc1 L_vmid\ns_waitcnt lgkmcnt(0)')
        wo_frags()
        A('s_waitcnt lgkmcnt(0)')
    if wearly == 2 and not wlate:
        A(f's_cmp_ge_u32 s{sJ}, 5\ns_cbranch_scc1 L_vmid')
        A(f'v_lshrrev_b32 {v(vT)}, 2, {v(vLANE)}\nv_lshlrev_b32 {v(vT)}, 8, {v(vT)}\nv_and_b32 {v(vT+1)}, 3, {v(vLANE)}\nv_lshl_add_u32 {v(vT)}, {v(vT+1)}, 3, {v(vT)}')
        A(f's_lshl_b32 s{sT1}, s{sWAVE}, 6\ns_add_u32 s{sT1}, s{sT1}, {WREG}\nv_add_u32 {v(vA)}, s{sT1}, {v(vT)}')
        for s_ in range(max(6, 9-pre)):
            if pre + s_ < 9: dma_tile(sOFF, sSLA, D, pre + s_, pre + s_ + 1, vnt)
            if s_ < 6:
                A('s_waitcnt lgkmcnt(4)')
                for t in range(2):
                    f = vW + 24*t + 4*s_
                    A(f'ds_read_b64_tr_b16 {v(f,2)}, {v(vA)} offset:{8192*s_+32*t}\nds_read_b64_tr_b16 {v(f+2,2)}, {v(vA)} offset:{8192*s_+32*t+4096}')
        A('s_waitcnt lgkmcnt(0)\ns_branch L_vpe')
    A('s_branch L_vmid')
    def hwait(n, lbl, hsl=hsl):
        A(f's_mov_b32 s{sCNT}, {spin*8}\n{lbl}:\nds_read_b32 {v(vT)}, {v(vXF)}\ns_sub_u32 s{sCNT}, s{sCNT}, 1\ns_cmp_eq_u32 s{sCNT}, 0\ns_cbranch_scc1 {lbl}_ok')
        A(f's_waitcnt lgkmcnt(0)\nv_readfirstlane_b32 s{sT0}, {v(vT)}\ns_nop 0\ns_cmp_ge_u32 s{sT0}, {4*n}\ns_cbranch_scc1 {lbl}_ok\n{f"s_sleep {hsl}" if hsl and not nosleep else ""}\ns_branch {lbl}\n{lbl}_ok:')
    vXA, vXF, vXB = vQ+12, vQ+13, vQ+14
    A('L_helper:')
    inhelper[0] = True
    A(f's_getreg_b32 s{sT3}, hwreg(HW_REG_XCC_ID, 2, 1)')
    A('s_waitcnt lgkmcnt(0)')
    A(f's_sub_u32 s{sT0}, s38, s36\ns_min_u32 s{sT0}, s{sT0}, {cap}\ns_sub_u32 s{sT0}, s{sT0}, {thr}\ns_sub_u32 s{sT1}, 0, s{sT0}')
    A(f's_cmp_eq_u32 s{sT3}, 0\ns_cselect_b32 s{sT0}, s{sT0}, s{sT1}')
    A(f'v_mov_b32 {v(vP)}, s{sT0}\nv_mov_b32 {v(vP+1)}, s{sT3}\nv_mov_b32 {v(vP+2)}, 0')
    A(f's_lshl_b32 s{sT0}, s{sIDX}, 4\ns_add_u32 s{sT0}, s{sT0}, s{sSLT}\ns_lshl_b32 s{sT0}, s{sT0}, 4\ns_add_u32 s{sT0}, s{sT0}, {VOTE}')
    if gord == 1: A('s_barrier')
    A(f's_waitcnt vmcnt(0)\nv_add_u32 {v(vTAG)}, {TAGC:#x}, {v(vTAG)}\nv_mov_b32 {v(vP+3)}, {v(vTAG)}')
    A(f's_mov_b64 exec, 1\nbuffer_store_dwordx4 {v(vP,4)}, {v(vL16)}, {srd(rWS)}, s{sT0} offen sc1\ns_mov_b64 exec, -1')
    if htouch:
        A(f's_mul_i32 s{sT0}, s{sRHO}, 1572864\ns_load_dword s96, {sp(sV)}, s{sT0}\ns_add_u32 s{sT0}, s{sT0}, 1572860\ns_load_dword s97, {sp(sK)}, s{sT0}\ns_load_dword s98, {sp(sV)}, s{sT0}')
        if htouch > 1: A(f's_mul_i32 s{sT0}, s{sH}, {192*1280}\ns_load_dword s99, {sp(sWO)}, s{sT0}\ns_load_dword s96, {sp(sWD)}, 0')
    sCA, sCB2 = 42, 43
    A(f's_mul_i32 s{sT0}, s{sRHO}, 3\ns_lshr_b32 s{sCA}, s{sT0}, 5\ns_add_u32 s{sT0}, s{sT0}, 2\ns_lshr_b32 s{sCB2}, s{sT0}, 5')
    A(f'v_lshrrev_b32 {v(vT)}, 5, {v(vLANE)}\nv_mul_u32_u24 {v(vT)}, 12, {v(vT)}\nv_bfe_u32 {v(vT+1)}, {v(vLANE)}, 4, 1\ns_sub_u32 s{sT0}, s{sCB2}, s{sCA}\nv_mul_u32_u24 {v(vT+1)}, s{sT0}, {v(vT+1)}')
    A(f'v_add3_u32 {v(vT)}, {v(vT)}, {v(vT+1)}, s{sCA}\nv_and_b32 {v(vT+1)}, 15, {v(vLANE)}\nv_min_u32 {v(vT+1)}, 9, {v(vT+1)}\nv_lshlrev_b32 {v(vT+1)}, 4, {v(vT+1)}\nv_lshl_add_u32 {v(vAL)}, {v(vT)}, 8, {v(vT+1)}')
    A(f's_andn2_b32 s{sT1}, s2, 4')
    vote_slot(sT1, sT2, sT3)
    A(f's_lshl_b32 s{sT2}, s{sT2}, 4\ns_add_u32 s{sT2}, s{sT2}, s{sT3}\ns_lshl_b32 s{sT2}, s{sT2}, 4\nv_mov_b32 {v(vM)}, s{sT2}\ns_mov_b32 s{rK+5}, {VOTE}')
    A(f's_mul_i32 s{sT0}, s{sH}, {5*4096}\ns_lshl_b32 s{sT1}, s{sB}, 10\ns_add_u32 s{sT0}, s{sT0}, s{sT1}\ns_add_u32 s{rK}, s{sT0}, {P1}')
    for p in range(1, 5): A(f's_add_u32 s{rK+p}, s{rK}, {4096*p}')
    A(f's_sub_u32 s{sU2}, s{sU2}, 5')
    A(f'v_mov_b32 {v(vS+1)}, 0\nv_mov_b32 {v(vS+6)}, 0\nv_mov_b32 {v(vS+7)}, 0')
    A(f'v_mul_u32_u24 {v(vA)}, 6, {v(vLANE)}\nv_add_u32 {v(vA)}, {QL}, {v(vA)}')
    if qdel >= 0: A(f'v_mov_b32 {v(vXF)}, {FLG+32}\nv_mov_b32 {v(vT)}, 0\nds_write_b32 {v(vXF)}, {v(vT)}\ns_waitcnt lgkmcnt(0)')
    A('s_barrier' if gord == 1 else 's_barrier\ns_barrier')
    if qdel >= 0: hwait(1, 'L_hwq')
    stamp(1)
    mkq = lambda b: [wsload(b+4*p, vL16, rK+p) for p in range(5)] + [wsload(b+20, vAL, rK+5), wsload(b+24, vM, rK+5)]
    QR = vW; E = vW + 3
    def useq(b):
        for k in range(3):
            A(f'v_add_f32 {v(QR+k)}, {v(b+k)}, {v(b+4+k)}')
        for p in range(2, 5):
            for k in range(3): A(f'v_add_f32 {v(QR+k)}, {v(QR+k)}, {v(b+4*p+k)}')
        put3_bf16(QR, vT, vA)
        A(f'v_and_b32 {v(vT)}, 15, {v(vLANE)}\nv_cmp_gt_u32 vcc, 10, {v(vT)}\nv_readfirstlane_b32 s{sT2}, {v(b+25)}\ns_nop 0\nv_cndmask_b32 {v(E)}, 0, {v(b+20)}, vcc')
    if pq: poll2('L_pq', mkq, 7, vF, vO, 1, pq, useq)
    else:
        (polls if sel & 4 else poll)('L_pq', mkq(vF), [vF+4*p+3 for p in range(5 if nopoll else 0, 7)], 1)
        useq(vF)
    for mode in ['quad_perm:[1,0,3,2]', 'quad_perm:[2,3,0,1]', 'row_half_mirror', 'row_mirror']:
        A(f's_nop 1\nv_add_u32_dpp {v(E)}, {v(E)}, {v(E)} {mode} row_mask:0xf bank_mask:0xf')
    if dbgv:
        A(f's_mul_i32 s{sT0}, s{sRHO}, 3\ns_and_b32 s{sT0}, s{sT0}, 31\ns_cmp_ge_u32 s{sT0}, 3\ns_cbranch_scc1 L_nodbg')
        A(f'v_readlane_b32 s{sT0}, {v(E)}, 16\nv_readlane_b32 s{sT1}, {v(E)}, 48')
        A(f's_nop 1\ns_add_u32 s{sT3}, s{sT0}, 5000\ns_mul_i32 s{sT3}, s{sT3}, 10000\ns_add_u32 s{sT3}, s{sT3}, s{sT1}\ns_add_u32 s{sT3}, s{sT3}, 5000')
        A(f's_lshl_b32 s{sP}, s{sCB2}, 2\nv_mov_b32 {v(vT+5)}, s{sP}\nv_mov_b32 {v(vT+6)}, s{sT3}\nglobal_store_dword {v(vT+5)}, {v(vT+6)}, {sp(sDBG)}\nL_nodbg:')
    A(f'v_lshrrev_b32 {v(E)}, 31, {v(E)}\nv_xor_b32 {v(E)}, s{sT2}, {v(E)}')
    if force >= 0: A(f'v_lshrrev_b32 {v(E)}, 5, {v(vLANE)}\nv_lshrrev_b32 {v(E)}, {v(E)}, {force}\nv_and_b32 {v(E)}, 1, {v(E)}')
    sF = [36, 37, 38, 39]
    A('s_nop 0')
    for g in range(4): A(f'v_readlane_b32 s{sF[g]}, {v(E)}, {16*g}')
    sRG = 97
    if rot >= 0: rot3(sRG, sT3)
    else: A(f's_mov_b32 s{sRG}, 0')
    A(f's_mov_b32 s{sT0}, 0\ns_mov_b32 s{sT1}, 0')
    for i in range(3):
        A(f's_mul_i32 s{sT3}, s{sRHO}, 3\ns_add_u32 s{sT3}, s{sT3}, s{sRG}\ns_lshl_b32 s{sT3}, s{sT3}, 19')
        A(f's_lshr_b32 s{sT2}, s{sT3}, 24\ns_cmp_eq_u32 s{sT2}, s{sCA}\ns_cselect_b32 s{sXD}, s{sF[0]}, s{sF[1]}\ns_cselect_b32 s{sXS}, s{sF[2]}, s{sF[3]}')
        for acc, base, fl in [(sT0, sK, sXD), (sT1, sV, sXS)]:
            A(f's_add_u32 s{sT2}, s{base}, s{sT3}\ns_lshr_b32 s{sT2}, s{sT2}, 21\ns_xor_b32 s{sT2}, s{sT2}, s{fl}\ns_and_b32 s{sT2}, s{sT2}, 1\ns_lshl_b32 s{sT2}, s{sT2}, {i}\ns_or_b32 s{acc}, s{acc}, s{sT2}')
        if i < 2: A(f's_add_u32 s{sRG}, s{sRG}, 1\ns_cmp_eq_u32 s{sRG}, 3\ns_cselect_b32 s{sRG}, 0, s{sRG}')
    if nonuma: A(f's_mov_b32 s{sT0}, {nonuma >> 1}\ns_mov_b32 s{sT1}, {nonuma >> 1}')
    A(f's_xor_b32 s{sXD}, s{sT0}, s{sT1}\ns_cselect_b32 s{sXS}, 0, 1')
    A(f'v_mov_b32 {v(vT+4)}, s{sT0}\nv_mov_b32 {v(vT+5)}, s{sT1}\nv_mov_b32 {v(vT+3)}, {FLG}\nds_write_b64 {v(vT+3)}, {v(vT+4,2)}')
    A(f'v_mov_b32 {v(vT+8)}, 0\nv_mov_b32 {v(vT+9)}, s{sXS}\nv_mov_b32 {v(vT+10)}, 0\nv_mov_b32 {v(vT+11)}, 0\nds_write_b128 {v(vT+3)}, {v(vT+8,4)} offset:16')
    if stamps:
        A(f's_lshl_b32 s{sT1}, s{sXD}, 0\ns_or_b32 s{sT1}, s{sT1}, s{sT1}\ns_lshl_b32 s{sT0}, s2, 2\ns_add_u32 s{sT0}, s{sT0}, 0x20100000')
        A(f'v_mov_b32 {v(vT+5)}, s{sT0}\nv_mov_b32 {v(vT+6)}, s{sT1}\nglobal_store_dword {v(vT+5)}, {v(vT+6)}, {sp(sWS)}')
    stamp(2)
    A('s_waitcnt lgkmcnt(0)\ns_barrier')
    A('s_waitcnt vmcnt(0)')
    A(f's_cmp_ge_u32 s{sJ}, 5\ns_cselect_b32 s{sHASW1}, 1, 0\ns_cmp_lt_u32 s{sU2}, 80\ns_cselect_b32 s{sHASW1}, s{sHASW1}, 0')
    A(f's_cmp_eq_u32 s{sHASW1}, 0\ns_cbranch_scc1 L_hx')
    A(f's_mul_i32 s{sR}, s{sU2}, 52429\ns_lshr_b32 s{sR}, s{sR}, 18\ns_mul_i32 s{sT0}, s{sR}, 5\ns_sub_u32 s{sCB}, s{sU2}, s{sT0}')
    A(f's_mul_i32 s{sRB}, s{sU2}, 52429\ns_lshr_b32 s{sRB}, s{sRB}, 20\ns_mul_i32 s{sT0}, s{sRB}, 20\ns_sub_u32 s{sSLC2}, s{sU2}, s{sT0}')
    vWD, vG4 = vS, vS+1
    A(f'v_lshrrev_b32 {v(vT)}, 4, {v(vLANE)}\nv_and_b32 {v(vT+1)}, 15, {v(vLANE)}\nv_lshlrev_b32 {v(vT+1)}, 4, {v(vT+1)}')
    A(f'v_mul_u32_u24 {v(vWD)}, 1280, {v(vT)}\nv_add_u32 {v(vWD)}, {v(vWD)}, {v(vT+1)}\nv_lshl_add_u32 {v(vG4)}, {v(vT)}, 10, {v(vT+1)}')
    A(f'v_lshrrev_b32 {v(vT)}, 5, {v(vLANE)}\nv_mul_u32_u24 {v(vT)}, {8*5*4096}, {v(vT)}\nv_and_b32 {v(vT+1)}, 31, {v(vLANE)}\nv_lshl_add_u32 {v(vA)}, {v(vT+1)}, 4, {v(vT)}')
    A(f's_lshr_b32 s{sT0}, s{sR}, 1\ns_add_u32 s{sT0}, s{sT0}, 32\ns_mul_i32 s{sT0}, s{sT0}, {5*4096}\ns_and_b32 s{sT1}, s{sR}, 1\ns_lshl_b32 s{sT1}, s{sT1}, 9\ns_add_u32 s{sT0}, s{sT0}, s{sT1}\ns_add_u32 s{rK}, s{sT0}, {P1}')
    for p in range(1, 5): A(f's_add_u32 s{rK+p}, s{rK}, {4096*p}')
    G = vF
    poll('L_pg', [wsload(G+20*b+4*p, vA, rK+p) + f' offset:{1024*b}' if False else
                  f'buffer_load_dwordx4 {v(G+20*b+4*p,4)}, {v(vA)}, {srd(rWS)}, s{rK+p} offen offset:{1024*b} sc1' for b in range(4) for p in range(5)],
         [G+20*b+4*p+3 for b in range(4) for p in range(5)], 2)
    A(f'v_and_b32 {v(vA)}, 31, {v(vLANE)}\nv_mul_u32_u24 {v(vA)}, 6, {v(vA)}\nv_add_u32 {v(vA)}, {HL}, {v(vA)}')
    for b in range(4):
        g0 = G + 20*b
        for k in range(3):
            for p in range(1, 5): A(f'v_add_f32 {v(g0+k)}, {v(g0+k)}, {v(g0+4*p+k)}')
        rnd2(g0, g0+1, vT); rnd(g0+2, vT)
        for k in range(3): A(f'v_mov_b32 {v(g0+4+k)}, {v(g0+k)}')
        A('s_nop 1')
        for k in range(3): A(f'v_permlane32_swap_b32 {v(g0+k)}, {v(g0+4+k)}')
        for k in range(3):
            A(f'v_cmp_lt_f32 vcc, 0, {v(g0+k)}\ns_nop 1\nv_cndmask_b32 {v(vT)}, 0, 1.0, vcc\nv_mul_f32 {v(g0+k)}, {v(g0+k)}, {v(vT)}\nv_mul_f32 {v(g0+k)}, {v(g0+k)}, {v(g0+4+k)}')
        put3_bf16(g0, vT, vA)
        if b < 3: A(f'v_add_u32 {v(vA)}, 192, {v(vA)}')
    A(f'v_bfe_u32 {v(vT+2)}, {v(vLANE)}, 2, 2\nv_mul_u32_u24 {v(vT+2)}, 192, {v(vT+2)}\nv_lshrrev_b32 {v(vT+3)}, 4, {v(vLANE)}\nv_lshl_add_u32 {v(vT+2)}, {v(vT+3)}, 3, {v(vT+2)}\nv_add_u32 {v(vA)}, {HL}, {v(vT+2)}')
    A('s_waitcnt lgkmcnt(0)')
    for s in range(3): A(f'ds_read2_b64 {v(vQ+4*s,4)}, {v(vA)} offset0:{8*s} offset1:{8*s+4}')
    if xtra >= 0:
        A(f'v_mov_b32 {v(vXF)}, {FLG+16}')
        hwait(2, 'L_hww')
    A(f'v_lshrrev_b32 {v(vT)}, 2, {v(vLANE)}\nv_lshlrev_b32 {v(vT)}, 8, {v(vT)}\nv_and_b32 {v(vT+1)}, 3, {v(vLANE)}\nv_lshl_add_u32 {v(vT)}, {v(vT+1)}, 3, {v(vT)}\nv_add_u32 {v(vA)}, {WREG}, {v(vT)}')
    for s in range(3):
        A('s_waitcnt lgkmcnt(0)')
        trread_mfma(8, vA, 4096, vO, s == 0, vF, vQ+4*s)
        if s < 2: A(f'v_add_u32 {v(vA)}, 8192, {v(vA)}')
    sBPA = 39
    A(f's_lshl_b32 s{sBPA}, s{sCB}, 6\ns_add_u32 s{sBPA}, s{sBPA}, s{sR}\ns_lshl_b32 s{sBPA}, s{sBPA}, 10\ns_add_u32 s{sBPA}, s{sBPA}, {BP}')
    A('s_nop 4')
    BG = vW + 16
    for ww in range(4):
        t0 = BG + 4*ww
        A(f'v_mov_b32 {v(t0)}, {v(vO+8*ww)}\nv_mov_b32 {v(t0+1)}, {v(vO+8*ww+4)}\nv_mov_b32 {v(t0+2)}, {v(vTAG)}\nv_mov_b32 {v(t0+3)}, {v(vTAG)}')
    def b_publish():
        for ww in range(4):
            A(f'buffer_store_dwordx4 {v(BG+4*ww,4)}, {v(vL16)}, {srd(rWS)}, s{sBPA} offen sc1')
            if ww < 3: A(f's_add_u32 s{sBPA}, s{sBPA}, 16384')
    if not blate: b_publish()
    vG0, vG1, vX0, vX1, vXO = vS+2, vS+3, vS+4, vS+5, vS+6
    A(f's_mul_i32 s{sT0}, s{sRB}, 1280\ns_lshl_b32 s{sT1}, s{sSLC2}, 6\ns_add_u32 s{sT0}, s{sT0}, s{sT1}')
    A(f'v_and_b32 {v(vXO)}, 15, {v(vLANE)}\nv_lshlrev_b32 {v(vXO)}, 1, {v(vXO)}\nv_add_u32 {v(vXO)}, s{sT0}, {v(vXO)}')
    if otouch: A(f'global_load_ushort {v(vX0)}, {v(vXO)}, {sp(sOUT)}\ns_waitcnt vmcnt(0)')
    A(f'global_load_ushort {v(vX0)}, {v(vXO)}, {sp(sX)}\nglobal_load_ushort {v(vX1)}, {v(vXO)}, {sp(sX)} offset:32')
    sBG = 40
    A(f's_lshl_b32 s{sT0}, s{sSLC2}, 14\ns_lshl_b32 s{sT1}, s{sRB}, 8\ns_add_u32 s{sT0}, s{sT0}, s{sT1}\ns_add_u32 s{sBG}, s{sT0}, {BP}')
    for p in range(1, 4): A(f's_add_u32 s{sBG+p}, s{sBG}, {4096*p}')
    def b_gather():
        G = vF
        (polls if sel & 2 else poll)('L_pb', [wsload(G+4*p, vG4, sBG+p) for p in range(4)], [G+4*p+3 for p in range(4)], 5)
        if py >= 0 or not blate: b_math()
    def b_math():
        G = vF
        for k in range(2):
            A(f'v_add_f32 {v(G+k)}, {v(G+k)}, {v(G+4+k)}\nv_add_f32 {v(G+8+k)}, {v(G+8+k)}, {v(G+12+k)}\nv_add_f32 {v(G+k)}, {v(G+k)}, {v(G+8+k)}')
            xsum(G+k, vT, full=False)
        rnd2(G, G+1, vT)
        for k in range(2):
            A(f'v_mul_f32 {v(vT)}, s{sL2E}, {v(G+k)}\nv_max_f32 {v(vT)}, {f2u(-126.0):#x}, {v(vT)}\nv_exp_f32 {v(vT)}, -{v(vT)}\ns_nop 0\nv_add_f32 {v(vT)}, 1.0, {v(vT)}\nv_rcp_f32 {v(vT+1)}, {v(vT)}\ns_nop 0')
            fdiv(vG0+k, G+k, vT, vT+1, vT+2)
        rnd2(vG0, vG1, vT)
    if not blate: b_gather()
    A(f's_waitcnt vmcnt(0)\nv_lshlrev_b32 {v(vX0)}, 16, {v(vX0)}\nv_lshlrev_b32 {v(vX1)}, 16, {v(vX1)}')
    A(f's_lshl_b32 s{sT0}, s{sSLC2}, {14 if y8 else 15}\ns_lshl_b32 s{sT1}, s{sRB}, {7 if y8 else 8}\ns_add_u32 s{sT0}, s{sT0}, s{sT1}\ns_add_u32 s{rK}, s{sT0}, {YP}')
    for p in range(1, 8): A(f's_add_u32 s{rK+p}, s{rK}, {(2048 if y8 else 4096)*p}')
    vG8 = vS + 7
    A(f'v_lshrrev_b32 {v(vG8)}, 1, {v(vG4)}')
    A('L_hx:')
    if stamps == 5:
        A(f'v_mov_b32 {v(vXF)}, {FLG+16}')
        hwait(13, 'L_hws')
        A(f's_memrealtime {sp(sST+2*3)}\ns_waitcnt lgkmcnt(0)')
    if lead:
        A(f's_and_b32 s{sT0}, s2, {lmask}\ns_cmp_eq_u32 s{sT0}, 5\ns_cselect_b32 s{sT0}, 0, s{sXS}\ns_cmp_lg_u32 s{sT0}, 0\ns_cbranch_scc1 L_hb4')
    elif not bal: A(f's_cmp_lg_u32 s{sXS}, 0\ns_cbranch_scc1 L_hb4')
    sREC, sOTH = 36, 37
    A(f's_lshl_b32 s{sREC}, s{sRHO}, 1\ns_add_u32 s{sOTH}, s{sREC}, 1\ns_sub_u32 s{sOTH}, s{sOTH}, s{sHALF}\ns_add_u32 s{sREC}, s{sREC}, s{sHALF}')
    vXG = vQ + 15
    if xs:
        for r_ in (sREC, sOTH):
            A(f's_lshr_b32 s{sT0}, s{r_}, 7\ns_lshl_b32 s{sT0}, s{sT0}, 20\ns_and_b32 s{r_}, s{r_}, 127\ns_lshl_b32 s{r_}, s{r_}, 8\ns_add_u32 s{r_}, s{r_}, s{sT0}\ns_add_u32 s{r_}, s{r_}, {SCO}')
        A(f'v_and_b32 {v(vXG)}, 0xf0, {v(vL16)}\nv_lshrrev_b32 {v(vT)}, 4, {v(vLANE)}\nv_lshl_add_u32 {v(vXG)}, {v(vT)}, {xs}, {v(vXG)}')
    else:
        A(f's_mul_i32 s{sREC}, s{sREC}, 6144\ns_add_u32 s{sREC}, s{sREC}, {SCO}\ns_mul_i32 s{sOTH}, s{sOTH}, 6144\ns_add_u32 s{sOTH}, s{sOTH}, {SCO}')
        A(f'v_mov_b32 {v(vXG)}, {v(vL16)}')
    xoff = (lambda w, i: (2*w + i) << 17) if xs else (lambda w, i: 1536*w + 1024*i)
    A(f'v_add_u32 {v(vXA)}, {STG}, {v(vL16)}\nv_mov_b32 {v(vXF)}, {FLG+16}\nv_and_b32 {v(vT)}, 3, {v(vLANE)}\nv_cmp_eq_u32 vcc, 2, {v(vT)}\nv_mov_b32 {v(vT)}, -20\ns_nop 0\nv_cndmask_b32 {v(vT)}, 8, {v(vT)}, vcc\nv_add_u32 {v(vXB)}, {v(vXA)}, {v(vT)}')
    sE0, sE1 = 96, 98
    A(f's_bitcmp1_b32 s{sXD}, 0\ns_cselect_b32 s{sE0}, 0xffffff00, 0\ns_bitcmp1_b32 s{sXD}, 1\ns_cselect_b32 s{sE0+1}, -1, 0\ns_bitcmp1_b32 s{sXD}, 2\ns_cselect_b32 s{sE1}, 0xffffff, 0\ns_mov_b32 s{sE1+1}, 0')
    sTO = 38
    def cp_pub(i):
        A(f's_memrealtime {sp(sP)}\ns_lshl_b32 s{sT1}, s2, 4\ns_add_u32 s{sT1}, s{sT1}, {TS + 4096*i}\nv_mov_b32 {v(vS+11)}, {v(vTAG)}\ns_waitcnt lgkmcnt(0)\ns_add_u32 s{sTO}, s{sP}, 0')
        A(f'v_mov_b32 {v(vS+8)}, s{sTO}\ns_mov_b64 exec, 1\nbuffer_store_dwordx4 {v(vS+8,4)}, {v(vL16)}, {srd(rWS)}, s{sT1} offen sc1\ns_mov_b64 exec, -1')
    CG = vW + 32
    def cp_load(i):
        A(f'v_lshlrev_b32 {v(vT+2)}, 6, {v(vLANE)}\nv_bfe_u32 {v(vT+3)}, {v(vLANE)}, 1, 2\nv_lshl_add_u32 {v(vT+2)}, {v(vT+3)}, 4, {v(vT+2)}\ns_mov_b32 s{sT1}, {TS + 4096*i}')
        A(f'buffer_load_dwordx4 {v(CG,4)}, {v(vT+2)}, {srd(rWS)}, s{sT1} offen sc1\ns_memrealtime {sp(sP)}')
    def cp_use():
        A(f's_waitcnt vmcnt(0) lgkmcnt(0)\ns_sub_u32 s{sT0}, s{sP}, s{sTO}\nv_cmp_eq_u32 vcc, {v(CG+3)}, {v(vTAG)}\nv_subrev_u32 {v(CG)}, s{sTO}, {v(CG)}\nv_mov_b32 {v(vT)}, s{sT0}')
        A(f'v_cndmask_b32 {v(CG)}, {v(vT)}, {v(CG)}, vcc\nv_mov_b32 {v(vT)}, 0x190\nv_mov_b32 {v(vT+1)}, -400\nv_med3_i32 {v(CG)}, {v(CG)}, {v(vT)}, {v(vT+1)}')
        xsum(CG, vT, 'v_add_u32')
        A(f'ds_read_b32 {v(vT+2)}, {v(vXF)}\nv_readfirstlane_b32 s{sT0}, {v(CG)}\ns_nop 0\ns_ashr_i32 s{sT0}, s{sT0}, 6')
        A(f's_abs_i32 s{sT1}, s{sT0}\ns_sub_i32 s{sT1}, s{sT1}, {dead}\ns_max_i32 s{sT1}, s{sT1}, 0\ns_mul_i32 s{sT1}, s{sT1}, {gain}\ns_lshr_b32 s{sT1}, s{sT1}, 8\ns_min_u32 s{sT1}, s{sT1}, {kmax}')
        A(f's_waitcnt lgkmcnt(0)\nv_readfirstlane_b32 s{sT2}, {v(vT+2)}\ns_nop 0\ns_lshr_b32 s{sT2}, s{sT2}, 2\ns_add_u32 s{sT2}, s{sT2}, s{sT1}\ns_cmp_eq_u32 s{sT1}, 0\ns_cselect_b32 s{sT2}, 0, s{sT2}')
        A(f's_sub_i32 s{sT1}, 0, s{sT2}\ns_cmp_lt_i32 s{sT0}, 0\ns_cselect_b32 s{sT2}, s{sT2}, s{sT1}\nv_mov_b32 {v(vT)}, s{sT2}\nds_write_b32 {v(vXF)}, {v(vT)} offset:8')
    def rk_issue(i):
        A(f'v_lshlrev_b32 {v(vT+2)}, {rsp+2}, {v(vLANE)}\nv_bfe_u32 {v(vT+3)}, {v(vLANE)}, 1, 2\nv_lshl_add_u32 {v(vT+2)}, {v(vT+3)}, {rsp}, {v(vT+2)}\ns_mov_b32 s{sT0}, {0x360000 + (256 << rsp)*i}')
        A(f'buffer_load_dword {v(CG)}, {v(vT+2)}, {srd(rWS)}, s{sT0} offen sc1\ns_lshl_b32 s{sT1}, s2, {rsp}\ns_add_u32 s{sT1}, s{sT1}, s{sT0}')
        for k in range(4): A(f'v_mov_b32 {v(vS+8+k)}, {v(vTAG)}')
        A(f's_mov_b64 exec, {(1 << (1 << (rsp-4))) - 1}\nbuffer_store_dwordx4 {v(vS+8,4)}, {v(vL16)}, {srd(rWS)}, s{sT1} offen sc1\ns_mov_b64 exec, -1')
    def rk_use(n, w):
        A(f's_waitcnt vmcnt({w})\nv_cmp_eq_u32 vcc, {v(CG)}, {v(vTAG)}\ns_nop 0\ns_bcnt1_i32_b64 s{sT1}, vcc\ns_sub_i32 s{sT1}, s{sT1}, {rc0}\ns_max_i32 s{sT1}, s{sT1}, 0')
        A(f's_mul_i32 s{sT1}, s{sT1}, s{sT1}\ns_mul_i32 s{sT1}, s{sT1}, {rg}\ns_lshr_b32 s{sT1}, s{sT1}, 8\ns_min_u32 s{sT1}, s{sT1}, {kmax}\ns_add_u32 s{sT1}, s{sT1}, {n}')
        A(f'v_mov_b32 {v(vT)}, s{sT1}\nds_write_b32 {v(vXF)}, {v(vT)} offset:8')
    def cp_all(sel_):
        for i, n in enumerate(cpl):
            if bal and n != 23 and sel_(n):
                hwait(n, f'L_cp{i}')
                if rank: rk_issue(i); rk_use(n, 1)
                else: cp_pub(i); hwait(n + cgap, f'L_cg{i}'); cp_load(i); cp_use()
    cp_all(lambda n: n < 23)
    hwait(pubt, 'L_hw0')
    stamp(1)
    if bal and 23 in cpl: (rk_issue if rank else cp_pub)(cpl.index(23))
    if lead:
        A(f'v_mov_b32 {v(vT+2)}, {GO}\ns_and_b32 s{sT0}, s2, {lmask}\ns_cmp_lg_u32 s{sT0}, 5\ns_cbranch_scc1 L_go')
        hwait(lead, 'L_hwl')
        A(f's_mov_b64 exec, 1\nbuffer_store_dword {v(vTAG)}, {v(vT+2)}, {srd(rWS)}, 0 offen sc1\ns_mov_b64 exec, -1')
        if lpipe:
            A('L_go:')
            for k in range(3): A(f'buffer_load_dword {v(vT+4+k)}, {v(vT+2)}, {srd(rWS)}, 0 offen sc1\ns_sleep {lpipe}')
            A('L_go2:')
            for k in range(4):
                A(f'buffer_load_dword {v(vT+4+(k+3)%4)}, {v(vT+2)}, {srd(rWS)}, 0 offen sc1\nds_read_b32 {v(vT)}, {v(vXF)}\ns_waitcnt vmcnt(3) lgkmcnt(0)')
                A(f'v_cmp_eq_u32 vcc, {v(vT+4+k)}, {v(vTAG)}\nv_readfirstlane_b32 s{sT0}, {v(vT)}\ns_cbranch_vccnz L_go_ok\ns_cmp_ge_u32 s{sT0}, {4*fb}\ns_cbranch_scc1 L_go_ok')
            A('s_branch L_go2\nL_go_ok:')
        else:
            A(f'L_go:\nbuffer_load_dword {v(vT+3)}, {v(vT+2)}, {srd(rWS)}, 0 offen sc1\nds_read_b32 {v(vT)}, {v(vXF)}\ns_waitcnt vmcnt(0) lgkmcnt(0)')
            A(f'v_cmp_eq_u32 vcc, {v(vT+3)}, {v(vTAG)}\nv_readfirstlane_b32 s{sT0}, {v(vT)}\ns_cbranch_vccnz L_go_ok\ns_cmp_lt_u32 s{sT0}, {4*fb}\ns_cbranch_scc1 L_go\nL_go_ok:')
    stamp(3)
    def masked(i, lbl): return f's_cmp_eq_u64 {sp([sE0, sE1][i])}, 0\ns_cbranch_scc1 {lbl}{i}\ns_mov_b64 exec, {sp([sE0, sE1][i])}'
    if not (noex & 1):
        for i in range(2):
            A(masked(i, 'L_np'))
            for w in range(4):
                r = vF + 16*i + 4*w
                A(f'ds_read_b64 {v(r,2)}, {v(vXA)} offset:{1536*w+1024*i}\nds_read_b32 {v(r+2)}, {v(vXB)} offset:{1536*w+1024*i}\nv_mov_b32 {v(r+3)}, {v(vTAG)}')
            for w in range(4):
                r = vF + 16*i + 4*w
                A(f's_add_u32 s{sT0}, s{sREC}, {xoff(w, i)}\ns_waitcnt lgkmcnt({6-2*w})')
                A(f'buffer_store_dwordx4 {v(r,4)}, {v(vXG)}, {srd(rWS)}, s{sT0} offen {stfl}')
            A(f's_mov_b64 exec, -1\nL_np{i}:')
    if bal and rank and 23 in cpl: rk_use(24, 0)
    if lead: A(f's_cmp_lg_u32 s{sXS}, 0\ns_cbranch_scc1 L_hb4')
    if bal and rank: A(f's_cmp_lg_u32 s{sXS}, 0\ns_cbranch_scc1 L_hb4')
    hwait(gat, 'L_hw1')
    if bal and not rank and 23 in cpl: cp_load(cpl.index(23))
    if bal and not rank: A(f's_cmp_lg_u32 s{sXS}, 0\ns_cbranch_scc1 L_nox')
    if not (noex & 2):
        G = vO
        for k in range(8): A(f'v_mov_b32 {v(G+4*k+3)}, {v(vTAG)}')
        lds_ = []
        for i in range(2):
            t_ = masked(i, 'L_ng') + '\n'
            for w in range(4):
                t_ += f's_add_u32 s{sT0}, s{sOTH}, {xoff(w, i)}\nbuffer_load_dwordx4 {v(G+16*i+4*w,4)}, {v(vXG)}, {srd(rWS)}, s{sT0} offen {slfl}\n'
            lds_.append(t_ + f's_mov_b64 exec, -1\nL_ng{i}:')
        poll('L_px', lds_, [G+4*k+3 for k in range(8)], 8)
        for i in range(2):
            A(masked(i, 'L_nw'))
            for w in range(4): A(f'ds_write_b64 {v(vXA)}, {v(G+16*i+4*w,2)} offset:{1536*w+1024*i}\nds_write_b32 {v(vXB)}, {v(G+16*i+4*w+2)} offset:{1536*w+1024*i}')
            A(f's_mov_b64 exec, -1\ns_waitcnt lgkmcnt(0)\nL_nw{i}:')
    A(f'v_mov_b32 {v(vT)}, 1\nds_write_b32 {v(vXF)}, {v(vT)} offset:4')
    stamp(4)
    if bal and not rank: A('L_nox:')
    if bal and not rank and 23 in cpl: cp_use()
    A('L_hb4:')
    A(f'v_mul_u32_u24 {v(vA)}, 12, {v(vLANE)}\nv_add_u32 {v(vA)}, {OCB}, {v(vA)}\nv_mov_b32 {v(vAL)}, {OCB+768}')
    A(f's_lshl_b32 s{sT1}, s{sH}, 3\ns_add_u32 s{sT1}, s{sT1}, s{sJ}\ns_lshl_b32 s{sT1}, s{sT1}, 11\ns_add_u32 s{sT1}, s{sT1}, {OP}')
    Gm = vQ + 16
    r0 = vP
    ml = vT + 4
    def weights():
        A(f'v_max3_f32 {v(ml)}, {v(Gm)}, {v(Gm+2)}, {v(Gm+4)}\nv_max_f32 {v(ml)}, {v(ml)}, {v(Gm+6)}')
        for w in range(4): A(f'v_sub_f32 {v(Gm+2*w)}, {v(Gm+2*w)}, {v(ml)}')
        for w in range(4): A(f'v_exp_f32 {v(Gm+2*w)}, {v(Gm+2*w)}')
        A(f'v_mov_b32 {v(r0+3)}, {v(vTAG)}\nv_mov_b32 {v(ml+3)}, {v(vTAG)}\nv_mov_b32 {v(ml+2)}, {v(vTAG)}')
        A(f'v_mul_f32 {v(ml+1)}, {v(Gm)}, {v(Gm+1)}')
        for w in range(1, 4): A(f'v_fmac_f32 {v(ml+1)}, {v(Gm+2*w)}, {v(Gm+2*w+1)}')
    if lred:
        A(f'v_mov_b32 {v(vXF)}, {FLG+16}')
        hwait(29, 'L_hw2', 8)
        if stamps == 5: A(f's_memrealtime {sp(sST+2*4)}\ns_waitcnt lgkmcnt(0)')
        for w in range(4): A(f'ds_read_b64 {v(Gm+2*w,2)}, {v(vAL)} offset:{1024*w}')
        A('s_waitcnt lgkmcnt(0)')
        weights()
        for w in range(1, 4): A(f'v_add_u32 {v(vQ+4+w)}, {1024*w}, {v(vA)}')
        if bal and max(cpl) > 23:
            A(f's_mov_b32 s{sOTH}, s{sT1}')
            cp_all(lambda n: n > 23)
            A(f's_mov_b32 s{sT1}, s{sOTH}\nv_mov_b32 {v(r0+3)}, {v(vTAG)}')
        A('s_barrier')
        stamp(5)
        for w in range(4):
            a_ = vA if w == 0 else vQ+4+w
            A(f'ds_read2_b32 {v(vF+4*w,2)}, {v(a_)} offset0:0 offset1:1\nds_read_b32 {v(vF+4*w+2)}, {v(a_)} offset:8')
    else:
        A('s_barrier')
        stamp(5)
        for w in range(4): A(f'ds_read_b64 {v(Gm+2*w,2)}, {v(vAL)} offset:{1024*w}')
        for w in range(4):
            A(f'ds_read2_b32 {v(vF+4*w,2)}, {v(vA)} offset0:0 offset1:1\nds_read_b32 {v(vF+4*w+2)}, {v(vA)} offset:8')
            if w < 3: A(f'v_add_u32 {v(vA)}, 1024, {v(vA)}')
        A('s_waitcnt lgkmcnt(8)')
        weights()
    A('s_waitcnt lgkmcnt(0)')
    for k in range(3): A(f'v_mul_f32 {v(r0+k)}, {v(Gm)}, {v(vF+k)}')
    for w in range(1, 4):
        for k in range(3): A(f'v_fmac_f32 {v(r0+k)}, {v(Gm+2*w)}, {v(vF+4*w+k)}')
    A(f'buffer_store_dwordx4 {v(r0,4)}, {v(vL16)}, {srd(rWS)}, s{sT1} offen sc1')
    A(f's_mov_b64 exec, 1\nbuffer_store_dwordx4 {v(ml,4)}, {v(vL16)}, {srd(rWS)}, s{sT1} offen offset:1024 sc1\ns_mov_b64 exec, -1')
    if hb5: A(f's_cmp_ge_u32 s{sJ}, 5\ns_cbranch_scc1 L_hnb5\ns_barrier\nL_hnb5:')
    A(f's_cmp_eq_u32 s{sHASW1}, 0\ns_cbranch_scc1 L_hdone')
    if blate:
        b_publish()
        b_gather()
    G = vW
    if y8:
        mky = lambda b: [f'buffer_load_dwordx2 {v(b+4*p+2,2)}, {v(vG8)}, {srd(rWS)}, s{rK+p} offen sc1' for p in range(8)]
        def usey(b):
            for p in range(4):
                A(f'v_lshlrev_b32 {v(G+2*p)}, 16, {v(b+8*p+2)}\nv_and_b32 {v(G+2*p+1)}, 0xffff0000, {v(b+8*p+2)}\nv_lshlrev_b32 {v(G+8)}, 16, {v(b+8*p+6)}\nv_and_b32 {v(G+9)}, 0xffff0000, {v(b+8*p+6)}')
                A(f'v_add_f32 {v(G+2*p)}, {v(G+2*p)}, {v(G+8)}\nv_add_f32 {v(G+2*p+1)}, {v(G+2*p+1)}, {v(G+9)}')
    else:
        mky = lambda b: [wsload(b+4*p, vG4, rK+p) for p in range(8)]
        def usey(b):
            for k in range(2):
                for p in range(4): A(f'v_add_f32 {v(G+2*p+k)}, {v(b+8*p+k)}, {v(b+8*p+4+k)}')
    if py: poll2('L_py', mky, 8, vF+16, vO, 6, py if py > 0 else b_math, usey)
    else:
        (polls if sel & 2 else poll)('L_py', mky(vF+16), [vF+16+4*p+3 for p in range(8)], 6)
        usey(vF+16)
    stamp(6)
    for k in range(2):
        A(f'v_add_f32 {v(G+k)}, {v(G+k)}, {v(G+2+k)}\nv_add_f32 {v(G+4+k)}, {v(G+4+k)}, {v(G+6+k)}\nv_add_f32 {v(G+k)}, {v(G+k)}, {v(G+4+k)}')
    for k in range(2): xsum(G+k, vT+k, full=False)
    rnd2(G, G+1, vT)
    A(f'v_mul_f32 {v(G)}, {v(G)}, {v(vG0)}\nv_mul_f32 {v(G+1)}, {v(G+1)}, {v(vG1)}')
    rnd2(G, G+1, vT)
    if perturb:
        A(f's_cmp_eq_u32 s{sU2}, 0\ns_cselect_b32 s{sT0}, {f2u(perturb/1000):#x}, 0\ns_mov_b64 exec, 1\nv_add_f32 {v(vX0)}, s{sT0}, {v(vX0)}\ns_mov_b64 exec, -1')
    if pall: A(f'v_mul_f32 {v(G)}, {f2u(1+pall/1000):#x}, {v(G)}\nv_mul_f32 {v(G+1)}, {f2u(1+pall/1000):#x}, {v(G+1)}')
    A(f'v_add_f32 {v(G)}, {v(G)}, {v(vX0)}\nv_add_f32 {v(G+1)}, {v(G+1)}, {v(vX1)}\nv_cvt_pk_bf16_f32 {v(G)}, {v(G)}, {v(G+1)}')
    A(f's_mov_b64 exec, 0xffff\nglobal_store_short {v(vXO)}, {v(G)}, {sp(sOUT)} {ofl}\nglobal_store_short_d16_hi {v(vXO)}, {v(G)}, {sp(sOUT)} offset:32 {ofl}')
    A(f's_cmp_lg_u32 s{sU2}, 0\ns_cbranch_scc1 L_hdone')
    A(f's_mov_b64 exec, 1\nv_mov_b32 {v(vT)}, 0\nglobal_store_dword {v(vT)}, {v(vTAG)}, {sp(sWS)} sc1')
    A('L_hdone:')
    if stamps:
        A('s_waitcnt vmcnt(0)')
        stamp(7)
        write_stamps(256, 'h')
    A('L_end:\ns_endpgm')
    A(f'''.section .rodata,"a"
.p2align 6
.amdhsa_kernel {NAME}_kernel
  .amdhsa_next_free_vgpr {NV}
  .amdhsa_next_free_sgpr 100
  .amdhsa_accum_offset {NV}
  .amdhsa_group_segment_fixed_size 0
  .amdhsa_kernarg_size 96
  .amdhsa_user_sgpr_count 2
  .amdhsa_user_sgpr_kernarg_segment_ptr 1
  .amdhsa_system_sgpr_workgroup_id_x 1
  .amdhsa_float_denorm_mode_32 3
.end_amdhsa_kernel''')
    open(fn, 'w').write('\n'.join(L) + '\n')

if __name__ == '__main__':
    fn = sys.argv[1]
    kw = {}
    for a in sys.argv[2:]:
        k, val = a.split('=')
        try: val = int(val)
        except ValueError: val = val.replace('+', ' ').replace('def', '')
        kw[k] = val
    gen(fn, **kw)
```

```python
import sys, os, struct
NAME = 'recurrent_scan__gqa_block_cached__glu_gated_reglu__decode'

HEADER = '''; Kernarg layout (96 bytes, pointers only, base s[0:1]), everything bf16:
;
'''

def f2u(x): return struct.unpack('<I', struct.pack('<f', x))[0]

def gen(fn, stamps=False, pace=8, up=4, mapping='x', kvil=False, twostage=False, spin=1<<15, knt='nt', vnt='nt', w1nt='nt', w2nt='nt', sleep=0, fixdur=0, D=7, nomem=0, now=0, nopoll=0, nocomp=0, pre=1, force=-1, cap=400, thr=100, noex=0, sync=1, skipx=1, hsl=2, gat=26, perturb=0, pall=0, lead=0, bal=5, gain=15, dead=20, kmax=10, bneg=0, cps='23.34', cgap=3, rank=0, dbgt=-1, wlate=0, qdel2=9, xs=0, qdel=9, rsp=7, rc0=24, rg=2, lastneg=0, ofl='', prio=0, nosleep=1, y8=0, rot=2, rmul=1, umap=1, gord=2, w1sw=1, wearly=2, hb5=1, xtra=-1, sel=0, lpipe=0, lmask=31, fb=26, blate=1, pubt=23, htouch=0, otouch=0, nonuma=0, al=1, glate=1, touch=0, late=0, lred=1, pq=0, po=0, py=0, inl=1, nend=4, Dend=18, dbgv=0, stfl='sc1', slfl='sc1'):
    L = []
    cpl = [int(x) for x in str(cps).split('.')]
    def A(s):
        for ln in s.strip('\n').split('\n'):
            L.append(ln.strip())
    SLOT = 9216; RING = 2*SLOT; WT = 12288
    WREG = 4*RING
    MISC = WREG + 4*WT
    XN = MISC; OBF = MISC
    RED = MISC + 1536
    OCB = RED + 8192
    QL = RED + 12288
    HL = QL + 384
    FLG = HL + 768
    STG = FLG + 64
    LDS = 147456
    assert STG + 6144 <= LDS
    P1 = 0x1000; OP = 0x100000; YP = 0x200000; BP = 0x300000; VOTE = 0x3F0000; GO = 0x3F8000; TS = 0x3E0000; SCO = 0x400000; WSZ = 0x600000
    TAGC = 0x9E3779B9
    sX, sK, sV, sWQ, sWO, sWG, sWU, sWD, sOUT, sDBG, sWS = 4, 6, 8, 10, 12, 16, 18, 20, 22, 24, 26
    rK, rV, rW1, rW2, rWS = 28, 32, 36, 40, 44
    sWAVE, sH, sJ, sB, sHALF = 48, 49, 50, 51, 52
    sBETA, sPI, sHASW1, sRS = 53, 54, 55, 56
    sSLA, sSLB, sSLC = 57, 58, 59
    sOFF, sT, sCNT = 60, 61, 62
    sSC, sL2E = 63, 64
    sT0, sT1, sT2, sT3 = 65, 66, 67, 68
    sU2, sR, sCB, sRB, sSLC2 = 69, 70, 71, 72, 73
    sN0, sN1, sFLV, sFL = 70, 71, 72, 73
    sU, sPUB, sNEG, sVB = 14, 15, 34, 32
    sRHO = 3
    sXD, sXS = 92, 93
    sCM = 94
    sSTG = 35
    sU0 = 96
    sP = 74
    sST = 76
    def srd(r): return f's[{r}:{r+3}]'
    def sp(r): return f's[{r}:{r+1}]'
    vLANE, vL16, vTAG, vKA0, vVA0, vA, vM, vML, vLS, vAL = 1, 2, 3, 4, 5, 6, 7, 8, 9, 10
    vT = 12
    vS = 28
    vP = 36
    vQ = 40
    vF = 64
    vO = 112
    vW = 160
    vR = 208
    vM2B, vM2X, vM3, vSK, vSV, vFA, vONE, vPA = range(212, 220)
    vSRC = 220
    vKB = 224
    vVB = 228
    vAD = 236
    NV = 244
    def v(r, n=1): return f'v{r}' if n == 1 else f'v[{r}:{r+n-1}]'
    inhelper = [False]
    def pstamp(i):
        if stamps == 3: A(f's_memrealtime {sp(sST+2*i)}\ns_waitcnt lgkmcnt(0)')
    def qstamp(i):
        if stamps == 4: A(f's_memrealtime {sp(sST+2*i)}\ns_waitcnt lgkmcnt(0)')
    def stamp(i):
        if stamps in (3, 4) and i < 7 and not inhelper[0]: return
        if stamps == 5 and inhelper[0] and i in (3, 4): return
        if stamps:
            A(f's_memrealtime {sp(sST+2*i)}\ns_waitcnt lgkmcnt(0)')
    def write_stamps(rec_base, lbl):
        if not stamps: return
        if dbgt >= 0:
            A(f's_cmp_lg_u32 s2, {dbgt}\ns_cbranch_scc1 L_end\ns_mov_b64 exec, 1\nv_mov_b32 {v(vA)}, 0')
            for i in range(8): A(f's_sub_u32 s{sT0}, s{sST+2*i}, s{sST}\nv_mov_b32 {v(vT)}, s{sT0}\nglobal_store_dword {v(vA)}, {v(vT)}, {sp(sDBG)} offset:{4*i + (32 if rec_base else 0)}')
            return
        A(f's_lshl_b32 s{sT0}, s2, 6\ns_add_u32 s{sT0}, s{sT0}, {0x20000000 + rec_base*64}')
        A(f's_add_u32 s{sP}, s{sWS}, s{sT0}\ns_addc_u32 s{sP+1}, s{sWS+1}, 0')
        A(f's_mov_b64 exec, 1\nv_mov_b32 {v(vA)}, 0')
        for i in range(4):
            for k in range(4): A(f'v_mov_b32 {v(vT+k)}, s{sST+4*i+k}')
            A(f'global_store_dwordx4 {v(vA)}, {v(vT,4)}, {sp(sP)} offset:{16*i}\ns_nop 1')
    def xsum(r, t, op='v_add_f32', full=True):
        if full:
            for mode in ['quad_perm:[1,0,3,2]', 'quad_perm:[2,3,0,1]', 'row_half_mirror', 'row_mirror']:
                A(f's_nop 1\n{op}_dpp {v(r)}, {v(r)}, {v(r)} {mode} row_mask:0xf bank_mask:0xf')
        for sw in ['v_permlane16_swap_b32', 'v_permlane32_swap_b32']:
            A(f'v_mov_b32 {v(t)}, {v(r)}\ns_nop 1\n{sw} {v(r)}, {v(t)}\n{op} {v(r)}, {v(r)}, {v(t)}')
    def rnd(r, t):
        A(f'v_cvt_pk_bf16_f32 {v(t)}, {v(r)}, {v(r)}\nv_lshlrev_b32 {v(r)}, 16, {v(t)}')
    def rnd2(r0, r1, t):
        A(f'v_cvt_pk_bf16_f32 {v(t)}, {v(r0)}, {v(r1)}\nv_lshlrev_b32 {v(r0)}, 16, {v(t)}\nv_and_b32 {v(r1)}, 0xffff0000, {v(t)}')
    def dma_tile(soff, sslot, paced=None, lo=0, hi=9, fl='nt'):
        for i in range(lo, hi):
            A(f's_add_u32 m0, s{sslot}, {1024*i}')
            if i == lo or i % 3 == 0: A(f's_add_u32 s{sT0}, s{soff}, {3072*(i//3)}')
            elif not paced: A('s_nop 0')
            if paced: A(f's_waitcnt vmcnt({paced-1})')
            A(f'buffer_load_dwordx4 {v(vSRC+i%3)}, {srd(rK)}, s{sT0} offen {fl} lds')
    def rot3(dst, tmp):
        A(f's_lshr_b32 s{dst}, s{sRHO}, {rot}')
        if rmul != 1: A(f's_mul_i32 s{dst}, s{dst}, {rmul}')
        A(f's_mul_i32 s{tmp}, s{dst}, 43691\ns_lshr_b32 s{tmp}, s{tmp}, 17\ns_mul_i32 s{tmp}, s{tmp}, 3\ns_sub_u32 s{dst}, s{dst}, s{tmp}')
    def block_params(default, sn):
        if default == 1: A(f's_cmp_eq_u32 s{sHALF}, 1')
        else: A(f's_bitcmp1_b64 {sp(sCM)}, s{sT}')
        A(f's_addc_u32 s{sT1}, s{sU}, s{sU}\ns_lshl_b32 s{sT1}, s{sT1}, 6\ns_add_u32 s{sT2}, s{sT1}, 65\ns_add_u32 s{sT1}, s{sT1}, 1')
        A(f's_mul_i32 s{sT1}, s{sT1}, 43691\ns_mul_i32 s{sT2}, s{sT2}, 43691\ns_lshr_b32 s{sT1}, s{sT1}, 17\ns_lshr_b32 s{sT2}, s{sT2}, 17')
        A(f's_mul_i32 s{sOFF}, s{sT1}, 384\ns_sub_u32 s{sT1}, s{sT2}, s{sT1}\ns_mul_i32 s{sT2}, s{sT2}, 384\ns_min_u32 s{rK+2}, s{sT2}, {0 if nomem else 1572864}')
        if default == 2: A(f's_cmp_ge_u32 s{sT}, 46\ns_cselect_b32 s{rK+2}, 0, s{rK+2}')
        else: A(f's_cmp_eq_u32 s{sT1}, 22\ns_cselect_b32 s{sn}, -1, 0')
        if umap: A(f's_bitcmp1_b32 s{sU}, 0\ns_cselect_b32 s{sT1}, 7, 1\ns_add_u32 s{sU}, s{sU}, s{sT1}')
        else: A(f's_add_u32 s{sU}, s{sU}, 4')
        if rot >= 0: A(f's_cmp_ge_u32 s{sU}, 96\ns_cselect_b32 s{sT1}, 96, 0\ns_sub_u32 s{sU}, s{sU}, s{sT1}')
    def poll(lbl, loads, tagregs, code, mid=None):
        A(f's_mov_b32 s{sCNT}, {spin}\n{lbl}:')
        for x in loads: A(x)
        if mid: A(f'{mid}:')
        A('s_waitcnt vmcnt(0)')
        A(f'v_xor_b32 {v(vT)}, {v(tagregs[0])}, {v(vTAG)}')
        for r in tagregs[1:]:
            A(f'v_xor_b32 {v(vT+1)}, {v(r)}, {v(vTAG)}\nv_or_b32 {v(vT)}, {v(vT)}, {v(vT+1)}')
        if (nopoll and lbl != 'L_pq') or (noex and lbl == 'L_px'): A(f's_branch {lbl}_ok')
        A(f'v_cmp_ne_u32 vcc, 0, {v(vT)}\ns_cbranch_vccz {lbl}_ok')
        if sleep: A(f's_sleep {sleep}')
        A(f's_sub_u32 s{sCNT}, s{sCNT}, 1\ns_cmp_lg_u32 s{sCNT}, 0\ns_cbranch_scc1 {lbl}')
        A(f'v_mov_b32 {v(vT)}, 0\nv_mov_b32 {v(vT+1)}, {code}\nglobal_store_dword {v(vT)}, {v(vT+1)}, {sp(sDBG)}')
        A(f'{lbl}_ok:')
    def polls(lbl, loads, tagregs, code):
        A(f's_mov_b32 s{sCNT}, {spin}')
        for x in loads: A(x)
        A(f'{lbl}:\ns_waitcnt vmcnt(0)\ns_mov_b32 s{sT3}, 0')
        for k, (x, r) in enumerate(zip(loads, tagregs)):
            A(f'v_cmp_ne_u32 vcc, {v(r)}, {v(vTAG)}\ns_cbranch_vccz {lbl}_s{k}\ns_mov_b64 exec, vcc')
            A(x)
            A(f's_mov_b64 exec, -1\ns_mov_b32 s{sT3}, 1\n{lbl}_s{k}:')
        A(f's_cmp_eq_u32 s{sT3}, 0\ns_cbranch_scc1 {lbl}_ok')
        A(f's_sub_u32 s{sCNT}, s{sCNT}, 1\ns_cmp_lg_u32 s{sCNT}, 0\ns_cbranch_scc1 {lbl}')
        A(f'v_mov_b32 {v(vT)}, 0\nv_mov_b32 {v(vT+1)}, {code}\nglobal_store_dword {v(vT)}, {v(vT+1)}, {sp(sDBG)}\ns_waitcnt vmcnt(0)')
        A(f'{lbl}_ok:')
    def poll2(lbl, mk, n, base, alt, code, delay, use):
        def check(b, ok):
            A(f's_waitcnt vmcnt({n})')
            A(f'v_xor_b32 {v(vT)}, {v(b+3)}, {v(vTAG)}')
            for k in range(1, n): A(f'v_xor_b32 {v(vT+1)}, {v(b+4*k+3)}, {v(vTAG)}\nv_or_b32 {v(vT)}, {v(vT)}, {v(vT+1)}')
            A(f'v_cmp_ne_u32 vcc, 0, {v(vT)}\ns_cbranch_vccz {ok}')
        A(f's_mov_b32 s{sCNT}, {spin}')
        for x in mk(base): A(x)
        if callable(delay): delay()
        else: A(f's_sleep {delay}')
        A(f'{lbl}:')
        for x in mk(alt): A(x)
        check(base, f'{lbl}_ok')
        for x in mk(base): A(x)
        check(alt, f'{lbl}_okb')
        A(f's_sub_u32 s{sCNT}, s{sCNT}, 1\ns_cmp_lg_u32 s{sCNT}, 0\ns_cbranch_scc1 {lbl}')
        A(f'v_mov_b32 {v(vT)}, 0\nv_mov_b32 {v(vT+1)}, {code}\nglobal_store_dword {v(vT)}, {v(vT+1)}, {sp(sDBG)}')
        A(f'{lbl}_okb:')
        use(alt)
        A(f's_branch {lbl}_done\n{lbl}_ok:')
        use(base)
        A(f'{lbl}_done:')
    def wsload(dst, voff, soff): return f'buffer_load_dwordx4 {v(dst,4)}, {v(voff)}, {srd(rWS)}, s{soff} offen sc1'
    def put3_bf16(r0, t, va):
        A(f'v_cvt_pk_bf16_f32 {v(t)}, {v(r0)}, {v(r0+1)}\nv_cvt_pk_bf16_f32 {v(t+1)}, {v(r0+2)}, {v(r0+2)}')
        A(f'ds_write_b16 {v(va)}, {v(t)}\nds_write_b16_d16_hi {v(va)}, {v(t)} offset:2\nds_write_b16 {v(va)}, {v(t+1)} offset:4')
    def fdiv(q, n, d, r, e):
        A(f'v_mul_f32 {v(q)}, {v(n)}, {v(r)}\nv_fma_f32 {v(e)}, -{v(q)}, {v(d)}, {v(n)}\nv_fma_f32 {v(q)}, {v(e)}, {v(r)}, {v(q)}')
    def trread_mfma(ntile, va, off2, acc, first, frag, aop, va2=None, extra=None):
        def rd(t):
            if va2 is None:
                A(f'ds_read_b64_tr_b16 {v(frag+4*t,2)}, {v(va)} offset:{32*t}')
                A(f'ds_read_b64_tr_b16 {v(frag+4*t+2,2)}, {v(va)} offset:{32*t+off2}')
            else:
                A(f'ds_read_b64_tr_b16 {v(frag+4*t,2)}, {v(va+(t&3))} offset:{128*(t>>2)}')
                A(f'ds_read_b64_tr_b16 {v(frag+4*t+2,2)}, {v(va2+(t&3))} offset:{128*(t>>2)}')
        pre = min(4, ntile)
        for t in range(pre): rd(t)
        for t in range(ntile):
            if t + pre < ntile: rd(t + pre)
            if extra and t + pre == ntile - 1: A(extra)
            left = min(ntile - 1, t + pre) - t
            A(f's_waitcnt lgkmcnt({2*left + (1 if extra and t + pre >= ntile - 1 else 0)})')
            c = '0' if first else v(acc+4*t, 4)
            A(f'v_mfma_f32_16x16x32_bf16 {v(acc+4*t,4)}, {v(aop,4)}, {v(frag+4*t,4)}, {c}')

    A(HEADER)
    A(f'; @launch grid=(256,1,1) block=(320,1,1) lds={LDS}')
    A('.amdgcn_target "amdgcn-amd-amdhsa--gfx950"\n.text')
    if al: A('.p2align 12')
    A(f'.globl {NAME}_kernel\n.p2align 8\n.type {NAME}_kernel,@function\n{NAME}_kernel:')
    A('s_cmp_ge_u32 s2, 256\ns_cbranch_scc1 L_end')
    A('s_load_dwordx16 s[4:19], s[0:1], 0\ns_load_dwordx8 s[20:27], s[0:1], 64')
    if fixdur: A('s_memrealtime s[96:97]')
    if stamps:
        A(f's_memrealtime {sp(sST)}')
        for i in range(2, 16): A(f's_mov_b32 s{sST+i}, 0')
    A(f'v_lshrrev_b32 {v(vT)}, 6, v0\nv_and_b32 {v(vLANE)}, 63, v0')
    A(f'v_readfirstlane_b32 s{sWAVE}, {v(vT)}')
    A(f'v_lshlrev_b32 {v(vL16)}, 4, {v(vLANE)}')
    A(f's_lshr_b32 s{sT0}, s2, 3\ns_lshl_b32 s{sT0}, s{sT0}, 2\ns_and_b32 s{sT1}, s2, 3\ns_add_u32 s{sRHO}, s{sT0}, s{sT1}')
    A(f's_bfe_u32 s{sHALF}, s2, 0x10002\ns_lshr_b32 s{sB}, s{sRHO}, 5\ns_and_b32 s{sH}, s{sRHO}, 31\ns_lshl_b32 s{sJ}, s{sB}, 1\ns_add_u32 s{sJ}, s{sJ}, s{sHALF}')
    A(f's_mul_i32 s{sU2}, s{sH}, 3\ns_add_u32 s{sU2}, s{sU2}, s{sJ}')
    A(f's_mov_b32 s{sSC}, {f2u(192**-0.5):#x}\ns_mov_b32 s{sL2E}, {f2u(1.4426950408889634):#x}')
    def ws_srd():
        A(f's_mov_b32 s{rWS}, s{sWS}\ns_mov_b32 s{rWS+1}, s{sWS+1}')
    A(f's_mov_b32 s{rWS+2}, {WSZ}\ns_mov_b32 s{rWS+3}, 0x20000')
    def vote_slot(src, sidx, sslot):
        A(f's_mul_i32 s{sidx}, s{src}, 3\ns_lshr_b32 s{sidx}, s{sidx}, 5\ns_lshl_b32 s{sslot}, s{sidx}, 5\ns_add_u32 s{sslot}, s{sslot}, 2\ns_mul_i32 s{sslot}, s{sslot}, 43691\ns_lshr_b32 s{sslot}, s{sslot}, 17\ns_sub_u32 s{sslot}, s{src}, s{sslot}')
    sIDX, sSLT = 40, 41
    A(f's_cmp_eq_u32 s{sWAVE}, 4\ns_cbranch_scc0 L_noprobe')
    if prio: A(f's_setprio {prio}')
    vote_slot(2, sIDX, sSLT)
    A(f's_cmp_ge_u32 s{sIDX}, 12\ns_cselect_b32 s{sT0}, 12, 0\ns_sub_u32 s{sT0}, s{sIDX}, s{sT0}')
    A(f's_lshl_b32 s{sT0}, s{sT0}, 3\ns_and_b32 s{sT1}, s{sSLT}, 7\ns_add_u32 s{sT0}, s{sT0}, s{sT1}\ns_lshl_b32 s{sT0}, s{sT0}, 21')
    A(f's_lshr_b32 s{sT1}, s{sSLT}, 3\ns_lshl_b32 s{sT1}, s{sT1}, 12\nv_mov_b32 {v(vT+4)}, 0\ns_mov_b64 exec, 1\ns_cmp_ge_u32 s{sIDX}, 12')
    A('s_waitcnt lgkmcnt(0)')
    A(f's_cselect_b32 s{sP}, s{sV}, s{sK}\ns_cselect_b32 s{sP+1}, s{sV+1}, s{sK+1}\ns_add_u32 s{sP}, s{sP}, s{sT0}\ns_addc_u32 s{sP+1}, s{sP+1}, 0')
    A(f's_bfe_u32 s{sT0}, s{sP}, 0x10015\ns_lshl_b32 s{sT0}, s{sT0}, 13\ns_add_u32 s{sT0}, s{sT0}, s{sT1}')
    A(f'v_mov_b32 {v(vT)}, s{sT0}\nv_xor_b32 {v(vT+1)}, 0x2000, {v(vT)}')
    A(f'global_load_dword {v(vT+2)}, {v(vT)}, {sp(sP)} nt\nglobal_load_dword {v(vT+3)}, {v(vT+1)}, {sp(sP)} nt\ns_mov_b64 exec, -1')
    if gord == 2: A(f'global_load_dword {v(vTAG)}, {v(vT+4)}, {sp(sWS)} sc1')
    A('s_barrier')
    ws_srd()
    e_ = 1 if gord == 2 else 0
    A(f's_waitcnt vmcnt({1+e_})\ns_memtime s[36:37]\ns_waitcnt vmcnt({e_})\ns_memtime s[38:39]')
    if gord != 2: A(f'global_load_dword {v(vTAG)}, {v(vT+4)}, {sp(sWS)} sc1')
    A('s_branch L_helper\nL_noprobe:')

    sO1, sO2, sOK = sN0, sN1, sFLV
    A(f's_cmp_ge_u32 s{sJ}, 3\ns_cbranch_scc0 L_w1mlp')
    A(f's_mov_b32 s{sBETA}, s{sH}\ns_sub_u32 s{sPI}, s{sJ}, 3\ns_mov_b32 s{sRS}, 12288\ns_mov_b32 s{sHASW1}, 1\ns_mul_i32 s{sO1}, s{sH}, 384')
    A('s_branch L_w1done\nL_w1mlp:')
    A(f's_mul_i32 s{sT1}, s{sU2}, 52429\ns_lshr_b32 s{sT1}, s{sT1}, 18')
    A(f's_mul_i32 s{sT2}, s{sT1}, 5\ns_sub_u32 s{sPI}, s{sU2}, s{sT2}\ns_add_u32 s{sBETA}, s{sT1}, 32\ns_mov_b32 s{sRS}, 3072')
    A(f's_cmp_lt_u32 s{sU2}, 80\ns_cselect_b32 s{sHASW1}, 1, 0\ns_and_b32 s{sT1}, s{sT1}, 7\ns_mul_i32 s{sO1}, s{sT1}, 384')
    A('L_w1done:')
    A(f's_lshl_b32 s{sT1}, s{sPI}, 2\ns_add_u32 s{sT1}, s{sT1}, s{sWAVE}\ns_lshl_b32 s{sT1}, s{sT1}, 5\ns_mul_i32 s{sT1}, s{sT1}, s{sRS}\ns_add_u32 s{sO1}, s{sO1}, s{sT1}')
    A(f's_mul_i32 s{sT1}, s{sRS}, 31\ns_add_u32 s{sT1}, s{sT1}, 384\ns_mul_i32 s{rW1+2}, s{sT1}, s{sHASW1}\ns_mov_b32 s{rW1+3}, 0x20000')
    if now: A(f's_mov_b32 s{rW1+2}, 0')
    for p in range(3):
        A(f'v_add_u32 {v(vT)}, {64*p}, {v(vLANE)}\nv_mul_u32_u24 {v(vT+1)}, 2731, {v(vT)}\nv_lshrrev_b32 {v(vT+1)}, 16, {v(vT+1)}')
        A(f'v_mul_u32_u24 {v(vT+2)}, 24, {v(vT+1)}\nv_sub_u32 {v(vT)}, {v(vT)}, {v(vT+2)}\nv_lshlrev_b32 {v(vT)}, 4, {v(vT)}')
        if not w1sw: A(f'v_mad_u32_u24 {v(vS+p)}, {v(vT+1)}, s{sRS}, {v(vT)}')
        A(f'v_and_b32 {v(vT+3)}, 6, {v(vT+1)}\nv_lshlrev_b32 {v(vT+3)}, 4, {v(vT+3)}\nv_xor_b32 {v(vT)}, {v(vT)}, {v(vT+3)}\nv_lshl_add_u32 {v(vSRC+p)}, {v(vT+2)}, 4, {v(vT)}')
        if w1sw: A(f'v_mad_u32_u24 {v(vS+p)}, {v(vT+1)}, s{sRS}, {v(vT)}')
    A(f's_mul_i32 s{sSLA}, s{sWAVE}, {RING}\ns_add_u32 s{sSLB}, s{sSLA}, {SLOT}\ns_mul_i32 s{sSLC}, s{sWAVE}, {WT}\ns_add_u32 s{sSLC}, s{sSLC}, {WREG}')
    A(f's_mul_i32 s{sT0}, s{sWAVE}, 1280\nv_lshlrev_b32 {v(vA)}, 2, {v(vLANE)}\nv_add_u32 {v(vA)}, s{sT0}, {v(vA)}\ns_mul_i32 s{sOK}, s{sRHO}, 1572864')
    A(f's_cmp_lt_u32 s{sBETA}, 40')
    A('s_waitcnt lgkmcnt(0)')
    pstamp(1)
    if stamps == 3: A(f's_cmp_lt_u32 s{sBETA}, 40')
    A(f's_cselect_b32 s{rW1}, s{sWG}, s{sWU}\ns_cselect_b32 s{rW1+1}, s{sWG+1}, s{sWU+1}\ns_cmp_lt_u32 s{sBETA}, 32\ns_cselect_b32 s{rW1}, s{sWQ}, s{rW1}\ns_cselect_b32 s{rW1+1}, s{sWQ+1}, s{rW1+1}')
    A(f's_add_u32 s{rW1}, s{rW1}, s{sO1}\ns_addc_u32 s{rW1+1}, s{rW1+1}, 0')
    if touch:
        A(f's_load_dword s96, {sp(rW1)}, 0\ns_load_dword s97, {sp(sX)}, 0\ns_load_dword s98, {sp(sK)}, s{sOK}')
    A('s_barrier')
    pstamp(2)
    for k in range(5): A(f'global_load_dword {v(vF+k)}, {v(vA)}, {sp(sX)} offset:{256*k}')
    def w1_issue():
        A(f's_lshl_b32 s{sT2}, s{sRS}, 3\ns_mov_b32 s{sT1}, 0')
        for i in range(12):
            A(f's_add_u32 m0, s{sSLC}, {1024*i}')
            A(f's_add_u32 s{sT1}, s{sT1}, s{sT2}' if i and i % 3 == 0 else 's_nop 0')
            A(f'buffer_load_dwordx4 {v(vS+i%3)}, {srd(rW1)}, s{sT1} offen {w1nt} lds')
    if late:
        assert up == 0
        A(f's_cmp_ge_u32 s{sJ}, 3\ns_cbranch_scc0 L_w1late')
    w1_issue()
    if late: A('L_w1late:')
    A(f'v_mov_b32 {v(vT)}, 0\nglobal_load_dword {v(vTAG)}, {v(vT)}, {sp(sWS)} sc1')
    pstamp(3)
    ws_srd()
    A(f's_add_u32 s{rK}, s{sK}, s{sOK}\ns_addc_u32 s{rK+1}, s{sK+1}, 0\ns_mov_b32 s{rK+3}, 0x20000')
    A(f's_add_u32 s{sVB}, s{sV}, s{sOK}\ns_addc_u32 s{sVB+1}, s{sV+1}, 0')
    A(f's_lshl_b32 s{sU}, s{sWAVE}, {umap}')
    if rot >= 0:
        rot3(sT1, sT2)
        A(f's_lshl_b32 s{sT1}, s{sT1}, 5\ns_add_u32 s{sU}, s{sU}, s{sT1}')
    A(f's_mov_b32 s{sU0}, s{sU}')
    block_params(1, sN0)
    dma_tile(sOFF, sSLA, None, 0, up, knt)
    A(f's_cmp_lt_u32 s{sJ}, 5\ns_cbranch_scc0 L_w2down')
    A(f's_mul_i32 s{sT1}, s{sH}, {192*1280}\ns_lshl_b32 s{sT2}, s{sJ}, 8\ns_add_u32 s{sT1}, s{sT1}, s{sT2}')
    if wlate:
        A(f's_lshl_b32 s{sT2}, s{sWAVE}, 6\ns_add_u32 s{sT1}, s{sT1}, s{sT2}\ns_add_u32 s{rW2}, s{sWO}, s{sT1}\ns_addc_u32 s{rW2+1}, s{sWO+1}, 0\ns_mov_b32 s{rW2+2}, {191*1280+64}\ns_mov_b32 s{rW2+3}, 0x20000\ns_branch L_w2fin')
    else: A(f's_add_u32 s{rW2}, s{sWO}, s{sT1}\ns_addc_u32 s{rW2+1}, s{sWO+1}, 0\ns_mov_b32 s{rW2+2}, {47*1280+256}\ns_branch L_w2done')
    A('L_w2down:')
    A(f's_sub_u32 s{sT3}, s{sU2}, 5\ns_mul_i32 s{sT1}, s{sT3}, 52429\ns_lshr_b32 s{sT1}, s{sT1}, 18\ns_mul_i32 s{sT2}, s{sT1}, 5\ns_sub_u32 s{sT2}, s{sT3}, s{sT2}')
    A(f's_mul_i32 s{sT1}, s{sT1}, {96*1280}\ns_lshl_b32 s{sT2}, s{sT2}, 8\ns_add_u32 s{sT1}, s{sT1}, s{sT2}')
    A(f's_add_u32 s{rW2}, s{sWD}, s{sT1}\ns_addc_u32 s{rW2+1}, s{sWD+1}, 0')
    A(f's_cmp_lt_u32 s{sT3}, 80\ns_cselect_b32 s{rW2+2}, {47*1280+256}, 0\ns_cmp_lt_u32 s{sWAVE}, 2\ns_cselect_b32 s{rW2+2}, s{rW2+2}, 0')
    A('L_w2done:')
    A(f's_mul_i32 s{sT1}, s{sWAVE}, {48*1280}\ns_add_u32 s{rW2}, s{rW2}, s{sT1}\ns_addc_u32 s{rW2+1}, s{rW2+1}, 0\ns_mov_b32 s{rW2+3}, 0x20000')
    if now: A(f's_mov_b32 s{rW2+2}, 0')
    if wlate: A('L_w2fin:')
    def vbases(hf):
        A(f'v_lshrrev_b32 {v(vT)}, 2, {v(vLANE)}')
        if hf: A(f'v_min_u32 {v(vT)}, 5, {v(vT)}\nv_add_u32 {v(vT)}, 16, {v(vT)}')
        A(f'v_bfe_u32 {v(vT+2)}, {v(vT)}, 1, 2\nv_mul_u32_u24 {v(vT)}, 384, {v(vT)}\nv_and_b32 {v(vT+3)}, 3, {v(vLANE)}\nv_lshl_add_u32 {v(vT)}, {v(vT+3)}, 3, {v(vT)}')
        for k in range(4): A(f'v_xor_b32 {v(vT+3)}, {k}, {v(vT+2)}\nv_lshl_add_u32 {v(vVB+4*hf+k)}, {v(vT+3)}, 5, {v(vT)}')
    if w1sw:
        vbases(0)
        for k in range(4): A(f'v_add_u32 {v(vAD+k)}, s{sSLC}, {v(vVB+k)}\nv_add_u32 {v(vAD+4+k)}, 6144, {v(vAD+k)}')
    if not w1sw: A(f'v_lshrrev_b32 {v(vT)}, 2, {v(vLANE)}\nv_mul_u32_u24 {v(vT)}, 384, {v(vT)}\nv_and_b32 {v(vT+1)}, 3, {v(vLANE)}\nv_lshl_add_u32 {v(vVA0)}, {v(vT+1)}, 3, {v(vT)}')
    if late:
        A(f's_cmp_ge_u32 s{sJ}, 3\ns_cbranch_scc1 L_xw\ns_waitcnt vmcnt(0)\nL_xw:')
    A(f's_waitcnt vmcnt({1+12+up})')
    pstamp(4)
    X = vF + 8
    for k in range(5):
        A(f'v_lshlrev_b32 {v(X+2*k)}, 16, {v(vF+k)}\nv_and_b32 {v(X+2*k+1)}, 0xffff0000, {v(vF+k)}')
    a = vT
    A(f'v_add_f32 {v(a)}, {v(X)}, {v(X+1)}')
    for k in range(2, 10): A(f'v_add_f32 {v(a)}, {v(a)}, {v(X+k)}')
    xsum(a, a+1)
    A(f'v_mul_f32 {v(a)}, {f2u(1/640):#x}, {v(a)}')
    b_ = vT+2
    A(f'v_sub_f32 {v(a+1)}, {v(X)}, {v(a)}\nv_mul_f32 {v(b_)}, {v(a+1)}, {v(a+1)}')
    for k in range(1, 10): A(f'v_sub_f32 {v(a+1)}, {v(X+k)}, {v(a)}\nv_fmac_f32 {v(b_)}, {v(a+1)}, {v(a+1)}')
    xsum(b_, a+1)
    A(f'v_mul_f32 {v(b_)}, {f2u(1/640):#x}, {v(b_)}')
    rnd2(a, b_, a+1)
    A(f'v_add_f32 {v(b_)}, {f2u(1e-5):#x}, {v(b_)}')
    rnd(b_, a+1)
    c_ = vT+3
    A(f'v_sqrt_f32 {v(c_)}, {v(b_)}\ns_nop 0\nv_rcp_f32 {v(c_+1)}, {v(c_)}\nv_fma_f32 {v(a+1)}, -{v(c_)}, {v(c_)}, {v(b_)}')
    A(f'v_mul_f32 {v(c_+1)}, 0.5, {v(c_+1)}\nv_fma_f32 {v(c_)}, {v(a+1)}, {v(c_+1)}, {v(c_)}')
    rnd(c_, a+1)
    A(f'v_rcp_f32 {v(c_+1)}, {v(c_)}')
    A(f'v_mov_b32 {v(vT+6)}, {v(X)}\nv_mov_b32 {v(vT+7)}, {v(X+1)}')
    for k in range(1, 5):
        A(f's_cmp_eq_u32 s{sPI}, {k}\ns_cselect_b64 vcc, -1, 0\nv_cndmask_b32 {v(vT+6)}, {v(vT+6)}, {v(X+2*k)}, vcc\nv_cndmask_b32 {v(vT+7)}, {v(vT+7)}, {v(X+2*k+1)}, vcc')
    A(f'v_sub_f32 {v(vT+6)}, {v(vT+6)}, {v(a)}\nv_sub_f32 {v(vT+7)}, {v(vT+7)}, {v(a)}')
    rnd2(vT+6, vT+7, a+1)
    fdiv(vT+8, vT+6, c_, c_+1, a+1)
    fdiv(vT+9, vT+7, c_, c_+1, a+1)
    A(f'v_cvt_pk_bf16_f32 {v(vT+8)}, {v(vT+8)}, {v(vT+9)}')
    A(f's_lshl_b32 s{sT1}, s{sWAVE}, 8\ns_add_u32 s{sT1}, s{sT1}, {XN}\nv_lshlrev_b32 {v(vA)}, 2, {v(vLANE)}\nv_add_u32 {v(vA)}, s{sT1}, {v(vA)}')
    A(f'ds_write_b32 {v(vA)}, {v(vT+8)}')
    A(f'v_bfe_u32 {v(vT)}, {v(vLANE)}, 2, 2\nv_lshlrev_b32 {v(vT)}, 8, {v(vT)}\nv_lshrrev_b32 {v(vT+1)}, 4, {v(vLANE)}\nv_lshl_add_u32 {v(vT)}, {v(vT+1)}, 3, {v(vT)}')
    A(f's_lshl_b32 s{sT1}, s{sWAVE}, 6\ns_add_u32 s{sT1}, s{sT1}, {XN}\nv_add_u32 {v(vA)}, s{sT1}, {v(vT)}')
    A('s_waitcnt lgkmcnt(0)\ns_barrier')
    if stamps == 1: stamp(1)
    pstamp(5); qstamp(1)
    A(f'ds_read2_b64 {v(vP,4)}, {v(vA)} offset0:0 offset1:4')
    if late:
        A(f's_cmp_ge_u32 s{sJ}, 3\ns_cbranch_scc1 L_w1early')
        w1_issue()
        A('L_w1early:')
    k0a = max(up, min(9, pace))
    dma_tile(sOFF, sSLA, pace, up, k0a, knt)
    if not w1sw: A(f'v_add_u32 {v(vA)}, s{sSLC}, {v(vVA0)}')
    A(f's_waitcnt vmcnt({k0a}) lgkmcnt(0)')
    pstamp(6); qstamp(2)
    if xtra >= 0:
        dma_tile(sOFF, sSLA, None, k0a, 9, knt)
        block_params(1, sN1)
        dma_tile(sOFF, sSLB, None, 0, xtra, knt)
    if w1sw: trread_mfma(12, vAD, 0, vO, True, vF, vP, vAD+4)
    else: trread_mfma(12, vA, 6144, vO, True, vF, vP)
    qstamp(3)
    A(f's_mul_i32 s{sT1}, s{sWAVE}, 3072\ns_add_u32 s{sT1}, s{sT1}, {RED}')
    A(f'v_lshrrev_b32 {v(vT)}, 4, {v(vLANE)}\nv_mul_u32_u24 {v(vT)}, 768, {v(vT)}\nv_and_b32 {v(vT+1)}, 15, {v(vLANE)}\nv_lshl_add_u32 {v(vT)}, {v(vT+1)}, 2, {v(vT)}\nv_add_u32 {v(vA)}, s{sT1}, {v(vT)}')
    A('s_nop 2')
    for t in range(12): A(f'ds_write_b32 {v(vA)}, {v(vO+4*t)} offset:{64*t}')
    A(f's_mul_i32 s{sT1}, s{sWAVE}, 768\ns_add_u32 s{sT1}, s{sT1}, {RED}\nv_mul_u32_u24 {v(vA)}, 12, {v(vLANE)}\nv_add_u32 {v(vA)}, s{sT1}, {v(vA)}')
    A('s_waitcnt lgkmcnt(0)')
    qstamp(4)
    A('s_barrier')
    qstamp(5)
    for w in range(4):
        for k in range(3): A(f'ds_read_b32 {v(vF+4*w+k)}, {v(vA)} offset:{3072*w+4*k}')
    A(f'v_lshrrev_b32 {v(vT)}, 4, {v(vLANE)}\nv_mul_u32_u24 {v(vT)}, 1280, {v(vT)}\nv_and_b32 {v(vT+1)}, 15, {v(vLANE)}\nv_lshl_add_u32 {v(vS)}, {v(vT+1)}, 4, {v(vT)}')
    A(f's_mul_i32 s{sT1}, s{sBETA}, 5\ns_add_u32 s{sT1}, s{sT1}, s{sPI}\ns_lshl_b32 s{sT1}, s{sT1}, 2\ns_add_u32 s{sT1}, s{sT1}, s{sWAVE}\ns_lshl_b32 s{sT1}, s{sT1}, 10\ns_add_u32 s{sT1}, s{sT1}, {P1}')
    A(f'v_add_u32 {v(vTAG)}, {TAGC:#x}, {v(vTAG)}')
    A('s_waitcnt lgkmcnt(0)')
    for k in range(3):
        A(f'v_add_f32 {v(vF+k)}, {v(vF+k)}, {v(vF+4+k)}\nv_add_f32 {v(vF+8+k)}, {v(vF+8+k)}, {v(vF+12+k)}')
    for k in range(3): A(f'v_add_f32 {v(vF+k)}, {v(vF+k)}, {v(vF+8+k)}')
    A(f'v_mov_b32 {v(vF+3)}, {v(vTAG)}')
    A(f's_cmp_eq_u32 s{sHASW1}, 0\ns_cbranch_scc1 L_nopub1')
    A(f'buffer_store_dwordx4 {v(vF,4)}, {v(vL16)}, {srd(rWS)}, s{sT1} offen sc1')
    A('L_nopub1:')
    qstamp(6)
    stamp(2)
    if xtra >= 0: dma_tile(sOFF, sSLB, pace, xtra, 9, knt)
    else: dma_tile(sOFF, sSLA, pace, k0a, 9, knt)
    A(f's_mov_b32 s{sT1}, 0')
    if wlate: A(f's_cmp_lt_u32 s{sJ}, 5\ns_cbranch_scc1 L_w2skip')
    for i in range(12):
        A(f's_add_u32 m0, s{sSLC}, {1024*i}\ns_waitcnt vmcnt({pace-1})')
        A(f'buffer_load_dwordx4 {v(vS)}, {srd(rW2)}, s{sT1} offen {w2nt} lds')
        if i == qdel: A(f'v_mov_b32 {v(vT)}, {FLG+32}\nv_mov_b32 {v(vT+1)}, 4\nds_write_b32 {v(vT)}, {v(vT+1)}')
        if i < 11: A(f's_add_u32 s{sT1}, s{sT1}, 5120')
    if wlate: A('L_w2skip:')
    if xtra < 0:
        block_params(1, sN1)
        if qdel >= 12 or wlate:
            qk = qdel2 if wlate else qdel - 11
            dma_tile(sOFF, sSLB, pace, 0, min(qk, 9), knt)
            if qk > 9: A(f's_waitcnt vmcnt({max(0, 9 + pace - 1 - qk)})')
            A(f'v_mov_b32 {v(vT)}, {FLG+32}\nv_mov_b32 {v(vT+1)}, 4\nds_write_b32 {v(vT)}, {v(vT+1)}')
            dma_tile(sOFF, sSLB, pace, min(qk, 9), 9, knt)
        else: dma_tile(sOFF, sSLB, pace, 0, 9, knt)
    for t in range(12):
        for r in range(4): A(f'v_mov_b32 {v(vO+4*t+r)}, 0')
    A(f'v_mov_b32 {v(vM)}, {f2u(-1e30):#x}\nv_mov_b32 {v(vML)}, {f2u(-1e30):#x}\nv_mov_b32 {v(vLS)}, 0\ns_mov_b32 s{sNEG}, 0xff80ff80')
    A(f'v_lshrrev_b32 {v(vT+1)}, 4, {v(vLANE)}')
    for hf in range(2):
        A(f'v_and_b32 {v(vT)}, 15, {v(vLANE)}')
        if hf: A(f'v_min_u32 {v(vT)}, 5, {v(vT)}\nv_add_u32 {v(vT)}, 16, {v(vT)}')
        A(f'v_and_b32 {v(vT+2)}, 6, {v(vT)}\nv_xor_b32 {v(vT+2)}, {v(vT+2)}, {v(vT+1)}\nv_mul_u32_u24 {v(vT)}, 384, {v(vT)}')
        A(f'v_lshl_add_u32 {v(vKB+2*hf)}, {v(vT+2)}, 4, {v(vT)}\nv_xor_b32 {v(vT+2)}, 4, {v(vT+2)}\nv_lshl_add_u32 {v(vKB+2*hf+1)}, {v(vT+2)}, 4, {v(vT)}')
    vbases(1)
    if not w1sw: vbases(0)
    A(f'v_cmp_gt_u32 vcc, 16, {v(vLANE)}\nv_mov_b32 {v(vT)}, 0xffff\nv_mov_b32 {v(vT+2)}, 0xffff0000\nv_cndmask_b32 {v(vM3)}, 0, -1, vcc')
    A(f'v_cmp_eq_u32 vcc, 1, {v(vT+1)}\ns_mul_i32 s{sT1}, s{sWAVE}, 1536\ns_add_u32 s{sT1}, s{sT1}, {STG}\nv_cndmask_b32 {v(vM2B)}, {v(vM3)}, {v(vT)}, vcc\nv_cndmask_b32 {v(vM2X)}, 0, {v(vT+2)}, vcc')
    A(f'v_lshl_add_u32 {v(vSK)}, {v(vT+1)}, 4, s{sT1}\nv_add_u32 {v(vSV)}, {22*64}, {v(vSK)}\nv_mov_b32 {v(vFA)}, {FLG+16}\nv_mov_b32 {v(vONE)}, 1')
    A(f'v_add_u32 {v(vT)}, 352, {v(vLANE)}\nv_cmp_gt_u32 vcc, 32, {v(vLANE)}\nv_add_u32 {v(vT+2)}, -32, {v(vLANE)}\ns_nop 0\nv_cndmask_b32 {v(vT)}, {v(vT+2)}, {v(vT)}, vcc\nv_lshl_add_u32 {v(vPA)}, {v(vT)}, 2, s{sT1}')
    A(f's_add_u32 s{sSTG}, s{sT1}, 128')
    A(f'v_lshlrev_b32 {v(vA)}, 4, {v(vT+1)}\nv_add_u32 {v(vA)}, {QL}, {v(vA)}\nv_mov_b32 {v(vT+2)}, {FLG}')
    A('s_waitcnt vmcnt(9)')
    if stamps == 2: stamp(1)
    A('s_barrier')
    stamp(3)
    A(f'ds_read_b64 {v(vT+4,2)}, {v(vT+2)}')
    for s in range(6): A(f'ds_read_b128 {v(vQ+4*s,4)}, {v(vA)} offset:{64*s}')
    A(f's_mov_b32 s{sT}, 0\ns_waitcnt lgkmcnt(6)')
    A(f'v_readfirstlane_b32 s{sFL}, {v(vT+4)}\nv_readfirstlane_b32 s{sFLV}, {v(vT+5)}')
    A(f's_nop 0\ns_mov_b64 {sp(sCM)}, 0')
    grp = [0x3f, 0xff << 6, 0x3f << 14]
    for i in range(3):
        A(f's_bitcmp1_b32 s{sFL}, {i}\ns_cselect_b32 s{sT1}, {grp[i]:#x}, 0\ns_or_b32 s{sCM}, s{sCM}, s{sT1}')
        gv = grp[i] << 26
        A(f's_bitcmp1_b32 s{sFLV}, {i}')
        if gv & 0xffffffff: A(f's_cselect_b32 s{sT1}, {gv & 0xffffffff:#x}, 0')
        if gv >> 32: A(f's_cselect_b32 s{sT2}, {gv >> 32:#x}, 0\ns_or_b32 s{sCM+1}, s{sCM+1}, s{sT2}')
        if gv & 0xffffffff: A(f's_or_b32 s{sCM}, s{sCM}, s{sT1}')
    for k in range(2):
        A(f's_bitcmp1_b32 s{sRHO}, 0\ns_cselect_b32 s{sT1}, s{sFL if k else sFLV}, s{sFLV if k else sFL}\ns_bitcmp1_b32 s{sT1}, 2\ns_cselect_b32 s{sT1}, {5 << (20+k):#x}, 0\ns_or_b32 s{sCM}, s{sCM}, s{sT1}')
    A(f's_sub_u32 s{sT1}, 0, s{sHALF}\ns_xor_b32 s{sCM}, s{sCM}, s{sT1}\ns_xor_b32 s{sCM+1}, s{sCM+1}, s{sT1}')
    A(f's_mov_b32 s{sPUB}, 4\ns_waitcnt lgkmcnt(0)')
    def arrive():
        A(f's_mov_b64 exec, 1\nds_add_u32 {v(vFA)}, {v(vONE)}\ns_mov_b64 exec, -1')
    chk = f'ds_read_b128 {v(vR,4)}, {v(vFA)}'
    def step_wait(lbl):
        if not sync: return
        A(f'{lbl}:\ns_waitcnt lgkmcnt(0)\nv_readfirstlane_b32 s{sT1}, {v(vR)}\ns_nop 0\ns_cmp_ge_u32 s{sT1}, s{sPUB}\ns_cbranch_scc1 {lbl}_ok')
        A(f'{chk}\ns_branch {lbl}\n{lbl}_ok:')
    def wo_frags(vA=vA):
        A(f'v_lshrrev_b32 {v(vT)}, 2, {v(vLANE)}\nv_lshlrev_b32 {v(vT)}, 8, {v(vT)}\nv_and_b32 {v(vT+1)}, 3, {v(vLANE)}\nv_lshl_add_u32 {v(vT)}, {v(vT+1)}, 3, {v(vT)}')
        A(f's_lshl_b32 s{sT3}, s{sWAVE}, 6\ns_add_u32 s{sT3}, s{sT3}, {WREG}\nv_add_u32 {v(vA)}, s{sT3}, {v(vT)}')
        for s in range(6):
            for t in range(2):
                f = vW + 24*t + 4*s
                A(f'ds_read_b64_tr_b16 {v(f,2)}, {v(vA)} offset:{8192*s+32*t}\nds_read_b64_tr_b16 {v(f+2,2)}, {v(vA)} offset:{8192*s+32*t+4096}')
            if s % 2 == 1 and s < 5: A('s_waitcnt lgkmcnt(4)')
    A('.p2align 6\nL_kloop:')
    for k in range(4): A(f'v_add_u32 {v(vAD+k)}, s{sSLA}, {v(vKB+k)}')
    A('s_waitcnt vmcnt(9)')
    arrive()
    for kt in range(2):
        for s in range(6):
            if not (nocomp & 1): A(f'ds_read_b128 {v(vF+24*kt+4*s,4)}, {v(vAD+2*kt+(s&1))} offset:{128*(s>>1)}')
    A(chk)
    A(f'v_and_or_b32 {v(vT+8)}, {v(vM2X)}, s{sN0}, {v(vM2B)}\ns_mov_b32 s{sN0}, s{sN1}')
    A(f's_cmp_lg_u32 s{sT}, 22\ns_cbranch_scc1 L_knosw')
    A(f's_mov_b32 s{rK}, s{sVB}\ns_mov_b32 s{rK+1}, s{sVB+1}\ns_cmp_ge_u32 s{sU0}, 8\ns_cselect_b32 s{sU}, -8, 88\ns_add_u32 s{sU}, s{sU}, s{sU0}')
    A('L_knosw:')
    block_params(0, sN1)
    for kt in range(2):
        for s in range(6):
            i = 6*kt + s
            A(f's_waitcnt lgkmcnt({12-i})')
            c = '0' if s == 0 else v(vS+4*kt, 4)
            A(f'v_mfma_f32_16x16x32_bf16 {v(vS+4*kt,4)}, {v(vF+4*i,4)}, {v(vQ+4*s,4)}, {c}')
    step_wait('L_ks')
    dma_tile(sOFF, sSLA, None, 0, pre, knt)
    A(f's_nop {max(0, 7 - 3*pre)}')
    for k in range(4): rnd2(vS+2*k, vS+2*k+1, vT+k)
    for k in range(8): A(f'v_mul_f32 {v(vS+k)}, s{sSC}, {v(vS+k)}')
    for k in range(4): A(f'v_cvt_pk_bf16_f32 {v(vT+k)}, {v(vS+2*k)}, {v(vS+2*k+1)}')
    A(f'v_bfi_b32 {v(vT+2)}, {v(vT+8)}, {v(vT+2)}, s{sNEG}\nv_bfi_b32 {v(vT+3)}, {v(vM3)}, {v(vT+3)}, s{sNEG}')
    A(f's_mov_b32 exec_lo, 0x00010001\ns_mov_b32 exec_hi, 0x00010001\nds_write_b128 {v(vSK)}, {v(vT,4)}\ns_mov_b64 exec, -1\nv_add_u32 {v(vSK)}, 64, {v(vSK)}')
    A(f's_cmp_eq_u32 s{sT}, 23\ns_cbranch_scc1 L_spa')
    kbal = bal and min(cpl) < 20
    if kbal:
        A(f'v_readfirstlane_b32 s{sT1}, {v(vR+2)}\ns_nop 0\ns_cmp_gt_i32 s{sT1}, s{sT}\ns_cbranch_scc1 L_kup')
        if bneg: A(f's_add_i32 s{sT1}, s{sT1}, s{sT}\ns_cmp_lt_i32 s{sT1}, 0\ns_cbranch_scc1 L_kdn')
    dma_tile(sOFF, sSLA, D, pre, 9, knt)
    A('L_kpe:')
    A(f's_mov_b32 s{sT1}, s{sSLA}\ns_mov_b32 s{sSLA}, s{sSLB}\ns_mov_b32 s{sSLB}, s{sT1}')
    A(f's_add_u32 s{sT}, s{sT}, 1\ns_add_u32 s{sPUB}, s{sPUB}, 4\ns_branch L_kloop')
    A('.p2align 6\nL_vloop:')
    for k in range(8): A(f'v_add_u32 {v(vAD+k)}, s{sSLA}, {v(vVB+k)}')
    A(f'ds_read_b128 {v(vP,4)}, {v(vSV)}\ns_cmp_eq_u32 s{sT}, 25\ns_cselect_b32 s{sT1}, {64-1536}, 64\nv_add_u32 {v(vSV)}, s{sT1}, {v(vSV)}')
    A(f's_cmp_lg_u32 s{sT}, 24\ns_cbranch_scc1 L_vnosw\ns_mov_b32 s{sU}, s{sU0}\nL_vnosw:')
    block_params(2, sN1)
    if wlate: A(f's_cmp_eq_u32 s{sT}, 47\ns_cbranch_scc1 L_vw12')
    A('s_waitcnt vmcnt(9)')
    if wlate: A('L_vw12:\ns_waitcnt vmcnt(12)')
    arrive()
    if not (nocomp & 2): trread_mfma(12, vAD, 0, vO, False, vF, vP, vAD+4, chk)
    else: A(chk)
    A(f's_cmp_eq_u32 s{sT}, 47\ns_cbranch_scc1 L_loopx')
    step_wait('L_vs')
    if wlate: A(f's_cmp_eq_u32 s{sT}, 46\ns_cbranch_scc1 L_wl')
    dma_tile(sOFF, sSLA, None, 0, pre, vnt)
    A(f's_cmp_eq_u32 s{sT}, 27\ns_cbranch_scc1 L_spb')
    A('L_vmid:')
    if bal:
        A(f'v_readfirstlane_b32 s{sT2}, {v(vR+2)}\ns_nop 0')
        if bneg and lastneg: A(f's_add_i32 s{sT1}, s{sT2}, s{sT}\ns_cmp_lt_i32 s{sT1}, 0\ns_cbranch_scc1 L_vdn')
    if nend:
        A(f's_cmp_ge_u32 s{sT}, {46-nend}\ns_cbranch_scc0 L_vpc')
        dma_tile(sOFF, sSLA, Dend if Dend < 18 else None, pre, 9, vnt)
        A('s_branch L_vpe\nL_vpc:')
    if bal:
        A(f's_cmp_gt_i32 s{sT2}, s{sT}\ns_cbranch_scc1 L_vup')
        if bneg and not lastneg: A(f's_add_i32 s{sT1}, s{sT2}, s{sT}\ns_cmp_lt_i32 s{sT1}, 0\ns_cbranch_scc1 L_vdn')
    dma_tile(sOFF, sSLA, D, pre, 9, vnt)
    A('L_vpe:')
    A(f's_mov_b32 s{sT1}, s{sSLA}\ns_mov_b32 s{sSLA}, s{sSLB}\ns_mov_b32 s{sSLB}, s{sT1}')
    A(f's_add_u32 s{sT}, s{sT}, 1\ns_add_u32 s{sPUB}, s{sPUB}, 4\ns_branch L_vloop')
    A('L_loopx:')
    stamp(4)
    if lred:
        A('s_mov_b64 exec, 0xffff\ns_nop 3')
        for t in range(12): A(f'ds_write_b32 {v(vSK)}, {v(vO+4*t)} offset:{64*t}')
        A('s_mov_b64 exec, -1')
    else:
        xsum(vLS, vT)
        A(f's_lshl_b32 s{sT1}, s{sWAVE}, 10\ns_add_u32 s{sT1}, s{sT1}, {OCB}\nv_lshlrev_b32 {v(vA)}, 2, {v(vLANE)}\nv_add_u32 {v(vA)}, s{sT1}, {v(vA)}')
        A('s_mov_b64 exec, 0xffff')
        for t in range(12): A(f'ds_write_b32 {v(vA)}, {v(vO+4*t)} offset:{64*t}')
        A(f's_mov_b64 exec, 1\nds_write2_b32 {v(vA)}, {v(vML)}, {v(vLS)} offset0:192 offset1:193\ns_mov_b64 exec, -1')
    A('s_waitcnt lgkmcnt(0)\ns_barrier')
    A(f's_cmp_ge_u32 s{sJ}, 5\ns_cbranch_scc1 L_sdone')
    if not wearly and not wlate and po >= 0: wo_frags()
    A(f's_lshl_b32 s{sT1}, s{sH}, 3\ns_lshl_b32 s{sT2}, s{sWAVE}, 1\ns_add_u32 s{sT1}, s{sT1}, s{sT2}\ns_lshl_b32 s{sT1}, s{sT1}, 11\ns_add_u32 s{sT1}, s{sT1}, {OP}\ns_add_u32 s{sT2}, s{sT1}, 2048')
    A(f'v_mov_b32 {v(vA)}, 1024')
    def o_addr():
        A(f's_mul_i32 s{sT3}, s{sWAVE}, 384\ns_add_u32 s{sT3}, s{sT3}, {OBF}\nv_mul_u32_u24 {v(vAD)}, 6, {v(vLANE)}\nv_add_u32 {v(vAD)}, s{sT3}, {v(vAD)}')
        A(f'v_bfe_u32 {v(vT+2)}, {v(vLANE)}, 2, 2\nv_mul_u32_u24 {v(vT+2)}, 384, {v(vT+2)}\nv_lshrrev_b32 {v(vT+3)}, 4, {v(vLANE)}\nv_lshl_add_u32 {v(vT+2)}, {v(vT+3)}, 3, {v(vT+2)}\nv_add_u32 {v(vAD+1)}, {OBF}, {v(vT+2)}')
        A(f's_lshl_b32 s{sN0}, s{sJ}, 2\ns_add_u32 s{sN0}, s{sN0}, s{sWAVE}\ns_lshl_b32 s{sN0}, s{sN0}, 5\ns_add_u32 s{sN0}, s{sN0}, s{sH}\ns_lshl_b32 s{sN0}, s{sN0}, {9 if y8 else 10}\ns_add_u32 s{sN0}, s{sN0}, {YP}')
        if po < 0 and not wearly: wo_frags(vAD+2)
    if po >= 0: o_addr()
    mko = lambda b: [wsload(b, vL16, sT1), wsload(b+4, vL16, sT2), wsload(b+8, vA, sT1), wsload(b+12, vA, sT2)]
    w0_, w1_, l0_, l1_, on_ = vQ, vQ+1, vQ+2, vQ+3, vQ+4
    def useo(b):
        A(f'v_max_f32 {v(vT)}, {v(b+8)}, {v(b+12)}\nv_sub_f32 {v(w0_)}, {v(b+8)}, {v(vT)}\nv_sub_f32 {v(w1_)}, {v(b+12)}, {v(vT)}\nv_exp_f32 {v(w0_)}, {v(w0_)}\nv_exp_f32 {v(w1_)}, {v(w1_)}\ns_nop 0')
        A(f'v_mul_f32 {v(l0_)}, {v(b+9)}, {v(w0_)}\nv_fmac_f32 {v(l0_)}, {v(b+13)}, {v(w1_)}\nv_rcp_f32 {v(l1_)}, {v(l0_)}')
        for k in range(3): A(f'v_mul_f32 {v(on_+k)}, {v(b+k)}, {v(w0_)}\nv_fmac_f32 {v(on_+k)}, {v(b+4+k)}, {v(w1_)}')
    if wlate:
        for x in mko(vF): A(x)
        A(f'v_lshrrev_b32 {v(vT)}, 2, {v(vLANE)}\nv_lshlrev_b32 {v(vT)}, 6, {v(vT)}\nv_and_b32 {v(vT+1)}, 3, {v(vLANE)}\nv_lshl_add_u32 {v(vT)}, {v(vT+1)}, 3, {v(vT)}\nv_add_u32 {v(vAL)}, s{sSLC}, {v(vT)}')
        A('s_waitcnt vmcnt(4)')
        for s_ in range(6):
            for t in range(2):
                f = vW + 24*t + 4*s_
                A(f'ds_read_b64_tr_b16 {v(f,2)}, {v(vAL)} offset:{2048*s_+32*t}\nds_read_b64_tr_b16 {v(f+2,2)}, {v(vAL)} offset:{2048*s_+32*t+1024}')
            if s_ % 2 == 1 and s_ < 5: A('s_waitcnt lgkmcnt(4)')
        A(f's_mov_b32 s{sCNT}, {spin}\ns_branch L_po_w')
        poll('L_po', mko(vF), [vF+3, vF+7, vF+11, vF+15], 4, 'L_po_w')
        useo(vF)
    elif po: poll2('L_po', mko, 4, vF, vF+16, 4, po if po > 0 else o_addr, useo)
    else:
        (polls if sel & 1 else poll)('L_po', mko(vF), [vF+3, vF+7, vF+11, vF+15], 4)
        useo(vF)
    stamp(5)
    for k in range(3): fdiv(on_+4+k, on_+k, l0_, l1_, vT)
    put3_bf16(on_+4, vT, vAD)
    A('s_waitcnt lgkmcnt(0)\ns_barrier')
    for s in range(6): A(f'ds_read2_b64 {v(vO+4*s,4)}, {v(vAD+1)} offset0:{8*s} offset1:{8*s+4}')
    for s in range(6):
        A(f's_waitcnt lgkmcnt({5-s})')
        for t in range(2):
            c = '0' if s == 0 else v(vS+4*t, 4)
            A(f'v_mfma_f32_16x16x32_bf16 {v(vS+4*t,4)}, {v(vO+4*s,4)}, {v(vW+24*t+4*s,4)}, {c}')
    if y8:
        A(f'v_mov_b32 {v(vT+1)}, {v(vTAG)}\nv_lshlrev_b32 {v(vA)}, 3, {v(vLANE)}\ns_nop 5')
        A(f'v_cvt_pk_bf16_f32 {v(vT)}, {v(vS)}, {v(vS+4)}')
        A(f'buffer_store_dwordx2 {v(vT,2)}, {v(vA)}, {srd(rWS)}, s{sN0} offen sc1')
    else:
        A(f'v_mov_b32 {v(vT+2)}, {v(vTAG)}\nv_mov_b32 {v(vT+3)}, {v(vTAG)}\ns_nop 5')
        A(f'v_mov_b32 {v(vT)}, {v(vS)}\nv_mov_b32 {v(vT+1)}, {v(vS+4)}')
        A(f'buffer_store_dwordx4 {v(vT,4)}, {v(vL16)}, {srd(rWS)}, s{sN0} offen sc1')
    A('L_sdone:')
    if fixdur:
        A(f'L_fix:\ns_memrealtime s[98:99]\ns_waitcnt lgkmcnt(0)\ns_sub_u32 s98, s98, s96\ns_cmp_lt_u32 s98, {fixdur*100}\ns_cbranch_scc1 L_fix')
    stamp(6)
    if stamps:
        A(f's_cmp_lg_u32 s{sWAVE}, 0\ns_cbranch_scc1 L_end\ns_waitcnt vmcnt(0)')
        stamp(7)
        write_stamps(0, 's')
    A('s_endpgm')

    def soft_pass(n, addr, off):
        X = vF
        for i in range(n): A(f'ds_read_b32 {v(vT+8+i)}, {v(addr)} offset:{off*i}')
        for i in range(n):
            A(f's_waitcnt lgkmcnt({n-1-i})\nv_lshlrev_b32 {v(X+2*i)}, 16, {v(vT+8+i)}\nv_and_b32 {v(X+2*i+1)}, 0xffff0000, {v(vT+8+i)}\nv_max3_f32 {v(vM)}, {v(X+2*i)}, {v(X+2*i+1)}, {v(vM)}')
        xsum(vM, vT, 'v_max_f32')
        A(f'v_mul_f32 {v(vT)}, s{sL2E}, {v(vM)}\nv_sub_f32 {v(vAL)}, {v(vML)}, {v(vT)}\nv_mov_b32 {v(vML)}, {v(vT)}\nv_exp_f32 {v(vAL)}, {v(vAL)}')
        for k in range(2*n): A(f'v_fma_f32 {v(X+k)}, {v(X+k)}, s{sL2E}, -{v(vML)}')
        for k in range(2*n): A(f'v_exp_f32 {v(X+k)}, {v(X+k)}')
        A(f'v_mul_f32 {v(vLS)}, {v(vLS)}, {v(vAL)}')
        for i in range(n):
            A(f'v_cvt_pk_bf16_f32 {v(vT+8+i)}, {v(X+2*i)}, {v(X+2*i+1)}\nv_add_f32 {v(vLS)}, {v(vLS)}, {v(X+2*i)}\nv_add_f32 {v(vLS)}, {v(vLS)}, {v(X+2*i+1)}')
            A(f'ds_write_b32 {v(addr)}, {v(vT+8+i)} offset:{off*i}')
    if kbal:
        A('L_kup:')
        dma_tile(sOFF, sSLA, D+bal, pre, 9, knt)
        A('s_branch L_kpe\nL_kdn:')
        dma_tile(sOFF, sSLA, D-bneg, pre, 9, knt)
        A('s_branch L_kpe')
    if bal:
        A('; ---- a workgroup that lags the others keeps more loads in flight for a few steps')
        A('L_vup:')
        dma_tile(sOFF, sSLA, D+bal, pre, 9, vnt)
        A('s_branch L_vpe')
        if bneg:
            A('L_vdn:')
            dma_tile(sOFF, sSLA, D-bneg, pre, 9, vnt)
            A('s_branch L_vpe')
    if wlate:
        A('; ---- nothing left to stream: the wo slice of this wave (192 rows x 32 columns) follows the last V block')
        A(f'L_wl:\ns_cmp_ge_u32 s{sJ}, 5\ns_cselect_b32 s{rW2+2}, 0, s{rW2+2}')
        A(f'v_lshrrev_b32 {v(vT)}, 2, {v(vLANE)}\nv_mul_u32_u24 {v(vT)}, 1280, {v(vT)}\nv_and_b32 {v(vT+1)}, 3, {v(vLANE)}\nv_lshl_add_u32 {v(vA)}, {v(vT+1)}, 4, {v(vT)}\ns_mov_b32 s{sT1}, 0')
        for i in range(12):
            A(f's_add_u32 m0, s{sSLA if False else sSLC}, {1024*i}')
            A(f's_add_u32 s{sT1}, s{sT1}, 20480' if i else 's_nop 0')
            A(f'buffer_load_dwordx4 {v(vA)}, {srd(rW2)}, s{sT1} offen {w2nt} lds')
        A('s_branch L_vpe')
    A('L_spa:')
    soft_pass(1, vPA, 0)
    A('s_branch L_vmid')
    A('L_spb:')
    if not noex:
        A(f's_mov_b32 s{sCNT}, {spin*8}')
        A(f'L_vchk:\ns_waitcnt lgkmcnt(0)\nv_readfirstlane_b32 s{sT1}, {v(vR+1)}\ns_sub_u32 s{sCNT}, s{sCNT}, 1\ns_cmp_eq_u32 s{sCNT}, 0\ns_cbranch_scc1 L_vnoc')
        A(f's_cmp_lg_u32 s{sT1}, 0\ns_cbranch_scc1 L_vnoc\n{chk}\ns_branch L_vchk\nL_vnoc:')
    A(f'v_lshl_add_u32 {v(vPA)}, {v(vLANE)}, 2, s{sSTG}')
    soft_pass(5, vPA, 256)
    for t in range(12): A(f'v_mul_f32 {v(vO+4*t)}, {v(vAL)}, {v(vO+4*t)}')
    if lred:
        xsum(vLS, vT)
        A(f's_lshl_b32 s{sT1}, s{sWAVE}, 10\ns_add_u32 s{sT1}, s{sT1}, {OCB}\nv_lshlrev_b32 {v(vSK)}, 2, {v(vLANE)}\nv_add_u32 {v(vSK)}, s{sT1}, {v(vSK)}')
        A(f's_mov_b64 exec, 1\nds_write2_b32 {v(vSK)}, {v(vML)}, {v(vLS)} offset0:192 offset1:193\ns_mov_b64 exec, -1')
    if wearly == 1:
        A(f's_cmp_ge_u32 s{sJ}, 5\ns_cbranch_scc1 L_vmid\ns_waitcnt lgkmcnt(0)')
        wo_frags()
        A('s_waitcnt lgkmcnt(0)')
    if wearly == 2 and not wlate:
        A(f's_cmp_ge_u32 s{sJ}, 5\ns_cbranch_scc1 L_vmid')
        A(f'v_lshrrev_b32 {v(vT)}, 2, {v(vLANE)}\nv_lshlrev_b32 {v(vT)}, 8, {v(vT)}\nv_and_b32 {v(vT+1)}, 3, {v(vLANE)}\nv_lshl_add_u32 {v(vT)}, {v(vT+1)}, 3, {v(vT)}')
        A(f's_lshl_b32 s{sT1}, s{sWAVE}, 6\ns_add_u32 s{sT1}, s{sT1}, {WREG}\nv_add_u32 {v(vA)}, s{sT1}, {v(vT)}')
        for s_ in range(max(6, 9-pre)):
            if pre + s_ < 9: dma_tile(sOFF, sSLA, D, pre + s_, pre + s_ + 1, vnt)
            if s_ < 6:
                A('s_waitcnt lgkmcnt(4)')
                for t in range(2):
                    f = vW + 24*t + 4*s_
                    A(f'ds_read_b64_tr_b16 {v(f,2)}, {v(vA)} offset:{8192*s_+32*t}\nds_read_b64_tr_b16 {v(f+2,2)}, {v(vA)} offset:{8192*s_+32*t+4096}')
        A('s_waitcnt lgkmcnt(0)\ns_branch L_vpe')
    A('s_branch L_vmid')
    def hwait(n, lbl, hsl=hsl):
        A(f's_mov_b32 s{sCNT}, {spin*8}\n{lbl}:\nds_read_b32 {v(vT)}, {v(vXF)}\ns_sub_u32 s{sCNT}, s{sCNT}, 1\ns_cmp_eq_u32 s{sCNT}, 0\ns_cbranch_scc1 {lbl}_ok')
        A(f's_waitcnt lgkmcnt(0)\nv_readfirstlane_b32 s{sT0}, {v(vT)}\ns_nop 0\ns_cmp_ge_u32 s{sT0}, {4*n}\ns_cbranch_scc1 {lbl}_ok\n{f"s_sleep {hsl}" if hsl and not nosleep else ""}\ns_branch {lbl}\n{lbl}_ok:')
    vXA, vXF, vXB = vQ+12, vQ+13, vQ+14
    A('L_helper:')
    inhelper[0] = True
    A(f's_getreg_b32 s{sT3}, hwreg(HW_REG_XCC_ID, 2, 1)')
    A('s_waitcnt lgkmcnt(0)')
    A(f's_sub_u32 s{sT0}, s38, s36\ns_min_u32 s{sT0}, s{sT0}, {cap}\ns_sub_u32 s{sT0}, s{sT0}, {thr}\ns_sub_u32 s{sT1}, 0, s{sT0}')
    A(f's_cmp_eq_u32 s{sT3}, 0\ns_cselect_b32 s{sT0}, s{sT0}, s{sT1}')
    A(f'v_mov_b32 {v(vP)}, s{sT0}\nv_mov_b32 {v(vP+1)}, s{sT3}\nv_mov_b32 {v(vP+2)}, 0')
    A(f's_lshl_b32 s{sT0}, s{sIDX}, 4\ns_add_u32 s{sT0}, s{sT0}, s{sSLT}\ns_lshl_b32 s{sT0}, s{sT0}, 4\ns_add_u32 s{sT0}, s{sT0}, {VOTE}')
    if gord == 1: A('s_barrier')
    A(f's_waitcnt vmcnt(0)\nv_add_u32 {v(vTAG)}, {TAGC:#x}, {v(vTAG)}\nv_mov_b32 {v(vP+3)}, {v(vTAG)}')
    A(f's_mov_b64 exec, 1\nbuffer_store_dwordx4 {v(vP,4)}, {v(vL16)}, {srd(rWS)}, s{sT0} offen sc1\ns_mov_b64 exec, -1')
    if htouch:
        A(f's_mul_i32 s{sT0}, s{sRHO}, 1572864\ns_load_dword s96, {sp(sV)}, s{sT0}\ns_add_u32 s{sT0}, s{sT0}, 1572860\ns_load_dword s97, {sp(sK)}, s{sT0}\ns_load_dword s98, {sp(sV)}, s{sT0}')
        if htouch > 1: A(f's_mul_i32 s{sT0}, s{sH}, {192*1280}\ns_load_dword s99, {sp(sWO)}, s{sT0}\ns_load_dword s96, {sp(sWD)}, 0')
    sCA, sCB2 = 42, 43
    A(f's_mul_i32 s{sT0}, s{sRHO}, 3\ns_lshr_b32 s{sCA}, s{sT0}, 5\ns_add_u32 s{sT0}, s{sT0}, 2\ns_lshr_b32 s{sCB2}, s{sT0}, 5')
    A(f'v_lshrrev_b32 {v(vT)}, 5, {v(vLANE)}\nv_mul_u32_u24 {v(vT)}, 12, {v(vT)}\nv_bfe_u32 {v(vT+1)}, {v(vLANE)}, 4, 1\ns_sub_u32 s{sT0}, s{sCB2}, s{sCA}\nv_mul_u32_u24 {v(vT+1)}, s{sT0}, {v(vT+1)}')
    A(f'v_add3_u32 {v(vT)}, {v(vT)}, {v(vT+1)}, s{sCA}\nv_and_b32 {v(vT+1)}, 15, {v(vLANE)}\nv_min_u32 {v(vT+1)}, 9, {v(vT+1)}\nv_lshlrev_b32 {v(vT+1)}, 4, {v(vT+1)}\nv_lshl_add_u32 {v(vAL)}, {v(vT)}, 8, {v(vT+1)}')
    A(f's_andn2_b32 s{sT1}, s2, 4')
    vote_slot(sT1, sT2, sT3)
    A(f's_lshl_b32 s{sT2}, s{sT2}, 4\ns_add_u32 s{sT2}, s{sT2}, s{sT3}\ns_lshl_b32 s{sT2}, s{sT2}, 4\nv_mov_b32 {v(vM)}, s{sT2}\ns_mov_b32 s{rK+5}, {VOTE}')
    A(f's_mul_i32 s{sT0}, s{sH}, {5*4096}\ns_lshl_b32 s{sT1}, s{sB}, 10\ns_add_u32 s{sT0}, s{sT0}, s{sT1}\ns_add_u32 s{rK}, s{sT0}, {P1}')
    for p in range(1, 5): A(f's_add_u32 s{rK+p}, s{rK}, {4096*p}')
    A(f's_sub_u32 s{sU2}, s{sU2}, 5')
    A(f'v_mov_b32 {v(vS+1)}, 0\nv_mov_b32 {v(vS+6)}, 0\nv_mov_b32 {v(vS+7)}, 0')
    A(f'v_mul_u32_u24 {v(vA)}, 6, {v(vLANE)}\nv_add_u32 {v(vA)}, {QL}, {v(vA)}')
    if qdel >= 0: A(f'v_mov_b32 {v(vXF)}, {FLG+32}\nv_mov_b32 {v(vT)}, 0\nds_write_b32 {v(vXF)}, {v(vT)}\ns_waitcnt lgkmcnt(0)')
    A('s_barrier' if gord == 1 else 's_barrier\ns_barrier')
    if qdel >= 0: hwait(1, 'L_hwq')
    stamp(1)
    mkq = lambda b: [wsload(b+4*p, vL16, rK+p) for p in range(5)] + [wsload(b+20, vAL, rK+5), wsload(b+24, vM, rK+5)]
    QR = vW; E = vW + 3
    def useq(b):
        for k in range(3):
            A(f'v_add_f32 {v(QR+k)}, {v(b+k)}, {v(b+4+k)}')
        for p in range(2, 5):
            for k in range(3): A(f'v_add_f32 {v(QR+k)}, {v(QR+k)}, {v(b+4*p+k)}')
        put3_bf16(QR, vT, vA)
        A(f'v_and_b32 {v(vT)}, 15, {v(vLANE)}\nv_cmp_gt_u32 vcc, 10, {v(vT)}\nv_readfirstlane_b32 s{sT2}, {v(b+25)}\ns_nop 0\nv_cndmask_b32 {v(E)}, 0, {v(b+20)}, vcc')
    if pq: poll2('L_pq', mkq, 7, vF, vO, 1, pq, useq)
    else:
        (polls if sel & 4 else poll)('L_pq', mkq(vF), [vF+4*p+3 for p in range(5 if nopoll else 0, 7)], 1)
        useq(vF)
    for mode in ['quad_perm:[1,0,3,2]', 'quad_perm:[2,3,0,1]', 'row_half_mirror', 'row_mirror']:
        A(f's_nop 1\nv_add_u32_dpp {v(E)}, {v(E)}, {v(E)} {mode} row_mask:0xf bank_mask:0xf')
    if dbgv:
        A(f's_mul_i32 s{sT0}, s{sRHO}, 3\ns_and_b32 s{sT0}, s{sT0}, 31\ns_cmp_ge_u32 s{sT0}, 3\ns_cbranch_scc1 L_nodbg')
        A(f'v_readlane_b32 s{sT0}, {v(E)}, 16\nv_readlane_b32 s{sT1}, {v(E)}, 48')
        A(f's_nop 1\ns_add_u32 s{sT3}, s{sT0}, 5000\ns_mul_i32 s{sT3}, s{sT3}, 10000\ns_add_u32 s{sT3}, s{sT3}, s{sT1}\ns_add_u32 s{sT3}, s{sT3}, 5000')
        A(f's_lshl_b32 s{sP}, s{sCB2}, 2\nv_mov_b32 {v(vT+5)}, s{sP}\nv_mov_b32 {v(vT+6)}, s{sT3}\nglobal_store_dword {v(vT+5)}, {v(vT+6)}, {sp(sDBG)}\nL_nodbg:')
    A(f'v_lshrrev_b32 {v(E)}, 31, {v(E)}\nv_xor_b32 {v(E)}, s{sT2}, {v(E)}')
    if force >= 0: A(f'v_lshrrev_b32 {v(E)}, 5, {v(vLANE)}\nv_lshrrev_b32 {v(E)}, {v(E)}, {force}\nv_and_b32 {v(E)}, 1, {v(E)}')
    sF = [36, 37, 38, 39]
    A('s_nop 0')
    for g in range(4): A(f'v_readlane_b32 s{sF[g]}, {v(E)}, {16*g}')
    sRG = 97
    if rot >= 0: rot3(sRG, sT3)
    else: A(f's_mov_b32 s{sRG}, 0')
    A(f's_mov_b32 s{sT0}, 0\ns_mov_b32 s{sT1}, 0')
    for i in range(3):
        A(f's_mul_i32 s{sT3}, s{sRHO}, 3\ns_add_u32 s{sT3}, s{sT3}, s{sRG}\ns_lshl_b32 s{sT3}, s{sT3}, 19')
        A(f's_lshr_b32 s{sT2}, s{sT3}, 24\ns_cmp_eq_u32 s{sT2}, s{sCA}\ns_cselect_b32 s{sXD}, s{sF[0]}, s{sF[1]}\ns_cselect_b32 s{sXS}, s{sF[2]}, s{sF[3]}')
        for acc, base, fl in [(sT0, sK, sXD), (sT1, sV, sXS)]:
            A(f's_add_u32 s{sT2}, s{base}, s{sT3}\ns_lshr_b32 s{sT2}, s{sT2}, 21\ns_xor_b32 s{sT2}, s{sT2}, s{fl}\ns_and_b32 s{sT2}, s{sT2}, 1\ns_lshl_b32 s{sT2}, s{sT2}, {i}\ns_or_b32 s{acc}, s{acc}, s{sT2}')
        if i < 2: A(f's_add_u32 s{sRG}, s{sRG}, 1\ns_cmp_eq_u32 s{sRG}, 3\ns_cselect_b32 s{sRG}, 0, s{sRG}')
    if nonuma: A(f's_mov_b32 s{sT0}, {nonuma >> 1}\ns_mov_b32 s{sT1}, {nonuma >> 1}')
    A(f's_xor_b32 s{sXD}, s{sT0}, s{sT1}\ns_cselect_b32 s{sXS}, 0, 1')
    A(f'v_mov_b32 {v(vT+4)}, s{sT0}\nv_mov_b32 {v(vT+5)}, s{sT1}\nv_mov_b32 {v(vT+3)}, {FLG}\nds_write_b64 {v(vT+3)}, {v(vT+4,2)}')
    A(f'v_mov_b32 {v(vT+8)}, 0\nv_mov_b32 {v(vT+9)}, s{sXS}\nv_mov_b32 {v(vT+10)}, 0\nv_mov_b32 {v(vT+11)}, 0\nds_write_b128 {v(vT+3)}, {v(vT+8,4)} offset:16')
    if stamps:
        A(f's_lshl_b32 s{sT1}, s{sXD}, 0\ns_or_b32 s{sT1}, s{sT1}, s{sT1}\ns_lshl_b32 s{sT0}, s2, 2\ns_add_u32 s{sT0}, s{sT0}, 0x20100000')
        A(f'v_mov_b32 {v(vT+5)}, s{sT0}\nv_mov_b32 {v(vT+6)}, s{sT1}\nglobal_store_dword {v(vT+5)}, {v(vT+6)}, {sp(sWS)}')
    stamp(2)
    A('s_waitcnt lgkmcnt(0)\ns_barrier')
    A('s_waitcnt vmcnt(0)')
    A(f's_cmp_ge_u32 s{sJ}, 5\ns_cselect_b32 s{sHASW1}, 1, 0\ns_cmp_lt_u32 s{sU2}, 80\ns_cselect_b32 s{sHASW1}, s{sHASW1}, 0')
    A(f's_cmp_eq_u32 s{sHASW1}, 0\ns_cbranch_scc1 L_hx')
    A(f's_mul_i32 s{sR}, s{sU2}, 52429\ns_lshr_b32 s{sR}, s{sR}, 18\ns_mul_i32 s{sT0}, s{sR}, 5\ns_sub_u32 s{sCB}, s{sU2}, s{sT0}')
    A(f's_mul_i32 s{sRB}, s{sU2}, 52429\ns_lshr_b32 s{sRB}, s{sRB}, 20\ns_mul_i32 s{sT0}, s{sRB}, 20\ns_sub_u32 s{sSLC2}, s{sU2}, s{sT0}')
    vWD, vG4 = vS, vS+1
    A(f'v_lshrrev_b32 {v(vT)}, 4, {v(vLANE)}\nv_and_b32 {v(vT+1)}, 15, {v(vLANE)}\nv_lshlrev_b32 {v(vT+1)}, 4, {v(vT+1)}')
    A(f'v_mul_u32_u24 {v(vWD)}, 1280, {v(vT)}\nv_add_u32 {v(vWD)}, {v(vWD)}, {v(vT+1)}\nv_lshl_add_u32 {v(vG4)}, {v(vT)}, 10, {v(vT+1)}')
    A(f'v_lshrrev_b32 {v(vT)}, 5, {v(vLANE)}\nv_mul_u32_u24 {v(vT)}, {8*5*4096}, {v(vT)}\nv_and_b32 {v(vT+1)}, 31, {v(vLANE)}\nv_lshl_add_u32 {v(vA)}, {v(vT+1)}, 4, {v(vT)}')
    A(f's_lshr_b32 s{sT0}, s{sR}, 1\ns_add_u32 s{sT0}, s{sT0}, 32\ns_mul_i32 s{sT0}, s{sT0}, {5*4096}\ns_and_b32 s{sT1}, s{sR}, 1\ns_lshl_b32 s{sT1}, s{sT1}, 9\ns_add_u32 s{sT0}, s{sT0}, s{sT1}\ns_add_u32 s{rK}, s{sT0}, {P1}')
    for p in range(1, 5): A(f's_add_u32 s{rK+p}, s{rK}, {4096*p}')
    G = vF
    poll('L_pg', [wsload(G+20*b+4*p, vA, rK+p) + f' offset:{1024*b}' if False else
                  f'buffer_load_dwordx4 {v(G+20*b+4*p,4)}, {v(vA)}, {srd(rWS)}, s{rK+p} offen offset:{1024*b} sc1' for b in range(4) for p in range(5)],
         [G+20*b+4*p+3 for b in range(4) for p in range(5)], 2)
    A(f'v_and_b32 {v(vA)}, 31, {v(vLANE)}\nv_mul_u32_u24 {v(vA)}, 6, {v(vA)}\nv_add_u32 {v(vA)}, {HL}, {v(vA)}')
    for b in range(4):
        g0 = G + 20*b
        for k in range(3):
            for p in range(1, 5): A(f'v_add_f32 {v(g0+k)}, {v(g0+k)}, {v(g0+4*p+k)}')
        rnd2(g0, g0+1, vT); rnd(g0+2, vT)
        for k in range(3): A(f'v_mov_b32 {v(g0+4+k)}, {v(g0+k)}')
        A('s_nop 1')
        for k in range(3): A(f'v_permlane32_swap_b32 {v(g0+k)}, {v(g0+4+k)}')
        for k in range(3):
            A(f'v_cmp_lt_f32 vcc, 0, {v(g0+k)}\ns_nop 1\nv_cndmask_b32 {v(vT)}, 0, 1.0, vcc\nv_mul_f32 {v(g0+k)}, {v(g0+k)}, {v(vT)}\nv_mul_f32 {v(g0+k)}, {v(g0+k)}, {v(g0+4+k)}')
        put3_bf16(g0, vT, vA)
        if b < 3: A(f'v_add_u32 {v(vA)}, 192, {v(vA)}')
    A(f'v_bfe_u32 {v(vT+2)}, {v(vLANE)}, 2, 2\nv_mul_u32_u24 {v(vT+2)}, 192, {v(vT+2)}\nv_lshrrev_b32 {v(vT+3)}, 4, {v(vLANE)}\nv_lshl_add_u32 {v(vT+2)}, {v(vT+3)}, 3, {v(vT+2)}\nv_add_u32 {v(vA)}, {HL}, {v(vT+2)}')
    A('s_waitcnt lgkmcnt(0)')
    for s in range(3): A(f'ds_read2_b64 {v(vQ+4*s,4)}, {v(vA)} offset0:{8*s} offset1:{8*s+4}')
    if xtra >= 0:
        A(f'v_mov_b32 {v(vXF)}, {FLG+16}')
        hwait(2, 'L_hww')
    A(f'v_lshrrev_b32 {v(vT)}, 2, {v(vLANE)}\nv_lshlrev_b32 {v(vT)}, 8, {v(vT)}\nv_and_b32 {v(vT+1)}, 3, {v(vLANE)}\nv_lshl_add_u32 {v(vT)}, {v(vT+1)}, 3, {v(vT)}\nv_add_u32 {v(vA)}, {WREG}, {v(vT)}')
    for s in range(3):
        A('s_waitcnt lgkmcnt(0)')
        trread_mfma(8, vA, 4096, vO, s == 0, vF, vQ+4*s)
        if s < 2: A(f'v_add_u32 {v(vA)}, 8192, {v(vA)}')
    sBPA = 39
    A(f's_lshl_b32 s{sBPA}, s{sCB}, 6\ns_add_u32 s{sBPA}, s{sBPA}, s{sR}\ns_lshl_b32 s{sBPA}, s{sBPA}, 10\ns_add_u32 s{sBPA}, s{sBPA}, {BP}')
    A('s_nop 4')
    BG = vW + 16
    for ww in range(4):
        t0 = BG + 4*ww
        A(f'v_mov_b32 {v(t0)}, {v(vO+8*ww)}\nv_mov_b32 {v(t0+1)}, {v(vO+8*ww+4)}\nv_mov_b32 {v(t0+2)}, {v(vTAG)}\nv_mov_b32 {v(t0+3)}, {v(vTAG)}')
    def b_publish():
        for ww in range(4):
            A(f'buffer_store_dwordx4 {v(BG+4*ww,4)}, {v(vL16)}, {srd(rWS)}, s{sBPA} offen sc1')
            if ww < 3: A(f's_add_u32 s{sBPA}, s{sBPA}, 16384')
    if not blate: b_publish()
    vG0, vG1, vX0, vX1, vXO = vS+2, vS+3, vS+4, vS+5, vS+6
    A(f's_mul_i32 s{sT0}, s{sRB}, 1280\ns_lshl_b32 s{sT1}, s{sSLC2}, 6\ns_add_u32 s{sT0}, s{sT0}, s{sT1}')
    A(f'v_and_b32 {v(vXO)}, 15, {v(vLANE)}\nv_lshlrev_b32 {v(vXO)}, 1, {v(vXO)}\nv_add_u32 {v(vXO)}, s{sT0}, {v(vXO)}')
    if otouch: A(f'global_load_ushort {v(vX0)}, {v(vXO)}, {sp(sOUT)}\ns_waitcnt vmcnt(0)')
    A(f'global_load_ushort {v(vX0)}, {v(vXO)}, {sp(sX)}\nglobal_load_ushort {v(vX1)}, {v(vXO)}, {sp(sX)} offset:32')
    sBG = 40
    A(f's_lshl_b32 s{sT0}, s{sSLC2}, 14\ns_lshl_b32 s{sT1}, s{sRB}, 8\ns_add_u32 s{sT0}, s{sT0}, s{sT1}\ns_add_u32 s{sBG}, s{sT0}, {BP}')
    for p in range(1, 4): A(f's_add_u32 s{sBG+p}, s{sBG}, {4096*p}')
    def b_gather():
        G = vF
        (polls if sel & 2 else poll)('L_pb', [wsload(G+4*p, vG4, sBG+p) for p in range(4)], [G+4*p+3 for p in range(4)], 5)
        if py >= 0 or not blate: b_math()
    def b_math():
        G = vF
        for k in range(2):
            A(f'v_add_f32 {v(G+k)}, {v(G+k)}, {v(G+4+k)}\nv_add_f32 {v(G+8+k)}, {v(G+8+k)}, {v(G+12+k)}\nv_add_f32 {v(G+k)}, {v(G+k)}, {v(G+8+k)}')
            xsum(G+k, vT, full=False)
        rnd2(G, G+1, vT)
        for k in range(2):
            A(f'v_mul_f32 {v(vT)}, s{sL2E}, {v(G+k)}\nv_max_f32 {v(vT)}, {f2u(-126.0):#x}, {v(vT)}\nv_exp_f32 {v(vT)}, -{v(vT)}\ns_nop 0\nv_add_f32 {v(vT)}, 1.0, {v(vT)}\nv_rcp_f32 {v(vT+1)}, {v(vT)}\ns_nop 0')
            fdiv(vG0+k, G+k, vT, vT+1, vT+2)
        rnd2(vG0, vG1, vT)
    if not blate: b_gather()
    A(f's_waitcnt vmcnt(0)\nv_lshlrev_b32 {v(vX0)}, 16, {v(vX0)}\nv_lshlrev_b32 {v(vX1)}, 16, {v(vX1)}')
    A(f's_lshl_b32 s{sT0}, s{sSLC2}, {14 if y8 else 15}\ns_lshl_b32 s{sT1}, s{sRB}, {7 if y8 else 8}\ns_add_u32 s{sT0}, s{sT0}, s{sT1}\ns_add_u32 s{rK}, s{sT0}, {YP}')
    for p in range(1, 8): A(f's_add_u32 s{rK+p}, s{rK}, {(2048 if y8 else 4096)*p}')
    vG8 = vS + 7
    A(f'v_lshrrev_b32 {v(vG8)}, 1, {v(vG4)}')
    A('L_hx:')
    if stamps == 5:
        A(f'v_mov_b32 {v(vXF)}, {FLG+16}')
        hwait(13, 'L_hws')
        A(f's_memrealtime {sp(sST+2*3)}\ns_waitcnt lgkmcnt(0)')
    if lead:
        A(f's_and_b32 s{sT0}, s2, {lmask}\ns_cmp_eq_u32 s{sT0}, 5\ns_cselect_b32 s{sT0}, 0, s{sXS}\ns_cmp_lg_u32 s{sT0}, 0\ns_cbranch_scc1 L_hb4')
    elif not bal: A(f's_cmp_lg_u32 s{sXS}, 0\ns_cbranch_scc1 L_hb4')
    sREC, sOTH = 36, 37
    A(f's_lshl_b32 s{sREC}, s{sRHO}, 1\ns_add_u32 s{sOTH}, s{sREC}, 1\ns_sub_u32 s{sOTH}, s{sOTH}, s{sHALF}\ns_add_u32 s{sREC}, s{sREC}, s{sHALF}')
    vXG = vQ + 15
    if xs:
        for r_ in (sREC, sOTH):
            A(f's_lshr_b32 s{sT0}, s{r_}, 7\ns_lshl_b32 s{sT0}, s{sT0}, 20\ns_and_b32 s{r_}, s{r_}, 127\ns_lshl_b32 s{r_}, s{r_}, 8\ns_add_u32 s{r_}, s{r_}, s{sT0}\ns_add_u32 s{r_}, s{r_}, {SCO}')
        A(f'v_and_b32 {v(vXG)}, 0xf0, {v(vL16)}\nv_lshrrev_b32 {v(vT)}, 4, {v(vLANE)}\nv_lshl_add_u32 {v(vXG)}, {v(vT)}, {xs}, {v(vXG)}')
    else:
        A(f's_mul_i32 s{sREC}, s{sREC}, 6144\ns_add_u32 s{sREC}, s{sREC}, {SCO}\ns_mul_i32 s{sOTH}, s{sOTH}, 6144\ns_add_u32 s{sOTH}, s{sOTH}, {SCO}')
        A(f'v_mov_b32 {v(vXG)}, {v(vL16)}')
    xoff = (lambda w, i: (2*w + i) << 17) if xs else (lambda w, i: 1536*w + 1024*i)
    A(f'v_add_u32 {v(vXA)}, {STG}, {v(vL16)}\nv_mov_b32 {v(vXF)}, {FLG+16}\nv_and_b32 {v(vT)}, 3, {v(vLANE)}\nv_cmp_eq_u32 vcc, 2, {v(vT)}\nv_mov_b32 {v(vT)}, -20\ns_nop 0\nv_cndmask_b32 {v(vT)}, 8, {v(vT)}, vcc\nv_add_u32 {v(vXB)}, {v(vXA)}, {v(vT)}')
    sE0, sE1 = 96, 98
    A(f's_bitcmp1_b32 s{sXD}, 0\ns_cselect_b32 s{sE0}, 0xffffff00, 0\ns_bitcmp1_b32 s{sXD}, 1\ns_cselect_b32 s{sE0+1}, -1, 0\ns_bitcmp1_b32 s{sXD}, 2\ns_cselect_b32 s{sE1}, 0xffffff, 0\ns_mov_b32 s{sE1+1}, 0')
    sTO = 38
    def cp_pub(i):
        A(f's_memrealtime {sp(sP)}\ns_lshl_b32 s{sT1}, s2, 4\ns_add_u32 s{sT1}, s{sT1}, {TS + 4096*i}\nv_mov_b32 {v(vS+11)}, {v(vTAG)}\ns_waitcnt lgkmcnt(0)\ns_add_u32 s{sTO}, s{sP}, 0')
        A(f'v_mov_b32 {v(vS+8)}, s{sTO}\ns_mov_b64 exec, 1\nbuffer_store_dwordx4 {v(vS+8,4)}, {v(vL16)}, {srd(rWS)}, s{sT1} offen sc1\ns_mov_b64 exec, -1')
    CG = vW + 32
    def cp_load(i):
        A(f'v_lshlrev_b32 {v(vT+2)}, 6, {v(vLANE)}\nv_bfe_u32 {v(vT+3)}, {v(vLANE)}, 1, 2\nv_lshl_add_u32 {v(vT+2)}, {v(vT+3)}, 4, {v(vT+2)}\ns_mov_b32 s{sT1}, {TS + 4096*i}')
        A(f'buffer_load_dwordx4 {v(CG,4)}, {v(vT+2)}, {srd(rWS)}, s{sT1} offen sc1\ns_memrealtime {sp(sP)}')
    def cp_use():
        A(f's_waitcnt vmcnt(0) lgkmcnt(0)\ns_sub_u32 s{sT0}, s{sP}, s{sTO}\nv_cmp_eq_u32 vcc, {v(CG+3)}, {v(vTAG)}\nv_subrev_u32 {v(CG)}, s{sTO}, {v(CG)}\nv_mov_b32 {v(vT)}, s{sT0}')
        A(f'v_cndmask_b32 {v(CG)}, {v(vT)}, {v(CG)}, vcc\nv_mov_b32 {v(vT)}, 0x190\nv_mov_b32 {v(vT+1)}, -400\nv_med3_i32 {v(CG)}, {v(CG)}, {v(vT)}, {v(vT+1)}')
        xsum(CG, vT, 'v_add_u32')
        A(f'ds_read_b32 {v(vT+2)}, {v(vXF)}\nv_readfirstlane_b32 s{sT0}, {v(CG)}\ns_nop 0\ns_ashr_i32 s{sT0}, s{sT0}, 6')
        A(f's_abs_i32 s{sT1}, s{sT0}\ns_sub_i32 s{sT1}, s{sT1}, {dead}\ns_max_i32 s{sT1}, s{sT1}, 0\ns_mul_i32 s{sT1}, s{sT1}, {gain}\ns_lshr_b32 s{sT1}, s{sT1}, 8\ns_min_u32 s{sT1}, s{sT1}, {kmax}')
        A(f's_waitcnt lgkmcnt(0)\nv_readfirstlane_b32 s{sT2}, {v(vT+2)}\ns_nop 0\ns_lshr_b32 s{sT2}, s{sT2}, 2\ns_add_u32 s{sT2}, s{sT2}, s{sT1}\ns_cmp_eq_u32 s{sT1}, 0\ns_cselect_b32 s{sT2}, 0, s{sT2}')
        A(f's_sub_i32 s{sT1}, 0, s{sT2}\ns_cmp_lt_i32 s{sT0}, 0\ns_cselect_b32 s{sT2}, s{sT2}, s{sT1}\nv_mov_b32 {v(vT)}, s{sT2}\nds_write_b32 {v(vXF)}, {v(vT)} offset:8')
    def rk_issue(i):
        A(f'v_lshlrev_b32 {v(vT+2)}, {rsp+2}, {v(vLANE)}\nv_bfe_u32 {v(vT+3)}, {v(vLANE)}, 1, 2\nv_lshl_add_u32 {v(vT+2)}, {v(vT+3)}, {rsp}, {v(vT+2)}\ns_mov_b32 s{sT0}, {0x360000 + (256 << rsp)*i}')
        A(f'buffer_load_dword {v(CG)}, {v(vT+2)}, {srd(rWS)}, s{sT0} offen sc1\ns_lshl_b32 s{sT1}, s2, {rsp}\ns_add_u32 s{sT1}, s{sT1}, s{sT0}')
        for k in range(4): A(f'v_mov_b32 {v(vS+8+k)}, {v(vTAG)}')
        A(f's_mov_b64 exec, {(1 << (1 << (rsp-4))) - 1}\nbuffer_store_dwordx4 {v(vS+8,4)}, {v(vL16)}, {srd(rWS)}, s{sT1} offen sc1\ns_mov_b64 exec, -1')
    def rk_use(n, w):
        A(f's_waitcnt vmcnt({w})\nv_cmp_eq_u32 vcc, {v(CG)}, {v(vTAG)}\ns_nop 0\ns_bcnt1_i32_b64 s{sT1}, vcc\ns_sub_i32 s{sT1}, s{sT1}, {rc0}\ns_max_i32 s{sT1}, s{sT1}, 0')
        A(f's_mul_i32 s{sT1}, s{sT1}, s{sT1}\ns_mul_i32 s{sT1}, s{sT1}, {rg}\ns_lshr_b32 s{sT1}, s{sT1}, 8\ns_min_u32 s{sT1}, s{sT1}, {kmax}\ns_add_u32 s{sT1}, s{sT1}, {n}')
        A(f'v_mov_b32 {v(vT)}, s{sT1}\nds_write_b32 {v(vXF)}, {v(vT)} offset:8')
    def cp_all(sel_):
        for i, n in enumerate(cpl):
            if bal and n != 23 and sel_(n):
                hwait(n, f'L_cp{i}')
                if rank: rk_issue(i); rk_use(n, 1)
                else: cp_pub(i); hwait(n + cgap, f'L_cg{i}'); cp_load(i); cp_use()
    cp_all(lambda n: n < 23)
    hwait(pubt, 'L_hw0')
    stamp(1)
    if bal and 23 in cpl: (rk_issue if rank else cp_pub)(cpl.index(23))
    if lead:
        A(f'v_mov_b32 {v(vT+2)}, {GO}\ns_and_b32 s{sT0}, s2, {lmask}\ns_cmp_lg_u32 s{sT0}, 5\ns_cbranch_scc1 L_go')
        hwait(lead, 'L_hwl')
        A(f's_mov_b64 exec, 1\nbuffer_store_dword {v(vTAG)}, {v(vT+2)}, {srd(rWS)}, 0 offen sc1\ns_mov_b64 exec, -1')
        if lpipe:
            A('L_go:')
            for k in range(3): A(f'buffer_load_dword {v(vT+4+k)}, {v(vT+2)}, {srd(rWS)}, 0 offen sc1\ns_sleep {lpipe}')
            A('L_go2:')
            for k in range(4):
                A(f'buffer_load_dword {v(vT+4+(k+3)%4)}, {v(vT+2)}, {srd(rWS)}, 0 offen sc1\nds_read_b32 {v(vT)}, {v(vXF)}\ns_waitcnt vmcnt(3) lgkmcnt(0)')
                A(f'v_cmp_eq_u32 vcc, {v(vT+4+k)}, {v(vTAG)}\nv_readfirstlane_b32 s{sT0}, {v(vT)}\ns_cbranch_vccnz L_go_ok\ns_cmp_ge_u32 s{sT0}, {4*fb}\ns_cbranch_scc1 L_go_ok')
            A('s_branch L_go2\nL_go_ok:')
        else:
            A(f'L_go:\nbuffer_load_dword {v(vT+3)}, {v(vT+2)}, {srd(rWS)}, 0 offen sc1\nds_read_b32 {v(vT)}, {v(vXF)}\ns_waitcnt vmcnt(0) lgkmcnt(0)')
            A(f'v_cmp_eq_u32 vcc, {v(vT+3)}, {v(vTAG)}\nv_readfirstlane_b32 s{sT0}, {v(vT)}\ns_cbranch_vccnz L_go_ok\ns_cmp_lt_u32 s{sT0}, {4*fb}\ns_cbranch_scc1 L_go\nL_go_ok:')
    stamp(3)
    def masked(i, lbl): return f's_cmp_eq_u64 {sp([sE0, sE1][i])}, 0\ns_cbranch_scc1 {lbl}{i}\ns_mov_b64 exec, {sp([sE0, sE1][i])}'
    if not (noex & 1):
        for i in range(2):
            A(masked(i, 'L_np'))
            for w in range(4):
                r = vF + 16*i + 4*w
                A(f'ds_read_b64 {v(r,2)}, {v(vXA)} offset:{1536*w+1024*i}\nds_read_b32 {v(r+2)}, {v(vXB)} offset:{1536*w+1024*i}\nv_mov_b32 {v(r+3)}, {v(vTAG)}')
            for w in range(4):
                r = vF + 16*i + 4*w
                A(f's_add_u32 s{sT0}, s{sREC}, {xoff(w, i)}\ns_waitcnt lgkmcnt({6-2*w})')
                A(f'buffer_store_dwordx4 {v(r,4)}, {v(vXG)}, {srd(rWS)}, s{sT0} offen {stfl}')
            A(f's_mov_b64 exec, -1\nL_np{i}:')
    if bal and rank and 23 in cpl: rk_use(24, 0)
    if lead: A(f's_cmp_lg_u32 s{sXS}, 0\ns_cbranch_scc1 L_hb4')
    if bal and rank: A(f's_cmp_lg_u32 s{sXS}, 0\ns_cbranch_scc1 L_hb4')
    hwait(gat, 'L_hw1')
    if bal and not rank and 23 in cpl: cp_load(cpl.index(23))
    if bal and not rank: A(f's_cmp_lg_u32 s{sXS}, 0\ns_cbranch_scc1 L_nox')
    if not (noex & 2):
        G = vO
        for k in range(8): A(f'v_mov_b32 {v(G+4*k+3)}, {v(vTAG)}')
        lds_ = []
        for i in range(2):
            t_ = masked(i, 'L_ng') + '\n'
            for w in range(4):
                t_ += f's_add_u32 s{sT0}, s{sOTH}, {xoff(w, i)}\nbuffer_load_dwordx4 {v(G+16*i+4*w,4)}, {v(vXG)}, {srd(rWS)}, s{sT0} offen {slfl}\n'
            lds_.append(t_ + f's_mov_b64 exec, -1\nL_ng{i}:')
        poll('L_px', lds_, [G+4*k+3 for k in range(8)], 8)
        for i in range(2):
            A(masked(i, 'L_nw'))
            for w in range(4): A(f'ds_write_b64 {v(vXA)}, {v(G+16*i+4*w,2)} offset:{1536*w+1024*i}\nds_write_b32 {v(vXB)}, {v(G+16*i+4*w+2)} offset:{1536*w+1024*i}')
            A(f's_mov_b64 exec, -1\ns_waitcnt lgkmcnt(0)\nL_nw{i}:')
    A(f'v_mov_b32 {v(vT)}, 1\nds_write_b32 {v(vXF)}, {v(vT)} offset:4')
    stamp(4)
    if bal and not rank: A('L_nox:')
    if bal and not rank and 23 in cpl: cp_use()
    A('L_hb4:')
    A(f'v_mul_u32_u24 {v(vA)}, 12, {v(vLANE)}\nv_add_u32 {v(vA)}, {OCB}, {v(vA)}\nv_mov_b32 {v(vAL)}, {OCB+768}')
    A(f's_lshl_b32 s{sT1}, s{sH}, 3\ns_add_u32 s{sT1}, s{sT1}, s{sJ}\ns_lshl_b32 s{sT1}, s{sT1}, 11\ns_add_u32 s{sT1}, s{sT1}, {OP}')
    Gm = vQ + 16
    r0 = vP
    ml = vT + 4
    def weights():
        A(f'v_max3_f32 {v(ml)}, {v(Gm)}, {v(Gm+2)}, {v(Gm+4)}\nv_max_f32 {v(ml)}, {v(ml)}, {v(Gm+6)}')
        for w in range(4): A(f'v_sub_f32 {v(Gm+2*w)}, {v(Gm+2*w)}, {v(ml)}')
        for w in range(4): A(f'v_exp_f32 {v(Gm+2*w)}, {v(Gm+2*w)}')
        A(f'v_mov_b32 {v(r0+3)}, {v(vTAG)}\nv_mov_b32 {v(ml+3)}, {v(vTAG)}\nv_mov_b32 {v(ml+2)}, {v(vTAG)}')
        A(f'v_mul_f32 {v(ml+1)}, {v(Gm)}, {v(Gm+1)}')
        for w in range(1, 4): A(f'v_fmac_f32 {v(ml+1)}, {v(Gm+2*w)}, {v(Gm+2*w+1)}')
    if lred:
        A(f'v_mov_b32 {v(vXF)}, {FLG+16}')
        hwait(29, 'L_hw2', 8)
        if stamps == 5: A(f's_memrealtime {sp(sST+2*4)}\ns_waitcnt lgkmcnt(0)')
        for w in range(4): A(f'ds_read_b64 {v(Gm+2*w,2)}, {v(vAL)} offset:{1024*w}')
        A('s_waitcnt lgkmcnt(0)')
        weights()
        for w in range(1, 4): A(f'v_add_u32 {v(vQ+4+w)}, {1024*w}, {v(vA)}')
        if bal and max(cpl) > 23:
            A(f's_mov_b32 s{sOTH}, s{sT1}')
            cp_all(lambda n: n > 23)
            A(f's_mov_b32 s{sT1}, s{sOTH}\nv_mov_b32 {v(r0+3)}, {v(vTAG)}')
        A('s_barrier')
        stamp(5)
        for w in range(4):
            a_ = vA if w == 0 else vQ+4+w
            A(f'ds_read2_b32 {v(vF+4*w,2)}, {v(a_)} offset0:0 offset1:1\nds_read_b32 {v(vF+4*w+2)}, {v(a_)} offset:8')
    else:
        A('s_barrier')
        stamp(5)
        for w in range(4): A(f'ds_read_b64 {v(Gm+2*w,2)}, {v(vAL)} offset:{1024*w}')
        for w in range(4):
            A(f'ds_read2_b32 {v(vF+4*w,2)}, {v(vA)} offset0:0 offset1:1\nds_read_b32 {v(vF+4*w+2)}, {v(vA)} offset:8')
            if w < 3: A(f'v_add_u32 {v(vA)}, 1024, {v(vA)}')
        A('s_waitcnt lgkmcnt(8)')
        weights()
    A('s_waitcnt lgkmcnt(0)')
    for k in range(3): A(f'v_mul_f32 {v(r0+k)}, {v(Gm)}, {v(vF+k)}')
    for w in range(1, 4):
        for k in range(3): A(f'v_fmac_f32 {v(r0+k)}, {v(Gm+2*w)}, {v(vF+4*w+k)}')
    A(f'buffer_store_dwordx4 {v(r0,4)}, {v(vL16)}, {srd(rWS)}, s{sT1} offen sc1')
    A(f's_mov_b64 exec, 1\nbuffer_store_dwordx4 {v(ml,4)}, {v(vL16)}, {srd(rWS)}, s{sT1} offen offset:1024 sc1\ns_mov_b64 exec, -1')
    if hb5: A(f's_cmp_ge_u32 s{sJ}, 5\ns_cbranch_scc1 L_hnb5\ns_barrier\nL_hnb5:')
    A(f's_cmp_eq_u32 s{sHASW1}, 0\ns_cbranch_scc1 L_hdone')
    if blate:
        b_publish()
        b_gather()
    G = vW
    if y8:
        mky = lambda b: [f'buffer_load_dwordx2 {v(b+4*p+2,2)}, {v(vG8)}, {srd(rWS)}, s{rK+p} offen sc1' for p in range(8)]
        def usey(b):
            for p in range(4):
                A(f'v_lshlrev_b32 {v(G+2*p)}, 16, {v(b+8*p+2)}\nv_and_b32 {v(G+2*p+1)}, 0xffff0000, {v(b+8*p+2)}\nv_lshlrev_b32 {v(G+8)}, 16, {v(b+8*p+6)}\nv_and_b32 {v(G+9)}, 0xffff0000, {v(b+8*p+6)}')
                A(f'v_add_f32 {v(G+2*p)}, {v(G+2*p)}, {v(G+8)}\nv_add_f32 {v(G+2*p+1)}, {v(G+2*p+1)}, {v(G+9)}')
    else:
        mky = lambda b: [wsload(b+4*p, vG4, rK+p) for p in range(8)]
        def usey(b):
            for k in range(2):
                for p in range(4): A(f'v_add_f32 {v(G+2*p+k)}, {v(b+8*p+k)}, {v(b+8*p+4+k)}')
    if py: poll2('L_py', mky, 8, vF+16, vO, 6, py if py > 0 else b_math, usey)
    else:
        (polls if sel & 2 else poll)('L_py', mky(vF+16), [vF+16+4*p+3 for p in range(8)], 6)
        usey(vF+16)
    stamp(6)
    for k in range(2):
        A(f'v_add_f32 {v(G+k)}, {v(G+k)}, {v(G+2+k)}\nv_add_f32 {v(G+4+k)}, {v(G+4+k)}, {v(G+6+k)}\nv_add_f32 {v(G+k)}, {v(G+k)}, {v(G+4+k)}')
    for k in range(2): xsum(G+k, vT+k, full=False)
    rnd2(G, G+1, vT)
    A(f'v_mul_f32 {v(G)}, {v(G)}, {v(vG0)}\nv_mul_f32 {v(G+1)}, {v(G+1)}, {v(vG1)}')
    rnd2(G, G+1, vT)
    if perturb:
        A(f's_cmp_eq_u32 s{sU2}, 0\ns_cselect_b32 s{sT0}, {f2u(perturb/1000):#x}, 0\ns_mov_b64 exec, 1\nv_add_f32 {v(vX0)}, s{sT0}, {v(vX0)}\ns_mov_b64 exec, -1')
    if pall: A(f'v_mul_f32 {v(G)}, {f2u(1+pall/1000):#x}, {v(G)}\nv_mul_f32 {v(G+1)}, {f2u(1+pall/1000):#x}, {v(G+1)}')
    A(f'v_add_f32 {v(G)}, {v(G)}, {v(vX0)}\nv_add_f32 {v(G+1)}, {v(G+1)}, {v(vX1)}\nv_cvt_pk_bf16_f32 {v(G)}, {v(G)}, {v(G+1)}')
    A(f's_mov_b64 exec, 0xffff\nglobal_store_short {v(vXO)}, {v(G)}, {sp(sOUT)} {ofl}\nglobal_store_short_d16_hi {v(vXO)}, {v(G)}, {sp(sOUT)} offset:32 {ofl}')
    A(f's_cmp_lg_u32 s{sU2}, 0\ns_cbranch_scc1 L_hdone')
    A(f's_mov_b64 exec, 1\nv_mov_b32 {v(vT)}, 0\nglobal_store_dword {v(vT)}, {v(vTAG)}, {sp(sWS)} sc1')
    A('L_hdone:')
    if stamps:
        A('s_waitcnt vmcnt(0)')
        stamp(7)
        write_stamps(256, 'h')
    A('L_end:\ns_endpgm')
    A(f'''.section .rodata,"a"
.p2align 6
.amdhsa_kernel {NAME}_kernel
  .amdhsa_next_free_vgpr {NV}
  .amdhsa_next_free_sgpr 100
  .amdhsa_accum_offset {NV}
  .amdhsa_group_segment_fixed_size 0
  .amdhsa_kernarg_size 96
  .amdhsa_user_sgpr_count 2
  .amdhsa_user_sgpr_kernarg_segment_ptr 1
  .amdhsa_system_sgpr_workgroup_id_x 1
  .amdhsa_float_denorm_mode_32 3
.end_amdhsa_kernel''')
    open(fn, 'w').write('\n'.join(L) + '\n')

if __name__ == '__main__':
    fn = sys.argv[1]
    kw = {}
    for a in sys.argv[2:]:
        k, val = a.split('=')
        try: val = int(val)
        except ValueError: val = val.replace('+', ' ').replace('def', '')
        kw[k] = val
    gen(fn, **kw)
```

```python
import sys, os, struct
NAME = 'recurrent_scan__gqa_block_cached__glu_gated_reglu__decode'

HEADER = '''; Kernarg layout (96 bytes, pointers only, base s[0:1]), everything bf16:
;
'''

def f2u(x): return struct.unpack('<I', struct.pack('<f', x))[0]

def gen(fn, stamps=False, pace=8, up=4, mapping='x', kvil=False, twostage=False, spin=1<<15, knt='nt', vnt='nt', w1nt='nt', w2nt='nt', sleep=0, fixdur=0, D=7, nomem=0, now=0, nopoll=0, nocomp=0, pre=1, force=-1, cap=400, thr=100, noex=0, sync=1, skipx=1, hsl=2, gat=26, perturb=0, pall=0, lead=0, bal=5, gain=15, dead=20, kmax=10, bneg=0, cps='23.34', cgap=3, rank=0, dbgt=-1, wlate=0, qdel2=9, xs=0, qdel=9, rsp=7, rc0=24, rg=2, lastneg=0, ofl='', prio=0, nosleep=1, y8=0, rot=2, rmul=1, umap=1, gord=2, w1sw=1, wearly=2, hb5=1, xtra=-1, sel=0, lpipe=0, lmask=31, fb=26, blate=1, pubt=23, htouch=0, otouch=0, nonuma=0, al=1, glate=1, touch=0, late=0, lred=1, pq=0, po=0, py=0, inl=1, nend=4, Dend=18, dbgv=0, stfl='sc1', slfl='sc1'):
    L = []
    cpl = [int(x) for x in str(cps).split('.')]
    def A(s):
        for ln in s.strip('\n').split('\n'):
            L.append(ln.strip())
    SLOT = 9216; RING = 2*SLOT; WT = 12288
    WREG = 4*RING
    MISC = WREG + 4*WT
    XN = MISC; OBF = MISC
    RED = MISC + 1536
    OCB = RED + 8192
    QL = RED + 12288
    HL = QL + 384
    FLG = HL + 768
    STG = FLG + 64
    LDS = 147456
    assert STG + 6144 <= LDS
    P1 = 0x1000; OP = 0x100000; YP = 0x200000; BP = 0x300000; VOTE = 0x3F0000; GO = 0x3F8000; TS = 0x3E0000; SCO = 0x400000; WSZ = 0x600000
    TAGC = 0x9E3779B9
    sX, sK, sV, sWQ, sWO, sWG, sWU, sWD, sOUT, sDBG, sWS = 4, 6, 8, 10, 12, 16, 18, 20, 22, 24, 26
    rK, rV, rW1, rW2, rWS = 28, 32, 36, 40, 44
    sWAVE, sH, sJ, sB, sHALF = 48, 49, 50, 51, 52
    sBETA, sPI, sHASW1, sRS = 53, 54, 55, 56
    sSLA, sSLB, sSLC = 57, 58, 59
    sOFF, sT, sCNT = 60, 61, 62
    sSC, sL2E = 63, 64
    sT0, sT1, sT2, sT3 = 65, 66, 67, 68
    sU2, sR, sCB, sRB, sSLC2 = 69, 70, 71, 72, 73
    sN0, sN1, sFLV, sFL = 70, 71, 72, 73
    sU, sPUB, sNEG, sVB = 14, 15, 34, 32
    sRHO = 3
    sXD, sXS = 92, 93
    sCM = 94
    sSTG = 35
    sU0 = 96
    sP = 74
    sST = 76
    def srd(r): return f's[{r}:{r+3}]'
    def sp(r): return f's[{r}:{r+1}]'
    vLANE, vL16, vTAG, vKA0, vVA0, vA, vM, vML, vLS, vAL = 1, 2, 3, 4, 5, 6, 7, 8, 9, 10
    vT = 12
    vS = 28
    vP = 36
    vQ = 40
    vF = 64
    vO = 112
    vW = 160
    vR = 208
    vM2B, vM2X, vM3, vSK, vSV, vFA, vONE, vPA = range(212, 220)
    vSRC = 220
    vKB = 224
    vVB = 228
    vAD = 236
    NV = 244
    def v(r, n=1): return f'v{r}' if n == 1 else f'v[{r}:{r+n-1}]'
    inhelper = [False]
    def pstamp(i):
        if stamps == 3: A(f's_memrealtime {sp(sST+2*i)}\ns_waitcnt lgkmcnt(0)')
    def qstamp(i):
        if stamps == 4: A(f's_memrealtime {sp(sST+2*i)}\ns_waitcnt lgkmcnt(0)')
    def stamp(i):
        if stamps in (3, 4) and i < 7 and not inhelper[0]: return
        if stamps == 5 and inhelper[0] and i in (3, 4): return
        if stamps:
            A(f's_memrealtime {sp(sST+2*i)}\ns_waitcnt lgkmcnt(0)')
    def write_stamps(rec_base, lbl):
        if not stamps: return
        if dbgt >= 0:
            A(f's_cmp_lg_u32 s2, {dbgt}\ns_cbranch_scc1 L_end\ns_mov_b64 exec, 1\nv_mov_b32 {v(vA)}, 0')
            for i in range(8): A(f's_sub_u32 s{sT0}, s{sST+2*i}, s{sST}\nv_mov_b32 {v(vT)}, s{sT0}\nglobal_store_dword {v(vA)}, {v(vT)}, {sp(sDBG)} offset:{4*i + (32 if rec_base else 0)}')
            return
        A(f's_lshl_b32 s{sT0}, s2, 6\ns_add_u32 s{sT0}, s{sT0}, {0x20000000 + rec_base*64}')
        A(f's_add_u32 s{sP}, s{sWS}, s{sT0}\ns_addc_u32 s{sP+1}, s{sWS+1}, 0')
        A(f's_mov_b64 exec, 1\nv_mov_b32 {v(vA)}, 0')
        for i in range(4):
            for k in range(4): A(f'v_mov_b32 {v(vT+k)}, s{sST+4*i+k}')
            A(f'global_store_dwordx4 {v(vA)}, {v(vT,4)}, {sp(sP)} offset:{16*i}\ns_nop 1')
    def xsum(r, t, op='v_add_f32', full=True):
        if full:
            for mode in ['quad_perm:[1,0,3,2]', 'quad_perm:[2,3,0,1]', 'row_half_mirror', 'row_mirror']:
                A(f's_nop 1\n{op}_dpp {v(r)}, {v(r)}, {v(r)} {mode} row_mask:0xf bank_mask:0xf')
        for sw in ['v_permlane16_swap_b32', 'v_permlane32_swap_b32']:
            A(f'v_mov_b32 {v(t)}, {v(r)}\ns_nop 1\n{sw} {v(r)}, {v(t)}\n{op} {v(r)}, {v(r)}, {v(t)}')
    def rnd(r, t):
        A(f'v_cvt_pk_bf16_f32 {v(t)}, {v(r)}, {v(r)}\nv_lshlrev_b32 {v(r)}, 16, {v(t)}')
    def rnd2(r0, r1, t):
        A(f'v_cvt_pk_bf16_f32 {v(t)}, {v(r0)}, {v(r1)}\nv_lshlrev_b32 {v(r0)}, 16, {v(t)}\nv_and_b32 {v(r1)}, 0xffff0000, {v(t)}')
    def dma_tile(soff, sslot, paced=None, lo=0, hi=9, fl='nt'):
        for i in range(lo, hi):
            A(f's_add_u32 m0, s{sslot}, {1024*i}')
            if i == lo or i % 3 == 0: A(f's_add_u32 s{sT0}, s{soff}, {3072*(i//3)}')
            elif not paced: A('s_nop 0')
            if paced: A(f's_waitcnt vmcnt({paced-1})')
            A(f'buffer_load_dwordx4 {v(vSRC+i%3)}, {srd(rK)}, s{sT0} offen {fl} lds')
    def rot3(dst, tmp):
        A(f's_lshr_b32 s{dst}, s{sRHO}, {rot}')
        if rmul != 1: A(f's_mul_i32 s{dst}, s{dst}, {rmul}')
        A(f's_mul_i32 s{tmp}, s{dst}, 43691\ns_lshr_b32 s{tmp}, s{tmp}, 17\ns_mul_i32 s{tmp}, s{tmp}, 3\ns_sub_u32 s{dst}, s{dst}, s{tmp}')
    def block_params(default, sn):
        if default == 1: A(f's_cmp_eq_u32 s{sHALF}, 1')
        else: A(f's_bitcmp1_b64 {sp(sCM)}, s{sT}')
        A(f's_addc_u32 s{sT1}, s{sU}, s{sU}\ns_lshl_b32 s{sT1}, s{sT1}, 6\ns_add_u32 s{sT2}, s{sT1}, 65\ns_add_u32 s{sT1}, s{sT1}, 1')
        A(f's_mul_i32 s{sT1}, s{sT1}, 43691\ns_mul_i32 s{sT2}, s{sT2}, 43691\ns_lshr_b32 s{sT1}, s{sT1}, 17\ns_lshr_b32 s{sT2}, s{sT2}, 17')
        A(f's_mul_i32 s{sOFF}, s{sT1}, 384\ns_sub_u32 s{sT1}, s{sT2}, s{sT1}\ns_mul_i32 s{sT2}, s{sT2}, 384\ns_min_u32 s{rK+2}, s{sT2}, {0 if nomem else 1572864}')
        if default == 2: A(f's_cmp_ge_u32 s{sT}, 46\ns_cselect_b32 s{rK+2}, 0, s{rK+2}')
        else: A(f's_cmp_eq_u32 s{sT1}, 22\ns_cselect_b32 s{sn}, -1, 0')
        if umap: A(f's_bitcmp1_b32 s{sU}, 0\ns_cselect_b32 s{sT1}, 7, 1\ns_add_u32 s{sU}, s{sU}, s{sT1}')
        else: A(f's_add_u32 s{sU}, s{sU}, 4')
        if rot >= 0: A(f's_cmp_ge_u32 s{sU}, 96\ns_cselect_b32 s{sT1}, 96, 0\ns_sub_u32 s{sU}, s{sU}, s{sT1}')
    def poll(lbl, loads, tagregs, code, mid=None):
        A(f's_mov_b32 s{sCNT}, {spin}\n{lbl}:')
        for x in loads: A(x)
        if mid: A(f'{mid}:')
        A('s_waitcnt vmcnt(0)')
        A(f'v_xor_b32 {v(vT)}, {v(tagregs[0])}, {v(vTAG)}')
        for r in tagregs[1:]:
            A(f'v_xor_b32 {v(vT+1)}, {v(r)}, {v(vTAG)}\nv_or_b32 {v(vT)}, {v(vT)}, {v(vT+1)}')
        if (nopoll and lbl != 'L_pq') or (noex and lbl == 'L_px'): A(f's_branch {lbl}_ok')
        A(f'v_cmp_ne_u32 vcc, 0, {v(vT)}\ns_cbranch_vccz {lbl}_ok')
        if sleep: A(f's_sleep {sleep}')
        A(f's_sub_u32 s{sCNT}, s{sCNT}, 1\ns_cmp_lg_u32 s{sCNT}, 0\ns_cbranch_scc1 {lbl}')
        A(f'v_mov_b32 {v(vT)}, 0\nv_mov_b32 {v(vT+1)}, {code}\nglobal_store_dword {v(vT)}, {v(vT+1)}, {sp(sDBG)}')
        A(f'{lbl}_ok:')
    def polls(lbl, loads, tagregs, code):
        A(f's_mov_b32 s{sCNT}, {spin}')
        for x in loads: A(x)
        A(f'{lbl}:\ns_waitcnt vmcnt(0)\ns_mov_b32 s{sT3}, 0')
        for k, (x, r) in enumerate(zip(loads, tagregs)):
            A(f'v_cmp_ne_u32 vcc, {v(r)}, {v(vTAG)}\ns_cbranch_vccz {lbl}_s{k}\ns_mov_b64 exec, vcc')
            A(x)
            A(f's_mov_b64 exec, -1\ns_mov_b32 s{sT3}, 1\n{lbl}_s{k}:')
        A(f's_cmp_eq_u32 s{sT3}, 0\ns_cbranch_scc1 {lbl}_ok')
        A(f's_sub_u32 s{sCNT}, s{sCNT}, 1\ns_cmp_lg_u32 s{sCNT}, 0\ns_cbranch_scc1 {lbl}')
        A(f'v_mov_b32 {v(vT)}, 0\nv_mov_b32 {v(vT+1)}, {code}\nglobal_store_dword {v(vT)}, {v(vT+1)}, {sp(sDBG)}\ns_waitcnt vmcnt(0)')
        A(f'{lbl}_ok:')
    def poll2(lbl, mk, n, base, alt, code, delay, use):
        def check(b, ok):
            A(f's_waitcnt vmcnt({n})')
            A(f'v_xor_b32 {v(vT)}, {v(b+3)}, {v(vTAG)}')
            for k in range(1, n): A(f'v_xor_b32 {v(vT+1)}, {v(b+4*k+3)}, {v(vTAG)}\nv_or_b32 {v(vT)}, {v(vT)}, {v(vT+1)}')
            A(f'v_cmp_ne_u32 vcc, 0, {v(vT)}\ns_cbranch_vccz {ok}')
        A(f's_mov_b32 s{sCNT}, {spin}')
        for x in mk(base): A(x)
        if callable(delay): delay()
        else: A(f's_sleep {delay}')
        A(f'{lbl}:')
        for x in mk(alt): A(x)
        check(base, f'{lbl}_ok')
        for x in mk(base): A(x)
        check(alt, f'{lbl}_okb')
        A(f's_sub_u32 s{sCNT}, s{sCNT}, 1\ns_cmp_lg_u32 s{sCNT}, 0\ns_cbranch_scc1 {lbl}')
        A(f'v_mov_b32 {v(vT)}, 0\nv_mov_b32 {v(vT+1)}, {code}\nglobal_store_dword {v(vT)}, {v(vT+1)}, {sp(sDBG)}')
        A(f'{lbl}_okb:')
        use(alt)
        A(f's_branch {lbl}_done\n{lbl}_ok:')
        use(base)
        A(f'{lbl}_done:')
    def wsload(dst, voff, soff): return f'buffer_load_dwordx4 {v(dst,4)}, {v(voff)}, {srd(rWS)}, s{soff} offen sc1'
    def put3_bf16(r0, t, va):
        A(f'v_cvt_pk_bf16_f32 {v(t)}, {v(r0)}, {v(r0+1)}\nv_cvt_pk_bf16_f32 {v(t+1)}, {v(r0+2)}, {v(r0+2)}')
        A(f'ds_write_b16 {v(va)}, {v(t)}\nds_write_b16_d16_hi {v(va)}, {v(t)} offset:2\nds_write_b16 {v(va)}, {v(t+1)} offset:4')
    def fdiv(q, n, d, r, e):
        A(f'v_mul_f32 {v(q)}, {v(n)}, {v(r)}\nv_fma_f32 {v(e)}, -{v(q)}, {v(d)}, {v(n)}\nv_fma_f32 {v(q)}, {v(e)}, {v(r)}, {v(q)}')
    def trread_mfma(ntile, va, off2, acc, first, frag, aop, va2=None, extra=None):
        def rd(t):
            if va2 is None:
                A(f'ds_read_b64_tr_b16 {v(frag+4*t,2)}, {v(va)} offset:{32*t}')
                A(f'ds_read_b64_tr_b16 {v(frag+4*t+2,2)}, {v(va)} offset:{32*t+off2}')
            else:
                A(f'ds_read_b64_tr_b16 {v(frag+4*t,2)}, {v(va+(t&3))} offset:{128*(t>>2)}')
                A(f'ds_read_b64_tr_b16 {v(frag+4*t+2,2)}, {v(va2+(t&3))} offset:{128*(t>>2)}')
        pre = min(4, ntile)
        for t in range(pre): rd(t)
        for t in range(ntile):
            if t + pre < ntile: rd(t + pre)
            if extra and t + pre == ntile - 1: A(extra)
            left = min(ntile - 1, t + pre) - t
            A(f's_waitcnt lgkmcnt({2*left + (1 if extra and t + pre >= ntile - 1 else 0)})')
            c = '0' if first else v(acc+4*t, 4)
            A(f'v_mfma_f32_16x16x32_bf16 {v(acc+4*t,4)}, {v(aop,4)}, {v(frag+4*t,4)}, {c}')

    A(HEADER)
    A(f'; @launch grid=(256,1,1) block=(320,1,1) lds={LDS}')
    A('.amdgcn_target "amdgcn-amd-amdhsa--gfx950"\n.text')
    if al: A('.p2align 12')
    A(f'.globl {NAME}_kernel\n.p2align 8\n.type {NAME}_kernel,@function\n{NAME}_kernel:')
    A('s_cmp_ge_u32 s2, 256\ns_cbranch_scc1 L_end')
    A('s_load_dwordx16 s[4:19], s[0:1], 0\ns_load_dwordx8 s[20:27], s[0:1], 64')
    if fixdur: A('s_memrealtime s[96:97]')
    if stamps:
        A(f's_memrealtime {sp(sST)}')
        for i in range(2, 16): A(f's_mov_b32 s{sST+i}, 0')
    A(f'v_lshrrev_b32 {v(vT)}, 6, v0\nv_and_b32 {v(vLANE)}, 63, v0')
    A(f'v_readfirstlane_b32 s{sWAVE}, {v(vT)}')
    A(f'v_lshlrev_b32 {v(vL16)}, 4, {v(vLANE)}')
    A(f's_lshr_b32 s{sT0}, s2, 3\ns_lshl_b32 s{sT0}, s{sT0}, 2\ns_and_b32 s{sT1}, s2, 3\ns_add_u32 s{sRHO}, s{sT0}, s{sT1}')
    A(f's_bfe_u32 s{sHALF}, s2, 0x10002\ns_lshr_b32 s{sB}, s{sRHO}, 5\ns_and_b32 s{sH}, s{sRHO}, 31\ns_lshl_b32 s{sJ}, s{sB}, 1\ns_add_u32 s{sJ}, s{sJ}, s{sHALF}')
    A(f's_mul_i32 s{sU2}, s{sH}, 3\ns_add_u32 s{sU2}, s{sU2}, s{sJ}')
    A(f's_mov_b32 s{sSC}, {f2u(192**-0.5):#x}\ns_mov_b32 s{sL2E}, {f2u(1.4426950408889634):#x}')
    def ws_srd():
        A(f's_mov_b32 s{rWS}, s{sWS}\ns_mov_b32 s{rWS+1}, s{sWS+1}')
    A(f's_mov_b32 s{rWS+2}, {WSZ}\ns_mov_b32 s{rWS+3}, 0x20000')
    def vote_slot(src, sidx, sslot):
        A(f's_mul_i32 s{sidx}, s{src}, 3\ns_lshr_b32 s{sidx}, s{sidx}, 5\ns_lshl_b32 s{sslot}, s{sidx}, 5\ns_add_u32 s{sslot}, s{sslot}, 2\ns_mul_i32 s{sslot}, s{sslot}, 43691\ns_lshr_b32 s{sslot}, s{sslot}, 17\ns_sub_u32 s{sslot}, s{src}, s{sslot}')
    sIDX, sSLT = 40, 41
    A(f's_cmp_eq_u32 s{sWAVE}, 4\ns_cbranch_scc0 L_noprobe')
    if prio: A(f's_setprio {prio}')
    vote_slot(2, sIDX, sSLT)
    A(f's_cmp_ge_u32 s{sIDX}, 12\ns_cselect_b32 s{sT0}, 12, 0\ns_sub_u32 s{sT0}, s{sIDX}, s{sT0}')
    A(f's_lshl_b32 s{sT0}, s{sT0}, 3\ns_and_b32 s{sT1}, s{sSLT}, 7\ns_add_u32 s{sT0}, s{sT0}, s{sT1}\ns_lshl_b32 s{sT0}, s{sT0}, 21')
    A(f's_lshr_b32 s{sT1}, s{sSLT}, 3\ns_lshl_b32 s{sT1}, s{sT1}, 12\nv_mov_b32 {v(vT+4)}, 0\ns_mov_b64 exec, 1\ns_cmp_ge_u32 s{sIDX}, 12')
    A('s_waitcnt lgkmcnt(0)')
    A(f's_cselect_b32 s{sP}, s{sV}, s{sK}\ns_cselect_b32 s{sP+1}, s{sV+1}, s{sK+1}\ns_add_u32 s{sP}, s{sP}, s{sT0}\ns_addc_u32 s{sP+1}, s{sP+1}, 0')
    A(f's_bfe_u32 s{sT0}, s{sP}, 0x10015\ns_lshl_b32 s{sT0}, s{sT0}, 13\ns_add_u32 s{sT0}, s{sT0}, s{sT1}')
    A(f'v_mov_b32 {v(vT)}, s{sT0}\nv_xor_b32 {v(vT+1)}, 0x2000, {v(vT)}')
    A(f'global_load_dword {v(vT+2)}, {v(vT)}, {sp(sP)} nt\nglobal_load_dword {v(vT+3)}, {v(vT+1)}, {sp(sP)} nt\ns_mov_b64 exec, -1')
    if gord >= 2: A(f'global_load_dword {v(vTAG)}, {v(vT+4)}, {sp(sWS)} sc1')
    A('s_barrier')
    ws_srd()
    e_ = 1 if gord >= 2 else 0
    A(f's_waitcnt vmcnt({1+e_})\ns_memtime s[36:37]\ns_waitcnt vmcnt({e_})\ns_memtime s[38:39]')
    if gord < 2: A(f'global_load_dword {v(vTAG)}, {v(vT+4)}, {sp(sWS)} sc1')
    A('s_branch L_helper\nL_noprobe:')

    sO1, sO2, sOK = sN0, sN1, sFLV
    A(f's_cmp_ge_u32 s{sJ}, 3\ns_cbranch_scc0 L_w1mlp')
    A(f's_mov_b32 s{sBETA}, s{sH}\ns_sub_u32 s{sPI}, s{sJ}, 3\ns_mov_b32 s{sRS}, 12288\ns_mov_b32 s{sHASW1}, 1\ns_mul_i32 s{sO1}, s{sH}, 384')
    A('s_branch L_w1done\nL_w1mlp:')
    A(f's_mul_i32 s{sT1}, s{sU2}, 52429\ns_lshr_b32 s{sT1}, s{sT1}, 18')
    A(f's_mul_i32 s{sT2}, s{sT1}, 5\ns_sub_u32 s{sPI}, s{sU2}, s{sT2}\ns_add_u32 s{sBETA}, s{sT1}, 32\ns_mov_b32 s{sRS}, 3072')
    A(f's_cmp_lt_u32 s{sU2}, 80\ns_cselect_b32 s{sHASW1}, 1, 0\ns_and_b32 s{sT1}, s{sT1}, 7\ns_mul_i32 s{sO1}, s{sT1}, 384')
    A('L_w1done:')
    A(f's_lshl_b32 s{sT1}, s{sPI}, 2\ns_add_u32 s{sT1}, s{sT1}, s{sWAVE}\ns_lshl_b32 s{sT1}, s{sT1}, 5\ns_mul_i32 s{sT1}, s{sT1}, s{sRS}\ns_add_u32 s{sO1}, s{sO1}, s{sT1}')
    A(f's_mul_i32 s{sT1}, s{sRS}, 31\ns_add_u32 s{sT1}, s{sT1}, 384\ns_mul_i32 s{rW1+2}, s{sT1}, s{sHASW1}\ns_mov_b32 s{rW1+3}, 0x20000')
    if now: A(f's_mov_b32 s{rW1+2}, 0')
    for p in range(3):
        A(f'v_add_u32 {v(vT)}, {64*p}, {v(vLANE)}\nv_mul_u32_u24 {v(vT+1)}, 2731, {v(vT)}\nv_lshrrev_b32 {v(vT+1)}, 16, {v(vT+1)}')
        A(f'v_mul_u32_u24 {v(vT+2)}, 24, {v(vT+1)}\nv_sub_u32 {v(vT)}, {v(vT)}, {v(vT+2)}\nv_lshlrev_b32 {v(vT)}, 4, {v(vT)}')
        if not w1sw: A(f'v_mad_u32_u24 {v(vS+p)}, {v(vT+1)}, s{sRS}, {v(vT)}')
        A(f'v_and_b32 {v(vT+3)}, 6, {v(vT+1)}\nv_lshlrev_b32 {v(vT+3)}, 4, {v(vT+3)}\nv_xor_b32 {v(vT)}, {v(vT)}, {v(vT+3)}\nv_lshl_add_u32 {v(vSRC+p)}, {v(vT+2)}, 4, {v(vT)}')
        if w1sw: A(f'v_mad_u32_u24 {v(vS+p)}, {v(vT+1)}, s{sRS}, {v(vT)}')
    A(f's_mul_i32 s{sSLA}, s{sWAVE}, {RING}\ns_add_u32 s{sSLB}, s{sSLA}, {SLOT}\ns_mul_i32 s{sSLC}, s{sWAVE}, {WT}\ns_add_u32 s{sSLC}, s{sSLC}, {WREG}')
    A(f's_mul_i32 s{sT0}, s{sWAVE}, 1280\nv_lshlrev_b32 {v(vA)}, 2, {v(vLANE)}\nv_add_u32 {v(vA)}, s{sT0}, {v(vA)}\ns_mul_i32 s{sOK}, s{sRHO}, 1572864')
    if touch >= 2:
        rot3(sT2, sT1)
        A(f's_lshl_b32 s{sT2}, s{sT2}, 19\ns_add_u32 s{sT2}, s{sT2}, s{sOK}\ns_mul_i32 s{sT3}, s{sRS}, 31\ns_mul_i32 s{sT1}, s{sH}, {192*1280}')
    A(f's_cmp_lt_u32 s{sBETA}, 40')
    A('s_waitcnt lgkmcnt(0)')
    pstamp(1)
    if stamps == 3: A(f's_cmp_lt_u32 s{sBETA}, 40')
    A(f's_cselect_b32 s{rW1}, s{sWG}, s{sWU}\ns_cselect_b32 s{rW1+1}, s{sWG+1}, s{sWU+1}\ns_cmp_lt_u32 s{sBETA}, 32\ns_cselect_b32 s{rW1}, s{sWQ}, s{rW1}\ns_cselect_b32 s{rW1+1}, s{sWQ+1}, s{rW1+1}')
    A(f's_add_u32 s{rW1}, s{rW1}, s{sO1}\ns_addc_u32 s{rW1+1}, s{rW1+1}, 0')
    if touch == 1:
        A(f's_load_dword s97, {sp(rW1)}, 0\ns_load_dword s98, {sp(sX)}, 0\ns_load_dword s99, {sp(sK)}, s{sOK}')
    if touch >= 2:
        A(f's_load_dword s97, {sp(rW1)}, 0\ns_load_dword s98, {sp(sX)}, 0\ns_load_dword s99, {sp(sK)}, s{sT2}\ns_load_dword s97, {sp(sWS)}, 0')
        if touch >= 3: A(f's_load_dword s98, {sp(rW1)}, s{sT3}\ns_load_dword s99, {sp(sWO)}, s{sT1}')
        if touch >= 4: A(f's_mov_b32 s{sT1}, 0x200000\ns_load_dword s97, {sp(sWS)}, s{sT1}\ns_load_dword s98, {sp(sWD)}, 0')
    A('s_barrier')
    pstamp(2)
    for k in range(5): A(f'global_load_dword {v(vF+k)}, {v(vA)}, {sp(sX)} offset:{256*k}')
    def w1_issue():
        A(f's_lshl_b32 s{sT2}, s{sRS}, 3\ns_mov_b32 s{sT1}, 0')
        for i in range(12):
            A(f's_add_u32 m0, s{sSLC}, {1024*i}')
            A(f's_add_u32 s{sT1}, s{sT1}, s{sT2}' if i and i % 3 == 0 else 's_nop 0')
            A(f'buffer_load_dwordx4 {v(vS+i%3)}, {srd(rW1)}, s{sT1} offen {w1nt} lds')
    if late:
        assert up == 0
        A(f's_cmp_ge_u32 s{sJ}, 3\ns_cbranch_scc0 L_w1late')
    w1_issue()
    if late: A('L_w1late:')
    A(f'v_mov_b32 {v(vT)}, 0\nglobal_load_dword {v(vTAG)}, {v(vT)}, {sp(sWS)} sc1')
    pstamp(3)
    ws_srd()
    A(f's_add_u32 s{rK}, s{sK}, s{sOK}\ns_addc_u32 s{rK+1}, s{sK+1}, 0\ns_mov_b32 s{rK+3}, 0x20000')
    A(f's_add_u32 s{sVB}, s{sV}, s{sOK}\ns_addc_u32 s{sVB+1}, s{sV+1}, 0')
    A(f's_lshl_b32 s{sU}, s{sWAVE}, {umap}')
    if rot >= 0:
        rot3(sT1, sT2)
        A(f's_lshl_b32 s{sT1}, s{sT1}, 5\ns_add_u32 s{sU}, s{sU}, s{sT1}')
    A(f's_mov_b32 s{sU0}, s{sU}')
    block_params(1, sN0)
    dma_tile(sOFF, sSLA, None, 0, up, knt)
    A(f's_cmp_lt_u32 s{sJ}, 5\ns_cbranch_scc0 L_w2down')
    A(f's_mul_i32 s{sT1}, s{sH}, {192*1280}\ns_lshl_b32 s{sT2}, s{sJ}, 8\ns_add_u32 s{sT1}, s{sT1}, s{sT2}')
    if wlate:
        A(f's_lshl_b32 s{sT2}, s{sWAVE}, 6\ns_add_u32 s{sT1}, s{sT1}, s{sT2}\ns_add_u32 s{rW2}, s{sWO}, s{sT1}\ns_addc_u32 s{rW2+1}, s{sWO+1}, 0\ns_mov_b32 s{rW2+2}, {191*1280+64}\ns_mov_b32 s{rW2+3}, 0x20000\ns_branch L_w2fin')
    else: A(f's_add_u32 s{rW2}, s{sWO}, s{sT1}\ns_addc_u32 s{rW2+1}, s{sWO+1}, 0\ns_mov_b32 s{rW2+2}, {47*1280+256}\ns_branch L_w2done')
    A('L_w2down:')
    A(f's_sub_u32 s{sT3}, s{sU2}, 5\ns_mul_i32 s{sT1}, s{sT3}, 52429\ns_lshr_b32 s{sT1}, s{sT1}, 18\ns_mul_i32 s{sT2}, s{sT1}, 5\ns_sub_u32 s{sT2}, s{sT3}, s{sT2}')
    A(f's_mul_i32 s{sT1}, s{sT1}, {96*1280}\ns_lshl_b32 s{sT2}, s{sT2}, 8\ns_add_u32 s{sT1}, s{sT1}, s{sT2}')
    A(f's_add_u32 s{rW2}, s{sWD}, s{sT1}\ns_addc_u32 s{rW2+1}, s{sWD+1}, 0')
    A(f's_cmp_lt_u32 s{sT3}, 80\ns_cselect_b32 s{rW2+2}, {47*1280+256}, 0\ns_cmp_lt_u32 s{sWAVE}, 2\ns_cselect_b32 s{rW2+2}, s{rW2+2}, 0')
    A('L_w2done:')
    A(f's_mul_i32 s{sT1}, s{sWAVE}, {48*1280}\ns_add_u32 s{rW2}, s{rW2}, s{sT1}\ns_addc_u32 s{rW2+1}, s{rW2+1}, 0\ns_mov_b32 s{rW2+3}, 0x20000')
    if now: A(f's_mov_b32 s{rW2+2}, 0')
    if wlate: A('L_w2fin:')
    def vbases(hf):
        A(f'v_lshrrev_b32 {v(vT)}, 2, {v(vLANE)}')
        if hf: A(f'v_min_u32 {v(vT)}, 5, {v(vT)}\nv_add_u32 {v(vT)}, 16, {v(vT)}')
        A(f'v_bfe_u32 {v(vT+2)}, {v(vT)}, 1, 2\nv_mul_u32_u24 {v(vT)}, 384, {v(vT)}\nv_and_b32 {v(vT+3)}, 3, {v(vLANE)}\nv_lshl_add_u32 {v(vT)}, {v(vT+3)}, 3, {v(vT)}')
        for k in range(4): A(f'v_xor_b32 {v(vT+3)}, {k}, {v(vT+2)}\nv_lshl_add_u32 {v(vVB+4*hf+k)}, {v(vT+3)}, 5, {v(vT)}')
    if w1sw:
        vbases(0)
        for k in range(4): A(f'v_add_u32 {v(vAD+k)}, s{sSLC}, {v(vVB+k)}\nv_add_u32 {v(vAD+4+k)}, 6144, {v(vAD+k)}')
    if not w1sw: A(f'v_lshrrev_b32 {v(vT)}, 2, {v(vLANE)}\nv_mul_u32_u24 {v(vT)}, 384, {v(vT)}\nv_and_b32 {v(vT+1)}, 3, {v(vLANE)}\nv_lshl_add_u32 {v(vVA0)}, {v(vT+1)}, 3, {v(vT)}')
    if late:
        A(f's_cmp_ge_u32 s{sJ}, 3\ns_cbranch_scc1 L_xw\ns_waitcnt vmcnt(0)\nL_xw:')
    A(f's_waitcnt vmcnt({1+12+up})')
    pstamp(4)
    X = vF + 8
    for k in range(5):
        A(f'v_lshlrev_b32 {v(X+2*k)}, 16, {v(vF+k)}\nv_and_b32 {v(X+2*k+1)}, 0xffff0000, {v(vF+k)}')
    a = vT
    A(f'v_add_f32 {v(a)}, {v(X)}, {v(X+1)}')
    for k in range(2, 10): A(f'v_add_f32 {v(a)}, {v(a)}, {v(X+k)}')
    xsum(a, a+1)
    A(f'v_mul_f32 {v(a)}, {f2u(1/640):#x}, {v(a)}')
    b_ = vT+2
    A(f'v_sub_f32 {v(a+1)}, {v(X)}, {v(a)}\nv_mul_f32 {v(b_)}, {v(a+1)}, {v(a+1)}')
    for k in range(1, 10): A(f'v_sub_f32 {v(a+1)}, {v(X+k)}, {v(a)}\nv_fmac_f32 {v(b_)}, {v(a+1)}, {v(a+1)}')
    xsum(b_, a+1)
    A(f'v_mul_f32 {v(b_)}, {f2u(1/640):#x}, {v(b_)}')
    rnd2(a, b_, a+1)
    A(f'v_add_f32 {v(b_)}, {f2u(1e-5):#x}, {v(b_)}')
    rnd(b_, a+1)
    c_ = vT+3
    A(f'v_sqrt_f32 {v(c_)}, {v(b_)}\ns_nop 0\nv_rcp_f32 {v(c_+1)}, {v(c_)}\nv_fma_f32 {v(a+1)}, -{v(c_)}, {v(c_)}, {v(b_)}')
    A(f'v_mul_f32 {v(c_+1)}, 0.5, {v(c_+1)}\nv_fma_f32 {v(c_)}, {v(a+1)}, {v(c_+1)}, {v(c_)}')
    rnd(c_, a+1)
    A(f'v_rcp_f32 {v(c_+1)}, {v(c_)}')
    A(f'v_mov_b32 {v(vT+6)}, {v(X)}\nv_mov_b32 {v(vT+7)}, {v(X+1)}')
    for k in range(1, 5):
        A(f's_cmp_eq_u32 s{sPI}, {k}\ns_cselect_b64 vcc, -1, 0\nv_cndmask_b32 {v(vT+6)}, {v(vT+6)}, {v(X+2*k)}, vcc\nv_cndmask_b32 {v(vT+7)}, {v(vT+7)}, {v(X+2*k+1)}, vcc')
    A(f'v_sub_f32 {v(vT+6)}, {v(vT+6)}, {v(a)}\nv_sub_f32 {v(vT+7)}, {v(vT+7)}, {v(a)}')
    rnd2(vT+6, vT+7, a+1)
    fdiv(vT+8, vT+6, c_, c_+1, a+1)
    fdiv(vT+9, vT+7, c_, c_+1, a+1)
    A(f'v_cvt_pk_bf16_f32 {v(vT+8)}, {v(vT+8)}, {v(vT+9)}')
    A(f's_lshl_b32 s{sT1}, s{sWAVE}, 8\ns_add_u32 s{sT1}, s{sT1}, {XN}\nv_lshlrev_b32 {v(vA)}, 2, {v(vLANE)}\nv_add_u32 {v(vA)}, s{sT1}, {v(vA)}')
    A(f'ds_write_b32 {v(vA)}, {v(vT+8)}')
    A(f'v_bfe_u32 {v(vT)}, {v(vLANE)}, 2, 2\nv_lshlrev_b32 {v(vT)}, 8, {v(vT)}\nv_lshrrev_b32 {v(vT+1)}, 4, {v(vLANE)}\nv_lshl_add_u32 {v(vT)}, {v(vT+1)}, 3, {v(vT)}')
    A(f's_lshl_b32 s{sT1}, s{sWAVE}, 6\ns_add_u32 s{sT1}, s{sT1}, {XN}\nv_add_u32 {v(vA)}, s{sT1}, {v(vT)}')
    A('s_waitcnt lgkmcnt(0)\ns_barrier')
    if stamps == 1: stamp(1)
    pstamp(5); qstamp(1)
    A(f'ds_read2_b64 {v(vP,4)}, {v(vA)} offset0:0 offset1:4')
    if late:
        A(f's_cmp_ge_u32 s{sJ}, 3\ns_cbranch_scc1 L_w1early')
        w1_issue()
        A('L_w1early:')
    k0a = max(up, min(9, pace))
    dma_tile(sOFF, sSLA, pace, up, k0a, knt)
    if not w1sw: A(f'v_add_u32 {v(vA)}, s{sSLC}, {v(vVA0)}')
    A(f's_waitcnt vmcnt({k0a}) lgkmcnt(0)')
    pstamp(6); qstamp(2)
    if xtra >= 0:
        dma_tile(sOFF, sSLA, None, k0a, 9, knt)
        block_params(1, sN1)
        dma_tile(sOFF, sSLB, None, 0, xtra, knt)
    if w1sw: trread_mfma(12, vAD, 0, vO, True, vF, vP, vAD+4)
    else: trread_mfma(12, vA, 6144, vO, True, vF, vP)
    qstamp(3)
    A(f's_mul_i32 s{sT1}, s{sWAVE}, 3072\ns_add_u32 s{sT1}, s{sT1}, {RED}')
    A(f'v_lshrrev_b32 {v(vT)}, 4, {v(vLANE)}\nv_mul_u32_u24 {v(vT)}, 768, {v(vT)}\nv_and_b32 {v(vT+1)}, 15, {v(vLANE)}\nv_lshl_add_u32 {v(vT)}, {v(vT+1)}, 2, {v(vT)}\nv_add_u32 {v(vA)}, s{sT1}, {v(vT)}')
    A('s_nop 2')
    for t in range(12): A(f'ds_write_b32 {v(vA)}, {v(vO+4*t)} offset:{64*t}')
    A(f's_mul_i32 s{sT1}, s{sWAVE}, 768\ns_add_u32 s{sT1}, s{sT1}, {RED}\nv_mul_u32_u24 {v(vA)}, 12, {v(vLANE)}\nv_add_u32 {v(vA)}, s{sT1}, {v(vA)}')
    A('s_waitcnt lgkmcnt(0)')
    qstamp(4)
    A('s_barrier')
    qstamp(5)
    for w in range(4):
        for k in range(3): A(f'ds_read_b32 {v(vF+4*w+k)}, {v(vA)} offset:{3072*w+4*k}')
    A(f'v_lshrrev_b32 {v(vT)}, 4, {v(vLANE)}\nv_mul_u32_u24 {v(vT)}, 1280, {v(vT)}\nv_and_b32 {v(vT+1)}, 15, {v(vLANE)}\nv_lshl_add_u32 {v(vS)}, {v(vT+1)}, 4, {v(vT)}')
    A(f's_mul_i32 s{sT1}, s{sBETA}, 5\ns_add_u32 s{sT1}, s{sT1}, s{sPI}\ns_lshl_b32 s{sT1}, s{sT1}, 2\ns_add_u32 s{sT1}, s{sT1}, s{sWAVE}\ns_lshl_b32 s{sT1}, s{sT1}, 10\ns_add_u32 s{sT1}, s{sT1}, {P1}')
    A(f'v_add_u32 {v(vTAG)}, {TAGC:#x}, {v(vTAG)}')
    A('s_waitcnt lgkmcnt(0)')
    for k in range(3):
        A(f'v_add_f32 {v(vF+k)}, {v(vF+k)}, {v(vF+4+k)}\nv_add_f32 {v(vF+8+k)}, {v(vF+8+k)}, {v(vF+12+k)}')
    for k in range(3): A(f'v_add_f32 {v(vF+k)}, {v(vF+k)}, {v(vF+8+k)}')
    A(f'v_mov_b32 {v(vF+3)}, {v(vTAG)}')
    A(f's_cmp_eq_u32 s{sHASW1}, 0\ns_cbranch_scc1 L_nopub1')
    A(f'buffer_store_dwordx4 {v(vF,4)}, {v(vL16)}, {srd(rWS)}, s{sT1} offen sc1')
    A('L_nopub1:')
    qstamp(6)
    stamp(2)
    if xtra >= 0: dma_tile(sOFF, sSLB, pace, xtra, 9, knt)
    else: dma_tile(sOFF, sSLA, pace, k0a, 9, knt)
    A(f's_mov_b32 s{sT1}, 0')
    if wlate: A(f's_cmp_lt_u32 s{sJ}, 5\ns_cbranch_scc1 L_w2skip')
    for i in range(12):
        A(f's_add_u32 m0, s{sSLC}, {1024*i}\ns_waitcnt vmcnt({pace-1})')
        A(f'buffer_load_dwordx4 {v(vS)}, {srd(rW2)}, s{sT1} offen {w2nt} lds')
        if i == qdel: A(f'v_mov_b32 {v(vT)}, {FLG+32}\nv_mov_b32 {v(vT+1)}, 4\nds_write_b32 {v(vT)}, {v(vT+1)}')
        if i < 11: A(f's_add_u32 s{sT1}, s{sT1}, 5120')
    if wlate: A('L_w2skip:')
    if xtra < 0:
        block_params(1, sN1)
        if qdel >= 12 or wlate:
            qk = qdel2 if wlate else qdel - 11
            dma_tile(sOFF, sSLB, pace, 0, min(qk, 9), knt)
            if qk > 9: A(f's_waitcnt vmcnt({max(0, 9 + pace - 1 - qk)})')
            A(f'v_mov_b32 {v(vT)}, {FLG+32}\nv_mov_b32 {v(vT+1)}, 4\nds_write_b32 {v(vT)}, {v(vT+1)}')
            dma_tile(sOFF, sSLB, pace, min(qk, 9), 9, knt)
        else: dma_tile(sOFF, sSLB, pace, 0, 9, knt)
    for t in range(12):
        for r in range(4): A(f'v_mov_b32 {v(vO+4*t+r)}, 0')
    A(f'v_mov_b32 {v(vM)}, {f2u(-1e30):#x}\nv_mov_b32 {v(vML)}, {f2u(-1e30):#x}\nv_mov_b32 {v(vLS)}, 0\ns_mov_b32 s{sNEG}, 0xff80ff80')
    A(f'v_lshrrev_b32 {v(vT+1)}, 4, {v(vLANE)}')
    for hf in range(2):
        A(f'v_and_b32 {v(vT)}, 15, {v(vLANE)}')
        if hf: A(f'v_min_u32 {v(vT)}, 5, {v(vT)}\nv_add_u32 {v(vT)}, 16, {v(vT)}')
        A(f'v_and_b32 {v(vT+2)}, 6, {v(vT)}\nv_xor_b32 {v(vT+2)}, {v(vT+2)}, {v(vT+1)}\nv_mul_u32_u24 {v(vT)}, 384, {v(vT)}')
        A(f'v_lshl_add_u32 {v(vKB+2*hf)}, {v(vT+2)}, 4, {v(vT)}\nv_xor_b32 {v(vT+2)}, 4, {v(vT+2)}\nv_lshl_add_u32 {v(vKB+2*hf+1)}, {v(vT+2)}, 4, {v(vT)}')
    vbases(1)
    if not w1sw: vbases(0)
    A(f'v_cmp_gt_u32 vcc, 16, {v(vLANE)}\nv_mov_b32 {v(vT)}, 0xffff\nv_mov_b32 {v(vT+2)}, 0xffff0000\nv_cndmask_b32 {v(vM3)}, 0, -1, vcc')
    A(f'v_cmp_eq_u32 vcc, 1, {v(vT+1)}\ns_mul_i32 s{sT1}, s{sWAVE}, 1536\ns_add_u32 s{sT1}, s{sT1}, {STG}\nv_cndmask_b32 {v(vM2B)}, {v(vM3)}, {v(vT)}, vcc\nv_cndmask_b32 {v(vM2X)}, 0, {v(vT+2)}, vcc')
    A(f'v_lshl_add_u32 {v(vSK)}, {v(vT+1)}, 4, s{sT1}\nv_add_u32 {v(vSV)}, {22*64}, {v(vSK)}\nv_mov_b32 {v(vFA)}, {FLG+16}\nv_mov_b32 {v(vONE)}, 1')
    A(f'v_add_u32 {v(vT)}, 352, {v(vLANE)}\nv_cmp_gt_u32 vcc, 32, {v(vLANE)}\nv_add_u32 {v(vT+2)}, -32, {v(vLANE)}\ns_nop 0\nv_cndmask_b32 {v(vT)}, {v(vT+2)}, {v(vT)}, vcc\nv_lshl_add_u32 {v(vPA)}, {v(vT)}, 2, s{sT1}')
    A(f's_add_u32 s{sSTG}, s{sT1}, 128')
    A(f'v_lshlrev_b32 {v(vA)}, 4, {v(vT+1)}\nv_add_u32 {v(vA)}, {QL}, {v(vA)}\nv_mov_b32 {v(vT+2)}, {FLG}')
    A('s_waitcnt vmcnt(9)')
    if stamps == 2: stamp(1)
    A('s_barrier')
    stamp(3)
    A(f'ds_read_b64 {v(vT+4,2)}, {v(vT+2)}')
    for s in range(6): A(f'ds_read_b128 {v(vQ+4*s,4)}, {v(vA)} offset:{64*s}')
    A(f's_mov_b32 s{sT}, 0\ns_waitcnt lgkmcnt(6)')
    A(f'v_readfirstlane_b32 s{sFL}, {v(vT+4)}\nv_readfirstlane_b32 s{sFLV}, {v(vT+5)}')
    A(f's_nop 0\ns_mov_b64 {sp(sCM)}, 0')
    grp = [0x3f, 0xff << 6, 0x3f << 14]
    for i in range(3):
        A(f's_bitcmp1_b32 s{sFL}, {i}\ns_cselect_b32 s{sT1}, {grp[i]:#x}, 0\ns_or_b32 s{sCM}, s{sCM}, s{sT1}')
        gv = grp[i] << 26
        A(f's_bitcmp1_b32 s{sFLV}, {i}')
        if gv & 0xffffffff: A(f's_cselect_b32 s{sT1}, {gv & 0xffffffff:#x}, 0')
        if gv >> 32: A(f's_cselect_b32 s{sT2}, {gv >> 32:#x}, 0\ns_or_b32 s{sCM+1}, s{sCM+1}, s{sT2}')
        if gv & 0xffffffff: A(f's_or_b32 s{sCM}, s{sCM}, s{sT1}')
    for k in range(2):
        A(f's_bitcmp1_b32 s{sRHO}, 0\ns_cselect_b32 s{sT1}, s{sFL if k else sFLV}, s{sFLV if k else sFL}\ns_bitcmp1_b32 s{sT1}, 2\ns_cselect_b32 s{sT1}, {5 << (20+k):#x}, 0\ns_or_b32 s{sCM}, s{sCM}, s{sT1}')
    A(f's_sub_u32 s{sT1}, 0, s{sHALF}\ns_xor_b32 s{sCM}, s{sCM}, s{sT1}\ns_xor_b32 s{sCM+1}, s{sCM+1}, s{sT1}')
    A(f's_mov_b32 s{sPUB}, 4\ns_waitcnt lgkmcnt(0)')
    def arrive():
        A(f's_mov_b64 exec, 1\nds_add_u32 {v(vFA)}, {v(vONE)}\ns_mov_b64 exec, -1')
    chk = f'ds_read_b128 {v(vR,4)}, {v(vFA)}'
    def step_wait(lbl):
        if not sync: return
        A(f'{lbl}:\ns_waitcnt lgkmcnt(0)\nv_readfirstlane_b32 s{sT1}, {v(vR)}\ns_nop 0\ns_cmp_ge_u32 s{sT1}, s{sPUB}\ns_cbranch_scc1 {lbl}_ok')
        A(f'{chk}\ns_branch {lbl}\n{lbl}_ok:')
    def wo_frags(vA=vA):
        A(f'v_lshrrev_b32 {v(vT)}, 2, {v(vLANE)}\nv_lshlrev_b32 {v(vT)}, 8, {v(vT)}\nv_and_b32 {v(vT+1)}, 3, {v(vLANE)}\nv_lshl_add_u32 {v(vT)}, {v(vT+1)}, 3, {v(vT)}')
        A(f's_lshl_b32 s{sT3}, s{sWAVE}, 6\ns_add_u32 s{sT3}, s{sT3}, {WREG}\nv_add_u32 {v(vA)}, s{sT3}, {v(vT)}')
        for s in range(6):
            for t in range(2):
                f = vW + 24*t + 4*s
                A(f'ds_read_b64_tr_b16 {v(f,2)}, {v(vA)} offset:{8192*s+32*t}\nds_read_b64_tr_b16 {v(f+2,2)}, {v(vA)} offset:{8192*s+32*t+4096}')
            if s % 2 == 1 and s < 5: A('s_waitcnt lgkmcnt(4)')
    A('.p2align 6\nL_kloop:')
    for k in range(4): A(f'v_add_u32 {v(vAD+k)}, s{sSLA}, {v(vKB+k)}')
    A('s_waitcnt vmcnt(9)')
    arrive()
    for kt in range(2):
        for s in range(6):
            if not (nocomp & 1): A(f'ds_read_b128 {v(vF+24*kt+4*s,4)}, {v(vAD+2*kt+(s&1))} offset:{128*(s>>1)}')
    A(chk)
    A(f'v_and_or_b32 {v(vT+8)}, {v(vM2X)}, s{sN0}, {v(vM2B)}\ns_mov_b32 s{sN0}, s{sN1}')
    A(f's_cmp_lg_u32 s{sT}, 22\ns_cbranch_scc1 L_knosw')
    A(f's_mov_b32 s{rK}, s{sVB}\ns_mov_b32 s{rK+1}, s{sVB+1}\ns_cmp_ge_u32 s{sU0}, 8\ns_cselect_b32 s{sU}, -8, 88\ns_add_u32 s{sU}, s{sU}, s{sU0}')
    A('L_knosw:')
    block_params(0, sN1)
    for kt in range(2):
        for s in range(6):
            i = 6*kt + s
            A(f's_waitcnt lgkmcnt({12-i})')
            c = '0' if s == 0 else v(vS+4*kt, 4)
            A(f'v_mfma_f32_16x16x32_bf16 {v(vS+4*kt,4)}, {v(vF+4*i,4)}, {v(vQ+4*s,4)}, {c}')
    step_wait('L_ks')
    dma_tile(sOFF, sSLA, None, 0, pre, knt)
    A(f's_nop {max(0, 7 - 3*pre)}')
    for k in range(4): rnd2(vS+2*k, vS+2*k+1, vT+k)
    for k in range(8): A(f'v_mul_f32 {v(vS+k)}, s{sSC}, {v(vS+k)}')
    for k in range(4): A(f'v_cvt_pk_bf16_f32 {v(vT+k)}, {v(vS+2*k)}, {v(vS+2*k+1)}')
    A(f'v_bfi_b32 {v(vT+2)}, {v(vT+8)}, {v(vT+2)}, s{sNEG}\nv_bfi_b32 {v(vT+3)}, {v(vM3)}, {v(vT+3)}, s{sNEG}')
    A(f's_mov_b32 exec_lo, 0x00010001\ns_mov_b32 exec_hi, 0x00010001\nds_write_b128 {v(vSK)}, {v(vT,4)}\ns_mov_b64 exec, -1\nv_add_u32 {v(vSK)}, 64, {v(vSK)}')
    A(f's_cmp_eq_u32 s{sT}, 23\ns_cbranch_scc1 L_spa')
    kbal = bal and min(cpl) < 20
    if kbal:
        A(f'v_readfirstlane_b32 s{sT1}, {v(vR+2)}\ns_nop 0\ns_cmp_gt_i32 s{sT1}, s{sT}\ns_cbranch_scc1 L_kup')
        if bneg: A(f's_add_i32 s{sT1}, s{sT1}, s{sT}\ns_cmp_lt_i32 s{sT1}, 0\ns_cbranch_scc1 L_kdn')
    dma_tile(sOFF, sSLA, D, pre, 9, knt)
    A('L_kpe:')
    A(f's_mov_b32 s{sT1}, s{sSLA}\ns_mov_b32 s{sSLA}, s{sSLB}\ns_mov_b32 s{sSLB}, s{sT1}')
    A(f's_add_u32 s{sT}, s{sT}, 1\ns_add_u32 s{sPUB}, s{sPUB}, 4\ns_branch L_kloop')
    A('.p2align 6\nL_vloop:')
    for k in range(8): A(f'v_add_u32 {v(vAD+k)}, s{sSLA}, {v(vVB+k)}')
    A(f'ds_read_b128 {v(vP,4)}, {v(vSV)}\ns_cmp_eq_u32 s{sT}, 25\ns_cselect_b32 s{sT1}, {64-1536}, 64\nv_add_u32 {v(vSV)}, s{sT1}, {v(vSV)}')
    A(f's_cmp_lg_u32 s{sT}, 24\ns_cbranch_scc1 L_vnosw\ns_mov_b32 s{sU}, s{sU0}\nL_vnosw:')
    block_params(2, sN1)
    if wlate: A(f's_cmp_eq_u32 s{sT}, 47\ns_cbranch_scc1 L_vw12')
    A('s_waitcnt vmcnt(9)')
    if wlate: A('L_vw12:\ns_waitcnt vmcnt(12)')
    arrive()
    if not (nocomp & 2): trread_mfma(12, vAD, 0, vO, False, vF, vP, vAD+4, chk)
    else: A(chk)
    A(f's_cmp_eq_u32 s{sT}, 47\ns_cbranch_scc1 L_loopx')
    step_wait('L_vs')
    if wlate: A(f's_cmp_eq_u32 s{sT}, 46\ns_cbranch_scc1 L_wl')
    dma_tile(sOFF, sSLA, None, 0, pre, vnt)
    A(f's_cmp_eq_u32 s{sT}, 27\ns_cbranch_scc1 L_spb')
    A('L_vmid:')
    if bal:
        A(f'v_readfirstlane_b32 s{sT2}, {v(vR+2)}\ns_nop 0')
        if bneg and lastneg: A(f's_add_i32 s{sT1}, s{sT2}, s{sT}\ns_cmp_lt_i32 s{sT1}, 0\ns_cbranch_scc1 L_vdn')
    if nend:
        A(f's_cmp_ge_u32 s{sT}, {46-nend}\ns_cbranch_scc0 L_vpc')
        dma_tile(sOFF, sSLA, Dend if Dend < 18 else None, pre, 9, vnt)
        A('s_branch L_vpe\nL_vpc:')
    if bal:
        A(f's_cmp_gt_i32 s{sT2}, s{sT}\ns_cbranch_scc1 L_vup')
        if bneg and not lastneg: A(f's_add_i32 s{sT1}, s{sT2}, s{sT}\ns_cmp_lt_i32 s{sT1}, 0\ns_cbranch_scc1 L_vdn')
    dma_tile(sOFF, sSLA, D, pre, 9, vnt)
    A('L_vpe:')
    A(f's_mov_b32 s{sT1}, s{sSLA}\ns_mov_b32 s{sSLA}, s{sSLB}\ns_mov_b32 s{sSLB}, s{sT1}')
    A(f's_add_u32 s{sT}, s{sT}, 1\ns_add_u32 s{sPUB}, s{sPUB}, 4\ns_branch L_vloop')
    A('L_loopx:')
    stamp(4)
    if lred:
        A('s_mov_b64 exec, 0xffff\ns_nop 3')
        for t in range(12): A(f'ds_write_b32 {v(vSK)}, {v(vO+4*t)} offset:{64*t}')
        A('s_mov_b64 exec, -1')
    else:
        xsum(vLS, vT)
        A(f's_lshl_b32 s{sT1}, s{sWAVE}, 10\ns_add_u32 s{sT1}, s{sT1}, {OCB}\nv_lshlrev_b32 {v(vA)}, 2, {v(vLANE)}\nv_add_u32 {v(vA)}, s{sT1}, {v(vA)}')
        A('s_mov_b64 exec, 0xffff')
        for t in range(12): A(f'ds_write_b32 {v(vA)}, {v(vO+4*t)} offset:{64*t}')
        A(f's_mov_b64 exec, 1\nds_write2_b32 {v(vA)}, {v(vML)}, {v(vLS)} offset0:192 offset1:193\ns_mov_b64 exec, -1')
    A('s_waitcnt lgkmcnt(0)\ns_barrier')
    A(f's_cmp_ge_u32 s{sJ}, 5\ns_cbranch_scc1 L_sdone')
    if not wearly and not wlate and po >= 0: wo_frags()
    A(f's_lshl_b32 s{sT1}, s{sH}, 3\ns_lshl_b32 s{sT2}, s{sWAVE}, 1\ns_add_u32 s{sT1}, s{sT1}, s{sT2}\ns_lshl_b32 s{sT1}, s{sT1}, 11\ns_add_u32 s{sT1}, s{sT1}, {OP}\ns_add_u32 s{sT2}, s{sT1}, 2048')
    A(f'v_mov_b32 {v(vA)}, 1024')
    def o_addr():
        A(f's_mul_i32 s{sT3}, s{sWAVE}, 384\ns_add_u32 s{sT3}, s{sT3}, {OBF}\nv_mul_u32_u24 {v(vAD)}, 6, {v(vLANE)}\nv_add_u32 {v(vAD)}, s{sT3}, {v(vAD)}')
        A(f'v_bfe_u32 {v(vT+2)}, {v(vLANE)}, 2, 2\nv_mul_u32_u24 {v(vT+2)}, 384, {v(vT+2)}\nv_lshrrev_b32 {v(vT+3)}, 4, {v(vLANE)}\nv_lshl_add_u32 {v(vT+2)}, {v(vT+3)}, 3, {v(vT+2)}\nv_add_u32 {v(vAD+1)}, {OBF}, {v(vT+2)}')
        A(f's_lshl_b32 s{sN0}, s{sJ}, 2\ns_add_u32 s{sN0}, s{sN0}, s{sWAVE}\ns_lshl_b32 s{sN0}, s{sN0}, 5\ns_add_u32 s{sN0}, s{sN0}, s{sH}\ns_lshl_b32 s{sN0}, s{sN0}, {9 if y8 else 10}\ns_add_u32 s{sN0}, s{sN0}, {YP}')
        if po < 0 and not wearly: wo_frags(vAD+2)
    if po >= 0: o_addr()
    mko = lambda b: [wsload(b, vL16, sT1), wsload(b+4, vL16, sT2), wsload(b+8, vA, sT1), wsload(b+12, vA, sT2)]
    w0_, w1_, l0_, l1_, on_ = vQ, vQ+1, vQ+2, vQ+3, vQ+4
    def useo(b):
        A(f'v_max_f32 {v(vT)}, {v(b+8)}, {v(b+12)}\nv_sub_f32 {v(w0_)}, {v(b+8)}, {v(vT)}\nv_sub_f32 {v(w1_)}, {v(b+12)}, {v(vT)}\nv_exp_f32 {v(w0_)}, {v(w0_)}\nv_exp_f32 {v(w1_)}, {v(w1_)}\ns_nop 0')
        A(f'v_mul_f32 {v(l0_)}, {v(b+9)}, {v(w0_)}\nv_fmac_f32 {v(l0_)}, {v(b+13)}, {v(w1_)}\nv_rcp_f32 {v(l1_)}, {v(l0_)}')
        for k in range(3): A(f'v_mul_f32 {v(on_+k)}, {v(b+k)}, {v(w0_)}\nv_fmac_f32 {v(on_+k)}, {v(b+4+k)}, {v(w1_)}')
    if wlate:
        for x in mko(vF): A(x)
        A(f'v_lshrrev_b32 {v(vT)}, 2, {v(vLANE)}\nv_lshlrev_b32 {v(vT)}, 6, {v(vT)}\nv_and_b32 {v(vT+1)}, 3, {v(vLANE)}\nv_lshl_add_u32 {v(vT)}, {v(vT+1)}, 3, {v(vT)}\nv_add_u32 {v(vAL)}, s{sSLC}, {v(vT)}')
        A('s_waitcnt vmcnt(4)')
        for s_ in range(6):
            for t in range(2):
                f = vW + 24*t + 4*s_
                A(f'ds_read_b64_tr_b16 {v(f,2)}, {v(vAL)} offset:{2048*s_+32*t}\nds_read_b64_tr_b16 {v(f+2,2)}, {v(vAL)} offset:{2048*s_+32*t+1024}')
            if s_ % 2 == 1 and s_ < 5: A('s_waitcnt lgkmcnt(4)')
        A(f's_mov_b32 s{sCNT}, {spin}\ns_branch L_po_w')
        poll('L_po', mko(vF), [vF+3, vF+7, vF+11, vF+15], 4, 'L_po_w')
        useo(vF)
    elif po: poll2('L_po', mko, 4, vF, vF+16, 4, po if po > 0 else o_addr, useo)
    else:
        (polls if sel & 1 else poll)('L_po', mko(vF), [vF+3, vF+7, vF+11, vF+15], 4)
        useo(vF)
    stamp(5)
    for k in range(3): fdiv(on_+4+k, on_+k, l0_, l1_, vT)
    put3_bf16(on_+4, vT, vAD)
    A('s_waitcnt lgkmcnt(0)\ns_barrier')
    for s in range(6): A(f'ds_read2_b64 {v(vO+4*s,4)}, {v(vAD+1)} offset0:{8*s} offset1:{8*s+4}')
    for s in range(6):
        A(f's_waitcnt lgkmcnt({5-s})')
        for t in range(2):
            c = '0' if s == 0 else v(vS+4*t, 4)
            A(f'v_mfma_f32_16x16x32_bf16 {v(vS+4*t,4)}, {v(vO+4*s,4)}, {v(vW+24*t+4*s,4)}, {c}')
    if y8:
        A(f'v_mov_b32 {v(vT+1)}, {v(vTAG)}\nv_lshlrev_b32 {v(vA)}, 3, {v(vLANE)}\ns_nop 5')
        A(f'v_cvt_pk_bf16_f32 {v(vT)}, {v(vS)}, {v(vS+4)}')
        A(f'buffer_store_dwordx2 {v(vT,2)}, {v(vA)}, {srd(rWS)}, s{sN0} offen sc1')
    else:
        A(f'v_mov_b32 {v(vT+2)}, {v(vTAG)}\nv_mov_b32 {v(vT+3)}, {v(vTAG)}\ns_nop 5')
        A(f'v_mov_b32 {v(vT)}, {v(vS)}\nv_mov_b32 {v(vT+1)}, {v(vS+4)}')
        A(f'buffer_store_dwordx4 {v(vT,4)}, {v(vL16)}, {srd(rWS)}, s{sN0} offen sc1')
    A('L_sdone:')
    if fixdur:
        A(f'L_fix:\ns_memrealtime s[98:99]\ns_waitcnt lgkmcnt(0)\ns_sub_u32 s98, s98, s96\ns_cmp_lt_u32 s98, {fixdur*100}\ns_cbranch_scc1 L_fix')
    stamp(6)
    if stamps:
        A(f's_cmp_lg_u32 s{sWAVE}, 0\ns_cbranch_scc1 L_end\ns_waitcnt vmcnt(0)')
        stamp(7)
        write_stamps(0, 's')
    A('s_endpgm')

    def soft_pass(n, addr, off):
        X = vF
        for i in range(n): A(f'ds_read_b32 {v(vT+8+i)}, {v(addr)} offset:{off*i}')
        for i in range(n):
            A(f's_waitcnt lgkmcnt({n-1-i})\nv_lshlrev_b32 {v(X+2*i)}, 16, {v(vT+8+i)}\nv_and_b32 {v(X+2*i+1)}, 0xffff0000, {v(vT+8+i)}\nv_max3_f32 {v(vM)}, {v(X+2*i)}, {v(X+2*i+1)}, {v(vM)}')
        xsum(vM, vT, 'v_max_f32')
        A(f'v_mul_f32 {v(vT)}, s{sL2E}, {v(vM)}\nv_sub_f32 {v(vAL)}, {v(vML)}, {v(vT)}\nv_mov_b32 {v(vML)}, {v(vT)}\nv_exp_f32 {v(vAL)}, {v(vAL)}')
        for k in range(2*n): A(f'v_fma_f32 {v(X+k)}, {v(X+k)}, s{sL2E}, -{v(vML)}')
        for k in range(2*n): A(f'v_exp_f32 {v(X+k)}, {v(X+k)}')
        A(f'v_mul_f32 {v(vLS)}, {v(vLS)}, {v(vAL)}')
        for i in range(n):
            A(f'v_cvt_pk_bf16_f32 {v(vT+8+i)}, {v(X+2*i)}, {v(X+2*i+1)}\nv_add_f32 {v(vLS)}, {v(vLS)}, {v(X+2*i)}\nv_add_f32 {v(vLS)}, {v(vLS)}, {v(X+2*i+1)}')
            A(f'ds_write_b32 {v(addr)}, {v(vT+8+i)} offset:{off*i}')
    if kbal:
        A('L_kup:')
        dma_tile(sOFF, sSLA, D+bal, pre, 9, knt)
        A('s_branch L_kpe\nL_kdn:')
        dma_tile(sOFF, sSLA, D-bneg, pre, 9, knt)
        A('s_branch L_kpe')
    if bal:
        A('; ---- a workgroup that lags the others keeps more loads in flight for a few steps')
        A('L_vup:')
        dma_tile(sOFF, sSLA, D+bal, pre, 9, vnt)
        A('s_branch L_vpe')
        if bneg:
            A('L_vdn:')
            dma_tile(sOFF, sSLA, D-bneg, pre, 9, vnt)
            A('s_branch L_vpe')
    if wlate:
        A('; ---- nothing left to stream: the wo slice of this wave (192 rows x 32 columns) follows the last V block')
        A(f'L_wl:\ns_cmp_ge_u32 s{sJ}, 5\ns_cselect_b32 s{rW2+2}, 0, s{rW2+2}')
        A(f'v_lshrrev_b32 {v(vT)}, 2, {v(vLANE)}\nv_mul_u32_u24 {v(vT)}, 1280, {v(vT)}\nv_and_b32 {v(vT+1)}, 3, {v(vLANE)}\nv_lshl_add_u32 {v(vA)}, {v(vT+1)}, 4, {v(vT)}\ns_mov_b32 s{sT1}, 0')
        for i in range(12):
            A(f's_add_u32 m0, s{sSLA if False else sSLC}, {1024*i}')
            A(f's_add_u32 s{sT1}, s{sT1}, 20480' if i else 's_nop 0')
            A(f'buffer_load_dwordx4 {v(vA)}, {srd(rW2)}, s{sT1} offen {w2nt} lds')
        A('s_branch L_vpe')
    A('L_spa:')
    soft_pass(1, vPA, 0)
    A('s_branch L_vmid')
    A('L_spb:')
    if not noex:
        A(f's_mov_b32 s{sCNT}, {spin*8}')
        A(f'L_vchk:\ns_waitcnt lgkmcnt(0)\nv_readfirstlane_b32 s{sT1}, {v(vR+1)}\ns_sub_u32 s{sCNT}, s{sCNT}, 1\ns_cmp_eq_u32 s{sCNT}, 0\ns_cbranch_scc1 L_vnoc')
        A(f's_cmp_lg_u32 s{sT1}, 0\ns_cbranch_scc1 L_vnoc\n{chk}\ns_branch L_vchk\nL_vnoc:')
    A(f'v_lshl_add_u32 {v(vPA)}, {v(vLANE)}, 2, s{sSTG}')
    soft_pass(5, vPA, 256)
    for t in range(12): A(f'v_mul_f32 {v(vO+4*t)}, {v(vAL)}, {v(vO+4*t)}')
    if lred:
        xsum(vLS, vT)
        A(f's_lshl_b32 s{sT1}, s{sWAVE}, 10\ns_add_u32 s{sT1}, s{sT1}, {OCB}\nv_lshlrev_b32 {v(vSK)}, 2, {v(vLANE)}\nv_add_u32 {v(vSK)}, s{sT1}, {v(vSK)}')
        A(f's_mov_b64 exec, 1\nds_write2_b32 {v(vSK)}, {v(vML)}, {v(vLS)} offset0:192 offset1:193\ns_mov_b64 exec, -1')
    if wearly == 1:
        A(f's_cmp_ge_u32 s{sJ}, 5\ns_cbranch_scc1 L_vmid\ns_waitcnt lgkmcnt(0)')
        wo_frags()
        A('s_waitcnt lgkmcnt(0)')
    if wearly == 2 and not wlate:
        A(f's_cmp_ge_u32 s{sJ}, 5\ns_cbranch_scc1 L_vmid')
        A(f'v_lshrrev_b32 {v(vT)}, 2, {v(vLANE)}\nv_lshlrev_b32 {v(vT)}, 8, {v(vT)}\nv_and_b32 {v(vT+1)}, 3, {v(vLANE)}\nv_lshl_add_u32 {v(vT)}, {v(vT+1)}, 3, {v(vT)}')
        A(f's_lshl_b32 s{sT1}, s{sWAVE}, 6\ns_add_u32 s{sT1}, s{sT1}, {WREG}\nv_add_u32 {v(vA)}, s{sT1}, {v(vT)}')
        for s_ in range(max(6, 9-pre)):
            if pre + s_ < 9: dma_tile(sOFF, sSLA, D, pre + s_, pre + s_ + 1, vnt)
            if s_ < 6:
                A('s_waitcnt lgkmcnt(4)')
                for t in range(2):
                    f = vW + 24*t + 4*s_
                    A(f'ds_read_b64_tr_b16 {v(f,2)}, {v(vA)} offset:{8192*s_+32*t}\nds_read_b64_tr_b16 {v(f+2,2)}, {v(vA)} offset:{8192*s_+32*t+4096}')
        A('s_waitcnt lgkmcnt(0)\ns_branch L_vpe')
    A('s_branch L_vmid')
    def hwait(n, lbl, hsl=hsl):
        A(f's_mov_b32 s{sCNT}, {spin*8}\n{lbl}:\nds_read_b32 {v(vT)}, {v(vXF)}\ns_sub_u32 s{sCNT}, s{sCNT}, 1\ns_cmp_eq_u32 s{sCNT}, 0\ns_cbranch_scc1 {lbl}_ok')
        A(f's_waitcnt lgkmcnt(0)\nv_readfirstlane_b32 s{sT0}, {v(vT)}\ns_nop 0\ns_cmp_ge_u32 s{sT0}, {4*n}\ns_cbranch_scc1 {lbl}_ok\n{f"s_sleep {hsl}" if hsl and not nosleep else ""}\ns_branch {lbl}\n{lbl}_ok:')
    vXA, vXF, vXB = vQ+12, vQ+13, vQ+14
    A('L_helper:')
    inhelper[0] = True
    A(f's_getreg_b32 s{sT3}, hwreg(HW_REG_XCC_ID, 2, 1)')
    A('s_waitcnt lgkmcnt(0)')
    A(f's_sub_u32 s{sT0}, s38, s36\ns_min_u32 s{sT0}, s{sT0}, {cap}\ns_sub_u32 s{sT0}, s{sT0}, {thr}\ns_sub_u32 s{sT1}, 0, s{sT0}')
    A(f's_cmp_eq_u32 s{sT3}, 0\ns_cselect_b32 s{sT0}, s{sT0}, s{sT1}')
    A(f'v_mov_b32 {v(vP)}, s{sT0}\nv_mov_b32 {v(vP+1)}, s{sT3}\nv_mov_b32 {v(vP+2)}, 0')
    A(f's_lshl_b32 s{sT0}, s{sIDX}, 4\ns_add_u32 s{sT0}, s{sT0}, s{sSLT}\ns_lshl_b32 s{sT0}, s{sT0}, 4\ns_add_u32 s{sT0}, s{sT0}, {VOTE}')
    if gord in (1, 3):
        if qdel >= 0: A(f'v_mov_b32 {v(vXF)}, {FLG+32}\nv_mov_b32 {v(vT)}, 0\nds_write_b32 {v(vXF)}, {v(vT)}\ns_waitcnt lgkmcnt(0)')
        A('s_barrier')
    A(f's_waitcnt vmcnt(0)\nv_add_u32 {v(vTAG)}, {TAGC:#x}, {v(vTAG)}\nv_mov_b32 {v(vP+3)}, {v(vTAG)}')
    A(f's_mov_b64 exec, 1\nbuffer_store_dwordx4 {v(vP,4)}, {v(vL16)}, {srd(rWS)}, s{sT0} offen sc1\ns_mov_b64 exec, -1')
    sCA, sCB2 = 42, 43
    A(f's_mul_i32 s{sT0}, s{sRHO}, 3\ns_lshr_b32 s{sCA}, s{sT0}, 5\ns_add_u32 s{sT0}, s{sT0}, 2\ns_lshr_b32 s{sCB2}, s{sT0}, 5')
    A(f'v_lshrrev_b32 {v(vT)}, 5, {v(vLANE)}\nv_mul_u32_u24 {v(vT)}, 12, {v(vT)}\nv_bfe_u32 {v(vT+1)}, {v(vLANE)}, 4, 1\ns_sub_u32 s{sT0}, s{sCB2}, s{sCA}\nv_mul_u32_u24 {v(vT+1)}, s{sT0}, {v(vT+1)}')
    A(f'v_add3_u32 {v(vT)}, {v(vT)}, {v(vT+1)}, s{sCA}\nv_and_b32 {v(vT+1)}, 15, {v(vLANE)}\nv_min_u32 {v(vT+1)}, 9, {v(vT+1)}\nv_lshlrev_b32 {v(vT+1)}, 4, {v(vT+1)}\nv_lshl_add_u32 {v(vAL)}, {v(vT)}, 8, {v(vT+1)}')
    A(f's_andn2_b32 s{sT1}, s2, 4')
    vote_slot(sT1, sT2, sT3)
    A(f's_lshl_b32 s{sT2}, s{sT2}, 4\ns_add_u32 s{sT2}, s{sT2}, s{sT3}\ns_lshl_b32 s{sT2}, s{sT2}, 4\nv_mov_b32 {v(vM)}, s{sT2}\ns_mov_b32 s{rK+5}, {VOTE}')
    A(f's_mul_i32 s{sT0}, s{sH}, {5*4096}\ns_lshl_b32 s{sT1}, s{sB}, 10\ns_add_u32 s{sT0}, s{sT0}, s{sT1}\ns_add_u32 s{rK}, s{sT0}, {P1}')
    for p in range(1, 5): A(f's_add_u32 s{rK+p}, s{rK}, {4096*p}')
    A(f's_sub_u32 s{sU2}, s{sU2}, 5')
    A(f'v_mov_b32 {v(vS+1)}, 0\nv_mov_b32 {v(vS+6)}, 0\nv_mov_b32 {v(vS+7)}, 0')
    A(f'v_mul_u32_u24 {v(vA)}, 6, {v(vLANE)}\nv_add_u32 {v(vA)}, {QL}, {v(vA)}')
    if qdel >= 0 and gord not in (1, 3): A(f'v_mov_b32 {v(vXF)}, {FLG+32}\nv_mov_b32 {v(vT)}, 0\nds_write_b32 {v(vXF)}, {v(vT)}\ns_waitcnt lgkmcnt(0)')
    A('s_barrier' if gord in (1, 3) else 's_barrier\ns_barrier')
    if htouch:
        A(f's_mul_i32 s{sT0}, s{sRHO}, 1572864\ns_load_dword s96, {sp(sV)}, s{sT0}\ns_add_u32 s{sT0}, s{sT0}, 1572860\ns_load_dword s97, {sp(sK)}, s{sT0}\ns_load_dword s98, {sp(sV)}, s{sT0}')
        if htouch == 2: A(f's_mul_i32 s{sT0}, s{sH}, {192*1280}\ns_load_dword s99, {sp(sWO)}, s{sT0}\ns_load_dword s96, {sp(sWD)}, 0')
        if htouch >= 3: A(f's_sub_u32 s{sT0}, s{sT0}, 1572860\ns_load_dword s99, {sp(sK)}, s{sT0}\ns_load_dword s96, {sp(sOUT)}, 0\ns_mov_b32 s{sT0}, 0x400000\ns_load_dword s97, {sp(sWS)}, s{sT0}')
    if qdel >= 0: hwait(1, 'L_hwq')
    stamp(1)
    mkq = lambda b: [wsload(b+4*p, vL16, rK+p) for p in range(5)] + [wsload(b+20, vAL, rK+5), wsload(b+24, vM, rK+5)]
    QR = vW; E = vW + 3
    def useq(b):
        for k in range(3):
            A(f'v_add_f32 {v(QR+k)}, {v(b+k)}, {v(b+4+k)}')
        for p in range(2, 5):
            for k in range(3): A(f'v_add_f32 {v(QR+k)}, {v(QR+k)}, {v(b+4*p+k)}')
        put3_bf16(QR, vT, vA)
        A(f'v_and_b32 {v(vT)}, 15, {v(vLANE)}\nv_cmp_gt_u32 vcc, 10, {v(vT)}\nv_readfirstlane_b32 s{sT2}, {v(b+25)}\ns_nop 0\nv_cndmask_b32 {v(E)}, 0, {v(b+20)}, vcc')
    if pq: poll2('L_pq', mkq, 7, vF, vO, 1, pq, useq)
    else:
        (polls if sel & 4 else poll)('L_pq', mkq(vF), [vF+4*p+3 for p in range(5 if nopoll else 0, 7)], 1)
        useq(vF)
    for mode in ['quad_perm:[1,0,3,2]', 'quad_perm:[2,3,0,1]', 'row_half_mirror', 'row_mirror']:
        A(f's_nop 1\nv_add_u32_dpp {v(E)}, {v(E)}, {v(E)} {mode} row_mask:0xf bank_mask:0xf')
    if dbgv:
        A(f's_mul_i32 s{sT0}, s{sRHO}, 3\ns_and_b32 s{sT0}, s{sT0}, 31\ns_cmp_ge_u32 s{sT0}, 3\ns_cbranch_scc1 L_nodbg')
        A(f'v_readlane_b32 s{sT0}, {v(E)}, 16\nv_readlane_b32 s{sT1}, {v(E)}, 48')
        A(f's_nop 1\ns_add_u32 s{sT3}, s{sT0}, 5000\ns_mul_i32 s{sT3}, s{sT3}, 10000\ns_add_u32 s{sT3}, s{sT3}, s{sT1}\ns_add_u32 s{sT3}, s{sT3}, 5000')
        A(f's_lshl_b32 s{sP}, s{sCB2}, 2\nv_mov_b32 {v(vT+5)}, s{sP}\nv_mov_b32 {v(vT+6)}, s{sT3}\nglobal_store_dword {v(vT+5)}, {v(vT+6)}, {sp(sDBG)}\nL_nodbg:')
    A(f'v_lshrrev_b32 {v(E)}, 31, {v(E)}\nv_xor_b32 {v(E)}, s{sT2}, {v(E)}')
    if force >= 0: A(f'v_lshrrev_b32 {v(E)}, 5, {v(vLANE)}\nv_lshrrev_b32 {v(E)}, {v(E)}, {force}\nv_and_b32 {v(E)}, 1, {v(E)}')
    sF = [36, 37, 38, 39]
    A('s_nop 0')
    for g in range(4): A(f'v_readlane_b32 s{sF[g]}, {v(E)}, {16*g}')
    sRG = 97
    if rot >= 0: rot3(sRG, sT3)
    else: A(f's_mov_b32 s{sRG}, 0')
    A(f's_mov_b32 s{sT0}, 0\ns_mov_b32 s{sT1}, 0')
    for i in range(3):
        A(f's_mul_i32 s{sT3}, s{sRHO}, 3\ns_add_u32 s{sT3}, s{sT3}, s{sRG}\ns_lshl_b32 s{sT3}, s{sT3}, 19')
        A(f's_lshr_b32 s{sT2}, s{sT3}, 24\ns_cmp_eq_u32 s{sT2}, s{sCA}\ns_cselect_b32 s{sXD}, s{sF[0]}, s{sF[1]}\ns_cselect_b32 s{sXS}, s{sF[2]}, s{sF[3]}')
        for acc, base, fl in [(sT0, sK, sXD), (sT1, sV, sXS)]:
            A(f's_add_u32 s{sT2}, s{base}, s{sT3}\ns_lshr_b32 s{sT2}, s{sT2}, 21\ns_xor_b32 s{sT2}, s{sT2}, s{fl}\ns_and_b32 s{sT2}, s{sT2}, 1\ns_lshl_b32 s{sT2}, s{sT2}, {i}\ns_or_b32 s{acc}, s{acc}, s{sT2}')
        if i < 2: A(f's_add_u32 s{sRG}, s{sRG}, 1\ns_cmp_eq_u32 s{sRG}, 3\ns_cselect_b32 s{sRG}, 0, s{sRG}')
    if nonuma: A(f's_mov_b32 s{sT0}, {nonuma >> 1}\ns_mov_b32 s{sT1}, {nonuma >> 1}')
    A(f's_xor_b32 s{sXD}, s{sT0}, s{sT1}\ns_cselect_b32 s{sXS}, 0, 1')
    A(f'v_mov_b32 {v(vT+4)}, s{sT0}\nv_mov_b32 {v(vT+5)}, s{sT1}\nv_mov_b32 {v(vT+3)}, {FLG}\nds_write_b64 {v(vT+3)}, {v(vT+4,2)}')
    A(f'v_mov_b32 {v(vT+8)}, 0\nv_mov_b32 {v(vT+9)}, s{sXS}\nv_mov_b32 {v(vT+10)}, 0\nv_mov_b32 {v(vT+11)}, 0\nds_write_b128 {v(vT+3)}, {v(vT+8,4)} offset:16')
    if stamps:
        A(f's_lshl_b32 s{sT1}, s{sXD}, 0\ns_or_b32 s{sT1}, s{sT1}, s{sT1}\ns_lshl_b32 s{sT0}, s2, 2\ns_add_u32 s{sT0}, s{sT0}, 0x20100000')
        A(f'v_mov_b32 {v(vT+5)}, s{sT0}\nv_mov_b32 {v(vT+6)}, s{sT1}\nglobal_store_dword {v(vT+5)}, {v(vT+6)}, {sp(sWS)}')
    stamp(2)
    A('s_waitcnt lgkmcnt(0)\ns_barrier')
    A('s_waitcnt vmcnt(0)')
    A(f's_cmp_ge_u32 s{sJ}, 5\ns_cselect_b32 s{sHASW1}, 1, 0\ns_cmp_lt_u32 s{sU2}, 80\ns_cselect_b32 s{sHASW1}, s{sHASW1}, 0')
    A(f's_cmp_eq_u32 s{sHASW1}, 0\ns_cbranch_scc1 L_hx')
    A(f's_mul_i32 s{sR}, s{sU2}, 52429\ns_lshr_b32 s{sR}, s{sR}, 18\ns_mul_i32 s{sT0}, s{sR}, 5\ns_sub_u32 s{sCB}, s{sU2}, s{sT0}')
    A(f's_mul_i32 s{sRB}, s{sU2}, 52429\ns_lshr_b32 s{sRB}, s{sRB}, 20\ns_mul_i32 s{sT0}, s{sRB}, 20\ns_sub_u32 s{sSLC2}, s{sU2}, s{sT0}')
    vWD, vG4 = vS, vS+1
    A(f'v_lshrrev_b32 {v(vT)}, 4, {v(vLANE)}\nv_and_b32 {v(vT+1)}, 15, {v(vLANE)}\nv_lshlrev_b32 {v(vT+1)}, 4, {v(vT+1)}')
    A(f'v_mul_u32_u24 {v(vWD)}, 1280, {v(vT)}\nv_add_u32 {v(vWD)}, {v(vWD)}, {v(vT+1)}\nv_lshl_add_u32 {v(vG4)}, {v(vT)}, 10, {v(vT+1)}')
    A(f'v_lshrrev_b32 {v(vT)}, 5, {v(vLANE)}\nv_mul_u32_u24 {v(vT)}, {8*5*4096}, {v(vT)}\nv_and_b32 {v(vT+1)}, 31, {v(vLANE)}\nv_lshl_add_u32 {v(vA)}, {v(vT+1)}, 4, {v(vT)}')
    A(f's_lshr_b32 s{sT0}, s{sR}, 1\ns_add_u32 s{sT0}, s{sT0}, 32\ns_mul_i32 s{sT0}, s{sT0}, {5*4096}\ns_and_b32 s{sT1}, s{sR}, 1\ns_lshl_b32 s{sT1}, s{sT1}, 9\ns_add_u32 s{sT0}, s{sT0}, s{sT1}\ns_add_u32 s{rK}, s{sT0}, {P1}')
    for p in range(1, 5): A(f's_add_u32 s{rK+p}, s{rK}, {4096*p}')
    G = vF
    poll('L_pg', [wsload(G+20*b+4*p, vA, rK+p) + f' offset:{1024*b}' if False else
                  f'buffer_load_dwordx4 {v(G+20*b+4*p,4)}, {v(vA)}, {srd(rWS)}, s{rK+p} offen offset:{1024*b} sc1' for b in range(4) for p in range(5)],
         [G+20*b+4*p+3 for b in range(4) for p in range(5)], 2)
    A(f'v_and_b32 {v(vA)}, 31, {v(vLANE)}\nv_mul_u32_u24 {v(vA)}, 6, {v(vA)}\nv_add_u32 {v(vA)}, {HL}, {v(vA)}')
    for b in range(4):
        g0 = G + 20*b
        for k in range(3):
            for p in range(1, 5): A(f'v_add_f32 {v(g0+k)}, {v(g0+k)}, {v(g0+4*p+k)}')
        rnd2(g0, g0+1, vT); rnd(g0+2, vT)
        for k in range(3): A(f'v_mov_b32 {v(g0+4+k)}, {v(g0+k)}')
        A('s_nop 1')
        for k in range(3): A(f'v_permlane32_swap_b32 {v(g0+k)}, {v(g0+4+k)}')
        for k in range(3):
            A(f'v_cmp_lt_f32 vcc, 0, {v(g0+k)}\ns_nop 1\nv_cndmask_b32 {v(vT)}, 0, 1.0, vcc\nv_mul_f32 {v(g0+k)}, {v(g0+k)}, {v(vT)}\nv_mul_f32 {v(g0+k)}, {v(g0+k)}, {v(g0+4+k)}')
        put3_bf16(g0, vT, vA)
        if b < 3: A(f'v_add_u32 {v(vA)}, 192, {v(vA)}')
    A(f'v_bfe_u32 {v(vT+2)}, {v(vLANE)}, 2, 2\nv_mul_u32_u24 {v(vT+2)}, 192, {v(vT+2)}\nv_lshrrev_b32 {v(vT+3)}, 4, {v(vLANE)}\nv_lshl_add_u32 {v(vT+2)}, {v(vT+3)}, 3, {v(vT+2)}\nv_add_u32 {v(vA)}, {HL}, {v(vT+2)}')
    A('s_waitcnt lgkmcnt(0)')
    for s in range(3): A(f'ds_read2_b64 {v(vQ+4*s,4)}, {v(vA)} offset0:{8*s} offset1:{8*s+4}')
    if xtra >= 0:
        A(f'v_mov_b32 {v(vXF)}, {FLG+16}')
        hwait(2, 'L_hww')
    A(f'v_lshrrev_b32 {v(vT)}, 2, {v(vLANE)}\nv_lshlrev_b32 {v(vT)}, 8, {v(vT)}\nv_and_b32 {v(vT+1)}, 3, {v(vLANE)}\nv_lshl_add_u32 {v(vT)}, {v(vT+1)}, 3, {v(vT)}\nv_add_u32 {v(vA)}, {WREG}, {v(vT)}')
    for s in range(3):
        A('s_waitcnt lgkmcnt(0)')
        trread_mfma(8, vA, 4096, vO, s == 0, vF, vQ+4*s)
        if s < 2: A(f'v_add_u32 {v(vA)}, 8192, {v(vA)}')
    sBPA = 39
    A(f's_lshl_b32 s{sBPA}, s{sCB}, 6\ns_add_u32 s{sBPA}, s{sBPA}, s{sR}\ns_lshl_b32 s{sBPA}, s{sBPA}, 10\ns_add_u32 s{sBPA}, s{sBPA}, {BP}')
    A('s_nop 4')
    BG = vW + 16
    for ww in range(4):
        t0 = BG + 4*ww
        A(f'v_mov_b32 {v(t0)}, {v(vO+8*ww)}\nv_mov_b32 {v(t0+1)}, {v(vO+8*ww+4)}\nv_mov_b32 {v(t0+2)}, {v(vTAG)}\nv_mov_b32 {v(t0+3)}, {v(vTAG)}')
    def b_publish():
        for ww in range(4):
            A(f'buffer_store_dwordx4 {v(BG+4*ww,4)}, {v(vL16)}, {srd(rWS)}, s{sBPA} offen sc1')
            if ww < 3: A(f's_add_u32 s{sBPA}, s{sBPA}, 16384')
    if not blate: b_publish()
    vG0, vG1, vX0, vX1, vXO = vS+2, vS+3, vS+4, vS+5, vS+6
    A(f's_mul_i32 s{sT0}, s{sRB}, 1280\ns_lshl_b32 s{sT1}, s{sSLC2}, 6\ns_add_u32 s{sT0}, s{sT0}, s{sT1}')
    A(f'v_and_b32 {v(vXO)}, 15, {v(vLANE)}\nv_lshlrev_b32 {v(vXO)}, 1, {v(vXO)}\nv_add_u32 {v(vXO)}, s{sT0}, {v(vXO)}')
    if otouch: A(f'global_load_ushort {v(vX0)}, {v(vXO)}, {sp(sOUT)}\ns_waitcnt vmcnt(0)')
    A(f'global_load_ushort {v(vX0)}, {v(vXO)}, {sp(sX)}\nglobal_load_ushort {v(vX1)}, {v(vXO)}, {sp(sX)} offset:32')
    sBG = 40
    A(f's_lshl_b32 s{sT0}, s{sSLC2}, 14\ns_lshl_b32 s{sT1}, s{sRB}, 8\ns_add_u32 s{sT0}, s{sT0}, s{sT1}\ns_add_u32 s{sBG}, s{sT0}, {BP}')
    for p in range(1, 4): A(f's_add_u32 s{sBG+p}, s{sBG}, {4096*p}')
    def b_gather():
        G = vF
        (polls if sel & 2 else poll)('L_pb', [wsload(G+4*p, vG4, sBG+p) for p in range(4)], [G+4*p+3 for p in range(4)], 5)
        if py >= 0 or not blate: b_math()
    def b_math():
        G = vF
        for k in range(2):
            A(f'v_add_f32 {v(G+k)}, {v(G+k)}, {v(G+4+k)}\nv_add_f32 {v(G+8+k)}, {v(G+8+k)}, {v(G+12+k)}\nv_add_f32 {v(G+k)}, {v(G+k)}, {v(G+8+k)}')
            xsum(G+k, vT, full=False)
        rnd2(G, G+1, vT)
        for k in range(2):
            A(f'v_mul_f32 {v(vT)}, s{sL2E}, {v(G+k)}\nv_max_f32 {v(vT)}, {f2u(-126.0):#x}, {v(vT)}\nv_exp_f32 {v(vT)}, -{v(vT)}\ns_nop 0\nv_add_f32 {v(vT)}, 1.0, {v(vT)}\nv_rcp_f32 {v(vT+1)}, {v(vT)}\ns_nop 0')
            fdiv(vG0+k, G+k, vT, vT+1, vT+2)
        rnd2(vG0, vG1, vT)
    if not blate: b_gather()
    A(f's_waitcnt vmcnt(0)\nv_lshlrev_b32 {v(vX0)}, 16, {v(vX0)}\nv_lshlrev_b32 {v(vX1)}, 16, {v(vX1)}')
    A(f's_lshl_b32 s{sT0}, s{sSLC2}, {14 if y8 else 15}\ns_lshl_b32 s{sT1}, s{sRB}, {7 if y8 else 8}\ns_add_u32 s{sT0}, s{sT0}, s{sT1}\ns_add_u32 s{rK}, s{sT0}, {YP}')
    for p in range(1, 8): A(f's_add_u32 s{rK+p}, s{rK}, {(2048 if y8 else 4096)*p}')
    vG8 = vS + 7
    A(f'v_lshrrev_b32 {v(vG8)}, 1, {v(vG4)}')
    A('L_hx:')
    if stamps == 5:
        A(f'v_mov_b32 {v(vXF)}, {FLG+16}')
        hwait(13, 'L_hws')
        A(f's_memrealtime {sp(sST+2*3)}\ns_waitcnt lgkmcnt(0)')
    if lead:
        A(f's_and_b32 s{sT0}, s2, {lmask}\ns_cmp_eq_u32 s{sT0}, 5\ns_cselect_b32 s{sT0}, 0, s{sXS}\ns_cmp_lg_u32 s{sT0}, 0\ns_cbranch_scc1 L_hb4')
    elif not bal: A(f's_cmp_lg_u32 s{sXS}, 0\ns_cbranch_scc1 L_hb4')
    sREC, sOTH = 36, 37
    A(f's_lshl_b32 s{sREC}, s{sRHO}, 1\ns_add_u32 s{sOTH}, s{sREC}, 1\ns_sub_u32 s{sOTH}, s{sOTH}, s{sHALF}\ns_add_u32 s{sREC}, s{sREC}, s{sHALF}')
    vXG = vQ + 15
    if xs:
        for r_ in (sREC, sOTH):
            A(f's_lshr_b32 s{sT0}, s{r_}, 7\ns_lshl_b32 s{sT0}, s{sT0}, 20\ns_and_b32 s{r_}, s{r_}, 127\ns_lshl_b32 s{r_}, s{r_}, 8\ns_add_u32 s{r_}, s{r_}, s{sT0}\ns_add_u32 s{r_}, s{r_}, {SCO}')
        A(f'v_and_b32 {v(vXG)}, 0xf0, {v(vL16)}\nv_lshrrev_b32 {v(vT)}, 4, {v(vLANE)}\nv_lshl_add_u32 {v(vXG)}, {v(vT)}, {xs}, {v(vXG)}')
    else:
        A(f's_mul_i32 s{sREC}, s{sREC}, 6144\ns_add_u32 s{sREC}, s{sREC}, {SCO}\ns_mul_i32 s{sOTH}, s{sOTH}, 6144\ns_add_u32 s{sOTH}, s{sOTH}, {SCO}')
        A(f'v_mov_b32 {v(vXG)}, {v(vL16)}')
    xoff = (lambda w, i: (2*w + i) << 17) if xs else (lambda w, i: 1536*w + 1024*i)
    A(f'v_add_u32 {v(vXA)}, {STG}, {v(vL16)}\nv_mov_b32 {v(vXF)}, {FLG+16}\nv_and_b32 {v(vT)}, 3, {v(vLANE)}\nv_cmp_eq_u32 vcc, 2, {v(vT)}\nv_mov_b32 {v(vT)}, -20\ns_nop 0\nv_cndmask_b32 {v(vT)}, 8, {v(vT)}, vcc\nv_add_u32 {v(vXB)}, {v(vXA)}, {v(vT)}')
    sE0, sE1 = 96, 98
    A(f's_bitcmp1_b32 s{sXD}, 0\ns_cselect_b32 s{sE0}, 0xffffff00, 0\ns_bitcmp1_b32 s{sXD}, 1\ns_cselect_b32 s{sE0+1}, -1, 0\ns_bitcmp1_b32 s{sXD}, 2\ns_cselect_b32 s{sE1}, 0xffffff, 0\ns_mov_b32 s{sE1+1}, 0')
    sTO = 38
    def cp_pub(i):
        A(f's_memrealtime {sp(sP)}\ns_lshl_b32 s{sT1}, s2, 4\ns_add_u32 s{sT1}, s{sT1}, {TS + 4096*i}\nv_mov_b32 {v(vS+11)}, {v(vTAG)}\ns_waitcnt lgkmcnt(0)\ns_add_u32 s{sTO}, s{sP}, 0')
        A(f'v_mov_b32 {v(vS+8)}, s{sTO}\ns_mov_b64 exec, 1\nbuffer_store_dwordx4 {v(vS+8,4)}, {v(vL16)}, {srd(rWS)}, s{sT1} offen sc1\ns_mov_b64 exec, -1')
    CG = vW + 32
    def cp_load(i):
        A(f'v_lshlrev_b32 {v(vT+2)}, 6, {v(vLANE)}\nv_bfe_u32 {v(vT+3)}, {v(vLANE)}, 1, 2\nv_lshl_add_u32 {v(vT+2)}, {v(vT+3)}, 4, {v(vT+2)}\ns_mov_b32 s{sT1}, {TS + 4096*i}')
        A(f'buffer_load_dwordx4 {v(CG,4)}, {v(vT+2)}, {srd(rWS)}, s{sT1} offen sc1\ns_memrealtime {sp(sP)}')
    def cp_use():
        A(f's_waitcnt vmcnt(0) lgkmcnt(0)\ns_sub_u32 s{sT0}, s{sP}, s{sTO}\nv_cmp_eq_u32 vcc, {v(CG+3)}, {v(vTAG)}\nv_subrev_u32 {v(CG)}, s{sTO}, {v(CG)}\nv_mov_b32 {v(vT)}, s{sT0}')
        A(f'v_cndmask_b32 {v(CG)}, {v(vT)}, {v(CG)}, vcc\nv_mov_b32 {v(vT)}, 0x190\nv_mov_b32 {v(vT+1)}, -400\nv_med3_i32 {v(CG)}, {v(CG)}, {v(vT)}, {v(vT+1)}')
        xsum(CG, vT, 'v_add_u32')
        A(f'ds_read_b32 {v(vT+2)}, {v(vXF)}\nv_readfirstlane_b32 s{sT0}, {v(CG)}\ns_nop 0\ns_ashr_i32 s{sT0}, s{sT0}, 6')
        A(f's_abs_i32 s{sT1}, s{sT0}\ns_sub_i32 s{sT1}, s{sT1}, {dead}\ns_max_i32 s{sT1}, s{sT1}, 0\ns_mul_i32 s{sT1}, s{sT1}, {gain}\ns_lshr_b32 s{sT1}, s{sT1}, 8\ns_min_u32 s{sT1}, s{sT1}, {kmax}')
        A(f's_waitcnt lgkmcnt(0)\nv_readfirstlane_b32 s{sT2}, {v(vT+2)}\ns_nop 0\ns_lshr_b32 s{sT2}, s{sT2}, 2\ns_add_u32 s{sT2}, s{sT2}, s{sT1}\ns_cmp_eq_u32 s{sT1}, 0\ns_cselect_b32 s{sT2}, 0, s{sT2}')
        A(f's_sub_i32 s{sT1}, 0, s{sT2}\ns_cmp_lt_i32 s{sT0}, 0\ns_cselect_b32 s{sT2}, s{sT2}, s{sT1}\nv_mov_b32 {v(vT)}, s{sT2}\nds_write_b32 {v(vXF)}, {v(vT)} offset:8')
    def rk_issue(i):
        A(f'v_lshlrev_b32 {v(vT+2)}, {rsp+2}, {v(vLANE)}\nv_bfe_u32 {v(vT+3)}, {v(vLANE)}, 1, 2\nv_lshl_add_u32 {v(vT+2)}, {v(vT+3)}, {rsp}, {v(vT+2)}\ns_mov_b32 s{sT0}, {0x360000 + (256 << rsp)*i}')
        A(f'buffer_load_dword {v(CG)}, {v(vT+2)}, {srd(rWS)}, s{sT0} offen sc1\ns_lshl_b32 s{sT1}, s2, {rsp}\ns_add_u32 s{sT1}, s{sT1}, s{sT0}')
        for k in range(4): A(f'v_mov_b32 {v(vS+8+k)}, {v(vTAG)}')
        A(f's_mov_b64 exec, {(1 << (1 << (rsp-4))) - 1}\nbuffer_store_dwordx4 {v(vS+8,4)}, {v(vL16)}, {srd(rWS)}, s{sT1} offen sc1\ns_mov_b64 exec, -1')
    def rk_use(n, w):
        A(f's_waitcnt vmcnt({w})\nv_cmp_eq_u32 vcc, {v(CG)}, {v(vTAG)}\ns_nop 0\ns_bcnt1_i32_b64 s{sT1}, vcc\ns_sub_i32 s{sT1}, s{sT1}, {rc0}\ns_max_i32 s{sT1}, s{sT1}, 0')
        A(f's_mul_i32 s{sT1}, s{sT1}, s{sT1}\ns_mul_i32 s{sT1}, s{sT1}, {rg}\ns_lshr_b32 s{sT1}, s{sT1}, 8\ns_min_u32 s{sT1}, s{sT1}, {kmax}\ns_add_u32 s{sT1}, s{sT1}, {n}')
        A(f'v_mov_b32 {v(vT)}, s{sT1}\nds_write_b32 {v(vXF)}, {v(vT)} offset:8')
    def cp_all(sel_):
        for i, n in enumerate(cpl):
            if bal and n != 23 and sel_(n):
                hwait(n, f'L_cp{i}')
                if rank: rk_issue(i); rk_use(n, 1)
                else: cp_pub(i); hwait(n + cgap, f'L_cg{i}'); cp_load(i); cp_use()
    cp_all(lambda n: n < 23)
    hwait(pubt, 'L_hw0')
    stamp(1)
    if bal and 23 in cpl: (rk_issue if rank else cp_pub)(cpl.index(23))
    if lead:
        A(f'v_mov_b32 {v(vT+2)}, {GO}\ns_and_b32 s{sT0}, s2, {lmask}\ns_cmp_lg_u32 s{sT0}, 5\ns_cbranch_scc1 L_go')
        hwait(lead, 'L_hwl')
        A(f's_mov_b64 exec, 1\nbuffer_store_dword {v(vTAG)}, {v(vT+2)}, {srd(rWS)}, 0 offen sc1\ns_mov_b64 exec, -1')
        if lpipe:
            A('L_go:')
            for k in range(3): A(f'buffer_load_dword {v(vT+4+k)}, {v(vT+2)}, {srd(rWS)}, 0 offen sc1\ns_sleep {lpipe}')
            A('L_go2:')
            for k in range(4):
                A(f'buffer_load_dword {v(vT+4+(k+3)%4)}, {v(vT+2)}, {srd(rWS)}, 0 offen sc1\nds_read_b32 {v(vT)}, {v(vXF)}\ns_waitcnt vmcnt(3) lgkmcnt(0)')
                A(f'v_cmp_eq_u32 vcc, {v(vT+4+k)}, {v(vTAG)}\nv_readfirstlane_b32 s{sT0}, {v(vT)}\ns_cbranch_vccnz L_go_ok\ns_cmp_ge_u32 s{sT0}, {4*fb}\ns_cbranch_scc1 L_go_ok')
            A('s_branch L_go2\nL_go_ok:')
        else:
            A(f'L_go:\nbuffer_load_dword {v(vT+3)}, {v(vT+2)}, {srd(rWS)}, 0 offen sc1\nds_read_b32 {v(vT)}, {v(vXF)}\ns_waitcnt vmcnt(0) lgkmcnt(0)')
            A(f'v_cmp_eq_u32 vcc, {v(vT+3)}, {v(vTAG)}\nv_readfirstlane_b32 s{sT0}, {v(vT)}\ns_cbranch_vccnz L_go_ok\ns_cmp_lt_u32 s{sT0}, {4*fb}\ns_cbranch_scc1 L_go\nL_go_ok:')
    stamp(3)
    def masked(i, lbl): return f's_cmp_eq_u64 {sp([sE0, sE1][i])}, 0\ns_cbranch_scc1 {lbl}{i}\ns_mov_b64 exec, {sp([sE0, sE1][i])}'
    if not (noex & 1):
        for i in range(2):
            A(masked(i, 'L_np'))
            for w in range(4):
                r = vF + 16*i + 4*w
                A(f'ds_read_b64 {v(r,2)}, {v(vXA)} offset:{1536*w+1024*i}\nds_read_b32 {v(r+2)}, {v(vXB)} offset:{1536*w+1024*i}\nv_mov_b32 {v(r+3)}, {v(vTAG)}')
            for w in range(4):
                r = vF + 16*i + 4*w
                A(f's_add_u32 s{sT0}, s{sREC}, {xoff(w, i)}\ns_waitcnt lgkmcnt({6-2*w})')
                A(f'buffer_store_dwordx4 {v(r,4)}, {v(vXG)}, {srd(rWS)}, s{sT0} offen {stfl}')
            A(f's_mov_b64 exec, -1\nL_np{i}:')
    if bal and rank and 23 in cpl: rk_use(24, 0)
    if lead: A(f's_cmp_lg_u32 s{sXS}, 0\ns_cbranch_scc1 L_hb4')
    if bal and rank: A(f's_cmp_lg_u32 s{sXS}, 0\ns_cbranch_scc1 L_hb4')
    hwait(gat, 'L_hw1')
    if bal and not rank and 23 in cpl: cp_load(cpl.index(23))
    if bal and not rank: A(f's_cmp_lg_u32 s{sXS}, 0\ns_cbranch_scc1 L_nox')
    if not (noex & 2):
        G = vO
        for k in range(8): A(f'v_mov_b32 {v(G+4*k+3)}, {v(vTAG)}')
        lds_ = []
        for i in range(2):
            t_ = masked(i, 'L_ng') + '\n'
            for w in range(4):
                t_ += f's_add_u32 s{sT0}, s{sOTH}, {xoff(w, i)}\nbuffer_load_dwordx4 {v(G+16*i+4*w,4)}, {v(vXG)}, {srd(rWS)}, s{sT0} offen {slfl}\n'
            lds_.append(t_ + f's_mov_b64 exec, -1\nL_ng{i}:')
        poll('L_px', lds_, [G+4*k+3 for k in range(8)], 8)
        for i in range(2):
            A(masked(i, 'L_nw'))
            for w in range(4): A(f'ds_write_b64 {v(vXA)}, {v(G+16*i+4*w,2)} offset:{1536*w+1024*i}\nds_write_b32 {v(vXB)}, {v(G+16*i+4*w+2)} offset:{1536*w+1024*i}')
            A(f's_mov_b64 exec, -1\ns_waitcnt lgkmcnt(0)\nL_nw{i}:')
    A(f'v_mov_b32 {v(vT)}, 1\nds_write_b32 {v(vXF)}, {v(vT)} offset:4')
    stamp(4)
    if bal and not rank: A('L_nox:')
    if bal and not rank and 23 in cpl: cp_use()
    A('L_hb4:')
    A(f'v_mul_u32_u24 {v(vA)}, 12, {v(vLANE)}\nv_add_u32 {v(vA)}, {OCB}, {v(vA)}\nv_mov_b32 {v(vAL)}, {OCB+768}')
    A(f's_lshl_b32 s{sT1}, s{sH}, 3\ns_add_u32 s{sT1}, s{sT1}, s{sJ}\ns_lshl_b32 s{sT1}, s{sT1}, 11\ns_add_u32 s{sT1}, s{sT1}, {OP}')
    Gm = vQ + 16
    r0 = vP
    ml = vT + 4
    def weights():
        A(f'v_max3_f32 {v(ml)}, {v(Gm)}, {v(Gm+2)}, {v(Gm+4)}\nv_max_f32 {v(ml)}, {v(ml)}, {v(Gm+6)}')
        for w in range(4): A(f'v_sub_f32 {v(Gm+2*w)}, {v(Gm+2*w)}, {v(ml)}')
        for w in range(4): A(f'v_exp_f32 {v(Gm+2*w)}, {v(Gm+2*w)}')
        A(f'v_mov_b32 {v(r0+3)}, {v(vTAG)}\nv_mov_b32 {v(ml+3)}, {v(vTAG)}\nv_mov_b32 {v(ml+2)}, {v(vTAG)}')
        A(f'v_mul_f32 {v(ml+1)}, {v(Gm)}, {v(Gm+1)}')
        for w in range(1, 4): A(f'v_fmac_f32 {v(ml+1)}, {v(Gm+2*w)}, {v(Gm+2*w+1)}')
    if lred:
        A(f'v_mov_b32 {v(vXF)}, {FLG+16}')
        hwait(29, 'L_hw2', 8)
        if stamps == 5: A(f's_memrealtime {sp(sST+2*4)}\ns_waitcnt lgkmcnt(0)')
        for w in range(4): A(f'ds_read_b64 {v(Gm+2*w,2)}, {v(vAL)} offset:{1024*w}')
        A('s_waitcnt lgkmcnt(0)')
        weights()
        for w in range(1, 4): A(f'v_add_u32 {v(vQ+4+w)}, {1024*w}, {v(vA)}')
        if bal and max(cpl) > 23:
            A(f's_mov_b32 s{sOTH}, s{sT1}')
            cp_all(lambda n: n > 23)
            A(f's_mov_b32 s{sT1}, s{sOTH}\nv_mov_b32 {v(r0+3)}, {v(vTAG)}')
        A('s_barrier')
        stamp(5)
        for w in range(4):
            a_ = vA if w == 0 else vQ+4+w
            A(f'ds_read2_b32 {v(vF+4*w,2)}, {v(a_)} offset0:0 offset1:1\nds_read_b32 {v(vF+4*w+2)}, {v(a_)} offset:8')
    else:
        A('s_barrier')
        stamp(5)
        for w in range(4): A(f'ds_read_b64 {v(Gm+2*w,2)}, {v(vAL)} offset:{1024*w}')
        for w in range(4):
            A(f'ds_read2_b32 {v(vF+4*w,2)}, {v(vA)} offset0:0 offset1:1\nds_read_b32 {v(vF+4*w+2)}, {v(vA)} offset:8')
            if w < 3: A(f'v_add_u32 {v(vA)}, 1024, {v(vA)}')
        A('s_waitcnt lgkmcnt(8)')
        weights()
    A('s_waitcnt lgkmcnt(0)')
    for k in range(3): A(f'v_mul_f32 {v(r0+k)}, {v(Gm)}, {v(vF+k)}')
    for w in range(1, 4):
        for k in range(3): A(f'v_fmac_f32 {v(r0+k)}, {v(Gm+2*w)}, {v(vF+4*w+k)}')
    A(f'buffer_store_dwordx4 {v(r0,4)}, {v(vL16)}, {srd(rWS)}, s{sT1} offen sc1')
    A(f's_mov_b64 exec, 1\nbuffer_store_dwordx4 {v(ml,4)}, {v(vL16)}, {srd(rWS)}, s{sT1} offen offset:1024 sc1\ns_mov_b64 exec, -1')
    if hb5: A(f's_cmp_ge_u32 s{sJ}, 5\ns_cbranch_scc1 L_hnb5\ns_barrier\nL_hnb5:')
    A(f's_cmp_eq_u32 s{sHASW1}, 0\ns_cbranch_scc1 L_hdone')
    if blate:
        b_publish()
        b_gather()
    G = vW
    if y8:
        mky = lambda b: [f'buffer_load_dwordx2 {v(b+4*p+2,2)}, {v(vG8)}, {srd(rWS)}, s{rK+p} offen sc1' for p in range(8)]
        def usey(b):
            for p in range(4):
                A(f'v_lshlrev_b32 {v(G+2*p)}, 16, {v(b+8*p+2)}\nv_and_b32 {v(G+2*p+1)}, 0xffff0000, {v(b+8*p+2)}\nv_lshlrev_b32 {v(G+8)}, 16, {v(b+8*p+6)}\nv_and_b32 {v(G+9)}, 0xffff0000, {v(b+8*p+6)}')
                A(f'v_add_f32 {v(G+2*p)}, {v(G+2*p)}, {v(G+8)}\nv_add_f32 {v(G+2*p+1)}, {v(G+2*p+1)}, {v(G+9)}')
    else:
        mky = lambda b: [wsload(b+4*p, vG4, rK+p) for p in range(8)]
        def usey(b):
            for k in range(2):
                for p in range(4): A(f'v_add_f32 {v(G+2*p+k)}, {v(b+8*p+k)}, {v(b+8*p+4+k)}')
    if py: poll2('L_py', mky, 8, vF+16, vO, 6, py if py > 0 else b_math, usey)
    else:
        (polls if sel & 2 else poll)('L_py', mky(vF+16), [vF+16+4*p+3 for p in range(8)], 6)
        usey(vF+16)
    stamp(6)
    for k in range(2):
        A(f'v_add_f32 {v(G+k)}, {v(G+k)}, {v(G+2+k)}\nv_add_f32 {v(G+4+k)}, {v(G+4+k)}, {v(G+6+k)}\nv_add_f32 {v(G+k)}, {v(G+k)}, {v(G+4+k)}')
    for k in range(2): xsum(G+k, vT+k, full=False)
    rnd2(G, G+1, vT)
    A(f'v_mul_f32 {v(G)}, {v(G)}, {v(vG0)}\nv_mul_f32 {v(G+1)}, {v(G+1)}, {v(vG1)}')
    rnd2(G, G+1, vT)
    if perturb:
        A(f's_cmp_eq_u32 s{sU2}, 0\ns_cselect_b32 s{sT0}, {f2u(perturb/1000):#x}, 0\ns_mov_b64 exec, 1\nv_add_f32 {v(vX0)}, s{sT0}, {v(vX0)}\ns_mov_b64 exec, -1')
    if pall: A(f'v_mul_f32 {v(G)}, {f2u(1+pall/1000):#x}, {v(G)}\nv_mul_f32 {v(G+1)}, {f2u(1+pall/1000):#x}, {v(G+1)}')
    A(f'v_add_f32 {v(G)}, {v(G)}, {v(vX0)}\nv_add_f32 {v(G+1)}, {v(G+1)}, {v(vX1)}\nv_cvt_pk_bf16_f32 {v(G)}, {v(G)}, {v(G+1)}')
    A(f's_mov_b64 exec, 0xffff\nglobal_store_short {v(vXO)}, {v(G)}, {sp(sOUT)} {ofl}\nglobal_store_short_d16_hi {v(vXO)}, {v(G)}, {sp(sOUT)} offset:32 {ofl}')
    A(f's_cmp_lg_u32 s{sU2}, 0\ns_cbranch_scc1 L_hdone')
    A(f's_mov_b64 exec, 1\nv_mov_b32 {v(vT)}, 0\nglobal_store_dword {v(vT)}, {v(vTAG)}, {sp(sWS)} sc1')
    A('L_hdone:')
    if stamps:
        A('s_waitcnt vmcnt(0)')
        stamp(7)
        write_stamps(256, 'h')
    A('L_end:\ns_endpgm')
    A(f'''.section .rodata,"a"
.p2align 6
.amdhsa_kernel {NAME}_kernel
  .amdhsa_next_free_vgpr {NV}
  .amdhsa_next_free_sgpr 100
  .amdhsa_accum_offset {NV}
  .amdhsa_group_segment_fixed_size 0
  .amdhsa_kernarg_size 96
  .amdhsa_user_sgpr_count 2
  .amdhsa_user_sgpr_kernarg_segment_ptr 1
  .amdhsa_system_sgpr_workgroup_id_x 1
  .amdhsa_float_denorm_mode_32 3
.end_amdhsa_kernel''')
    open(fn, 'w').write('\n'.join(L) + '\n')

if __name__ == '__main__':
    fn = sys.argv[1]
    kw = {}
    for a in sys.argv[2:]:
        k, val = a.split('=')
        try: val = int(val)
        except ValueError: val = val.replace('+', ' ').replace('def', '')
        kw[k] = val
    gen(fn, **kw)
```

```python
import sys, os, struct
NAME = 'recurrent_scan__gqa_block_cached__glu_gated_reglu__decode'

HEADER = '''; Kernarg layout (96 bytes, pointers only, base s[0:1]), everything bf16:
;
'''

def f2u(x): return struct.unpack('<I', struct.pack('<f', x))[0]

def gen(fn, stamps=False, pace=8, up=4, mapping='x', kvil=False, twostage=False, spin=1<<15, knt='nt', vnt='nt', w1nt='nt', w2nt='nt', sleep=0, fixdur=0, D=7, nomem=0, now=0, nopoll=0, nocomp=0, pre=1, force=-1, cap=400, thr=100, noex=0, sync=1, skipx=1, hsl=2, gat=26, perturb=0, pall=0, lead=0, bal=5, gain=15, dead=20, kmax=10, bneg=0, cps='23.34', cgap=3, rank=0, dbgt=-1, wlate=0, qdel2=9, xs=0, qdel=9, rsp=7, rc0=24, rg=2, lastneg=0, ofl='', prio=0, nosleep=1, y8=0, rot=2, rmul=1, umap=1, gord=3, w1sw=1, wearly=2, hb5=1, xtra=-1, sel=0, lpipe=0, lmask=31, fb=26, blate=1, pubt=23, htouch=3, otouch=0, nonuma=0, al=1, glate=1, touch=5, late=0, lred=1, pq=0, po=0, py=0, inl=1, nend=4, Dend=18, dbgv=0, stfl='sc1', slfl='sc1'):
    L = []
    cpl = [int(x) for x in str(cps).split('.')]
    def A(s):
        for ln in s.strip('\n').split('\n'):
            L.append(ln.strip())
    SLOT = 9216; RING = 2*SLOT; WT = 12288
    WREG = 4*RING
    MISC = WREG + 4*WT
    XN = MISC; OBF = MISC
    RED = MISC + 1536
    OCB = RED + 8192
    QL = RED + 12288
    HL = QL + 384
    FLG = HL + 768
    STG = FLG + 64
    LDS = 147456
    assert STG + 6144 <= LDS
    P1 = 0x1000; OP = 0x100000; YP = 0x200000; BP = 0x300000; VOTE = 0x3F0000; GO = 0x3F8000; TS = 0x3E0000; SCO = 0x400000; WSZ = 0x600000
    TAGC = 0x9E3779B9
    sX, sK, sV, sWQ, sWO, sWG, sWU, sWD, sOUT, sDBG, sWS = 4, 6, 8, 10, 12, 16, 18, 20, 22, 24, 26
    rK, rV, rW1, rW2, rWS = 28, 32, 36, 40, 44
    sWAVE, sH, sJ, sB, sHALF = 48, 49, 50, 51, 52
    sBETA, sPI, sHASW1, sRS = 53, 54, 55, 56
    sSLA, sSLB, sSLC = 57, 58, 59
    sOFF, sT, sCNT = 60, 61, 62
    sSC, sL2E = 63, 64
    sT0, sT1, sT2, sT3 = 65, 66, 67, 68
    sU2, sR, sCB, sRB, sSLC2 = 69, 70, 71, 72, 73
    sN0, sN1, sFLV, sFL = 70, 71, 72, 73
    sU, sPUB, sNEG, sVB = 14, 15, 34, 32
    sRHO = 3
    sXD, sXS = 92, 93
    sCM = 94
    sSTG = 35
    sU0 = 96
    sP = 74
    sST = 76
    def srd(r): return f's[{r}:{r+3}]'
    def sp(r): return f's[{r}:{r+1}]'
    vLANE, vL16, vTAG, vKA0, vVA0, vA, vM, vML, vLS, vAL = 1, 2, 3, 4, 5, 6, 7, 8, 9, 10
    vT = 12
    vS = 28
    vP = 36
    vQ = 40
    vF = 64
    vO = 112
    vW = 160
    vR = 208
    vM2B, vM2X, vM3, vSK, vSV, vFA, vONE, vPA = range(212, 220)
    vSRC = 220
    vKB = 224
    vVB = 228
    vAD = 236
    NV = 244
    def v(r, n=1): return f'v{r}' if n == 1 else f'v[{r}:{r+n-1}]'
    inhelper = [False]
    def pstamp(i):
        if stamps == 3: A(f's_memrealtime {sp(sST+2*i)}\ns_waitcnt lgkmcnt(0)')
    def qstamp(i):
        if stamps == 4: A(f's_memrealtime {sp(sST+2*i)}\ns_waitcnt lgkmcnt(0)')
    def stamp(i):
        if stamps in (3, 4) and i < 7 and not inhelper[0]: return
        if stamps == 5 and inhelper[0] and i in (3, 4): return
        if stamps:
            A(f's_memrealtime {sp(sST+2*i)}\ns_waitcnt lgkmcnt(0)')
    def write_stamps(rec_base, lbl):
        if not stamps: return
        if dbgt >= 0:
            A(f's_cmp_lg_u32 s2, {dbgt}\ns_cbranch_scc1 L_end\ns_mov_b64 exec, 1\nv_mov_b32 {v(vA)}, 0')
            for i in range(8): A(f's_sub_u32 s{sT0}, s{sST+2*i}, s{sST}\nv_mov_b32 {v(vT)}, s{sT0}\nglobal_store_dword {v(vA)}, {v(vT)}, {sp(sDBG)} offset:{4*i + (32 if rec_base else 0)}')
            return
        A(f's_lshl_b32 s{sT0}, s2, 6\ns_add_u32 s{sT0}, s{sT0}, {0x20000000 + rec_base*64}')
        A(f's_add_u32 s{sP}, s{sWS}, s{sT0}\ns_addc_u32 s{sP+1}, s{sWS+1}, 0')
        A(f's_mov_b64 exec, 1\nv_mov_b32 {v(vA)}, 0')
        for i in range(4):
            for k in range(4): A(f'v_mov_b32 {v(vT+k)}, s{sST+4*i+k}')
            A(f'global_store_dwordx4 {v(vA)}, {v(vT,4)}, {sp(sP)} offset:{16*i}\ns_nop 1')
    def xsum(r, t, op='v_add_f32', full=True):
        if full:
            for mode in ['quad_perm:[1,0,3,2]', 'quad_perm:[2,3,0,1]', 'row_half_mirror', 'row_mirror']:
                A(f's_nop 1\n{op}_dpp {v(r)}, {v(r)}, {v(r)} {mode} row_mask:0xf bank_mask:0xf')
        for sw in ['v_permlane16_swap_b32', 'v_permlane32_swap_b32']:
            A(f'v_mov_b32 {v(t)}, {v(r)}\ns_nop 1\n{sw} {v(r)}, {v(t)}\n{op} {v(r)}, {v(r)}, {v(t)}')
    def rnd(r, t):
        A(f'v_cvt_pk_bf16_f32 {v(t)}, {v(r)}, {v(r)}\nv_lshlrev_b32 {v(r)}, 16, {v(t)}')
    def rnd2(r0, r1, t):
        A(f'v_cvt_pk_bf16_f32 {v(t)}, {v(r0)}, {v(r1)}\nv_lshlrev_b32 {v(r0)}, 16, {v(t)}\nv_and_b32 {v(r1)}, 0xffff0000, {v(t)}')
    def dma_tile(soff, sslot, paced=None, lo=0, hi=9, fl='nt'):
        for i in range(lo, hi):
            A(f's_add_u32 m0, s{sslot}, {1024*i}')
            if i == lo or i % 3 == 0: A(f's_add_u32 s{sT0}, s{soff}, {3072*(i//3)}')
            elif not paced: A('s_nop 0')
            if paced: A(f's_waitcnt vmcnt({paced-1})')
            A(f'buffer_load_dwordx4 {v(vSRC+i%3)}, {srd(rK)}, s{sT0} offen {fl} lds')
    def rot3(dst, tmp):
        A(f's_lshr_b32 s{dst}, s{sRHO}, {rot}')
        if rmul != 1: A(f's_mul_i32 s{dst}, s{dst}, {rmul}')
        A(f's_mul_i32 s{tmp}, s{dst}, 43691\ns_lshr_b32 s{tmp}, s{tmp}, 17\ns_mul_i32 s{tmp}, s{tmp}, 3\ns_sub_u32 s{dst}, s{dst}, s{tmp}')
    def block_params(default, sn):
        if default == 1: A(f's_cmp_eq_u32 s{sHALF}, 1')
        else: A(f's_bitcmp1_b64 {sp(sCM)}, s{sT}')
        A(f's_addc_u32 s{sT1}, s{sU}, s{sU}\ns_lshl_b32 s{sT1}, s{sT1}, 6\ns_add_u32 s{sT2}, s{sT1}, 65\ns_add_u32 s{sT1}, s{sT1}, 1')
        A(f's_mul_i32 s{sT1}, s{sT1}, 43691\ns_mul_i32 s{sT2}, s{sT2}, 43691\ns_lshr_b32 s{sT1}, s{sT1}, 17\ns_lshr_b32 s{sT2}, s{sT2}, 17')
        A(f's_mul_i32 s{sOFF}, s{sT1}, 384\ns_sub_u32 s{sT1}, s{sT2}, s{sT1}\ns_mul_i32 s{sT2}, s{sT2}, 384\ns_min_u32 s{rK+2}, s{sT2}, {0 if nomem else 1572864}')
        if default == 2: A(f's_cmp_ge_u32 s{sT}, 46\ns_cselect_b32 s{rK+2}, 0, s{rK+2}')
        else: A(f's_cmp_eq_u32 s{sT1}, 22\ns_cselect_b32 s{sn}, -1, 0')
        if umap: A(f's_bitcmp1_b32 s{sU}, 0\ns_cselect_b32 s{sT1}, 7, 1\ns_add_u32 s{sU}, s{sU}, s{sT1}')
        else: A(f's_add_u32 s{sU}, s{sU}, 4')
        if rot >= 0: A(f's_cmp_ge_u32 s{sU}, 96\ns_cselect_b32 s{sT1}, 96, 0\ns_sub_u32 s{sU}, s{sU}, s{sT1}')
    def poll(lbl, loads, tagregs, code, mid=None):
        A(f's_mov_b32 s{sCNT}, {spin}\n{lbl}:')
        for x in loads: A(x)
        if mid: A(f'{mid}:')
        A('s_waitcnt vmcnt(0)')
        A(f'v_xor_b32 {v(vT)}, {v(tagregs[0])}, {v(vTAG)}')
        for r in tagregs[1:]:
            A(f'v_xor_b32 {v(vT+1)}, {v(r)}, {v(vTAG)}\nv_or_b32 {v(vT)}, {v(vT)}, {v(vT+1)}')
        if (nopoll and lbl != 'L_pq') or (noex and lbl == 'L_px'): A(f's_branch {lbl}_ok')
        A(f'v_cmp_ne_u32 vcc, 0, {v(vT)}\ns_cbranch_vccz {lbl}_ok')
        if sleep: A(f's_sleep {sleep}')
        A(f's_sub_u32 s{sCNT}, s{sCNT}, 1\ns_cmp_lg_u32 s{sCNT}, 0\ns_cbranch_scc1 {lbl}')
        A(f'v_mov_b32 {v(vT)}, 0\nv_mov_b32 {v(vT+1)}, {code}\nglobal_store_dword {v(vT)}, {v(vT+1)}, {sp(sDBG)}')
        A(f'{lbl}_ok:')
    def polls(lbl, loads, tagregs, code):
        A(f's_mov_b32 s{sCNT}, {spin}')
        for x in loads: A(x)
        A(f'{lbl}:\ns_waitcnt vmcnt(0)\ns_mov_b32 s{sT3}, 0')
        for k, (x, r) in enumerate(zip(loads, tagregs)):
            A(f'v_cmp_ne_u32 vcc, {v(r)}, {v(vTAG)}\ns_cbranch_vccz {lbl}_s{k}\ns_mov_b64 exec, vcc')
            A(x)
            A(f's_mov_b64 exec, -1\ns_mov_b32 s{sT3}, 1\n{lbl}_s{k}:')
        A(f's_cmp_eq_u32 s{sT3}, 0\ns_cbranch_scc1 {lbl}_ok')
        A(f's_sub_u32 s{sCNT}, s{sCNT}, 1\ns_cmp_lg_u32 s{sCNT}, 0\ns_cbranch_scc1 {lbl}')
        A(f'v_mov_b32 {v(vT)}, 0\nv_mov_b32 {v(vT+1)}, {code}\nglobal_store_dword {v(vT)}, {v(vT+1)}, {sp(sDBG)}\ns_waitcnt vmcnt(0)')
        A(f'{lbl}_ok:')
    def poll2(lbl, mk, n, base, alt, code, delay, use):
        def check(b, ok):
            A(f's_waitcnt vmcnt({n})')
            A(f'v_xor_b32 {v(vT)}, {v(b+3)}, {v(vTAG)}')
            for k in range(1, n): A(f'v_xor_b32 {v(vT+1)}, {v(b+4*k+3)}, {v(vTAG)}\nv_or_b32 {v(vT)}, {v(vT)}, {v(vT+1)}')
            A(f'v_cmp_ne_u32 vcc, 0, {v(vT)}\ns_cbranch_vccz {ok}')
        A(f's_mov_b32 s{sCNT}, {spin}')
        for x in mk(base): A(x)
        if callable(delay): delay()
        else: A(f's_sleep {delay}')
        A(f'{lbl}:')
        for x in mk(alt): A(x)
        check(base, f'{lbl}_ok')
        for x in mk(base): A(x)
        check(alt, f'{lbl}_okb')
        A(f's_sub_u32 s{sCNT}, s{sCNT}, 1\ns_cmp_lg_u32 s{sCNT}, 0\ns_cbranch_scc1 {lbl}')
        A(f'v_mov_b32 {v(vT)}, 0\nv_mov_b32 {v(vT+1)}, {code}\nglobal_store_dword {v(vT)}, {v(vT+1)}, {sp(sDBG)}')
        A(f'{lbl}_okb:')
        use(alt)
        A(f's_branch {lbl}_done\n{lbl}_ok:')
        use(base)
        A(f'{lbl}_done:')
    def wsload(dst, voff, soff): return f'buffer_load_dwordx4 {v(dst,4)}, {v(voff)}, {srd(rWS)}, s{soff} offen sc1'
    def put3_bf16(r0, t, va):
        A(f'v_cvt_pk_bf16_f32 {v(t)}, {v(r0)}, {v(r0+1)}\nv_cvt_pk_bf16_f32 {v(t+1)}, {v(r0+2)}, {v(r0+2)}')
        A(f'ds_write_b16 {v(va)}, {v(t)}\nds_write_b16_d16_hi {v(va)}, {v(t)} offset:2\nds_write_b16 {v(va)}, {v(t+1)} offset:4')
    def fdiv(q, n, d, r, e):
        A(f'v_mul_f32 {v(q)}, {v(n)}, {v(r)}\nv_fma_f32 {v(e)}, -{v(q)}, {v(d)}, {v(n)}\nv_fma_f32 {v(q)}, {v(e)}, {v(r)}, {v(q)}')
    def trread_mfma(ntile, va, off2, acc, first, frag, aop, va2=None, extra=None):
        def rd(t):
            if va2 is None:
                A(f'ds_read_b64_tr_b16 {v(frag+4*t,2)}, {v(va)} offset:{32*t}')
                A(f'ds_read_b64_tr_b16 {v(frag+4*t+2,2)}, {v(va)} offset:{32*t+off2}')
            else:
                A(f'ds_read_b64_tr_b16 {v(frag+4*t,2)}, {v(va+(t&3))} offset:{128*(t>>2)}')
                A(f'ds_read_b64_tr_b16 {v(frag+4*t+2,2)}, {v(va2+(t&3))} offset:{128*(t>>2)}')
        pre = min(4, ntile)
        for t in range(pre): rd(t)
        for t in range(ntile):
            if t + pre < ntile: rd(t + pre)
            if extra and t + pre == ntile - 1: A(extra)
            left = min(ntile - 1, t + pre) - t
            A(f's_waitcnt lgkmcnt({2*left + (1 if extra and t + pre >= ntile - 1 else 0)})')
            c = '0' if first else v(acc+4*t, 4)
            A(f'v_mfma_f32_16x16x32_bf16 {v(acc+4*t,4)}, {v(aop,4)}, {v(frag+4*t,4)}, {c}')

    A(HEADER)
    A(f'; @launch grid=(256,1,1) block=(320,1,1) lds={LDS}')
    A('.amdgcn_target "amdgcn-amd-amdhsa--gfx950"\n.text')
    if al: A('.p2align 12')
    A(f'.globl {NAME}_kernel\n.p2align 8\n.type {NAME}_kernel,@function\n{NAME}_kernel:')
    A('s_cmp_ge_u32 s2, 256\ns_cbranch_scc1 L_end')
    A('s_load_dwordx16 s[4:19], s[0:1], 0\ns_load_dwordx8 s[20:27], s[0:1], 64')
    if fixdur: A('s_memrealtime s[96:97]')
    if stamps:
        A(f's_memrealtime {sp(sST)}')
        for i in range(2, 16): A(f's_mov_b32 s{sST+i}, 0')
    A(f'v_lshrrev_b32 {v(vT)}, 6, v0\nv_and_b32 {v(vLANE)}, 63, v0')
    A(f'v_readfirstlane_b32 s{sWAVE}, {v(vT)}')
    A(f'v_lshlrev_b32 {v(vL16)}, 4, {v(vLANE)}')
    A(f's_lshr_b32 s{sT0}, s2, 3\ns_lshl_b32 s{sT0}, s{sT0}, 2\ns_and_b32 s{sT1}, s2, 3\ns_add_u32 s{sRHO}, s{sT0}, s{sT1}')
    A(f's_bfe_u32 s{sHALF}, s2, 0x10002\ns_lshr_b32 s{sB}, s{sRHO}, 5\ns_and_b32 s{sH}, s{sRHO}, 31\ns_lshl_b32 s{sJ}, s{sB}, 1\ns_add_u32 s{sJ}, s{sJ}, s{sHALF}')
    A(f's_mul_i32 s{sU2}, s{sH}, 3\ns_add_u32 s{sU2}, s{sU2}, s{sJ}')
    A(f's_mov_b32 s{sSC}, {f2u(192**-0.5):#x}\ns_mov_b32 s{sL2E}, {f2u(1.4426950408889634):#x}')
    def ws_srd():
        A(f's_mov_b32 s{rWS}, s{sWS}\ns_mov_b32 s{rWS+1}, s{sWS+1}')
    A(f's_mov_b32 s{rWS+2}, {WSZ}\ns_mov_b32 s{rWS+3}, 0x20000')
    def vote_slot(src, sidx, sslot):
        A(f's_mul_i32 s{sidx}, s{src}, 3\ns_lshr_b32 s{sidx}, s{sidx}, 5\ns_lshl_b32 s{sslot}, s{sidx}, 5\ns_add_u32 s{sslot}, s{sslot}, 2\ns_mul_i32 s{sslot}, s{sslot}, 43691\ns_lshr_b32 s{sslot}, s{sslot}, 17\ns_sub_u32 s{sslot}, s{src}, s{sslot}')
    sIDX, sSLT = 40, 41
    A(f's_cmp_eq_u32 s{sWAVE}, 4\ns_cbranch_scc0 L_noprobe')
    if prio: A(f's_setprio {prio}')
    vote_slot(2, sIDX, sSLT)
    A(f's_cmp_ge_u32 s{sIDX}, 12\ns_cselect_b32 s{sT0}, 12, 0\ns_sub_u32 s{sT0}, s{sIDX}, s{sT0}')
    A(f's_lshl_b32 s{sT0}, s{sT0}, 3\ns_and_b32 s{sT1}, s{sSLT}, 7\ns_add_u32 s{sT0}, s{sT0}, s{sT1}\ns_lshl_b32 s{sT0}, s{sT0}, 21')
    A(f's_lshr_b32 s{sT1}, s{sSLT}, 3\ns_lshl_b32 s{sT1}, s{sT1}, 12\nv_mov_b32 {v(vT+4)}, 0\ns_mov_b64 exec, 1\ns_cmp_ge_u32 s{sIDX}, 12')
    A('s_waitcnt lgkmcnt(0)')
    A(f's_cselect_b32 s{sP}, s{sV}, s{sK}\ns_cselect_b32 s{sP+1}, s{sV+1}, s{sK+1}\ns_add_u32 s{sP}, s{sP}, s{sT0}\ns_addc_u32 s{sP+1}, s{sP+1}, 0')
    A(f's_bfe_u32 s{sT0}, s{sP}, 0x10015\ns_lshl_b32 s{sT0}, s{sT0}, 13\ns_add_u32 s{sT0}, s{sT0}, s{sT1}')
    A(f'v_mov_b32 {v(vT)}, s{sT0}\nv_xor_b32 {v(vT+1)}, 0x2000, {v(vT)}')
    A(f'global_load_dword {v(vT+2)}, {v(vT)}, {sp(sP)} nt\nglobal_load_dword {v(vT+3)}, {v(vT+1)}, {sp(sP)} nt\ns_mov_b64 exec, -1')
    if gord >= 2: A(f'global_load_dword {v(vTAG)}, {v(vT+4)}, {sp(sWS)} sc1')
    A('s_barrier')
    ws_srd()
    e_ = 1 if gord >= 2 else 0
    A(f's_waitcnt vmcnt({1+e_})\ns_memtime s[36:37]\ns_waitcnt vmcnt({e_})\ns_memtime s[38:39]')
    if gord < 2: A(f'global_load_dword {v(vTAG)}, {v(vT+4)}, {sp(sWS)} sc1')
    A('s_branch L_helper\nL_noprobe:')

    sO1, sO2, sOK = sN0, sN1, sFLV
    A(f's_cmp_ge_u32 s{sJ}, 3\ns_cbranch_scc0 L_w1mlp')
    A(f's_mov_b32 s{sBETA}, s{sH}\ns_sub_u32 s{sPI}, s{sJ}, 3\ns_mov_b32 s{sRS}, 12288\ns_mov_b32 s{sHASW1}, 1\ns_mul_i32 s{sO1}, s{sH}, 384')
    A('s_branch L_w1done\nL_w1mlp:')
    A(f's_mul_i32 s{sT1}, s{sU2}, 52429\ns_lshr_b32 s{sT1}, s{sT1}, 18')
    A(f's_mul_i32 s{sT2}, s{sT1}, 5\ns_sub_u32 s{sPI}, s{sU2}, s{sT2}\ns_add_u32 s{sBETA}, s{sT1}, 32\ns_mov_b32 s{sRS}, 3072')
    A(f's_cmp_lt_u32 s{sU2}, 80\ns_cselect_b32 s{sHASW1}, 1, 0\ns_and_b32 s{sT1}, s{sT1}, 7\ns_mul_i32 s{sO1}, s{sT1}, 384')
    A('L_w1done:')
    A(f's_lshl_b32 s{sT1}, s{sPI}, 2\ns_add_u32 s{sT1}, s{sT1}, s{sWAVE}\ns_lshl_b32 s{sT1}, s{sT1}, 5\ns_mul_i32 s{sT1}, s{sT1}, s{sRS}\ns_add_u32 s{sO1}, s{sO1}, s{sT1}')
    A(f's_mul_i32 s{sT1}, s{sRS}, 31\ns_add_u32 s{sT1}, s{sT1}, 384\ns_mul_i32 s{rW1+2}, s{sT1}, s{sHASW1}\ns_mov_b32 s{rW1+3}, 0x20000')
    if now: A(f's_mov_b32 s{rW1+2}, 0')
    for p in range(3):
        A(f'v_add_u32 {v(vT)}, {64*p}, {v(vLANE)}\nv_mul_u32_u24 {v(vT+1)}, 2731, {v(vT)}\nv_lshrrev_b32 {v(vT+1)}, 16, {v(vT+1)}')
        A(f'v_mul_u32_u24 {v(vT+2)}, 24, {v(vT+1)}\nv_sub_u32 {v(vT)}, {v(vT)}, {v(vT+2)}\nv_lshlrev_b32 {v(vT)}, 4, {v(vT)}')
        if not w1sw: A(f'v_mad_u32_u24 {v(vS+p)}, {v(vT+1)}, s{sRS}, {v(vT)}')
        A(f'v_and_b32 {v(vT+3)}, 6, {v(vT+1)}\nv_lshlrev_b32 {v(vT+3)}, 4, {v(vT+3)}\nv_xor_b32 {v(vT)}, {v(vT)}, {v(vT+3)}\nv_lshl_add_u32 {v(vSRC+p)}, {v(vT+2)}, 4, {v(vT)}')
        if w1sw: A(f'v_mad_u32_u24 {v(vS+p)}, {v(vT+1)}, s{sRS}, {v(vT)}')
    A(f's_mul_i32 s{sSLA}, s{sWAVE}, {RING}\ns_add_u32 s{sSLB}, s{sSLA}, {SLOT}\ns_mul_i32 s{sSLC}, s{sWAVE}, {WT}\ns_add_u32 s{sSLC}, s{sSLC}, {WREG}')
    A(f's_mul_i32 s{sT0}, s{sWAVE}, 1280\nv_lshlrev_b32 {v(vA)}, 2, {v(vLANE)}\nv_add_u32 {v(vA)}, s{sT0}, {v(vA)}\ns_mul_i32 s{sOK}, s{sRHO}, 1572864')
    if 2 <= touch <= 4:
        rot3(sT2, sT1)
        A(f's_lshl_b32 s{sT2}, s{sT2}, 19\ns_add_u32 s{sT2}, s{sT2}, s{sOK}\ns_mul_i32 s{sT3}, s{sRS}, 31\ns_mul_i32 s{sT1}, s{sH}, {192*1280}')
    A(f's_cmp_lt_u32 s{sBETA}, 40')
    A('s_waitcnt lgkmcnt(0)')
    pstamp(1)
    if stamps == 3: A(f's_cmp_lt_u32 s{sBETA}, 40')
    A(f's_cselect_b32 s{rW1}, s{sWG}, s{sWU}\ns_cselect_b32 s{rW1+1}, s{sWG+1}, s{sWU+1}\ns_cmp_lt_u32 s{sBETA}, 32\ns_cselect_b32 s{rW1}, s{sWQ}, s{rW1}\ns_cselect_b32 s{rW1+1}, s{sWQ+1}, s{rW1+1}')
    A(f's_add_u32 s{rW1}, s{rW1}, s{sO1}\ns_addc_u32 s{rW1+1}, s{rW1+1}, 0')
    if touch == 1:
        A(f's_load_dword s97, {sp(rW1)}, 0\ns_load_dword s98, {sp(sX)}, 0\ns_load_dword s99, {sp(sK)}, s{sOK}')
    if touch >= 5:
        A('; (scalar loads whose values are unused: they start the address translations side by side)')
        A(f's_load_dword s97, {sp(rW1)}, 0\ns_load_dword s98, {sp(sX)}, 0')
        if touch in (5, 7): A(f's_load_dword s99, {sp(sWS)}, 0')
        if touch == 7: A(f's_mul_i32 s{sT3}, s{sRS}, 31\ns_load_dword s97, {sp(rW1)}, s{sT3}')
    if 2 <= touch <= 4:
        A(f's_load_dword s97, {sp(rW1)}, 0\ns_load_dword s98, {sp(sX)}, 0\ns_load_dword s99, {sp(sK)}, s{sT2}\ns_load_dword s97, {sp(sWS)}, 0')
        if touch >= 3: A(f's_load_dword s98, {sp(rW1)}, s{sT3}\ns_load_dword s99, {sp(sWO)}, s{sT1}')
        if touch >= 4: A(f's_mov_b32 s{sT1}, 0x200000\ns_load_dword s97, {sp(sWS)}, s{sT1}\ns_load_dword s98, {sp(sWD)}, 0')
    A('s_barrier')
    pstamp(2)
    for k in range(5): A(f'global_load_dword {v(vF+k)}, {v(vA)}, {sp(sX)} offset:{256*k}')
    def w1_issue():
        A(f's_lshl_b32 s{sT2}, s{sRS}, 3\ns_mov_b32 s{sT1}, 0')
        for i in range(12):
            A(f's_add_u32 m0, s{sSLC}, {1024*i}')
            A(f's_add_u32 s{sT1}, s{sT1}, s{sT2}' if i and i % 3 == 0 else 's_nop 0')
            A(f'buffer_load_dwordx4 {v(vS+i%3)}, {srd(rW1)}, s{sT1} offen {w1nt} lds')
    if late:
        assert up == 0
        A(f's_cmp_ge_u32 s{sJ}, 3\ns_cbranch_scc0 L_w1late')
    w1_issue()
    if late: A('L_w1late:')
    A(f'v_mov_b32 {v(vT)}, 0\nglobal_load_dword {v(vTAG)}, {v(vT)}, {sp(sWS)} sc1')
    pstamp(3)
    ws_srd()
    A(f's_add_u32 s{rK}, s{sK}, s{sOK}\ns_addc_u32 s{rK+1}, s{sK+1}, 0\ns_mov_b32 s{rK+3}, 0x20000')
    A(f's_add_u32 s{sVB}, s{sV}, s{sOK}\ns_addc_u32 s{sVB+1}, s{sV+1}, 0')
    A(f's_lshl_b32 s{sU}, s{sWAVE}, {umap}')
    if rot >= 0:
        rot3(sT1, sT2)
        A(f's_lshl_b32 s{sT1}, s{sT1}, 5\ns_add_u32 s{sU}, s{sU}, s{sT1}')
    A(f's_mov_b32 s{sU0}, s{sU}')
    block_params(1, sN0)
    dma_tile(sOFF, sSLA, None, 0, up, knt)
    A(f's_cmp_lt_u32 s{sJ}, 5\ns_cbranch_scc0 L_w2down')
    A(f's_mul_i32 s{sT1}, s{sH}, {192*1280}\ns_lshl_b32 s{sT2}, s{sJ}, 8\ns_add_u32 s{sT1}, s{sT1}, s{sT2}')
    if wlate:
        A(f's_lshl_b32 s{sT2}, s{sWAVE}, 6\ns_add_u32 s{sT1}, s{sT1}, s{sT2}\ns_add_u32 s{rW2}, s{sWO}, s{sT1}\ns_addc_u32 s{rW2+1}, s{sWO+1}, 0\ns_mov_b32 s{rW2+2}, {191*1280+64}\ns_mov_b32 s{rW2+3}, 0x20000\ns_branch L_w2fin')
    else: A(f's_add_u32 s{rW2}, s{sWO}, s{sT1}\ns_addc_u32 s{rW2+1}, s{sWO+1}, 0\ns_mov_b32 s{rW2+2}, {47*1280+256}\ns_branch L_w2done')
    A('L_w2down:')
    A(f's_sub_u32 s{sT3}, s{sU2}, 5\ns_mul_i32 s{sT1}, s{sT3}, 52429\ns_lshr_b32 s{sT1}, s{sT1}, 18\ns_mul_i32 s{sT2}, s{sT1}, 5\ns_sub_u32 s{sT2}, s{sT3}, s{sT2}')
    A(f's_mul_i32 s{sT1}, s{sT1}, {96*1280}\ns_lshl_b32 s{sT2}, s{sT2}, 8\ns_add_u32 s{sT1}, s{sT1}, s{sT2}')
    A(f's_add_u32 s{rW2}, s{sWD}, s{sT1}\ns_addc_u32 s{rW2+1}, s{sWD+1}, 0')
    A(f's_cmp_lt_u32 s{sT3}, 80\ns_cselect_b32 s{rW2+2}, {47*1280+256}, 0\ns_cmp_lt_u32 s{sWAVE}, 2\ns_cselect_b32 s{rW2+2}, s{rW2+2}, 0')
    A('L_w2done:')
    A(f's_mul_i32 s{sT1}, s{sWAVE}, {48*1280}\ns_add_u32 s{rW2}, s{rW2}, s{sT1}\ns_addc_u32 s{rW2+1}, s{rW2+1}, 0\ns_mov_b32 s{rW2+3}, 0x20000')
    if now: A(f's_mov_b32 s{rW2+2}, 0')
    if wlate: A('L_w2fin:')
    def vbases(hf):
        A(f'v_lshrrev_b32 {v(vT)}, 2, {v(vLANE)}')
        if hf: A(f'v_min_u32 {v(vT)}, 5, {v(vT)}\nv_add_u32 {v(vT)}, 16, {v(vT)}')
        A(f'v_bfe_u32 {v(vT+2)}, {v(vT)}, 1, 2\nv_mul_u32_u24 {v(vT)}, 384, {v(vT)}\nv_and_b32 {v(vT+3)}, 3, {v(vLANE)}\nv_lshl_add_u32 {v(vT)}, {v(vT+3)}, 3, {v(vT)}')
        for k in range(4): A(f'v_xor_b32 {v(vT+3)}, {k}, {v(vT+2)}\nv_lshl_add_u32 {v(vVB+4*hf+k)}, {v(vT+3)}, 5, {v(vT)}')
    if w1sw:
        vbases(0)
        for k in range(4): A(f'v_add_u32 {v(vAD+k)}, s{sSLC}, {v(vVB+k)}\nv_add_u32 {v(vAD+4+k)}, 6144, {v(vAD+k)}')
    if not w1sw: A(f'v_lshrrev_b32 {v(vT)}, 2, {v(vLANE)}\nv_mul_u32_u24 {v(vT)}, 384, {v(vT)}\nv_and_b32 {v(vT+1)}, 3, {v(vLANE)}\nv_lshl_add_u32 {v(vVA0)}, {v(vT+1)}, 3, {v(vT)}')
    if late:
        A(f's_cmp_ge_u32 s{sJ}, 3\ns_cbranch_scc1 L_xw\ns_waitcnt vmcnt(0)\nL_xw:')
    A(f's_waitcnt vmcnt({1+12+up})')
    pstamp(4)
    X = vF + 8
    for k in range(5):
        A(f'v_lshlrev_b32 {v(X+2*k)}, 16, {v(vF+k)}\nv_and_b32 {v(X+2*k+1)}, 0xffff0000, {v(vF+k)}')
    a = vT
    A(f'v_add_f32 {v(a)}, {v(X)}, {v(X+1)}')
    for k in range(2, 10): A(f'v_add_f32 {v(a)}, {v(a)}, {v(X+k)}')
    xsum(a, a+1)
    A(f'v_mul_f32 {v(a)}, {f2u(1/640):#x}, {v(a)}')
    b_ = vT+2
    A(f'v_sub_f32 {v(a+1)}, {v(X)}, {v(a)}\nv_mul_f32 {v(b_)}, {v(a+1)}, {v(a+1)}')
    for k in range(1, 10): A(f'v_sub_f32 {v(a+1)}, {v(X+k)}, {v(a)}\nv_fmac_f32 {v(b_)}, {v(a+1)}, {v(a+1)}')
    xsum(b_, a+1)
    A(f'v_mul_f32 {v(b_)}, {f2u(1/640):#x}, {v(b_)}')
    rnd2(a, b_, a+1)
    A(f'v_add_f32 {v(b_)}, {f2u(1e-5):#x}, {v(b_)}')
    rnd(b_, a+1)
    c_ = vT+3
    A(f'v_sqrt_f32 {v(c_)}, {v(b_)}\ns_nop 0\nv_rcp_f32 {v(c_+1)}, {v(c_)}\nv_fma_f32 {v(a+1)}, -{v(c_)}, {v(c_)}, {v(b_)}')
    A(f'v_mul_f32 {v(c_+1)}, 0.5, {v(c_+1)}\nv_fma_f32 {v(c_)}, {v(a+1)}, {v(c_+1)}, {v(c_)}')
    rnd(c_, a+1)
    A(f'v_rcp_f32 {v(c_+1)}, {v(c_)}')
    A(f'v_mov_b32 {v(vT+6)}, {v(X)}\nv_mov_b32 {v(vT+7)}, {v(X+1)}')
    for k in range(1, 5):
        A(f's_cmp_eq_u32 s{sPI}, {k}\ns_cselect_b64 vcc, -1, 0\nv_cndmask_b32 {v(vT+6)}, {v(vT+6)}, {v(X+2*k)}, vcc\nv_cndmask_b32 {v(vT+7)}, {v(vT+7)}, {v(X+2*k+1)}, vcc')
    A(f'v_sub_f32 {v(vT+6)}, {v(vT+6)}, {v(a)}\nv_sub_f32 {v(vT+7)}, {v(vT+7)}, {v(a)}')
    rnd2(vT+6, vT+7, a+1)
    fdiv(vT+8, vT+6, c_, c_+1, a+1)
    fdiv(vT+9, vT+7, c_, c_+1, a+1)
    A(f'v_cvt_pk_bf16_f32 {v(vT+8)}, {v(vT+8)}, {v(vT+9)}')
    A(f's_lshl_b32 s{sT1}, s{sWAVE}, 8\ns_add_u32 s{sT1}, s{sT1}, {XN}\nv_lshlrev_b32 {v(vA)}, 2, {v(vLANE)}\nv_add_u32 {v(vA)}, s{sT1}, {v(vA)}')
    A(f'ds_write_b32 {v(vA)}, {v(vT+8)}')
    A(f'v_bfe_u32 {v(vT)}, {v(vLANE)}, 2, 2\nv_lshlrev_b32 {v(vT)}, 8, {v(vT)}\nv_lshrrev_b32 {v(vT+1)}, 4, {v(vLANE)}\nv_lshl_add_u32 {v(vT)}, {v(vT+1)}, 3, {v(vT)}')
    A(f's_lshl_b32 s{sT1}, s{sWAVE}, 6\ns_add_u32 s{sT1}, s{sT1}, {XN}\nv_add_u32 {v(vA)}, s{sT1}, {v(vT)}')
    A('s_waitcnt lgkmcnt(0)\ns_barrier')
    if stamps == 1: stamp(1)
    pstamp(5); qstamp(1)
    A(f'ds_read2_b64 {v(vP,4)}, {v(vA)} offset0:0 offset1:4')
    if late:
        A(f's_cmp_ge_u32 s{sJ}, 3\ns_cbranch_scc1 L_w1early')
        w1_issue()
        A('L_w1early:')
    k0a = max(up, min(9, pace))
    dma_tile(sOFF, sSLA, pace, up, k0a, knt)
    if not w1sw: A(f'v_add_u32 {v(vA)}, s{sSLC}, {v(vVA0)}')
    A(f's_waitcnt vmcnt({k0a}) lgkmcnt(0)')
    pstamp(6); qstamp(2)
    if xtra >= 0:
        dma_tile(sOFF, sSLA, None, k0a, 9, knt)
        block_params(1, sN1)
        dma_tile(sOFF, sSLB, None, 0, xtra, knt)
    if w1sw: trread_mfma(12, vAD, 0, vO, True, vF, vP, vAD+4)
    else: trread_mfma(12, vA, 6144, vO, True, vF, vP)
    qstamp(3)
    A(f's_mul_i32 s{sT1}, s{sWAVE}, 3072\ns_add_u32 s{sT1}, s{sT1}, {RED}')
    A(f'v_lshrrev_b32 {v(vT)}, 4, {v(vLANE)}\nv_mul_u32_u24 {v(vT)}, 768, {v(vT)}\nv_and_b32 {v(vT+1)}, 15, {v(vLANE)}\nv_lshl_add_u32 {v(vT)}, {v(vT+1)}, 2, {v(vT)}\nv_add_u32 {v(vA)}, s{sT1}, {v(vT)}')
    A('s_nop 2')
    for t in range(12): A(f'ds_write_b32 {v(vA)}, {v(vO+4*t)} offset:{64*t}')
    A(f's_mul_i32 s{sT1}, s{sWAVE}, 768\ns_add_u32 s{sT1}, s{sT1}, {RED}\nv_mul_u32_u24 {v(vA)}, 12, {v(vLANE)}\nv_add_u32 {v(vA)}, s{sT1}, {v(vA)}')
    A('s_waitcnt lgkmcnt(0)')
    qstamp(4)
    A('s_barrier')
    qstamp(5)
    for w in range(4):
        for k in range(3): A(f'ds_read_b32 {v(vF+4*w+k)}, {v(vA)} offset:{3072*w+4*k}')
    A(f'v_lshrrev_b32 {v(vT)}, 4, {v(vLANE)}\nv_mul_u32_u24 {v(vT)}, 1280, {v(vT)}\nv_and_b32 {v(vT+1)}, 15, {v(vLANE)}\nv_lshl_add_u32 {v(vS)}, {v(vT+1)}, 4, {v(vT)}')
    A(f's_mul_i32 s{sT1}, s{sBETA}, 5\ns_add_u32 s{sT1}, s{sT1}, s{sPI}\ns_lshl_b32 s{sT1}, s{sT1}, 2\ns_add_u32 s{sT1}, s{sT1}, s{sWAVE}\ns_lshl_b32 s{sT1}, s{sT1}, 10\ns_add_u32 s{sT1}, s{sT1}, {P1}')
    A(f'v_add_u32 {v(vTAG)}, {TAGC:#x}, {v(vTAG)}')
    A('s_waitcnt lgkmcnt(0)')
    for k in range(3):
        A(f'v_add_f32 {v(vF+k)}, {v(vF+k)}, {v(vF+4+k)}\nv_add_f32 {v(vF+8+k)}, {v(vF+8+k)}, {v(vF+12+k)}')
    for k in range(3): A(f'v_add_f32 {v(vF+k)}, {v(vF+k)}, {v(vF+8+k)}')
    A(f'v_mov_b32 {v(vF+3)}, {v(vTAG)}')
    A(f's_cmp_eq_u32 s{sHASW1}, 0\ns_cbranch_scc1 L_nopub1')
    A(f'buffer_store_dwordx4 {v(vF,4)}, {v(vL16)}, {srd(rWS)}, s{sT1} offen sc1')
    A('L_nopub1:')
    qstamp(6)
    stamp(2)
    if xtra >= 0: dma_tile(sOFF, sSLB, pace, xtra, 9, knt)
    else: dma_tile(sOFF, sSLA, pace, k0a, 9, knt)
    A(f's_mov_b32 s{sT1}, 0')
    if wlate: A(f's_cmp_lt_u32 s{sJ}, 5\ns_cbranch_scc1 L_w2skip')
    for i in range(12):
        A(f's_add_u32 m0, s{sSLC}, {1024*i}\ns_waitcnt vmcnt({pace-1})')
        A(f'buffer_load_dwordx4 {v(vS)}, {srd(rW2)}, s{sT1} offen {w2nt} lds')
        if i == qdel: A(f'v_mov_b32 {v(vT)}, {FLG+32}\nv_mov_b32 {v(vT+1)}, 4\nds_write_b32 {v(vT)}, {v(vT+1)}')
        if i < 11: A(f's_add_u32 s{sT1}, s{sT1}, 5120')
    if wlate: A('L_w2skip:')
    if xtra < 0:
        block_params(1, sN1)
        if qdel >= 12 or wlate:
            qk = qdel2 if wlate else qdel - 11
            dma_tile(sOFF, sSLB, pace, 0, min(qk, 9), knt)
            if qk > 9: A(f's_waitcnt vmcnt({max(0, 9 + pace - 1 - qk)})')
            A(f'v_mov_b32 {v(vT)}, {FLG+32}\nv_mov_b32 {v(vT+1)}, 4\nds_write_b32 {v(vT)}, {v(vT+1)}')
            dma_tile(sOFF, sSLB, pace, min(qk, 9), 9, knt)
        else: dma_tile(sOFF, sSLB, pace, 0, 9, knt)
    for t in range(12):
        for r in range(4): A(f'v_mov_b32 {v(vO+4*t+r)}, 0')
    A(f'v_mov_b32 {v(vM)}, {f2u(-1e30):#x}\nv_mov_b32 {v(vML)}, {f2u(-1e30):#x}\nv_mov_b32 {v(vLS)}, 0\ns_mov_b32 s{sNEG}, 0xff80ff80')
    A(f'v_lshrrev_b32 {v(vT+1)}, 4, {v(vLANE)}')
    for hf in range(2):
        A(f'v_and_b32 {v(vT)}, 15, {v(vLANE)}')
        if hf: A(f'v_min_u32 {v(vT)}, 5, {v(vT)}\nv_add_u32 {v(vT)}, 16, {v(vT)}')
        A(f'v_and_b32 {v(vT+2)}, 6, {v(vT)}\nv_xor_b32 {v(vT+2)}, {v(vT+2)}, {v(vT+1)}\nv_mul_u32_u24 {v(vT)}, 384, {v(vT)}')
        A(f'v_lshl_add_u32 {v(vKB+2*hf)}, {v(vT+2)}, 4, {v(vT)}\nv_xor_b32 {v(vT+2)}, 4, {v(vT+2)}\nv_lshl_add_u32 {v(vKB+2*hf+1)}, {v(vT+2)}, 4, {v(vT)}')
    vbases(1)
    if not w1sw: vbases(0)
    A(f'v_cmp_gt_u32 vcc, 16, {v(vLANE)}\nv_mov_b32 {v(vT)}, 0xffff\nv_mov_b32 {v(vT+2)}, 0xffff0000\nv_cndmask_b32 {v(vM3)}, 0, -1, vcc')
    A(f'v_cmp_eq_u32 vcc, 1, {v(vT+1)}\ns_mul_i32 s{sT1}, s{sWAVE}, 1536\ns_add_u32 s{sT1}, s{sT1}, {STG}\nv_cndmask_b32 {v(vM2B)}, {v(vM3)}, {v(vT)}, vcc\nv_cndmask_b32 {v(vM2X)}, 0, {v(vT+2)}, vcc')
    A(f'v_lshl_add_u32 {v(vSK)}, {v(vT+1)}, 4, s{sT1}\nv_add_u32 {v(vSV)}, {22*64}, {v(vSK)}\nv_mov_b32 {v(vFA)}, {FLG+16}\nv_mov_b32 {v(vONE)}, 1')
    A(f'v_add_u32 {v(vT)}, 352, {v(vLANE)}\nv_cmp_gt_u32 vcc, 32, {v(vLANE)}\nv_add_u32 {v(vT+2)}, -32, {v(vLANE)}\ns_nop 0\nv_cndmask_b32 {v(vT)}, {v(vT+2)}, {v(vT)}, vcc\nv_lshl_add_u32 {v(vPA)}, {v(vT)}, 2, s{sT1}')
    A(f's_add_u32 s{sSTG}, s{sT1}, 128')
    A(f'v_lshlrev_b32 {v(vA)}, 4, {v(vT+1)}\nv_add_u32 {v(vA)}, {QL}, {v(vA)}\nv_mov_b32 {v(vT+2)}, {FLG}')
    A('s_waitcnt vmcnt(9)')
    if stamps == 2: stamp(1)
    A('s_barrier')
    stamp(3)
    A(f'ds_read_b64 {v(vT+4,2)}, {v(vT+2)}')
    for s in range(6): A(f'ds_read_b128 {v(vQ+4*s,4)}, {v(vA)} offset:{64*s}')
    A(f's_mov_b32 s{sT}, 0\ns_waitcnt lgkmcnt(6)')
    A(f'v_readfirstlane_b32 s{sFL}, {v(vT+4)}\nv_readfirstlane_b32 s{sFLV}, {v(vT+5)}')
    A(f's_nop 0\ns_mov_b64 {sp(sCM)}, 0')
    grp = [0x3f, 0xff << 6, 0x3f << 14]
    for i in range(3):
        A(f's_bitcmp1_b32 s{sFL}, {i}\ns_cselect_b32 s{sT1}, {grp[i]:#x}, 0\ns_or_b32 s{sCM}, s{sCM}, s{sT1}')
        gv = grp[i] << 26
        A(f's_bitcmp1_b32 s{sFLV}, {i}')
        if gv & 0xffffffff: A(f's_cselect_b32 s{sT1}, {gv & 0xffffffff:#x}, 0')
        if gv >> 32: A(f's_cselect_b32 s{sT2}, {gv >> 32:#x}, 0\ns_or_b32 s{sCM+1}, s{sCM+1}, s{sT2}')
        if gv & 0xffffffff: A(f's_or_b32 s{sCM}, s{sCM}, s{sT1}')
    for k in range(2):
        A(f's_bitcmp1_b32 s{sRHO}, 0\ns_cselect_b32 s{sT1}, s{sFL if k else sFLV}, s{sFLV if k else sFL}\ns_bitcmp1_b32 s{sT1}, 2\ns_cselect_b32 s{sT1}, {5 << (20+k):#x}, 0\ns_or_b32 s{sCM}, s{sCM}, s{sT1}')
    A(f's_sub_u32 s{sT1}, 0, s{sHALF}\ns_xor_b32 s{sCM}, s{sCM}, s{sT1}\ns_xor_b32 s{sCM+1}, s{sCM+1}, s{sT1}')
    A(f's_mov_b32 s{sPUB}, 4\ns_waitcnt lgkmcnt(0)')
    def arrive():
        A(f's_mov_b64 exec, 1\nds_add_u32 {v(vFA)}, {v(vONE)}\ns_mov_b64 exec, -1')
    chk = f'ds_read_b128 {v(vR,4)}, {v(vFA)}'
    def step_wait(lbl):
        if not sync: return
        A(f'{lbl}:\ns_waitcnt lgkmcnt(0)\nv_readfirstlane_b32 s{sT1}, {v(vR)}\ns_nop 0\ns_cmp_ge_u32 s{sT1}, s{sPUB}\ns_cbranch_scc1 {lbl}_ok')
        A(f'{chk}\ns_branch {lbl}\n{lbl}_ok:')
    def wo_frags(vA=vA):
        A(f'v_lshrrev_b32 {v(vT)}, 2, {v(vLANE)}\nv_lshlrev_b32 {v(vT)}, 8, {v(vT)}\nv_and_b32 {v(vT+1)}, 3, {v(vLANE)}\nv_lshl_add_u32 {v(vT)}, {v(vT+1)}, 3, {v(vT)}')
        A(f's_lshl_b32 s{sT3}, s{sWAVE}, 6\ns_add_u32 s{sT3}, s{sT3}, {WREG}\nv_add_u32 {v(vA)}, s{sT3}, {v(vT)}')
        for s in range(6):
            for t in range(2):
                f = vW + 24*t + 4*s
                A(f'ds_read_b64_tr_b16 {v(f,2)}, {v(vA)} offset:{8192*s+32*t}\nds_read_b64_tr_b16 {v(f+2,2)}, {v(vA)} offset:{8192*s+32*t+4096}')
            if s % 2 == 1 and s < 5: A('s_waitcnt lgkmcnt(4)')
    A('.p2align 6\nL_kloop:')
    for k in range(4): A(f'v_add_u32 {v(vAD+k)}, s{sSLA}, {v(vKB+k)}')
    A('s_waitcnt vmcnt(9)')
    arrive()
    for kt in range(2):
        for s in range(6):
            if not (nocomp & 1): A(f'ds_read_b128 {v(vF+24*kt+4*s,4)}, {v(vAD+2*kt+(s&1))} offset:{128*(s>>1)}')
    A(chk)
    A(f'v_and_or_b32 {v(vT+8)}, {v(vM2X)}, s{sN0}, {v(vM2B)}\ns_mov_b32 s{sN0}, s{sN1}')
    A(f's_cmp_lg_u32 s{sT}, 22\ns_cbranch_scc1 L_knosw')
    A(f's_mov_b32 s{rK}, s{sVB}\ns_mov_b32 s{rK+1}, s{sVB+1}\ns_cmp_ge_u32 s{sU0}, 8\ns_cselect_b32 s{sU}, -8, 88\ns_add_u32 s{sU}, s{sU}, s{sU0}')
    A('L_knosw:')
    block_params(0, sN1)
    for kt in range(2):
        for s in range(6):
            i = 6*kt + s
            A(f's_waitcnt lgkmcnt({12-i})')
            c = '0' if s == 0 else v(vS+4*kt, 4)
            A(f'v_mfma_f32_16x16x32_bf16 {v(vS+4*kt,4)}, {v(vF+4*i,4)}, {v(vQ+4*s,4)}, {c}')
    step_wait('L_ks')
    dma_tile(sOFF, sSLA, None, 0, pre, knt)
    A(f's_nop {max(0, 7 - 3*pre)}')
    for k in range(4): rnd2(vS+2*k, vS+2*k+1, vT+k)
    for k in range(8): A(f'v_mul_f32 {v(vS+k)}, s{sSC}, {v(vS+k)}')
    for k in range(4): A(f'v_cvt_pk_bf16_f32 {v(vT+k)}, {v(vS+2*k)}, {v(vS+2*k+1)}')
    A(f'v_bfi_b32 {v(vT+2)}, {v(vT+8)}, {v(vT+2)}, s{sNEG}\nv_bfi_b32 {v(vT+3)}, {v(vM3)}, {v(vT+3)}, s{sNEG}')
    A(f's_mov_b32 exec_lo, 0x00010001\ns_mov_b32 exec_hi, 0x00010001\nds_write_b128 {v(vSK)}, {v(vT,4)}\ns_mov_b64 exec, -1\nv_add_u32 {v(vSK)}, 64, {v(vSK)}')
    A(f's_cmp_eq_u32 s{sT}, 23\ns_cbranch_scc1 L_spa')
    kbal = bal and min(cpl) < 20
    if kbal:
        A(f'v_readfirstlane_b32 s{sT1}, {v(vR+2)}\ns_nop 0\ns_cmp_gt_i32 s{sT1}, s{sT}\ns_cbranch_scc1 L_kup')
        if bneg: A(f's_add_i32 s{sT1}, s{sT1}, s{sT}\ns_cmp_lt_i32 s{sT1}, 0\ns_cbranch_scc1 L_kdn')
    dma_tile(sOFF, sSLA, D, pre, 9, knt)
    A('L_kpe:')
    A(f's_mov_b32 s{sT1}, s{sSLA}\ns_mov_b32 s{sSLA}, s{sSLB}\ns_mov_b32 s{sSLB}, s{sT1}')
    A(f's_add_u32 s{sT}, s{sT}, 1\ns_add_u32 s{sPUB}, s{sPUB}, 4\ns_branch L_kloop')
    A('.p2align 6\nL_vloop:')
    for k in range(8): A(f'v_add_u32 {v(vAD+k)}, s{sSLA}, {v(vVB+k)}')
    A(f'ds_read_b128 {v(vP,4)}, {v(vSV)}\ns_cmp_eq_u32 s{sT}, 25\ns_cselect_b32 s{sT1}, {64-1536}, 64\nv_add_u32 {v(vSV)}, s{sT1}, {v(vSV)}')
    A(f's_cmp_lg_u32 s{sT}, 24\ns_cbranch_scc1 L_vnosw\ns_mov_b32 s{sU}, s{sU0}\nL_vnosw:')
    block_params(2, sN1)
    if wlate: A(f's_cmp_eq_u32 s{sT}, 47\ns_cbranch_scc1 L_vw12')
    A('s_waitcnt vmcnt(9)')
    if wlate: A('L_vw12:\ns_waitcnt vmcnt(12)')
    arrive()
    if not (nocomp & 2): trread_mfma(12, vAD, 0, vO, False, vF, vP, vAD+4, chk)
    else: A(chk)
    A(f's_cmp_eq_u32 s{sT}, 47\ns_cbranch_scc1 L_loopx')
    step_wait('L_vs')
    if wlate: A(f's_cmp_eq_u32 s{sT}, 46\ns_cbranch_scc1 L_wl')
    dma_tile(sOFF, sSLA, None, 0, pre, vnt)
    A(f's_cmp_eq_u32 s{sT}, 27\ns_cbranch_scc1 L_spb')
    A('L_vmid:')
    if bal:
        A(f'v_readfirstlane_b32 s{sT2}, {v(vR+2)}\ns_nop 0')
        if bneg and lastneg: A(f's_add_i32 s{sT1}, s{sT2}, s{sT}\ns_cmp_lt_i32 s{sT1}, 0\ns_cbranch_scc1 L_vdn')
    if nend:
        A(f's_cmp_ge_u32 s{sT}, {46-nend}\ns_cbranch_scc0 L_vpc')
        dma_tile(sOFF, sSLA, Dend if Dend < 18 else None, pre, 9, vnt)
        A('s_branch L_vpe\nL_vpc:')
    if bal:
        A(f's_cmp_gt_i32 s{sT2}, s{sT}\ns_cbranch_scc1 L_vup')
        if bneg and not lastneg: A(f's_add_i32 s{sT1}, s{sT2}, s{sT}\ns_cmp_lt_i32 s{sT1}, 0\ns_cbranch_scc1 L_vdn')
    dma_tile(sOFF, sSLA, D, pre, 9, vnt)
    A('L_vpe:')
    A(f's_mov_b32 s{sT1}, s{sSLA}\ns_mov_b32 s{sSLA}, s{sSLB}\ns_mov_b32 s{sSLB}, s{sT1}')
    A(f's_add_u32 s{sT}, s{sT}, 1\ns_add_u32 s{sPUB}, s{sPUB}, 4\ns_branch L_vloop')
    A('L_loopx:')
    stamp(4)
    if lred:
        A('s_mov_b64 exec, 0xffff\ns_nop 3')
        for t in range(12): A(f'ds_write_b32 {v(vSK)}, {v(vO+4*t)} offset:{64*t}')
        A('s_mov_b64 exec, -1')
    else:
        xsum(vLS, vT)
        A(f's_lshl_b32 s{sT1}, s{sWAVE}, 10\ns_add_u32 s{sT1}, s{sT1}, {OCB}\nv_lshlrev_b32 {v(vA)}, 2, {v(vLANE)}\nv_add_u32 {v(vA)}, s{sT1}, {v(vA)}')
        A('s_mov_b64 exec, 0xffff')
        for t in range(12): A(f'ds_write_b32 {v(vA)}, {v(vO+4*t)} offset:{64*t}')
        A(f's_mov_b64 exec, 1\nds_write2_b32 {v(vA)}, {v(vML)}, {v(vLS)} offset0:192 offset1:193\ns_mov_b64 exec, -1')
    A('s_waitcnt lgkmcnt(0)\ns_barrier')
    A(f's_cmp_ge_u32 s{sJ}, 5\ns_cbranch_scc1 L_sdone')
    if not wearly and not wlate and po >= 0: wo_frags()
    A(f's_lshl_b32 s{sT1}, s{sH}, 3\ns_lshl_b32 s{sT2}, s{sWAVE}, 1\ns_add_u32 s{sT1}, s{sT1}, s{sT2}\ns_lshl_b32 s{sT1}, s{sT1}, 11\ns_add_u32 s{sT1}, s{sT1}, {OP}\ns_add_u32 s{sT2}, s{sT1}, 2048')
    A(f'v_mov_b32 {v(vA)}, 1024')
    def o_addr():
        A(f's_mul_i32 s{sT3}, s{sWAVE}, 384\ns_add_u32 s{sT3}, s{sT3}, {OBF}\nv_mul_u32_u24 {v(vAD)}, 6, {v(vLANE)}\nv_add_u32 {v(vAD)}, s{sT3}, {v(vAD)}')
        A(f'v_bfe_u32 {v(vT+2)}, {v(vLANE)}, 2, 2\nv_mul_u32_u24 {v(vT+2)}, 384, {v(vT+2)}\nv_lshrrev_b32 {v(vT+3)}, 4, {v(vLANE)}\nv_lshl_add_u32 {v(vT+2)}, {v(vT+3)}, 3, {v(vT+2)}\nv_add_u32 {v(vAD+1)}, {OBF}, {v(vT+2)}')
        A(f's_lshl_b32 s{sN0}, s{sJ}, 2\ns_add_u32 s{sN0}, s{sN0}, s{sWAVE}\ns_lshl_b32 s{sN0}, s{sN0}, 5\ns_add_u32 s{sN0}, s{sN0}, s{sH}\ns_lshl_b32 s{sN0}, s{sN0}, {9 if y8 else 10}\ns_add_u32 s{sN0}, s{sN0}, {YP}')
        if po < 0 and not wearly: wo_frags(vAD+2)
    if po >= 0: o_addr()
    mko = lambda b: [wsload(b, vL16, sT1), wsload(b+4, vL16, sT2), wsload(b+8, vA, sT1), wsload(b+12, vA, sT2)]
    w0_, w1_, l0_, l1_, on_ = vQ, vQ+1, vQ+2, vQ+3, vQ+4
    def useo(b):
        A(f'v_max_f32 {v(vT)}, {v(b+8)}, {v(b+12)}\nv_sub_f32 {v(w0_)}, {v(b+8)}, {v(vT)}\nv_sub_f32 {v(w1_)}, {v(b+12)}, {v(vT)}\nv_exp_f32 {v(w0_)}, {v(w0_)}\nv_exp_f32 {v(w1_)}, {v(w1_)}\ns_nop 0')
        A(f'v_mul_f32 {v(l0_)}, {v(b+9)}, {v(w0_)}\nv_fmac_f32 {v(l0_)}, {v(b+13)}, {v(w1_)}\nv_rcp_f32 {v(l1_)}, {v(l0_)}')
        for k in range(3): A(f'v_mul_f32 {v(on_+k)}, {v(b+k)}, {v(w0_)}\nv_fmac_f32 {v(on_+k)}, {v(b+4+k)}, {v(w1_)}')
    if wlate:
        for x in mko(vF): A(x)
        A(f'v_lshrrev_b32 {v(vT)}, 2, {v(vLANE)}\nv_lshlrev_b32 {v(vT)}, 6, {v(vT)}\nv_and_b32 {v(vT+1)}, 3, {v(vLANE)}\nv_lshl_add_u32 {v(vT)}, {v(vT+1)}, 3, {v(vT)}\nv_add_u32 {v(vAL)}, s{sSLC}, {v(vT)}')
        A('s_waitcnt vmcnt(4)')
        for s_ in range(6):
            for t in range(2):
                f = vW + 24*t + 4*s_
                A(f'ds_read_b64_tr_b16 {v(f,2)}, {v(vAL)} offset:{2048*s_+32*t}\nds_read_b64_tr_b16 {v(f+2,2)}, {v(vAL)} offset:{2048*s_+32*t+1024}')
            if s_ % 2 == 1 and s_ < 5: A('s_waitcnt lgkmcnt(4)')
        A(f's_mov_b32 s{sCNT}, {spin}\ns_branch L_po_w')
        poll('L_po', mko(vF), [vF+3, vF+7, vF+11, vF+15], 4, 'L_po_w')
        useo(vF)
    elif po: poll2('L_po', mko, 4, vF, vF+16, 4, po if po > 0 else o_addr, useo)
    else:
        (polls if sel & 1 else poll)('L_po', mko(vF), [vF+3, vF+7, vF+11, vF+15], 4)
        useo(vF)
    stamp(5)
    for k in range(3): fdiv(on_+4+k, on_+k, l0_, l1_, vT)
    put3_bf16(on_+4, vT, vAD)
    A('s_waitcnt lgkmcnt(0)\ns_barrier')
    for s in range(6): A(f'ds_read2_b64 {v(vO+4*s,4)}, {v(vAD+1)} offset0:{8*s} offset1:{8*s+4}')
    for s in range(6):
        A(f's_waitcnt lgkmcnt({5-s})')
        for t in range(2):
            c = '0' if s == 0 else v(vS+4*t, 4)
            A(f'v_mfma_f32_16x16x32_bf16 {v(vS+4*t,4)}, {v(vO+4*s,4)}, {v(vW+24*t+4*s,4)}, {c}')
    if y8:
        A(f'v_mov_b32 {v(vT+1)}, {v(vTAG)}\nv_lshlrev_b32 {v(vA)}, 3, {v(vLANE)}\ns_nop 5')
        A(f'v_cvt_pk_bf16_f32 {v(vT)}, {v(vS)}, {v(vS+4)}')
        A(f'buffer_store_dwordx2 {v(vT,2)}, {v(vA)}, {srd(rWS)}, s{sN0} offen sc1')
    else:
        A(f'v_mov_b32 {v(vT+2)}, {v(vTAG)}\nv_mov_b32 {v(vT+3)}, {v(vTAG)}\ns_nop 5')
        A(f'v_mov_b32 {v(vT)}, {v(vS)}\nv_mov_b32 {v(vT+1)}, {v(vS+4)}')
        A(f'buffer_store_dwordx4 {v(vT,4)}, {v(vL16)}, {srd(rWS)}, s{sN0} offen sc1')
    A('L_sdone:')
    if fixdur:
        A(f'L_fix:\ns_memrealtime s[98:99]\ns_waitcnt lgkmcnt(0)\ns_sub_u32 s98, s98, s96\ns_cmp_lt_u32 s98, {fixdur*100}\ns_cbranch_scc1 L_fix')
    stamp(6)
    if stamps:
        A(f's_cmp_lg_u32 s{sWAVE}, 0\ns_cbranch_scc1 L_end\ns_waitcnt vmcnt(0)')
        stamp(7)
        write_stamps(0, 's')
    A('s_endpgm')

    def soft_pass(n, addr, off):
        X = vF
        for i in range(n): A(f'ds_read_b32 {v(vT+8+i)}, {v(addr)} offset:{off*i}')
        for i in range(n):
            A(f's_waitcnt lgkmcnt({n-1-i})\nv_lshlrev_b32 {v(X+2*i)}, 16, {v(vT+8+i)}\nv_and_b32 {v(X+2*i+1)}, 0xffff0000, {v(vT+8+i)}\nv_max3_f32 {v(vM)}, {v(X+2*i)}, {v(X+2*i+1)}, {v(vM)}')
        xsum(vM, vT, 'v_max_f32')
        A(f'v_mul_f32 {v(vT)}, s{sL2E}, {v(vM)}\nv_sub_f32 {v(vAL)}, {v(vML)}, {v(vT)}\nv_mov_b32 {v(vML)}, {v(vT)}\nv_exp_f32 {v(vAL)}, {v(vAL)}')
        for k in range(2*n): A(f'v_fma_f32 {v(X+k)}, {v(X+k)}, s{sL2E}, -{v(vML)}')
        for k in range(2*n): A(f'v_exp_f32 {v(X+k)}, {v(X+k)}')
        A(f'v_mul_f32 {v(vLS)}, {v(vLS)}, {v(vAL)}')
        for i in range(n):
            A(f'v_cvt_pk_bf16_f32 {v(vT+8+i)}, {v(X+2*i)}, {v(X+2*i+1)}\nv_add_f32 {v(vLS)}, {v(vLS)}, {v(X+2*i)}\nv_add_f32 {v(vLS)}, {v(vLS)}, {v(X+2*i+1)}')
            A(f'ds_write_b32 {v(addr)}, {v(vT+8+i)} offset:{off*i}')
    if kbal:
        A('L_kup:')
        dma_tile(sOFF, sSLA, D+bal, pre, 9, knt)
        A('s_branch L_kpe\nL_kdn:')
        dma_tile(sOFF, sSLA, D-bneg, pre, 9, knt)
        A('s_branch L_kpe')
    if bal:
        A('; ---- a workgroup that lags the others keeps more loads in flight for a few steps')
        A('L_vup:')
        dma_tile(sOFF, sSLA, D+bal, pre, 9, vnt)
        A('s_branch L_vpe')
        if bneg:
            A('L_vdn:')
            dma_tile(sOFF, sSLA, D-bneg, pre, 9, vnt)
            A('s_branch L_vpe')
    if wlate:
        A('; ---- nothing left to stream: the wo slice of this wave (192 rows x 32 columns) follows the last V block')
        A(f'L_wl:\ns_cmp_ge_u32 s{sJ}, 5\ns_cselect_b32 s{rW2+2}, 0, s{rW2+2}')
        A(f'v_lshrrev_b32 {v(vT)}, 2, {v(vLANE)}\nv_mul_u32_u24 {v(vT)}, 1280, {v(vT)}\nv_and_b32 {v(vT+1)}, 3, {v(vLANE)}\nv_lshl_add_u32 {v(vA)}, {v(vT+1)}, 4, {v(vT)}\ns_mov_b32 s{sT1}, 0')
        for i in range(12):
            A(f's_add_u32 m0, s{sSLA if False else sSLC}, {1024*i}')
            A(f's_add_u32 s{sT1}, s{sT1}, 20480' if i else 's_nop 0')
            A(f'buffer_load_dwordx4 {v(vA)}, {srd(rW2)}, s{sT1} offen {w2nt} lds')
        A('s_branch L_vpe')
    A('L_spa:')
    soft_pass(1, vPA, 0)
    A('s_branch L_vmid')
    A('L_spb:')
    if not noex:
        A(f's_mov_b32 s{sCNT}, {spin*8}')
        A(f'L_vchk:\ns_waitcnt lgkmcnt(0)\nv_readfirstlane_b32 s{sT1}, {v(vR+1)}\ns_sub_u32 s{sCNT}, s{sCNT}, 1\ns_cmp_eq_u32 s{sCNT}, 0\ns_cbranch_scc1 L_vnoc')
        A(f's_cmp_lg_u32 s{sT1}, 0\ns_cbranch_scc1 L_vnoc\n{chk}\ns_branch L_vchk\nL_vnoc:')
    A(f'v_lshl_add_u32 {v(vPA)}, {v(vLANE)}, 2, s{sSTG}')
    soft_pass(5, vPA, 256)
    for t in range(12): A(f'v_mul_f32 {v(vO+4*t)}, {v(vAL)}, {v(vO+4*t)}')
    if lred:
        xsum(vLS, vT)
        A(f's_lshl_b32 s{sT1}, s{sWAVE}, 10\ns_add_u32 s{sT1}, s{sT1}, {OCB}\nv_lshlrev_b32 {v(vSK)}, 2, {v(vLANE)}\nv_add_u32 {v(vSK)}, s{sT1}, {v(vSK)}')
        A(f's_mov_b64 exec, 1\nds_write2_b32 {v(vSK)}, {v(vML)}, {v(vLS)} offset0:192 offset1:193\ns_mov_b64 exec, -1')
    if wearly == 1:
        A(f's_cmp_ge_u32 s{sJ}, 5\ns_cbranch_scc1 L_vmid\ns_waitcnt lgkmcnt(0)')
        wo_frags()
        A('s_waitcnt lgkmcnt(0)')
    if wearly == 2 and not wlate:
        A(f's_cmp_ge_u32 s{sJ}, 5\ns_cbranch_scc1 L_vmid')
        A(f'v_lshrrev_b32 {v(vT)}, 2, {v(vLANE)}\nv_lshlrev_b32 {v(vT)}, 8, {v(vT)}\nv_and_b32 {v(vT+1)}, 3, {v(vLANE)}\nv_lshl_add_u32 {v(vT)}, {v(vT+1)}, 3, {v(vT)}')
        A(f's_lshl_b32 s{sT1}, s{sWAVE}, 6\ns_add_u32 s{sT1}, s{sT1}, {WREG}\nv_add_u32 {v(vA)}, s{sT1}, {v(vT)}')
        for s_ in range(max(6, 9-pre)):
            if pre + s_ < 9: dma_tile(sOFF, sSLA, D, pre + s_, pre + s_ + 1, vnt)
            if s_ < 6:
                A('s_waitcnt lgkmcnt(4)')
                for t in range(2):
                    f = vW + 24*t + 4*s_
                    A(f'ds_read_b64_tr_b16 {v(f,2)}, {v(vA)} offset:{8192*s_+32*t}\nds_read_b64_tr_b16 {v(f+2,2)}, {v(vA)} offset:{8192*s_+32*t+4096}')
        A('s_waitcnt lgkmcnt(0)\ns_branch L_vpe')
    A('s_branch L_vmid')
    def hwait(n, lbl, hsl=hsl):
        A(f's_mov_b32 s{sCNT}, {spin*8}\n{lbl}:\nds_read_b32 {v(vT)}, {v(vXF)}\ns_sub_u32 s{sCNT}, s{sCNT}, 1\ns_cmp_eq_u32 s{sCNT}, 0\ns_cbranch_scc1 {lbl}_ok')
        A(f's_waitcnt lgkmcnt(0)\nv_readfirstlane_b32 s{sT0}, {v(vT)}\ns_nop 0\ns_cmp_ge_u32 s{sT0}, {4*n}\ns_cbranch_scc1 {lbl}_ok\n{f"s_sleep {hsl}" if hsl and not nosleep else ""}\ns_branch {lbl}\n{lbl}_ok:')
    vXA, vXF, vXB = vQ+12, vQ+13, vQ+14
    A('L_helper:')
    inhelper[0] = True
    A(f's_getreg_b32 s{sT3}, hwreg(HW_REG_XCC_ID, 2, 1)')
    A('s_waitcnt lgkmcnt(0)')
    A(f's_sub_u32 s{sT0}, s38, s36\ns_min_u32 s{sT0}, s{sT0}, {cap}\ns_sub_u32 s{sT0}, s{sT0}, {thr}\ns_sub_u32 s{sT1}, 0, s{sT0}')
    A(f's_cmp_eq_u32 s{sT3}, 0\ns_cselect_b32 s{sT0}, s{sT0}, s{sT1}')
    A(f'v_mov_b32 {v(vP)}, s{sT0}\nv_mov_b32 {v(vP+1)}, s{sT3}\nv_mov_b32 {v(vP+2)}, 0')
    A(f's_lshl_b32 s{sT0}, s{sIDX}, 4\ns_add_u32 s{sT0}, s{sT0}, s{sSLT}\ns_lshl_b32 s{sT0}, s{sT0}, 4\ns_add_u32 s{sT0}, s{sT0}, {VOTE}')
    if gord in (1, 3):
        if qdel >= 0: A(f'v_mov_b32 {v(vXF)}, {FLG+32}\nv_mov_b32 {v(vT)}, 0\nds_write_b32 {v(vXF)}, {v(vT)}\ns_waitcnt lgkmcnt(0)')
        A('s_barrier')
    A(f's_waitcnt vmcnt(0)\nv_add_u32 {v(vTAG)}, {TAGC:#x}, {v(vTAG)}\nv_mov_b32 {v(vP+3)}, {v(vTAG)}')
    A(f's_mov_b64 exec, 1\nbuffer_store_dwordx4 {v(vP,4)}, {v(vL16)}, {srd(rWS)}, s{sT0} offen sc1\ns_mov_b64 exec, -1')
    sCA, sCB2 = 42, 43
    A(f's_mul_i32 s{sT0}, s{sRHO}, 3\ns_lshr_b32 s{sCA}, s{sT0}, 5\ns_add_u32 s{sT0}, s{sT0}, 2\ns_lshr_b32 s{sCB2}, s{sT0}, 5')
    A(f'v_lshrrev_b32 {v(vT)}, 5, {v(vLANE)}\nv_mul_u32_u24 {v(vT)}, 12, {v(vT)}\nv_bfe_u32 {v(vT+1)}, {v(vLANE)}, 4, 1\ns_sub_u32 s{sT0}, s{sCB2}, s{sCA}\nv_mul_u32_u24 {v(vT+1)}, s{sT0}, {v(vT+1)}')
    A(f'v_add3_u32 {v(vT)}, {v(vT)}, {v(vT+1)}, s{sCA}\nv_and_b32 {v(vT+1)}, 15, {v(vLANE)}\nv_min_u32 {v(vT+1)}, 9, {v(vT+1)}\nv_lshlrev_b32 {v(vT+1)}, 4, {v(vT+1)}\nv_lshl_add_u32 {v(vAL)}, {v(vT)}, 8, {v(vT+1)}')
    A(f's_andn2_b32 s{sT1}, s2, 4')
    vote_slot(sT1, sT2, sT3)
    A(f's_lshl_b32 s{sT2}, s{sT2}, 4\ns_add_u32 s{sT2}, s{sT2}, s{sT3}\ns_lshl_b32 s{sT2}, s{sT2}, 4\nv_mov_b32 {v(vM)}, s{sT2}\ns_mov_b32 s{rK+5}, {VOTE}')
    A(f's_mul_i32 s{sT0}, s{sH}, {5*4096}\ns_lshl_b32 s{sT1}, s{sB}, 10\ns_add_u32 s{sT0}, s{sT0}, s{sT1}\ns_add_u32 s{rK}, s{sT0}, {P1}')
    for p in range(1, 5): A(f's_add_u32 s{rK+p}, s{rK}, {4096*p}')
    A(f's_sub_u32 s{sU2}, s{sU2}, 5')
    A(f'v_mov_b32 {v(vS+1)}, 0\nv_mov_b32 {v(vS+6)}, 0\nv_mov_b32 {v(vS+7)}, 0')
    A(f'v_mul_u32_u24 {v(vA)}, 6, {v(vLANE)}\nv_add_u32 {v(vA)}, {QL}, {v(vA)}')
    if qdel >= 0 and gord not in (1, 3): A(f'v_mov_b32 {v(vXF)}, {FLG+32}\nv_mov_b32 {v(vT)}, 0\nds_write_b32 {v(vXF)}, {v(vT)}\ns_waitcnt lgkmcnt(0)')
    A('s_barrier' if gord in (1, 3) else 's_barrier\ns_barrier')
    if htouch:
        A('; (translations needed later in the run, values unused)')
        A(f's_mul_i32 s{sT0}, s{sRHO}, 1572864\ns_load_dword s96, {sp(sV)}, s{sT0}\ns_add_u32 s{sT0}, s{sT0}, 1572860\ns_load_dword s97, {sp(sK)}, s{sT0}\ns_load_dword s98, {sp(sV)}, s{sT0}')
        if htouch == 2: A(f's_mul_i32 s{sT0}, s{sH}, {192*1280}\ns_load_dword s99, {sp(sWO)}, s{sT0}\ns_load_dword s96, {sp(sWD)}, 0')
        if htouch >= 3: A(f's_sub_u32 s{sT0}, s{sT0}, 1572860\ns_load_dword s99, {sp(sK)}, s{sT0}\ns_load_dword s96, {sp(sOUT)}, 0\ns_mov_b32 s{sT0}, 0x400000\ns_load_dword s97, {sp(sWS)}, s{sT0}')
    if qdel >= 0: hwait(1, 'L_hwq')
    stamp(1)
    mkq = lambda b: [wsload(b+4*p, vL16, rK+p) for p in range(5)] + [wsload(b+20, vAL, rK+5), wsload(b+24, vM, rK+5)]
    QR = vW; E = vW + 3
    def useq(b):
        for k in range(3):
            A(f'v_add_f32 {v(QR+k)}, {v(b+k)}, {v(b+4+k)}')
        for p in range(2, 5):
            for k in range(3): A(f'v_add_f32 {v(QR+k)}, {v(QR+k)}, {v(b+4*p+k)}')
        put3_bf16(QR, vT, vA)
        A(f'v_and_b32 {v(vT)}, 15, {v(vLANE)}\nv_cmp_gt_u32 vcc, 10, {v(vT)}\nv_readfirstlane_b32 s{sT2}, {v(b+25)}\ns_nop 0\nv_cndmask_b32 {v(E)}, 0, {v(b+20)}, vcc')
    if pq: poll2('L_pq', mkq, 7, vF, vO, 1, pq, useq)
    else:
        (polls if sel & 4 else poll)('L_pq', mkq(vF), [vF+4*p+3 for p in range(5 if nopoll else 0, 7)], 1)
        useq(vF)
    for mode in ['quad_perm:[1,0,3,2]', 'quad_perm:[2,3,0,1]', 'row_half_mirror', 'row_mirror']:
        A(f's_nop 1\nv_add_u32_dpp {v(E)}, {v(E)}, {v(E)} {mode} row_mask:0xf bank_mask:0xf')
    if dbgv:
        A(f's_mul_i32 s{sT0}, s{sRHO}, 3\ns_and_b32 s{sT0}, s{sT0}, 31\ns_cmp_ge_u32 s{sT0}, 3\ns_cbranch_scc1 L_nodbg')
        A(f'v_readlane_b32 s{sT0}, {v(E)}, 16\nv_readlane_b32 s{sT1}, {v(E)}, 48')
        A(f's_nop 1\ns_add_u32 s{sT3}, s{sT0}, 5000\ns_mul_i32 s{sT3}, s{sT3}, 10000\ns_add_u32 s{sT3}, s{sT3}, s{sT1}\ns_add_u32 s{sT3}, s{sT3}, 5000')
        A(f's_lshl_b32 s{sP}, s{sCB2}, 2\nv_mov_b32 {v(vT+5)}, s{sP}\nv_mov_b32 {v(vT+6)}, s{sT3}\nglobal_store_dword {v(vT+5)}, {v(vT+6)}, {sp(sDBG)}\nL_nodbg:')
    A(f'v_lshrrev_b32 {v(E)}, 31, {v(E)}\nv_xor_b32 {v(E)}, s{sT2}, {v(E)}')
    if force >= 0: A(f'v_lshrrev_b32 {v(E)}, 5, {v(vLANE)}\nv_lshrrev_b32 {v(E)}, {v(E)}, {force}\nv_and_b32 {v(E)}, 1, {v(E)}')
    sF = [36, 37, 38, 39]
    A('s_nop 0')
    for g in range(4): A(f'v_readlane_b32 s{sF[g]}, {v(E)}, {16*g}')
    sRG = 97
    if rot >= 0: rot3(sRG, sT3)
    else: A(f's_mov_b32 s{sRG}, 0')
    A(f's_mov_b32 s{sT0}, 0\ns_mov_b32 s{sT1}, 0')
    for i in range(3):
        A(f's_mul_i32 s{sT3}, s{sRHO}, 3\ns_add_u32 s{sT3}, s{sT3}, s{sRG}\ns_lshl_b32 s{sT3}, s{sT3}, 19')
        A(f's_lshr_b32 s{sT2}, s{sT3}, 24\ns_cmp_eq_u32 s{sT2}, s{sCA}\ns_cselect_b32 s{sXD}, s{sF[0]}, s{sF[1]}\ns_cselect_b32 s{sXS}, s{sF[2]}, s{sF[3]}')
        for acc, base, fl in [(sT0, sK, sXD), (sT1, sV, sXS)]:
            A(f's_add_u32 s{sT2}, s{base}, s{sT3}\ns_lshr_b32 s{sT2}, s{sT2}, 21\ns_xor_b32 s{sT2}, s{sT2}, s{fl}\ns_and_b32 s{sT2}, s{sT2}, 1\ns_lshl_b32 s{sT2}, s{sT2}, {i}\ns_or_b32 s{acc}, s{acc}, s{sT2}')
        if i < 2: A(f's_add_u32 s{sRG}, s{sRG}, 1\ns_cmp_eq_u32 s{sRG}, 3\ns_cselect_b32 s{sRG}, 0, s{sRG}')
    if nonuma: A(f's_mov_b32 s{sT0}, {nonuma >> 1}\ns_mov_b32 s{sT1}, {nonuma >> 1}')
    A(f's_xor_b32 s{sXD}, s{sT0}, s{sT1}\ns_cselect_b32 s{sXS}, 0, 1')
    A(f'v_mov_b32 {v(vT+4)}, s{sT0}\nv_mov_b32 {v(vT+5)}, s{sT1}\nv_mov_b32 {v(vT+3)}, {FLG}\nds_write_b64 {v(vT+3)}, {v(vT+4,2)}')
    A(f'v_mov_b32 {v(vT+8)}, 0\nv_mov_b32 {v(vT+9)}, s{sXS}\nv_mov_b32 {v(vT+10)}, 0\nv_mov_b32 {v(vT+11)}, 0\nds_write_b128 {v(vT+3)}, {v(vT+8,4)} offset:16')
    if stamps:
        A(f's_lshl_b32 s{sT1}, s{sXD}, 0\ns_or_b32 s{sT1}, s{sT1}, s{sT1}\ns_lshl_b32 s{sT0}, s2, 2\ns_add_u32 s{sT0}, s{sT0}, 0x20100000')
        A(f'v_mov_b32 {v(vT+5)}, s{sT0}\nv_mov_b32 {v(vT+6)}, s{sT1}\nglobal_store_dword {v(vT+5)}, {v(vT+6)}, {sp(sWS)}')
    stamp(2)
    A('s_waitcnt lgkmcnt(0)\ns_barrier')
    A('s_waitcnt vmcnt(0)')
    A(f's_cmp_ge_u32 s{sJ}, 5\ns_cselect_b32 s{sHASW1}, 1, 0\ns_cmp_lt_u32 s{sU2}, 80\ns_cselect_b32 s{sHASW1}, s{sHASW1}, 0')
    A(f's_cmp_eq_u32 s{sHASW1}, 0\ns_cbranch_scc1 L_hx')
    A(f's_mul_i32 s{sR}, s{sU2}, 52429\ns_lshr_b32 s{sR}, s{sR}, 18\ns_mul_i32 s{sT0}, s{sR}, 5\ns_sub_u32 s{sCB}, s{sU2}, s{sT0}')
    A(f's_mul_i32 s{sRB}, s{sU2}, 52429\ns_lshr_b32 s{sRB}, s{sRB}, 20\ns_mul_i32 s{sT0}, s{sRB}, 20\ns_sub_u32 s{sSLC2}, s{sU2}, s{sT0}')
    vWD, vG4 = vS, vS+1
    A(f'v_lshrrev_b32 {v(vT)}, 4, {v(vLANE)}\nv_and_b32 {v(vT+1)}, 15, {v(vLANE)}\nv_lshlrev_b32 {v(vT+1)}, 4, {v(vT+1)}')
    A(f'v_mul_u32_u24 {v(vWD)}, 1280, {v(vT)}\nv_add_u32 {v(vWD)}, {v(vWD)}, {v(vT+1)}\nv_lshl_add_u32 {v(vG4)}, {v(vT)}, 10, {v(vT+1)}')
    A(f'v_lshrrev_b32 {v(vT)}, 5, {v(vLANE)}\nv_mul_u32_u24 {v(vT)}, {8*5*4096}, {v(vT)}\nv_and_b32 {v(vT+1)}, 31, {v(vLANE)}\nv_lshl_add_u32 {v(vA)}, {v(vT+1)}, 4, {v(vT)}')
    A(f's_lshr_b32 s{sT0}, s{sR}, 1\ns_add_u32 s{sT0}, s{sT0}, 32\ns_mul_i32 s{sT0}, s{sT0}, {5*4096}\ns_and_b32 s{sT1}, s{sR}, 1\ns_lshl_b32 s{sT1}, s{sT1}, 9\ns_add_u32 s{sT0}, s{sT0}, s{sT1}\ns_add_u32 s{rK}, s{sT0}, {P1}')
    for p in range(1, 5): A(f's_add_u32 s{rK+p}, s{rK}, {4096*p}')
    G = vF
    poll('L_pg', [wsload(G+20*b+4*p, vA, rK+p) + f' offset:{1024*b}' if False else
                  f'buffer_load_dwordx4 {v(G+20*b+4*p,4)}, {v(vA)}, {srd(rWS)}, s{rK+p} offen offset:{1024*b} sc1' for b in range(4) for p in range(5)],
         [G+20*b+4*p+3 for b in range(4) for p in range(5)], 2)
    A(f'v_and_b32 {v(vA)}, 31, {v(vLANE)}\nv_mul_u32_u24 {v(vA)}, 6, {v(vA)}\nv_add_u32 {v(vA)}, {HL}, {v(vA)}')
    for b in range(4):
        g0 = G + 20*b
        for k in range(3):
            for p in range(1, 5): A(f'v_add_f32 {v(g0+k)}, {v(g0+k)}, {v(g0+4*p+k)}')
        rnd2(g0, g0+1, vT); rnd(g0+2, vT)
        for k in range(3): A(f'v_mov_b32 {v(g0+4+k)}, {v(g0+k)}')
        A('s_nop 1')
        for k in range(3): A(f'v_permlane32_swap_b32 {v(g0+k)}, {v(g0+4+k)}')
        for k in range(3):
            A(f'v_cmp_lt_f32 vcc, 0, {v(g0+k)}\ns_nop 1\nv_cndmask_b32 {v(vT)}, 0, 1.0, vcc\nv_mul_f32 {v(g0+k)}, {v(g0+k)}, {v(vT)}\nv_mul_f32 {v(g0+k)}, {v(g0+k)}, {v(g0+4+k)}')
        put3_bf16(g0, vT, vA)
        if b < 3: A(f'v_add_u32 {v(vA)}, 192, {v(vA)}')
    A(f'v_bfe_u32 {v(vT+2)}, {v(vLANE)}, 2, 2\nv_mul_u32_u24 {v(vT+2)}, 192, {v(vT+2)}\nv_lshrrev_b32 {v(vT+3)}, 4, {v(vLANE)}\nv_lshl_add_u32 {v(vT+2)}, {v(vT+3)}, 3, {v(vT+2)}\nv_add_u32 {v(vA)}, {HL}, {v(vT+2)}')
    A('s_waitcnt lgkmcnt(0)')
    for s in range(3): A(f'ds_read2_b64 {v(vQ+4*s,4)}, {v(vA)} offset0:{8*s} offset1:{8*s+4}')
    if xtra >= 0:
        A(f'v_mov_b32 {v(vXF)}, {FLG+16}')
        hwait(2, 'L_hww')
    A(f'v_lshrrev_b32 {v(vT)}, 2, {v(vLANE)}\nv_lshlrev_b32 {v(vT)}, 8, {v(vT)}\nv_and_b32 {v(vT+1)}, 3, {v(vLANE)}\nv_lshl_add_u32 {v(vT)}, {v(vT+1)}, 3, {v(vT)}\nv_add_u32 {v(vA)}, {WREG}, {v(vT)}')
    for s in range(3):
        A('s_waitcnt lgkmcnt(0)')
        trread_mfma(8, vA, 4096, vO, s == 0, vF, vQ+4*s)
        if s < 2: A(f'v_add_u32 {v(vA)}, 8192, {v(vA)}')
    sBPA = 39
    A(f's_lshl_b32 s{sBPA}, s{sCB}, 6\ns_add_u32 s{sBPA}, s{sBPA}, s{sR}\ns_lshl_b32 s{sBPA}, s{sBPA}, 10\ns_add_u32 s{sBPA}, s{sBPA}, {BP}')
    A('s_nop 4')
    BG = vW + 16
    for ww in range(4):
        t0 = BG + 4*ww
        A(f'v_mov_b32 {v(t0)}, {v(vO+8*ww)}\nv_mov_b32 {v(t0+1)}, {v(vO+8*ww+4)}\nv_mov_b32 {v(t0+2)}, {v(vTAG)}\nv_mov_b32 {v(t0+3)}, {v(vTAG)}')
    def b_publish():
        for ww in range(4):
            A(f'buffer_store_dwordx4 {v(BG+4*ww,4)}, {v(vL16)}, {srd(rWS)}, s{sBPA} offen sc1')
            if ww < 3: A(f's_add_u32 s{sBPA}, s{sBPA}, 16384')
    if not blate: b_publish()
    vG0, vG1, vX0, vX1, vXO = vS+2, vS+3, vS+4, vS+5, vS+6
    A(f's_mul_i32 s{sT0}, s{sRB}, 1280\ns_lshl_b32 s{sT1}, s{sSLC2}, 6\ns_add_u32 s{sT0}, s{sT0}, s{sT1}')
    A(f'v_and_b32 {v(vXO)}, 15, {v(vLANE)}\nv_lshlrev_b32 {v(vXO)}, 1, {v(vXO)}\nv_add_u32 {v(vXO)}, s{sT0}, {v(vXO)}')
    if otouch: A(f'global_load_ushort {v(vX0)}, {v(vXO)}, {sp(sOUT)}\ns_waitcnt vmcnt(0)')
    A(f'global_load_ushort {v(vX0)}, {v(vXO)}, {sp(sX)}\nglobal_load_ushort {v(vX1)}, {v(vXO)}, {sp(sX)} offset:32')
    sBG = 40
    A(f's_lshl_b32 s{sT0}, s{sSLC2}, 14\ns_lshl_b32 s{sT1}, s{sRB}, 8\ns_add_u32 s{sT0}, s{sT0}, s{sT1}\ns_add_u32 s{sBG}, s{sT0}, {BP}')
    for p in range(1, 4): A(f's_add_u32 s{sBG+p}, s{sBG}, {4096*p}')
    def b_gather():
        G = vF
        (polls if sel & 2 else poll)('L_pb', [wsload(G+4*p, vG4, sBG+p) for p in range(4)], [G+4*p+3 for p in range(4)], 5)
        if py >= 0 or not blate: b_math()
    def b_math():
        G = vF
        for k in range(2):
            A(f'v_add_f32 {v(G+k)}, {v(G+k)}, {v(G+4+k)}\nv_add_f32 {v(G+8+k)}, {v(G+8+k)}, {v(G+12+k)}\nv_add_f32 {v(G+k)}, {v(G+k)}, {v(G+8+k)}')
            xsum(G+k, vT, full=False)
        rnd2(G, G+1, vT)
        for k in range(2):
            A(f'v_mul_f32 {v(vT)}, s{sL2E}, {v(G+k)}\nv_max_f32 {v(vT)}, {f2u(-126.0):#x}, {v(vT)}\nv_exp_f32 {v(vT)}, -{v(vT)}\ns_nop 0\nv_add_f32 {v(vT)}, 1.0, {v(vT)}\nv_rcp_f32 {v(vT+1)}, {v(vT)}\ns_nop 0')
            fdiv(vG0+k, G+k, vT, vT+1, vT+2)
        rnd2(vG0, vG1, vT)
    if not blate: b_gather()
    A(f's_waitcnt vmcnt(0)\nv_lshlrev_b32 {v(vX0)}, 16, {v(vX0)}\nv_lshlrev_b32 {v(vX1)}, 16, {v(vX1)}')
    A(f's_lshl_b32 s{sT0}, s{sSLC2}, {14 if y8 else 15}\ns_lshl_b32 s{sT1}, s{sRB}, {7 if y8 else 8}\ns_add_u32 s{sT0}, s{sT0}, s{sT1}\ns_add_u32 s{rK}, s{sT0}, {YP}')
    for p in range(1, 8): A(f's_add_u32 s{rK+p}, s{rK}, {(2048 if y8 else 4096)*p}')
    vG8 = vS + 7
    A(f'v_lshrrev_b32 {v(vG8)}, 1, {v(vG4)}')
    if al: A('s_branch L_hx\n.p2align 12')
    A('L_hx:')
    if stamps == 5:
        A(f'v_mov_b32 {v(vXF)}, {FLG+16}')
        hwait(13, 'L_hws')
        A(f's_memrealtime {sp(sST+2*3)}\ns_waitcnt lgkmcnt(0)')
    if lead:
        A(f's_and_b32 s{sT0}, s2, {lmask}\ns_cmp_eq_u32 s{sT0}, 5\ns_cselect_b32 s{sT0}, 0, s{sXS}\ns_cmp_lg_u32 s{sT0}, 0\ns_cbranch_scc1 L_hb4')
    elif not bal: A(f's_cmp_lg_u32 s{sXS}, 0\ns_cbranch_scc1 L_hb4')
    sREC, sOTH = 36, 37
    A(f's_lshl_b32 s{sREC}, s{sRHO}, 1\ns_add_u32 s{sOTH}, s{sREC}, 1\ns_sub_u32 s{sOTH}, s{sOTH}, s{sHALF}\ns_add_u32 s{sREC}, s{sREC}, s{sHALF}')
    vXG = vQ + 15
    if xs:
        for r_ in (sREC, sOTH):
            A(f's_lshr_b32 s{sT0}, s{r_}, 7\ns_lshl_b32 s{sT0}, s{sT0}, 20\ns_and_b32 s{r_}, s{r_}, 127\ns_lshl_b32 s{r_}, s{r_}, 8\ns_add_u32 s{r_}, s{r_}, s{sT0}\ns_add_u32 s{r_}, s{r_}, {SCO}')
        A(f'v_and_b32 {v(vXG)}, 0xf0, {v(vL16)}\nv_lshrrev_b32 {v(vT)}, 4, {v(vLANE)}\nv_lshl_add_u32 {v(vXG)}, {v(vT)}, {xs}, {v(vXG)}')
    else:
        A(f's_mul_i32 s{sREC}, s{sREC}, 6144\ns_add_u32 s{sREC}, s{sREC}, {SCO}\ns_mul_i32 s{sOTH}, s{sOTH}, 6144\ns_add_u32 s{sOTH}, s{sOTH}, {SCO}')
        A(f'v_mov_b32 {v(vXG)}, {v(vL16)}')
    xoff = (lambda w, i: (2*w + i) << 17) if xs else (lambda w, i: 1536*w + 1024*i)
    A(f'v_add_u32 {v(vXA)}, {STG}, {v(vL16)}\nv_mov_b32 {v(vXF)}, {FLG+16}\nv_and_b32 {v(vT)}, 3, {v(vLANE)}\nv_cmp_eq_u32 vcc, 2, {v(vT)}\nv_mov_b32 {v(vT)}, -20\ns_nop 0\nv_cndmask_b32 {v(vT)}, 8, {v(vT)}, vcc\nv_add_u32 {v(vXB)}, {v(vXA)}, {v(vT)}')
    sE0, sE1 = 96, 98
    A(f's_bitcmp1_b32 s{sXD}, 0\ns_cselect_b32 s{sE0}, 0xffffff00, 0\ns_bitcmp1_b32 s{sXD}, 1\ns_cselect_b32 s{sE0+1}, -1, 0\ns_bitcmp1_b32 s{sXD}, 2\ns_cselect_b32 s{sE1}, 0xffffff, 0\ns_mov_b32 s{sE1+1}, 0')
    sTO = 38
    def cp_pub(i):
        A(f's_memrealtime {sp(sP)}\ns_lshl_b32 s{sT1}, s2, 4\ns_add_u32 s{sT1}, s{sT1}, {TS + 4096*i}\nv_mov_b32 {v(vS+11)}, {v(vTAG)}\ns_waitcnt lgkmcnt(0)\ns_add_u32 s{sTO}, s{sP}, 0')
        A(f'v_mov_b32 {v(vS+8)}, s{sTO}\ns_mov_b64 exec, 1\nbuffer_store_dwordx4 {v(vS+8,4)}, {v(vL16)}, {srd(rWS)}, s{sT1} offen sc1\ns_mov_b64 exec, -1')
    CG = vW + 32
    def cp_load(i):
        A(f'v_lshlrev_b32 {v(vT+2)}, 6, {v(vLANE)}\nv_bfe_u32 {v(vT+3)}, {v(vLANE)}, 1, 2\nv_lshl_add_u32 {v(vT+2)}, {v(vT+3)}, 4, {v(vT+2)}\ns_mov_b32 s{sT1}, {TS + 4096*i}')
        A(f'buffer_load_dwordx4 {v(CG,4)}, {v(vT+2)}, {srd(rWS)}, s{sT1} offen sc1\ns_memrealtime {sp(sP)}')
    def cp_use():
        A(f's_waitcnt vmcnt(0) lgkmcnt(0)\ns_sub_u32 s{sT0}, s{sP}, s{sTO}\nv_cmp_eq_u32 vcc, {v(CG+3)}, {v(vTAG)}\nv_subrev_u32 {v(CG)}, s{sTO}, {v(CG)}\nv_mov_b32 {v(vT)}, s{sT0}')
        A(f'v_cndmask_b32 {v(CG)}, {v(vT)}, {v(CG)}, vcc\nv_mov_b32 {v(vT)}, 0x190\nv_mov_b32 {v(vT+1)}, -400\nv_med3_i32 {v(CG)}, {v(CG)}, {v(vT)}, {v(vT+1)}')
        xsum(CG, vT, 'v_add_u32')
        A(f'ds_read_b32 {v(vT+2)}, {v(vXF)}\nv_readfirstlane_b32 s{sT0}, {v(CG)}\ns_nop 0\ns_ashr_i32 s{sT0}, s{sT0}, 6')
        A(f's_abs_i32 s{sT1}, s{sT0}\ns_sub_i32 s{sT1}, s{sT1}, {dead}\ns_max_i32 s{sT1}, s{sT1}, 0\ns_mul_i32 s{sT1}, s{sT1}, {gain}\ns_lshr_b32 s{sT1}, s{sT1}, 8\ns_min_u32 s{sT1}, s{sT1}, {kmax}')
        A(f's_waitcnt lgkmcnt(0)\nv_readfirstlane_b32 s{sT2}, {v(vT+2)}\ns_nop 0\ns_lshr_b32 s{sT2}, s{sT2}, 2\ns_add_u32 s{sT2}, s{sT2}, s{sT1}\ns_cmp_eq_u32 s{sT1}, 0\ns_cselect_b32 s{sT2}, 0, s{sT2}')
        A(f's_sub_i32 s{sT1}, 0, s{sT2}\ns_cmp_lt_i32 s{sT0}, 0\ns_cselect_b32 s{sT2}, s{sT2}, s{sT1}\nv_mov_b32 {v(vT)}, s{sT2}\nds_write_b32 {v(vXF)}, {v(vT)} offset:8')
    def rk_issue(i):
        A(f'v_lshlrev_b32 {v(vT+2)}, {rsp+2}, {v(vLANE)}\nv_bfe_u32 {v(vT+3)}, {v(vLANE)}, 1, 2\nv_lshl_add_u32 {v(vT+2)}, {v(vT+3)}, {rsp}, {v(vT+2)}\ns_mov_b32 s{sT0}, {0x360000 + (256 << rsp)*i}')
        A(f'buffer_load_dword {v(CG)}, {v(vT+2)}, {srd(rWS)}, s{sT0} offen sc1\ns_lshl_b32 s{sT1}, s2, {rsp}\ns_add_u32 s{sT1}, s{sT1}, s{sT0}')
        for k in range(4): A(f'v_mov_b32 {v(vS+8+k)}, {v(vTAG)}')
        A(f's_mov_b64 exec, {(1 << (1 << (rsp-4))) - 1}\nbuffer_store_dwordx4 {v(vS+8,4)}, {v(vL16)}, {srd(rWS)}, s{sT1} offen sc1\ns_mov_b64 exec, -1')
    def rk_use(n, w):
        A(f's_waitcnt vmcnt({w})\nv_cmp_eq_u32 vcc, {v(CG)}, {v(vTAG)}\ns_nop 0\ns_bcnt1_i32_b64 s{sT1}, vcc\ns_sub_i32 s{sT1}, s{sT1}, {rc0}\ns_max_i32 s{sT1}, s{sT1}, 0')
        A(f's_mul_i32 s{sT1}, s{sT1}, s{sT1}\ns_mul_i32 s{sT1}, s{sT1}, {rg}\ns_lshr_b32 s{sT1}, s{sT1}, 8\ns_min_u32 s{sT1}, s{sT1}, {kmax}\ns_add_u32 s{sT1}, s{sT1}, {n}')
        A(f'v_mov_b32 {v(vT)}, s{sT1}\nds_write_b32 {v(vXF)}, {v(vT)} offset:8')
    def cp_all(sel_):
        for i, n in enumerate(cpl):
            if bal and n != 23 and sel_(n):
                hwait(n, f'L_cp{i}')
                if rank: rk_issue(i); rk_use(n, 1)
                else: cp_pub(i); hwait(n + cgap, f'L_cg{i}'); cp_load(i); cp_use()
    cp_all(lambda n: n < 23)
    hwait(pubt, 'L_hw0')
    stamp(1)
    if bal and 23 in cpl: (rk_issue if rank else cp_pub)(cpl.index(23))
    if lead:
        A(f'v_mov_b32 {v(vT+2)}, {GO}\ns_and_b32 s{sT0}, s2, {lmask}\ns_cmp_lg_u32 s{sT0}, 5\ns_cbranch_scc1 L_go')
        hwait(lead, 'L_hwl')
        A(f's_mov_b64 exec, 1\nbuffer_store_dword {v(vTAG)}, {v(vT+2)}, {srd(rWS)}, 0 offen sc1\ns_mov_b64 exec, -1')
        if lpipe:
            A('L_go:')
            for k in range(3): A(f'buffer_load_dword {v(vT+4+k)}, {v(vT+2)}, {srd(rWS)}, 0 offen sc1\ns_sleep {lpipe}')
            A('L_go2:')
            for k in range(4):
                A(f'buffer_load_dword {v(vT+4+(k+3)%4)}, {v(vT+2)}, {srd(rWS)}, 0 offen sc1\nds_read_b32 {v(vT)}, {v(vXF)}\ns_waitcnt vmcnt(3) lgkmcnt(0)')
                A(f'v_cmp_eq_u32 vcc, {v(vT+4+k)}, {v(vTAG)}\nv_readfirstlane_b32 s{sT0}, {v(vT)}\ns_cbranch_vccnz L_go_ok\ns_cmp_ge_u32 s{sT0}, {4*fb}\ns_cbranch_scc1 L_go_ok')
            A('s_branch L_go2\nL_go_ok:')
        else:
            A(f'L_go:\nbuffer_load_dword {v(vT+3)}, {v(vT+2)}, {srd(rWS)}, 0 offen sc1\nds_read_b32 {v(vT)}, {v(vXF)}\ns_waitcnt vmcnt(0) lgkmcnt(0)')
            A(f'v_cmp_eq_u32 vcc, {v(vT+3)}, {v(vTAG)}\nv_readfirstlane_b32 s{sT0}, {v(vT)}\ns_cbranch_vccnz L_go_ok\ns_cmp_lt_u32 s{sT0}, {4*fb}\ns_cbranch_scc1 L_go\nL_go_ok:')
    stamp(3)
    def masked(i, lbl): return f's_cmp_eq_u64 {sp([sE0, sE1][i])}, 0\ns_cbranch_scc1 {lbl}{i}\ns_mov_b64 exec, {sp([sE0, sE1][i])}'
    if not (noex & 1):
        for i in range(2):
            A(masked(i, 'L_np'))
            for w in range(4):
                r = vF + 16*i + 4*w
                A(f'ds_read_b64 {v(r,2)}, {v(vXA)} offset:{1536*w+1024*i}\nds_read_b32 {v(r+2)}, {v(vXB)} offset:{1536*w+1024*i}\nv_mov_b32 {v(r+3)}, {v(vTAG)}')
            for w in range(4):
                r = vF + 16*i + 4*w
                A(f's_add_u32 s{sT0}, s{sREC}, {xoff(w, i)}\ns_waitcnt lgkmcnt({6-2*w})')
                A(f'buffer_store_dwordx4 {v(r,4)}, {v(vXG)}, {srd(rWS)}, s{sT0} offen {stfl}')
            A(f's_mov_b64 exec, -1\nL_np{i}:')
    if bal and rank and 23 in cpl: rk_use(24, 0)
    if lead: A(f's_cmp_lg_u32 s{sXS}, 0\ns_cbranch_scc1 L_hb4')
    if bal and rank: A(f's_cmp_lg_u32 s{sXS}, 0\ns_cbranch_scc1 L_hb4')
    hwait(gat, 'L_hw1')
    if bal and not rank and 23 in cpl: cp_load(cpl.index(23))
    if bal and not rank: A(f's_cmp_lg_u32 s{sXS}, 0\ns_cbranch_scc1 L_nox')
    if not (noex & 2):
        G = vO
        for k in range(8): A(f'v_mov_b32 {v(G+4*k+3)}, {v(vTAG)}')
        lds_ = []
        for i in range(2):
            t_ = masked(i, 'L_ng') + '\n'
            for w in range(4):
                t_ += f's_add_u32 s{sT0}, s{sOTH}, {xoff(w, i)}\nbuffer_load_dwordx4 {v(G+16*i+4*w,4)}, {v(vXG)}, {srd(rWS)}, s{sT0} offen {slfl}\n'
            lds_.append(t_ + f's_mov_b64 exec, -1\nL_ng{i}:')
        poll('L_px', lds_, [G+4*k+3 for k in range(8)], 8)
        for i in range(2):
            A(masked(i, 'L_nw'))
            for w in range(4): A(f'ds_write_b64 {v(vXA)}, {v(G+16*i+4*w,2)} offset:{1536*w+1024*i}\nds_write_b32 {v(vXB)}, {v(G+16*i+4*w+2)} offset:{1536*w+1024*i}')
            A(f's_mov_b64 exec, -1\ns_waitcnt lgkmcnt(0)\nL_nw{i}:')
    A(f'v_mov_b32 {v(vT)}, 1\nds_write_b32 {v(vXF)}, {v(vT)} offset:4')
    stamp(4)
    if bal and not rank: A('L_nox:')
    if bal and not rank and 23 in cpl: cp_use()
    A('L_hb4:')
    A(f'v_mul_u32_u24 {v(vA)}, 12, {v(vLANE)}\nv_add_u32 {v(vA)}, {OCB}, {v(vA)}\nv_mov_b32 {v(vAL)}, {OCB+768}')
    A(f's_lshl_b32 s{sT1}, s{sH}, 3\ns_add_u32 s{sT1}, s{sT1}, s{sJ}\ns_lshl_b32 s{sT1}, s{sT1}, 11\ns_add_u32 s{sT1}, s{sT1}, {OP}')
    Gm = vQ + 16
    r0 = vP
    ml = vT + 4
    def weights():
        A(f'v_max3_f32 {v(ml)}, {v(Gm)}, {v(Gm+2)}, {v(Gm+4)}\nv_max_f32 {v(ml)}, {v(ml)}, {v(Gm+6)}')
        for w in range(4): A(f'v_sub_f32 {v(Gm+2*w)}, {v(Gm+2*w)}, {v(ml)}')
        for w in range(4): A(f'v_exp_f32 {v(Gm+2*w)}, {v(Gm+2*w)}')
        A(f'v_mov_b32 {v(r0+3)}, {v(vTAG)}\nv_mov_b32 {v(ml+3)}, {v(vTAG)}\nv_mov_b32 {v(ml+2)}, {v(vTAG)}')
        A(f'v_mul_f32 {v(ml+1)}, {v(Gm)}, {v(Gm+1)}')
        for w in range(1, 4): A(f'v_fmac_f32 {v(ml+1)}, {v(Gm+2*w)}, {v(Gm+2*w+1)}')
    if lred:
        A(f'v_mov_b32 {v(vXF)}, {FLG+16}')
        hwait(29, 'L_hw2', 8)
        if stamps == 5: A(f's_memrealtime {sp(sST+2*4)}\ns_waitcnt lgkmcnt(0)')
        for w in range(4): A(f'ds_read_b64 {v(Gm+2*w,2)}, {v(vAL)} offset:{1024*w}')
        A('s_waitcnt lgkmcnt(0)')
        weights()
        for w in range(1, 4): A(f'v_add_u32 {v(vQ+4+w)}, {1024*w}, {v(vA)}')
        if bal and max(cpl) > 23:
            A(f's_mov_b32 s{sOTH}, s{sT1}')
            cp_all(lambda n: n > 23)
            A(f's_mov_b32 s{sT1}, s{sOTH}\nv_mov_b32 {v(r0+3)}, {v(vTAG)}')
        A('s_barrier')
        stamp(5)
        for w in range(4):
            a_ = vA if w == 0 else vQ+4+w
            A(f'ds_read2_b32 {v(vF+4*w,2)}, {v(a_)} offset0:0 offset1:1\nds_read_b32 {v(vF+4*w+2)}, {v(a_)} offset:8')
    else:
        A('s_barrier')
        stamp(5)
        for w in range(4): A(f'ds_read_b64 {v(Gm+2*w,2)}, {v(vAL)} offset:{1024*w}')
        for w in range(4):
            A(f'ds_read2_b32 {v(vF+4*w,2)}, {v(vA)} offset0:0 offset1:1\nds_read_b32 {v(vF+4*w+2)}, {v(vA)} offset:8')
            if w < 3: A(f'v_add_u32 {v(vA)}, 1024, {v(vA)}')
        A('s_waitcnt lgkmcnt(8)')
        weights()
    A('s_waitcnt lgkmcnt(0)')
    for k in range(3): A(f'v_mul_f32 {v(r0+k)}, {v(Gm)}, {v(vF+k)}')
    for w in range(1, 4):
        for k in range(3): A(f'v_fmac_f32 {v(r0+k)}, {v(Gm+2*w)}, {v(vF+4*w+k)}')
    A(f'buffer_store_dwordx4 {v(r0,4)}, {v(vL16)}, {srd(rWS)}, s{sT1} offen sc1')
    A(f's_mov_b64 exec, 1\nbuffer_store_dwordx4 {v(ml,4)}, {v(vL16)}, {srd(rWS)}, s{sT1} offen offset:1024 sc1\ns_mov_b64 exec, -1')
    if hb5: A(f's_cmp_ge_u32 s{sJ}, 5\ns_cbranch_scc1 L_hnb5\ns_barrier\nL_hnb5:')
    A(f's_cmp_eq_u32 s{sHASW1}, 0\ns_cbranch_scc1 L_hdone')
    if blate:
        b_publish()
        b_gather()
    G = vW
    if y8:
        mky = lambda b: [f'buffer_load_dwordx2 {v(b+4*p+2,2)}, {v(vG8)}, {srd(rWS)}, s{rK+p} offen sc1' for p in range(8)]
        def usey(b):
            for p in range(4):
                A(f'v_lshlrev_b32 {v(G+2*p)}, 16, {v(b+8*p+2)}\nv_and_b32 {v(G+2*p+1)}, 0xffff0000, {v(b+8*p+2)}\nv_lshlrev_b32 {v(G+8)}, 16, {v(b+8*p+6)}\nv_and_b32 {v(G+9)}, 0xffff0000, {v(b+8*p+6)}')
                A(f'v_add_f32 {v(G+2*p)}, {v(G+2*p)}, {v(G+8)}\nv_add_f32 {v(G+2*p+1)}, {v(G+2*p+1)}, {v(G+9)}')
    else:
        mky = lambda b: [wsload(b+4*p, vG4, rK+p) for p in range(8)]
        def usey(b):
            for k in range(2):
                for p in range(4): A(f'v_add_f32 {v(G+2*p+k)}, {v(b+8*p+k)}, {v(b+8*p+4+k)}')
    if py: poll2('L_py', mky, 8, vF+16, vO, 6, py if py > 0 else b_math, usey)
    else:
        (polls if sel & 2 else poll)('L_py', mky(vF+16), [vF+16+4*p+3 for p in range(8)], 6)
        usey(vF+16)
    stamp(6)
    for k in range(2):
        A(f'v_add_f32 {v(G+k)}, {v(G+k)}, {v(G+2+k)}\nv_add_f32 {v(G+4+k)}, {v(G+4+k)}, {v(G+6+k)}\nv_add_f32 {v(G+k)}, {v(G+k)}, {v(G+4+k)}')
    for k in range(2): xsum(G+k, vT+k, full=False)
    rnd2(G, G+1, vT)
    A(f'v_mul_f32 {v(G)}, {v(G)}, {v(vG0)}\nv_mul_f32 {v(G+1)}, {v(G+1)}, {v(vG1)}')
    rnd2(G, G+1, vT)
    if perturb:
        A(f's_cmp_eq_u32 s{sU2}, 0\ns_cselect_b32 s{sT0}, {f2u(perturb/1000):#x}, 0\ns_mov_b64 exec, 1\nv_add_f32 {v(vX0)}, s{sT0}, {v(vX0)}\ns_mov_b64 exec, -1')
    if pall: A(f'v_mul_f32 {v(G)}, {f2u(1+pall/1000):#x}, {v(G)}\nv_mul_f32 {v(G+1)}, {f2u(1+pall/1000):#x}, {v(G+1)}')
    A(f'v_add_f32 {v(G)}, {v(G)}, {v(vX0)}\nv_add_f32 {v(G+1)}, {v(G+1)}, {v(vX1)}\nv_cvt_pk_bf16_f32 {v(G)}, {v(G)}, {v(G+1)}')
    A(f's_mov_b64 exec, 0xffff\nglobal_store_short {v(vXO)}, {v(G)}, {sp(sOUT)} {ofl}\nglobal_store_short_d16_hi {v(vXO)}, {v(G)}, {sp(sOUT)} offset:32 {ofl}')
    A(f's_cmp_lg_u32 s{sU2}, 0\ns_cbranch_scc1 L_hdone')
    A(f's_mov_b64 exec, 1\nv_mov_b32 {v(vT)}, 0\nglobal_store_dword {v(vT)}, {v(vTAG)}, {sp(sWS)} sc1')
    A('L_hdone:')
    if stamps:
        A('s_waitcnt vmcnt(0)')
        stamp(7)
        write_stamps(256, 'h')
    A('L_end:\ns_endpgm')
    A(f'''.section .rodata,"a"
.p2align 6
.amdhsa_kernel {NAME}_kernel
  .amdhsa_next_free_vgpr {NV}
  .amdhsa_next_free_sgpr 100
  .amdhsa_accum_offset {NV}
  .amdhsa_group_segment_fixed_size 0
  .amdhsa_kernarg_size 96
  .amdhsa_user_sgpr_count 2
  .amdhsa_user_sgpr_kernarg_segment_ptr 1
  .amdhsa_system_sgpr_workgroup_id_x 1
  .amdhsa_float_denorm_mode_32 3
.end_amdhsa_kernel''')
    open(fn, 'w').write('\n'.join(L) + '\n')

if __name__ == '__main__':
    fn = sys.argv[1]
    kw = {}
    for a in sys.argv[2:]:
        k, val = a.split('=')
        try: val = int(val)
        except ValueError: val = val.replace('+', ' ').replace('def', '')
        kw[k] = val
    gen(fn, **kw)
```

```python
import sys, os, struct
NAME = 'recurrent_scan__gqa_block_cached__glu_gated_reglu__decode'

HEADER = '''; Kernarg layout (96 bytes, pointers only, base s[0:1]), everything bf16:
;
'''

def f2u(x): return struct.unpack('<I', struct.pack('<f', x))[0]

def gen(fn, stamps=False, pace=8, up=4, mapping='x', kvil=False, twostage=False, spin=1<<15, knt='nt', vnt='nt', w1nt='nt', w2nt='nt', sleep=0, fixdur=0, D=7, nomem=0, now=0, nopoll=0, nocomp=0, pre=1, force=-1, cap=400, thr=100, noex=0, sync=1, skipx=1, hsl=2, gat=26, perturb=0, pall=0, lead=0, bal=5, gain=15, dead=20, kmax=10, bneg=0, cps='23.34', cgap=3, rank=0, warm=0, dbgt=-1, wlate=0, qdel2=9, xs=0, qdel=9, rsp=7, rc0=24, rg=2, lastneg=0, ofl='', prio=0, nosleep=1, y8=0, rot=2, rmul=1, umap=1, gord=3, w1sw=1, wearly=2, hb5=1, xtra=-1, sel=0, lpipe=0, lmask=31, fb=26, blate=1, pubt=23, htouch=3, otouch=0, nonuma=0, al=1, glate=1, touch=5, late=0, lred=1, pq=0, po=0, py=0, inl=1, nend=4, Dend=18, dbgv=0, stfl='sc1', slfl='sc1'):
    L = []
    cpl = [int(x) for x in str(cps).split('.')]
    def A(s):
        for ln in s.strip('\n').split('\n'):
            L.append(ln.strip())
    SLOT = 9216; RING = 2*SLOT; WT = 12288
    WREG = 4*RING
    MISC = WREG + 4*WT
    XN = MISC; OBF = MISC
    RED = MISC + 1536
    OCB = RED + 8192
    QL = RED + 12288
    HL = QL + 384
    FLG = HL + 768
    STG = FLG + 64
    LDS = 147456
    assert STG + 6144 <= LDS
    P1 = 0x1000; OP = 0x100000; YP = 0x200000; BP = 0x300000; VOTE = 0x3F0000; GO = 0x3F8000; TS = 0x3E0000; SCO = 0x400000; WSZ = 0x600000
    TAGC = 0x9E3779B9
    sX, sK, sV, sWQ, sWO, sWG, sWU, sWD, sOUT, sDBG, sWS = 4, 6, 8, 10, 12, 16, 18, 20, 22, 24, 26
    rK, rV, rW1, rW2, rWS = 28, 32, 36, 40, 44
    sWAVE, sH, sJ, sB, sHALF = 48, 49, 50, 51, 52
    sBETA, sPI, sHASW1, sRS = 53, 54, 55, 56
    sSLA, sSLB, sSLC = 57, 58, 59
    sOFF, sT, sCNT = 60, 61, 62
    sSC, sL2E = 63, 64
    sT0, sT1, sT2, sT3 = 65, 66, 67, 68
    sU2, sR, sCB, sRB, sSLC2 = 69, 70, 71, 72, 73
    sN0, sN1, sFLV, sFL = 70, 71, 72, 73
    sU, sPUB, sNEG, sVB = 14, 15, 34, 32
    sRHO = 3
    sXD, sXS = 92, 93
    sCM = 94
    sSTG = 35
    sU0 = 96
    sP = 74
    sST = 76
    def srd(r): return f's[{r}:{r+3}]'
    def sp(r): return f's[{r}:{r+1}]'
    vLANE, vL16, vTAG, vKA0, vVA0, vA, vM, vML, vLS, vAL = 1, 2, 3, 4, 5, 6, 7, 8, 9, 10
    vT = 12
    vS = 28
    vP = 36
    vQ = 40
    vF = 64
    vO = 112
    vW = 160
    vR = 208
    vM2B, vM2X, vM3, vSK, vSV, vFA, vONE, vPA = range(212, 220)
    vSRC = 220
    vKB = 224
    vVB = 228
    vAD = 236
    NV = 244
    def v(r, n=1): return f'v{r}' if n == 1 else f'v[{r}:{r+n-1}]'
    inhelper = [False]
    def pstamp(i):
        if stamps == 3: A(f's_memrealtime {sp(sST+2*i)}\ns_waitcnt lgkmcnt(0)')
    def qstamp(i):
        if stamps == 4: A(f's_memrealtime {sp(sST+2*i)}\ns_waitcnt lgkmcnt(0)')
    def stamp(i):
        if stamps in (3, 4) and i < 7 and not inhelper[0]: return
        if stamps == 5 and inhelper[0] and i in (3, 4): return
        if stamps:
            A(f's_memrealtime {sp(sST+2*i)}\ns_waitcnt lgkmcnt(0)')
    def write_stamps(rec_base, lbl):
        if not stamps: return
        if dbgt >= 0:
            A(f's_cmp_lg_u32 s2, {dbgt}\ns_cbranch_scc1 L_end\ns_mov_b64 exec, 1\nv_mov_b32 {v(vA)}, 0')
            for i in range(8): A(f's_sub_u32 s{sT0}, s{sST+2*i}, s{sST}\nv_mov_b32 {v(vT)}, s{sT0}\nglobal_store_dword {v(vA)}, {v(vT)}, {sp(sDBG)} offset:{4*i + (32 if rec_base else 0)}')
            return
        A(f's_lshl_b32 s{sT0}, s2, 6\ns_add_u32 s{sT0}, s{sT0}, {0x20000000 + rec_base*64}')
        A(f's_add_u32 s{sP}, s{sWS}, s{sT0}\ns_addc_u32 s{sP+1}, s{sWS+1}, 0')
        A(f's_mov_b64 exec, 1\nv_mov_b32 {v(vA)}, 0')
        for i in range(4):
            for k in range(4): A(f'v_mov_b32 {v(vT+k)}, s{sST+4*i+k}')
            A(f'global_store_dwordx4 {v(vA)}, {v(vT,4)}, {sp(sP)} offset:{16*i}\ns_nop 1')
    def xsum(r, t, op='v_add_f32', full=True):
        if full:
            for mode in ['quad_perm:[1,0,3,2]', 'quad_perm:[2,3,0,1]', 'row_half_mirror', 'row_mirror']:
                A(f's_nop 1\n{op}_dpp {v(r)}, {v(r)}, {v(r)} {mode} row_mask:0xf bank_mask:0xf')
        for sw in ['v_permlane16_swap_b32', 'v_permlane32_swap_b32']:
            A(f'v_mov_b32 {v(t)}, {v(r)}\ns_nop 1\n{sw} {v(r)}, {v(t)}\n{op} {v(r)}, {v(r)}, {v(t)}')
    def rnd(r, t):
        A(f'v_cvt_pk_bf16_f32 {v(t)}, {v(r)}, {v(r)}\nv_lshlrev_b32 {v(r)}, 16, {v(t)}')
    def rnd2(r0, r1, t):
        A(f'v_cvt_pk_bf16_f32 {v(t)}, {v(r0)}, {v(r1)}\nv_lshlrev_b32 {v(r0)}, 16, {v(t)}\nv_and_b32 {v(r1)}, 0xffff0000, {v(t)}')
    def dma_tile(soff, sslot, paced=None, lo=0, hi=9, fl='nt'):
        for i in range(lo, hi):
            A(f's_add_u32 m0, s{sslot}, {1024*i}')
            if i == lo or i % 3 == 0: A(f's_add_u32 s{sT0}, s{soff}, {3072*(i//3)}')
            elif not paced: A('s_nop 0')
            if paced: A(f's_waitcnt vmcnt({paced-1})')
            A(f'buffer_load_dwordx4 {v(vSRC+i%3)}, {srd(rK)}, s{sT0} offen {fl} lds')
    def rot3(dst, tmp):
        A(f's_lshr_b32 s{dst}, s{sRHO}, {rot}')
        if rmul != 1: A(f's_mul_i32 s{dst}, s{dst}, {rmul}')
        A(f's_mul_i32 s{tmp}, s{dst}, 43691\ns_lshr_b32 s{tmp}, s{tmp}, 17\ns_mul_i32 s{tmp}, s{tmp}, 3\ns_sub_u32 s{dst}, s{dst}, s{tmp}')
    def block_params(default, sn):
        if default == 1: A(f's_cmp_eq_u32 s{sHALF}, 1')
        else: A(f's_bitcmp1_b64 {sp(sCM)}, s{sT}')
        A(f's_addc_u32 s{sT1}, s{sU}, s{sU}\ns_lshl_b32 s{sT1}, s{sT1}, 6\ns_add_u32 s{sT2}, s{sT1}, 65\ns_add_u32 s{sT1}, s{sT1}, 1')
        A(f's_mul_i32 s{sT1}, s{sT1}, 43691\ns_mul_i32 s{sT2}, s{sT2}, 43691\ns_lshr_b32 s{sT1}, s{sT1}, 17\ns_lshr_b32 s{sT2}, s{sT2}, 17')
        A(f's_mul_i32 s{sOFF}, s{sT1}, 384\ns_sub_u32 s{sT1}, s{sT2}, s{sT1}\ns_mul_i32 s{sT2}, s{sT2}, 384\ns_min_u32 s{rK+2}, s{sT2}, {0 if nomem else 1572864}')
        if default == 2: A(f's_cmp_ge_u32 s{sT}, 46\ns_cselect_b32 s{rK+2}, 0, s{rK+2}')
        else: A(f's_cmp_eq_u32 s{sT1}, 22\ns_cselect_b32 s{sn}, -1, 0')
        if umap: A(f's_bitcmp1_b32 s{sU}, 0\ns_cselect_b32 s{sT1}, 7, 1\ns_add_u32 s{sU}, s{sU}, s{sT1}')
        else: A(f's_add_u32 s{sU}, s{sU}, 4')
        if rot >= 0: A(f's_cmp_ge_u32 s{sU}, 96\ns_cselect_b32 s{sT1}, 96, 0\ns_sub_u32 s{sU}, s{sU}, s{sT1}')
    def poll(lbl, loads, tagregs, code, mid=None):
        A(f's_mov_b32 s{sCNT}, {spin}\n{lbl}:')
        for x in loads: A(x)
        if mid: A(f'{mid}:')
        A('s_waitcnt vmcnt(0)')
        A(f'v_xor_b32 {v(vT)}, {v(tagregs[0])}, {v(vTAG)}')
        for r in tagregs[1:]:
            A(f'v_xor_b32 {v(vT+1)}, {v(r)}, {v(vTAG)}\nv_or_b32 {v(vT)}, {v(vT)}, {v(vT+1)}')
        if (nopoll and lbl != 'L_pq') or (noex and lbl == 'L_px'): A(f's_branch {lbl}_ok')
        A(f'v_cmp_ne_u32 vcc, 0, {v(vT)}\ns_cbranch_vccz {lbl}_ok')
        if sleep: A(f's_sleep {sleep}')
        A(f's_sub_u32 s{sCNT}, s{sCNT}, 1\ns_cmp_lg_u32 s{sCNT}, 0\ns_cbranch_scc1 {lbl}')
        A(f'v_mov_b32 {v(vT)}, 0\nv_mov_b32 {v(vT+1)}, {code}\nglobal_store_dword {v(vT)}, {v(vT+1)}, {sp(sDBG)}')
        A(f'{lbl}_ok:')
    def polls(lbl, loads, tagregs, code):
        A(f's_mov_b32 s{sCNT}, {spin}')
        for x in loads: A(x)
        A(f'{lbl}:\ns_waitcnt vmcnt(0)\ns_mov_b32 s{sT3}, 0')
        for k, (x, r) in enumerate(zip(loads, tagregs)):
            A(f'v_cmp_ne_u32 vcc, {v(r)}, {v(vTAG)}\ns_cbranch_vccz {lbl}_s{k}\ns_mov_b64 exec, vcc')
            A(x)
            A(f's_mov_b64 exec, -1\ns_mov_b32 s{sT3}, 1\n{lbl}_s{k}:')
        A(f's_cmp_eq_u32 s{sT3}, 0\ns_cbranch_scc1 {lbl}_ok')
        A(f's_sub_u32 s{sCNT}, s{sCNT}, 1\ns_cmp_lg_u32 s{sCNT}, 0\ns_cbranch_scc1 {lbl}')
        A(f'v_mov_b32 {v(vT)}, 0\nv_mov_b32 {v(vT+1)}, {code}\nglobal_store_dword {v(vT)}, {v(vT+1)}, {sp(sDBG)}\ns_waitcnt vmcnt(0)')
        A(f'{lbl}_ok:')
    def poll2(lbl, mk, n, base, alt, code, delay, use):
        def check(b, ok):
            A(f's_waitcnt vmcnt({n})')
            A(f'v_xor_b32 {v(vT)}, {v(b+3)}, {v(vTAG)}')
            for k in range(1, n): A(f'v_xor_b32 {v(vT+1)}, {v(b+4*k+3)}, {v(vTAG)}\nv_or_b32 {v(vT)}, {v(vT)}, {v(vT+1)}')
            A(f'v_cmp_ne_u32 vcc, 0, {v(vT)}\ns_cbranch_vccz {ok}')
        A(f's_mov_b32 s{sCNT}, {spin}')
        for x in mk(base): A(x)
        if callable(delay): delay()
        else: A(f's_sleep {delay}')
        A(f'{lbl}:')
        for x in mk(alt): A(x)
        check(base, f'{lbl}_ok')
        for x in mk(base): A(x)
        check(alt, f'{lbl}_okb')
        A(f's_sub_u32 s{sCNT}, s{sCNT}, 1\ns_cmp_lg_u32 s{sCNT}, 0\ns_cbranch_scc1 {lbl}')
        A(f'v_mov_b32 {v(vT)}, 0\nv_mov_b32 {v(vT+1)}, {code}\nglobal_store_dword {v(vT)}, {v(vT+1)}, {sp(sDBG)}')
        A(f'{lbl}_okb:')
        use(alt)
        A(f's_branch {lbl}_done\n{lbl}_ok:')
        use(base)
        A(f'{lbl}_done:')
    def wsload(dst, voff, soff): return f'buffer_load_dwordx4 {v(dst,4)}, {v(voff)}, {srd(rWS)}, s{soff} offen sc1'
    def put3_bf16(r0, t, va):
        A(f'v_cvt_pk_bf16_f32 {v(t)}, {v(r0)}, {v(r0+1)}\nv_cvt_pk_bf16_f32 {v(t+1)}, {v(r0+2)}, {v(r0+2)}')
        A(f'ds_write_b16 {v(va)}, {v(t)}\nds_write_b16_d16_hi {v(va)}, {v(t)} offset:2\nds_write_b16 {v(va)}, {v(t+1)} offset:4')
    def fdiv(q, n, d, r, e):
        A(f'v_mul_f32 {v(q)}, {v(n)}, {v(r)}\nv_fma_f32 {v(e)}, -{v(q)}, {v(d)}, {v(n)}\nv_fma_f32 {v(q)}, {v(e)}, {v(r)}, {v(q)}')
    def trread_mfma(ntile, va, off2, acc, first, frag, aop, va2=None, extra=None):
        def rd(t):
            if va2 is None:
                A(f'ds_read_b64_tr_b16 {v(frag+4*t,2)}, {v(va)} offset:{32*t}')
                A(f'ds_read_b64_tr_b16 {v(frag+4*t+2,2)}, {v(va)} offset:{32*t+off2}')
            else:
                A(f'ds_read_b64_tr_b16 {v(frag+4*t,2)}, {v(va+(t&3))} offset:{128*(t>>2)}')
                A(f'ds_read_b64_tr_b16 {v(frag+4*t+2,2)}, {v(va2+(t&3))} offset:{128*(t>>2)}')
        pre = min(4, ntile)
        for t in range(pre): rd(t)
        for t in range(ntile):
            if t + pre < ntile: rd(t + pre)
            if extra and t + pre == ntile - 1: A(extra)
            left = min(ntile - 1, t + pre) - t
            A(f's_waitcnt lgkmcnt({2*left + (1 if extra and t + pre >= ntile - 1 else 0)})')
            c = '0' if first else v(acc+4*t, 4)
            A(f'v_mfma_f32_16x16x32_bf16 {v(acc+4*t,4)}, {v(aop,4)}, {v(frag+4*t,4)}, {c}')

    A(HEADER)
    A(f'; @launch grid=(256,1,1) block=(320,1,1) lds={LDS}')
    A('.amdgcn_target "amdgcn-amd-amdhsa--gfx950"\n.text')
    if al: A('.p2align 12')
    A(f'.globl {NAME}_kernel\n.p2align 8\n.type {NAME}_kernel,@function\n{NAME}_kernel:')
    A('s_cmp_ge_u32 s2, 256\ns_cbranch_scc1 L_end')
    A('s_load_dwordx16 s[4:19], s[0:1], 0\ns_load_dwordx8 s[20:27], s[0:1], 64')
    if fixdur: A('s_memrealtime s[96:97]')
    if stamps:
        A(f's_memrealtime {sp(sST)}')
        for i in range(2, 16): A(f's_mov_b32 s{sST+i}, 0')
    A(f'v_lshrrev_b32 {v(vT)}, 6, v0\nv_and_b32 {v(vLANE)}, 63, v0')
    A(f'v_readfirstlane_b32 s{sWAVE}, {v(vT)}')
    A(f'v_lshlrev_b32 {v(vL16)}, 4, {v(vLANE)}')
    A(f's_lshr_b32 s{sT0}, s2, 3\ns_lshl_b32 s{sT0}, s{sT0}, 2\ns_and_b32 s{sT1}, s2, 3\ns_add_u32 s{sRHO}, s{sT0}, s{sT1}')
    A(f's_bfe_u32 s{sHALF}, s2, 0x10002\ns_lshr_b32 s{sB}, s{sRHO}, 5\ns_and_b32 s{sH}, s{sRHO}, 31\ns_lshl_b32 s{sJ}, s{sB}, 1\ns_add_u32 s{sJ}, s{sJ}, s{sHALF}')
    A(f's_mul_i32 s{sU2}, s{sH}, 3\ns_add_u32 s{sU2}, s{sU2}, s{sJ}')
    A(f's_mov_b32 s{sSC}, {f2u(192**-0.5):#x}\ns_mov_b32 s{sL2E}, {f2u(1.4426950408889634):#x}')
    def ws_srd():
        A(f's_mov_b32 s{rWS}, s{sWS}\ns_mov_b32 s{rWS+1}, s{sWS+1}')
    A(f's_mov_b32 s{rWS+2}, {WSZ}\ns_mov_b32 s{rWS+3}, 0x20000')
    def vote_slot(src, sidx, sslot):
        A(f's_mul_i32 s{sidx}, s{src}, 3\ns_lshr_b32 s{sidx}, s{sidx}, 5\ns_lshl_b32 s{sslot}, s{sidx}, 5\ns_add_u32 s{sslot}, s{sslot}, 2\ns_mul_i32 s{sslot}, s{sslot}, 43691\ns_lshr_b32 s{sslot}, s{sslot}, 17\ns_sub_u32 s{sslot}, s{src}, s{sslot}')
    sIDX, sSLT = 40, 41
    A(f's_cmp_eq_u32 s{sWAVE}, 4\ns_cbranch_scc0 L_noprobe')
    if prio: A(f's_setprio {prio}')
    vote_slot(2, sIDX, sSLT)
    A(f's_cmp_ge_u32 s{sIDX}, 12\ns_cselect_b32 s{sT0}, 12, 0\ns_sub_u32 s{sT0}, s{sIDX}, s{sT0}')
    A(f's_lshl_b32 s{sT0}, s{sT0}, 3\ns_and_b32 s{sT1}, s{sSLT}, 7\ns_add_u32 s{sT0}, s{sT0}, s{sT1}\ns_lshl_b32 s{sT0}, s{sT0}, 21')
    A(f's_lshr_b32 s{sT1}, s{sSLT}, 3\ns_lshl_b32 s{sT1}, s{sT1}, 12\nv_mov_b32 {v(vT+4)}, 0\ns_mov_b64 exec, 1\ns_cmp_ge_u32 s{sIDX}, 12')
    A('s_waitcnt lgkmcnt(0)')
    A(f's_cselect_b32 s{sP}, s{sV}, s{sK}\ns_cselect_b32 s{sP+1}, s{sV+1}, s{sK+1}\ns_add_u32 s{sP}, s{sP}, s{sT0}\ns_addc_u32 s{sP+1}, s{sP+1}, 0')
    A(f's_bfe_u32 s{sT0}, s{sP}, 0x10015\ns_lshl_b32 s{sT0}, s{sT0}, 13\ns_add_u32 s{sT0}, s{sT0}, s{sT1}')
    A(f'v_mov_b32 {v(vT)}, s{sT0}\nv_xor_b32 {v(vT+1)}, 0x2000, {v(vT)}')
    A(f'global_load_dword {v(vT+2)}, {v(vT)}, {sp(sP)} nt\nglobal_load_dword {v(vT+3)}, {v(vT+1)}, {sp(sP)} nt\ns_mov_b64 exec, -1')
    if gord >= 2: A(f'global_load_dword {v(vTAG)}, {v(vT+4)}, {sp(sWS)} sc1')
    A('s_barrier')
    ws_srd()
    e_ = 1 if gord >= 2 else 0
    A(f's_waitcnt vmcnt({1+e_})\ns_memtime s[36:37]\ns_waitcnt vmcnt({e_})\ns_memtime s[38:39]')
    if gord < 2: A(f'global_load_dword {v(vTAG)}, {v(vT+4)}, {sp(sWS)} sc1')
    A('s_branch L_helper\nL_noprobe:')

    sO1, sO2, sOK = sN0, sN1, sFLV
    A(f's_cmp_ge_u32 s{sJ}, 3\ns_cbranch_scc0 L_w1mlp')
    A(f's_mov_b32 s{sBETA}, s{sH}\ns_sub_u32 s{sPI}, s{sJ}, 3\ns_mov_b32 s{sRS}, 12288\ns_mov_b32 s{sHASW1}, 1\ns_mul_i32 s{sO1}, s{sH}, 384')
    A('s_branch L_w1done\nL_w1mlp:')
    A(f's_mul_i32 s{sT1}, s{sU2}, 52429\ns_lshr_b32 s{sT1}, s{sT1}, 18')
    A(f's_mul_i32 s{sT2}, s{sT1}, 5\ns_sub_u32 s{sPI}, s{sU2}, s{sT2}\ns_add_u32 s{sBETA}, s{sT1}, 32\ns_mov_b32 s{sRS}, 3072')
    A(f's_cmp_lt_u32 s{sU2}, 80\ns_cselect_b32 s{sHASW1}, 1, 0\ns_and_b32 s{sT1}, s{sT1}, 7\ns_mul_i32 s{sO1}, s{sT1}, 384')
    A('L_w1done:')
    A(f's_lshl_b32 s{sT1}, s{sPI}, 2\ns_add_u32 s{sT1}, s{sT1}, s{sWAVE}\ns_lshl_b32 s{sT1}, s{sT1}, 5\ns_mul_i32 s{sT1}, s{sT1}, s{sRS}\ns_add_u32 s{sO1}, s{sO1}, s{sT1}')
    A(f's_mul_i32 s{sT1}, s{sRS}, 31\ns_add_u32 s{sT1}, s{sT1}, 384\ns_mul_i32 s{rW1+2}, s{sT1}, s{sHASW1}\ns_mov_b32 s{rW1+3}, 0x20000')
    if now: A(f's_mov_b32 s{rW1+2}, 0')
    for p in range(3):
        A(f'v_add_u32 {v(vT)}, {64*p}, {v(vLANE)}\nv_mul_u32_u24 {v(vT+1)}, 2731, {v(vT)}\nv_lshrrev_b32 {v(vT+1)}, 16, {v(vT+1)}')
        A(f'v_mul_u32_u24 {v(vT+2)}, 24, {v(vT+1)}\nv_sub_u32 {v(vT)}, {v(vT)}, {v(vT+2)}\nv_lshlrev_b32 {v(vT)}, 4, {v(vT)}')
        if not w1sw: A(f'v_mad_u32_u24 {v(vS+p)}, {v(vT+1)}, s{sRS}, {v(vT)}')
        A(f'v_and_b32 {v(vT+3)}, 6, {v(vT+1)}\nv_lshlrev_b32 {v(vT+3)}, 4, {v(vT+3)}\nv_xor_b32 {v(vT)}, {v(vT)}, {v(vT+3)}\nv_lshl_add_u32 {v(vSRC+p)}, {v(vT+2)}, 4, {v(vT)}')
        if w1sw: A(f'v_mad_u32_u24 {v(vS+p)}, {v(vT+1)}, s{sRS}, {v(vT)}')
    A(f's_mul_i32 s{sSLA}, s{sWAVE}, {RING}\ns_add_u32 s{sSLB}, s{sSLA}, {SLOT}\ns_mul_i32 s{sSLC}, s{sWAVE}, {WT}\ns_add_u32 s{sSLC}, s{sSLC}, {WREG}')
    A(f's_mul_i32 s{sT0}, s{sWAVE}, 1280\nv_lshlrev_b32 {v(vA)}, 2, {v(vLANE)}\nv_add_u32 {v(vA)}, s{sT0}, {v(vA)}\ns_mul_i32 s{sOK}, s{sRHO}, 1572864')
    if 2 <= touch <= 4:
        rot3(sT2, sT1)
        A(f's_lshl_b32 s{sT2}, s{sT2}, 19\ns_add_u32 s{sT2}, s{sT2}, s{sOK}\ns_mul_i32 s{sT3}, s{sRS}, 31\ns_mul_i32 s{sT1}, s{sH}, {192*1280}')
    A(f's_cmp_lt_u32 s{sBETA}, 40')
    A('s_waitcnt lgkmcnt(0)')
    pstamp(1)
    if stamps == 3: A(f's_cmp_lt_u32 s{sBETA}, 40')
    A(f's_cselect_b32 s{rW1}, s{sWG}, s{sWU}\ns_cselect_b32 s{rW1+1}, s{sWG+1}, s{sWU+1}\ns_cmp_lt_u32 s{sBETA}, 32\ns_cselect_b32 s{rW1}, s{sWQ}, s{rW1}\ns_cselect_b32 s{rW1+1}, s{sWQ+1}, s{rW1+1}')
    A(f's_add_u32 s{rW1}, s{rW1}, s{sO1}\ns_addc_u32 s{rW1+1}, s{rW1+1}, 0')
    if touch == 1:
        A(f's_load_dword s97, {sp(rW1)}, 0\ns_load_dword s98, {sp(sX)}, 0\ns_load_dword s99, {sp(sK)}, s{sOK}')
    if touch >= 5:
        A('; (scalar loads whose values are unused: they start the address translations side by side)')
        A(f's_load_dword s97, {sp(rW1)}, 0\ns_load_dword s98, {sp(sX)}, 0')
        if touch in (5, 7): A(f's_load_dword s99, {sp(sWS)}, 0')
        if touch == 7: A(f's_mul_i32 s{sT3}, s{sRS}, 31\ns_load_dword s97, {sp(rW1)}, s{sT3}')
    if 2 <= touch <= 4:
        A(f's_load_dword s97, {sp(rW1)}, 0\ns_load_dword s98, {sp(sX)}, 0\ns_load_dword s99, {sp(sK)}, s{sT2}\ns_load_dword s97, {sp(sWS)}, 0')
        if touch >= 3: A(f's_load_dword s98, {sp(rW1)}, s{sT3}\ns_load_dword s99, {sp(sWO)}, s{sT1}')
        if touch >= 4: A(f's_mov_b32 s{sT1}, 0x200000\ns_load_dword s97, {sp(sWS)}, s{sT1}\ns_load_dword s98, {sp(sWD)}, 0')
    A('s_barrier')
    pstamp(2)
    for k in range(5): A(f'global_load_dword {v(vF+k)}, {v(vA)}, {sp(sX)} offset:{256*k}')
    def w1_issue():
        A(f's_lshl_b32 s{sT2}, s{sRS}, 3\ns_mov_b32 s{sT1}, 0')
        for i in range(12):
            A(f's_add_u32 m0, s{sSLC}, {1024*i}')
            A(f's_add_u32 s{sT1}, s{sT1}, s{sT2}' if i and i % 3 == 0 else 's_nop 0')
            A(f'buffer_load_dwordx4 {v(vS+i%3)}, {srd(rW1)}, s{sT1} offen {w1nt} lds')
    if late:
        assert up == 0
        A(f's_cmp_ge_u32 s{sJ}, 3\ns_cbranch_scc0 L_w1late')
    w1_issue()
    if late: A('L_w1late:')
    A(f'v_mov_b32 {v(vT)}, 0\nglobal_load_dword {v(vTAG)}, {v(vT)}, {sp(sWS)} sc1')
    pstamp(3)
    ws_srd()
    A(f's_add_u32 s{rK}, s{sK}, s{sOK}\ns_addc_u32 s{rK+1}, s{sK+1}, 0\ns_mov_b32 s{rK+3}, 0x20000')
    A(f's_add_u32 s{sVB}, s{sV}, s{sOK}\ns_addc_u32 s{sVB+1}, s{sV+1}, 0')
    A(f's_lshl_b32 s{sU}, s{sWAVE}, {umap}')
    if rot >= 0:
        rot3(sT1, sT2)
        A(f's_lshl_b32 s{sT1}, s{sT1}, 5\ns_add_u32 s{sU}, s{sU}, s{sT1}')
    A(f's_mov_b32 s{sU0}, s{sU}')
    block_params(1, sN0)
    dma_tile(sOFF, sSLA, None, 0, up, knt)
    A(f's_cmp_lt_u32 s{sJ}, 5\ns_cbranch_scc0 L_w2down')
    A(f's_mul_i32 s{sT1}, s{sH}, {192*1280}\ns_lshl_b32 s{sT2}, s{sJ}, 8\ns_add_u32 s{sT1}, s{sT1}, s{sT2}')
    if wlate:
        A(f's_lshl_b32 s{sT2}, s{sWAVE}, 6\ns_add_u32 s{sT1}, s{sT1}, s{sT2}\ns_add_u32 s{rW2}, s{sWO}, s{sT1}\ns_addc_u32 s{rW2+1}, s{sWO+1}, 0\ns_mov_b32 s{rW2+2}, {191*1280+64}\ns_mov_b32 s{rW2+3}, 0x20000\ns_branch L_w2fin')
    else: A(f's_add_u32 s{rW2}, s{sWO}, s{sT1}\ns_addc_u32 s{rW2+1}, s{sWO+1}, 0\ns_mov_b32 s{rW2+2}, {47*1280+256}\ns_branch L_w2done')
    A('L_w2down:')
    A(f's_sub_u32 s{sT3}, s{sU2}, 5\ns_mul_i32 s{sT1}, s{sT3}, 52429\ns_lshr_b32 s{sT1}, s{sT1}, 18\ns_mul_i32 s{sT2}, s{sT1}, 5\ns_sub_u32 s{sT2}, s{sT3}, s{sT2}')
    A(f's_mul_i32 s{sT1}, s{sT1}, {96*1280}\ns_lshl_b32 s{sT2}, s{sT2}, 8\ns_add_u32 s{sT1}, s{sT1}, s{sT2}')
    A(f's_add_u32 s{rW2}, s{sWD}, s{sT1}\ns_addc_u32 s{rW2+1}, s{sWD+1}, 0')
    A(f's_cmp_lt_u32 s{sT3}, 80\ns_cselect_b32 s{rW2+2}, {47*1280+256}, 0\ns_cmp_lt_u32 s{sWAVE}, 2\ns_cselect_b32 s{rW2+2}, s{rW2+2}, 0')
    A('L_w2done:')
    A(f's_mul_i32 s{sT1}, s{sWAVE}, {48*1280}\ns_add_u32 s{rW2}, s{rW2}, s{sT1}\ns_addc_u32 s{rW2+1}, s{rW2+1}, 0\ns_mov_b32 s{rW2+3}, 0x20000')
    if now: A(f's_mov_b32 s{rW2+2}, 0')
    if wlate: A('L_w2fin:')
    def vbases(hf):
        A(f'v_lshrrev_b32 {v(vT)}, 2, {v(vLANE)}')
        if hf: A(f'v_min_u32 {v(vT)}, 5, {v(vT)}\nv_add_u32 {v(vT)}, 16, {v(vT)}')
        A(f'v_bfe_u32 {v(vT+2)}, {v(vT)}, 1, 2\nv_mul_u32_u24 {v(vT)}, 384, {v(vT)}\nv_and_b32 {v(vT+3)}, 3, {v(vLANE)}\nv_lshl_add_u32 {v(vT)}, {v(vT+3)}, 3, {v(vT)}')
        for k in range(4): A(f'v_xor_b32 {v(vT+3)}, {k}, {v(vT+2)}\nv_lshl_add_u32 {v(vVB+4*hf+k)}, {v(vT+3)}, 5, {v(vT)}')
    if w1sw:
        vbases(0)
        for k in range(4): A(f'v_add_u32 {v(vAD+k)}, s{sSLC}, {v(vVB+k)}\nv_add_u32 {v(vAD+4+k)}, 6144, {v(vAD+k)}')
    if not w1sw: A(f'v_lshrrev_b32 {v(vT)}, 2, {v(vLANE)}\nv_mul_u32_u24 {v(vT)}, 384, {v(vT)}\nv_and_b32 {v(vT+1)}, 3, {v(vLANE)}\nv_lshl_add_u32 {v(vVA0)}, {v(vT+1)}, 3, {v(vT)}')
    if late:
        A(f's_cmp_ge_u32 s{sJ}, 3\ns_cbranch_scc1 L_xw\ns_waitcnt vmcnt(0)\nL_xw:')
    A(f's_waitcnt vmcnt({1+12+up})')
    pstamp(4)
    X = vF + 8
    for k in range(5):
        A(f'v_lshlrev_b32 {v(X+2*k)}, 16, {v(vF+k)}\nv_and_b32 {v(X+2*k+1)}, 0xffff0000, {v(vF+k)}')
    a = vT
    A(f'v_add_f32 {v(a)}, {v(X)}, {v(X+1)}')
    for k in range(2, 10): A(f'v_add_f32 {v(a)}, {v(a)}, {v(X+k)}')
    xsum(a, a+1)
    A(f'v_mul_f32 {v(a)}, {f2u(1/640):#x}, {v(a)}')
    b_ = vT+2
    A(f'v_sub_f32 {v(a+1)}, {v(X)}, {v(a)}\nv_mul_f32 {v(b_)}, {v(a+1)}, {v(a+1)}')
    for k in range(1, 10): A(f'v_sub_f32 {v(a+1)}, {v(X+k)}, {v(a)}\nv_fmac_f32 {v(b_)}, {v(a+1)}, {v(a+1)}')
    xsum(b_, a+1)
    A(f'v_mul_f32 {v(b_)}, {f2u(1/640):#x}, {v(b_)}')
    rnd2(a, b_, a+1)
    A(f'v_add_f32 {v(b_)}, {f2u(1e-5):#x}, {v(b_)}')
    rnd(b_, a+1)
    c_ = vT+3
    A(f'v_sqrt_f32 {v(c_)}, {v(b_)}\ns_nop 0\nv_rcp_f32 {v(c_+1)}, {v(c_)}\nv_fma_f32 {v(a+1)}, -{v(c_)}, {v(c_)}, {v(b_)}')
    A(f'v_mul_f32 {v(c_+1)}, 0.5, {v(c_+1)}\nv_fma_f32 {v(c_)}, {v(a+1)}, {v(c_+1)}, {v(c_)}')
    rnd(c_, a+1)
    A(f'v_rcp_f32 {v(c_+1)}, {v(c_)}')
    A(f'v_mov_b32 {v(vT+6)}, {v(X)}\nv_mov_b32 {v(vT+7)}, {v(X+1)}')
    for k in range(1, 5):
        A(f's_cmp_eq_u32 s{sPI}, {k}\ns_cselect_b64 vcc, -1, 0\nv_cndmask_b32 {v(vT+6)}, {v(vT+6)}, {v(X+2*k)}, vcc\nv_cndmask_b32 {v(vT+7)}, {v(vT+7)}, {v(X+2*k+1)}, vcc')
    A(f'v_sub_f32 {v(vT+6)}, {v(vT+6)}, {v(a)}\nv_sub_f32 {v(vT+7)}, {v(vT+7)}, {v(a)}')
    rnd2(vT+6, vT+7, a+1)
    fdiv(vT+8, vT+6, c_, c_+1, a+1)
    fdiv(vT+9, vT+7, c_, c_+1, a+1)
    A(f'v_cvt_pk_bf16_f32 {v(vT+8)}, {v(vT+8)}, {v(vT+9)}')
    A(f's_lshl_b32 s{sT1}, s{sWAVE}, 8\ns_add_u32 s{sT1}, s{sT1}, {XN}\nv_lshlrev_b32 {v(vA)}, 2, {v(vLANE)}\nv_add_u32 {v(vA)}, s{sT1}, {v(vA)}')
    A(f'ds_write_b32 {v(vA)}, {v(vT+8)}')
    A(f'v_bfe_u32 {v(vT)}, {v(vLANE)}, 2, 2\nv_lshlrev_b32 {v(vT)}, 8, {v(vT)}\nv_lshrrev_b32 {v(vT+1)}, 4, {v(vLANE)}\nv_lshl_add_u32 {v(vT)}, {v(vT+1)}, 3, {v(vT)}')
    A(f's_lshl_b32 s{sT1}, s{sWAVE}, 6\ns_add_u32 s{sT1}, s{sT1}, {XN}\nv_add_u32 {v(vA)}, s{sT1}, {v(vT)}')
    A('s_waitcnt lgkmcnt(0)\ns_barrier')
    if stamps == 1: stamp(1)
    pstamp(5); qstamp(1)
    A(f'ds_read2_b64 {v(vP,4)}, {v(vA)} offset0:0 offset1:4')
    if late:
        A(f's_cmp_ge_u32 s{sJ}, 3\ns_cbranch_scc1 L_w1early')
        w1_issue()
        A('L_w1early:')
    k0a = max(up, min(9, pace))
    dma_tile(sOFF, sSLA, pace, up, k0a, knt)
    if not w1sw: A(f'v_add_u32 {v(vA)}, s{sSLC}, {v(vVA0)}')
    A(f's_waitcnt vmcnt({k0a}) lgkmcnt(0)')
    pstamp(6); qstamp(2)
    if xtra >= 0:
        dma_tile(sOFF, sSLA, None, k0a, 9, knt)
        block_params(1, sN1)
        dma_tile(sOFF, sSLB, None, 0, xtra, knt)
    if w1sw: trread_mfma(12, vAD, 0, vO, True, vF, vP, vAD+4)
    else: trread_mfma(12, vA, 6144, vO, True, vF, vP)
    qstamp(3)
    A(f's_mul_i32 s{sT1}, s{sWAVE}, 3072\ns_add_u32 s{sT1}, s{sT1}, {RED}')
    A(f'v_lshrrev_b32 {v(vT)}, 4, {v(vLANE)}\nv_mul_u32_u24 {v(vT)}, 768, {v(vT)}\nv_and_b32 {v(vT+1)}, 15, {v(vLANE)}\nv_lshl_add_u32 {v(vT)}, {v(vT+1)}, 2, {v(vT)}\nv_add_u32 {v(vA)}, s{sT1}, {v(vT)}')
    A('s_nop 2')
    for t in range(12): A(f'ds_write_b32 {v(vA)}, {v(vO+4*t)} offset:{64*t}')
    A(f's_mul_i32 s{sT1}, s{sWAVE}, 768\ns_add_u32 s{sT1}, s{sT1}, {RED}\nv_mul_u32_u24 {v(vA)}, 12, {v(vLANE)}\nv_add_u32 {v(vA)}, s{sT1}, {v(vA)}')
    A('s_waitcnt lgkmcnt(0)')
    qstamp(4)
    A('s_barrier')
    qstamp(5)
    for w in range(4):
        for k in range(3): A(f'ds_read_b32 {v(vF+4*w+k)}, {v(vA)} offset:{3072*w+4*k}')
    A(f'v_lshrrev_b32 {v(vT)}, 4, {v(vLANE)}\nv_mul_u32_u24 {v(vT)}, 1280, {v(vT)}\nv_and_b32 {v(vT+1)}, 15, {v(vLANE)}\nv_lshl_add_u32 {v(vS)}, {v(vT+1)}, 4, {v(vT)}')
    A(f's_mul_i32 s{sT1}, s{sBETA}, 5\ns_add_u32 s{sT1}, s{sT1}, s{sPI}\ns_lshl_b32 s{sT1}, s{sT1}, 2\ns_add_u32 s{sT1}, s{sT1}, s{sWAVE}\ns_lshl_b32 s{sT1}, s{sT1}, 10\ns_add_u32 s{sT1}, s{sT1}, {P1}')
    A(f'v_add_u32 {v(vTAG)}, {TAGC:#x}, {v(vTAG)}')
    A('s_waitcnt lgkmcnt(0)')
    for k in range(3):
        A(f'v_add_f32 {v(vF+k)}, {v(vF+k)}, {v(vF+4+k)}\nv_add_f32 {v(vF+8+k)}, {v(vF+8+k)}, {v(vF+12+k)}')
    for k in range(3): A(f'v_add_f32 {v(vF+k)}, {v(vF+k)}, {v(vF+8+k)}')
    A(f'v_mov_b32 {v(vF+3)}, {v(vTAG)}')
    A(f's_cmp_eq_u32 s{sHASW1}, 0\ns_cbranch_scc1 L_nopub1')
    A(f'buffer_store_dwordx4 {v(vF,4)}, {v(vL16)}, {srd(rWS)}, s{sT1} offen sc1')
    A('L_nopub1:')
    qstamp(6)
    stamp(2)
    if xtra >= 0: dma_tile(sOFF, sSLB, pace, xtra, 9, knt)
    else: dma_tile(sOFF, sSLA, pace, k0a, 9, knt)
    A(f's_mov_b32 s{sT1}, 0')
    if wlate: A(f's_cmp_lt_u32 s{sJ}, 5\ns_cbranch_scc1 L_w2skip')
    for i in range(12):
        A(f's_add_u32 m0, s{sSLC}, {1024*i}\ns_waitcnt vmcnt({pace-1})')
        A(f'buffer_load_dwordx4 {v(vS)}, {srd(rW2)}, s{sT1} offen {w2nt} lds')
        if i == qdel: A(f'v_mov_b32 {v(vT)}, {FLG+32}\nv_mov_b32 {v(vT+1)}, 4\nds_write_b32 {v(vT)}, {v(vT+1)}')
        if i < 11: A(f's_add_u32 s{sT1}, s{sT1}, 5120')
    if wlate: A('L_w2skip:')
    if xtra < 0:
        block_params(1, sN1)
        if qdel >= 12 or wlate:
            qk = qdel2 if wlate else qdel - 11
            dma_tile(sOFF, sSLB, pace, 0, min(qk, 9), knt)
            if qk > 9: A(f's_waitcnt vmcnt({max(0, 9 + pace - 1 - qk)})')
            A(f'v_mov_b32 {v(vT)}, {FLG+32}\nv_mov_b32 {v(vT+1)}, 4\nds_write_b32 {v(vT)}, {v(vT+1)}')
            dma_tile(sOFF, sSLB, pace, min(qk, 9), 9, knt)
        else: dma_tile(sOFF, sSLB, pace, 0, 9, knt)
    for t in range(12):
        for r in range(4): A(f'v_mov_b32 {v(vO+4*t+r)}, 0')
    A(f'v_mov_b32 {v(vM)}, {f2u(-1e30):#x}\nv_mov_b32 {v(vML)}, {f2u(-1e30):#x}\nv_mov_b32 {v(vLS)}, 0\ns_mov_b32 s{sNEG}, 0xff80ff80')
    A(f'v_lshrrev_b32 {v(vT+1)}, 4, {v(vLANE)}')
    for hf in range(2):
        A(f'v_and_b32 {v(vT)}, 15, {v(vLANE)}')
        if hf: A(f'v_min_u32 {v(vT)}, 5, {v(vT)}\nv_add_u32 {v(vT)}, 16, {v(vT)}')
        A(f'v_and_b32 {v(vT+2)}, 6, {v(vT)}\nv_xor_b32 {v(vT+2)}, {v(vT+2)}, {v(vT+1)}\nv_mul_u32_u24 {v(vT)}, 384, {v(vT)}')
        A(f'v_lshl_add_u32 {v(vKB+2*hf)}, {v(vT+2)}, 4, {v(vT)}\nv_xor_b32 {v(vT+2)}, 4, {v(vT+2)}\nv_lshl_add_u32 {v(vKB+2*hf+1)}, {v(vT+2)}, 4, {v(vT)}')
    vbases(1)
    if not w1sw: vbases(0)
    A(f'v_cmp_gt_u32 vcc, 16, {v(vLANE)}\nv_mov_b32 {v(vT)}, 0xffff\nv_mov_b32 {v(vT+2)}, 0xffff0000\nv_cndmask_b32 {v(vM3)}, 0, -1, vcc')
    A(f'v_cmp_eq_u32 vcc, 1, {v(vT+1)}\ns_mul_i32 s{sT1}, s{sWAVE}, 1536\ns_add_u32 s{sT1}, s{sT1}, {STG}\nv_cndmask_b32 {v(vM2B)}, {v(vM3)}, {v(vT)}, vcc\nv_cndmask_b32 {v(vM2X)}, 0, {v(vT+2)}, vcc')
    A(f'v_lshl_add_u32 {v(vSK)}, {v(vT+1)}, 4, s{sT1}\nv_add_u32 {v(vSV)}, {22*64}, {v(vSK)}\nv_mov_b32 {v(vFA)}, {FLG+16}\nv_mov_b32 {v(vONE)}, 1')
    A(f'v_add_u32 {v(vT)}, 352, {v(vLANE)}\nv_cmp_gt_u32 vcc, 32, {v(vLANE)}\nv_add_u32 {v(vT+2)}, -32, {v(vLANE)}\ns_nop 0\nv_cndmask_b32 {v(vT)}, {v(vT+2)}, {v(vT)}, vcc\nv_lshl_add_u32 {v(vPA)}, {v(vT)}, 2, s{sT1}')
    A(f's_add_u32 s{sSTG}, s{sT1}, 128')
    A(f'v_lshlrev_b32 {v(vA)}, 4, {v(vT+1)}\nv_add_u32 {v(vA)}, {QL}, {v(vA)}\nv_mov_b32 {v(vT+2)}, {FLG}')
    A('s_waitcnt vmcnt(9)')
    if stamps == 2: stamp(1)
    A('s_barrier')
    stamp(3)
    A(f'ds_read_b64 {v(vT+4,2)}, {v(vT+2)}')
    for s in range(6): A(f'ds_read_b128 {v(vQ+4*s,4)}, {v(vA)} offset:{64*s}')
    A(f's_mov_b32 s{sT}, 0\ns_waitcnt lgkmcnt(6)')
    A(f'v_readfirstlane_b32 s{sFL}, {v(vT+4)}\nv_readfirstlane_b32 s{sFLV}, {v(vT+5)}')
    A(f's_nop 0\ns_mov_b64 {sp(sCM)}, 0')
    grp = [0x3f, 0xff << 6, 0x3f << 14]
    for i in range(3):
        A(f's_bitcmp1_b32 s{sFL}, {i}\ns_cselect_b32 s{sT1}, {grp[i]:#x}, 0\ns_or_b32 s{sCM}, s{sCM}, s{sT1}')
        gv = grp[i] << 26
        A(f's_bitcmp1_b32 s{sFLV}, {i}')
        if gv & 0xffffffff: A(f's_cselect_b32 s{sT1}, {gv & 0xffffffff:#x}, 0')
        if gv >> 32: A(f's_cselect_b32 s{sT2}, {gv >> 32:#x}, 0\ns_or_b32 s{sCM+1}, s{sCM+1}, s{sT2}')
        if gv & 0xffffffff: A(f's_or_b32 s{sCM}, s{sCM}, s{sT1}')
    for k in range(2):
        A(f's_bitcmp1_b32 s{sRHO}, 0\ns_cselect_b32 s{sT1}, s{sFL if k else sFLV}, s{sFLV if k else sFL}\ns_bitcmp1_b32 s{sT1}, 2\ns_cselect_b32 s{sT1}, {5 << (20+k):#x}, 0\ns_or_b32 s{sCM}, s{sCM}, s{sT1}')
    A(f's_sub_u32 s{sT1}, 0, s{sHALF}\ns_xor_b32 s{sCM}, s{sCM}, s{sT1}\ns_xor_b32 s{sCM+1}, s{sCM+1}, s{sT1}')
    A(f's_mov_b32 s{sPUB}, 4\ns_waitcnt lgkmcnt(0)')
    def arrive():
        A(f's_mov_b64 exec, 1\nds_add_u32 {v(vFA)}, {v(vONE)}\ns_mov_b64 exec, -1')
    chk = f'ds_read_b128 {v(vR,4)}, {v(vFA)}'
    def step_wait(lbl):
        if not sync: return
        A(f'{lbl}:\ns_waitcnt lgkmcnt(0)\nv_readfirstlane_b32 s{sT1}, {v(vR)}\ns_nop 0\ns_cmp_ge_u32 s{sT1}, s{sPUB}\ns_cbranch_scc1 {lbl}_ok')
        A(f'{chk}\ns_branch {lbl}\n{lbl}_ok:')
    def wo_frags(vA=vA):
        A(f'v_lshrrev_b32 {v(vT)}, 2, {v(vLANE)}\nv_lshlrev_b32 {v(vT)}, 8, {v(vT)}\nv_and_b32 {v(vT+1)}, 3, {v(vLANE)}\nv_lshl_add_u32 {v(vT)}, {v(vT+1)}, 3, {v(vT)}')
        A(f's_lshl_b32 s{sT3}, s{sWAVE}, 6\ns_add_u32 s{sT3}, s{sT3}, {WREG}\nv_add_u32 {v(vA)}, s{sT3}, {v(vT)}')
        for s in range(6):
            for t in range(2):
                f = vW + 24*t + 4*s
                A(f'ds_read_b64_tr_b16 {v(f,2)}, {v(vA)} offset:{8192*s+32*t}\nds_read_b64_tr_b16 {v(f+2,2)}, {v(vA)} offset:{8192*s+32*t+4096}')
            if s % 2 == 1 and s < 5: A('s_waitcnt lgkmcnt(4)')
    A('.p2align 6\nL_kloop:')
    for k in range(4): A(f'v_add_u32 {v(vAD+k)}, s{sSLA}, {v(vKB+k)}')
    A('s_waitcnt vmcnt(9)')
    arrive()
    for kt in range(2):
        for s in range(6):
            if not (nocomp & 1): A(f'ds_read_b128 {v(vF+24*kt+4*s,4)}, {v(vAD+2*kt+(s&1))} offset:{128*(s>>1)}')
    A(chk)
    A(f'v_and_or_b32 {v(vT+8)}, {v(vM2X)}, s{sN0}, {v(vM2B)}\ns_mov_b32 s{sN0}, s{sN1}')
    A(f's_cmp_lg_u32 s{sT}, 22\ns_cbranch_scc1 L_knosw')
    A(f's_mov_b32 s{rK}, s{sVB}\ns_mov_b32 s{rK+1}, s{sVB+1}\ns_cmp_ge_u32 s{sU0}, 8\ns_cselect_b32 s{sU}, -8, 88\ns_add_u32 s{sU}, s{sU}, s{sU0}')
    A('L_knosw:')
    block_params(0, sN1)
    for kt in range(2):
        for s in range(6):
            i = 6*kt + s
            A(f's_waitcnt lgkmcnt({12-i})')
            c = '0' if s == 0 else v(vS+4*kt, 4)
            A(f'v_mfma_f32_16x16x32_bf16 {v(vS+4*kt,4)}, {v(vF+4*i,4)}, {v(vQ+4*s,4)}, {c}')
    step_wait('L_ks')
    dma_tile(sOFF, sSLA, None, 0, pre, knt)
    A(f's_nop {max(0, 7 - 3*pre)}')
    for k in range(4): rnd2(vS+2*k, vS+2*k+1, vT+k)
    for k in range(8): A(f'v_mul_f32 {v(vS+k)}, s{sSC}, {v(vS+k)}')
    for k in range(4): A(f'v_cvt_pk_bf16_f32 {v(vT+k)}, {v(vS+2*k)}, {v(vS+2*k+1)}')
    A(f'v_bfi_b32 {v(vT+2)}, {v(vT+8)}, {v(vT+2)}, s{sNEG}\nv_bfi_b32 {v(vT+3)}, {v(vM3)}, {v(vT+3)}, s{sNEG}')
    A(f's_mov_b32 exec_lo, 0x00010001\ns_mov_b32 exec_hi, 0x00010001\nds_write_b128 {v(vSK)}, {v(vT,4)}\ns_mov_b64 exec, -1\nv_add_u32 {v(vSK)}, 64, {v(vSK)}')
    A(f's_cmp_eq_u32 s{sT}, 23\ns_cbranch_scc1 L_spa')
    kbal = bal and min(cpl) < 20
    if kbal:
        A(f'v_readfirstlane_b32 s{sT1}, {v(vR+2)}\ns_nop 0\ns_cmp_gt_i32 s{sT1}, s{sT}\ns_cbranch_scc1 L_kup')
        if bneg: A(f's_add_i32 s{sT1}, s{sT1}, s{sT}\ns_cmp_lt_i32 s{sT1}, 0\ns_cbranch_scc1 L_kdn')
    dma_tile(sOFF, sSLA, D, pre, 9, knt)
    A('L_kpe:')
    A(f's_mov_b32 s{sT1}, s{sSLA}\ns_mov_b32 s{sSLA}, s{sSLB}\ns_mov_b32 s{sSLB}, s{sT1}')
    A(f's_add_u32 s{sT}, s{sT}, 1\ns_add_u32 s{sPUB}, s{sPUB}, 4\ns_branch L_kloop')
    if warm: A('L_warm:\ns_branch L_warm_ret')
    A('.p2align 6\nL_vloop:')
    for k in range(8): A(f'v_add_u32 {v(vAD+k)}, s{sSLA}, {v(vVB+k)}')
    A(f'ds_read_b128 {v(vP,4)}, {v(vSV)}\ns_cmp_eq_u32 s{sT}, 25\ns_cselect_b32 s{sT1}, {64-1536}, 64\nv_add_u32 {v(vSV)}, s{sT1}, {v(vSV)}')
    A(f's_cmp_lg_u32 s{sT}, 24\ns_cbranch_scc1 L_vnosw\ns_mov_b32 s{sU}, s{sU0}\nL_vnosw:')
    block_params(2, sN1)
    if wlate: A(f's_cmp_eq_u32 s{sT}, 47\ns_cbranch_scc1 L_vw12')
    A('s_waitcnt vmcnt(9)')
    if wlate: A('L_vw12:\ns_waitcnt vmcnt(12)')
    arrive()
    if not (nocomp & 2): trread_mfma(12, vAD, 0, vO, False, vF, vP, vAD+4, chk)
    else: A(chk)
    A(f's_cmp_eq_u32 s{sT}, 47\ns_cbranch_scc1 L_loopx')
    step_wait('L_vs')
    if wlate: A(f's_cmp_eq_u32 s{sT}, 46\ns_cbranch_scc1 L_wl')
    dma_tile(sOFF, sSLA, None, 0, pre, vnt)
    A(f's_cmp_eq_u32 s{sT}, 27\ns_cbranch_scc1 L_spb')
    A('L_vmid:')
    if bal:
        A(f'v_readfirstlane_b32 s{sT2}, {v(vR+2)}\ns_nop 0')
        if bneg and lastneg: A(f's_add_i32 s{sT1}, s{sT2}, s{sT}\ns_cmp_lt_i32 s{sT1}, 0\ns_cbranch_scc1 L_vdn')
    if nend:
        A(f's_cmp_ge_u32 s{sT}, {46-nend}\ns_cbranch_scc0 L_vpc')
        dma_tile(sOFF, sSLA, Dend if Dend < 18 else None, pre, 9, vnt)
        A('s_branch L_vpe\nL_vpc:')
    if bal:
        A(f's_cmp_gt_i32 s{sT2}, s{sT}\ns_cbranch_scc1 L_vup')
        if bneg and not lastneg: A(f's_add_i32 s{sT1}, s{sT2}, s{sT}\ns_cmp_lt_i32 s{sT1}, 0\ns_cbranch_scc1 L_vdn')
    dma_tile(sOFF, sSLA, D, pre, 9, vnt)
    A('L_vpe:')
    A(f's_mov_b32 s{sT1}, s{sSLA}\ns_mov_b32 s{sSLA}, s{sSLB}\ns_mov_b32 s{sSLB}, s{sT1}')
    A(f's_add_u32 s{sT}, s{sT}, 1\ns_add_u32 s{sPUB}, s{sPUB}, 4\ns_branch L_vloop')
    A('L_loopx:')
    stamp(4)
    if lred:
        A('s_mov_b64 exec, 0xffff\ns_nop 3')
        for t in range(12): A(f'ds_write_b32 {v(vSK)}, {v(vO+4*t)} offset:{64*t}')
        A('s_mov_b64 exec, -1')
    else:
        xsum(vLS, vT)
        A(f's_lshl_b32 s{sT1}, s{sWAVE}, 10\ns_add_u32 s{sT1}, s{sT1}, {OCB}\nv_lshlrev_b32 {v(vA)}, 2, {v(vLANE)}\nv_add_u32 {v(vA)}, s{sT1}, {v(vA)}')
        A('s_mov_b64 exec, 0xffff')
        for t in range(12): A(f'ds_write_b32 {v(vA)}, {v(vO+4*t)} offset:{64*t}')
        A(f's_mov_b64 exec, 1\nds_write2_b32 {v(vA)}, {v(vML)}, {v(vLS)} offset0:192 offset1:193\ns_mov_b64 exec, -1')
    A('s_waitcnt lgkmcnt(0)\ns_barrier')
    A(f's_cmp_ge_u32 s{sJ}, 5\ns_cbranch_scc1 L_sdone')
    if not wearly and not wlate and po >= 0: wo_frags()
    A(f's_lshl_b32 s{sT1}, s{sH}, 3\ns_lshl_b32 s{sT2}, s{sWAVE}, 1\ns_add_u32 s{sT1}, s{sT1}, s{sT2}\ns_lshl_b32 s{sT1}, s{sT1}, 11\ns_add_u32 s{sT1}, s{sT1}, {OP}\ns_add_u32 s{sT2}, s{sT1}, 2048')
    A(f'v_mov_b32 {v(vA)}, 1024')
    def o_addr():
        A(f's_mul_i32 s{sT3}, s{sWAVE}, 384\ns_add_u32 s{sT3}, s{sT3}, {OBF}\nv_mul_u32_u24 {v(vAD)}, 6, {v(vLANE)}\nv_add_u32 {v(vAD)}, s{sT3}, {v(vAD)}')
        A(f'v_bfe_u32 {v(vT+2)}, {v(vLANE)}, 2, 2\nv_mul_u32_u24 {v(vT+2)}, 384, {v(vT+2)}\nv_lshrrev_b32 {v(vT+3)}, 4, {v(vLANE)}\nv_lshl_add_u32 {v(vT+2)}, {v(vT+3)}, 3, {v(vT+2)}\nv_add_u32 {v(vAD+1)}, {OBF}, {v(vT+2)}')
        A(f's_lshl_b32 s{sN0}, s{sJ}, 2\ns_add_u32 s{sN0}, s{sN0}, s{sWAVE}\ns_lshl_b32 s{sN0}, s{sN0}, 5\ns_add_u32 s{sN0}, s{sN0}, s{sH}\ns_lshl_b32 s{sN0}, s{sN0}, {9 if y8 else 10}\ns_add_u32 s{sN0}, s{sN0}, {YP}')
        if po < 0 and not wearly: wo_frags(vAD+2)
    if po >= 0: o_addr()
    mko = lambda b: [wsload(b, vL16, sT1), wsload(b+4, vL16, sT2), wsload(b+8, vA, sT1), wsload(b+12, vA, sT2)]
    w0_, w1_, l0_, l1_, on_ = vQ, vQ+1, vQ+2, vQ+3, vQ+4
    def useo(b):
        A(f'v_max_f32 {v(vT)}, {v(b+8)}, {v(b+12)}\nv_sub_f32 {v(w0_)}, {v(b+8)}, {v(vT)}\nv_sub_f32 {v(w1_)}, {v(b+12)}, {v(vT)}\nv_exp_f32 {v(w0_)}, {v(w0_)}\nv_exp_f32 {v(w1_)}, {v(w1_)}\ns_nop 0')
        A(f'v_mul_f32 {v(l0_)}, {v(b+9)}, {v(w0_)}\nv_fmac_f32 {v(l0_)}, {v(b+13)}, {v(w1_)}\nv_rcp_f32 {v(l1_)}, {v(l0_)}')
        for k in range(3): A(f'v_mul_f32 {v(on_+k)}, {v(b+k)}, {v(w0_)}\nv_fmac_f32 {v(on_+k)}, {v(b+4+k)}, {v(w1_)}')
    if wlate:
        for x in mko(vF): A(x)
        A(f'v_lshrrev_b32 {v(vT)}, 2, {v(vLANE)}\nv_lshlrev_b32 {v(vT)}, 6, {v(vT)}\nv_and_b32 {v(vT+1)}, 3, {v(vLANE)}\nv_lshl_add_u32 {v(vT)}, {v(vT+1)}, 3, {v(vT)}\nv_add_u32 {v(vAL)}, s{sSLC}, {v(vT)}')
        A('s_waitcnt vmcnt(4)')
        for s_ in range(6):
            for t in range(2):
                f = vW + 24*t + 4*s_
                A(f'ds_read_b64_tr_b16 {v(f,2)}, {v(vAL)} offset:{2048*s_+32*t}\nds_read_b64_tr_b16 {v(f+2,2)}, {v(vAL)} offset:{2048*s_+32*t+1024}')
            if s_ % 2 == 1 and s_ < 5: A('s_waitcnt lgkmcnt(4)')
        A(f's_mov_b32 s{sCNT}, {spin}\ns_branch L_po_w')
        poll('L_po', mko(vF), [vF+3, vF+7, vF+11, vF+15], 4, 'L_po_w')
        useo(vF)
    elif po: poll2('L_po', mko, 4, vF, vF+16, 4, po if po > 0 else o_addr, useo)
    else:
        (polls if sel & 1 else poll)('L_po', mko(vF), [vF+3, vF+7, vF+11, vF+15], 4)
        useo(vF)
    stamp(5)
    for k in range(3): fdiv(on_+4+k, on_+k, l0_, l1_, vT)
    put3_bf16(on_+4, vT, vAD)
    A('s_waitcnt lgkmcnt(0)\ns_barrier')
    for s in range(6): A(f'ds_read2_b64 {v(vO+4*s,4)}, {v(vAD+1)} offset0:{8*s} offset1:{8*s+4}')
    for s in range(6):
        A(f's_waitcnt lgkmcnt({5-s})')
        for t in range(2):
            c = '0' if s == 0 else v(vS+4*t, 4)
            A(f'v_mfma_f32_16x16x32_bf16 {v(vS+4*t,4)}, {v(vO+4*s,4)}, {v(vW+24*t+4*s,4)}, {c}')
    if y8:
        A(f'v_mov_b32 {v(vT+1)}, {v(vTAG)}\nv_lshlrev_b32 {v(vA)}, 3, {v(vLANE)}\ns_nop 5')
        A(f'v_cvt_pk_bf16_f32 {v(vT)}, {v(vS)}, {v(vS+4)}')
        A(f'buffer_store_dwordx2 {v(vT,2)}, {v(vA)}, {srd(rWS)}, s{sN0} offen sc1')
    else:
        A(f'v_mov_b32 {v(vT+2)}, {v(vTAG)}\nv_mov_b32 {v(vT+3)}, {v(vTAG)}\ns_nop 5')
        A(f'v_mov_b32 {v(vT)}, {v(vS)}\nv_mov_b32 {v(vT+1)}, {v(vS+4)}')
        A(f'buffer_store_dwordx4 {v(vT,4)}, {v(vL16)}, {srd(rWS)}, s{sN0} offen sc1')
    A('L_sdone:')
    if fixdur:
        A(f'L_fix:\ns_memrealtime s[98:99]\ns_waitcnt lgkmcnt(0)\ns_sub_u32 s98, s98, s96\ns_cmp_lt_u32 s98, {fixdur*100}\ns_cbranch_scc1 L_fix')
    stamp(6)
    if stamps:
        A(f's_cmp_lg_u32 s{sWAVE}, 0\ns_cbranch_scc1 L_end\ns_waitcnt vmcnt(0)')
        stamp(7)
        write_stamps(0, 's')
    A('s_endpgm')

    def soft_pass(n, addr, off):
        X = vF
        for i in range(n): A(f'ds_read_b32 {v(vT+8+i)}, {v(addr)} offset:{off*i}')
        for i in range(n):
            A(f's_waitcnt lgkmcnt({n-1-i})\nv_lshlrev_b32 {v(X+2*i)}, 16, {v(vT+8+i)}\nv_and_b32 {v(X+2*i+1)}, 0xffff0000, {v(vT+8+i)}\nv_max3_f32 {v(vM)}, {v(X+2*i)}, {v(X+2*i+1)}, {v(vM)}')
        xsum(vM, vT, 'v_max_f32')
        A(f'v_mul_f32 {v(vT)}, s{sL2E}, {v(vM)}\nv_sub_f32 {v(vAL)}, {v(vML)}, {v(vT)}\nv_mov_b32 {v(vML)}, {v(vT)}\nv_exp_f32 {v(vAL)}, {v(vAL)}')
        for k in range(2*n): A(f'v_fma_f32 {v(X+k)}, {v(X+k)}, s{sL2E}, -{v(vML)}')
        for k in range(2*n): A(f'v_exp_f32 {v(X+k)}, {v(X+k)}')
        A(f'v_mul_f32 {v(vLS)}, {v(vLS)}, {v(vAL)}')
        for i in range(n):
            A(f'v_cvt_pk_bf16_f32 {v(vT+8+i)}, {v(X+2*i)}, {v(X+2*i+1)}\nv_add_f32 {v(vLS)}, {v(vLS)}, {v(X+2*i)}\nv_add_f32 {v(vLS)}, {v(vLS)}, {v(X+2*i+1)}')
            A(f'ds_write_b32 {v(addr)}, {v(vT+8+i)} offset:{off*i}')
    if kbal:
        A('L_kup:')
        dma_tile(sOFF, sSLA, D+bal, pre, 9, knt)
        A('s_branch L_kpe\nL_kdn:')
        dma_tile(sOFF, sSLA, D-bneg, pre, 9, knt)
        A('s_branch L_kpe')
    if bal:
        A('; ---- a workgroup that lags the others keeps more loads in flight for a few steps')
        A('L_vup:')
        dma_tile(sOFF, sSLA, D+bal, pre, 9, vnt)
        A('s_branch L_vpe')
        if bneg:
            A('L_vdn:')
            dma_tile(sOFF, sSLA, D-bneg, pre, 9, vnt)
            A('s_branch L_vpe')
    if wlate:
        A('; ---- nothing left to stream: the wo slice of this wave (192 rows x 32 columns) follows the last V block')
        A(f'L_wl:\ns_cmp_ge_u32 s{sJ}, 5\ns_cselect_b32 s{rW2+2}, 0, s{rW2+2}')
        A(f'v_lshrrev_b32 {v(vT)}, 2, {v(vLANE)}\nv_mul_u32_u24 {v(vT)}, 1280, {v(vT)}\nv_and_b32 {v(vT+1)}, 3, {v(vLANE)}\nv_lshl_add_u32 {v(vA)}, {v(vT+1)}, 4, {v(vT)}\ns_mov_b32 s{sT1}, 0')
        for i in range(12):
            A(f's_add_u32 m0, s{sSLA if False else sSLC}, {1024*i}')
            A(f's_add_u32 s{sT1}, s{sT1}, 20480' if i else 's_nop 0')
            A(f'buffer_load_dwordx4 {v(vA)}, {srd(rW2)}, s{sT1} offen {w2nt} lds')
        A('s_branch L_vpe')
    A('L_spa:')
    soft_pass(1, vPA, 0)
    A('s_branch L_vmid')
    A('L_spb:')
    if not noex:
        A(f's_mov_b32 s{sCNT}, {spin*8}')
        A(f'L_vchk:\ns_waitcnt lgkmcnt(0)\nv_readfirstlane_b32 s{sT1}, {v(vR+1)}\ns_sub_u32 s{sCNT}, s{sCNT}, 1\ns_cmp_eq_u32 s{sCNT}, 0\ns_cbranch_scc1 L_vnoc')
        A(f's_cmp_lg_u32 s{sT1}, 0\ns_cbranch_scc1 L_vnoc\n{chk}\ns_branch L_vchk\nL_vnoc:')
    A(f'v_lshl_add_u32 {v(vPA)}, {v(vLANE)}, 2, s{sSTG}')
    soft_pass(5, vPA, 256)
    for t in range(12): A(f'v_mul_f32 {v(vO+4*t)}, {v(vAL)}, {v(vO+4*t)}')
    if lred:
        xsum(vLS, vT)
        A(f's_lshl_b32 s{sT1}, s{sWAVE}, 10\ns_add_u32 s{sT1}, s{sT1}, {OCB}\nv_lshlrev_b32 {v(vSK)}, 2, {v(vLANE)}\nv_add_u32 {v(vSK)}, s{sT1}, {v(vSK)}')
        A(f's_mov_b64 exec, 1\nds_write2_b32 {v(vSK)}, {v(vML)}, {v(vLS)} offset0:192 offset1:193\ns_mov_b64 exec, -1')
    if wearly == 1:
        A(f's_cmp_ge_u32 s{sJ}, 5\ns_cbranch_scc1 L_vmid\ns_waitcnt lgkmcnt(0)')
        wo_frags()
        A('s_waitcnt lgkmcnt(0)')
    if wearly == 2 and not wlate:
        A(f's_cmp_ge_u32 s{sJ}, 5\ns_cbranch_scc1 L_vmid')
        A(f'v_lshrrev_b32 {v(vT)}, 2, {v(vLANE)}\nv_lshlrev_b32 {v(vT)}, 8, {v(vT)}\nv_and_b32 {v(vT+1)}, 3, {v(vLANE)}\nv_lshl_add_u32 {v(vT)}, {v(vT+1)}, 3, {v(vT)}')
        A(f's_lshl_b32 s{sT1}, s{sWAVE}, 6\ns_add_u32 s{sT1}, s{sT1}, {WREG}\nv_add_u32 {v(vA)}, s{sT1}, {v(vT)}')
        for s_ in range(max(6, 9-pre)):
            if pre + s_ < 9: dma_tile(sOFF, sSLA, D, pre + s_, pre + s_ + 1, vnt)
            if s_ < 6:
                A('s_waitcnt lgkmcnt(4)')
                for t in range(2):
                    f = vW + 24*t + 4*s_
                    A(f'ds_read_b64_tr_b16 {v(f,2)}, {v(vA)} offset:{8192*s_+32*t}\nds_read_b64_tr_b16 {v(f+2,2)}, {v(vA)} offset:{8192*s_+32*t+4096}')
        A('s_waitcnt lgkmcnt(0)\ns_branch L_vpe')
    A('s_branch L_vmid')
    def hwait(n, lbl, hsl=hsl):
        A(f's_mov_b32 s{sCNT}, {spin*8}\n{lbl}:\nds_read_b32 {v(vT)}, {v(vXF)}\ns_sub_u32 s{sCNT}, s{sCNT}, 1\ns_cmp_eq_u32 s{sCNT}, 0\ns_cbranch_scc1 {lbl}_ok')
        A(f's_waitcnt lgkmcnt(0)\nv_readfirstlane_b32 s{sT0}, {v(vT)}\ns_nop 0\ns_cmp_ge_u32 s{sT0}, {4*n}\ns_cbranch_scc1 {lbl}_ok\n{f"s_sleep {hsl}" if hsl and not nosleep else ""}\ns_branch {lbl}\n{lbl}_ok:')
    vXA, vXF, vXB = vQ+12, vQ+13, vQ+14
    A('L_helper:')
    inhelper[0] = True
    A(f's_getreg_b32 s{sT3}, hwreg(HW_REG_XCC_ID, 2, 1)')
    A('s_waitcnt lgkmcnt(0)')
    A(f's_sub_u32 s{sT0}, s38, s36\ns_min_u32 s{sT0}, s{sT0}, {cap}\ns_sub_u32 s{sT0}, s{sT0}, {thr}\ns_sub_u32 s{sT1}, 0, s{sT0}')
    A(f's_cmp_eq_u32 s{sT3}, 0\ns_cselect_b32 s{sT0}, s{sT0}, s{sT1}')
    A(f'v_mov_b32 {v(vP)}, s{sT0}\nv_mov_b32 {v(vP+1)}, s{sT3}\nv_mov_b32 {v(vP+2)}, 0')
    A(f's_lshl_b32 s{sT0}, s{sIDX}, 4\ns_add_u32 s{sT0}, s{sT0}, s{sSLT}\ns_lshl_b32 s{sT0}, s{sT0}, 4\ns_add_u32 s{sT0}, s{sT0}, {VOTE}')
    if gord in (1, 3):
        if qdel >= 0: A(f'v_mov_b32 {v(vXF)}, {FLG+32}\nv_mov_b32 {v(vT)}, 0\nds_write_b32 {v(vXF)}, {v(vT)}\ns_waitcnt lgkmcnt(0)')
        if warm == 2: A('s_branch L_warm\nL_warm_ret:')
        A('s_barrier')
        if warm == 1: A('s_branch L_warm\nL_warm_ret:')
    A(f's_waitcnt vmcnt(0)\nv_add_u32 {v(vTAG)}, {TAGC:#x}, {v(vTAG)}\nv_mov_b32 {v(vP+3)}, {v(vTAG)}')
    A(f's_mov_b64 exec, 1\nbuffer_store_dwordx4 {v(vP,4)}, {v(vL16)}, {srd(rWS)}, s{sT0} offen sc1\ns_mov_b64 exec, -1')
    sCA, sCB2 = 42, 43
    A(f's_mul_i32 s{sT0}, s{sRHO}, 3\ns_lshr_b32 s{sCA}, s{sT0}, 5\ns_add_u32 s{sT0}, s{sT0}, 2\ns_lshr_b32 s{sCB2}, s{sT0}, 5')
    A(f'v_lshrrev_b32 {v(vT)}, 5, {v(vLANE)}\nv_mul_u32_u24 {v(vT)}, 12, {v(vT)}\nv_bfe_u32 {v(vT+1)}, {v(vLANE)}, 4, 1\ns_sub_u32 s{sT0}, s{sCB2}, s{sCA}\nv_mul_u32_u24 {v(vT+1)}, s{sT0}, {v(vT+1)}')
    A(f'v_add3_u32 {v(vT)}, {v(vT)}, {v(vT+1)}, s{sCA}\nv_and_b32 {v(vT+1)}, 15, {v(vLANE)}\nv_min_u32 {v(vT+1)}, 9, {v(vT+1)}\nv_lshlrev_b32 {v(vT+1)}, 4, {v(vT+1)}\nv_lshl_add_u32 {v(vAL)}, {v(vT)}, 8, {v(vT+1)}')
    A(f's_andn2_b32 s{sT1}, s2, 4')
    vote_slot(sT1, sT2, sT3)
    A(f's_lshl_b32 s{sT2}, s{sT2}, 4\ns_add_u32 s{sT2}, s{sT2}, s{sT3}\ns_lshl_b32 s{sT2}, s{sT2}, 4\nv_mov_b32 {v(vM)}, s{sT2}\ns_mov_b32 s{rK+5}, {VOTE}')
    A(f's_mul_i32 s{sT0}, s{sH}, {5*4096}\ns_lshl_b32 s{sT1}, s{sB}, 10\ns_add_u32 s{sT0}, s{sT0}, s{sT1}\ns_add_u32 s{rK}, s{sT0}, {P1}')
    for p in range(1, 5): A(f's_add_u32 s{rK+p}, s{rK}, {4096*p}')
    A(f's_sub_u32 s{sU2}, s{sU2}, 5')
    A(f'v_mov_b32 {v(vS+1)}, 0\nv_mov_b32 {v(vS+6)}, 0\nv_mov_b32 {v(vS+7)}, 0')
    A(f'v_mul_u32_u24 {v(vA)}, 6, {v(vLANE)}\nv_add_u32 {v(vA)}, {QL}, {v(vA)}')
    if qdel >= 0 and gord not in (1, 3): A(f'v_mov_b32 {v(vXF)}, {FLG+32}\nv_mov_b32 {v(vT)}, 0\nds_write_b32 {v(vXF)}, {v(vT)}\ns_waitcnt lgkmcnt(0)')
    A('s_barrier' if gord in (1, 3) else 's_barrier\ns_barrier')
    if htouch:
        A('; (translations needed later in the run, values unused)')
        A(f's_mul_i32 s{sT0}, s{sRHO}, 1572864\ns_load_dword s96, {sp(sV)}, s{sT0}\ns_add_u32 s{sT0}, s{sT0}, 1572860\ns_load_dword s97, {sp(sK)}, s{sT0}\ns_load_dword s98, {sp(sV)}, s{sT0}')
        if htouch == 2: A(f's_mul_i32 s{sT0}, s{sH}, {192*1280}\ns_load_dword s99, {sp(sWO)}, s{sT0}\ns_load_dword s96, {sp(sWD)}, 0')
        if htouch >= 3: A(f's_sub_u32 s{sT0}, s{sT0}, 1572860\ns_load_dword s99, {sp(sK)}, s{sT0}\ns_mov_b32 s{sT0}, 0x400000\ns_load_dword s97, {sp(sWS)}, s{sT0}')
    if qdel >= 0: hwait(1, 'L_hwq')
    stamp(1)
    mkq = lambda b: [wsload(b+4*p, vL16, rK+p) for p in range(5)] + [wsload(b+20, vAL, rK+5), wsload(b+24, vM, rK+5)]
    QR = vW; E = vW + 3
    def useq(b):
        for k in range(3):
            A(f'v_add_f32 {v(QR+k)}, {v(b+k)}, {v(b+4+k)}')
        for p in range(2, 5):
            for k in range(3): A(f'v_add_f32 {v(QR+k)}, {v(QR+k)}, {v(b+4*p+k)}')
        put3_bf16(QR, vT, vA)
        A(f'v_and_b32 {v(vT)}, 15, {v(vLANE)}\nv_cmp_gt_u32 vcc, 10, {v(vT)}\nv_readfirstlane_b32 s{sT2}, {v(b+25)}\ns_nop 0\nv_cndmask_b32 {v(E)}, 0, {v(b+20)}, vcc')
    if pq: poll2('L_pq', mkq, 7, vF, vO, 1, pq, useq)
    else:
        (polls if sel & 4 else poll)('L_pq', mkq(vF), [vF+4*p+3 for p in range(5 if nopoll else 0, 7)], 1)
        useq(vF)
    for mode in ['quad_perm:[1,0,3,2]', 'quad_perm:[2,3,0,1]', 'row_half_mirror', 'row_mirror']:
        A(f's_nop 1\nv_add_u32_dpp {v(E)}, {v(E)}, {v(E)} {mode} row_mask:0xf bank_mask:0xf')
    if dbgv:
        A(f's_mul_i32 s{sT0}, s{sRHO}, 3\ns_and_b32 s{sT0}, s{sT0}, 31\ns_cmp_ge_u32 s{sT0}, 3\ns_cbranch_scc1 L_nodbg')
        A(f'v_readlane_b32 s{sT0}, {v(E)}, 16\nv_readlane_b32 s{sT1}, {v(E)}, 48')
        A(f's_nop 1\ns_add_u32 s{sT3}, s{sT0}, 5000\ns_mul_i32 s{sT3}, s{sT3}, 10000\ns_add_u32 s{sT3}, s{sT3}, s{sT1}\ns_add_u32 s{sT3}, s{sT3}, 5000')
        A(f's_lshl_b32 s{sP}, s{sCB2}, 2\nv_mov_b32 {v(vT+5)}, s{sP}\nv_mov_b32 {v(vT+6)}, s{sT3}\nglobal_store_dword {v(vT+5)}, {v(vT+6)}, {sp(sDBG)}\nL_nodbg:')
    A(f'v_lshrrev_b32 {v(E)}, 31, {v(E)}\nv_xor_b32 {v(E)}, s{sT2}, {v(E)}')
    if force >= 0: A(f'v_lshrrev_b32 {v(E)}, 5, {v(vLANE)}\nv_lshrrev_b32 {v(E)}, {v(E)}, {force}\nv_and_b32 {v(E)}, 1, {v(E)}')
    sF = [36, 37, 38, 39]
    A('s_nop 0')
    for g in range(4): A(f'v_readlane_b32 s{sF[g]}, {v(E)}, {16*g}')
    sRG = 97
    if rot >= 0: rot3(sRG, sT3)
    else: A(f's_mov_b32 s{sRG}, 0')
    A(f's_mov_b32 s{sT0}, 0\ns_mov_b32 s{sT1}, 0')
    for i in range(3):
        A(f's_mul_i32 s{sT3}, s{sRHO}, 3\ns_add_u32 s{sT3}, s{sT3}, s{sRG}\ns_lshl_b32 s{sT3}, s{sT3}, 19')
        A(f's_lshr_b32 s{sT2}, s{sT3}, 24\ns_cmp_eq_u32 s{sT2}, s{sCA}\ns_cselect_b32 s{sXD}, s{sF[0]}, s{sF[1]}\ns_cselect_b32 s{sXS}, s{sF[2]}, s{sF[3]}')
        for acc, base, fl in [(sT0, sK, sXD), (sT1, sV, sXS)]:
            A(f's_add_u32 s{sT2}, s{base}, s{sT3}\ns_lshr_b32 s{sT2}, s{sT2}, 21\ns_xor_b32 s{sT2}, s{sT2}, s{fl}\ns_and_b32 s{sT2}, s{sT2}, 1\ns_lshl_b32 s{sT2}, s{sT2}, {i}\ns_or_b32 s{acc}, s{acc}, s{sT2}')
        if i < 2: A(f's_add_u32 s{sRG}, s{sRG}, 1\ns_cmp_eq_u32 s{sRG}, 3\ns_cselect_b32 s{sRG}, 0, s{sRG}')
    if nonuma: A(f's_mov_b32 s{sT0}, {nonuma >> 1}\ns_mov_b32 s{sT1}, {nonuma >> 1}')
    A(f's_xor_b32 s{sXD}, s{sT0}, s{sT1}\ns_cselect_b32 s{sXS}, 0, 1')
    A(f'v_mov_b32 {v(vT+4)}, s{sT0}\nv_mov_b32 {v(vT+5)}, s{sT1}\nv_mov_b32 {v(vT+3)}, {FLG}\nds_write_b64 {v(vT+3)}, {v(vT+4,2)}')
    A(f'v_mov_b32 {v(vT+8)}, 0\nv_mov_b32 {v(vT+9)}, s{sXS}\nv_mov_b32 {v(vT+10)}, 0\nv_mov_b32 {v(vT+11)}, 0\nds_write_b128 {v(vT+3)}, {v(vT+8,4)} offset:16')
    if stamps:
        A(f's_lshl_b32 s{sT1}, s{sXD}, 0\ns_or_b32 s{sT1}, s{sT1}, s{sT1}\ns_lshl_b32 s{sT0}, s2, 2\ns_add_u32 s{sT0}, s{sT0}, 0x20100000')
        A(f'v_mov_b32 {v(vT+5)}, s{sT0}\nv_mov_b32 {v(vT+6)}, s{sT1}\nglobal_store_dword {v(vT+5)}, {v(vT+6)}, {sp(sWS)}')
    stamp(2)
    A('s_waitcnt lgkmcnt(0)\ns_barrier')
    A('s_waitcnt vmcnt(0)')
    A(f's_cmp_ge_u32 s{sJ}, 5\ns_cselect_b32 s{sHASW1}, 1, 0\ns_cmp_lt_u32 s{sU2}, 80\ns_cselect_b32 s{sHASW1}, s{sHASW1}, 0')
    A(f's_cmp_eq_u32 s{sHASW1}, 0\ns_cbranch_scc1 L_hx')
    A(f's_mul_i32 s{sR}, s{sU2}, 52429\ns_lshr_b32 s{sR}, s{sR}, 18\ns_mul_i32 s{sT0}, s{sR}, 5\ns_sub_u32 s{sCB}, s{sU2}, s{sT0}')
    A(f's_mul_i32 s{sRB}, s{sU2}, 52429\ns_lshr_b32 s{sRB}, s{sRB}, 20\ns_mul_i32 s{sT0}, s{sRB}, 20\ns_sub_u32 s{sSLC2}, s{sU2}, s{sT0}')
    vWD, vG4 = vS, vS+1
    A(f'v_lshrrev_b32 {v(vT)}, 4, {v(vLANE)}\nv_and_b32 {v(vT+1)}, 15, {v(vLANE)}\nv_lshlrev_b32 {v(vT+1)}, 4, {v(vT+1)}')
    A(f'v_mul_u32_u24 {v(vWD)}, 1280, {v(vT)}\nv_add_u32 {v(vWD)}, {v(vWD)}, {v(vT+1)}\nv_lshl_add_u32 {v(vG4)}, {v(vT)}, 10, {v(vT+1)}')
    A(f'v_lshrrev_b32 {v(vT)}, 5, {v(vLANE)}\nv_mul_u32_u24 {v(vT)}, {8*5*4096}, {v(vT)}\nv_and_b32 {v(vT+1)}, 31, {v(vLANE)}\nv_lshl_add_u32 {v(vA)}, {v(vT+1)}, 4, {v(vT)}')
    A(f's_lshr_b32 s{sT0}, s{sR}, 1\ns_add_u32 s{sT0}, s{sT0}, 32\ns_mul_i32 s{sT0}, s{sT0}, {5*4096}\ns_and_b32 s{sT1}, s{sR}, 1\ns_lshl_b32 s{sT1}, s{sT1}, 9\ns_add_u32 s{sT0}, s{sT0}, s{sT1}\ns_add_u32 s{rK}, s{sT0}, {P1}')
    for p in range(1, 5): A(f's_add_u32 s{rK+p}, s{rK}, {4096*p}')
    G = vF
    poll('L_pg', [wsload(G+20*b+4*p, vA, rK+p) + f' offset:{1024*b}' if False else
                  f'buffer_load_dwordx4 {v(G+20*b+4*p,4)}, {v(vA)}, {srd(rWS)}, s{rK+p} offen offset:{1024*b} sc1' for b in range(4) for p in range(5)],
         [G+20*b+4*p+3 for b in range(4) for p in range(5)], 2)
    A(f'v_and_b32 {v(vA)}, 31, {v(vLANE)}\nv_mul_u32_u24 {v(vA)}, 6, {v(vA)}\nv_add_u32 {v(vA)}, {HL}, {v(vA)}')
    for b in range(4):
        g0 = G + 20*b
        for k in range(3):
            for p in range(1, 5): A(f'v_add_f32 {v(g0+k)}, {v(g0+k)}, {v(g0+4*p+k)}')
        rnd2(g0, g0+1, vT); rnd(g0+2, vT)
        for k in range(3): A(f'v_mov_b32 {v(g0+4+k)}, {v(g0+k)}')
        A('s_nop 1')
        for k in range(3): A(f'v_permlane32_swap_b32 {v(g0+k)}, {v(g0+4+k)}')
        for k in range(3):
            A(f'v_cmp_lt_f32 vcc, 0, {v(g0+k)}\ns_nop 1\nv_cndmask_b32 {v(vT)}, 0, 1.0, vcc\nv_mul_f32 {v(g0+k)}, {v(g0+k)}, {v(vT)}\nv_mul_f32 {v(g0+k)}, {v(g0+k)}, {v(g0+4+k)}')
        put3_bf16(g0, vT, vA)
        if b < 3: A(f'v_add_u32 {v(vA)}, 192, {v(vA)}')
    A(f'v_bfe_u32 {v(vT+2)}, {v(vLANE)}, 2, 2\nv_mul_u32_u24 {v(vT+2)}, 192, {v(vT+2)}\nv_lshrrev_b32 {v(vT+3)}, 4, {v(vLANE)}\nv_lshl_add_u32 {v(vT+2)}, {v(vT+3)}, 3, {v(vT+2)}\nv_add_u32 {v(vA)}, {HL}, {v(vT+2)}')
    A('s_waitcnt lgkmcnt(0)')
    for s in range(3): A(f'ds_read2_b64 {v(vQ+4*s,4)}, {v(vA)} offset0:{8*s} offset1:{8*s+4}')
    if xtra >= 0:
        A(f'v_mov_b32 {v(vXF)}, {FLG+16}')
        hwait(2, 'L_hww')
    A(f'v_lshrrev_b32 {v(vT)}, 2, {v(vLANE)}\nv_lshlrev_b32 {v(vT)}, 8, {v(vT)}\nv_and_b32 {v(vT+1)}, 3, {v(vLANE)}\nv_lshl_add_u32 {v(vT)}, {v(vT+1)}, 3, {v(vT)}\nv_add_u32 {v(vA)}, {WREG}, {v(vT)}')
    for s in range(3):
        A('s_waitcnt lgkmcnt(0)')
        trread_mfma(8, vA, 4096, vO, s == 0, vF, vQ+4*s)
        if s < 2: A(f'v_add_u32 {v(vA)}, 8192, {v(vA)}')
    sBPA = 39
    A(f's_lshl_b32 s{sBPA}, s{sCB}, 6\ns_add_u32 s{sBPA}, s{sBPA}, s{sR}\ns_lshl_b32 s{sBPA}, s{sBPA}, 10\ns_add_u32 s{sBPA}, s{sBPA}, {BP}')
    A('s_nop 4')
    BG = vW + 16
    for ww in range(4):
        t0 = BG + 4*ww
        A(f'v_mov_b32 {v(t0)}, {v(vO+8*ww)}\nv_mov_b32 {v(t0+1)}, {v(vO+8*ww+4)}\nv_mov_b32 {v(t0+2)}, {v(vTAG)}\nv_mov_b32 {v(t0+3)}, {v(vTAG)}')
    def b_publish():
        for ww in range(4):
            A(f'buffer_store_dwordx4 {v(BG+4*ww,4)}, {v(vL16)}, {srd(rWS)}, s{sBPA} offen sc1')
            if ww < 3: A(f's_add_u32 s{sBPA}, s{sBPA}, 16384')
    if not blate: b_publish()
    vG0, vG1, vX0, vX1, vXO = vS+2, vS+3, vS+4, vS+5, vS+6
    A(f's_mul_i32 s{sT0}, s{sRB}, 1280\ns_lshl_b32 s{sT1}, s{sSLC2}, 6\ns_add_u32 s{sT0}, s{sT0}, s{sT1}')
    A(f'v_and_b32 {v(vXO)}, 15, {v(vLANE)}\nv_lshlrev_b32 {v(vXO)}, 1, {v(vXO)}\nv_add_u32 {v(vXO)}, s{sT0}, {v(vXO)}')
    if otouch: A(f'global_load_ushort {v(vX0)}, {v(vXO)}, {sp(sOUT)}\ns_waitcnt vmcnt(0)')
    A(f'global_load_ushort {v(vX0)}, {v(vXO)}, {sp(sX)}\nglobal_load_ushort {v(vX1)}, {v(vXO)}, {sp(sX)} offset:32')
    sBG = 40
    A(f's_lshl_b32 s{sT0}, s{sSLC2}, 14\ns_lshl_b32 s{sT1}, s{sRB}, 8\ns_add_u32 s{sT0}, s{sT0}, s{sT1}\ns_add_u32 s{sBG}, s{sT0}, {BP}')
    for p in range(1, 4): A(f's_add_u32 s{sBG+p}, s{sBG}, {4096*p}')
    def b_gather():
        G = vF
        (polls if sel & 2 else poll)('L_pb', [wsload(G+4*p, vG4, sBG+p) for p in range(4)], [G+4*p+3 for p in range(4)], 5)
        if py >= 0 or not blate: b_math()
    def b_math():
        G = vF
        for k in range(2):
            A(f'v_add_f32 {v(G+k)}, {v(G+k)}, {v(G+4+k)}\nv_add_f32 {v(G+8+k)}, {v(G+8+k)}, {v(G+12+k)}\nv_add_f32 {v(G+k)}, {v(G+k)}, {v(G+8+k)}')
            xsum(G+k, vT, full=False)
        rnd2(G, G+1, vT)
        for k in range(2):
            A(f'v_mul_f32 {v(vT)}, s{sL2E}, {v(G+k)}\nv_max_f32 {v(vT)}, {f2u(-126.0):#x}, {v(vT)}\nv_exp_f32 {v(vT)}, -{v(vT)}\ns_nop 0\nv_add_f32 {v(vT)}, 1.0, {v(vT)}\nv_rcp_f32 {v(vT+1)}, {v(vT)}\ns_nop 0')
            fdiv(vG0+k, G+k, vT, vT+1, vT+2)
        rnd2(vG0, vG1, vT)
    if not blate: b_gather()
    A(f's_waitcnt vmcnt(0)\nv_lshlrev_b32 {v(vX0)}, 16, {v(vX0)}\nv_lshlrev_b32 {v(vX1)}, 16, {v(vX1)}')
    A(f's_lshl_b32 s{sT0}, s{sSLC2}, {14 if y8 else 15}\ns_lshl_b32 s{sT1}, s{sRB}, {7 if y8 else 8}\ns_add_u32 s{sT0}, s{sT0}, s{sT1}\ns_add_u32 s{rK}, s{sT0}, {YP}')
    for p in range(1, 8): A(f's_add_u32 s{rK+p}, s{rK}, {(2048 if y8 else 4096)*p}')
    vG8 = vS + 7
    A(f'v_lshrrev_b32 {v(vG8)}, 1, {v(vG4)}')
    if al: A('s_branch L_hx\n.p2align 12')
    A('L_hx:')
    if stamps == 5:
        A(f'v_mov_b32 {v(vXF)}, {FLG+16}')
        hwait(13, 'L_hws')
        A(f's_memrealtime {sp(sST+2*3)}\ns_waitcnt lgkmcnt(0)')
    if lead:
        A(f's_and_b32 s{sT0}, s2, {lmask}\ns_cmp_eq_u32 s{sT0}, 5\ns_cselect_b32 s{sT0}, 0, s{sXS}\ns_cmp_lg_u32 s{sT0}, 0\ns_cbranch_scc1 L_hb4')
    elif not bal: A(f's_cmp_lg_u32 s{sXS}, 0\ns_cbranch_scc1 L_hb4')
    sREC, sOTH = 36, 37
    A(f's_lshl_b32 s{sREC}, s{sRHO}, 1\ns_add_u32 s{sOTH}, s{sREC}, 1\ns_sub_u32 s{sOTH}, s{sOTH}, s{sHALF}\ns_add_u32 s{sREC}, s{sREC}, s{sHALF}')
    vXG = vQ + 15
    if xs:
        for r_ in (sREC, sOTH):
            A(f's_lshr_b32 s{sT0}, s{r_}, 7\ns_lshl_b32 s{sT0}, s{sT0}, 20\ns_and_b32 s{r_}, s{r_}, 127\ns_lshl_b32 s{r_}, s{r_}, 8\ns_add_u32 s{r_}, s{r_}, s{sT0}\ns_add_u32 s{r_}, s{r_}, {SCO}')
        A(f'v_and_b32 {v(vXG)}, 0xf0, {v(vL16)}\nv_lshrrev_b32 {v(vT)}, 4, {v(vLANE)}\nv_lshl_add_u32 {v(vXG)}, {v(vT)}, {xs}, {v(vXG)}')
    else:
        A(f's_mul_i32 s{sREC}, s{sREC}, 6144\ns_add_u32 s{sREC}, s{sREC}, {SCO}\ns_mul_i32 s{sOTH}, s{sOTH}, 6144\ns_add_u32 s{sOTH}, s{sOTH}, {SCO}')
        A(f'v_mov_b32 {v(vXG)}, {v(vL16)}')
    xoff = (lambda w, i: (2*w + i) << 17) if xs else (lambda w, i: 1536*w + 1024*i)
    A(f'v_add_u32 {v(vXA)}, {STG}, {v(vL16)}\nv_mov_b32 {v(vXF)}, {FLG+16}\nv_and_b32 {v(vT)}, 3, {v(vLANE)}\nv_cmp_eq_u32 vcc, 2, {v(vT)}\nv_mov_b32 {v(vT)}, -20\ns_nop 0\nv_cndmask_b32 {v(vT)}, 8, {v(vT)}, vcc\nv_add_u32 {v(vXB)}, {v(vXA)}, {v(vT)}')
    sE0, sE1 = 96, 98
    A(f's_bitcmp1_b32 s{sXD}, 0\ns_cselect_b32 s{sE0}, 0xffffff00, 0\ns_bitcmp1_b32 s{sXD}, 1\ns_cselect_b32 s{sE0+1}, -1, 0\ns_bitcmp1_b32 s{sXD}, 2\ns_cselect_b32 s{sE1}, 0xffffff, 0\ns_mov_b32 s{sE1+1}, 0')
    sTO = 38
    def cp_pub(i):
        A(f's_memrealtime {sp(sP)}\ns_lshl_b32 s{sT1}, s2, 4\ns_add_u32 s{sT1}, s{sT1}, {TS + 4096*i}\nv_mov_b32 {v(vS+11)}, {v(vTAG)}\ns_waitcnt lgkmcnt(0)\ns_add_u32 s{sTO}, s{sP}, 0')
        A(f'v_mov_b32 {v(vS+8)}, s{sTO}\ns_mov_b64 exec, 1\nbuffer_store_dwordx4 {v(vS+8,4)}, {v(vL16)}, {srd(rWS)}, s{sT1} offen sc1\ns_mov_b64 exec, -1')
    CG = vW + 32
    def cp_load(i):
        A(f'v_lshlrev_b32 {v(vT+2)}, 6, {v(vLANE)}\nv_bfe_u32 {v(vT+3)}, {v(vLANE)}, 1, 2\nv_lshl_add_u32 {v(vT+2)}, {v(vT+3)}, 4, {v(vT+2)}\ns_mov_b32 s{sT1}, {TS + 4096*i}')
        A(f'buffer_load_dwordx4 {v(CG,4)}, {v(vT+2)}, {srd(rWS)}, s{sT1} offen sc1\ns_memrealtime {sp(sP)}')
    def cp_use():
        A(f's_waitcnt vmcnt(0) lgkmcnt(0)\ns_sub_u32 s{sT0}, s{sP}, s{sTO}\nv_cmp_eq_u32 vcc, {v(CG+3)}, {v(vTAG)}\nv_subrev_u32 {v(CG)}, s{sTO}, {v(CG)}\nv_mov_b32 {v(vT)}, s{sT0}')
        A(f'v_cndmask_b32 {v(CG)}, {v(vT)}, {v(CG)}, vcc\nv_mov_b32 {v(vT)}, 0x190\nv_mov_b32 {v(vT+1)}, -400\nv_med3_i32 {v(CG)}, {v(CG)}, {v(vT)}, {v(vT+1)}')
        xsum(CG, vT, 'v_add_u32')
        A(f'ds_read_b32 {v(vT+2)}, {v(vXF)}\nv_readfirstlane_b32 s{sT0}, {v(CG)}\ns_nop 0\ns_ashr_i32 s{sT0}, s{sT0}, 6')
        A(f's_abs_i32 s{sT1}, s{sT0}\ns_sub_i32 s{sT1}, s{sT1}, {dead}\ns_max_i32 s{sT1}, s{sT1}, 0\ns_mul_i32 s{sT1}, s{sT1}, {gain}\ns_lshr_b32 s{sT1}, s{sT1}, 8\ns_min_u32 s{sT1}, s{sT1}, {kmax}')
        A(f's_waitcnt lgkmcnt(0)\nv_readfirstlane_b32 s{sT2}, {v(vT+2)}\ns_nop 0\ns_lshr_b32 s{sT2}, s{sT2}, 2\ns_add_u32 s{sT2}, s{sT2}, s{sT1}\ns_cmp_eq_u32 s{sT1}, 0\ns_cselect_b32 s{sT2}, 0, s{sT2}')
        A(f's_sub_i32 s{sT1}, 0, s{sT2}\ns_cmp_lt_i32 s{sT0}, 0\ns_cselect_b32 s{sT2}, s{sT2}, s{sT1}\nv_mov_b32 {v(vT)}, s{sT2}\nds_write_b32 {v(vXF)}, {v(vT)} offset:8')
    def rk_issue(i):
        A(f'v_lshlrev_b32 {v(vT+2)}, {rsp+2}, {v(vLANE)}\nv_bfe_u32 {v(vT+3)}, {v(vLANE)}, 1, 2\nv_lshl_add_u32 {v(vT+2)}, {v(vT+3)}, {rsp}, {v(vT+2)}\ns_mov_b32 s{sT0}, {0x360000 + (256 << rsp)*i}')
        A(f'buffer_load_dword {v(CG)}, {v(vT+2)}, {srd(rWS)}, s{sT0} offen sc1\ns_lshl_b32 s{sT1}, s2, {rsp}\ns_add_u32 s{sT1}, s{sT1}, s{sT0}')
        for k in range(4): A(f'v_mov_b32 {v(vS+8+k)}, {v(vTAG)}')
        A(f's_mov_b64 exec, {(1 << (1 << (rsp-4))) - 1}\nbuffer_store_dwordx4 {v(vS+8,4)}, {v(vL16)}, {srd(rWS)}, s{sT1} offen sc1\ns_mov_b64 exec, -1')
    def rk_use(n, w):
        A(f's_waitcnt vmcnt({w})\nv_cmp_eq_u32 vcc, {v(CG)}, {v(vTAG)}\ns_nop 0\ns_bcnt1_i32_b64 s{sT1}, vcc\ns_sub_i32 s{sT1}, s{sT1}, {rc0}\ns_max_i32 s{sT1}, s{sT1}, 0')
        A(f's_mul_i32 s{sT1}, s{sT1}, s{sT1}\ns_mul_i32 s{sT1}, s{sT1}, {rg}\ns_lshr_b32 s{sT1}, s{sT1}, 8\ns_min_u32 s{sT1}, s{sT1}, {kmax}\ns_add_u32 s{sT1}, s{sT1}, {n}')
        A(f'v_mov_b32 {v(vT)}, s{sT1}\nds_write_b32 {v(vXF)}, {v(vT)} offset:8')
    def cp_all(sel_):
        for i, n in enumerate(cpl):
            if bal and n != 23 and sel_(n):
                hwait(n, f'L_cp{i}')
                if rank: rk_issue(i); rk_use(n, 1)
                else: cp_pub(i); hwait(n + cgap, f'L_cg{i}'); cp_load(i); cp_use()
    cp_all(lambda n: n < 23)
    hwait(pubt, 'L_hw0')
    stamp(1)
    if bal and 23 in cpl: (rk_issue if rank else cp_pub)(cpl.index(23))
    if lead:
        A(f'v_mov_b32 {v(vT+2)}, {GO}\ns_and_b32 s{sT0}, s2, {lmask}\ns_cmp_lg_u32 s{sT0}, 5\ns_cbranch_scc1 L_go')
        hwait(lead, 'L_hwl')
        A(f's_mov_b64 exec, 1\nbuffer_store_dword {v(vTAG)}, {v(vT+2)}, {srd(rWS)}, 0 offen sc1\ns_mov_b64 exec, -1')
        if lpipe:
            A('L_go:')
            for k in range(3): A(f'buffer_load_dword {v(vT+4+k)}, {v(vT+2)}, {srd(rWS)}, 0 offen sc1\ns_sleep {lpipe}')
            A('L_go2:')
            for k in range(4):
                A(f'buffer_load_dword {v(vT+4+(k+3)%4)}, {v(vT+2)}, {srd(rWS)}, 0 offen sc1\nds_read_b32 {v(vT)}, {v(vXF)}\ns_waitcnt vmcnt(3) lgkmcnt(0)')
                A(f'v_cmp_eq_u32 vcc, {v(vT+4+k)}, {v(vTAG)}\nv_readfirstlane_b32 s{sT0}, {v(vT)}\ns_cbranch_vccnz L_go_ok\ns_cmp_ge_u32 s{sT0}, {4*fb}\ns_cbranch_scc1 L_go_ok')
            A('s_branch L_go2\nL_go_ok:')
        else:
            A(f'L_go:\nbuffer_load_dword {v(vT+3)}, {v(vT+2)}, {srd(rWS)}, 0 offen sc1\nds_read_b32 {v(vT)}, {v(vXF)}\ns_waitcnt vmcnt(0) lgkmcnt(0)')
            A(f'v_cmp_eq_u32 vcc, {v(vT+3)}, {v(vTAG)}\nv_readfirstlane_b32 s{sT0}, {v(vT)}\ns_cbranch_vccnz L_go_ok\ns_cmp_lt_u32 s{sT0}, {4*fb}\ns_cbranch_scc1 L_go\nL_go_ok:')
    stamp(3)
    def masked(i, lbl): return f's_cmp_eq_u64 {sp([sE0, sE1][i])}, 0\ns_cbranch_scc1 {lbl}{i}\ns_mov_b64 exec, {sp([sE0, sE1][i])}'
    if not (noex & 1):
        for i in range(2):
            A(masked(i, 'L_np'))
            for w in range(4):
                r = vF + 16*i + 4*w
                A(f'ds_read_b64 {v(r,2)}, {v(vXA)} offset:{1536*w+1024*i}\nds_read_b32 {v(r+2)}, {v(vXB)} offset:{1536*w+1024*i}\nv_mov_b32 {v(r+3)}, {v(vTAG)}')
            for w in range(4):
                r = vF + 16*i + 4*w
                A(f's_add_u32 s{sT0}, s{sREC}, {xoff(w, i)}\ns_waitcnt lgkmcnt({6-2*w})')
                A(f'buffer_store_dwordx4 {v(r,4)}, {v(vXG)}, {srd(rWS)}, s{sT0} offen {stfl}')
            A(f's_mov_b64 exec, -1\nL_np{i}:')
    if bal and rank and 23 in cpl: rk_use(24, 0)
    if lead: A(f's_cmp_lg_u32 s{sXS}, 0\ns_cbranch_scc1 L_hb4')
    if bal and rank: A(f's_cmp_lg_u32 s{sXS}, 0\ns_cbranch_scc1 L_hb4')
    hwait(gat, 'L_hw1')
    if bal and not rank and 23 in cpl: cp_load(cpl.index(23))
    if bal and not rank: A(f's_cmp_lg_u32 s{sXS}, 0\ns_cbranch_scc1 L_nox')
    if not (noex & 2):
        G = vO
        for k in range(8): A(f'v_mov_b32 {v(G+4*k+3)}, {v(vTAG)}')
        lds_ = []
        for i in range(2):
            t_ = masked(i, 'L_ng') + '\n'
            for w in range(4):
                t_ += f's_add_u32 s{sT0}, s{sOTH}, {xoff(w, i)}\nbuffer_load_dwordx4 {v(G+16*i+4*w,4)}, {v(vXG)}, {srd(rWS)}, s{sT0} offen {slfl}\n'
            lds_.append(t_ + f's_mov_b64 exec, -1\nL_ng{i}:')
        poll('L_px', lds_, [G+4*k+3 for k in range(8)], 8)
        for i in range(2):
            A(masked(i, 'L_nw'))
            for w in range(4): A(f'ds_write_b64 {v(vXA)}, {v(G+16*i+4*w,2)} offset:{1536*w+1024*i}\nds_write_b32 {v(vXB)}, {v(G+16*i+4*w+2)} offset:{1536*w+1024*i}')
            A(f's_mov_b64 exec, -1\ns_waitcnt lgkmcnt(0)\nL_nw{i}:')
    A(f'v_mov_b32 {v(vT)}, 1\nds_write_b32 {v(vXF)}, {v(vT)} offset:4')
    stamp(4)
    if bal and not rank: A('L_nox:')
    if bal and not rank and 23 in cpl: cp_use()
    A('L_hb4:')
    A(f'v_mul_u32_u24 {v(vA)}, 12, {v(vLANE)}\nv_add_u32 {v(vA)}, {OCB}, {v(vA)}\nv_mov_b32 {v(vAL)}, {OCB+768}')
    A(f's_lshl_b32 s{sT1}, s{sH}, 3\ns_add_u32 s{sT1}, s{sT1}, s{sJ}\ns_lshl_b32 s{sT1}, s{sT1}, 11\ns_add_u32 s{sT1}, s{sT1}, {OP}')
    Gm = vQ + 16
    r0 = vP
    ml = vT + 4
    def weights():
        A(f'v_max3_f32 {v(ml)}, {v(Gm)}, {v(Gm+2)}, {v(Gm+4)}\nv_max_f32 {v(ml)}, {v(ml)}, {v(Gm+6)}')
        for w in range(4): A(f'v_sub_f32 {v(Gm+2*w)}, {v(Gm+2*w)}, {v(ml)}')
        for w in range(4): A(f'v_exp_f32 {v(Gm+2*w)}, {v(Gm+2*w)}')
        A(f'v_mov_b32 {v(r0+3)}, {v(vTAG)}\nv_mov_b32 {v(ml+3)}, {v(vTAG)}\nv_mov_b32 {v(ml+2)}, {v(vTAG)}')
        A(f'v_mul_f32 {v(ml+1)}, {v(Gm)}, {v(Gm+1)}')
        for w in range(1, 4): A(f'v_fmac_f32 {v(ml+1)}, {v(Gm+2*w)}, {v(Gm+2*w+1)}')
    if lred:
        A(f'v_mov_b32 {v(vXF)}, {FLG+16}')
        hwait(29, 'L_hw2', 8)
        if stamps == 5: A(f's_memrealtime {sp(sST+2*4)}\ns_waitcnt lgkmcnt(0)')
        for w in range(4): A(f'ds_read_b64 {v(Gm+2*w,2)}, {v(vAL)} offset:{1024*w}')
        A('s_waitcnt lgkmcnt(0)')
        weights()
        for w in range(1, 4): A(f'v_add_u32 {v(vQ+4+w)}, {1024*w}, {v(vA)}')
        if bal and max(cpl) > 23:
            A(f's_mov_b32 s{sOTH}, s{sT1}')
            cp_all(lambda n: n > 23)
            A(f's_mov_b32 s{sT1}, s{sOTH}\nv_mov_b32 {v(r0+3)}, {v(vTAG)}')
        A('s_barrier')
        stamp(5)
        for w in range(4):
            a_ = vA if w == 0 else vQ+4+w
            A(f'ds_read2_b32 {v(vF+4*w,2)}, {v(a_)} offset0:0 offset1:1\nds_read_b32 {v(vF+4*w+2)}, {v(a_)} offset:8')
    else:
        A('s_barrier')
        stamp(5)
        for w in range(4): A(f'ds_read_b64 {v(Gm+2*w,2)}, {v(vAL)} offset:{1024*w}')
        for w in range(4):
            A(f'ds_read2_b32 {v(vF+4*w,2)}, {v(vA)} offset0:0 offset1:1\nds_read_b32 {v(vF+4*w+2)}, {v(vA)} offset:8')
            if w < 3: A(f'v_add_u32 {v(vA)}, 1024, {v(vA)}')
        A('s_waitcnt lgkmcnt(8)')
        weights()
    A('s_waitcnt lgkmcnt(0)')
    for k in range(3): A(f'v_mul_f32 {v(r0+k)}, {v(Gm)}, {v(vF+k)}')
    for w in range(1, 4):
        for k in range(3): A(f'v_fmac_f32 {v(r0+k)}, {v(Gm+2*w)}, {v(vF+4*w+k)}')
    A(f'buffer_store_dwordx4 {v(r0,4)}, {v(vL16)}, {srd(rWS)}, s{sT1} offen sc1')
    A(f's_mov_b64 exec, 1\nbuffer_store_dwordx4 {v(ml,4)}, {v(vL16)}, {srd(rWS)}, s{sT1} offen offset:1024 sc1\ns_mov_b64 exec, -1')
    if hb5: A(f's_cmp_ge_u32 s{sJ}, 5\ns_cbranch_scc1 L_hnb5\ns_barrier\nL_hnb5:')
    A(f's_cmp_eq_u32 s{sHASW1}, 0\ns_cbranch_scc1 L_hdone')
    if blate:
        b_publish()
        b_gather()
    G = vW
    if y8:
        mky = lambda b: [f'buffer_load_dwordx2 {v(b+4*p+2,2)}, {v(vG8)}, {srd(rWS)}, s{rK+p} offen sc1' for p in range(8)]
        def usey(b):
            for p in range(4):
                A(f'v_lshlrev_b32 {v(G+2*p)}, 16, {v(b+8*p+2)}\nv_and_b32 {v(G+2*p+1)}, 0xffff0000, {v(b+8*p+2)}\nv_lshlrev_b32 {v(G+8)}, 16, {v(b+8*p+6)}\nv_and_b32 {v(G+9)}, 0xffff0000, {v(b+8*p+6)}')
                A(f'v_add_f32 {v(G+2*p)}, {v(G+2*p)}, {v(G+8)}\nv_add_f32 {v(G+2*p+1)}, {v(G+2*p+1)}, {v(G+9)}')
    else:
        mky = lambda b: [wsload(b+4*p, vG4, rK+p) for p in range(8)]
        def usey(b):
            for k in range(2):
                for p in range(4): A(f'v_add_f32 {v(G+2*p+k)}, {v(b+8*p+k)}, {v(b+8*p+4+k)}')
    if py: poll2('L_py', mky, 8, vF+16, vO, 6, py if py > 0 else b_math, usey)
    else:
        (polls if sel & 2 else poll)('L_py', mky(vF+16), [vF+16+4*p+3 for p in range(8)], 6)
        usey(vF+16)
    stamp(6)
    for k in range(2):
        A(f'v_add_f32 {v(G+k)}, {v(G+k)}, {v(G+2+k)}\nv_add_f32 {v(G+4+k)}, {v(G+4+k)}, {v(G+6+k)}\nv_add_f32 {v(G+k)}, {v(G+k)}, {v(G+4+k)}')
    for k in range(2): xsum(G+k, vT+k, full=False)
    rnd2(G, G+1, vT)
    A(f'v_mul_f32 {v(G)}, {v(G)}, {v(vG0)}\nv_mul_f32 {v(G+1)}, {v(G+1)}, {v(vG1)}')
    rnd2(G, G+1, vT)
    if perturb:
        A(f's_cmp_eq_u32 s{sU2}, 0\ns_cselect_b32 s{sT0}, {f2u(perturb/1000):#x}, 0\ns_mov_b64 exec, 1\nv_add_f32 {v(vX0)}, s{sT0}, {v(vX0)}\ns_mov_b64 exec, -1')
    if pall: A(f'v_mul_f32 {v(G)}, {f2u(1+pall/1000):#x}, {v(G)}\nv_mul_f32 {v(G+1)}, {f2u(1+pall/1000):#x}, {v(G+1)}')
    A(f'v_add_f32 {v(G)}, {v(G)}, {v(vX0)}\nv_add_f32 {v(G+1)}, {v(G+1)}, {v(vX1)}\nv_cvt_pk_bf16_f32 {v(G)}, {v(G)}, {v(G+1)}')
    A(f's_mov_b64 exec, 0xffff\nglobal_store_short {v(vXO)}, {v(G)}, {sp(sOUT)} {ofl}\nglobal_store_short_d16_hi {v(vXO)}, {v(G)}, {sp(sOUT)} offset:32 {ofl}')
    A(f's_cmp_lg_u32 s{sU2}, 0\ns_cbranch_scc1 L_hdone')
    A(f's_mov_b64 exec, 1\nv_mov_b32 {v(vT)}, 0\nglobal_store_dword {v(vT)}, {v(vTAG)}, {sp(sWS)} sc1')
    A('L_hdone:')
    if stamps:
        A('s_waitcnt vmcnt(0)')
        stamp(7)
        write_stamps(256, 'h')
    A('L_end:\ns_endpgm')
    A(f'''.section .rodata,"a"
.p2align 6
.amdhsa_kernel {NAME}_kernel
  .amdhsa_next_free_vgpr {NV}
  .amdhsa_next_free_sgpr 100
  .amdhsa_accum_offset {NV}
  .amdhsa_group_segment_fixed_size 0
  .amdhsa_kernarg_size 96
  .amdhsa_user_sgpr_count 2
  .amdhsa_user_sgpr_kernarg_segment_ptr 1
  .amdhsa_system_sgpr_workgroup_id_x 1
  .amdhsa_float_denorm_mode_32 3
.end_amdhsa_kernel''')
    open(fn, 'w').write('\n'.join(L) + '\n')

if __name__ == '__main__':
    fn = sys.argv[1]
    kw = {}
    for a in sys.argv[2:]:
        k, val = a.split('=')
        try: val = int(val)
        except ValueError: val = val.replace('+', ' ').replace('def', '')
        kw[k] = val
    gen(fn, **kw)
```
